```python
import torch

def _softmax(x, axis=-1):
    return torch.softmax(x, dim=axis)
def _gelu(x):
    return torch.nn.functional.gelu(x, approximate="tanh")
def _silu(x):
    return torch.nn.functional.silu(x)
def _sigmoid(x):
    return torch.sigmoid(x)
def _layernorm(x, axis=-1, eps=1e-5):
    m = x.mean(dim=axis, keepdim=True)
    v = x.var(dim=axis, keepdim=True, unbiased=False)
    return (x - m) / torch.sqrt(v + eps)
def _scatter_add(tgt, idx, src, axis=0):
    return tgt.clone().index_add_(axis, idx, src)
def _segment_sum(src, seg, n):
    out = torch.zeros((n,) + src.shape[1:], dtype=src.dtype)
    return out.index_add_(0, seg, src)
def _pad(x, pw):
    flat = tuple(v for pair in reversed(pw) for v in pair)
    return torch.nn.functional.pad(x, flat)

kernel_name = 'recurrent_scan__mha_block_cached__mixer_channel_mlp__decode'

def setup_inputs():

    _w = (lambda a: (lambda t: t.to(torch.bfloat16) if t.is_floating_point() else t)(torch.as_tensor(a)))
    def _A_setup():
        B, Sq, D = 4, 1, 512
        H, Sk, Dh = 32, 4096, 128
        return {
            "x": _w((lambda *s: torch.randn(*s, dtype=torch.bfloat16) * 0.1)(B, Sq, D)),
            "k_cache": _w((lambda *s: torch.randn(*s, dtype=torch.bfloat16) * 0.8)(B, H, Sk, Dh)),
            "v_cache": _w((lambda *s: torch.randn(*s, dtype=torch.bfloat16) * 3.2)(B, H, Sk, Dh)),
            "wq": _w((lambda *s: torch.randn(*s, dtype=torch.bfloat16) * 0.8)(D, H * Dh) * (D ** -0.5)),
            "wo": _w((lambda *s: torch.randn(*s, dtype=torch.bfloat16) * 3.2)(H * Dh, D) * ((H * Dh) ** -0.5)),
        }
    _A_in = _A_setup()

    def _B_setup():
        B, S, D, F = 4, 1, 512, 1792
        return {
            "x": _w((lambda *s: torch.randn(*s, dtype=torch.bfloat16) * 0.1)(B, S, D)),
            "w1": _w((lambda *s: torch.randn(*s, dtype=torch.bfloat16) * 3.2)(D, F) * (D ** -0.5)),
            "b1": _w((lambda *s: torch.randn(*s, dtype=torch.bfloat16) * 3.2)(F)),
            "w2": _w((lambda *s: torch.randn(*s, dtype=torch.bfloat16) * 3.2)(F, D) * (F ** -0.5)),
            "b2": _w((lambda *s: torch.randn(*s, dtype=torch.bfloat16) * 3.2)(D)),
        }
    _B_in = _B_setup()

    return {
        "A_x": _A_in["x"],
        "A_k_cache": _A_in["k_cache"],
        "A_v_cache": _A_in["v_cache"],
        "A_wq": _A_in["wq"],
        "A_wo": _A_in["wo"],
        "B_x": _B_in["x"],
        "B_w1": _B_in["w1"],
        "B_b1": _B_in["b1"],
        "B_w2": _B_in["w2"],
        "B_b2": _B_in["b2"],
    }

def reference(A_x, A_k_cache, A_v_cache, A_wq, A_wo, B_x, B_w1, B_b1, B_w2, B_b2):
    def _A_ref(x, k_cache, v_cache, wq, wo):
        B, Sq, D = x.shape
        H, Dh = 32, 128
        q = (lambda x, *d: x.permute(*d))((x @ wq).reshape(B, Sq, H, Dh), 0, 2, 1, 3)
        scores = torch.einsum("bhqd,bhkd->bhqk", q, k_cache) * (Dh ** -0.5)
        p = _softmax(scores, axis=-1)
        o = torch.einsum("bhqk,bhkd->bhqd", p, v_cache)
        return (lambda x, *d: x.permute(*d))(o, 0, 2, 1, 3).reshape(B, Sq, H * Dh) @ wo

    def _B_ref(x, w1, b1, w2, b2):
        y = _layernorm(x, axis=-1)
        h = _gelu(torch.einsum("bsd,df->bsf", y, w1) + b1)
        return torch.einsum("bsf,fd->bsd", h, w2) + b2

    x = A_x
    xn = _layernorm(x, axis=-1)
    s = _A_ref(xn, A_k_cache, A_v_cache, A_wq, A_wo)
    g = _silu(_B_ref(xn, B_w1, B_b1, B_w2, B_b2))
    return x + s * g
```

```python
import sys, math, struct
NAME = "recurrent_scan__mha_block_cached__mixer_channel_mlp__decode_kernel"

def f32(x):
    return "0x%08x" % struct.unpack("<I", struct.pack("<f", x))[0]

HEADER = """; Kernarg layout for this problem (104 bytes, ptrs only, base s[0:1]):
"""

XN, YY, QP, MLM, MLL, FLD, OB = 0, 1024, 5120, 7168, 7232, 7424, 7680
OBS = 272
LDS_BYTES = 12288
WS_S, WS_ML, WS_U, WS_Z, WS_DIAG = 0, 0x80000, 0x100000, 0x180000, 0x200000
NUNIT = 224
CONS0 = 192
SPIN_MAX = 1 << 18

class Gen:
    def __init__(self, kvflags="nt", wflags="", mflags="nt", diag=False, DK=8, DV=8, pre=3, wdepth=2):
        self.L = []
        self.kvflags = kvflags
        self.wflags = wflags
        self.mflags = mflags
        self.diag = diag
        self.DK, self.DV, self.pre, self.wdepth = DK, DV, pre, wdepth
    def A(self, s):
        self.L.append("  " + s if not s.endswith(":") else s)
    def C(self, s):
        self.L.append("  ; " + s)

    def stamp(self, idx):
        if self.diag:
            self.A(f"s_memrealtime s[{64+2*idx}:{65+2*idx}]")
    def dump_stamps(self, n, vt):
        if not self.diag:
            return
        A = self.A
        A("s_waitcnt lgkmcnt(0)")
        A("s_lshl_b32 s60, s2, 3"); A("s_add_u32 s60, s60, s3"); A("s_lshl_b32 s60, s60, 7")
        A(f"s_add_u32 s60, s60, {WS_DIAG:#x}")
        A(f"v_mov_b32 v{vt}, s60")
        A("s_mov_b64 exec, 1")
        for j in range(n):
            A(f"v_mov_b32 v{vt+2}, s{64+2*j}"); A(f"v_mov_b32 v{vt+3}, s{65+2*j}")
            A(f"global_store_dwordx2 v{vt}, v[{vt+2}:{vt+3}], s[40:41] offset:{8*j}")
        A("s_getreg_b32 s60, hwreg(HW_REG_XCC_ID)")
        A(f"v_mov_b32 v{vt+2}, s60")
        A(f"global_store_dword v{vt}, v{vt+2}, s[40:41] offset:120")
        A("s_mov_b64 exec, -1")

    def row_allreduce(self, op, r):
        A = self.A
        for m in ("quad_perm:[1,0,3,2]", "quad_perm:[2,3,0,1]", "row_half_mirror", "row_mirror"):
            A("s_nop 1")
            A(f"v_{op}_f32_dpp v{r}, v{r}, v{r} {m} row_mask:0xf bank_mask:0xf")
    def wave_allreduce_add(self, r, t):
        A = self.A
        self.row_allreduce("add", r)
        for sw in ("v_permlane16_swap_b32", "v_permlane32_swap_b32"):
            A(f"v_mov_b32 v{t}, v{r}")
            A("s_nop 1")
            A(f"{sw} v{r}, v{t}")
            A(f"v_add_f32 v{r}, v{r}, v{t}")
    def rnd(self, d, s):
        self.A(f"v_cvt_pk_bf16_f32 v{d}, 0, v{s}")

    def layernorm(self, X, n, T, P, unpack_after=True):
        A = self.A
        s, t, q, d = T, T + 1, T + 2, T + 3
        red = (lambda r: self.wave_allreduce_add(r, t)) if n == 8 else (lambda r: self.row_allreduce("add", r))
        A(f"v_add_f32 v{s}, v{X}, v{X+1}")
        for i in range(2, n):
            A(f"v_add_f32 v{s}, v{s}, v{X+i}")
        red(s)
        A(f"v_mul_f32 v{s}, {f32(1.0/512)}, v{s}")
        A(f"v_sub_f32 v{d}, v{X}, v{s}")
        A(f"v_mul_f32 v{q}, v{d}, v{d}")
        for i in range(1, n):
            dd = d if i % 2 == 0 else t
            A(f"v_sub_f32 v{dd}, v{X+i}, v{s}")
            A(f"v_fmac_f32 v{q}, v{dd}, v{dd}")
        red(q)
        A(f"v_mul_f32 v{q}, {f32(1.0/512)}, v{q}")
        self.rnd(s, s)
        self.rnd(q, q)
        A(f"v_add_f32 v{q}, {f32(1e-5)}, v{q}")
        self.rnd(q, q)
        A(f"v_sqrt_f32 v{q}, v{q}")
        A("s_nop 0")
        self.rnd(q, q)
        A(f"v_rcp_f32 v{q}, v{q}")
        for i in range(n):
            A(f"v_sub_f32 v{X+i}, v{X+i}, v{s}")
        for i in range(n):
            self.rnd(X + i, X + i)
        for i in range(n):
            A(f"v_mul_f32 v{X+i}, v{X+i}, v{q}")
        for i in range(n // 2):
            A(f"v_cvt_pk_bf16_f32 v{P+i}, v{X+2*i}, v{X+2*i+1}")
        if unpack_after:
            self.unpack(X, P, n // 2)
    def unpack(self, X, P, n):
        for i in range(n):
            self.A(f"v_lshlrev_b32 v{X+2*i}, 16, v{P+i}")
            self.A(f"v_and_b32 v{X+2*i+1}, 0xffff0000, v{P+i}")

    def slabload(self, dst, srd, voff, stride, flags, last_inc=None, pace=None):
        A = self.A
        for e in range(8):
            r = dst + 4 * e
            if pace is not None and e >= pace:
                A(f"s_waitcnt vmcnt({pace-1})")
            A(f"buffer_load_dwordx4 v[{r}:{r+3}], v{voff}, {srd}, s50 offen {flags}".rstrip())
            inc = stride if e < 7 else last_inc
            if inc is not None:
                A(f"s_add_u32 s50, s50, {inc}")
    def slabperm(self, dst, src):
        A = self.A
        for d in range(4):
            for hf in range(2):
                jj = 2 * d + hf
                for q in range(4):
                    A(f"v_perm_b32 v{dst + 4*jj + q}, v{src + 4*(2*q+1) + d}, v{src + 4*(2*q) + d}, s{48 + hf}")
    def slabmfma(self, RD, RA, B, first):
        A = self.A
        for jj in range(8):
            b = B + 4 * jj
            c = "0" if first else f"v[{RD+4*jj}:{RD+4*jj+3}]"
            A(f"v_mfma_f32_16x16x32_bf16 v[{RD+4*jj}:{RD+4*jj+3}], v[{RA}:{RA+3}], v[{b}:{b+3}], {c}")

    def spin_begin(self, lab):
        self.A(f"s_mov_b32 s55, {SPIN_MAX}")
        self.A(f"{lab}:")
    def spin_end(self, lab, sleep):
        A = self.A
        A(f"s_sleep {sleep}")
        A("s_sub_u32 s55, s55, 1")
        A("s_cmp_lg_u32 s55, 0")
        A(f"s_cbranch_scc1 {lab}")
    def poll_counter(self, lab, off, want):
        A = self.A
        self.spin_begin(lab)
        A(f"global_load_dword v12, v10, s[38:39] offset:{off} sc1")
        A("s_waitcnt vmcnt(0)")
        A("v_readfirstlane_b32 s42, v12")
        A(f"s_cmp_ge_u32 s42, {want}")
        A(f"s_cbranch_scc1 {lab}_done")
        self.spin_end(lab, 16)
        A(f"{lab}_done:")
    def xl_reduce4(self, R):
        A = self.A
        A("s_nop 0")
        for d in range(2):
            A(f"v_permlane32_swap_b32 v{R+d}, v{R+d+2}")
        for d in range(2):
            A(f"v_add_f32 v{R+d}, v{R+d}, v{R+d+2}")
        A("s_nop 1")
        A(f"v_permlane16_swap_b32 v{R}, v{R+1}")
        A(f"v_add_f32 v{R}, v{R}, v{R+1}")
        A("s_nop 1")
        A(f"v_add_f32_dpp v{R}, v{R}, v{R} row_ror:8 row_mask:0xf bank_mask:0xf")

    def gen(self):
        A, C = self.A, self.C
        self.L.append(HEADER.rstrip())
        self.L.append(f"; @launch grid=(256,1,1) block=(512,1,1) lds={LDS_BYTES}")
        self.L.append('.amdgcn_target "amdgcn-amd-amdhsa--gfx950"')
        self.L.append(".text"); self.L.append(f".globl {NAME}"); self.L.append(".p2align 8")
        self.L.append(f".type {NAME},@function"); self.L.append(f"{NAME}:")
        A("s_cmp_ge_u32 s2, 256")
        A("s_cbranch_scc1 L_end")
        self.stamp(0)
        A("s_load_dwordx16 s[16:31], s[0:1], 0")
        A("s_load_dwordx8 s[32:39], s[0:1], 64")
        A("s_load_dwordx2 s[40:41], s[0:1], 96")
        A("v_lshrrev_b32 v1, 6, v0")
        A("v_and_b32 v2, 15, v0")
        A("v_readfirstlane_b32 s3, v1")
        A("v_bfe_u32 v3, v0, 4, 2")
        A("v_and_b32 v4, 63, v0")
        C("decode: h = 4*(wg&7) + ((wg>>3)&3); b = (wg>>5)&3; side = wg>>7")
        A("s_and_b32 s4, s2, 7"); A("s_lshl_b32 s4, s4, 2")
        A("s_bfe_u32 s5, s2, 0x20003"); A("s_or_b32 s4, s4, s5")
        A("s_bfe_u32 s5, s2, 0x20005")
        A("s_lshr_b32 s6, s2, 7")
        A("s_lshl_b32 s59, s5, 5"); A("s_or_b32 s59, s59, s4"); A("s_lshl_b32 s59, s59, 1"); A("s_or_b32 s59, s59, s6")
        C("s59 = producer index b*64 + 2h + side")
        A("s_cmp_ge_u32 s3, 4")
        A("s_cbranch_scc1 L_helper")
        self.stream()
        self.helper()
        A("L_end:")
        A("s_endpgm")
        L = self.L
        L.append('.section .rodata,"a"'); L.append(".p2align 6"); L.append(f".amdhsa_kernel {NAME}")
        L.append("  .amdhsa_next_free_vgpr 256"); L.append("  .amdhsa_next_free_sgpr 102"); L.append("  .amdhsa_accum_offset 256")
        L.append("  .amdhsa_group_segment_fixed_size 0"); L.append("  .amdhsa_kernarg_size 104")
        L.append("  .amdhsa_user_sgpr_count 2"); L.append("  .amdhsa_user_sgpr_kernarg_segment_ptr 1")
        L.append("  .amdhsa_system_sgpr_workgroup_id_x 1")
        L.append("  .amdhsa_float_denorm_mode_32 3")
        L.append(".end_amdhsa_kernel")
        return "\n".join(L) + "\n"

    def stream(self):
        A, C = self.A, self.C
        RING = 64
        P = 24
        Q = 8
        S = 40
        ACC = 48
        PLO, PHI = 12, 13
        VOFF = 5
        fl = self.kvflags
        DK, DV, pre = self.DK, self.DV, self.pre
        C("===== stream waves =====")
        A("v_lshlrev_b32 v5, 4, v2")
        A("v_lshl_or_b32 v5, v3, 12, v5")
        A("v_lshl_or_b32 v5, v1, 14, v5")
        A("s_lshl_b32 s7, s59, 19")
        A("s_mov_b32 s10, 0x80000"); A("s_mov_b32 s11, 0x20000")
        A("s_mov_b32 s14, 0x80000"); A("s_mov_b32 s15, 0x20000")
        A("s_mov_b32 s46, 0x80000"); A("s_mov_b32 s47, 0x20000")
        A("s_mov_b32 s50, 0")
        A("s_waitcnt lgkmcnt(0)")
        A("s_add_u32 s8, s18, s7"); A("s_addc_u32 s9, s19, 0")
        issued = []
        def load(slot, srd, so, tag=None):
            r = RING + 4 * slot
            A(f"buffer_load_dwordx4 v[{r}:{r+3}], v{VOFF}, {srd}, {so} offen offset:{(slot % 16)*256} {fl}".rstrip())
            issued.append(tag)
        def wait(tag):
            A(f"s_waitcnt vmcnt({len(issued) - 1 - issued.index(tag)})")
        for gi in range(pre):
            for j in range(16):
                load(16 * gi + j, "s[8:11]", "s50", (gi, j))
            A("s_add_u32 s50, s50, 0x10000")
        A("s_add_u32 s12, s20, s7"); A("s_addc_u32 s13, s21, 0")
        A("s_mov_b32 s52, 0xaaaaaaaa"); A("s_mov_b32 s53, 0xaaaaaaaa")
        A("s_mov_b32 s56, 0xcccccccc"); A("s_mov_b32 s57, 0xcccccccc")
        A("v_lshlrev_b32 v7, 5, v2")
        self.stamp(1)
        A("s_barrier")
        self.stamp(2)
        for jj in range(4):
            A(f"ds_read_b128 v[{24+8*jj}:{27+8*jj}], v7 offset:{QP + 512*jj}")
            A(f"ds_read_b128 v[{28+8*jj}:{31+8*jj}], v7 offset:{QP + 512*jj + 16}")
        A("s_waitcnt lgkmcnt(0)")
        for i in range(8):
            A(f"v_add_f32 v{24+i}, v{24+i}, v{32+i}")
            A(f"v_add_f32 v{40+i}, v{40+i}, v{48+i}")
        for i in range(8):
            A(f"v_add_f32 v{24+i}, v{24+i}, v{40+i}")
        for d in range(4):
            A(f"v_cvt_pk_bf16_f32 v{Q+d}, v{24+2*d}, v{25+2*d}")
        def qk(slots):
            for d in range(4):
                for slot in slots:
                    r = RING + 4 * slot
                    p = P + slot % 16
                    c = "0" if d == 0 else f"v{p}"
                    A(f"v_dot2_f32_bf16 v{p}, v{r+d}, v{Q+d}, {c}")
        def treduce(dst, mid=()):
            C("transposing reduction: lane (g,c) <- score of load c, key g")
            for t in range(8):
                A(f"v_add_f32_dpp v{P+t}, v{P+t}, v{P+t} row_ror:8 row_mask:0xf bank_mask:0x3")
            for t in range(8):
                A(f"v_add_f32_dpp v{P+t}, v{P+t+8}, v{P+t+8} row_ror:8 row_mask:0xf bank_mask:0xc")
            for t in range(4):
                A(f"v_add_f32_dpp v{P+t}, v{P+t}, v{P+t} row_half_mirror row_mask:0xf bank_mask:0x5")
            for t in range(4):
                A(f"v_add_f32_dpp v{P+t}, v{P+t+4}, v{P+t+4} row_half_mirror row_mask:0xf bank_mask:0xa")
            U0, U1, T0, T1 = P + 8, P + 9, P + 10, P + 11
            A(f"v_cndmask_b32 v{U0}, v{P+1}, v{P}, s[52:53]")
            A(f"v_cndmask_b32 v{U1}, v{P+3}, v{P+2}, s[52:53]")
            A(f"v_cndmask_b32 v{T0}, v{P}, v{P+1}, s[52:53]")
            A(f"v_cndmask_b32 v{T1}, v{P+2}, v{P+3}, s[52:53]")
            A("s_nop 1")
            A(f"v_add_f32_dpp v{T0}, v{U0}, v{T0} quad_perm:[1,0,3,2] row_mask:0xf bank_mask:0xf")
            A(f"v_add_f32_dpp v{T1}, v{U1}, v{T1} quad_perm:[1,0,3,2] row_mask:0xf bank_mask:0xf")
            A(f"v_cndmask_b32 v{U0}, v{T1}, v{T0}, s[56:57]")
            A(f"v_cndmask_b32 v{U1}, v{T0}, v{T1}, s[56:57]")
            if mid:
                for m in mid:
                    A(m)
            else:
                A("s_nop 1")
            A(f"v_add_f32_dpp v{dst}, v{U0}, v{U1} quad_perm:[2,3,0,1] row_mask:0xf bank_mask:0xf")
        C("catch-up over the prefetched groups; group `pre` is loaded into ring slots 0..15 meanwhile")
        nxt = 0
        for gi in range(pre):
            for j in range(0, 16, 2):
                wait((gi, j + 1))
                qk([16 * gi + j, 16 * gi + j + 1])
                if gi == 0:
                    want = j + 2 if (j < 8 or pre == 1) else 8
                elif gi == 1:
                    want = 8 + j // 2 + 1
                else:
                    want = 16
                while nxt < want:
                    load(nxt, "s[8:11]", "s50", (pre, nxt)); nxt += 1
            A("s_nop 0")
            treduce(S + 8 - pre + gi)
        assert nxt == 16
        for j in range(16 - DK):
            wait((pre, j))
            qk([j])
        A(f"s_mov_b32 s54, {pre}")
        A("s_branch L_kmid")
        A("L_kloop:")
        for j in range(16 - DK):
            A(f"s_waitcnt vmcnt({DK-1})")
            load(j + DK, "s[8:11]", "s50")
            qk([j])
        A("L_kmid:")
        C("the rest refills from the next group (V group 0 after the last K group)")
        A("s_add_u32 s50, s50, 0x10000")
        A("s_cmp_eq_u32 s54, 7")
        A("s_cselect_b32 s44, s12, s8"); A("s_cselect_b32 s45, s13, s9"); A("s_cselect_b32 s51, 0, s50")
        for j in range(16 - DK, 16):
            A(f"s_waitcnt vmcnt({DK-1})")
            load(j + DK - 16, "s[44:47]", "s51")
            qk([j])
        for i in range(7):
            A(f"v_mov_b32 v{S+i}, v{S+i+1}")
        treduce(S + 7, ("s_add_u32 s54, s54, 1", "s_cmp_lt_u32 s54, 8"))
        A("s_cbranch_scc1 L_kloop")
        self.stamp(3)
        A("s_mov_b32 s50, 0")
        for j in range(DK, DV):
            load(j, "s[12:15]", "s50")
        C("softmax over this row's 128 keys (true max of the partial; partials are merged exactly later)")
        M, Ls = 14, 15
        cs = math.log2(math.e) / math.sqrt(128.0)
        A(f"s_mov_b32 s58, {f32(cs)}")
        A(f"v_max3_f32 v{M}, v{S}, v{S+1}, v{S+2}")
        A(f"v_max3_f32 v{M}, v{M}, v{S+3}, v{S+4}")
        A(f"v_max3_f32 v{M}, v{M}, v{S+5}, v{S+6}")
        A(f"v_max_f32 v{M}, v{M}, v{S+7}")
        self.row_allreduce("max", M)
        A(f"v_mul_f32 v{M}, s58, v{M}")
        for i in range(8):
            A(f"v_fma_f32 v{S+i}, v{S+i}, s58, -v{M}")
        for i in range(8):
            A(f"v_exp_f32 v{S+i}, v{S+i}")
        for i in range(8):
            A(f"v_mov_b32 v{ACC+i}, 0")
        A(f"v_add_f32 v{Ls}, v{S}, v{S+1}")
        for i in range(2, 8):
            A(f"v_add_f32 v{Ls}, v{Ls}, v{S+i}")
        self.row_allreduce("add", Ls)
        A(f"v_lshrrev_b32 v7, 4, v0")
        A(f"v_lshlrev_b32 v16, 2, v7")
        A(f"v_min_u32 v{M}, -2, v{M}")
        A(f"v_min_u32 v{Ls}, -2, v{Ls}")
        A(f"ds_write_b32 v16, v{M} offset:{MLM}")
        A(f"ds_write_b32 v16, v{Ls} offset:{MLL}")
        A(f"v_mul_u32_u24 v17, {OBS}, v7")
        A("v_lshl_add_u32 v17, v2, 4, v17")
        A("s_mov_b32 s54, 0")
        assert DV >= DK
        def pv(slot):
            r = RING + 4 * slot
            for d in range(4):
                A(f"v_dot2c_f32_bf16_dpp v{ACC+2*d}, v{PLO}, v{r+d} row_newbcast:{slot} row_mask:0xf bank_mask:0xf")
                A(f"v_dot2c_f32_bf16_dpp v{ACC+2*d+1}, v{PHI}, v{r+d} row_newbcast:{slot} row_mask:0xf bank_mask:0xf")
        A("L_vloop:")
        A(f"v_cvt_pk_bf16_f32 v{PLO}, v{S}, 0")
        A(f"v_cvt_pk_bf16_f32 v{PHI}, 0, v{S}")
        for i in range(7):
            A(f"v_mov_b32 v{S+i}, v{S+i+1}")
        for j in range(16):
            if j == 16 - DV:
                A("s_add_u32 s50, s50, 0x10000")
            A(f"s_waitcnt vmcnt({DV-1})")
            load((j + DV) % 16, "s[12:15]", "s50")
            pv(j)
        A("s_add_u32 s54, s54, 1")
        A("s_cmp_lt_u32 s54, 8")
        A("s_cbranch_scc1 L_vloop")
        self.stamp(4)
        A("s_nop 1")
        for d in range(4):
            A(f"v_cvt_pk_bf16_f32 v{20+d}, v{ACC+2*d}, v{ACC+2*d+1}")
        A(f"ds_write_b128 v17, v[20:23] offset:{OB}")
        A("s_waitcnt lgkmcnt(0)")
        A("s_barrier")
        self.dump_stamps(5, 24)
        A("s_endpgm")

    def helper(self):
        A, C = self.A, self.C
        wf, mf = self.wflags, self.mflags
        RA, RD = 16, 32
        RB = 64
        ST = 192
        T = 224
        A("L_helper:")
        C("===== helper waves =====")
        A("s_sub_u32 s7, s3, 4")
        A("s_mov_b32 s48, 0x05040100"); A("s_mov_b32 s49, 0x07060302")
        C("wq block: rows 128j.., cols 128h..")
        A("v_lshlrev_b32 v5, 4, v2")
        A("v_lshl_or_b32 v5, v3, 16, v5")
        A("s_lshl_b32 s42, s7, 20"); A("s_lshl_b32 s43, s4, 8"); A("s_add_u32 s42, s42, s43")
        A("s_mov_b32 s10, 0x400000"); A("s_mov_b32 s11, 0x20000")
        A("v_add_u32 v5, s42, v5")
        A("v_lshlrev_b32 v6, 4, v4")
        A("s_lshl_b32 s42, s5, 10")
        A("v_add_u32 v7, s42, v6")
        A("s_mov_b32 s50, 0")
        A("s_waitcnt lgkmcnt(0)")
        A(f"global_load_dwordx4 v[{T}:{T+3}], v7, s[16:17]")
        A("s_mov_b32 s8, s22"); A("s_mov_b32 s9, s23")
        for n in range(4):
            self.slabload(RB + 32 * (n + 1), "s[8:11]", 5, 8192, wf, last_inc=(25 * 8192 if n < 3 else None))
        C("LDS init: sentinels for the 16 (m,l) pairs")
        A("v_lshlrev_b32 v8, 2, v4")
        A("v_mov_b32 v9, -1")
        A(f"ds_write_b32 v8, v9 offset:{MLM}")
        C("A operand address: xn[128j + 32n + 8kk]")
        A("s_lshl_b32 s43, s7, 8")
        A("v_lshlrev_b32 v8, 4, v3")
        A("v_add_u32 v8, s43, v8")
        A("s_waitcnt vmcnt(32)")
        self.stamp(1)
        self.unpack(T + 8, T, 4)
        self.layernorm(T + 8, 8, T + 16, T, unpack_after=False)
        A(f"ds_write_b128 v6, v[{T}:{T+3}] offset:{XN}")
        A("s_waitcnt vmcnt(24)")
        self.slabperm(RB, RB + 32)
        A("s_waitcnt lgkmcnt(0)")
        for n in range(4):
            A(f"ds_read_b128 v[{RA+4*n}:{RA+4*n+3}], v8 offset:{XN + 64*n}")
        A("s_waitcnt lgkmcnt(0)")
        self.slabmfma(RD, RA, RB, True)
        for n in range(1, 4):
            A(f"s_waitcnt vmcnt({8*(3-n)})")
            self.slabperm(RB + 32 * n, RB + 32 * (n + 1))
            A("s_nop 1")
            self.slabmfma(RD, RA + 4 * n, RB + 32 * n, False)
        A("s_lshl_b32 s42, s7, 9")
        A("v_lshlrev_b32 v9, 5, v2")
        A("v_add_u32 v9, s42, v9")
        A("s_nop 7")
        for jj in range(8):
            A(f"v_mov_b32 v{T+jj}, v{RD+4*jj}")
        A("s_mov_b64 exec, 0xffff")
        A(f"ds_write_b128 v9, v[{T}:{T+3}] offset:{QP}")
        A(f"ds_write_b128 v9, v[{T+4}:{T+7}] offset:{QP+16}")
        A("s_mov_b64 exec, -1")
        A("s_waitcnt lgkmcnt(0)")
        self.stamp(2)
        A("s_barrier")
        A("v_mov_b32 v10, 0")
        A("v_mov_b32 v11, 1")
        A("s_mov_b32 s14, 0x400000"); A("s_mov_b32 s15, 0x20000")
        A("s_cmp_lg_u32 s7, 0")
        A("s_cbranch_scc1 L_not0")
        C("helper 0: mark this WG's hand-off slots empty, MLP stage 1, then count in")
        for i in range(4):
            A(f"v_mov_b32 v{T+i}, -1")
        A("s_lshl_b32 s42, s59, 11")
        A("v_add_u32 v12, s42, v6")
        A(f"global_store_dwordx4 v12, v[{T}:{T+3}], s[40:41] sc1")
        A(f"global_store_dwordx4 v12, v[{T}:{T+3}], s[40:41] offset:1024 sc1")
        A("s_lshl_b32 s42, s59, 3"); A(f"s_add_u32 s42, s42, {WS_ML:#x}")
        A("v_mov_b32 v12, s42")
        A("s_mov_b64 exec, 1")
        A(f"global_store_dwordx2 v12, v[{T}:{T+1}], s[40:41] sc1")
        A("s_mov_b64 exec, -1")
        A(f"s_cmp_ge_u32 s2, {NUNIT}")
        A("s_cbranch_scc1 L_s1done")
        C("stage 1 unit: m = wg>>4 (hidden cols 128m..), ks = wg&15 (rows 32ks..)")
        A("v_lshlrev_b32 v12, 10, v3")
        A("v_lshl_add_u32 v12, v2, 4, v12")
        for t in range(4):
            A(f"global_load_dwordx4 v[{RB+32+4*t}:{RB+35+4*t}], v12, s[16:17] offset:{256*t}")
        A("s_and_b32 s42, s2, 15"); A("s_lshr_b32 s43, s2, 4")
        A(f"v_mul_u32_u24 v13, {8*3584}, v3")
        A("v_lshl_add_u32 v13, v2, 4, v13")
        A(f"s_mul_i32 s50, s42, {32*3584}"); A("s_lshl_b32 s43, s43, 8"); A("s_add_u32 s50, s50, s43")
        A("s_mov_b32 s12, s28"); A("s_mov_b32 s13, s29"); A(f"s_mov_b32 s14, {512*3584}")
        self.slabload(ST, "s[12:15]", 13, 3584, mf)
        A("s_waitcnt vmcnt(8)")
        self.unpack(RB, RB + 32, 16)
        self.layernorm(RB, 32, T, RB + 32)
        self.layernorm(RB, 32, T, RB + 32, unpack_after=False)
        for t in range(4):
            A(f"ds_write_b128 v12, v[{RB+32+4*t}:{RB+35+4*t}] offset:{YY + 256*t}")
        C("A operand: y[i>>2][32ks + 8kk]")
        A("v_lshrrev_b32 v13, 2, v2")
        A("v_lshlrev_b32 v13, 10, v13")
        A("v_lshl_add_u32 v13, v3, 4, v13")
        A("s_lshl_b32 s42, s42, 6")
        A("v_add_u32 v13, s42, v13")
        A("s_waitcnt vmcnt(0) lgkmcnt(0)")
        A(f"ds_read_b128 v[{RA}:{RA+3}], v13 offset:{YY}")
        self.slabperm(RB + 64, ST)
        A("s_waitcnt lgkmcnt(0)")
        self.slabmfma(RD, RA, RB + 64, True)
        A("s_lshl_b32 s42, s2, 11"); A(f"s_add_u32 s42, s42, {WS_U:#x}")
        A("v_lshlrev_b32 v12, 5, v4")
        A("v_add_u32 v12, s42, v12")
        A("s_nop 7")
        for jj in range(8):
            A(f"v_mov_b32 v{T+jj}, v{RD+4*jj}")
        A(f"global_store_dwordx4 v12, v[{T}:{T+3}], s[40:41] sc1")
        A(f"global_store_dwordx4 v12, v[{T+4}:{T+7}], s[40:41] offset:16 sc1")
        A("L_s1done:")
        A("s_waitcnt vmcnt(0)")
        A("s_mov_b64 exec, 1")
        A("global_atomic_add v10, v11, s[38:39] sc1")
        A("s_mov_b64 exec, -1")
        A("L_not0:")
        self.stamp(3)
        C("----- wo block: rows 128h.., cols 128j.. (paced) -----")
        A("v_lshlrev_b32 v5, 4, v2")
        A("v_lshl_or_b32 v5, v3, 13, v5")
        A("s_lshl_b32 s50, s4, 17"); A("s_lshl_b32 s43, s7, 8"); A("s_add_u32 s50, s50, s43")
        A("s_mov_b32 s8, s24"); A("s_mov_b32 s9, s25")
        def wo_round(n):
            self.slabload(ST, "s[8:11]", 5, 1024, wf, last_inc=25 * 1024, pace=self.wdepth)
            A("s_waitcnt vmcnt(0)")
            self.slabperm(RB + 32 * n, ST)
        wo_round(0); wo_round(1)
        A("s_cmp_lg_u32 s7, 1")
        A("s_cbranch_scc1 L_not1")
        A(f"s_cmp_ge_u32 s2, {NUNIT}")
        A("s_cbranch_scc1 L_not1")
        C("stage 2 unit: r = wg>>2 (hidden rows 32r..), cq = wg&3 (cols 128cq..)")
        A("s_mov_b32 s51, s50")
        A("s_lshr_b32 s60, s2, 2"); A("s_and_b32 s61, s2, 3")
        A("s_lshl_b32 s50, s60, 15"); A("s_lshl_b32 s43, s61, 8"); A("s_add_u32 s50, s50, s43")
        A("s_mov_b32 s12, s32"); A("s_mov_b32 s13, s33"); A(f"s_mov_b32 s14, {1792*1024}")
        self.slabload(ST, "s[12:15]", 5, 1024, mf)
        A("s_lshl_b32 s43, s60, 6")
        A("v_lshlrev_b32 v13, 4, v3")
        A("v_add_u32 v13, s43, v13")
        A(f"global_load_dwordx4 v[{T+16}:{T+19}], v13, s[30:31]")
        A("s_mov_b32 s50, s51")
        self.poll_counter("L_sp_u", 0, 256)
        C("U[(m*16 + 4t + (c&3))][c>>2][32sub + 8kk ..]")
        A("v_and_b32 v12, 3, v2"); A("v_lshlrev_b32 v12, 11, v12")
        A("v_lshrrev_b32 v13, 2, v2"); A("v_lshl_add_u32 v12, v13, 9, v12")
        A("v_lshl_add_u32 v12, v3, 5, v12")
        A("s_lshr_b32 s42, s60, 2"); A("s_lshl_b32 s42, s42, 15")
        A("s_and_b32 s43, s60, 3"); A("s_lshl_b32 s43, s43, 7"); A("s_add_u32 s42, s42, s43")
        A(f"s_add_u32 s42, s42, {WS_U:#x}")
        A("v_add_u32 v12, s42, v12")
        UU = RB + 64
        for t in range(4):
            A(f"global_load_dwordx4 v[{UU+8*t}:{UU+8*t+3}], v12, s[40:41] sc1")
            A(f"global_load_dwordx4 v[{UU+8*t+4}:{UU+8*t+7}], v12, s[40:41] offset:16 sc1")
            if t < 3:
                A("v_add_u32 v12, 0x2000, v12")
        self.slabperm(RB + 96, ST)
        self.unpack(T + 8, T + 16, 4)
        A("s_waitcnt vmcnt(0)")
        for i in range(8):
            A(f"v_add_f32 v{UU+i}, v{UU+i}, v{UU+8+i}")
            A(f"v_add_f32 v{UU+16+i}, v{UU+16+i}, v{UU+24+i}")
        for i in range(8):
            A(f"v_add_f32 v{UU+i}, v{UU+i}, v{UU+16+i}")
        for m in ("quad_perm:[1,0,3,2]", "quad_perm:[2,3,0,1]"):
            A("s_nop 1")
            for i in range(8):
                A(f"v_add_f32_dpp v{UU+i}, v{UU+i}, v{UU+i} {m} row_mask:0xf bank_mask:0xf")
        for i in range(8):
            self.rnd(UU + i, UU + i)
        for i in range(8):
            A(f"v_add_f32 v{UU+i}, v{UU+i}, v{T+8+i}")
        for i in range(8):
            self.rnd(UU + i, UU + i)
        C("gelu(tanh form) = u / (1 + exp(-2k(u + 0.044715 u^3)))")
        k2 = -2.0 * math.sqrt(2.0 / math.pi) * math.log2(math.e)
        A(f"s_mov_b32 s42, {f32(0.044715 * k2)}"); A(f"s_mov_b32 s43, {f32(k2)}")
        A("v_mov_b32 v12, s43")
        W = UU + 8
        for i in range(8):
            A(f"v_mul_f32 v{W+i}, v{UU+i}, v{UU+i}")
        for i in range(8):
            A(f"v_fma_f32 v{W+i}, v{W+i}, s42, v12")
        for i in range(8):
            A(f"v_mul_f32 v{W+i}, v{W+i}, v{UU+i}")
        for i in range(8):
            A(f"v_exp_f32 v{W+i}, v{W+i}")
        for i in range(8):
            A(f"v_add_f32 v{W+i}, 1.0, v{W+i}")
        for i in range(8):
            A(f"v_rcp_f32 v{W+i}, v{W+i}")
        for i in range(8):
            A(f"v_mul_f32 v{UU+i}, v{UU+i}, v{W+i}")
        for d in range(4):
            A(f"v_cvt_pk_bf16_f32 v{RA+d}, v{UU+2*d}, v{UU+2*d+1}")
        A("s_nop 1")
        self.slabmfma(RD, RA, RB + 96, True)
        C("Z[b=kk][line 4cq+p][r][c*2..]")
        A(f"s_mov_b32 s42, {16*56*128}")
        A("v_mul_lo_u32 v12, v3, s42")
        A("v_lshl_add_u32 v12, v2, 3, v12")
        A(f"s_mul_i32 s42, s61, {4*56*128}"); A("s_lshl_b32 s43, s60, 7"); A("s_add_u32 s42, s42, s43")
        A(f"s_add_u32 s42, s42, {WS_Z:#x}")
        A("v_add_u32 v12, s42, v12")
        A("s_nop 4")
        for jj in range(8):
            A(f"v_mov_b32 v{T+jj}, v{RD+4*jj}")
        for p in range(4):
            A(f"global_store_dwordx2 v12, v[{T+2*p}:{T+2*p+1}], s[40:41] sc1")
            if p < 3:
                A(f"v_add_u32 v12, {56*128}, v12")
        A("s_waitcnt vmcnt(0)")
        A("s_mov_b64 exec, 1")
        A("global_atomic_add v10, v11, s[38:39] offset:4 sc1")
        A("s_mov_b64 exec, -1")
        A("L_not1:")
        wo_round(2); wo_round(3)
        self.stamp(4)
        C("wait for the 16 (m,l) partials of this WG's stream waves")
        A("v_lshlrev_b32 v12, 2, v2")
        self.spin_begin("L_sp_m")
        A(f"ds_read_b32 v14, v12 offset:{MLM}")
        A(f"ds_read_b32 v15, v12 offset:{MLL}")
        A("s_waitcnt lgkmcnt(0)")
        A("v_max_u32 v13, v14, v15")
        A("v_cmp_eq_u32 vcc, -1, v13")
        A("s_cbranch_vccz L_sp_m_done")
        self.spin_end("L_sp_m", 4)
        A("L_sp_m_done:")
        CF = T + 28
        A("v_lshlrev_b32 v13, 4, v3")
        A(f"ds_read_b128 v[{CF}:{CF+3}], v13 offset:{MLM}")
        A(f"v_mov_b32 v{T}, v14")
        self.row_allreduce("max", T)
        A(f"v_sub_f32 v14, v14, v{T}")
        A("v_exp_f32 v14, v14")
        A("s_waitcnt lgkmcnt(0)")
        for r in range(4):
            A(f"v_sub_f32 v{CF+r}, v{CF+r}, v{T}")
        A(f"v_mul_f32 v{T+1}, v14, v15")
        for r in range(4):
            A(f"v_exp_f32 v{CF+r}, v{CF+r}")
        A("s_cmp_lg_u32 s7, 0")
        A("s_cbranch_scc1 L_nopub")
        C("helper 0 publishes (M, L) of this WG (same wave that marked the slot empty)")
        self.row_allreduce("add", T + 1)
        A(f"v_min_u32 v{T}, -2, v{T}")
        A(f"v_min_u32 v{T+1}, -2, v{T+1}")
        A("s_lshl_b32 s42, s59, 3"); A(f"s_add_u32 s42, s42, {WS_ML:#x}")
        A("v_mov_b32 v12, s42")
        A("s_mov_b64 exec, 1")
        A(f"global_store_dwordx2 v12, v[{T}:{T+1}], s[40:41] sc1")
        A("s_mov_b64 exec, -1")
        A("L_nopub:")
        G, XV, COL, F = T + 24, T + 25, T + 26, T + 8
        C("addresses for the tail")
        A(f"v_mul_u32_u24 v8, {OBS}, v2")
        A("v_lshl_add_u32 v8, v3, 4, v8")
        A("s_lshl_b32 s42, s7, 9"); A("s_lshl_b32 s43, s59, 11"); A("s_add_u32 s42, s42, s43")
        A("v_lshlrev_b32 v9, 3, v4")
        A("v_add_u32 v9, s42, v9")
        A(f"v_mov_b32 v{COL}, 0")
        A("v_mov_b32 v7, 0")
        A("s_mov_b32 s8, s40"); A("s_mov_b32 s9, s41"); A("s_mov_b32 s10, 0x80000")
        A("s_cmp_lg_u32 s7, 3")
        A("s_cbranch_scc1 L_nog")
        A(f"s_cmp_lt_u32 s2, {CONS0}")
        A("s_cbranch_scc1 L_nog")
        C("consumer (helper 3): batch bc, line cb: gate and merge factors")
        A(f"s_sub_u32 s62, s2, {CONS0}")
        A("s_lshr_b32 s60, s62, 4"); A("s_and_b32 s61, s62, 15")
        A("v_and_b32 v12, 7, v4"); A("v_lshlrev_b32 v12, 4, v12")
        C("S poll address: S[bc][8(l>>3) + it][line cb] + (l&7)*16")
        A("s_lshl_b32 s42, s60, 17"); A("s_lshl_b32 s43, s61, 7"); A("s_add_u32 s42, s42, s43")
        A("v_lshrrev_b32 v13, 3, v4")
        A("v_lshl_add_u32 v7, v13, 14, v12")
        A("v_add_u32 v7, s42, v7")
        A("v_lshrrev_b32 v13, 5, v4"); A("v_lshl_add_u32 v12, v13, 3, v12")
        A("v_bfe_u32 v13, v4, 4, 1"); A("v_add_u32 v12, v12, v13")
        A("s_lshr_b32 s42, s61, 2"); A("s_lshl_b32 s42, s42, 7")
        A("s_and_b32 s43, s61, 3"); A("s_lshl_b32 s43, s43, 1"); A("s_add_u32 s42, s42, s43")
        A(f"v_add_u32 v{COL}, s42, v12")
        A(f"v_lshlrev_b32 v13, 1, v{COL}")
        A(f"global_load_ushort v{G}, v13, s[34:35]")
        A("s_lshl_b32 s42, s60, 10")
        A(f"v_add_u32 v{COL}, s42, v13")
        A(f"global_load_ushort v{XV}, v{COL}, s[16:17]")
        self.poll_counter("L_sp_z", 4, NUNIT)
        A(f"s_mul_i32 s42, s62, {56*128}"); A(f"s_add_u32 s42, s42, {WS_Z + 3072:#x}")
        A("v_add_u32 v12, s42, v6")
        for it in range(7):
            A(f"global_load_dwordx4 v[{RD+4*it}:{RD+4*it+3}], v12, s[40:41] offset:{it*1024 - 3072} sc1")
        A("s_lshl_b32 s42, s60, 9"); A(f"s_add_u32 s42, s42, {WS_ML:#x}")
        A("v_lshlrev_b32 v12, 3, v4")
        A("v_add_u32 v12, s42, v12")
        A(f"v_lshlrev_b32 v{G}, 16, v{G}")
        A(f"v_lshlrev_b32 v{XV}, 16, v{XV}")
        A("s_waitcnt vmcnt(0)")
        for it in range(1, 7):
            for d in range(4):
                A(f"v_add_f32 v{RD+d}, v{RD+d}, v{RD+4*it+d}")
        self.xl_reduce4(RD)
        self.rnd(RD, RD)
        A(f"v_add_f32 v{RD}, v{RD}, v{G}")
        self.rnd(RD, RD)
        A(f"v_mul_f32 v{RD+1}, {f32(-math.log2(math.e))}, v{RD}")
        A(f"v_exp_f32 v{RD+1}, v{RD+1}")
        A("s_nop 0")
        A(f"v_add_f32 v{RD+1}, 1.0, v{RD+1}")
        A(f"v_rcp_f32 v{RD+1}, v{RD+1}")
        A("s_nop 0")
        A(f"v_mul_f32 v{G}, v{RD}, v{RD+1}")
        self.rnd(G, G)
        self.spin_begin("L_sp_p")
        A(f"global_load_dwordx2 v[{T}:{T+1}], v12, s[40:41] sc1")
        A("s_waitcnt vmcnt(0)")
        A(f"v_max_u32 v13, v{T}, v{T+1}")
        A("v_cmp_eq_u32 vcc, -1, v13")
        A("s_cbranch_vccz L_sp_p_done")
        self.spin_end("L_sp_p", 16)
        A("L_sp_p_done:")
        C("factor of producer p=lane: exp(M_p - M_h) / L_h, partner = lane^1")
        A(f"v_max_f32_dpp v{T+2}, v{T}, v{T} quad_perm:[1,0,3,2] row_mask:0xf bank_mask:0xf")
        A(f"v_sub_f32 v{T}, v{T}, v{T+2}")
        A(f"v_exp_f32 v{T}, v{T}")
        A("s_nop 0")
        A(f"v_mul_f32 v{T+1}, v{T}, v{T+1}")
        A("s_nop 1")
        A(f"v_add_f32_dpp v{T+1}, v{T+1}, v{T+1} quad_perm:[1,0,3,2] row_mask:0xf bank_mask:0xf")
        A(f"v_rcp_f32 v{T+1}, v{T+1}")
        A("v_lshlrev_b32 v12, 2, v4")
        A(f"v_mul_f32 v{T}, v{T}, v{T+1}")
        A(f"ds_write_b32 v12, v{T} offset:{FLD}")
        A("v_lshrrev_b32 v13, 3, v4"); A("v_lshlrev_b32 v13, 5, v13")
        A("s_waitcnt lgkmcnt(0)")
        A(f"ds_read_b128 v[{F}:{F+3}], v13 offset:{FLD}")
        A(f"ds_read_b128 v[{F+4}:{F+7}], v13 offset:{FLD+16}")
        A("s_waitcnt lgkmcnt(0)")
        A("L_nog:")
        self.stamp(5)
        A("s_barrier")
        self.stamp(6)
        for n in range(4):
            A(f"ds_read_b128 v[{RA+4*n}:{RA+4*n+3}], v8 offset:{OB + 64*n}")
        for n in range(4):
            A(f"s_waitcnt lgkmcnt({3-n})")
            self.slabmfma(RD, RA + 4 * n, RB + 32 * n, n == 0)
        A("s_nop 0")
        for jj in range(8):
            A(f"v_mul_f32 v{T+jj}, v{CF}, v{RD+4*jj}")
        for r in range(1, 4):
            for jj in range(8):
                A(f"v_fmac_f32 v{T+jj}, v{CF+r}, v{RD+4*jj+r}")
        for d in range(4):
            A(f"v_permlane32_swap_b32 v{T+d}, v{T+d+4}")
        for d in range(4):
            A(f"v_add_f32 v{T+d}, v{T+d}, v{T+d+4}")
        A("s_nop 0")
        for d in range(2):
            A(f"v_permlane16_swap_b32 v{T+d}, v{T+d+2}")
        for d in range(2):
            A(f"v_add_f32 v{T+d}, v{T+d}, v{T+d+2}")
        for d in range(2):
            A(f"v_min_u32 v{T+d}, -2, v{T+d}")
        A(f"global_store_dwordx2 v9, v[{T}:{T+1}], s[40:41] sc1")
        self.stamp(7)
        A("s_cmp_lg_u32 s7, 3")
        A("s_cbranch_scc1 L_hend")
        A(f"s_cmp_lt_u32 s2, {CONS0}")
        A("s_cbranch_scc1 L_hend")
        C("consumer: poll the 64 producers' lines (only lanes still empty re-load), then reduce")
        MK = 84
        for it in range(8):
            A(f"s_mov_b64 s[{MK+2*it}:{MK+2*it+1}], -1")
        A("s_mov_b32 s44, 0x1000"); A("s_mov_b32 s45, 0x2000"); A("s_mov_b32 s46, 0x3000")
        self.spin_begin("L_sp_s")
        for it in range(8):
            so = "0" if it < 2 else f"s{44 + it//2 - 1}"
            A(f"s_mov_b64 exec, s[{MK+2*it}:{MK+2*it+1}]")
            A(f"buffer_load_dwordx4 v[{RD+4*it}:{RD+4*it+3}], v7, s[8:11], {so} offen offset:{(it & 1)*2048} sc1")
        A("s_mov_b64 exec, -1")
        A("s_waitcnt vmcnt(0)")
        for it in range(8):
            A(f"v_max3_u32 v{RA+it}, v{RD+4*it}, v{RD+4*it+1}, v{RD+4*it+2}")
        for it in range(8):
            A(f"v_max_u32 v{RA+it}, v{RA+it}, v{RD+4*it+3}")
        for it in range(8):
            A(f"v_cmp_eq_u32 s[{MK+2*it}:{MK+2*it+1}], -1, v{RA+it}")
        A(f"v_max3_u32 v13, v{RA}, v{RA+1}, v{RA+2}")
        A(f"v_max3_u32 v13, v13, v{RA+3}, v{RA+4}")
        A(f"v_max3_u32 v13, v13, v{RA+5}, v{RA+6}")
        A(f"v_max_u32 v13, v13, v{RA+7}")
        A("v_cmp_eq_u32 vcc, -1, v13")
        A("s_cbranch_vccz L_sp_s_done")
        self.spin_end("L_sp_s", 1)
        A("L_sp_s_done:")
        self.stamp(8)
        for d in range(4):
            A(f"v_mul_f32 v{RD+d}, v{F}, v{RD+d}")
        for it in range(1, 8):
            for d in range(4):
                A(f"v_fmac_f32 v{RD+d}, v{F+it}, v{RD+4*it+d}")
        self.xl_reduce4(RD)
        self.rnd(RD, RD)
        A(f"v_mul_f32 v{RD}, v{RD}, v{G}")
        self.rnd(RD, RD)
        A(f"v_add_f32 v{RD}, v{RD}, v{XV}")
        A(f"v_cvt_pk_bf16_f32 v{RD}, v{RD}, 0")
        A("s_mov_b32 s42, 0x00ff00ff"); A("s_mov_b32 s43, 0x00ff00ff")
        A("s_mov_b64 exec, s[42:43]")
        A(f"global_store_short v{COL}, v{RD}, s[36:37]")
        A("s_mov_b64 exec, -1")
        self.stamp(9)
        A("L_hend:")
        self.dump_stamps(10, 16)

def gen(**kw):
    return Gen(**kw).gen()

if __name__ == "__main__":
    out = sys.argv[1] if len(sys.argv) > 1 else "recurrent_scan__mha_block_cached__mixer_channel_mlp__decode.s"
    kw = eval("dict(" + (sys.argv[2] if len(sys.argv) > 2 else "") + ")")
    open(out, "w").write(gen(**kw))
```

```python
import sys, math, struct
NAME = "recurrent_scan__mha_block_cached__mixer_channel_mlp__decode_kernel"

def f32(x):
    return "0x%08x" % struct.unpack("<I", struct.pack("<f", x))[0]

HEADER = """; Kernarg layout for this problem (104 bytes, ptrs only, base s[0:1]):
"""

XN, YY, QP, MLM, MLL, PRG, FLD, OB = 0, 1024, 5120, 7168, 7232, 7296, 7424, 7680
OBS = 272
LDS_BYTES = 12288
WS_S, WS_ML, WS_EP, WS_U, WS_Z, WS_DIAG = 0, 0x80000, 0x90000, 0x100000, 0x180000, 0x200000
NUNIT = 224
CONS0 = 192
SPIN_MAX = 1 << 18

class Gen:
    def __init__(self, kvflags="nt", wflags="", mflags="nt", diag=False, DK=8, DV=8, pre=3, wdepth=2, dks=4, dk2=8, nk1=32, dh=4, hprio=0, nowq=False, nowo=False, gpos=12, wpos=14, bare=0, skip=(), pat='A', xclear=None, prog=False, swapkv=0, wburst=True, wt0=16, wlag=2, wstag=8, bprio=3, wpf=True):
        self.L = []
        self.kvflags = kvflags
        self.wflags = wflags
        self.mflags = mflags
        self.diag = diag
        self.DK, self.DV, self.pre, self.wdepth = DK, DV, pre, wdepth
        self.nowq, self.nowo, self.gpos, self.wpos = nowq, nowo, gpos, wpos
        self.bare = bare
        self.wburst, self.wt0, self.wlag, self.wstag, self.bprio, self.wpf = wburst, wt0, wlag, wstag, bprio, wpf
        self.prog = prog
        self.swapkv = swapkv
        self.xclear = xclear
        self.pat = pat
        self.skip = set(skip)
        self.dks, self.dk2, self.nk1, self.dh, self.hprio = dks, dk2, nk1, dh, hprio
    def A(self, s):
        self.L.append("  " + s if not s.endswith(":") else s)
    def C(self, s):
        self.L.append("  ; " + s)

    def stamp(self, idx):
        if self.diag:
            self.A(f"s_memrealtime s[{64+2*idx}:{65+2*idx}]")
    def dump_stamps(self, n, vt):
        if not self.diag:
            return
        A = self.A
        A("s_waitcnt lgkmcnt(0)")
        A("s_lshl_b32 s60, s2, 3"); A("s_add_u32 s60, s60, s3"); A("s_lshl_b32 s60, s60, 7")
        A(f"s_add_u32 s60, s60, {WS_DIAG:#x}")
        A(f"v_mov_b32 v{vt}, s60")
        A("s_mov_b64 exec, 1")
        for j in range(n):
            A(f"v_mov_b32 v{vt+2}, s{64+2*j}"); A(f"v_mov_b32 v{vt+3}, s{65+2*j}")
            A(f"global_store_dwordx2 v{vt}, v[{vt+2}:{vt+3}], s[40:41] offset:{8*j}")
        A("s_getreg_b32 s60, hwreg(HW_REG_XCC_ID)")
        A(f"v_mov_b32 v{vt+2}, s60")
        A(f"global_store_dword v{vt}, v{vt+2}, s[40:41] offset:120")
        A("s_mov_b64 exec, -1")

    def row_allreduce(self, op, r):
        A = self.A
        for m in ("quad_perm:[1,0,3,2]", "quad_perm:[2,3,0,1]", "row_half_mirror", "row_mirror"):
            A("s_nop 1")
            A(f"v_{op}_f32_dpp v{r}, v{r}, v{r} {m} row_mask:0xf bank_mask:0xf")
    def wave_allreduce_add(self, r, t):
        A = self.A
        self.row_allreduce("add", r)
        for sw in ("v_permlane16_swap_b32", "v_permlane32_swap_b32"):
            A(f"v_mov_b32 v{t}, v{r}")
            A("s_nop 1")
            A(f"{sw} v{r}, v{t}")
            A(f"v_add_f32 v{r}, v{r}, v{t}")
    def rnd(self, d, s):
        self.A(f"v_cvt_pk_bf16_f32 v{d}, 0, v{s}")

    def layernorm(self, X, n, T, P, unpack_after=True):
        A = self.A
        s, t, q, d = T, T + 1, T + 2, T + 3
        red = (lambda r: self.wave_allreduce_add(r, t)) if n == 8 else (lambda r: self.row_allreduce("add", r))
        A(f"v_add_f32 v{s}, v{X}, v{X+1}")
        for i in range(2, n):
            A(f"v_add_f32 v{s}, v{s}, v{X+i}")
        red(s)
        A(f"v_mul_f32 v{s}, {f32(1.0/512)}, v{s}")
        A(f"v_sub_f32 v{d}, v{X}, v{s}")
        A(f"v_mul_f32 v{q}, v{d}, v{d}")
        for i in range(1, n):
            dd = d if i % 2 == 0 else t
            A(f"v_sub_f32 v{dd}, v{X+i}, v{s}")
            A(f"v_fmac_f32 v{q}, v{dd}, v{dd}")
        red(q)
        A(f"v_mul_f32 v{q}, {f32(1.0/512)}, v{q}")
        self.rnd(s, s)
        self.rnd(q, q)
        A(f"v_add_f32 v{q}, {f32(1e-5)}, v{q}")
        self.rnd(q, q)
        A(f"v_sqrt_f32 v{q}, v{q}")
        A("s_nop 0")
        self.rnd(q, q)
        A(f"v_rcp_f32 v{q}, v{q}")
        for i in range(n):
            A(f"v_sub_f32 v{X+i}, v{X+i}, v{s}")
        for i in range(n):
            self.rnd(X + i, X + i)
        for i in range(n):
            A(f"v_mul_f32 v{X+i}, v{X+i}, v{q}")
        for i in range(n // 2):
            A(f"v_cvt_pk_bf16_f32 v{P+i}, v{X+2*i}, v{X+2*i+1}")
        if unpack_after:
            self.unpack(X, P, n // 2)
    def unpack(self, X, P, n):
        for i in range(n):
            self.A(f"v_lshlrev_b32 v{X+2*i}, 16, v{P+i}")
            self.A(f"v_and_b32 v{X+2*i+1}, 0xffff0000, v{P+i}")

    def slabload(self, dst, srd, voff, stride, flags, last_inc=None, pace=None, cont=False):
        A = self.A
        for e in range(8):
            r = dst + 4 * e
            if pace is not None and (e >= pace or cont):
                A(f"s_waitcnt vmcnt({pace-1})")
            A(f"buffer_load_dwordx4 v[{r}:{r+3}], v{voff}, {srd}, s50 offen {flags}".rstrip())
            inc = stride if e < 7 else last_inc
            if inc is not None:
                A(f"s_add_u32 s50, s50, {inc}")
    def slabperm(self, dst, src):
        A = self.A
        for d in range(4):
            for hf in range(2):
                jj = 2 * d + hf
                for q in range(4):
                    A(f"v_perm_b32 v{dst + 4*jj + q}, v{src + 4*(2*q+1) + d}, v{src + 4*(2*q) + d}, s{48 + hf}")
    def slabmfma(self, RD, RA, B, first):
        A = self.A
        for jj in range(8):
            b = B + 4 * jj
            c = "0" if first else f"v[{RD+4*jj}:{RD+4*jj+3}]"
            A(f"v_mfma_f32_16x16x32_bf16 v[{RD+4*jj}:{RD+4*jj+3}], v[{RA}:{RA+3}], v[{b}:{b+3}], {c}")

    def spin_begin(self, lab):
        self.A(f"s_mov_b32 s55, {SPIN_MAX}")
        self.A(f"{lab}:")
    def spin_end(self, lab, sleep):
        A = self.A
        A(f"s_sleep {sleep}")
        A("s_sub_u32 s55, s55, 1")
        A("s_cmp_lg_u32 s55, 0")
        A(f"s_cbranch_scc1 {lab}")
    def poll_counter(self, lab, off, want):
        A = self.A
        if "poll" in self.skip:
            A("s_waitcnt vmcnt(0)")
            return
        self.spin_begin(lab)
        A(f"global_load_dword v12, v10, s[38:39] offset:{off} sc1")
        A("s_waitcnt vmcnt(0)")
        A("v_readfirstlane_b32 s42, v12")
        A(f"s_cmp_ge_u32 s42, {want}")
        A(f"s_cbranch_scc1 {lab}_done")
        self.spin_end(lab, 16)
        A(f"{lab}_done:")
    def xl_reduce4(self, R):
        A = self.A
        A("s_nop 0")
        for d in range(2):
            A(f"v_permlane32_swap_b32 v{R+d}, v{R+d+2}")
        for d in range(2):
            A(f"v_add_f32 v{R+d}, v{R+d}, v{R+d+2}")
        A("s_nop 1")
        A(f"v_permlane16_swap_b32 v{R}, v{R+1}")
        A(f"v_add_f32 v{R}, v{R}, v{R+1}")
        A("s_nop 1")
        A(f"v_add_f32_dpp v{R}, v{R}, v{R} row_ror:8 row_mask:0xf bank_mask:0xf")

    def gen(self):
        A, C = self.A, self.C
        self.L.append(HEADER.rstrip())
        self.L.append(f"; @launch grid=(256,1,1) block=(512,1,1) lds={LDS_BYTES}")
        self.L.append('.amdgcn_target "amdgcn-amd-amdhsa--gfx950"')
        self.L.append(".text"); self.L.append(f".globl {NAME}"); self.L.append(".p2align 8")
        self.L.append(f".type {NAME},@function"); self.L.append(f"{NAME}:")
        A("s_cmp_ge_u32 s2, 256")
        A("s_cbranch_scc1 L_end")
        self.stamp(0)
        A("s_load_dwordx16 s[16:31], s[0:1], 0")
        A("s_load_dwordx8 s[32:39], s[0:1], 64")
        A("s_load_dwordx2 s[40:41], s[0:1], 96")
        A("v_lshrrev_b32 v1, 6, v0")
        A("v_and_b32 v2, 15, v0")
        A("v_readfirstlane_b32 s3, v1")
        A("v_bfe_u32 v3, v0, 4, 2")
        A("v_and_b32 v4, 63, v0")
        C("decode: h = 4*(wg&7) + ((wg>>3)&3); b = (wg>>5)&3; side = wg>>7")
        A("s_and_b32 s4, s2, 7"); A("s_lshl_b32 s4, s4, 2")
        A("s_bfe_u32 s5, s2, 0x20003"); A("s_or_b32 s4, s4, s5")
        A("s_bfe_u32 s5, s2, 0x20005")
        A("s_lshr_b32 s6, s2, 7")
        A("s_lshl_b32 s59, s5, 5"); A("s_or_b32 s59, s59, s4"); A("s_lshl_b32 s59, s59, 1"); A("s_or_b32 s59, s59, s6")
        C("s59 = producer index b*64 + 2h + side")
        A("s_cmp_ge_u32 s3, 4")
        A("s_cbranch_scc1 L_helper")
        self.stream()
        self.helper()
        A("L_end:")
        A("s_endpgm")
        L = self.L
        L.append('.section .rodata,"a"'); L.append(".p2align 6"); L.append(f".amdhsa_kernel {NAME}")
        L.append("  .amdhsa_next_free_vgpr 256"); L.append("  .amdhsa_next_free_sgpr 102"); L.append("  .amdhsa_accum_offset 256")
        L.append("  .amdhsa_group_segment_fixed_size 0"); L.append("  .amdhsa_kernarg_size 104")
        L.append("  .amdhsa_user_sgpr_count 2"); L.append("  .amdhsa_user_sgpr_kernarg_segment_ptr 1")
        L.append("  .amdhsa_system_sgpr_workgroup_id_x 1")
        L.append("  .amdhsa_float_denorm_mode_32 3")
        L.append(".end_amdhsa_kernel")
        return "\n".join(L) + "\n"

    def stream(self):
        A, C = self.A, self.C
        RING = 64
        P = 24
        Q = 8
        S = 40
        ACC = 48
        PLO, PHI = 12, 13
        VOFF = 5
        fl = self.kvflags
        DK, DV, pre = self.DK, self.DV, self.pre
        C("===== stream waves =====")
        A("v_lshlrev_b32 v5, 4, v2")
        if self.pat == "A":
            A("v_lshl_or_b32 v5, v3, 12, v5")
            A("v_lshl_or_b32 v5, v1, 14, v5")
        else:
            wp, tp = {"B": (12, 14), "C": (14, 12)}[self.pat]
            A("v_lshl_or_b32 v5, v3, 8, v5")
            A(f"v_lshl_or_b32 v56, v1, {wp}, v5")
            for t in range(1, 4):
                A(f"v_add_u32 v{56+t}, {t << tp:#x}, v56")
        A("s_lshl_b32 s7, s59, 19")
        A("s_mov_b32 s10, 0x80000"); A("s_mov_b32 s11, 0x20000")
        A("s_mov_b32 s14, 0x80000"); A("s_mov_b32 s15, 0x20000")
        A("s_mov_b32 s46, 0x80000"); A("s_mov_b32 s47, 0x20000")
        A("s_mov_b32 s50, 0")
        A("s_waitcnt lgkmcnt(0)")
        if self.swapkv:
            A("s_and_b32 s60, s2, 7"); A(f"s_lshr_b32 s60, {self.swapkv:#x}, s60"); A("s_and_b32 s60, s60, 1")
            A("s_cmp_eq_u32 s60, 1")
            A("s_mov_b64 s[60:61], s[18:19]")
            A("s_cselect_b64 s[18:19], s[20:21], s[18:19]")
            A("s_cselect_b64 s[20:21], s[60:61], s[20:21]")
        A("s_add_u32 s8, s18, s7"); A("s_addc_u32 s9, s19, 0")
        issued = []
        def load(slot, srd, so, tag=None):
            r = RING + 4 * slot
            if self.pat == "A":
                A(f"buffer_load_dwordx4 v[{r}:{r+3}], v{VOFF}, {srd}, {so} offen offset:{(slot % 16)*256} {fl}".rstrip())
            else:
                A(f"buffer_load_dwordx4 v[{r}:{r+3}], v{56 + (slot % 16)//4}, {srd}, {so} offen offset:{(slot % 4)*1024} {fl}".rstrip())
            issued.append(tag)
        def wait(tag):
            A(f"s_waitcnt vmcnt({len(issued) - 1 - issued.index(tag)})")
        for gi in range(pre):
            for j in range(16):
                n = 16 * gi + j
                dd = self.dks if n < self.nk1 else self.dk2
                if dd and n >= dd:
                    A(f"s_waitcnt vmcnt({dd-1})")
                load(n, "s[8:11]", "s50", (gi, j))
            A("s_add_u32 s50, s50, 0x10000")
        A("s_add_u32 s12, s20, s7"); A("s_addc_u32 s13, s21, 0")
        A("s_mov_b32 s52, 0xaaaaaaaa"); A("s_mov_b32 s53, 0xaaaaaaaa")
        A("s_mov_b32 s56, 0xcccccccc"); A("s_mov_b32 s57, 0xcccccccc")
        A("v_lshlrev_b32 v7, 5, v2")
        self.stamp(1)
        A("s_barrier")
        self.stamp(2)
        for jj in range(4):
            A(f"ds_read_b128 v[{24+8*jj}:{27+8*jj}], v7 offset:{QP + 512*jj}")
            A(f"ds_read_b128 v[{28+8*jj}:{31+8*jj}], v7 offset:{QP + 512*jj + 16}")
        A("s_waitcnt lgkmcnt(0)")
        for i in range(8):
            A(f"v_add_f32 v{24+i}, v{24+i}, v{32+i}")
            A(f"v_add_f32 v{40+i}, v{40+i}, v{48+i}")
        for i in range(8):
            A(f"v_add_f32 v{24+i}, v{24+i}, v{40+i}")
        for d in range(4):
            A(f"v_cvt_pk_bf16_f32 v{Q+d}, v{24+2*d}, v{25+2*d}")
        def qk(slots):
            for d in range(4):
                for slot in slots:
                    r = RING + 4 * slot
                    p = P + slot % 16
                    c = "0" if d == 0 else f"v{p}"
                    A(f"v_dot2_f32_bf16 v{p}, v{r+d}, v{Q+d}, {c}")
        def treduce(dst, mid=()):
            C("transposing reduction: lane (g,c) <- score of load c, key g")
            for t in range(8):
                A(f"v_add_f32_dpp v{P+t}, v{P+t}, v{P+t} row_ror:8 row_mask:0xf bank_mask:0x3")
            for t in range(8):
                A(f"v_add_f32_dpp v{P+t}, v{P+t+8}, v{P+t+8} row_ror:8 row_mask:0xf bank_mask:0xc")
            for t in range(4):
                A(f"v_add_f32_dpp v{P+t}, v{P+t}, v{P+t} row_half_mirror row_mask:0xf bank_mask:0x5")
            for t in range(4):
                A(f"v_add_f32_dpp v{P+t}, v{P+t+4}, v{P+t+4} row_half_mirror row_mask:0xf bank_mask:0xa")
            U0, U1, T0, T1 = P + 8, P + 9, P + 10, P + 11
            A(f"v_cndmask_b32 v{U0}, v{P+1}, v{P}, s[52:53]")
            A(f"v_cndmask_b32 v{U1}, v{P+3}, v{P+2}, s[52:53]")
            A(f"v_cndmask_b32 v{T0}, v{P}, v{P+1}, s[52:53]")
            A(f"v_cndmask_b32 v{T1}, v{P+2}, v{P+3}, s[52:53]")
            A("s_nop 1")
            A(f"v_add_f32_dpp v{T0}, v{U0}, v{T0} quad_perm:[1,0,3,2] row_mask:0xf bank_mask:0xf")
            A(f"v_add_f32_dpp v{T1}, v{U1}, v{T1} quad_perm:[1,0,3,2] row_mask:0xf bank_mask:0xf")
            A(f"v_cndmask_b32 v{U0}, v{T1}, v{T0}, s[56:57]")
            A(f"v_cndmask_b32 v{U1}, v{T0}, v{T1}, s[56:57]")
            if mid:
                for m in mid:
                    A(m)
            else:
                A("s_nop 1")
            A(f"v_add_f32_dpp v{dst}, v{U0}, v{U1} quad_perm:[2,3,0,1] row_mask:0xf bank_mask:0xf")
        C("catch-up over the prefetched groups; group `pre` is loaded into ring slots 0..15 meanwhile")
        nxt = 0
        for gi in range(pre):
            for j in range(0, 16, 2):
                wait((gi, j + 1))
                qk([16 * gi + j, 16 * gi + j + 1])
                if gi == 0:
                    want = j + 2 if (j < 8 or pre == 1) else 8
                elif gi == 1:
                    want = 8 + j // 2 + 1
                else:
                    want = 16
                while nxt < want:
                    load(nxt, "s[8:11]", "s50", (pre, nxt)); nxt += 1
            A("s_nop 0")
            treduce(S + 8 - pre + gi)
        assert nxt == 16
        for j in range(16 - DK):
            wait((pre, j))
            qk([j])
        A(f"s_mov_b32 s54, {pre}")
        A(f"v_mov_b32 v61, {2*pre}")
        A("v_lshlrev_b32 v62, 2, v1")
        A("s_branch L_kmid")
        A("L_kloop:")
        def progress():
            A("v_add_u32 v61, 1, v61")
            A(f"ds_write_b32 v62, v61 offset:{PRG}")
        progress()
        for j in range(16 - DK):
            A(f"s_waitcnt vmcnt({DK-1})")
            load(j + DK, "s[8:11]", "s50")
            qk([j])
        A("L_kmid:")
        if self.prog:
            A("s_memrealtime s[90:91]")
        C("the rest refills from the next group (V group 0 after the last K group)")
        progress()
        A("s_add_u32 s50, s50, 0x10000")
        A("s_cmp_eq_u32 s54, 7")
        A("s_cselect_b32 s44, s12, s8"); A("s_cselect_b32 s45, s13, s9"); A("s_cselect_b32 s51, 0, s50")
        for j in range(16 - DK, 16):
            A(f"s_waitcnt vmcnt({DK-1})")
            load(j + DK - 16, "s[44:47]", "s51")
            qk([j])
        if self.prog:
            A("s_waitcnt lgkmcnt(0)")
            A("s_mov_b32 m0, s54"); A("s_nop 0")
            A("v_writelane_b32 v60, s90, m0")
        for i in range(7):
            A(f"v_mov_b32 v{S+i}, v{S+i+1}")
        treduce(S + 7, ("s_add_u32 s54, s54, 1", "s_cmp_lt_u32 s54, 8"))
        A("s_cbranch_scc1 L_kloop")
        self.stamp(3)
        A("s_mov_b32 s50, 0")
        for j in range(DK, DV):
            load(j, "s[12:15]", "s50")
        C("softmax over this row's 128 keys (true max of the partial; partials are merged exactly later)")
        M, Ls = 14, 15
        cs = math.log2(math.e) / math.sqrt(128.0)
        A(f"s_mov_b32 s58, {f32(cs)}")
        A(f"v_max3_f32 v{M}, v{S}, v{S+1}, v{S+2}")
        A(f"v_max3_f32 v{M}, v{M}, v{S+3}, v{S+4}")
        A(f"v_max3_f32 v{M}, v{M}, v{S+5}, v{S+6}")
        A(f"v_max_f32 v{M}, v{M}, v{S+7}")
        self.row_allreduce("max", M)
        A(f"v_mul_f32 v{M}, s58, v{M}")
        for i in range(8):
            A(f"v_fma_f32 v{S+i}, v{S+i}, s58, -v{M}")
        for i in range(8):
            A(f"v_exp_f32 v{S+i}, v{S+i}")
        for i in range(8):
            A(f"v_mov_b32 v{ACC+i}, 0")
        A(f"v_add_f32 v{Ls}, v{S}, v{S+1}")
        for i in range(2, 8):
            A(f"v_add_f32 v{Ls}, v{Ls}, v{S+i}")
        self.row_allreduce("add", Ls)
        A(f"v_lshrrev_b32 v7, 4, v0")
        A(f"v_lshlrev_b32 v16, 2, v7")
        A(f"v_min_u32 v{M}, -2, v{M}")
        A(f"v_min_u32 v{Ls}, -2, v{Ls}")
        A(f"ds_write_b32 v16, v{M} offset:{MLM}")
        A(f"ds_write_b32 v16, v{Ls} offset:{MLL}")
        A(f"v_mul_u32_u24 v17, {OBS}, v7")
        A("v_lshl_add_u32 v17, v2, 4, v17")
        A("s_mov_b32 s54, 0")
        assert DV >= DK
        def pv(slot):
            r = RING + 4 * slot
            for d in range(4):
                A(f"v_dot2c_f32_bf16_dpp v{ACC+2*d}, v{PLO}, v{r+d} row_newbcast:{slot} row_mask:0xf bank_mask:0xf")
                A(f"v_dot2c_f32_bf16_dpp v{ACC+2*d+1}, v{PHI}, v{r+d} row_newbcast:{slot} row_mask:0xf bank_mask:0xf")
        A("L_vloop:")
        A(f"v_cvt_pk_bf16_f32 v{PLO}, v{S}, 0")
        A(f"v_cvt_pk_bf16_f32 v{PHI}, 0, v{S}")
        for i in range(7):
            A(f"v_mov_b32 v{S+i}, v{S+i+1}")
        for j in range(16):
            if j == 16 - DV and self.prog:
                A("s_memrealtime s[90:91]")
            if j == 16 - DV:
                A("s_add_u32 s50, s50, 0x10000")
            if j % 8 == 0:
                progress()
            A(f"s_waitcnt vmcnt({DV-1})")
            load((j + DV) % 16, "s[12:15]", "s50")
            pv(j)
        if self.prog:
            A("s_waitcnt lgkmcnt(0)")
            A("s_add_u32 m0, s54, 8"); A("s_nop 0")
            A("v_writelane_b32 v60, s90, m0")
        A("s_add_u32 s54, s54, 1")
        A("s_cmp_lt_u32 s54, 8")
        A("s_cbranch_scc1 L_vloop")
        self.stamp(4)
        A("s_nop 1")
        for d in range(4):
            A(f"v_cvt_pk_bf16_f32 v{20+d}, v{ACC+2*d}, v{ACC+2*d+1}")
        A(f"ds_write_b128 v17, v[20:23] offset:{OB}")
        A("s_waitcnt lgkmcnt(0)")
        A("s_barrier")
        self.dump_stamps(5, 24)
        if self.prog:
            A("s_lshl_b32 s60, s2, 2"); A("s_add_u32 s60, s60, s3"); A("s_lshl_b32 s60, s60, 6")
            A(f"s_add_u32 s60, s60, {WS_DIAG + 0x80000:#x}")
            A("v_lshlrev_b32 v24, 2, v4")
            A("v_add_u32 v24, s60, v24")
            A("s_mov_b64 exec, 0xffff")
            A("global_store_dword v24, v60, s[40:41]")
        A("s_endpgm")

    TB = 100
    def tag4(self, R, n=4):
        for i in range(n):
            self.A(f"v_and_or_b32 v{R+i}, v{R+i}, v15, s{96 + i % 4}")
    def chk(self, acc, R, n, D=None):
        D = R if D is None else D
        for i in range(n):
            self.A(f"v_xor_b32 v{D+i}, s{96 + i % 4}, v{R+i}")
        self.A(f"v_or3_b32 v{acc}, v{D}, v{D+1}, v{D+2}")
        i = 3
        while i < n:
            if i + 1 < n:
                self.A(f"v_or3_b32 v{acc}, v{acc}, v{D+i}, v{D+i+1}"); i += 2
            else:
                self.A(f"v_or_b32 v{acc}, v{acc}, v{D+i}"); i += 1
    def chk_branch(self, acc, lab, sleep):
        A = self.A
        A(f"v_cmp_ne_u32_sdwa vcc, v{acc}, v10 src0_sel:BYTE_0 src1_sel:DWORD")
        A(f"s_cbranch_vccz {lab}_done")
        self.spin_end(lab, sleep)
        A(f"{lab}_done:")

    def wait_prog(self, lab, sreg):
        A = self.A
        self.spin_begin(lab)
        A(f"ds_read_b32 v13, v10 offset:{PRG}")
        A("s_waitcnt lgkmcnt(0)")
        A("v_readfirstlane_b32 s42, v13")
        A(f"s_cmp_ge_i32 s42, {sreg}")
        A(f"s_cbranch_scc1 {lab}_done")
        self.spin_end(lab, 2)
        A(f"{lab}_done:")

    def helper(self):
        A, C = self.A, self.C
        wf, mf = self.wflags, self.mflags
        RA, RD = 16, 32
        RB = 64
        ST = 192
        T = 224
        A("L_helper:")
        C("===== helper waves =====")
        A("s_sub_u32 s7, s3, 4")
        if self.bare == 1:
            A("s_waitcnt lgkmcnt(0)")
            A("s_barrier"); A("s_barrier"); A("s_branch L_hend")
        A("s_mov_b32 s48, 0x05040100"); A("s_mov_b32 s49, 0x07060302")
        C("wq block: rows 128j.., cols 128h..")
        A("v_lshlrev_b32 v5, 4, v2")
        A("v_lshl_or_b32 v5, v3, 16, v5")
        A("s_lshl_b32 s42, s7, 20"); A("s_lshl_b32 s43, s4, 8"); A("s_add_u32 s42, s42, s43")
        A("s_mov_b32 s10, 0x400000"); A("s_mov_b32 s11, 0x20000")
        A("v_add_u32 v5, s42, v5")
        A("v_lshlrev_b32 v6, 4, v4")
        A("s_lshl_b32 s42, s5, 10")
        A("v_add_u32 v7, s42, v6")
        A("s_mov_b32 s50, 0")
        A("s_waitcnt lgkmcnt(0)")
        A(f"global_load_dwordx4 v[{T}:{T+3}], v7, s[16:17]")
        C("the word the previous launch left only serves to pick a tag that differs from that launch's")
        A(f"s_load_dword s63, s[40:41], {WS_EP:#x}")
        A("s_mov_b32 s8, s22"); A("s_mov_b32 s9, s23")
        for n in range(4):
            self.slabload(RB + 32 * (n + 1), "s[8:11]", 5, 8192, wf, last_inc=(25 * 8192 if n < 3 else None),
                          pace=(self.dh or None), cont=(n > 0))
        C("LDS init: sentinels for the 16 (m,l) pairs")
        A("v_lshlrev_b32 v8, 2, v4")
        A("v_mov_b32 v9, -1")
        A(f"ds_write_b32 v8, v9 offset:{MLM}")
        C("A operand address: xn[128j + 32n + 8kk]")
        A("s_lshl_b32 s43, s7, 8")
        A("v_lshlrev_b32 v8, 4, v3")
        A("v_add_u32 v8, s43, v8")
        A("s_waitcnt vmcnt(32)")
        self.stamp(1)
        self.unpack(T + 8, T, 4)
        self.layernorm(T + 8, 8, T + 16, T, unpack_after=False)
        A(f"ds_write_b128 v6, v[{T}:{T+3}] offset:{XN}")
        A("s_waitcnt vmcnt(24)")
        self.slabperm(RB, RB + 32)
        A("s_waitcnt lgkmcnt(0)")
        for n in range(4):
            A(f"ds_read_b128 v[{RA+4*n}:{RA+4*n+3}], v8 offset:{XN + 64*n}")
        A("s_waitcnt lgkmcnt(0)")
        self.slabmfma(RD, RA, RB, True)
        for n in range(1, 4):
            A(f"s_waitcnt vmcnt({8*(3-n)})")
            self.slabperm(RB + 32 * n, RB + 32 * (n + 1))
            A("s_nop 1")
            self.slabmfma(RD, RA + 4 * n, RB + 32 * n, False)
        A("s_lshl_b32 s42, s7, 9")
        A("v_lshlrev_b32 v9, 5, v2")
        A("v_add_u32 v9, s42, v9")
        A("s_nop 7")
        for jj in range(8):
            A(f"v_mov_b32 v{T+jj}, v{RD+4*jj}")
        A("s_mov_b64 exec, 0xffff")
        A(f"ds_write_b128 v9, v[{T}:{T+3}] offset:{QP}")
        A(f"ds_write_b128 v9, v[{T+4}:{T+7}] offset:{QP+16}")
        A("s_mov_b64 exec, -1")
        A("s_waitcnt lgkmcnt(0)")
        self.stamp(2)
        A("s_barrier")
        if self.bare == 2:
            A("s_barrier"); A("s_branch L_hend")
        A("s_add_u32 s63, s63, 0x61c88647")
        for k in range(4):
            A(f"s_bfe_u32 s{96+k}, s63, {0x80000 + 8*k:#x}")
        A("v_mov_b32 v10, 0")
        A("v_mov_b32 v15, 0xffffff00")
        A("s_mov_b32 s14, 0x400000"); A("s_mov_b32 s15, 0x20000")
        A("s_cmp_lg_u32 s7, 0")
        A("s_cbranch_scc1 L_not0")
        A(f"s_cmp_ge_u32 s2, {NUNIT}")
        A("s_cbranch_scc1 L_not0")
        if "s1" in self.skip:
            A("s_branch L_not0")
        C("stage 1 unit: m = wg>>4 (hidden cols 128m..), ks = wg&15 (rows 32ks..)")
        A("v_lshlrev_b32 v12, 10, v3")
        A("v_lshl_add_u32 v12, v2, 4, v12")
        for t in range(4):
            A(f"global_load_dwordx4 v[{RB+32+4*t}:{RB+35+4*t}], v12, s[16:17] offset:{256*t}")
        A("s_and_b32 s42, s2, 15"); A("s_lshr_b32 s43, s2, 4")
        A(f"v_mul_u32_u24 v13, {8*3584}, v3")
        A("v_lshl_add_u32 v13, v2, 4, v13")
        A(f"s_mul_i32 s50, s42, {32*3584}"); A("s_lshl_b32 s43, s43, 8"); A("s_add_u32 s50, s50, s43")
        A("s_mov_b32 s12, s28"); A("s_mov_b32 s13, s29"); A(f"s_mov_b32 s14, {512*3584}")
        self.slabload(ST, "s[12:15]", 13, 3584, mf)
        A("s_waitcnt vmcnt(8)")
        self.unpack(RB, RB + 32, 16)
        self.layernorm(RB, 32, T, RB + 32)
        self.layernorm(RB, 32, T, RB + 32, unpack_after=False)
        for t in range(4):
            A(f"ds_write_b128 v12, v[{RB+32+4*t}:{RB+35+4*t}] offset:{YY + 256*t}")
        C("A operand: y[i>>2][32ks + 8kk]")
        A("v_lshrrev_b32 v13, 2, v2")
        A("v_lshlrev_b32 v13, 10, v13")
        A("v_lshl_add_u32 v13, v3, 4, v13")
        A("s_lshl_b32 s42, s42, 6")
        A("v_add_u32 v13, s42, v13")
        A("s_waitcnt vmcnt(0) lgkmcnt(0)")
        A(f"ds_read_b128 v[{RA}:{RA+3}], v13 offset:{YY}")
        self.slabperm(RB + 64, ST)
        A("s_waitcnt lgkmcnt(0)")
        self.slabmfma(RD, RA, RB + 64, True)
        C("U[wg][sub=c>>2][half][b=kk][c&3][4]")
        A("s_lshl_b32 s42, s2, 11"); A(f"s_add_u32 s42, s42, {WS_U:#x}")
        A("v_lshrrev_b32 v12, 2, v2"); A("v_lshlrev_b32 v12, 9, v12")
        A("v_lshl_add_u32 v12, v3, 6, v12")
        A("v_and_b32 v13, 3, v2"); A("v_lshl_add_u32 v12, v13, 4, v12")
        A("v_add_u32 v12, s42, v12")
        A("s_nop 3")
        for jj in range(8):
            A(f"v_and_or_b32 v{T+jj}, v{RD+4*jj}, v15, s{96 + jj % 4}")
        A(f"global_store_dwordx4 v12, v[{T}:{T+3}], s[40:41] sc1")
        A(f"global_store_dwordx4 v12, v[{T+4}:{T+7}], s[40:41] offset:256 sc1")
        A("L_not0:")
        self.stamp(3)
        C("----- wo block: rows 128h.., cols 128j.. (paced; helper 2 keeps one more load in flight) -----")
        A("v_lshlrev_b32 v5, 4, v2")
        A("v_lshl_or_b32 v5, v3, 13, v5")
        A("s_lshl_b32 s50, s4, 17"); A("s_lshl_b32 s43, s7, 8"); A("s_add_u32 s50, s50, s43")
        A("s_mov_b32 s8, s24"); A("s_mov_b32 s9, s25")
        A("s_cmp_eq_u32 s7, 2")
        A("s_cselect_b64 vcc, -1, 0")
        def wo_round(n):
            wd = self.wdepth
            for e in range(8):
                r = ST + 4 * e
                if e >= wd:
                    A(f"s_waitcnt vmcnt({wd})")
                    A(f"s_cbranch_vccnz L_wo{n}_{e}")
                    A(f"s_waitcnt vmcnt({wd-1})")
                    A(f"L_wo{n}_{e}:")
                A(f"buffer_load_dwordx4 v[{r}:{r+3}], v5, s[8:11], s50 offen {wf}".rstrip())
                A(f"s_add_u32 s50, s50, {1024 if e < 7 else 25*1024}")
            A("s_waitcnt vmcnt(0)")
            self.slabperm(RB + 32 * n, ST)
        if not self.wburst:
            wo_round(0); wo_round(1)
        A("s_cmp_lg_u32 s7, 1")
        A("s_cbranch_scc1 L_not1")
        A(f"s_cmp_ge_u32 s2, {NUNIT}")
        A("s_cbranch_scc1 L_not1")
        if "s2" in self.skip:
            A("s_branch L_not1")
        C("stage 2 unit: r = wg>>2 (hidden rows 32r..), cq = wg&3 (cols 128cq..)")
        if self.wburst:
            self.wait_prog("L_wp_s2", "11")
        A("s_mov_b32 s51, s50")
        A("s_lshr_b32 s60, s2, 2"); A("s_and_b32 s61, s2, 3")
        A("s_lshl_b32 s50, s60, 15"); A("s_lshl_b32 s43, s61, 8"); A("s_add_u32 s50, s50, s43")
        A("s_mov_b32 s12, s32"); A("s_mov_b32 s13, s33"); A(f"s_mov_b32 s14, {1792*1024}")
        self.slabload(ST, "s[12:15]", 5, 1024, mf)
        A("s_lshl_b32 s43, s60, 6")
        A("v_lshlrev_b32 v13, 4, v3")
        A("v_add_u32 v13, s43, v13")
        A(f"global_load_dwordx4 v[{T+16}:{T+19}], v13, s[30:31]")
        A("s_mov_b32 s50, s51")
        C("U[m*16 + 4t + (c&3)][sub][half][b=c>>2][kk][4]")
        A("v_and_b32 v12, 3, v2"); A("v_lshlrev_b32 v12, 11, v12")
        A("v_lshrrev_b32 v13, 2, v2"); A("v_lshl_add_u32 v12, v13, 6, v12")
        A("v_lshl_add_u32 v12, v3, 4, v12")
        A("s_lshr_b32 s42, s60, 2"); A("s_lshl_b32 s42, s42, 15")
        A("s_and_b32 s43, s60, 3"); A("s_lshl_b32 s43, s43, 9"); A("s_add_u32 s42, s42, s43")
        A(f"s_add_u32 s42, s42, {WS_U:#x}")
        A(f"v_add_u32 v{T}, s42, v12")
        for t in range(1, 4):
            A(f"v_add_u32 v{T+t}, {0x2000*t:#x}, v{T}")
        A("s_waitcnt vmcnt(0)")
        self.slabperm(RB + 96, ST)
        self.unpack(T + 8, T + 16, 4)
        UU = RB + 64
        self.spin_begin("L_sp_u")
        for t in range(4):
            A(f"global_load_dwordx4 v[{UU+8*t}:{UU+8*t+3}], v{T+t}, s[40:41] sc1")
            A(f"global_load_dwordx4 v[{UU+8*t+4}:{UU+8*t+7}], v{T+t}, s[40:41] offset:256 sc1")
        A("s_waitcnt vmcnt(0)")
        self.chk(13, UU, 32)
        self.chk_branch(13, "L_sp_u", 32)
        for i in range(8):
            A(f"v_add_f32 v{UU+i}, v{UU+i}, v{UU+8+i}")
            A(f"v_add_f32 v{UU+16+i}, v{UU+16+i}, v{UU+24+i}")
        for i in range(8):
            A(f"v_add_f32 v{UU+i}, v{UU+i}, v{UU+16+i}")
        for m in ("quad_perm:[1,0,3,2]", "quad_perm:[2,3,0,1]"):
            A("s_nop 1")
            for i in range(8):
                A(f"v_add_f32_dpp v{UU+i}, v{UU+i}, v{UU+i} {m} row_mask:0xf bank_mask:0xf")
        for i in range(8):
            self.rnd(UU + i, UU + i)
        for i in range(8):
            A(f"v_add_f32 v{UU+i}, v{UU+i}, v{T+8+i}")
        for i in range(8):
            self.rnd(UU + i, UU + i)
        C("gelu(tanh form) = u / (1 + exp(-2k(u + 0.044715 u^3)))")
        k2 = -2.0 * math.sqrt(2.0 / math.pi) * math.log2(math.e)
        A(f"s_mov_b32 s42, {f32(0.044715 * k2)}"); A(f"s_mov_b32 s43, {f32(k2)}")
        A("v_mov_b32 v12, s43")
        W = UU + 8
        for i in range(8):
            A(f"v_mul_f32 v{W+i}, v{UU+i}, v{UU+i}")
        for i in range(8):
            A(f"v_fma_f32 v{W+i}, v{W+i}, s42, v12")
        for i in range(8):
            A(f"v_mul_f32 v{W+i}, v{W+i}, v{UU+i}")
        for i in range(8):
            A(f"v_exp_f32 v{W+i}, v{W+i}")
        for i in range(8):
            A(f"v_add_f32 v{W+i}, 1.0, v{W+i}")
        for i in range(8):
            A(f"v_rcp_f32 v{W+i}, v{W+i}")
        for i in range(8):
            A(f"v_mul_f32 v{UU+i}, v{UU+i}, v{W+i}")
        for d in range(4):
            A(f"v_cvt_pk_bf16_f32 v{RA+d}, v{UU+2*d}, v{UU+2*d+1}")
        A("s_nop 1")
        self.slabmfma(RD, RA, RB + 96, True)
        C("Z[b=kk][line 4cq + 2(c>>3) + half][r][(c&7)*4..]")
        A(f"s_mov_b32 s42, {16*56*128}")
        A("v_mul_lo_u32 v12, v3, s42")
        A("v_lshrrev_b32 v13, 3, v2")
        A(f"v_mul_u32_u24 v13, {2*56*128}, v13")
        A("v_add_u32 v12, v12, v13")
        A("v_and_b32 v13, 7, v2")
        A("v_lshl_add_u32 v12, v13, 4, v12")
        A(f"s_mul_i32 s42, s61, {4*56*128}"); A("s_lshl_b32 s43, s60, 7"); A("s_add_u32 s42, s42, s43")
        A(f"s_add_u32 s42, s42, {WS_Z + 3584:#x}")
        A("v_add_u32 v12, s42, v12")
        for jj in range(8):
            A(f"v_and_or_b32 v{T+jj}, v{RD+4*jj}, v15, s{96 + jj % 4}")
        A(f"global_store_dwordx4 v12, v[{T}:{T+3}], s[40:41] offset:-3584 sc1")
        A(f"global_store_dwordx4 v12, v[{T+4}:{T+7}], s[40:41] offset:3584 sc1")
        A("s_mov_b64 vcc, 0")
        A("L_not1:")
        if not self.wburst:
            wo_round(2); wo_round(3)
            self.stamp(4)
            if self.bare == 3:
                A("s_barrier"); A("s_branch L_hend")
        C("wait for the 16 (m,l) partials of this WG's stream waves")
        A("v_lshlrev_b32 v12, 2, v2")
        self.spin_begin("L_sp_m")
        A(f"ds_read_b32 v14, v12 offset:{MLM}")
        A(f"ds_read_b32 v11, v12 offset:{MLL}")
        A("s_waitcnt lgkmcnt(0)")
        A("v_max_u32 v13, v14, v11")
        A("v_cmp_eq_u32 vcc, -1, v13")
        A("s_cbranch_vccz L_sp_m_done")
        self.spin_end("L_sp_m", 4)
        A("L_sp_m_done:")
        CF = T + 28
        A("v_lshlrev_b32 v13, 4, v3")
        A(f"ds_read_b128 v[{CF}:{CF+3}], v13 offset:{MLM}")
        A(f"v_mov_b32 v{T}, v14")
        self.row_allreduce("max", T)
        A(f"v_sub_f32 v14, v14, v{T}")
        A("v_exp_f32 v14, v14")
        A("s_waitcnt lgkmcnt(0)")
        for r in range(4):
            A(f"v_sub_f32 v{CF+r}, v{CF+r}, v{T}")
        A(f"v_mul_f32 v{T+2}, v14, v11")
        for r in range(4):
            A(f"v_exp_f32 v{CF+r}, v{CF+r}")
        A("s_cmp_lg_u32 s7, 2")
        A("s_cbranch_scc1 L_nopub")
        C("helper 2 publishes {M, tag, L, tag} of this WG")
        self.row_allreduce("add", T + 2)
        A(f"v_mov_b32 v{T+1}, s63"); A(f"v_mov_b32 v{T+3}, s63")
        A("s_lshl_b32 s42, s59, 4"); A(f"s_add_u32 s42, s42, {WS_ML:#x}")
        A("v_mov_b32 v12, s42")
        A("s_mov_b64 exec, 1")
        A(f"global_store_dwordx4 v12, v[{T}:{T+3}], s[40:41] sc1")
        A("s_mov_b64 exec, -1")
        A("L_nopub:")
        if self.wburst:
            C("wo: each of the 8 WGs sharing the block first pulls one eighth into L2, later all of it in one burst")
            A("s_bfe_u32 s44, s2, 0x20003"); A("s_lshl_b32 s44, s44, 1"); A("s_and_b32 s45, s2, 1"); A("s_or_b32 s44, s44, s45")
            A(f"s_and_b32 s44, s44, {self.wstag - 1}")
            A(f"s_add_u32 s44, s44, {self.wt0}")
            A("v_lshlrev_b32 v12, 4, v2")
            A("v_lshl_or_b32 v12, v3, 10, v12")
            A("s_lshr_b32 s45, s2, 5"); A("s_lshl_b32 s45, s45, 14"); A("s_add_u32 s45, s45, s50")
            self.wait_prog("L_wp_a", "s44")
            if self.wpf:
                for i in range(4):
                    A(f"buffer_load_dwordx4 v[{RD+4*i}:{RD+4*i+3}], v12, s[8:11], s45 offen {wf}".rstrip())
                    A("s_add_u32 s45, s45, 4096")
            A(f"s_add_u32 s44, s44, {self.wlag}")
            self.wait_prog("L_wp_b", "s44")
            self.stamp(3)
            A(f"s_setprio {self.bprio}")
            for n in range(4):
                self.slabload(RB + 32 * (n + 1), "s[8:11]", 5, 1024, wf, last_inc=(25 * 1024 if n < 3 else None))
            A("s_setprio 0")
            for n in range(4):
                A(f"s_waitcnt vmcnt({8*(3-n)})")
                self.slabperm(RB + 32 * n, RB + 32 * (n + 1))
            self.stamp(4)
            if self.bare == 3:
                A("s_barrier"); A("s_branch L_hend")
        G, XV, COL, F = T + 24, T + 25, T + 26, T + 8
        TG = T + 22
        C("addresses for the tail")
        A(f"v_mul_u32_u24 v8, {OBS}, v2")
        A("v_lshl_add_u32 v8, v3, 4, v8")
        C("S row + j*512 + (c>>3)*256 + (kk>>1)*128 + (c&7)*16 + (kk&1)*8")
        A("s_lshl_b32 s42, s7, 9"); A("s_lshl_b32 s43, s59, 11"); A("s_add_u32 s42, s42, s43")
        A("v_lshrrev_b32 v9, 3, v2"); A("v_lshlrev_b32 v9, 8, v9")
        A("v_lshrrev_b32 v13, 1, v3"); A("v_lshl_add_u32 v9, v13, 7, v9")
        A("v_and_b32 v13, 7, v2"); A("v_lshl_add_u32 v9, v13, 4, v9")
        A("v_and_b32 v13, 1, v3"); A("v_lshl_add_u32 v9, v13, 3, v9")
        A("v_add_u32 v9, s42, v9")
        A("v_lshlrev_b32 v13, 4, v13")
        A(f"v_lshrrev_b32 v{TG}, v13, s63")
        A(f"v_bfe_u32 v{TG+1}, v{TG}, 8, 8")
        A(f"v_and_b32 v{TG}, 0xff, v{TG}")
        A(f"v_mov_b32 v{COL}, 0")
        A("v_mov_b32 v7, 0")
        A("s_mov_b32 s8, s40"); A("s_mov_b32 s9, s41"); A("s_mov_b32 s10, 0x80000")
        A("s_cmp_lg_u32 s7, 3")
        A("s_cbranch_scc1 L_nog")
        A(f"s_cmp_lt_u32 s2, {CONS0}")
        A("s_cbranch_scc1 L_nog")
        if "cons" in self.skip:
            A("s_branch L_nog")
        C("consumer (helper 3): batch bc, line cb: gate and merge factors")
        A(f"s_sub_u32 s62, s2, {CONS0}")
        A("s_lshr_b32 s60, s62, 4"); A("s_and_b32 s61, s62, 15")
        A("v_and_b32 v12, 7, v4")
        C("S poll address: S[bc][(l>>3) + 8it][line cb] + (l&7)*16")
        A("s_lshl_b32 s42, s60, 17"); A("s_lshl_b32 s43, s61, 7"); A("s_add_u32 s42, s42, s43")
        A("v_lshrrev_b32 v13, 3, v4"); A("v_lshlrev_b32 v13, 11, v13")
        A("v_lshl_add_u32 v7, v12, 4, v13")
        A("v_add_u32 v7, s42, v7")
        C("column = 64(cb>>1) + 4(cb&1) + 8(l&7) + 2(l>>5) + ((l>>4)&1)")
        A("v_lshlrev_b32 v12, 3, v12")
        A("v_lshrrev_b32 v13, 5, v4"); A("v_lshl_add_u32 v12, v13, 1, v12")
        A("v_bfe_u32 v13, v4, 4, 1"); A("v_add_u32 v12, v12, v13")
        A("s_lshr_b32 s42, s61, 1"); A("s_lshl_b32 s42, s42, 6")
        A("s_and_b32 s43, s61, 1"); A("s_lshl_b32 s43, s43, 2"); A("s_add_u32 s42, s42, s43")
        A(f"v_add_u32 v{COL}, s42, v12")
        A(f"v_lshlrev_b32 v13, 1, v{COL}")
        A(f"global_load_ushort v{G}, v13, s[34:35]")
        A("s_lshl_b32 s42, s60, 10")
        A(f"v_add_u32 v{COL}, s42, v13")
        A(f"global_load_ushort v{XV}, v{COL}, s[16:17]")
        A(f"s_mul_i32 s42, s62, {56*128}"); A(f"s_add_u32 s42, s42, {WS_Z + 3072:#x}")
        A("v_add_u32 v12, s42, v6")
        self.spin_begin("L_sp_z")
        for it in range(7):
            A(f"global_load_dwordx4 v[{RD+4*it}:{RD+4*it+3}], v12, s[40:41] offset:{it*1024 - 3072} sc1")
        A("s_waitcnt vmcnt(0)")
        self.chk(13, RD, 28)
        self.chk_branch(13, "L_sp_z", 32)
        A("s_lshl_b32 s42, s60, 10"); A(f"s_add_u32 s42, s42, {WS_ML:#x}")
        A("v_add_u32 v12, s42, v6")
        A(f"v_lshlrev_b32 v{G}, 16, v{G}")
        A(f"v_lshlrev_b32 v{XV}, 16, v{XV}")
        for it in range(1, 7):
            for d in range(4):
                A(f"v_add_f32 v{RD+d}, v{RD+d}, v{RD+4*it+d}")
        self.xl_reduce4(RD)
        self.rnd(RD, RD)
        A(f"v_add_f32 v{RD}, v{RD}, v{G}")
        self.rnd(RD, RD)
        A(f"v_mul_f32 v{RD+1}, {f32(-math.log2(math.e))}, v{RD}")
        A(f"v_exp_f32 v{RD+1}, v{RD+1}")
        A("s_nop 0")
        A(f"v_add_f32 v{RD+1}, 1.0, v{RD+1}")
        A(f"v_rcp_f32 v{RD+1}, v{RD+1}")
        A("s_nop 0")
        A(f"v_mul_f32 v{G}, v{RD}, v{RD+1}")
        self.rnd(G, G)
        self.spin_begin("L_sp_p")
        A(f"global_load_dwordx4 v[{T}:{T+3}], v12, s[40:41] sc1")
        A("s_waitcnt vmcnt(0)")
        A(f"v_xor_b32 v13, s63, v{T+1}")
        A(f"v_bitop3_b32 v13, v13, v{T+3}, s63 bitop3:0xf6")
        A("v_cmp_ne_u32 vcc, 0, v13")
        A("s_cbranch_vccz L_sp_p_done")
        self.spin_end("L_sp_p", 32)
        A("L_sp_p_done:")
        C("factor of producer p=lane: exp(M_p - M_h) / L_h, partner = lane^1")
        A(f"v_max_f32_dpp v{T+1}, v{T}, v{T} quad_perm:[1,0,3,2] row_mask:0xf bank_mask:0xf")
        A(f"v_sub_f32 v{T}, v{T}, v{T+1}")
        A(f"v_exp_f32 v{T}, v{T}")
        A("s_nop 0")
        A(f"v_mul_f32 v{T+1}, v{T}, v{T+2}")
        A("s_nop 1")
        A(f"v_add_f32_dpp v{T+1}, v{T+1}, v{T+1} quad_perm:[1,0,3,2] row_mask:0xf bank_mask:0xf")
        A(f"v_rcp_f32 v{T+1}, v{T+1}")
        C("F[p] stored at ((p&7)*8 + (p>>3)) so that lane group g = l>>3 reads its 8 factors contiguously")
        A("v_and_b32 v12, 7, v4"); A("v_lshlrev_b32 v12, 5, v12")
        A("v_lshrrev_b32 v13, 3, v4"); A("v_lshl_add_u32 v12, v13, 2, v12")
        A(f"v_mul_f32 v{T}, v{T}, v{T+1}")
        A(f"ds_write_b32 v12, v{T} offset:{FLD}")
        A("v_lshlrev_b32 v13, 5, v13")
        A("s_waitcnt lgkmcnt(0)")
        A(f"ds_read_b128 v[{F}:{F+3}], v13 offset:{FLD}")
        A(f"ds_read_b128 v[{F+4}:{F+7}], v13 offset:{FLD+16}")
        A("s_cmp_lg_u32 s2, 255")
        A("s_cbranch_scc1 L_nobump")
        C("every WG has read the tag word by now (this wave has seen data that depends on all of them)")
        A(f"v_mov_b32 v12, {WS_EP:#x}")
        A("v_mov_b32 v13, s63")
        A("s_mov_b64 exec, 1")
        A("global_store_dword v12, v13, s[40:41] sc1")
        A("s_mov_b64 exec, -1")
        A("L_nobump:")
        A("s_waitcnt lgkmcnt(0)")
        A("L_nog:")
        self.stamp(5)
        A("s_barrier")
        self.stamp(6)
        for n in range(4):
            A(f"ds_read_b128 v[{RA+4*n}:{RA+4*n+3}], v8 offset:{OB + 64*n}")
        for n in range(4):
            A(f"s_waitcnt lgkmcnt({3-n})")
            self.slabmfma(RD, RA + 4 * n, RB + 32 * n, n == 0)
        A("s_nop 0")
        for jj in range(8):
            A(f"v_mul_f32 v{T+jj}, v{CF}, v{RD+4*jj}")
        for r in range(1, 4):
            for jj in range(8):
                A(f"v_fmac_f32 v{T+jj}, v{CF+r}, v{RD+4*jj+r}")
        for d in range(4):
            A(f"v_permlane32_swap_b32 v{T+d}, v{T+d+4}")
        for d in range(4):
            A(f"v_add_f32 v{T+d}, v{T+d}, v{T+d+4}")
        A("s_nop 0")
        for d in range(2):
            A(f"v_permlane16_swap_b32 v{T+d}, v{T+d+2}")
        for d in range(2):
            A(f"v_add_f32 v{T+d}, v{T+d}, v{T+d+2}")
        for d in range(2):
            A(f"v_and_or_b32 v{T+d}, v{T+d}, v15, v{TG+d}")
        A(f"global_store_dwordx2 v9, v[{T}:{T+1}], s[40:41] sc1")
        self.stamp(7)
        A("s_cmp_lg_u32 s7, 3")
        A("s_cbranch_scc1 L_hend")
        A(f"s_cmp_lt_u32 s2, {CONS0}")
        A("s_cbranch_scc1 L_hend")
        if "cons" in self.skip:
            A("s_branch L_hend")
        C("consumer: poll the 64 producers' lines in 8 groups (complete groups are not re-loaded), then reduce")
        MK = 16
        for it in range(8):
            A(f"s_mov_b64 s[{MK+2*it}:{MK+2*it+1}], -1")
        self.spin_begin("L_sp_s")
        A("s_mov_b32 s50, 0")
        for it in range(8):
            A(f"s_mov_b64 exec, s[{MK+2*it}:{MK+2*it+1}]")
            A(f"buffer_load_dwordx4 v[{RD+4*it}:{RD+4*it+3}], v7, s[8:11], s50 offen sc1")
            if it < 7:
                A("s_add_u32 s50, s50, 0x4000")
        A("s_mov_b64 exec, -1")
        A("s_waitcnt vmcnt(0)")
        for it in range(8):
            self.chk(RA + it, RD + 4 * it, 4, ST + 4 * it)
        A(f"v_or3_b32 v13, v{RA}, v{RA+1}, v{RA+2}")
        A(f"v_or3_b32 v12, v{RA+3}, v{RA+4}, v{RA+5}")
        A(f"v_or3_b32 v13, v13, v{RA+6}, v{RA+7}")
        A("v_or_b32 v13, v13, v12")
        A("v_cmp_ne_u32_sdwa vcc, v13, v10 src0_sel:BYTE_0 src1_sel:DWORD")
        A("s_cbranch_vccz L_sp_s_done")
        for it in range(8):
            A(f"v_cmp_ne_u32_sdwa s[{MK+2*it}:{MK+2*it+1}], v{RA+it}, v10 src0_sel:BYTE_0 src1_sel:DWORD")
        for it in range(8):
            A(f"s_cmp_lg_u64 s[{MK+2*it}:{MK+2*it+1}], 0")
            A(f"s_cselect_b64 s[{MK+2*it}:{MK+2*it+1}], -1, 0")
        self.spin_end("L_sp_s", 1)
        A("L_sp_s_done:")
        self.stamp(8)
        for d in range(4):
            A(f"v_mul_f32 v{RD+d}, v{F}, v{ST+d}")
        for it in range(1, 8):
            for d in range(4):
                A(f"v_fmac_f32 v{RD+d}, v{F+it}, v{ST+4*it+d}")
        self.xl_reduce4(RD)
        self.rnd(RD, RD)
        A(f"v_mul_f32 v{RD}, v{RD}, v{G}")
        self.rnd(RD, RD)
        A(f"v_add_f32 v{RD}, v{RD}, v{XV}")
        A(f"v_cvt_pk_bf16_f32 v{RD}, v{RD}, 0")
        A("s_mov_b32 s42, 0x00ff00ff"); A("s_mov_b32 s43, 0x00ff00ff")
        A("s_mov_b64 exec, s[42:43]")
        A(f"global_store_short v{COL}, v{RD}, s[36:37]")
        A("s_mov_b64 exec, -1")
        self.stamp(9)
        A("L_hend:")
        self.dump_stamps(10, 16)

def gen(**kw):
    return Gen(**kw).gen()

if __name__ == "__main__":
    out = sys.argv[1] if len(sys.argv) > 1 else "recurrent_scan__mha_block_cached__mixer_channel_mlp__decode.s"
    kw = eval("dict(" + (sys.argv[2] if len(sys.argv) > 2 else "") + ")")
    open(out, "w").write(gen(**kw))
```

```python
import sys, math, struct
NAME = "recurrent_scan__mha_block_cached__mixer_channel_mlp__decode_kernel"

def f32(x):
    return "0x%08x" % struct.unpack("<I", struct.pack("<f", x))[0]

HEADER = """; Kernarg layout for this problem (104 bytes, ptrs only, base s[0:1]):
"""

XN, QP, MLM, MLL, TAGL, FLD, OB = 0, 8192, 8448, 8512, 8704, 8960, 9216
OBS = 272
LDS_BYTES = 13824
WS_S, WS_ML, WS_EP, WS_Q, WS_U, WS_Z, WS_DIAG = 0, 0x80000, 0x90000, 0x100000, 0x180000, 0x1c0000, 0x200000
NUNIT = 112
NZ = 28
SPIN_MAX = 1 << 18
RK = 8720
WS_BAL = 0xb0000

class Gen:
    def __init__(self, kvflags="nt", wflags="", mflags="nt", qflags="nt", diag=False, DK=8, DV=8, pre=3, wdepth=2, dks=8,
                 bare=0, skip=(), pat="A", prog=False, mpar=0, cpar=0, fprio=3, qdelay=0, qsleep=1, adel=0, apar=0, touch=(), qack=1, mpar2=None, bal=0, thr=4, tlog=3, binit=0, bend=7, mls=16, w2p=4, zfl='sc1', ufl='sc1'):
        self.mls = mls; self.wsml = WS_ML if mls <= 256 else 0x300000
        self.w2p, self.zfl, self.ufl = w2p, zfl, ufl
        self.bal, self.thr, self.tlog, self.binit, self.bend = bal, thr, tlog, binit, bend
        self.mpar2 = mpar if mpar2 is None else mpar2
        self.touch, self.qack = touch, qack
        self.adel, self.apar = adel, apar
        self.nlab = 0
        self.qdelay, self.qsleep = qdelay, qsleep
        self.L = []
        self.kvflags, self.wflags, self.mflags, self.qflags = kvflags, wflags, mflags, qflags
        self.diag, self.prog, self.bare, self.skip, self.pat = diag, prog, bare, set(skip), pat
        self.DK, self.DV, self.pre, self.wdepth, self.dks = DK, DV, pre, wdepth, dks
        self.mpar, self.cpar, self.fprio = mpar, cpar, fprio
    def A(self, s):
        self.L.append("  " + s if not s.endswith(":") else s)
    def C(self, s):
        self.L.append("  ; " + s)

    def stamp(self, idx):
        if self.diag:
            self.A(f"s_memrealtime s[{64+2*idx}:{65+2*idx}]")
    def dump_stamps(self, n, vt):
        if not self.diag:
            return
        A = self.A
        A("s_waitcnt lgkmcnt(0)")
        A("s_lshl_b32 s60, s2, 3"); A("s_add_u32 s60, s60, s3"); A("s_lshl_b32 s60, s60, 7")
        A(f"s_add_u32 s60, s60, {WS_DIAG:#x}")
        A(f"v_mov_b32 v{vt}, s60")
        A("s_mov_b64 exec, 1")
        for j in range(n):
            A(f"v_mov_b32 v{vt+2}, s{64+2*j}"); A(f"v_mov_b32 v{vt+3}, s{65+2*j}")
            A(f"global_store_dwordx2 v{vt}, v[{vt+2}:{vt+3}], s[40:41] offset:{8*j}")
        A("s_getreg_b32 s60, hwreg(HW_REG_XCC_ID)")
        A(f"v_mov_b32 v{vt+2}, s60")
        A(f"global_store_dword v{vt}, v{vt+2}, s[40:41] offset:120")
        A("s_mov_b64 exec, -1")

    def row_allreduce(self, op, r):
        A = self.A
        for m in ("quad_perm:[1,0,3,2]", "quad_perm:[2,3,0,1]", "row_half_mirror", "row_mirror"):
            A("s_nop 1")
            A(f"v_{op}_f32_dpp v{r}, v{r}, v{r} {m} row_mask:0xf bank_mask:0xf")
    def wave_allreduce_add(self, r, t):
        A = self.A
        self.row_allreduce("add", r)
        for sw in ("v_permlane16_swap_b32", "v_permlane32_swap_b32"):
            A(f"v_mov_b32 v{t}, v{r}")
            A("s_nop 1")
            A(f"{sw} v{r}, v{t}")
            A(f"v_add_f32 v{r}, v{r}, v{t}")
    def rnd(self, d, s):
        self.A(f"v_cvt_pk_bf16_f32 v{d}, 0, v{s}")

    def layernorm(self, X, n, T, P, unpack_after=True):
        A = self.A
        s, t, q, d = T, T + 1, T + 2, T + 3
        red = (lambda r: self.wave_allreduce_add(r, t)) if n == 8 else (lambda r: self.row_allreduce("add", r))
        A(f"v_add_f32 v{s}, v{X}, v{X+1}")
        for i in range(2, n):
            A(f"v_add_f32 v{s}, v{s}, v{X+i}")
        red(s)
        A(f"v_mul_f32 v{s}, {f32(1.0/512)}, v{s}")
        A(f"v_sub_f32 v{d}, v{X}, v{s}")
        A(f"v_mul_f32 v{q}, v{d}, v{d}")
        for i in range(1, n):
            dd = d if i % 2 == 0 else t
            A(f"v_sub_f32 v{dd}, v{X+i}, v{s}")
            A(f"v_fmac_f32 v{q}, v{dd}, v{dd}")
        red(q)
        A(f"v_mul_f32 v{q}, {f32(1.0/512)}, v{q}")
        self.rnd(s, s)
        self.rnd(q, q)
        A(f"v_add_f32 v{q}, {f32(1e-5)}, v{q}")
        self.rnd(q, q)
        A(f"v_sqrt_f32 v{q}, v{q}")
        A("s_nop 0")
        self.rnd(q, q)
        A(f"v_rcp_f32 v{q}, v{q}")
        for i in range(n):
            A(f"v_sub_f32 v{X+i}, v{X+i}, v{s}")
        for i in range(n):
            self.rnd(X + i, X + i)
        for i in range(n):
            A(f"v_mul_f32 v{X+i}, v{X+i}, v{q}")
        for i in range(n // 2):
            A(f"v_cvt_pk_bf16_f32 v{P+i}, v{X+2*i}, v{X+2*i+1}")
        if unpack_after:
            self.unpack(X, P, n // 2)
    def unpack(self, X, P, n):
        for i in range(n):
            self.A(f"v_lshlrev_b32 v{X+2*i}, 16, v{P+i}")
            self.A(f"v_and_b32 v{X+2*i+1}, 0xffff0000, v{P+i}")

    def slabload(self, dst, srd, voff, stride, flags, last_inc=None, pace=None, cont=False):
        A = self.A
        for e in range(8):
            r = dst + 4 * e
            if pace is not None and (e >= pace or cont):
                A(f"s_waitcnt vmcnt({pace-1})")
            A(f"buffer_load_dwordx4 v[{r}:{r+3}], v{voff}, {srd}, s50 offen {flags}".rstrip())
            inc = stride if e < 7 else last_inc
            if inc is not None:
                A(f"s_add_u32 s50, s50, {inc}")
    def slabperm(self, dst, src):
        A = self.A
        for d in range(4):
            for hf in range(2):
                jj = 2 * d + hf
                for q in range(4):
                    A(f"v_perm_b32 v{dst + 4*jj + q}, v{src + 4*(2*q+1) + d}, v{src + 4*(2*q) + d}, s{48 + hf}")
    def slabmfma(self, RD, RA, B, first):
        A = self.A
        for jj in range(8):
            b = B + 4 * jj
            c = "0" if first else f"v[{RD+4*jj}:{RD+4*jj+3}]"
            A(f"v_mfma_f32_16x16x32_bf16 v[{RD+4*jj}:{RD+4*jj+3}], v[{RA}:{RA+3}], v[{b}:{b+3}], {c}")

    def spin_begin(self, lab):
        self.A(f"s_mov_b32 s55, {SPIN_MAX}")
        self.A(f"{lab}:")
    def spin_end(self, lab, sleep):
        A = self.A
        A(f"s_sleep {sleep}")
        A("s_sub_u32 s55, s55, 1")
        A("s_cmp_lg_u32 s55, 0")
        A(f"s_cbranch_scc1 {lab}")
    def xl_reduce4(self, R):
        A = self.A
        A("s_nop 0")
        for d in range(2):
            A(f"v_permlane32_swap_b32 v{R+d}, v{R+d+2}")
        for d in range(2):
            A(f"v_add_f32 v{R+d}, v{R+d}, v{R+d+2}")
        A("s_nop 1")
        A(f"v_permlane16_swap_b32 v{R}, v{R+1}")
        A(f"v_add_f32 v{R}, v{R}, v{R+1}")
        A("s_nop 1")
        A(f"v_add_f32_dpp v{R}, v{R}, v{R} row_ror:8 row_mask:0xf bank_mask:0xf")

    def gen(self):
        A, C = self.A, self.C
        self.L.append(HEADER.rstrip())
        self.L.append(f"; @launch grid=(256,1,1) block=(512,1,1) lds={LDS_BYTES}")
        self.L.append('.amdgcn_target "amdgcn-amd-amdhsa--gfx950"')
        self.L.append(".text"); self.L.append(f".globl {NAME}"); self.L.append(".p2align 8")
        self.L.append(f".type {NAME},@function"); self.L.append(f"{NAME}:")
        A("s_cmp_ge_u32 s2, 256")
        A("s_cbranch_scc1 L_end")
        self.stamp(0)
        A("s_load_dwordx16 s[16:31], s[0:1], 0")
        A("s_load_dwordx8 s[32:39], s[0:1], 64")
        A("s_load_dwordx2 s[40:41], s[0:1], 96")
        A("v_lshrrev_b32 v1, 6, v0")
        A("v_and_b32 v2, 15, v0")
        A("v_readfirstlane_b32 s3, v1")
        A("v_bfe_u32 v3, v0, 4, 2")
        A("v_and_b32 v4, 63, v0")
        C("decode: h = 4*(wg&7) + ((wg>>3)&3); b = (wg>>5)&3; side = wg>>7")
        A("s_and_b32 s4, s2, 7"); A("s_lshl_b32 s4, s4, 2")
        A("s_bfe_u32 s5, s2, 0x20003"); A("s_or_b32 s4, s4, s5")
        A("s_bfe_u32 s5, s2, 0x20005")
        A("s_lshr_b32 s6, s2, 7")
        A("s_lshl_b32 s59, s5, 5"); A("s_or_b32 s59, s59, s4"); A("s_lshl_b32 s59, s59, 1"); A("s_or_b32 s59, s59, s6")
        C("s59 = producer index b*64 + 2h + side")
        A("s_cmp_ge_u32 s3, 4")
        A("s_cbranch_scc1 L_helper")
        self.stream()
        self.helper()
        A("L_end:")
        A("s_endpgm")
        L = self.L
        L.append('.section .rodata,"a"'); L.append(".p2align 6"); L.append(f".amdhsa_kernel {NAME}")
        L.append("  .amdhsa_next_free_vgpr 256"); L.append("  .amdhsa_next_free_sgpr 102"); L.append("  .amdhsa_accum_offset 256")
        L.append("  .amdhsa_group_segment_fixed_size 0"); L.append("  .amdhsa_kernarg_size 104")
        L.append("  .amdhsa_user_sgpr_count 2"); L.append("  .amdhsa_user_sgpr_kernarg_segment_ptr 1")
        L.append("  .amdhsa_system_sgpr_workgroup_id_x 1")
        L.append("  .amdhsa_float_denorm_mode_32 3")
        L.append(".end_amdhsa_kernel")
        return "\n".join(L) + "\n"

    def stream(self):
        A, C = self.A, self.C
        RING = 64
        P = 24
        Q = 8
        S = 40
        ACC = 48
        PLO, PHI = 12, 13
        VOFF = 5
        fl = self.kvflags
        DK, DV, pre = self.DK, self.DV, self.pre
        C("===== stream waves =====")
        A("v_lshlrev_b32 v5, 4, v2")
        if self.pat == "A":
            A("v_lshl_or_b32 v5, v3, 12, v5")
            A("v_lshl_or_b32 v5, v1, 14, v5")
        else:
            wp, tp = {"B": (12, 14), "C": (14, 12)}[self.pat]
            A("v_lshl_or_b32 v5, v3, 8, v5")
            A(f"v_lshl_or_b32 v56, v1, {wp}, v5")
            for t in range(1, 4):
                A(f"v_add_u32 v{56+t}, {t << tp:#x}, v56")
        A("s_lshl_b32 s7, s59, 19")
        A("s_mov_b32 s10, 0x80000"); A("s_mov_b32 s11, 0x20000")
        A("s_mov_b32 s14, 0x80000"); A("s_mov_b32 s15, 0x20000")
        A("s_mov_b32 s46, 0x80000"); A("s_mov_b32 s47, 0x20000")
        A("s_mov_b32 s50, 0")
        A("s_waitcnt lgkmcnt(0)")
        A("s_add_u32 s8, s18, s7"); A("s_addc_u32 s9, s19, 0")
        issued = []
        def load(slot, srd, so, tag=None):
            r = RING + 4 * slot
            if self.pat == "A":
                A(f"buffer_load_dwordx4 v[{r}:{r+3}], v{VOFF}, {srd}, {so} offen offset:{(slot % 16)*256} {fl}".rstrip())
            else:
                A(f"buffer_load_dwordx4 v[{r}:{r+3}], v{56 + (slot % 16)//4}, {srd}, {so} offen offset:{(slot % 4)*1024} {fl}".rstrip())
            issued.append(tag)
        def wait(tag):
            A(f"s_waitcnt vmcnt({len(issued) - 1 - issued.index(tag)})")
        def swait(D):
            A(f"s_waitcnt vmcnt({D-1})")
            if self.adel:
                self.nlab += 1
                A(f"s_cbranch_vccnz L_ad{self.nlab}")
                A(f"s_waitcnt vmcnt({D-1-self.adel})")
                A(f"L_ad{self.nlab}:")
        if self.bal:
            A(f"s_mov_b64 vcc, {-self.binit}")
        elif self.adel:
            A(f"s_bitcmp{1-self.apar}_b32 s2, 0")
            A("s_cselect_b64 vcc, -1, 0")
        def bal(j, vph=False):
            if not self.bal:
                return
            self.nlab += 1
            if j == 8:
                A("s_cmp_ge_i32 s54, s62" if vph else "s_cmp_lg_u32 s3, 0")
                A(f"s_cbranch_scc1 L_bl{self.nlab}")
                A("s_mov_b64 exec, 1")
                A("global_atomic_add v61, v62, v63, s[40:41] sc0 sc1")
                A("s_mov_b64 exec, -1")
                A(f"L_bl{self.nlab}:")
            elif j == 0:
                A("s_cmp_gt_i32 s54, s62" if vph else "s_cmp_lg_u32 s3, 0")
                A(f"s_cbranch_scc1 L_bl{self.nlab}")
                A("v_subrev_u32 v61, s61, v61")
                A(f"s_add_u32 s61, s61, {1 << self.tlog}")
                A("s_mov_b64 exec, 1")
                A(f"ds_write_b32 v59, v61 offset:{RK}")
                A("s_mov_b64 exec, -1")
                A(f"L_bl{self.nlab}:")
            elif j == 2:
                A(f"ds_read_b32 v58, v59 offset:{RK}")
            elif j == 4:
                A("s_waitcnt lgkmcnt(0)")
                A(f"v_cmp_le_i32 vcc, {self.thr}, v58")
        for gi in range(pre):
            for j in range(16):
                n = 16 * gi + j
                dd = self.dks
                if dd and n >= dd:
                    swait(dd)
                load(n, "s[8:11]", "s50", (gi, j))
            A("s_add_u32 s50, s50, 0x10000")
        A("s_add_u32 s12, s20, s7"); A("s_addc_u32 s13, s21, 0")
        A("s_mov_b32 s52, 0xaaaaaaaa"); A("s_mov_b32 s53, 0xaaaaaaaa")
        A("s_mov_b32 s56, 0xcccccccc"); A("s_mov_b32 s57, 0xcccccccc")
        A("v_lshlrev_b32 v7, 4, v2")
        if self.bal:
            A(f"s_lshr_b32 s61, s2, {self.tlog}"); A("s_lshl_b32 s61, s61, 7"); A(f"s_add_u32 s61, s61, {WS_BAL:#x}")
            A("v_mov_b32 v62, s61"); A("v_mov_b32 v63, 1"); A("v_mov_b32 v59, 0")
            A(f"v_mov_b32 v61, {self.thr - 1 + self.binit}")
            A("s_mov_b32 s61, 0")
            A("s_cmp_eq_u32 s3, 0"); A(f"s_cselect_b32 s62, {self.bend}, -1")
            A(f"ds_write_b32 v59, v61 offset:{RK}")
            A("s_waitcnt lgkmcnt(0)")
        self.stamp(1)
        A("s_barrier")
        A(f"ds_read_b128 v[{Q}:{Q+3}], v7 offset:{QP}")
        self.stamp(2)
        A("s_waitcnt lgkmcnt(0)")
        def qk(slots):
            for d in range(4):
                for slot in slots:
                    r = RING + 4 * slot
                    p = P + slot % 16
                    c = "0" if d == 0 else f"v{p}"
                    A(f"v_dot2_f32_bf16 v{p}, v{r+d}, v{Q+d}, {c}")
        def treduce(dst, mid=()):
            C("transposing reduction: lane (g,c) <- score of load c, key g")
            for t in range(8):
                A(f"v_add_f32_dpp v{P+t}, v{P+t}, v{P+t} row_ror:8 row_mask:0xf bank_mask:0x3")
            for t in range(8):
                A(f"v_add_f32_dpp v{P+t}, v{P+t+8}, v{P+t+8} row_ror:8 row_mask:0xf bank_mask:0xc")
            for t in range(4):
                A(f"v_add_f32_dpp v{P+t}, v{P+t}, v{P+t} row_half_mirror row_mask:0xf bank_mask:0x5")
            for t in range(4):
                A(f"v_add_f32_dpp v{P+t}, v{P+t+4}, v{P+t+4} row_half_mirror row_mask:0xf bank_mask:0xa")
            U0, U1, T0, T1 = P + 8, P + 9, P + 10, P + 11
            A(f"v_cndmask_b32 v{U0}, v{P+1}, v{P}, s[52:53]")
            A(f"v_cndmask_b32 v{U1}, v{P+3}, v{P+2}, s[52:53]")
            A(f"v_cndmask_b32 v{T0}, v{P}, v{P+1}, s[52:53]")
            A(f"v_cndmask_b32 v{T1}, v{P+2}, v{P+3}, s[52:53]")
            A("s_nop 1")
            A(f"v_add_f32_dpp v{T0}, v{U0}, v{T0} quad_perm:[1,0,3,2] row_mask:0xf bank_mask:0xf")
            A(f"v_add_f32_dpp v{T1}, v{U1}, v{T1} quad_perm:[1,0,3,2] row_mask:0xf bank_mask:0xf")
            A(f"v_cndmask_b32 v{U0}, v{T1}, v{T0}, s[56:57]")
            A(f"v_cndmask_b32 v{U1}, v{T0}, v{T1}, s[56:57]")
            if mid:
                for m in mid:
                    A(m)
            else:
                A("s_nop 1")
            A(f"v_add_f32_dpp v{dst}, v{U0}, v{U1} quad_perm:[2,3,0,1] row_mask:0xf bank_mask:0xf")
        C("catch-up over the prefetched groups; group `pre` is loaded into ring slots 0..15 meanwhile")
        nxt = 0
        for gi in range(pre):
            for j in range(0, 16, 2):
                wait((gi, j + 1))
                qk([16 * gi + j, 16 * gi + j + 1])
                if gi == 0:
                    want = j + 2 if (j < 8 or pre == 1) else 8
                elif gi == 1:
                    want = 8 + j // 2 + 1
                else:
                    want = 16
                while nxt < want:
                    load(nxt, "s[8:11]", "s50", (pre, nxt)); nxt += 1
            A("s_nop 0")
            treduce(S + 8 - pre + gi)
        assert nxt == 16
        for j in range(16 - DK):
            wait((pre, j))
            qk([j])
        A(f"s_mov_b32 s54, {pre}")
        A("s_branch L_kmid")
        A("L_kloop:")
        for j in range(16 - DK):
            swait(DK)
            load(j + DK, "s[8:11]", "s50")
            qk([j])
            if j < 8:
                bal(j)
        A("L_kmid:")
        if self.prog:
            A("s_memrealtime s[90:91]")
        C("the rest refills from the next group (V group 0 after the last K group)")
        A("s_add_u32 s50, s50, 0x10000")
        A("s_cmp_eq_u32 s54, 7")
        A("s_cselect_b32 s44, s12, s8"); A("s_cselect_b32 s45, s13, s9"); A("s_cselect_b32 s51, 0, s50")
        for j in range(16 - DK, 16):
            swait(DK)
            load(j + DK - 16, "s[44:47]", "s51")
            qk([j])
            if j == 16 - DK:
                bal(8)
        if self.prog:
            A("s_waitcnt lgkmcnt(0)")
            A("s_mov_b32 m0, s54"); A("s_nop 0")
            A("v_writelane_b32 v60, s90, m0")
        for i in range(7):
            A(f"v_mov_b32 v{S+i}, v{S+i+1}")
        treduce(S + 7, ("s_add_u32 s54, s54, 1", "s_cmp_lt_u32 s54, 8"))
        A("s_cbranch_scc1 L_kloop")
        self.stamp(3)
        A("s_mov_b32 s50, 0")
        for j in range(DK, DV):
            load(j, "s[12:15]", "s50")
        C("softmax over this row's 128 keys (true max of the partial; partials are merged exactly later)")
        M, Ls = 14, 15
        cs = math.log2(math.e) / math.sqrt(128.0)
        A(f"s_mov_b32 s58, {f32(cs)}")
        A(f"v_max3_f32 v{M}, v{S}, v{S+1}, v{S+2}")
        A(f"v_max3_f32 v{M}, v{M}, v{S+3}, v{S+4}")
        A(f"v_max3_f32 v{M}, v{M}, v{S+5}, v{S+6}")
        A(f"v_max_f32 v{M}, v{M}, v{S+7}")
        self.row_allreduce("max", M)
        A(f"v_mul_f32 v{M}, s58, v{M}")
        for i in range(8):
            A(f"v_fma_f32 v{S+i}, v{S+i}, s58, -v{M}")
        for i in range(8):
            A(f"v_exp_f32 v{S+i}, v{S+i}")
        for i in range(8):
            A(f"v_mov_b32 v{ACC+i}, 0")
        A(f"v_add_f32 v{Ls}, v{S}, v{S+1}")
        for i in range(2, 8):
            A(f"v_add_f32 v{Ls}, v{Ls}, v{S+i}")
        self.row_allreduce("add", Ls)
        A(f"v_lshrrev_b32 v7, 4, v0")
        A(f"v_lshlrev_b32 v16, 2, v7")
        A(f"v_min_u32 v{M}, -2, v{M}")
        A(f"v_min_u32 v{Ls}, -2, v{Ls}")
        A(f"ds_write_b32 v16, v{M} offset:{MLM}")
        A(f"ds_write_b32 v16, v{Ls} offset:{MLL}")
        A(f"v_mul_u32_u24 v17, {OBS}, v7")
        A("v_lshl_add_u32 v17, v2, 4, v17")
        A("s_mov_b32 s54, 0")
        assert DV >= DK
        def pv(slot):
            r = RING + 4 * slot
            for d in range(4):
                A(f"v_dot2c_f32_bf16_dpp v{ACC+2*d}, v{PLO}, v{r+d} row_newbcast:{slot} row_mask:0xf bank_mask:0xf")
                A(f"v_dot2c_f32_bf16_dpp v{ACC+2*d+1}, v{PHI}, v{r+d} row_newbcast:{slot} row_mask:0xf bank_mask:0xf")
        A("L_vloop:")
        A(f"v_cvt_pk_bf16_f32 v{PLO}, v{S}, 0")
        A(f"v_cvt_pk_bf16_f32 v{PHI}, 0, v{S}")
        for i in range(7):
            A(f"v_mov_b32 v{S+i}, v{S+i+1}")
        for j in range(16):
            if j == 16 - DV and self.prog:
                A("s_memrealtime s[90:91]")
            if j == 16 - DV:
                A("s_add_u32 s50, s50, 0x10000")
            swait(DV)
            load((j + DV) % 16, "s[12:15]", "s50")
            pv(j)
            bal(j, True)
        if self.prog:
            A("s_waitcnt lgkmcnt(0)")
            A("s_add_u32 m0, s54, 8"); A("s_nop 0")
            A("v_writelane_b32 v60, s90, m0")
        A("s_add_u32 s54, s54, 1")
        A("s_cmp_lt_u32 s54, 8")
        A("s_cbranch_scc1 L_vloop")
        self.stamp(4)
        A("s_nop 1")
        for d in range(4):
            A(f"v_cvt_pk_bf16_f32 v{20+d}, v{ACC+2*d}, v{ACC+2*d+1}")
        A(f"ds_write_b128 v17, v[20:23] offset:{OB}")
        A("s_waitcnt lgkmcnt(0)")
        A("s_barrier")
        self.dump_stamps(5, 24)
        if self.prog:
            A("s_lshl_b32 s60, s2, 2"); A("s_add_u32 s60, s60, s3"); A("s_lshl_b32 s60, s60, 6")
            A(f"s_add_u32 s60, s60, {WS_DIAG + 0x80000:#x}")
            A("v_lshlrev_b32 v24, 2, v4")
            A("v_add_u32 v24, s60, v24")
            A("s_mov_b64 exec, 0xffff")
            A("global_store_dword v24, v60, s[40:41]")
        A("s_endpgm")

    TB = 100
    def tag4(self, R, n=4):
        for i in range(n):
            self.A(f"v_and_or_b32 v{R+i}, v{R+i}, v15, s{96 + i % 4}")
    def chk(self, acc, R, n, D=None):
        D = R if D is None else D
        for i in range(n):
            self.A(f"v_xor_b32 v{D+i}, s{96 + i % 4}, v{R+i}")
        self.A(f"v_or3_b32 v{acc}, v{D}, v{D+1}, v{D+2}")
        i = 3
        while i < n:
            if i + 1 < n:
                self.A(f"v_or3_b32 v{acc}, v{acc}, v{D+i}, v{D+i+1}"); i += 2
            else:
                self.A(f"v_or_b32 v{acc}, v{acc}, v{D+i}"); i += 1
    def chk_branch(self, acc, lab, sleep):
        A = self.A
        A(f"v_cmp_ne_u32_sdwa vcc, v{acc}, v10 src0_sel:BYTE_0 src1_sel:DWORD")
        A(f"s_cbranch_vccz {lab}_done")
        self.spin_end(lab, sleep)
        A(f"{lab}_done:")

    def set_tag(self):
        for k in range(4):
            self.A(f"s_bfe_u32 s{96+k}, s63, {0x80000 + 8*k:#x}")

    def helper(self):
        A, C = self.A, self.C
        wf, mf = self.wflags, self.mflags
        RA, RD = 16, 32
        RB = 64
        ST = 192
        T = 224
        A("L_helper:")
        C("===== helper waves =====")
        A("s_sub_u32 s7, s3, 4")
        if self.touch:
            C("helper 2 touches one word of every buffer this CU uses later (address translation warm-up)")
            A("s_cmp_lg_u32 s7, 2")
            A("s_cbranch_scc1 L_notouch")
            A("s_lshl_b32 s42, s59, 19"); A("v_mov_b32 v16, s42")
            A("s_lshl_b32 s42, s4, 17"); A("v_mov_b32 v17, s42")
            A("s_lshl_b32 s42, s2, 7"); A("s_add_u32 s42, s42, 0xa0000"); A("v_mov_b32 v18, s42")
            A("s_lshr_b32 s42, s2, 3"); A("s_min_u32 s42, s42, 27"); A("s_lshl_b32 s42, s42, 16"); A("v_mov_b32 v19, s42")
            A("v_mov_b32 v20, 0")
            A("s_mov_b64 exec, 1")
            A("s_waitcnt lgkmcnt(0)")
            tt = {"v": (16, 20), "wo": (17, 24), "ws": (18, 40), "w2": (19, 32), "b1": (20, 30), "b2": (20, 34), "out": (20, 36)}
            for i, k in enumerate(self.touch):
                A(f"global_load_dword v{24+i}, v{tt[k][0]}, s[{tt[k][1]}:{tt[k][1]+1}] nt")
            A("s_mov_b64 exec, -1")
            A("L_notouch:")
        if self.bal:
            C("the first WG of a team clears the team's progress counter (used for pacing only)")
            A(f"s_and_b32 s42, s2, {(1 << self.tlog) - 1}"); A("s_lshl_b32 s42, s42, 2"); A("s_or_b32 s42, s42, s7")
            A("s_cmp_lg_u32 s42, 2")
            A("s_cbranch_scc1 L_nobal")
            A(f"s_lshr_b32 s42, s2, {self.tlog}"); A("s_lshl_b32 s42, s42, 7"); A(f"s_add_u32 s42, s42, {WS_BAL:#x}")
            A("v_mov_b32 v16, s42"); A("v_mov_b32 v17, 0")
            A("s_mov_b64 exec, 1")
            A("s_waitcnt lgkmcnt(0)")
            A("global_store_dword v16, v17, s[40:41] sc1")
            A("s_mov_b64 exec, -1")
            A("L_nobal:")
        if self.bare == 1:
            A("s_waitcnt lgkmcnt(0)")
            A("s_barrier"); A("s_barrier"); A("s_branch L_hend")
        A("s_mov_b32 s48, 0x05040100"); A("s_mov_b32 s49, 0x07060302")
        A("v_lshlrev_b32 v6, 4, v4")
        A("v_mov_b32 v10, 0")
        A("v_mov_b32 v15, 0xffffff00")
        A("s_mov_b32 s11, 0x20000"); A("s_mov_b32 s15, 0x20000")
        C("s62 = MLP unit of this WG (>= NUNIT: none)")
        A("s_lshr_b32 s62, s2, 1")
        A("s_and_b32 s42, s2, 1"); A(f"s_cmp_eq_u32 s42, {self.mpar}")
        A("s_cselect_b32 s62, s62, 255")
        A("s_cmp_ge_u32 s7, 2")
        A("s_cbranch_scc1 L_nofront")
        A("s_cmp_eq_u32 s7, 0")
        A("s_cbranch_scc1 L_front")
        A(f"s_cmp_ge_u32 s62, {NUNIT}")
        A("s_cbranch_scc1 L_nofront")
        if "s1" in self.skip:
            A("s_branch L_nofront")
        A("L_front:")
        C("front units, 64 rows x 128 cols for all 4 batch rows. helper 0: wq rows 64(wg>>5).., cols 128h..")
        C("helper 1: w1 rows 64(u&7).., cols 128(u>>3)..")
        A(f"s_setprio {self.fprio}")
        A("s_lshr_b32 s42, s2, 5"); A("s_and_b32 s43, s62, 7")
        A("s_lshr_b32 s44, s62, 3")
        A("s_mov_b32 s51, 3584")
        A("s_cmp_eq_u32 s7, 0")
        A("s_cselect_b32 s53, s42, s43")
        A("s_cselect_b32 s44, s4, s44")
        A("s_cselect_b32 s51, 8192, s51")
        A("s_lshl_b32 s10, s51, 9")
        A("s_mul_i32 s52, s51, 25")
        A("s_mul_i32 s50, s53, s51"); A("s_lshl_b32 s50, s50, 6"); A("s_lshl_b32 s44, s44, 8"); A("s_add_u32 s50, s50, s44")
        A("s_lshl_b32 s42, s51, 3")
        A("v_mul_u32_u24 v5, s42, v3")
        A("v_lshl_add_u32 v5, v2, 4, v5")
        A("v_lshlrev_b32 v12, 10, v3")
        A("v_lshl_add_u32 v12, v2, 4, v12")
        A("s_cmp_eq_u32 s7, 0")
        A("s_waitcnt lgkmcnt(0)")
        for t in range(4):
            A(f"global_load_dwordx4 v[{RB+32+4*t}:{RB+35+4*t}], v12, s[16:17] offset:{256*t}")
        C("the word the previous launch left only serves to pick a tag that differs from that launch's")
        A(f"s_load_dword s63, s[40:41], {WS_EP:#x}")
        A("s_cselect_b32 s8, s22, s28"); A("s_cselect_b32 s9, s23, s29")
        if "fld" in self.skip:
            A("s_mov_b32 s10, 0")
        self.slabload(RB + 96, "s[8:11]", 5, "s51", mf, last_inc="s52")
        self.slabload(ST, "s[8:11]", 5, "s51", mf)
        A("s_lshl_b32 s42, s7, 12")
        A("v_add_u32 v12, s42, v12")
        C("A operand: rows[i>>2][64*blk + 32n + 8kk]")
        A("v_lshrrev_b32 v13, 2, v2")
        A("v_lshlrev_b32 v13, 10, v13")
        A("v_lshl_add_u32 v13, v3, 4, v13")
        A("s_lshl_b32 s43, s53, 7"); A("s_add_u32 s42, s42, s43")
        A("v_add_u32 v13, s42, v13")
        A("s_mov_b32 s54, s7")
        A("s_waitcnt vmcnt(16)")
        self.stamp(1)
        A("L_ln:")
        self.unpack(RB, RB + 32, 16)
        self.layernorm(RB, 32, T, RB + 32, unpack_after=False)
        A("s_sub_u32 s54, s54, 1")
        A("s_cbranch_scc0 L_ln")
        for t in range(4):
            A(f"ds_write_b128 v12, v[{RB+32+4*t}:{RB+35+4*t}] offset:{XN + 256*t}")
        A("s_waitcnt vmcnt(8)")
        self.slabperm(RB + 64, RB + 96)
        A("s_waitcnt lgkmcnt(0)")
        A(f"ds_read_b128 v[{RA}:{RA+3}], v13 offset:{XN}")
        A(f"ds_read_b128 v[{RA+4}:{RA+7}], v13 offset:{XN+64}")
        A("s_add_u32 s63, s63, 0x61c88647")
        self.set_tag()
        A("s_waitcnt vmcnt(0)")
        self.slabperm(RB + 96, ST)
        A("s_waitcnt lgkmcnt(0)")
        self.slabmfma(RD, RA, RB + 64, True)
        self.slabmfma(RD, RA + 4, RB + 96, False)
        A("s_cmp_eq_u32 s7, 0")
        A("s_cbranch_scc1 L_qaddr")
        C("U[u][sub=c>>2][half][b=kk][c&3][4]")
        A("s_lshl_b32 s42, s62, 11"); A(f"s_add_u32 s42, s42, {WS_U:#x}")
        A("v_lshrrev_b32 v12, 2, v2"); A("v_lshlrev_b32 v12, 9, v12")
        A("v_lshl_add_u32 v12, v3, 6, v12")
        A("v_and_b32 v13, 3, v2"); A("v_lshl_add_u32 v12, v13, 4, v12")
        A("s_branch L_fst")
        A("L_qaddr:")
        C("Q[h][b=kk][s][half][c][4]")
        A("s_lshl_b32 s42, s4, 14"); A("s_lshl_b32 s43, s53, 9"); A("s_add_u32 s42, s42, s43")
        A(f"s_add_u32 s42, s42, {WS_Q:#x}")
        A("v_lshlrev_b32 v12, 12, v3")
        A("v_lshl_add_u32 v12, v2, 4, v12")
        A("L_fst:")
        A("v_add_u32 v12, s42, v12")
        for jj in range(8):
            A(f"v_and_or_b32 v{T+jj}, v{RD+4*jj}, v15, s{96 + jj % 4}")
        if "fst" not in self.skip:
            A(f"global_store_dwordx4 v12, v[{T}:{T+3}], s[40:41] sc1")
            A(f"global_store_dwordx4 v12, v[{T+4}:{T+7}], s[40:41] offset:256 sc1")
        self.stamp(2)
        A("s_cmp_lg_u32 s7, 0")
        A("s_cbranch_scc1 L_fdone")
        C("helper 0: gather the 8 partials of q[b][h], LDS init")
        A("s_lshl_b32 s42, s4, 14"); A("s_lshl_b32 s43, s5, 12"); A("s_add_u32 s42, s42, s43")
        A(f"s_add_u32 s42, s42, {WS_Q:#x}")
        A("v_add_u32 v12, s42, v6")
        A("v_lshlrev_b32 v8, 2, v4")
        A("v_mov_b32 v9, -1")
        A(f"ds_write_b32 v8, v9 offset:{MLM}")
        A("v_mov_b32 v9, s63")
        A(f"ds_write_b32 v10, v9 offset:{TAGL}")
        A("v_bfe_u32 v9, v4, 4, 1")
        A("v_lshlrev_b32 v9, 3, v9")
        A("v_lshl_add_u32 v9, v2, 4, v9")
        if "qpoll" in self.skip:
            A("s_branch L_sp_q_done")
        if self.qack:
            A("s_waitcnt vmcnt(0)")
        if self.qdelay:
            A(f"s_sleep {self.qdelay}")
        self.spin_begin("L_sp_q")
        for t in range(4):
            A(f"global_load_dwordx4 v[{RD+4*t}:{RD+4*t+3}], v12, s[40:41] offset:{1024*t} sc1")
        A("s_waitcnt vmcnt(0)")
        self.chk(13, RD, 16)
        self.chk_branch(13, "L_sp_q", self.qsleep)
        for d in range(4):
            A(f"v_add_f32 v{RD+d}, v{RD+d}, v{RD+4+d}")
            A(f"v_add_f32 v{RD+8+d}, v{RD+8+d}, v{RD+12+d}")
        for d in range(4):
            A(f"v_add_f32 v{RD+d}, v{RD+d}, v{RD+8+d}")
        for d in range(4):
            A(f"v_mov_b32 v{RD+4+d}, v{RD+d}")
        A("s_nop 1")
        for d in range(4):
            A(f"v_permlane32_swap_b32 v{RD+d}, v{RD+4+d}")
        for d in range(4):
            A(f"v_add_f32 v{RD+d}, v{RD+d}, v{RD+4+d}")
        for d in range(2):
            A(f"v_cvt_pk_bf16_f32 v{RD+d}, v{RD+2*d}, v{RD+2*d+1}")
        A(f"ds_write_b64 v9, v[{RD}:{RD+1}] offset:{QP}")
        A("L_fdone:")
        A("s_setprio 0")
        A("L_nofront:")
        A("s_waitcnt lgkmcnt(0)")
        self.stamp(3)
        A("s_barrier")
        if self.bare == 2:
            A("s_barrier"); A("s_branch L_hend")
        A(f"ds_read_b32 v13, v10 offset:{TAGL}")
        C("----- wo block: rows 128h.., cols 128j.. (paced; helper 2 keeps one more load in flight) -----")
        A("v_lshlrev_b32 v5, 4, v2")
        A("v_lshl_or_b32 v5, v3, 13, v5")
        A("s_lshl_b32 s50, s4, 17"); A("s_lshl_b32 s43, s7, 8"); A("s_add_u32 s50, s50, s43")
        A("s_mov_b32 s8, s24"); A("s_mov_b32 s9, s25"); A("s_mov_b32 s10, 0x400000")
        A("s_waitcnt lgkmcnt(0)")
        A("v_readfirstlane_b32 s63, v13")
        self.set_tag()
        A("s_cmp_eq_u32 s7, 2")
        A("s_cselect_b64 vcc, -1, 0")
        def wo_round(n):
            wd = self.wdepth
            for e in range(8):
                r = ST + 4 * e
                if e >= wd:
                    A(f"s_waitcnt vmcnt({wd})")
                    A(f"s_cbranch_vccnz L_wo{n}_{e}")
                    A(f"s_waitcnt vmcnt({wd-1})")
                    A(f"L_wo{n}_{e}:")
                A(f"buffer_load_dwordx4 v[{r}:{r+3}], v5, s[8:11], s50 offen {wf}".rstrip())
                A(f"s_add_u32 s50, s50, {1024 if e < 7 else 25*1024}")
            A("s_waitcnt vmcnt(0)")
            self.slabperm(RB + 32 * n, ST)
        wo_round(0)
        A("s_cmp_lg_u32 s7, 1")
        A("s_cbranch_scc1 L_not1")
        if self.mpar2 != self.mpar:
            A("s_lshr_b32 s62, s2, 1")
            A("s_and_b32 s42, s2, 1"); A(f"s_cmp_eq_u32 s42, {self.mpar2}")
            A("s_cselect_b32 s62, s62, 255")
        A(f"s_cmp_ge_u32 s62, {NUNIT}")
        A("s_cbranch_scc1 L_not1")
        if "s2" in self.skip:
            A("s_branch L_not1")
        C("stage 2 unit: r = u>>2 (hidden rows 64r..), cq = u&3 (cols 128cq..)")
        A("s_mov_b32 s51, s50")
        A("s_lshr_b32 s60, s62, 2"); A("s_and_b32 s61, s62, 3")
        A("s_lshl_b32 s50, s60, 16"); A("s_lshl_b32 s43, s61, 8"); A("s_add_u32 s50, s50, s43")
        A("s_mov_b32 s12, s32"); A("s_mov_b32 s13, s33"); A(f"s_mov_b32 s14, {1792*1024}")
        if "w2ld" in self.skip:
            A("s_mov_b32 s14, 0")
        self.slabload(ST, "s[12:15]", 5, 1024, mf, last_inc=25 * 1024, pace=self.w2p)
        self.slabload(RD, "s[12:15]", 5, 1024, mf, pace=self.w2p, cont=True)
        A("s_lshl_b32 s43, s60, 7")
        A("v_lshlrev_b32 v13, 4, v3")
        A("v_add_u32 v13, s43, v13")
        A(f"global_load_dwordx4 v[{T+16}:{T+19}], v13, s[30:31]")
        A(f"global_load_dwordx4 v[{T+20}:{T+23}], v13, s[30:31] offset:64")
        A("s_mov_b32 s50, s51")
        C("U[m*8 + 4t + (c&3)][2(r&1) + n][half][b=c>>2][kk][4]")
        A("v_and_b32 v12, 3, v2"); A("v_lshlrev_b32 v12, 11, v12")
        A("v_lshrrev_b32 v13, 2, v2"); A("v_lshl_add_u32 v12, v13, 6, v12")
        A("v_lshl_add_u32 v12, v3, 4, v12")
        A("s_lshr_b32 s42, s60, 1"); A("s_lshl_b32 s42, s42, 14")
        A("s_and_b32 s43, s60, 1"); A("s_lshl_b32 s43, s43, 10"); A("s_add_u32 s42, s42, s43")
        A(f"s_add_u32 s42, s42, {WS_U:#x}")
        A(f"v_add_u32 v{T}, s42, v12")
        A(f"v_add_u32 v{T+1}, 0x2000, v{T}")
        UU, W, BB = RB + 64, RB + 80, RB + 112
        if "upoll" in self.skip:
            A("s_waitcnt vmcnt(0)")
            A("s_branch L_sp_u_done")
        self.spin_begin("L_sp_u")
        for t in range(2):
            for q in range(4):
                A(f"global_load_dwordx4 v[{UU+16*t+4*q}:{UU+16*t+4*q+3}], v{T+t}, s[40:41] offset:{256*q} {self.ufl}")
        A("s_waitcnt vmcnt(0)")
        self.chk(13, UU, 32)
        self.chk_branch(13, "L_sp_u", 32)
        self.unpack(BB, T + 16, 8)
        for i in range(16):
            A(f"v_add_f32 v{UU+i}, v{UU+i}, v{UU+16+i}")
        for m in ("quad_perm:[1,0,3,2]", "quad_perm:[2,3,0,1]"):
            for i in range(16):
                A(f"v_add_f32_dpp v{UU+i}, v{UU+i}, v{UU+i} {m} row_mask:0xf bank_mask:0xf")
        for i in range(16):
            self.rnd(UU + i, UU + i)
        for i in range(16):
            A(f"v_add_f32 v{UU+i}, v{UU+i}, v{BB+i}")
        for i in range(16):
            self.rnd(UU + i, UU + i)
        C("gelu(tanh form) = u / (1 + exp(-2k(u + 0.044715 u^3)))")
        k2 = -2.0 * math.sqrt(2.0 / math.pi) * math.log2(math.e)
        A(f"s_mov_b32 s42, {f32(0.044715 * k2)}"); A(f"s_mov_b32 s43, {f32(k2)}")
        A("v_mov_b32 v12, s43")
        for i in range(16):
            A(f"v_mul_f32 v{W+i}, v{UU+i}, v{UU+i}")
        for i in range(16):
            A(f"v_fma_f32 v{W+i}, v{W+i}, s42, v12")
        for i in range(16):
            A(f"v_mul_f32 v{W+i}, v{W+i}, v{UU+i}")
        for i in range(16):
            A(f"v_exp_f32 v{W+i}, v{W+i}")
        for i in range(16):
            A(f"v_add_f32 v{W+i}, 1.0, v{W+i}")
        for i in range(16):
            A(f"v_rcp_f32 v{W+i}, v{W+i}")
        for i in range(16):
            A(f"v_mul_f32 v{UU+i}, v{UU+i}, v{W+i}")
        for d in range(8):
            A(f"v_cvt_pk_bf16_f32 v{RA+d}, v{UU+2*d}, v{UU+2*d+1}")
        self.slabperm(RB + 64, ST)
        self.slabperm(RB + 96, RD)
        self.slabmfma(RD, RA, RB + 64, True)
        self.slabmfma(RD, RA + 4, RB + 96, False)
        C("Z[b=kk][line 4cq + 2(c>>3) + half][r][(c&7)*4..]")
        A(f"v_mul_u32_u24 v12, {16*NZ*128}, v3")
        A("v_lshrrev_b32 v13, 3, v2")
        A(f"v_mul_u32_u24 v13, {2*NZ*128}, v13")
        A("v_add_u32 v12, v12, v13")
        A("v_and_b32 v13, 7, v2")
        A("v_lshl_add_u32 v12, v13, 4, v12")
        A(f"s_mul_i32 s42, s61, {4*NZ*128}"); A("s_lshl_b32 s43, s60, 7"); A("s_add_u32 s42, s42, s43")
        A(f"s_add_u32 s42, s42, {WS_Z:#x}")
        A("v_add_u32 v12, s42, v12")
        for jj in range(8):
            A(f"v_and_or_b32 v{T+jj}, v{RD+4*jj}, v15, s{96 + jj % 4}")
        if "zst" not in self.skip:
            A(f"global_store_dwordx4 v12, v[{T}:{T+3}], s[40:41] {self.zfl}")
            A(f"global_store_dwordx4 v12, v[{T+4}:{T+7}], s[40:41] offset:{NZ*128} {self.zfl}")
        A("s_mov_b64 vcc, 0")
        A("L_not1:")
        wo_round(1); wo_round(2); wo_round(3)
        self.stamp(4)
        if self.bare == 3:
            A("s_barrier"); A("s_branch L_hend")
        C("wait for the 16 (m,l) partials of this WG's stream waves")
        A("v_lshlrev_b32 v12, 2, v2")
        self.spin_begin("L_sp_m")
        A(f"ds_read_b32 v14, v12 offset:{MLM}")
        A(f"ds_read_b32 v11, v12 offset:{MLL}")
        A("s_waitcnt lgkmcnt(0)")
        A("v_max_u32 v13, v14, v11")
        A("v_cmp_eq_u32 vcc, -1, v13")
        A("s_cbranch_vccz L_sp_m_done")
        self.spin_end("L_sp_m", 4)
        A("L_sp_m_done:")
        CF = T + 28
        A("v_lshlrev_b32 v13, 4, v3")
        A(f"ds_read_b128 v[{CF}:{CF+3}], v13 offset:{MLM}")
        A(f"v_mov_b32 v{T}, v14")
        self.row_allreduce("max", T)
        A(f"v_sub_f32 v14, v14, v{T}")
        A("v_exp_f32 v14, v14")
        A("s_waitcnt lgkmcnt(0)")
        for r in range(4):
            A(f"v_sub_f32 v{CF+r}, v{CF+r}, v{T}")
        A(f"v_mul_f32 v{T+2}, v14, v11")
        for r in range(4):
            A(f"v_exp_f32 v{CF+r}, v{CF+r}")
        A("s_cmp_lg_u32 s7, 2")
        A("s_cbranch_scc1 L_nopub")
        C("helper 2 publishes {M, tag, L, tag} of this WG")
        self.row_allreduce("add", T + 2)
        A(f"v_mov_b32 v{T+1}, s63"); A(f"v_mov_b32 v{T+3}, s63")
        A(f"s_mul_i32 s42, s59, {self.mls}"); A(f"s_add_u32 s42, s42, {self.wsml:#x}")
        A("v_mov_b32 v12, s42")
        A("s_mov_b64 exec, 1")
        if "ml" not in self.skip:
            A(f"global_store_dwordx4 v12, v[{T}:{T+3}], s[40:41] sc1")
        A("s_mov_b64 exec, -1")
        A("L_nopub:")
        G, XV, COL, F = T + 24, T + 25, T + 26, T + 8
        TG = T + 22
        C("addresses for the tail")
        A(f"v_mul_u32_u24 v8, {OBS}, v2")
        A("v_lshl_add_u32 v8, v3, 4, v8")
        C("S row + j*512 + (c>>3)*256 + (kk>>1)*128 + (c&7)*16 + (kk&1)*8")
        A("s_lshl_b32 s42, s7, 9"); A("s_lshl_b32 s43, s59, 11"); A("s_add_u32 s42, s42, s43")
        A("v_lshrrev_b32 v9, 3, v2"); A("v_lshlrev_b32 v9, 8, v9")
        A("v_lshrrev_b32 v13, 1, v3"); A("v_lshl_add_u32 v9, v13, 7, v9")
        A("v_and_b32 v13, 7, v2"); A("v_lshl_add_u32 v9, v13, 4, v9")
        A("v_and_b32 v13, 1, v3"); A("v_lshl_add_u32 v9, v13, 3, v9")
        A("v_add_u32 v9, s42, v9")
        A("v_lshlrev_b32 v13, 4, v13")
        A(f"v_lshrrev_b32 v{TG}, v13, s63")
        A(f"v_bfe_u32 v{TG+1}, v{TG}, 8, 8")
        A(f"v_and_b32 v{TG}, 0xff, v{TG}")
        A(f"v_mov_b32 v{COL}, 0")
        A("v_mov_b32 v7, 0")
        A("s_mov_b32 s8, s40"); A("s_mov_b32 s9, s41"); A("s_mov_b32 s10, 0x80000")
        C("s58 = 1 on consumer waves: helper 3 of WGs >= 128 of one parity")
        A(f"s_and_b32 s42, s2, 0x81"); A("s_lshl_b32 s43, s7, 1"); A("s_or_b32 s42, s42, s43")
        A(f"s_cmp_eq_u32 s42, {0x86 | self.cpar:#x}")
        A("s_cselect_b32 s58, 1, 0")
        A("s_cbranch_scc0 L_nog")
        if "cons" in self.skip:
            A("s_mov_b32 s58, 0")
            A("s_branch L_nog")
        C("consumer: batch bc, line cb: gate and merge factors")
        A("s_bfe_u32 s62, s2, 0x60001")
        A("s_lshr_b32 s60, s62, 4"); A("s_and_b32 s61, s62, 15")
        A("v_and_b32 v12, 7, v4")
        C("S poll address: S[bc][(l>>3) + 8it][line cb] + (l&7)*16")
        A("s_lshl_b32 s42, s60, 17"); A("s_lshl_b32 s43, s61, 7"); A("s_add_u32 s42, s42, s43")
        A("v_lshrrev_b32 v13, 3, v4"); A("v_lshlrev_b32 v13, 11, v13")
        A("v_lshl_add_u32 v7, v12, 4, v13")
        A("v_add_u32 v7, s42, v7")
        C("column = 64(cb>>1) + 4(cb&1) + 8(l&7) + 2(l>>5) + ((l>>4)&1)")
        A("v_lshlrev_b32 v12, 3, v12")
        A("v_lshrrev_b32 v13, 5, v4"); A("v_lshl_add_u32 v12, v13, 1, v12")
        A("v_bfe_u32 v13, v4, 4, 1"); A("v_add_u32 v12, v12, v13")
        A("s_lshr_b32 s42, s61, 1"); A("s_lshl_b32 s42, s42, 6")
        A("s_and_b32 s43, s61, 1"); A("s_lshl_b32 s43, s43, 2"); A("s_add_u32 s42, s42, s43")
        A(f"v_add_u32 v{COL}, s42, v12")
        A(f"v_lshlrev_b32 v13, 1, v{COL}")
        A(f"global_load_ushort v{G}, v13, s[34:35]")
        A("s_lshl_b32 s42, s60, 10")
        A(f"v_add_u32 v{COL}, s42, v13")
        A(f"global_load_ushort v{XV}, v{COL}, s[16:17]")
        A(f"s_mul_i32 s42, s62, {NZ*128}"); A(f"s_add_u32 s42, s42, {WS_Z:#x}")
        A("v_add_u32 v12, s42, v6")
        self.spin_begin("L_sp_z")
        C("28 lines: the upper half of the last load is masked off and holds tagged zeros")
        for d in range(4):
            A(f"v_mov_b32 v{RD+12+d}, s{96+d}")
        for it in range(4):
            if it == 3:
                A("s_mov_b32 exec_hi, 0")
            A(f"global_load_dwordx4 v[{RD+4*it}:{RD+4*it+3}], v12, s[40:41] offset:{it*1024} sc1")
        A("s_mov_b32 exec_hi, -1")
        A("s_waitcnt vmcnt(0)")
        self.chk(13, RD, 16)
        self.chk_branch(13, "L_sp_z", 32)
        A(f"s_mul_i32 s42, s60, {64*self.mls}"); A(f"s_add_u32 s42, s42, {self.wsml:#x}")
        A(f"v_mul_u32_u24 v12, {self.mls}, v4")
        A("v_add_u32 v12, s42, v12")
        A(f"v_lshlrev_b32 v{G}, 16, v{G}")
        A(f"v_lshlrev_b32 v{XV}, 16, v{XV}")
        for it in range(1, 4):
            for d in range(4):
                A(f"v_add_f32 v{RD+d}, v{RD+d}, v{RD+4*it+d}")
        self.xl_reduce4(RD)
        self.rnd(RD, RD)
        A(f"v_add_f32 v{RD}, v{RD}, v{G}")
        self.rnd(RD, RD)
        A(f"v_mul_f32 v{RD+1}, {f32(-math.log2(math.e))}, v{RD}")
        A(f"v_exp_f32 v{RD+1}, v{RD+1}")
        A("s_nop 0")
        A(f"v_add_f32 v{RD+1}, 1.0, v{RD+1}")
        A(f"v_rcp_f32 v{RD+1}, v{RD+1}")
        A("s_nop 0")
        A(f"v_mul_f32 v{G}, v{RD}, v{RD+1}")
        self.rnd(G, G)
        self.spin_begin("L_sp_p")
        A(f"global_load_dwordx4 v[{T}:{T+3}], v12, s[40:41] sc1")
        A("s_waitcnt vmcnt(0)")
        A(f"v_xor_b32 v13, s63, v{T+1}")
        A(f"v_bitop3_b32 v13, v13, v{T+3}, s63 bitop3:0xf6")
        A("v_cmp_ne_u32 vcc, 0, v13")
        A("s_cbranch_vccz L_sp_p_done")
        self.spin_end("L_sp_p", 32)
        A("L_sp_p_done:")
        C("factor of producer p=lane: exp(M_p - M_h) / L_h, partner = lane^1")
        A(f"v_max_f32_dpp v{T+1}, v{T}, v{T} quad_perm:[1,0,3,2] row_mask:0xf bank_mask:0xf")
        A(f"v_sub_f32 v{T}, v{T}, v{T+1}")
        A(f"v_exp_f32 v{T}, v{T}")
        A("s_nop 0")
        A(f"v_mul_f32 v{T+1}, v{T}, v{T+2}")
        A("s_nop 1")
        A(f"v_add_f32_dpp v{T+1}, v{T+1}, v{T+1} quad_perm:[1,0,3,2] row_mask:0xf bank_mask:0xf")
        A(f"v_rcp_f32 v{T+1}, v{T+1}")
        C("F[p] stored at ((p&7)*8 + (p>>3)) so that lane group g = l>>3 reads its 8 factors contiguously")
        A("v_and_b32 v12, 7, v4"); A("v_lshlrev_b32 v12, 5, v12")
        A("v_lshrrev_b32 v13, 3, v4"); A("v_lshl_add_u32 v12, v13, 2, v12")
        A(f"v_mul_f32 v{T}, v{T}, v{T+1}")
        A(f"ds_write_b32 v12, v{T} offset:{FLD}")
        A("v_lshlrev_b32 v13, 5, v13")
        A("s_waitcnt lgkmcnt(0)")
        A(f"ds_read_b128 v[{F}:{F+3}], v13 offset:{FLD}")
        A(f"ds_read_b128 v[{F+4}:{F+7}], v13 offset:{FLD+16}")
        A("s_cmp_lg_u32 s62, 63")
        A("s_cbranch_scc1 L_nobump")
        C("every reader of the tag word is done by now (this wave has seen data that depends on all of them)")
        A(f"v_mov_b32 v12, {WS_EP:#x}")
        A("v_mov_b32 v13, s63")
        A("s_mov_b64 exec, 1")
        A("global_store_dword v12, v13, s[40:41] sc1")
        A("s_mov_b64 exec, -1")
        A("L_nobump:")
        A("s_waitcnt lgkmcnt(0)")
        A("L_nog:")
        self.stamp(5)
        A("s_barrier")
        self.stamp(6)
        for n in range(4):
            A(f"ds_read_b128 v[{RA+4*n}:{RA+4*n+3}], v8 offset:{OB + 64*n}")
        for n in range(4):
            A(f"s_waitcnt lgkmcnt({3-n})")
            self.slabmfma(RD, RA + 4 * n, RB + 32 * n, n == 0)
        A("s_nop 0")
        for jj in range(8):
            A(f"v_mul_f32 v{T+jj}, v{CF}, v{RD+4*jj}")
        for r in range(1, 4):
            for jj in range(8):
                A(f"v_fmac_f32 v{T+jj}, v{CF+r}, v{RD+4*jj+r}")
        for d in range(4):
            A(f"v_permlane32_swap_b32 v{T+d}, v{T+d+4}")
        for d in range(4):
            A(f"v_add_f32 v{T+d}, v{T+d}, v{T+d+4}")
        A("s_nop 0")
        for d in range(2):
            A(f"v_permlane16_swap_b32 v{T+d}, v{T+d+2}")
        for d in range(2):
            A(f"v_add_f32 v{T+d}, v{T+d}, v{T+d+2}")
        for d in range(2):
            A(f"v_and_or_b32 v{T+d}, v{T+d}, v15, v{TG+d}")
        A(f"global_store_dwordx2 v9, v[{T}:{T+1}], s[40:41] sc1")
        self.stamp(7)
        A("s_cmp_lg_u32 s58, 1")
        A("s_cbranch_scc1 L_hend")
        C("consumer: poll the 64 producers' lines in 8 groups (complete groups are not re-loaded), then reduce")
        MK = 16
        for it in range(8):
            A(f"s_mov_b64 s[{MK+2*it}:{MK+2*it+1}], -1")
        self.spin_begin("L_sp_s")
        A("s_mov_b32 s50, 0")
        for it in range(8):
            A(f"s_mov_b64 exec, s[{MK+2*it}:{MK+2*it+1}]")
            A(f"buffer_load_dwordx4 v[{RD+4*it}:{RD+4*it+3}], v7, s[8:11], s50 offen sc1")
            if it < 7:
                A("s_add_u32 s50, s50, 0x4000")
        A("s_mov_b64 exec, -1")
        A("s_waitcnt vmcnt(0)")
        for it in range(8):
            self.chk(RA + it, RD + 4 * it, 4, ST + 4 * it)
        A(f"v_or3_b32 v13, v{RA}, v{RA+1}, v{RA+2}")
        A(f"v_or3_b32 v12, v{RA+3}, v{RA+4}, v{RA+5}")
        A(f"v_or3_b32 v13, v13, v{RA+6}, v{RA+7}")
        A("v_or_b32 v13, v13, v12")
        A("v_cmp_ne_u32_sdwa vcc, v13, v10 src0_sel:BYTE_0 src1_sel:DWORD")
        A("s_cbranch_vccz L_sp_s_done")
        for it in range(8):
            A(f"v_cmp_ne_u32_sdwa s[{MK+2*it}:{MK+2*it+1}], v{RA+it}, v10 src0_sel:BYTE_0 src1_sel:DWORD")
        for it in range(8):
            A(f"s_cmp_lg_u64 s[{MK+2*it}:{MK+2*it+1}], 0")
            A(f"s_cselect_b64 s[{MK+2*it}:{MK+2*it+1}], -1, 0")
        self.spin_end("L_sp_s", 1)
        A("L_sp_s_done:")
        self.stamp(8)
        for d in range(4):
            A(f"v_mul_f32 v{RD+d}, v{F}, v{ST+d}")
        for it in range(1, 8):
            for d in range(4):
                A(f"v_fmac_f32 v{RD+d}, v{F+it}, v{ST+4*it+d}")
        self.xl_reduce4(RD)
        self.rnd(RD, RD)
        A(f"v_mul_f32 v{RD}, v{RD}, v{G}")
        self.rnd(RD, RD)
        A(f"v_add_f32 v{RD}, v{RD}, v{XV}")
        A(f"v_cvt_pk_bf16_f32 v{RD}, v{RD}, 0")
        A("s_mov_b32 s42, 0x00ff00ff"); A("s_mov_b32 s43, 0x00ff00ff")
        A("s_mov_b64 exec, s[42:43]")
        A(f"global_store_short v{COL}, v{RD}, s[36:37]")
        A("s_mov_b64 exec, -1")
        self.stamp(9)
        A("L_hend:")
        self.dump_stamps(10, 16)

def gen(**kw):
    return Gen(**kw).gen()

if __name__ == "__main__":
    out = sys.argv[1] if len(sys.argv) > 1 else "recurrent_scan__mha_block_cached__mixer_channel_mlp__decode.s"
    kw = eval("dict(" + (sys.argv[2] if len(sys.argv) > 2 else "") + ")")
    open(out, "w").write(gen(**kw))
```

```python
import sys, math, struct
NAME = "recurrent_scan__mha_block_cached__mixer_channel_mlp__decode_kernel"

def f32(x):
    return "0x%08x" % struct.unpack("<I", struct.pack("<f", x))[0]

HEADER = """; Kernarg layout for this problem (104 bytes, ptrs only, base s[0:1]):
"""

XN, QP, MLM, MLL, TAGL, FLD, OB = 0, 8192, 8448, 8512, 8704, 8960, 9216
OBS = 272
LDS_BYTES = 13824
WS_S, WS_ML, WS_EP, WS_Q, WS_U, WS_Z, WS_DIAG = 0, 0x80000, 0x90000, 0x100000, 0x180000, 0x1c0000, 0x200000
NUNIT = 112
NZ = 28
SPIN_MAX = 1 << 18
RK = 8720
WS_BAL = 0xb0000

class Gen:
    def __init__(self, kvflags="nt", wflags="", mflags="nt", qflags="nt", diag=False, DK=8, DV=8, pre=3, wdepth=2, dks=8,
                 bare=0, skip=(), pat="A", prog=False, mpar=0, cpar=0, fprio=3, qdelay=0, qsleep=1, adel=0, apar=0, touch=(), qack=1, mpar2=None, bal=0, thr=4, tlog=3, binit=0, bend=7, echo=None, hmap=0, mls=16, w2p=4, zfl='sc1', ufl='sc1'):
        self.echo = echo; self.hmap = hmap; self.mls = mls; self.wsml = WS_ML if mls <= 256 else 0x300000
        self.w2p, self.zfl, self.ufl = w2p, zfl, ufl
        self.bal, self.thr, self.tlog, self.binit, self.bend = bal, thr, tlog, binit, bend
        self.mpar2 = mpar if mpar2 is None else mpar2
        self.touch, self.qack = touch, qack
        self.adel, self.apar = adel, apar
        self.nlab = 0
        self.qdelay, self.qsleep = qdelay, qsleep
        self.L = []
        self.kvflags, self.wflags, self.mflags, self.qflags = kvflags, wflags, mflags, qflags
        self.diag, self.prog, self.bare, self.skip, self.pat = diag, prog, bare, set(skip), pat
        self.DK, self.DV, self.pre, self.wdepth, self.dks = DK, DV, pre, wdepth, dks
        self.mpar, self.cpar, self.fprio = mpar, cpar, fprio
    def A(self, s):
        self.L.append("  " + s if not s.endswith(":") else s)
    def C(self, s):
        self.L.append("  ; " + s)

    def stamp(self, idx):
        if self.diag or self.echo:
            self.A(f"s_memrealtime s[{64+2*idx}:{65+2*idx}]")
    def dump_stamps(self, n, vt):
        if not self.diag:
            return
        A = self.A
        A("s_waitcnt lgkmcnt(0)")
        A("s_lshl_b32 s60, s2, 3"); A("s_add_u32 s60, s60, s3"); A("s_lshl_b32 s60, s60, 7")
        A(f"s_add_u32 s60, s60, {WS_DIAG:#x}")
        A(f"v_mov_b32 v{vt}, s60")
        A("s_mov_b64 exec, 1")
        for j in range(n):
            A(f"v_mov_b32 v{vt+2}, s{64+2*j}"); A(f"v_mov_b32 v{vt+3}, s{65+2*j}")
            A(f"global_store_dwordx2 v{vt}, v[{vt+2}:{vt+3}], s[40:41] offset:{8*j}")
        A("s_getreg_b32 s60, hwreg(HW_REG_XCC_ID)")
        A(f"v_mov_b32 v{vt+2}, s60")
        A(f"global_store_dword v{vt}, v{vt+2}, s[40:41] offset:120")
        A("s_mov_b64 exec, -1")

    def row_allreduce(self, op, r):
        A = self.A
        for m in ("quad_perm:[1,0,3,2]", "quad_perm:[2,3,0,1]", "row_half_mirror", "row_mirror"):
            A("s_nop 1")
            A(f"v_{op}_f32_dpp v{r}, v{r}, v{r} {m} row_mask:0xf bank_mask:0xf")
    def wave_allreduce_add(self, r, t):
        A = self.A
        self.row_allreduce("add", r)
        for sw in ("v_permlane16_swap_b32", "v_permlane32_swap_b32"):
            A(f"v_mov_b32 v{t}, v{r}")
            A("s_nop 1")
            A(f"{sw} v{r}, v{t}")
            A(f"v_add_f32 v{r}, v{r}, v{t}")
    def rnd(self, d, s):
        self.A(f"v_cvt_pk_bf16_f32 v{d}, 0, v{s}")

    def layernorm(self, X, n, T, P, unpack_after=True):
        A = self.A
        s, t, q, d = T, T + 1, T + 2, T + 3
        red = (lambda r: self.wave_allreduce_add(r, t)) if n == 8 else (lambda r: self.row_allreduce("add", r))
        A(f"v_add_f32 v{s}, v{X}, v{X+1}")
        for i in range(2, n):
            A(f"v_add_f32 v{s}, v{s}, v{X+i}")
        red(s)
        A(f"v_mul_f32 v{s}, {f32(1.0/512)}, v{s}")
        A(f"v_sub_f32 v{d}, v{X}, v{s}")
        A(f"v_mul_f32 v{q}, v{d}, v{d}")
        for i in range(1, n):
            dd = d if i % 2 == 0 else t
            A(f"v_sub_f32 v{dd}, v{X+i}, v{s}")
            A(f"v_fmac_f32 v{q}, v{dd}, v{dd}")
        red(q)
        A(f"v_mul_f32 v{q}, {f32(1.0/512)}, v{q}")
        self.rnd(s, s)
        self.rnd(q, q)
        A(f"v_add_f32 v{q}, {f32(1e-5)}, v{q}")
        self.rnd(q, q)
        A(f"v_sqrt_f32 v{q}, v{q}")
        A("s_nop 0")
        self.rnd(q, q)
        A(f"v_rcp_f32 v{q}, v{q}")
        for i in range(n):
            A(f"v_sub_f32 v{X+i}, v{X+i}, v{s}")
        for i in range(n):
            self.rnd(X + i, X + i)
        for i in range(n):
            A(f"v_mul_f32 v{X+i}, v{X+i}, v{q}")
        for i in range(n // 2):
            A(f"v_cvt_pk_bf16_f32 v{P+i}, v{X+2*i}, v{X+2*i+1}")
        if unpack_after:
            self.unpack(X, P, n // 2)
    def unpack(self, X, P, n):
        for i in range(n):
            self.A(f"v_lshlrev_b32 v{X+2*i}, 16, v{P+i}")
            self.A(f"v_and_b32 v{X+2*i+1}, 0xffff0000, v{P+i}")

    def slabload(self, dst, srd, voff, stride, flags, last_inc=None, pace=None, cont=False):
        A = self.A
        for e in range(8):
            r = dst + 4 * e
            if pace is not None and (e >= pace or cont):
                A(f"s_waitcnt vmcnt({pace-1})")
            A(f"buffer_load_dwordx4 v[{r}:{r+3}], v{voff}, {srd}, s50 offen {flags}".rstrip())
            inc = stride if e < 7 else last_inc
            if inc is not None:
                A(f"s_add_u32 s50, s50, {inc}")
    def slabperm(self, dst, src):
        A = self.A
        for d in range(4):
            for hf in range(2):
                jj = 2 * d + hf
                for q in range(4):
                    A(f"v_perm_b32 v{dst + 4*jj + q}, v{src + 4*(2*q+1) + d}, v{src + 4*(2*q) + d}, s{48 + hf}")
    def slabmfma(self, RD, RA, B, first):
        A = self.A
        for jj in range(8):
            b = B + 4 * jj
            c = "0" if first else f"v[{RD+4*jj}:{RD+4*jj+3}]"
            A(f"v_mfma_f32_16x16x32_bf16 v[{RD+4*jj}:{RD+4*jj+3}], v[{RA}:{RA+3}], v[{b}:{b+3}], {c}")

    def spin_begin(self, lab):
        self.A(f"s_mov_b32 s55, {SPIN_MAX}")
        self.A(f"{lab}:")
    def spin_end(self, lab, sleep):
        A = self.A
        A(f"s_sleep {sleep}")
        A("s_sub_u32 s55, s55, 1")
        A("s_cmp_lg_u32 s55, 0")
        A(f"s_cbranch_scc1 {lab}")
    def xl_reduce4(self, R):
        A = self.A
        A("s_nop 0")
        for d in range(2):
            A(f"v_permlane32_swap_b32 v{R+d}, v{R+d+2}")
        for d in range(2):
            A(f"v_add_f32 v{R+d}, v{R+d}, v{R+d+2}")
        A("s_nop 1")
        A(f"v_permlane16_swap_b32 v{R}, v{R+1}")
        A(f"v_add_f32 v{R}, v{R}, v{R+1}")
        A("s_nop 1")
        A(f"v_add_f32_dpp v{R}, v{R}, v{R} row_ror:8 row_mask:0xf bank_mask:0xf")

    def gen(self):
        A, C = self.A, self.C
        self.L.append(HEADER.rstrip())
        self.L.append(f"; @launch grid=(256,1,1) block=(512,1,1) lds={LDS_BYTES}")
        self.L.append('.amdgcn_target "amdgcn-amd-amdhsa--gfx950"')
        self.L.append(".text"); self.L.append(f".globl {NAME}"); self.L.append(".p2align 8")
        self.L.append(f".type {NAME},@function"); self.L.append(f"{NAME}:")
        A("s_cmp_ge_u32 s2, 256")
        A("s_cbranch_scc1 L_end")
        self.stamp(0)
        A("s_load_dwordx16 s[16:31], s[0:1], 0")
        A("s_load_dwordx8 s[32:39], s[0:1], 64")
        A("s_load_dwordx2 s[40:41], s[0:1], 96")
        A("v_lshrrev_b32 v1, 6, v0")
        A("v_and_b32 v2, 15, v0")
        A("v_readfirstlane_b32 s3, v1")
        A("v_bfe_u32 v3, v0, 4, 2")
        A("v_and_b32 v4, 63, v0")
        C("decode: h = 4*(wg&7) + ((wg>>3)&3); b = (wg>>5)&3; side = wg>>7")
        if self.hmap == 0:
            A("s_and_b32 s4, s2, 7"); A("s_lshl_b32 s4, s4, 2")
            A("s_bfe_u32 s5, s2, 0x20003"); A("s_or_b32 s4, s4, s5")
            A("s_bfe_u32 s5, s2, 0x20005")
            A("s_lshr_b32 s6, s2, 7")
        else:
            A("s_lshr_b32 s4, s2, 3")
            A("s_bfe_u32 s5, s2, 0x20001")
            A("s_and_b32 s6, s2, 1")
        A("s_lshl_b32 s59, s5, 5"); A("s_or_b32 s59, s59, s4"); A("s_lshl_b32 s59, s59, 1"); A("s_or_b32 s59, s59, s6")
        C("s59 = producer index b*64 + 2h + side")
        A("s_cmp_ge_u32 s3, 4")
        A("s_cbranch_scc1 L_helper")
        self.stream()
        self.helper()
        A("L_end:")
        A("s_endpgm")
        L = self.L
        L.append('.section .rodata,"a"'); L.append(".p2align 6"); L.append(f".amdhsa_kernel {NAME}")
        L.append("  .amdhsa_next_free_vgpr 256"); L.append("  .amdhsa_next_free_sgpr 102"); L.append("  .amdhsa_accum_offset 256")
        L.append("  .amdhsa_group_segment_fixed_size 0"); L.append("  .amdhsa_kernarg_size 104")
        L.append("  .amdhsa_user_sgpr_count 2"); L.append("  .amdhsa_user_sgpr_kernarg_segment_ptr 1")
        L.append("  .amdhsa_system_sgpr_workgroup_id_x 1")
        L.append("  .amdhsa_float_denorm_mode_32 3")
        L.append(".end_amdhsa_kernel")
        return "\n".join(L) + "\n"

    def stream(self):
        A, C = self.A, self.C
        RING = 64
        P = 24
        Q = 8
        S = 40
        ACC = 48
        PLO, PHI = 12, 13
        VOFF = 5
        fl = self.kvflags
        DK, DV, pre = self.DK, self.DV, self.pre
        C("===== stream waves =====")
        A("v_lshlrev_b32 v5, 4, v2")
        if self.pat == "A":
            A("v_lshl_or_b32 v5, v3, 12, v5")
            A("v_lshl_or_b32 v5, v1, 14, v5")
        else:
            wp, tp = {"B": (12, 14), "C": (14, 12)}[self.pat]
            A("v_lshl_or_b32 v5, v3, 8, v5")
            A(f"v_lshl_or_b32 v56, v1, {wp}, v5")
            for t in range(1, 4):
                A(f"v_add_u32 v{56+t}, {t << tp:#x}, v56")
        A("s_lshl_b32 s7, s59, 19")
        A("s_mov_b32 s10, 0x80000"); A("s_mov_b32 s11, 0x20000")
        A("s_mov_b32 s14, 0x80000"); A("s_mov_b32 s15, 0x20000")
        A("s_mov_b32 s46, 0x80000"); A("s_mov_b32 s47, 0x20000")
        A("s_mov_b32 s50, 0")
        A("s_waitcnt lgkmcnt(0)")
        A("s_add_u32 s8, s18, s7"); A("s_addc_u32 s9, s19, 0")
        issued = []
        def load(slot, srd, so, tag=None):
            r = RING + 4 * slot
            if self.pat == "A":
                A(f"buffer_load_dwordx4 v[{r}:{r+3}], v{VOFF}, {srd}, {so} offen offset:{(slot % 16)*256} {fl}".rstrip())
            else:
                A(f"buffer_load_dwordx4 v[{r}:{r+3}], v{56 + (slot % 16)//4}, {srd}, {so} offen offset:{(slot % 4)*1024} {fl}".rstrip())
            issued.append(tag)
        def wait(tag):
            A(f"s_waitcnt vmcnt({len(issued) - 1 - issued.index(tag)})")
        def swait(D):
            A(f"s_waitcnt vmcnt({D-1})")
            if self.adel:
                self.nlab += 1
                A(f"s_cbranch_vccnz L_ad{self.nlab}")
                A(f"s_waitcnt vmcnt({D-1-self.adel})")
                A(f"L_ad{self.nlab}:")
        if self.bal:
            A(f"s_mov_b64 vcc, {-self.binit}")
        elif self.adel:
            A(f"s_bitcmp{1-self.apar}_b32 s2, 0")
            A("s_cselect_b64 vcc, -1, 0")
        def bal(j, vph=False):
            if not self.bal:
                return
            self.nlab += 1
            if j == 8:
                A("s_cmp_ge_i32 s54, s62" if vph else "s_cmp_lg_u32 s3, 0")
                A(f"s_cbranch_scc1 L_bl{self.nlab}")
                A("s_mov_b64 exec, 1")
                A("global_atomic_add v61, v62, v63, s[40:41] sc0 sc1")
                A("s_mov_b64 exec, -1")
                A(f"L_bl{self.nlab}:")
            elif j == 0:
                A("s_cmp_gt_i32 s54, s62" if vph else "s_cmp_lg_u32 s3, 0")
                A(f"s_cbranch_scc1 L_bl{self.nlab}")
                A("v_subrev_u32 v61, s61, v61")
                A(f"s_add_u32 s61, s61, {1 << self.tlog}")
                A("s_mov_b64 exec, 1")
                A(f"ds_write_b32 v59, v61 offset:{RK}")
                A("s_mov_b64 exec, -1")
                A(f"L_bl{self.nlab}:")
            elif j == 2:
                A(f"ds_read_b32 v58, v59 offset:{RK}")
            elif j == 4:
                A("s_waitcnt lgkmcnt(0)")
                A(f"v_cmp_le_i32 vcc, {self.thr}, v58")
        for gi in range(pre):
            for j in range(16):
                n = 16 * gi + j
                dd = self.dks
                if dd and n >= dd:
                    swait(dd)
                load(n, "s[8:11]", "s50", (gi, j))
            A("s_add_u32 s50, s50, 0x10000")
        A("s_add_u32 s12, s20, s7"); A("s_addc_u32 s13, s21, 0")
        A("s_mov_b32 s52, 0xaaaaaaaa"); A("s_mov_b32 s53, 0xaaaaaaaa")
        A("s_mov_b32 s56, 0xcccccccc"); A("s_mov_b32 s57, 0xcccccccc")
        A("v_lshlrev_b32 v7, 4, v2")
        if self.bal:
            A(f"s_lshr_b32 s61, s2, {self.tlog}"); A("s_lshl_b32 s61, s61, 7"); A(f"s_add_u32 s61, s61, {WS_BAL:#x}")
            A("v_mov_b32 v62, s61"); A("v_mov_b32 v63, 1"); A("v_mov_b32 v59, 0")
            A(f"v_mov_b32 v61, {self.thr - 1 + self.binit}")
            A("s_mov_b32 s61, 0")
            A("s_cmp_eq_u32 s3, 0"); A(f"s_cselect_b32 s62, {self.bend}, -1")
            A(f"ds_write_b32 v59, v61 offset:{RK}")
            A("s_waitcnt lgkmcnt(0)")
        self.stamp(1)
        A("s_barrier")
        A(f"ds_read_b128 v[{Q}:{Q+3}], v7 offset:{QP}")
        self.stamp(2)
        A("s_waitcnt lgkmcnt(0)")
        def qk(slots):
            for d in range(4):
                for slot in slots:
                    r = RING + 4 * slot
                    p = P + slot % 16
                    c = "0" if d == 0 else f"v{p}"
                    A(f"v_dot2_f32_bf16 v{p}, v{r+d}, v{Q+d}, {c}")
        def treduce(dst, mid=()):
            C("transposing reduction: lane (g,c) <- score of load c, key g")
            for t in range(8):
                A(f"v_add_f32_dpp v{P+t}, v{P+t}, v{P+t} row_ror:8 row_mask:0xf bank_mask:0x3")
            for t in range(8):
                A(f"v_add_f32_dpp v{P+t}, v{P+t+8}, v{P+t+8} row_ror:8 row_mask:0xf bank_mask:0xc")
            for t in range(4):
                A(f"v_add_f32_dpp v{P+t}, v{P+t}, v{P+t} row_half_mirror row_mask:0xf bank_mask:0x5")
            for t in range(4):
                A(f"v_add_f32_dpp v{P+t}, v{P+t+4}, v{P+t+4} row_half_mirror row_mask:0xf bank_mask:0xa")
            U0, U1, T0, T1 = P + 8, P + 9, P + 10, P + 11
            A(f"v_cndmask_b32 v{U0}, v{P+1}, v{P}, s[52:53]")
            A(f"v_cndmask_b32 v{U1}, v{P+3}, v{P+2}, s[52:53]")
            A(f"v_cndmask_b32 v{T0}, v{P}, v{P+1}, s[52:53]")
            A(f"v_cndmask_b32 v{T1}, v{P+2}, v{P+3}, s[52:53]")
            A("s_nop 1")
            A(f"v_add_f32_dpp v{T0}, v{U0}, v{T0} quad_perm:[1,0,3,2] row_mask:0xf bank_mask:0xf")
            A(f"v_add_f32_dpp v{T1}, v{U1}, v{T1} quad_perm:[1,0,3,2] row_mask:0xf bank_mask:0xf")
            A(f"v_cndmask_b32 v{U0}, v{T1}, v{T0}, s[56:57]")
            A(f"v_cndmask_b32 v{U1}, v{T0}, v{T1}, s[56:57]")
            if mid:
                for m in mid:
                    A(m)
            else:
                A("s_nop 1")
            A(f"v_add_f32_dpp v{dst}, v{U0}, v{U1} quad_perm:[2,3,0,1] row_mask:0xf bank_mask:0xf")
        C("catch-up over the prefetched groups; group `pre` is loaded into ring slots 0..15 meanwhile")
        nxt = 0
        for gi in range(pre):
            for j in range(0, 16, 2):
                wait((gi, j + 1))
                qk([16 * gi + j, 16 * gi + j + 1])
                if gi == 0:
                    want = j + 2 if (j < 8 or pre == 1) else 8
                elif gi == 1:
                    want = 8 + j // 2 + 1
                else:
                    want = 16
                while nxt < want:
                    load(nxt, "s[8:11]", "s50", (pre, nxt)); nxt += 1
            A("s_nop 0")
            treduce(S + 8 - pre + gi)
        assert nxt == 16
        for j in range(16 - DK):
            wait((pre, j))
            qk([j])
        A(f"s_mov_b32 s54, {pre}")
        A("s_branch L_kmid")
        A("L_kloop:")
        for j in range(16 - DK):
            swait(DK)
            load(j + DK, "s[8:11]", "s50")
            qk([j])
            if j < 8:
                bal(j)
        A("L_kmid:")
        if self.prog:
            A("s_memrealtime s[90:91]")
        C("the rest refills from the next group (V group 0 after the last K group)")
        A("s_add_u32 s50, s50, 0x10000")
        A("s_cmp_eq_u32 s54, 7")
        A("s_cselect_b32 s44, s12, s8"); A("s_cselect_b32 s45, s13, s9"); A("s_cselect_b32 s51, 0, s50")
        for j in range(16 - DK, 16):
            swait(DK)
            load(j + DK - 16, "s[44:47]", "s51")
            qk([j])
            if j == 16 - DK:
                bal(8)
        if self.prog:
            A("s_waitcnt lgkmcnt(0)")
            A("s_mov_b32 m0, s54"); A("s_nop 0")
            A("v_writelane_b32 v60, s90, m0")
        for i in range(7):
            A(f"v_mov_b32 v{S+i}, v{S+i+1}")
        treduce(S + 7, ("s_add_u32 s54, s54, 1", "s_cmp_lt_u32 s54, 8"))
        A("s_cbranch_scc1 L_kloop")
        self.stamp(3)
        A("s_mov_b32 s50, 0")
        for j in range(DK, DV):
            load(j, "s[12:15]", "s50")
        C("softmax over this row's 128 keys (true max of the partial; partials are merged exactly later)")
        M, Ls = 14, 15
        cs = math.log2(math.e) / math.sqrt(128.0)
        A(f"s_mov_b32 s58, {f32(cs)}")
        A(f"v_max3_f32 v{M}, v{S}, v{S+1}, v{S+2}")
        A(f"v_max3_f32 v{M}, v{M}, v{S+3}, v{S+4}")
        A(f"v_max3_f32 v{M}, v{M}, v{S+5}, v{S+6}")
        A(f"v_max_f32 v{M}, v{M}, v{S+7}")
        self.row_allreduce("max", M)
        A(f"v_mul_f32 v{M}, s58, v{M}")
        for i in range(8):
            A(f"v_fma_f32 v{S+i}, v{S+i}, s58, -v{M}")
        for i in range(8):
            A(f"v_exp_f32 v{S+i}, v{S+i}")
        for i in range(8):
            A(f"v_mov_b32 v{ACC+i}, 0")
        A(f"v_add_f32 v{Ls}, v{S}, v{S+1}")
        for i in range(2, 8):
            A(f"v_add_f32 v{Ls}, v{Ls}, v{S+i}")
        self.row_allreduce("add", Ls)
        A(f"v_lshrrev_b32 v7, 4, v0")
        A(f"v_lshlrev_b32 v16, 2, v7")
        A(f"v_min_u32 v{M}, -2, v{M}")
        A(f"v_min_u32 v{Ls}, -2, v{Ls}")
        A(f"ds_write_b32 v16, v{M} offset:{MLM}")
        A(f"ds_write_b32 v16, v{Ls} offset:{MLL}")
        A(f"v_mul_u32_u24 v17, {OBS}, v7")
        A("v_lshl_add_u32 v17, v2, 4, v17")
        A("s_mov_b32 s54, 0")
        assert DV >= DK
        def pv(slot):
            r = RING + 4 * slot
            for d in range(4):
                A(f"v_dot2c_f32_bf16_dpp v{ACC+2*d}, v{PLO}, v{r+d} row_newbcast:{slot} row_mask:0xf bank_mask:0xf")
                A(f"v_dot2c_f32_bf16_dpp v{ACC+2*d+1}, v{PHI}, v{r+d} row_newbcast:{slot} row_mask:0xf bank_mask:0xf")
        A("L_vloop:")
        A(f"v_cvt_pk_bf16_f32 v{PLO}, v{S}, 0")
        A(f"v_cvt_pk_bf16_f32 v{PHI}, 0, v{S}")
        for i in range(7):
            A(f"v_mov_b32 v{S+i}, v{S+i+1}")
        for j in range(16):
            if j == 16 - DV and self.prog:
                A("s_memrealtime s[90:91]")
            if j == 16 - DV:
                A("s_add_u32 s50, s50, 0x10000")
            swait(DV)
            load((j + DV) % 16, "s[12:15]", "s50")
            pv(j)
            bal(j, True)
        if self.prog:
            A("s_waitcnt lgkmcnt(0)")
            A("s_add_u32 m0, s54, 8"); A("s_nop 0")
            A("v_writelane_b32 v60, s90, m0")
        A("s_add_u32 s54, s54, 1")
        A("s_cmp_lt_u32 s54, 8")
        A("s_cbranch_scc1 L_vloop")
        self.stamp(4)
        A("s_nop 1")
        for d in range(4):
            A(f"v_cvt_pk_bf16_f32 v{20+d}, v{ACC+2*d}, v{ACC+2*d+1}")
        A(f"ds_write_b128 v17, v[20:23] offset:{OB}")
        A("s_waitcnt lgkmcnt(0)")
        A("s_barrier")
        self.dump_stamps(5, 24)
        if self.prog:
            A("s_lshl_b32 s60, s2, 2"); A("s_add_u32 s60, s60, s3"); A("s_lshl_b32 s60, s60, 6")
            A(f"s_add_u32 s60, s60, {WS_DIAG + 0x80000:#x}")
            A("v_lshlrev_b32 v24, 2, v4")
            A("v_add_u32 v24, s60, v24")
            A("s_mov_b64 exec, 0xffff")
            A("global_store_dword v24, v60, s[40:41]")
        A("s_endpgm")

    TB = 100
    def tag4(self, R, n=4):
        for i in range(n):
            self.A(f"v_and_or_b32 v{R+i}, v{R+i}, v15, s{96 + i % 4}")
    def chk(self, acc, R, n, D=None):
        D = R if D is None else D
        for i in range(n):
            self.A(f"v_xor_b32 v{D+i}, s{96 + i % 4}, v{R+i}")
        self.A(f"v_or3_b32 v{acc}, v{D}, v{D+1}, v{D+2}")
        i = 3
        while i < n:
            if i + 1 < n:
                self.A(f"v_or3_b32 v{acc}, v{acc}, v{D+i}, v{D+i+1}"); i += 2
            else:
                self.A(f"v_or_b32 v{acc}, v{acc}, v{D+i}"); i += 1
    def chk_branch(self, acc, lab, sleep):
        A = self.A
        A(f"v_cmp_ne_u32_sdwa vcc, v{acc}, v10 src0_sel:BYTE_0 src1_sel:DWORD")
        A(f"s_cbranch_vccz {lab}_done")
        self.spin_end(lab, sleep)
        A(f"{lab}_done:")

    def set_tag(self):
        for k in range(4):
            self.A(f"s_bfe_u32 s{96+k}, s63, {0x80000 + 8*k:#x}")

    def helper(self):
        A, C = self.A, self.C
        wf, mf = self.wflags, self.mflags
        RA, RD = 16, 32
        RB = 64
        ST = 192
        T = 224
        A("L_helper:")
        C("===== helper waves =====")
        A("s_sub_u32 s7, s3, 4")
        if self.touch:
            C("helper 2 touches one word of every buffer this CU uses later (address translation warm-up)")
            A("s_cmp_lg_u32 s7, 2")
            A("s_cbranch_scc1 L_notouch")
            A("s_lshl_b32 s42, s59, 19"); A("v_mov_b32 v16, s42")
            A("s_lshl_b32 s42, s4, 17"); A("v_mov_b32 v17, s42")
            A("s_lshl_b32 s42, s2, 7"); A("s_add_u32 s42, s42, 0xa0000"); A("v_mov_b32 v18, s42")
            A("s_lshr_b32 s42, s2, 3"); A("s_min_u32 s42, s42, 27"); A("s_lshl_b32 s42, s42, 16"); A("v_mov_b32 v19, s42")
            A("v_mov_b32 v20, 0")
            A("s_mov_b64 exec, 1")
            A("s_waitcnt lgkmcnt(0)")
            tt = {"v": (16, 20), "wo": (17, 24), "ws": (18, 40), "w2": (19, 32), "b1": (20, 30), "b2": (20, 34), "out": (20, 36)}
            for i, k in enumerate(self.touch):
                A(f"global_load_dword v{24+i}, v{tt[k][0]}, s[{tt[k][1]}:{tt[k][1]+1}] nt")
            A("s_mov_b64 exec, -1")
            A("L_notouch:")
        if self.bal:
            C("the first WG of a team clears the team's progress counter (used for pacing only)")
            A(f"s_and_b32 s42, s2, {(1 << self.tlog) - 1}"); A("s_lshl_b32 s42, s42, 2"); A("s_or_b32 s42, s42, s7")
            A("s_cmp_lg_u32 s42, 2")
            A("s_cbranch_scc1 L_nobal")
            A(f"s_lshr_b32 s42, s2, {self.tlog}"); A("s_lshl_b32 s42, s42, 7"); A(f"s_add_u32 s42, s42, {WS_BAL:#x}")
            A("v_mov_b32 v16, s42"); A("v_mov_b32 v17, 0")
            A("s_mov_b64 exec, 1")
            A("s_waitcnt lgkmcnt(0)")
            A("global_store_dword v16, v17, s[40:41] sc1")
            A("s_mov_b64 exec, -1")
            A("L_nobal:")
        if self.bare == 1:
            A("s_waitcnt lgkmcnt(0)")
            A("s_barrier"); A("s_barrier"); A("s_branch L_hend")
        A("s_mov_b32 s48, 0x05040100"); A("s_mov_b32 s49, 0x07060302")
        A("v_lshlrev_b32 v6, 4, v4")
        A("v_mov_b32 v10, 0")
        A("v_mov_b32 v15, 0xffffff00")
        A("s_mov_b32 s11, 0x20000"); A("s_mov_b32 s15, 0x20000")
        C("s62 = MLP unit of this WG (>= NUNIT: none)")
        A("s_lshr_b32 s62, s2, 1")
        A("s_and_b32 s42, s2, 1"); A(f"s_cmp_eq_u32 s42, {self.mpar}")
        A("s_cselect_b32 s62, s62, 255")
        A("s_cmp_ge_u32 s7, 2")
        A("s_cbranch_scc1 L_nofront")
        A("s_cmp_eq_u32 s7, 0")
        A("s_cbranch_scc1 L_front")
        A(f"s_cmp_ge_u32 s62, {NUNIT}")
        A("s_cbranch_scc1 L_nofront")
        if "s1" in self.skip:
            A("s_branch L_nofront")
        A("L_front:")
        C("front units, 64 rows x 128 cols for all 4 batch rows. helper 0: wq rows 64(wg>>5).., cols 128h..")
        C("helper 1: w1 rows 64(u&7).., cols 128(u>>3)..")
        A(f"s_setprio {self.fprio}")
        A("s_lshr_b32 s42, s2, 5" if self.hmap == 0 else "s_and_b32 s42, s2, 7"); A("s_and_b32 s43, s62, 7")
        A("s_lshr_b32 s44, s62, 3")
        A("s_mov_b32 s51, 3584")
        A("s_cmp_eq_u32 s7, 0")
        A("s_cselect_b32 s53, s42, s43")
        A("s_cselect_b32 s44, s4, s44")
        A("s_cselect_b32 s51, 8192, s51")
        A("s_lshl_b32 s10, s51, 9")
        A("s_mul_i32 s52, s51, 25")
        A("s_mul_i32 s50, s53, s51"); A("s_lshl_b32 s50, s50, 6"); A("s_lshl_b32 s44, s44, 8"); A("s_add_u32 s50, s50, s44")
        A("s_lshl_b32 s42, s51, 3")
        A("v_mul_u32_u24 v5, s42, v3")
        A("v_lshl_add_u32 v5, v2, 4, v5")
        A("v_lshlrev_b32 v12, 10, v3")
        A("v_lshl_add_u32 v12, v2, 4, v12")
        A("s_cmp_eq_u32 s7, 0")
        A("s_waitcnt lgkmcnt(0)")
        for t in range(4):
            A(f"global_load_dwordx4 v[{RB+32+4*t}:{RB+35+4*t}], v12, s[16:17] offset:{256*t}")
        C("the word the previous launch left only serves to pick a tag that differs from that launch's")
        A(f"s_load_dword s63, s[40:41], {WS_EP:#x}")
        A("s_cselect_b32 s8, s22, s28"); A("s_cselect_b32 s9, s23, s29")
        if "fld" in self.skip:
            A("s_mov_b32 s10, 0")
        self.slabload(RB + 96, "s[8:11]", 5, "s51", mf, last_inc="s52")
        self.slabload(ST, "s[8:11]", 5, "s51", mf)
        A("s_lshl_b32 s42, s7, 12")
        A("v_add_u32 v12, s42, v12")
        C("A operand: rows[i>>2][64*blk + 32n + 8kk]")
        A("v_lshrrev_b32 v13, 2, v2")
        A("v_lshlrev_b32 v13, 10, v13")
        A("v_lshl_add_u32 v13, v3, 4, v13")
        A("s_lshl_b32 s43, s53, 7"); A("s_add_u32 s42, s42, s43")
        A("v_add_u32 v13, s42, v13")
        A("s_mov_b32 s54, s7")
        A("s_waitcnt vmcnt(16)")
        self.stamp(1)
        A("L_ln:")
        self.unpack(RB, RB + 32, 16)
        self.layernorm(RB, 32, T, RB + 32, unpack_after=False)
        A("s_sub_u32 s54, s54, 1")
        A("s_cbranch_scc0 L_ln")
        for t in range(4):
            A(f"ds_write_b128 v12, v[{RB+32+4*t}:{RB+35+4*t}] offset:{XN + 256*t}")
        A("s_waitcnt vmcnt(8)")
        self.slabperm(RB + 64, RB + 96)
        A("s_waitcnt lgkmcnt(0)")
        A(f"ds_read_b128 v[{RA}:{RA+3}], v13 offset:{XN}")
        A(f"ds_read_b128 v[{RA+4}:{RA+7}], v13 offset:{XN+64}")
        A("s_add_u32 s63, s63, 0x61c88647")
        self.set_tag()
        A("s_waitcnt vmcnt(0)")
        self.slabperm(RB + 96, ST)
        A("s_waitcnt lgkmcnt(0)")
        self.slabmfma(RD, RA, RB + 64, True)
        self.slabmfma(RD, RA + 4, RB + 96, False)
        A("s_cmp_eq_u32 s7, 0")
        A("s_cbranch_scc1 L_qaddr")
        C("U[u][sub=c>>2][half][b=kk][c&3][4]")
        A("s_lshl_b32 s42, s62, 11"); A(f"s_add_u32 s42, s42, {WS_U:#x}")
        A("v_lshrrev_b32 v12, 2, v2"); A("v_lshlrev_b32 v12, 9, v12")
        A("v_lshl_add_u32 v12, v3, 6, v12")
        A("v_and_b32 v13, 3, v2"); A("v_lshl_add_u32 v12, v13, 4, v12")
        A("s_branch L_fst")
        A("L_qaddr:")
        C("Q[h][b=kk][s][half][c][4]")
        A("s_lshl_b32 s42, s4, 14"); A("s_lshl_b32 s43, s53, 9"); A("s_add_u32 s42, s42, s43")
        A(f"s_add_u32 s42, s42, {WS_Q:#x}")
        A("v_lshlrev_b32 v12, 12, v3")
        A("v_lshl_add_u32 v12, v2, 4, v12")
        A("L_fst:")
        A("v_add_u32 v12, s42, v12")
        for jj in range(8):
            A(f"v_and_or_b32 v{T+jj}, v{RD+4*jj}, v15, s{96 + jj % 4}")
        if "fst" not in self.skip:
            A(f"global_store_dwordx4 v12, v[{T}:{T+3}], s[40:41] sc1")
            A(f"global_store_dwordx4 v12, v[{T+4}:{T+7}], s[40:41] offset:256 sc1")
        self.stamp(2)
        A("s_cmp_lg_u32 s7, 0")
        A("s_cbranch_scc1 L_fdone")
        C("helper 0: gather the 8 partials of q[b][h], LDS init")
        A("s_lshl_b32 s42, s4, 14"); A("s_lshl_b32 s43, s5, 12"); A("s_add_u32 s42, s42, s43")
        A(f"s_add_u32 s42, s42, {WS_Q:#x}")
        A("v_add_u32 v12, s42, v6")
        A("v_lshlrev_b32 v8, 2, v4")
        A("v_mov_b32 v9, -1")
        A(f"ds_write_b32 v8, v9 offset:{MLM}")
        A("v_mov_b32 v9, s63")
        A(f"ds_write_b32 v10, v9 offset:{TAGL}")
        A("v_bfe_u32 v9, v4, 4, 1")
        A("v_lshlrev_b32 v9, 3, v9")
        A("v_lshl_add_u32 v9, v2, 4, v9")
        if "qpoll" in self.skip:
            A("s_branch L_sp_q_done")
        if self.qack:
            A("s_waitcnt vmcnt(0)")
        if self.qdelay:
            A(f"s_sleep {self.qdelay}")
        self.spin_begin("L_sp_q")
        for t in range(4):
            A(f"global_load_dwordx4 v[{RD+4*t}:{RD+4*t+3}], v12, s[40:41] offset:{1024*t} sc1")
        A("s_waitcnt vmcnt(0)")
        self.chk(13, RD, 16)
        self.chk_branch(13, "L_sp_q", self.qsleep)
        for d in range(4):
            A(f"v_add_f32 v{RD+d}, v{RD+d}, v{RD+4+d}")
            A(f"v_add_f32 v{RD+8+d}, v{RD+8+d}, v{RD+12+d}")
        for d in range(4):
            A(f"v_add_f32 v{RD+d}, v{RD+d}, v{RD+8+d}")
        for d in range(4):
            A(f"v_mov_b32 v{RD+4+d}, v{RD+d}")
        A("s_nop 1")
        for d in range(4):
            A(f"v_permlane32_swap_b32 v{RD+d}, v{RD+4+d}")
        for d in range(4):
            A(f"v_add_f32 v{RD+d}, v{RD+d}, v{RD+4+d}")
        for d in range(2):
            A(f"v_cvt_pk_bf16_f32 v{RD+d}, v{RD+2*d}, v{RD+2*d+1}")
        A(f"ds_write_b64 v9, v[{RD}:{RD+1}] offset:{QP}")
        A("L_fdone:")
        A("s_setprio 0")
        A("L_nofront:")
        A("s_waitcnt lgkmcnt(0)")
        self.stamp(3)
        A("s_barrier")
        self.stamp(10)
        if self.bare == 2:
            A("s_barrier"); A("s_branch L_hend")
        A(f"ds_read_b32 v13, v10 offset:{TAGL}")
        C("----- wo block: rows 128h.., cols 128j.. (paced; helper 2 keeps one more load in flight) -----")
        A("v_lshlrev_b32 v5, 4, v2")
        A("v_lshl_or_b32 v5, v3, 13, v5")
        A("s_lshl_b32 s50, s4, 17"); A("s_lshl_b32 s43, s7, 8"); A("s_add_u32 s50, s50, s43")
        A("s_mov_b32 s8, s24"); A("s_mov_b32 s9, s25"); A("s_mov_b32 s10, 0x400000")
        A("s_waitcnt lgkmcnt(0)")
        A("v_readfirstlane_b32 s63, v13")
        self.set_tag()
        A("s_cmp_eq_u32 s7, 2")
        A("s_cselect_b64 vcc, -1, 0")
        def wo_round(n):
            wd = self.wdepth
            for e in range(8):
                r = ST + 4 * e
                if e >= wd:
                    A(f"s_waitcnt vmcnt({wd})")
                    A(f"s_cbranch_vccnz L_wo{n}_{e}")
                    A(f"s_waitcnt vmcnt({wd-1})")
                    A(f"L_wo{n}_{e}:")
                A(f"buffer_load_dwordx4 v[{r}:{r+3}], v5, s[8:11], s50 offen {wf}".rstrip())
                A(f"s_add_u32 s50, s50, {1024 if e < 7 else 25*1024}")
            A("s_waitcnt vmcnt(0)")
            self.slabperm(RB + 32 * n, ST)
        wo_round(0)
        A("s_cmp_lg_u32 s7, 1")
        A("s_cbranch_scc1 L_not1")
        if self.mpar2 != self.mpar:
            A("s_lshr_b32 s62, s2, 1")
            A("s_and_b32 s42, s2, 1"); A(f"s_cmp_eq_u32 s42, {self.mpar2}")
            A("s_cselect_b32 s62, s62, 255")
        A(f"s_cmp_ge_u32 s62, {NUNIT}")
        A("s_cbranch_scc1 L_not1")
        if "s2" in self.skip:
            A("s_branch L_not1")
        C("stage 2 unit: r = u>>2 (hidden rows 64r..), cq = u&3 (cols 128cq..)")
        A("s_mov_b32 s51, s50")
        A("s_lshr_b32 s60, s62, 2"); A("s_and_b32 s61, s62, 3")
        A("s_lshl_b32 s50, s60, 16"); A("s_lshl_b32 s43, s61, 8"); A("s_add_u32 s50, s50, s43")
        A("s_mov_b32 s12, s32"); A("s_mov_b32 s13, s33"); A(f"s_mov_b32 s14, {1792*1024}")
        if "w2ld" in self.skip:
            A("s_mov_b32 s14, 0")
        self.slabload(ST, "s[12:15]", 5, 1024, mf, last_inc=25 * 1024, pace=self.w2p)
        self.slabload(RD, "s[12:15]", 5, 1024, mf, pace=self.w2p, cont=True)
        A("s_lshl_b32 s43, s60, 7")
        A("v_lshlrev_b32 v13, 4, v3")
        A("v_add_u32 v13, s43, v13")
        A(f"global_load_dwordx4 v[{T+16}:{T+19}], v13, s[30:31]")
        A(f"global_load_dwordx4 v[{T+20}:{T+23}], v13, s[30:31] offset:64")
        A("s_mov_b32 s50, s51")
        C("U[m*8 + 4t + (c&3)][2(r&1) + n][half][b=c>>2][kk][4]")
        A("v_and_b32 v12, 3, v2"); A("v_lshlrev_b32 v12, 11, v12")
        A("v_lshrrev_b32 v13, 2, v2"); A("v_lshl_add_u32 v12, v13, 6, v12")
        A("v_lshl_add_u32 v12, v3, 4, v12")
        A("s_lshr_b32 s42, s60, 1"); A("s_lshl_b32 s42, s42, 14")
        A("s_and_b32 s43, s60, 1"); A("s_lshl_b32 s43, s43, 10"); A("s_add_u32 s42, s42, s43")
        A(f"s_add_u32 s42, s42, {WS_U:#x}")
        A(f"v_add_u32 v{T}, s42, v12")
        A(f"v_add_u32 v{T+1}, 0x2000, v{T}")
        UU, W, BB = RB + 64, RB + 80, RB + 112
        if "upoll" in self.skip:
            A("s_waitcnt vmcnt(0)")
            A("s_branch L_sp_u_done")
        self.spin_begin("L_sp_u")
        for t in range(2):
            for q in range(4):
                A(f"global_load_dwordx4 v[{UU+16*t+4*q}:{UU+16*t+4*q+3}], v{T+t}, s[40:41] offset:{256*q} {self.ufl}")
        A("s_waitcnt vmcnt(0)")
        self.chk(13, UU, 32)
        self.chk_branch(13, "L_sp_u", 32)
        self.unpack(BB, T + 16, 8)
        for i in range(16):
            A(f"v_add_f32 v{UU+i}, v{UU+i}, v{UU+16+i}")
        for m in ("quad_perm:[1,0,3,2]", "quad_perm:[2,3,0,1]"):
            for i in range(16):
                A(f"v_add_f32_dpp v{UU+i}, v{UU+i}, v{UU+i} {m} row_mask:0xf bank_mask:0xf")
        for i in range(16):
            self.rnd(UU + i, UU + i)
        for i in range(16):
            A(f"v_add_f32 v{UU+i}, v{UU+i}, v{BB+i}")
        for i in range(16):
            self.rnd(UU + i, UU + i)
        C("gelu(tanh form) = u / (1 + exp(-2k(u + 0.044715 u^3)))")
        k2 = -2.0 * math.sqrt(2.0 / math.pi) * math.log2(math.e)
        A(f"s_mov_b32 s42, {f32(0.044715 * k2)}"); A(f"s_mov_b32 s43, {f32(k2)}")
        A("v_mov_b32 v12, s43")
        for i in range(16):
            A(f"v_mul_f32 v{W+i}, v{UU+i}, v{UU+i}")
        for i in range(16):
            A(f"v_fma_f32 v{W+i}, v{W+i}, s42, v12")
        for i in range(16):
            A(f"v_mul_f32 v{W+i}, v{W+i}, v{UU+i}")
        for i in range(16):
            A(f"v_exp_f32 v{W+i}, v{W+i}")
        for i in range(16):
            A(f"v_add_f32 v{W+i}, 1.0, v{W+i}")
        for i in range(16):
            A(f"v_rcp_f32 v{W+i}, v{W+i}")
        for i in range(16):
            A(f"v_mul_f32 v{UU+i}, v{UU+i}, v{W+i}")
        for d in range(8):
            A(f"v_cvt_pk_bf16_f32 v{RA+d}, v{UU+2*d}, v{UU+2*d+1}")
        self.slabperm(RB + 64, ST)
        self.slabperm(RB + 96, RD)
        self.slabmfma(RD, RA, RB + 64, True)
        self.slabmfma(RD, RA + 4, RB + 96, False)
        C("Z[b=kk][line 4cq + 2(c>>3) + half][r][(c&7)*4..]")
        A(f"v_mul_u32_u24 v12, {16*NZ*128}, v3")
        A("v_lshrrev_b32 v13, 3, v2")
        A(f"v_mul_u32_u24 v13, {2*NZ*128}, v13")
        A("v_add_u32 v12, v12, v13")
        A("v_and_b32 v13, 7, v2")
        A("v_lshl_add_u32 v12, v13, 4, v12")
        A(f"s_mul_i32 s42, s61, {4*NZ*128}"); A("s_lshl_b32 s43, s60, 7"); A("s_add_u32 s42, s42, s43")
        A(f"s_add_u32 s42, s42, {WS_Z:#x}")
        A("v_add_u32 v12, s42, v12")
        for jj in range(8):
            A(f"v_and_or_b32 v{T+jj}, v{RD+4*jj}, v15, s{96 + jj % 4}")
        if "zst" not in self.skip:
            A(f"global_store_dwordx4 v12, v[{T}:{T+3}], s[40:41] {self.zfl}")
            A(f"global_store_dwordx4 v12, v[{T+4}:{T+7}], s[40:41] offset:{NZ*128} {self.zfl}")
        A("s_mov_b64 vcc, 0")
        A("L_not1:")
        wo_round(1); wo_round(2); wo_round(3)
        self.stamp(4)
        if self.bare == 3:
            A("s_barrier"); A("s_branch L_hend")
        C("wait for the 16 (m,l) partials of this WG's stream waves")
        A("v_lshlrev_b32 v12, 2, v2")
        self.spin_begin("L_sp_m")
        A(f"ds_read_b32 v14, v12 offset:{MLM}")
        A(f"ds_read_b32 v11, v12 offset:{MLL}")
        A("s_waitcnt lgkmcnt(0)")
        A("v_max_u32 v13, v14, v11")
        A("v_cmp_eq_u32 vcc, -1, v13")
        A("s_cbranch_vccz L_sp_m_done")
        self.spin_end("L_sp_m", 4)
        A("L_sp_m_done:")
        CF = T + 28
        A("v_lshlrev_b32 v13, 4, v3")
        A(f"ds_read_b128 v[{CF}:{CF+3}], v13 offset:{MLM}")
        A(f"v_mov_b32 v{T}, v14")
        self.row_allreduce("max", T)
        A(f"v_sub_f32 v14, v14, v{T}")
        A("v_exp_f32 v14, v14")
        A("s_waitcnt lgkmcnt(0)")
        for r in range(4):
            A(f"v_sub_f32 v{CF+r}, v{CF+r}, v{T}")
        A(f"v_mul_f32 v{T+2}, v14, v11")
        for r in range(4):
            A(f"v_exp_f32 v{CF+r}, v{CF+r}")
        A("s_cmp_lg_u32 s7, 2")
        A("s_cbranch_scc1 L_nopub")
        C("helper 2 publishes {M, tag, L, tag} of this WG")
        self.row_allreduce("add", T + 2)
        A(f"v_mov_b32 v{T+1}, s63"); A(f"v_mov_b32 v{T+3}, s63")
        A(f"s_mul_i32 s42, s59, {self.mls}"); A(f"s_add_u32 s42, s42, {self.wsml:#x}")
        A("v_mov_b32 v12, s42")
        A("s_mov_b64 exec, 1")
        if "ml" not in self.skip:
            A(f"global_store_dwordx4 v12, v[{T}:{T+3}], s[40:41] sc1")
        A("s_mov_b64 exec, -1")
        A("L_nopub:")
        G, XV, COL, F = T + 24, T + 25, T + 26, T + 8
        TG = T + 22
        C("addresses for the tail")
        A(f"v_mul_u32_u24 v8, {OBS}, v2")
        A("v_lshl_add_u32 v8, v3, 4, v8")
        C("S row + j*512 + (c>>3)*256 + (kk>>1)*128 + (c&7)*16 + (kk&1)*8")
        A("s_lshl_b32 s42, s7, 9"); A("s_lshl_b32 s43, s59, 11"); A("s_add_u32 s42, s42, s43")
        A("v_lshrrev_b32 v9, 3, v2"); A("v_lshlrev_b32 v9, 8, v9")
        A("v_lshrrev_b32 v13, 1, v3"); A("v_lshl_add_u32 v9, v13, 7, v9")
        A("v_and_b32 v13, 7, v2"); A("v_lshl_add_u32 v9, v13, 4, v9")
        A("v_and_b32 v13, 1, v3"); A("v_lshl_add_u32 v9, v13, 3, v9")
        A("v_add_u32 v9, s42, v9")
        A("v_lshlrev_b32 v13, 4, v13")
        A(f"v_lshrrev_b32 v{TG}, v13, s63")
        A(f"v_bfe_u32 v{TG+1}, v{TG}, 8, 8")
        A(f"v_and_b32 v{TG}, 0xff, v{TG}")
        A(f"v_mov_b32 v{COL}, 0")
        A("v_mov_b32 v7, 0")
        A("s_mov_b32 s8, s40"); A("s_mov_b32 s9, s41"); A("s_mov_b32 s10, 0x80000")
        C("s58 = 1 on consumer waves: helper 3 of WGs >= 128 of one parity")
        A(f"s_and_b32 s42, s2, 0x81"); A("s_lshl_b32 s43, s7, 1"); A("s_or_b32 s42, s42, s43")
        A(f"s_cmp_eq_u32 s42, {0x86 | self.cpar:#x}")
        A("s_cselect_b32 s58, 1, 0")
        A("s_cbranch_scc0 L_nog")
        if "cons" in self.skip:
            A("s_mov_b32 s58, 0")
            A("s_branch L_nog")
        C("consumer: batch bc, line cb: gate and merge factors")
        A("s_bfe_u32 s62, s2, 0x60001")
        A("s_lshr_b32 s60, s62, 4"); A("s_and_b32 s61, s62, 15")
        A("v_and_b32 v12, 7, v4")
        C("S poll address: S[bc][(l>>3) + 8it][line cb] + (l&7)*16")
        A("s_lshl_b32 s42, s60, 17"); A("s_lshl_b32 s43, s61, 7"); A("s_add_u32 s42, s42, s43")
        A("v_lshrrev_b32 v13, 3, v4"); A("v_lshlrev_b32 v13, 11, v13")
        A("v_lshl_add_u32 v7, v12, 4, v13")
        A("v_add_u32 v7, s42, v7")
        C("column = 64(cb>>1) + 4(cb&1) + 8(l&7) + 2(l>>5) + ((l>>4)&1)")
        A("v_lshlrev_b32 v12, 3, v12")
        A("v_lshrrev_b32 v13, 5, v4"); A("v_lshl_add_u32 v12, v13, 1, v12")
        A("v_bfe_u32 v13, v4, 4, 1"); A("v_add_u32 v12, v12, v13")
        A("s_lshr_b32 s42, s61, 1"); A("s_lshl_b32 s42, s42, 6")
        A("s_and_b32 s43, s61, 1"); A("s_lshl_b32 s43, s43, 2"); A("s_add_u32 s42, s42, s43")
        A(f"v_add_u32 v{COL}, s42, v12")
        A(f"v_lshlrev_b32 v13, 1, v{COL}")
        A(f"global_load_ushort v{G}, v13, s[34:35]")
        A("s_lshl_b32 s42, s60, 10")
        A(f"v_add_u32 v{COL}, s42, v13")
        A(f"global_load_ushort v{XV}, v{COL}, s[16:17]")
        A(f"s_mul_i32 s42, s62, {NZ*128}"); A(f"s_add_u32 s42, s42, {WS_Z:#x}")
        A("v_add_u32 v12, s42, v6")
        self.spin_begin("L_sp_z")
        C("28 lines: the upper half of the last load is masked off and holds tagged zeros")
        for d in range(4):
            A(f"v_mov_b32 v{RD+12+d}, s{96+d}")
        for it in range(4):
            if it == 3:
                A("s_mov_b32 exec_hi, 0")
            A(f"global_load_dwordx4 v[{RD+4*it}:{RD+4*it+3}], v12, s[40:41] offset:{it*1024} sc1")
        A("s_mov_b32 exec_hi, -1")
        A("s_waitcnt vmcnt(0)")
        self.chk(13, RD, 16)
        self.chk_branch(13, "L_sp_z", 32)
        A(f"s_mul_i32 s42, s60, {64*self.mls}"); A(f"s_add_u32 s42, s42, {self.wsml:#x}")
        A(f"v_mul_u32_u24 v12, {self.mls}, v4")
        A("v_add_u32 v12, s42, v12")
        A(f"v_lshlrev_b32 v{G}, 16, v{G}")
        A(f"v_lshlrev_b32 v{XV}, 16, v{XV}")
        for it in range(1, 4):
            for d in range(4):
                A(f"v_add_f32 v{RD+d}, v{RD+d}, v{RD+4*it+d}")
        self.xl_reduce4(RD)
        self.rnd(RD, RD)
        A(f"v_add_f32 v{RD}, v{RD}, v{G}")
        self.rnd(RD, RD)
        A(f"v_mul_f32 v{RD+1}, {f32(-math.log2(math.e))}, v{RD}")
        A(f"v_exp_f32 v{RD+1}, v{RD+1}")
        A("s_nop 0")
        A(f"v_add_f32 v{RD+1}, 1.0, v{RD+1}")
        A(f"v_rcp_f32 v{RD+1}, v{RD+1}")
        A("s_nop 0")
        A(f"v_mul_f32 v{G}, v{RD}, v{RD+1}")
        self.rnd(G, G)
        self.spin_begin("L_sp_p")
        A(f"global_load_dwordx4 v[{T}:{T+3}], v12, s[40:41] sc1")
        A("s_waitcnt vmcnt(0)")
        A(f"v_xor_b32 v13, s63, v{T+1}")
        A(f"v_bitop3_b32 v13, v13, v{T+3}, s63 bitop3:0xf6")
        A("v_cmp_ne_u32 vcc, 0, v13")
        A("s_cbranch_vccz L_sp_p_done")
        self.spin_end("L_sp_p", 32)
        A("L_sp_p_done:")
        C("factor of producer p=lane: exp(M_p - M_h) / L_h, partner = lane^1")
        A(f"v_max_f32_dpp v{T+1}, v{T}, v{T} quad_perm:[1,0,3,2] row_mask:0xf bank_mask:0xf")
        A(f"v_sub_f32 v{T}, v{T}, v{T+1}")
        A(f"v_exp_f32 v{T}, v{T}")
        A("s_nop 0")
        A(f"v_mul_f32 v{T+1}, v{T}, v{T+2}")
        A("s_nop 1")
        A(f"v_add_f32_dpp v{T+1}, v{T+1}, v{T+1} quad_perm:[1,0,3,2] row_mask:0xf bank_mask:0xf")
        A(f"v_rcp_f32 v{T+1}, v{T+1}")
        C("F[p] stored at ((p&7)*8 + (p>>3)) so that lane group g = l>>3 reads its 8 factors contiguously")
        A("v_and_b32 v12, 7, v4"); A("v_lshlrev_b32 v12, 5, v12")
        A("v_lshrrev_b32 v13, 3, v4"); A("v_lshl_add_u32 v12, v13, 2, v12")
        A(f"v_mul_f32 v{T}, v{T}, v{T+1}")
        A(f"ds_write_b32 v12, v{T} offset:{FLD}")
        A("v_lshlrev_b32 v13, 5, v13")
        A("s_waitcnt lgkmcnt(0)")
        A(f"ds_read_b128 v[{F}:{F+3}], v13 offset:{FLD}")
        A(f"ds_read_b128 v[{F+4}:{F+7}], v13 offset:{FLD+16}")
        A("s_cmp_lg_u32 s62, 63")
        A("s_cbranch_scc1 L_nobump")
        C("every reader of the tag word is done by now (this wave has seen data that depends on all of them)")
        A(f"v_mov_b32 v12, {WS_EP:#x}")
        A("v_mov_b32 v13, s63")
        A("s_mov_b64 exec, 1")
        A("global_store_dword v12, v13, s[40:41] sc1")
        A("s_mov_b64 exec, -1")
        A("L_nobump:")
        A("s_waitcnt lgkmcnt(0)")
        A("L_nog:")
        self.stamp(5)
        A("s_barrier")
        self.stamp(6)
        for n in range(4):
            A(f"ds_read_b128 v[{RA+4*n}:{RA+4*n+3}], v8 offset:{OB + 64*n}")
        for n in range(4):
            A(f"s_waitcnt lgkmcnt({3-n})")
            self.slabmfma(RD, RA + 4 * n, RB + 32 * n, n == 0)
        A("s_nop 0")
        for jj in range(8):
            A(f"v_mul_f32 v{T+jj}, v{CF}, v{RD+4*jj}")
        for r in range(1, 4):
            for jj in range(8):
                A(f"v_fmac_f32 v{T+jj}, v{CF+r}, v{RD+4*jj+r}")
        for d in range(4):
            A(f"v_permlane32_swap_b32 v{T+d}, v{T+d+4}")
        for d in range(4):
            A(f"v_add_f32 v{T+d}, v{T+d}, v{T+d+4}")
        A("s_nop 0")
        for d in range(2):
            A(f"v_permlane16_swap_b32 v{T+d}, v{T+d+2}")
        for d in range(2):
            A(f"v_add_f32 v{T+d}, v{T+d}, v{T+d+2}")
        for d in range(2):
            A(f"v_and_or_b32 v{T+d}, v{T+d}, v15, v{TG+d}")
        A(f"global_store_dwordx2 v9, v[{T}:{T+1}], s[40:41] sc1")
        self.stamp(7)
        A("s_cmp_lg_u32 s58, 1")
        A("s_cbranch_scc1 L_hend")
        C("consumer: poll the 64 producers' lines in 8 groups (complete groups are not re-loaded), then reduce")
        MK = 16
        for it in range(8):
            A(f"s_mov_b64 s[{MK+2*it}:{MK+2*it+1}], -1")
        self.spin_begin("L_sp_s")
        A("s_mov_b32 s50, 0")
        for it in range(8):
            A(f"s_mov_b64 exec, s[{MK+2*it}:{MK+2*it+1}]")
            A(f"buffer_load_dwordx4 v[{RD+4*it}:{RD+4*it+3}], v7, s[8:11], s50 offen sc1")
            if it < 7:
                A("s_add_u32 s50, s50, 0x4000")
        A("s_mov_b64 exec, -1")
        A("s_waitcnt vmcnt(0)")
        for it in range(8):
            self.chk(RA + it, RD + 4 * it, 4, ST + 4 * it)
        A(f"v_or3_b32 v13, v{RA}, v{RA+1}, v{RA+2}")
        A(f"v_or3_b32 v12, v{RA+3}, v{RA+4}, v{RA+5}")
        A(f"v_or3_b32 v13, v13, v{RA+6}, v{RA+7}")
        A("v_or_b32 v13, v13, v12")
        A("v_cmp_ne_u32_sdwa vcc, v13, v10 src0_sel:BYTE_0 src1_sel:DWORD")
        A("s_cbranch_vccz L_sp_s_done")
        for it in range(8):
            A(f"v_cmp_ne_u32_sdwa s[{MK+2*it}:{MK+2*it+1}], v{RA+it}, v10 src0_sel:BYTE_0 src1_sel:DWORD")
        for it in range(8):
            A(f"s_cmp_lg_u64 s[{MK+2*it}:{MK+2*it+1}], 0")
            A(f"s_cselect_b64 s[{MK+2*it}:{MK+2*it+1}], -1, 0")
        self.spin_end("L_sp_s", 1)
        A("L_sp_s_done:")
        self.stamp(8)
        for d in range(4):
            A(f"v_mul_f32 v{RD+d}, v{F}, v{ST+d}")
        for it in range(1, 8):
            for d in range(4):
                A(f"v_fmac_f32 v{RD+d}, v{F+it}, v{ST+4*it+d}")
        self.xl_reduce4(RD)
        self.rnd(RD, RD)
        A(f"v_mul_f32 v{RD}, v{RD}, v{G}")
        self.rnd(RD, RD)
        A(f"v_add_f32 v{RD}, v{RD}, v{XV}")
        A(f"v_cvt_pk_bf16_f32 v{RD}, v{RD}, 0")
        A("s_mov_b32 s42, 0x00ff00ff"); A("s_mov_b32 s43, 0x00ff00ff")
        A("s_mov_b64 exec, s[42:43]")
        A(f"global_store_short v{COL}, v{RD}, s[36:37]")
        A("s_mov_b64 exec, -1")
        self.stamp(9)
        if self.echo:
            a, b, K = self.echo
            A("s_waitcnt lgkmcnt(0)")
            A(f"s_sub_u32 s42, s{64+2*b}, s{64+2*a}")
            A(f"s_mul_i32 s42, s42, {K}")
            A("s_min_u32 s42, s42, 100000")
            A("s_add_u32 s42, s42, s82")
            A("L_echo:")
            A("s_memrealtime s[90:91]")
            A("s_waitcnt lgkmcnt(0)")
            A("s_sub_u32 s43, s42, s90")
            A("s_cmp_gt_i32 s43, 0")
            A("s_cbranch_scc1 L_echo")
        A("L_hend:")
        self.dump_stamps(10, 16)

def gen(**kw):
    return Gen(**kw).gen()

if __name__ == "__main__":
    out = sys.argv[1] if len(sys.argv) > 1 else "recurrent_scan__mha_block_cached__mixer_channel_mlp__decode.s"
    kw = eval("dict(" + (sys.argv[2] if len(sys.argv) > 2 else "") + ")")
    open(out, "w").write(gen(**kw))
```

```python
import sys, math, struct
NAME = "recurrent_scan__mha_block_cached__mixer_channel_mlp__decode_kernel"

def f32(x):
    return "0x%08x" % struct.unpack("<I", struct.pack("<f", x))[0]

HEADER = """; Kernarg layout for this problem (104 bytes, ptrs only, base s[0:1]):
"""

XN, QP, MLM, MLL, TAGL, FLD, OB = 0, 8192, 8448, 8512, 8704, 8960, 9216
OBS = 272
LDS_BYTES = 13824
WS_S, WS_ML, WS_EP, WS_Q, WS_U, WS_Z, WS_DIAG = 0, 0x80000, 0x90000, 0x100000, 0x180000, 0x1c0000, 0x200000
NUNIT = 112
NZ = 28
SPIN_MAX = 1 << 18
RK = 8720
WS_BAL = 0xb0000

class Gen:
    def __init__(self, kvflags="nt", wflags="", mflags="nt", qflags="nt", diag=False, DK=8, DV=8, pre=3, wdepth=2, dks=8,
                 bare=0, skip=(), pat="A", prog=False, mpar=0, cpar=0, fprio=3, qdelay=0, qsleep=1, adel=0, apar=0, touch=(), qack=1, mpar2=None, bal=0, thr=4, tlog=3, binit=0, bend=7, echo=None, hmap=0, mls=16, w2p=4, zfl='sc1', ufl='sc1'):
        self.echo = echo; self.hmap = hmap; self.mls = mls; self.wsml = WS_ML if mls <= 256 else 0x300000
        self.w2p, self.zfl, self.ufl = w2p, zfl, ufl
        self.bal, self.thr, self.tlog, self.binit, self.bend = bal, thr, tlog, binit, bend
        self.mpar2 = mpar if mpar2 is None else mpar2
        self.touch, self.qack = touch, qack
        self.adel, self.apar = adel, apar
        self.nlab = 0
        self.qdelay, self.qsleep = qdelay, qsleep
        self.L = []
        self.kvflags, self.wflags, self.mflags, self.qflags = kvflags, wflags, mflags, qflags
        self.diag, self.prog, self.bare, self.skip, self.pat = diag, prog, bare, set(skip), pat
        self.DK, self.DV, self.pre, self.wdepth, self.dks = DK, DV, pre, wdepth, dks
        self.mpar, self.cpar, self.fprio = mpar, cpar, fprio
    def A(self, s):
        self.L.append("  " + s if not s.endswith(":") else s)
    def C(self, s):
        self.L.append("  ; " + s)

    def stamp(self, idx):
        if self.diag or self.echo:
            self.A(f"s_memrealtime s[{64+2*idx}:{65+2*idx}]")
    def dump_stamps(self, n, vt):
        if not self.diag:
            return
        A = self.A
        A("s_waitcnt lgkmcnt(0)")
        A("s_lshl_b32 s60, s2, 3"); A("s_add_u32 s60, s60, s3"); A("s_lshl_b32 s60, s60, 7")
        A(f"s_add_u32 s60, s60, {WS_DIAG:#x}")
        A(f"v_mov_b32 v{vt}, s60")
        A("s_mov_b64 exec, 1")
        for j in range(n):
            A(f"v_mov_b32 v{vt+2}, s{64+2*j}"); A(f"v_mov_b32 v{vt+3}, s{65+2*j}")
            A(f"global_store_dwordx2 v{vt}, v[{vt+2}:{vt+3}], s[40:41] offset:{8*j}")
        A("s_getreg_b32 s60, hwreg(HW_REG_XCC_ID)")
        A(f"v_mov_b32 v{vt+2}, s60")
        A(f"global_store_dword v{vt}, v{vt+2}, s[40:41] offset:120")
        A("s_mov_b64 exec, -1")

    def row_allreduce(self, op, r):
        A = self.A
        for m in ("quad_perm:[1,0,3,2]", "quad_perm:[2,3,0,1]", "row_half_mirror", "row_mirror"):
            A("s_nop 1")
            A(f"v_{op}_f32_dpp v{r}, v{r}, v{r} {m} row_mask:0xf bank_mask:0xf")
    def wave_allreduce_add(self, r, t, op="add"):
        A = self.A
        self.row_allreduce(op, r)
        for sw in ("v_permlane16_swap_b32", "v_permlane32_swap_b32"):
            A(f"v_mov_b32 v{t}, v{r}")
            A("s_nop 1")
            A(f"{sw} v{r}, v{t}")
            A(f"v_{op}_f32 v{r}, v{r}, v{t}")
    def rnd(self, d, s):
        self.A(f"v_cvt_pk_bf16_f32 v{d}, 0, v{s}")

    def layernorm(self, X, n, T, P, unpack_after=True):
        A = self.A
        s, t, q, d = T, T + 1, T + 2, T + 3
        red = (lambda r: self.wave_allreduce_add(r, t)) if n == 8 else (lambda r: self.row_allreduce("add", r))
        A(f"v_add_f32 v{s}, v{X}, v{X+1}")
        for i in range(2, n):
            A(f"v_add_f32 v{s}, v{s}, v{X+i}")
        red(s)
        A(f"v_mul_f32 v{s}, {f32(1.0/512)}, v{s}")
        A(f"v_sub_f32 v{d}, v{X}, v{s}")
        A(f"v_mul_f32 v{q}, v{d}, v{d}")
        for i in range(1, n):
            dd = d if i % 2 == 0 else t
            A(f"v_sub_f32 v{dd}, v{X+i}, v{s}")
            A(f"v_fmac_f32 v{q}, v{dd}, v{dd}")
        red(q)
        A(f"v_mul_f32 v{q}, {f32(1.0/512)}, v{q}")
        self.rnd(s, s)
        self.rnd(q, q)
        A(f"v_add_f32 v{q}, {f32(1e-5)}, v{q}")
        self.rnd(q, q)
        A(f"v_sqrt_f32 v{q}, v{q}")
        A("s_nop 0")
        self.rnd(q, q)
        A(f"v_rcp_f32 v{q}, v{q}")
        for i in range(n):
            A(f"v_sub_f32 v{X+i}, v{X+i}, v{s}")
        for i in range(n):
            self.rnd(X + i, X + i)
        for i in range(n):
            A(f"v_mul_f32 v{X+i}, v{X+i}, v{q}")
        for i in range(n // 2):
            A(f"v_cvt_pk_bf16_f32 v{P+i}, v{X+2*i}, v{X+2*i+1}")
        if unpack_after:
            self.unpack(X, P, n // 2)
    def unpack(self, X, P, n):
        for i in range(n):
            self.A(f"v_lshlrev_b32 v{X+2*i}, 16, v{P+i}")
            self.A(f"v_and_b32 v{X+2*i+1}, 0xffff0000, v{P+i}")

    def slabload(self, dst, srd, voff, stride, flags, last_inc=None, pace=None, cont=False):
        A = self.A
        for e in range(8):
            r = dst + 4 * e
            if pace is not None and (e >= pace or cont):
                A(f"s_waitcnt vmcnt({pace-1})")
            A(f"buffer_load_dwordx4 v[{r}:{r+3}], v{voff}, {srd}, s50 offen {flags}".rstrip())
            inc = stride if e < 7 else last_inc
            if inc is not None:
                A(f"s_add_u32 s50, s50, {inc}")
    def slabperm(self, dst, src):
        A = self.A
        for d in range(4):
            for hf in range(2):
                jj = 2 * d + hf
                for q in range(4):
                    A(f"v_perm_b32 v{dst + 4*jj + q}, v{src + 4*(2*q+1) + d}, v{src + 4*(2*q) + d}, s{48 + hf}")
    def slabmfma(self, RD, RA, B, first):
        A = self.A
        for jj in range(8):
            b = B + 4 * jj
            c = "0" if first else f"v[{RD+4*jj}:{RD+4*jj+3}]"
            A(f"v_mfma_f32_16x16x32_bf16 v[{RD+4*jj}:{RD+4*jj+3}], v[{RA}:{RA+3}], v[{b}:{b+3}], {c}")

    def spin_begin(self, lab):
        self.A(f"s_mov_b32 s55, {SPIN_MAX}")
        self.A(f"{lab}:")
    def spin_end(self, lab, sleep):
        A = self.A
        A(f"s_sleep {sleep}")
        A("s_sub_u32 s55, s55, 1")
        A("s_cmp_lg_u32 s55, 0")
        A(f"s_cbranch_scc1 {lab}")
    def xl_reduce4(self, R):
        A = self.A
        A("s_nop 0")
        for d in range(2):
            A(f"v_permlane32_swap_b32 v{R+d}, v{R+d+2}")
        for d in range(2):
            A(f"v_add_f32 v{R+d}, v{R+d}, v{R+d+2}")
        A("s_nop 1")
        A(f"v_permlane16_swap_b32 v{R}, v{R+1}")
        A(f"v_add_f32 v{R}, v{R}, v{R+1}")
        A("s_nop 1")
        A(f"v_add_f32_dpp v{R}, v{R}, v{R} row_ror:8 row_mask:0xf bank_mask:0xf")

    def gen(self):
        A, C = self.A, self.C
        self.L.append(HEADER.rstrip())
        self.L.append(f"; @launch grid=(256,1,1) block=(512,1,1) lds={LDS_BYTES}")
        self.L.append('.amdgcn_target "amdgcn-amd-amdhsa--gfx950"')
        self.L.append(".text"); self.L.append(f".globl {NAME}"); self.L.append(".p2align 8")
        self.L.append(f".type {NAME},@function"); self.L.append(f"{NAME}:")
        A("s_cmp_ge_u32 s2, 256")
        A("s_cbranch_scc1 L_end")
        self.stamp(0)
        A("s_load_dwordx16 s[16:31], s[0:1], 0")
        A("s_load_dwordx8 s[32:39], s[0:1], 64")
        A("s_load_dwordx2 s[40:41], s[0:1], 96")
        A("v_lshrrev_b32 v1, 6, v0")
        A("v_and_b32 v2, 15, v0")
        A("v_readfirstlane_b32 s3, v1")
        A("v_bfe_u32 v3, v0, 4, 2")
        A("v_and_b32 v4, 63, v0")
        C("decode: h = 4*(wg&7) + ((wg>>3)&3); b = (wg>>5)&3; side = wg>>7")
        if self.hmap == 0:
            A("s_and_b32 s4, s2, 7"); A("s_lshl_b32 s4, s4, 2")
            A("s_bfe_u32 s5, s2, 0x20003"); A("s_or_b32 s4, s4, s5")
            A("s_bfe_u32 s5, s2, 0x20005")
            A("s_lshr_b32 s6, s2, 7")
        else:
            A("s_lshr_b32 s4, s2, 3")
            A("s_bfe_u32 s5, s2, 0x20001")
            A("s_and_b32 s6, s2, 1")
        A("s_lshl_b32 s59, s5, 5"); A("s_or_b32 s59, s59, s4"); A("s_lshl_b32 s59, s59, 1"); A("s_or_b32 s59, s59, s6")
        C("s59 = producer index b*64 + 2h + side")
        A("s_cmp_ge_u32 s3, 4")
        A("s_cbranch_scc1 L_helper")
        self.stream()
        self.helper()
        A("L_end:")
        A("s_endpgm")
        L = self.L
        L.append('.section .rodata,"a"'); L.append(".p2align 6"); L.append(f".amdhsa_kernel {NAME}")
        L.append("  .amdhsa_next_free_vgpr 256"); L.append("  .amdhsa_next_free_sgpr 102"); L.append("  .amdhsa_accum_offset 256")
        L.append("  .amdhsa_group_segment_fixed_size 0"); L.append("  .amdhsa_kernarg_size 104")
        L.append("  .amdhsa_user_sgpr_count 2"); L.append("  .amdhsa_user_sgpr_kernarg_segment_ptr 1")
        L.append("  .amdhsa_system_sgpr_workgroup_id_x 1")
        L.append("  .amdhsa_float_denorm_mode_32 3")
        L.append(".end_amdhsa_kernel")
        return "\n".join(L) + "\n"

    def stream(self):
        A, C = self.A, self.C
        RING = 64
        P = 24
        Q = 8
        S = 40
        ACC = 48
        PLO, PHI = 12, 13
        VOFF = 5
        fl = self.kvflags
        DK, DV, pre = self.DK, self.DV, self.pre
        C("===== stream waves =====")
        A("v_lshlrev_b32 v5, 4, v2")
        if self.pat == "A":
            A("v_lshl_or_b32 v5, v3, 12, v5")
            A("v_lshl_or_b32 v5, v1, 14, v5")
        else:
            wp, tp = {"B": (12, 14), "C": (14, 12)}[self.pat]
            A("v_lshl_or_b32 v5, v3, 8, v5")
            A(f"v_lshl_or_b32 v56, v1, {wp}, v5")
            for t in range(1, 4):
                A(f"v_add_u32 v{56+t}, {t << tp:#x}, v56")
        A("s_lshl_b32 s7, s59, 19")
        A("s_mov_b32 s10, 0x80000"); A("s_mov_b32 s11, 0x20000")
        A("s_mov_b32 s14, 0x80000"); A("s_mov_b32 s15, 0x20000")
        A("s_mov_b32 s46, 0x80000"); A("s_mov_b32 s47, 0x20000")
        A("s_mov_b32 s50, 0")
        A("s_waitcnt lgkmcnt(0)")
        A("s_add_u32 s8, s18, s7"); A("s_addc_u32 s9, s19, 0")
        issued = []
        def load(slot, srd, so, tag=None):
            r = RING + 4 * slot
            if self.pat == "A":
                A(f"buffer_load_dwordx4 v[{r}:{r+3}], v{VOFF}, {srd}, {so} offen offset:{(slot % 16)*256} {fl}".rstrip())
            else:
                A(f"buffer_load_dwordx4 v[{r}:{r+3}], v{56 + (slot % 16)//4}, {srd}, {so} offen offset:{(slot % 4)*1024} {fl}".rstrip())
            issued.append(tag)
        def wait(tag):
            A(f"s_waitcnt vmcnt({len(issued) - 1 - issued.index(tag)})")
        def swait(D):
            A(f"s_waitcnt vmcnt({D-1})")
            if self.adel:
                self.nlab += 1
                A(f"s_cbranch_vccnz L_ad{self.nlab}")
                A(f"s_waitcnt vmcnt({D-1-self.adel})")
                A(f"L_ad{self.nlab}:")
        if self.bal:
            A(f"s_mov_b64 vcc, {-self.binit}")
        elif self.adel:
            A(f"s_bitcmp{1-self.apar}_b32 s2, 0")
            A("s_cselect_b64 vcc, -1, 0")
        def bal(j, vph=False):
            if not self.bal:
                return
            self.nlab += 1
            if j == 8:
                A("s_cmp_ge_i32 s54, s62" if vph else "s_cmp_lg_u32 s3, 0")
                A(f"s_cbranch_scc1 L_bl{self.nlab}")
                A("s_mov_b64 exec, 1")
                A("global_atomic_add v61, v62, v63, s[40:41] sc0 sc1")
                A("s_mov_b64 exec, -1")
                A(f"L_bl{self.nlab}:")
            elif j == 0:
                A("s_cmp_gt_i32 s54, s62" if vph else "s_cmp_lg_u32 s3, 0")
                A(f"s_cbranch_scc1 L_bl{self.nlab}")
                A("v_subrev_u32 v61, s61, v61")
                A(f"s_add_u32 s61, s61, {1 << self.tlog}")
                A("s_mov_b64 exec, 1")
                A(f"ds_write_b32 v59, v61 offset:{RK}")
                A("s_mov_b64 exec, -1")
                A(f"L_bl{self.nlab}:")
            elif j == 2:
                A(f"ds_read_b32 v58, v59 offset:{RK}")
            elif j == 4:
                A("s_waitcnt lgkmcnt(0)")
                A(f"v_cmp_le_i32 vcc, {self.thr}, v58")
        for gi in range(pre):
            for j in range(16):
                n = 16 * gi + j
                dd = self.dks
                if dd and n >= dd:
                    swait(dd)
                load(n, "s[8:11]", "s50", (gi, j))
            A("s_add_u32 s50, s50, 0x10000")
        A("s_add_u32 s12, s20, s7"); A("s_addc_u32 s13, s21, 0")
        A("s_mov_b32 s52, 0xaaaaaaaa"); A("s_mov_b32 s53, 0xaaaaaaaa")
        A("s_mov_b32 s56, 0xcccccccc"); A("s_mov_b32 s57, 0xcccccccc")
        A("v_lshlrev_b32 v7, 4, v2")
        if self.bal:
            A(f"s_lshr_b32 s61, s2, {self.tlog}"); A("s_lshl_b32 s61, s61, 7"); A(f"s_add_u32 s61, s61, {WS_BAL:#x}")
            A("v_mov_b32 v62, s61"); A("v_mov_b32 v63, 1"); A("v_mov_b32 v59, 0")
            A(f"v_mov_b32 v61, {self.thr - 1 + self.binit}")
            A("s_mov_b32 s61, 0")
            A("s_cmp_eq_u32 s3, 0"); A(f"s_cselect_b32 s62, {self.bend}, -1")
            A(f"ds_write_b32 v59, v61 offset:{RK}")
            A("s_waitcnt lgkmcnt(0)")
        self.stamp(1)
        A("s_barrier")
        A(f"ds_read_b128 v[{Q}:{Q+3}], v7 offset:{QP}")
        self.stamp(2)
        A("s_waitcnt lgkmcnt(0)")
        def qk(slots):
            for d in range(4):
                for slot in slots:
                    r = RING + 4 * slot
                    p = P + slot % 16
                    c = "0" if d == 0 else f"v{p}"
                    A(f"v_dot2_f32_bf16 v{p}, v{r+d}, v{Q+d}, {c}")
        def treduce(dst, mid=()):
            C("transposing reduction: lane (g,c) <- score of load c, key g")
            for t in range(8):
                A(f"v_add_f32_dpp v{P+t}, v{P+t}, v{P+t} row_ror:8 row_mask:0xf bank_mask:0x3")
            for t in range(8):
                A(f"v_add_f32_dpp v{P+t}, v{P+t+8}, v{P+t+8} row_ror:8 row_mask:0xf bank_mask:0xc")
            for t in range(4):
                A(f"v_add_f32_dpp v{P+t}, v{P+t}, v{P+t} row_half_mirror row_mask:0xf bank_mask:0x5")
            for t in range(4):
                A(f"v_add_f32_dpp v{P+t}, v{P+t+4}, v{P+t+4} row_half_mirror row_mask:0xf bank_mask:0xa")
            U0, U1, T0, T1 = P + 8, P + 9, P + 10, P + 11
            A(f"v_cndmask_b32 v{U0}, v{P+1}, v{P}, s[52:53]")
            A(f"v_cndmask_b32 v{U1}, v{P+3}, v{P+2}, s[52:53]")
            A(f"v_cndmask_b32 v{T0}, v{P}, v{P+1}, s[52:53]")
            A(f"v_cndmask_b32 v{T1}, v{P+2}, v{P+3}, s[52:53]")
            A("s_nop 1")
            A(f"v_add_f32_dpp v{T0}, v{U0}, v{T0} quad_perm:[1,0,3,2] row_mask:0xf bank_mask:0xf")
            A(f"v_add_f32_dpp v{T1}, v{U1}, v{T1} quad_perm:[1,0,3,2] row_mask:0xf bank_mask:0xf")
            A(f"v_cndmask_b32 v{U0}, v{T1}, v{T0}, s[56:57]")
            A(f"v_cndmask_b32 v{U1}, v{T0}, v{T1}, s[56:57]")
            if mid:
                for m in mid:
                    A(m)
            else:
                A("s_nop 1")
            A(f"v_add_f32_dpp v{dst}, v{U0}, v{U1} quad_perm:[2,3,0,1] row_mask:0xf bank_mask:0xf")
        C("catch-up over the prefetched groups; group `pre` is loaded into ring slots 0..15 meanwhile")
        nxt = 0
        for gi in range(pre):
            for j in range(0, 16, 2):
                wait((gi, j + 1))
                qk([16 * gi + j, 16 * gi + j + 1])
                if gi == 0:
                    want = j + 2 if (j < 8 or pre == 1) else 8
                elif gi == 1:
                    want = 8 + j // 2 + 1
                else:
                    want = 16
                while nxt < want:
                    load(nxt, "s[8:11]", "s50", (pre, nxt)); nxt += 1
            A("s_nop 0")
            treduce(S + 8 - pre + gi)
        assert nxt == 16
        for j in range(16 - DK):
            wait((pre, j))
            qk([j])
        A(f"s_mov_b32 s54, {pre}")
        A("s_branch L_kmid")
        A("L_kloop:")
        for j in range(16 - DK):
            swait(DK)
            load(j + DK, "s[8:11]", "s50")
            qk([j])
            if j < 8:
                bal(j)
        A("L_kmid:")
        if self.prog:
            A("s_memrealtime s[90:91]")
        C("the rest refills from the next group (V group 0 after the last K group)")
        A("s_add_u32 s50, s50, 0x10000")
        A("s_cmp_eq_u32 s54, 7")
        A("s_cselect_b32 s44, s12, s8"); A("s_cselect_b32 s45, s13, s9"); A("s_cselect_b32 s51, 0, s50")
        for j in range(16 - DK, 16):
            swait(DK)
            load(j + DK - 16, "s[44:47]", "s51")
            qk([j])
            if j == 16 - DK:
                bal(8)
        if self.prog:
            A("s_waitcnt lgkmcnt(0)")
            A("s_mov_b32 m0, s54"); A("s_nop 0")
            A("v_writelane_b32 v60, s90, m0")
        for i in range(7):
            A(f"v_mov_b32 v{S+i}, v{S+i+1}")
        treduce(S + 7, ("s_add_u32 s54, s54, 1", "s_cmp_lt_u32 s54, 8"))
        A("s_cbranch_scc1 L_kloop")
        self.stamp(3)
        A("s_mov_b32 s50, 0")
        for j in range(DK, DV):
            load(j, "s[12:15]", "s50")
        C("softmax over this row's 128 keys (true max of the partial; partials are merged exactly later)")
        M, Ls = 14, 15
        cs = math.log2(math.e) / math.sqrt(128.0)
        A(f"s_mov_b32 s58, {f32(cs)}")
        A(f"v_max3_f32 v{M}, v{S}, v{S+1}, v{S+2}")
        A(f"v_max3_f32 v{M}, v{M}, v{S+3}, v{S+4}")
        A(f"v_max3_f32 v{M}, v{M}, v{S+5}, v{S+6}")
        A(f"v_max_f32 v{M}, v{M}, v{S+7}")
        self.row_allreduce("max", M)
        A(f"v_mul_f32 v{M}, s58, v{M}")
        for i in range(8):
            A(f"v_fma_f32 v{S+i}, v{S+i}, s58, -v{M}")
        for i in range(8):
            A(f"v_exp_f32 v{S+i}, v{S+i}")
        for i in range(8):
            A(f"v_mov_b32 v{ACC+i}, 0")
        A(f"v_add_f32 v{Ls}, v{S}, v{S+1}")
        for i in range(2, 8):
            A(f"v_add_f32 v{Ls}, v{Ls}, v{S+i}")
        self.row_allreduce("add", Ls)
        A(f"v_lshrrev_b32 v7, 4, v0")
        A(f"v_lshlrev_b32 v16, 2, v7")
        A(f"v_min_u32 v{M}, -2, v{M}")
        A(f"v_min_u32 v{Ls}, -2, v{Ls}")
        A(f"ds_write_b32 v16, v{M} offset:{MLM}")
        A(f"ds_write_b32 v16, v{Ls} offset:{MLL}")
        A(f"v_mul_u32_u24 v17, {OBS}, v7")
        A("v_lshl_add_u32 v17, v2, 4, v17")
        A("s_mov_b32 s54, 0")
        assert DV >= DK
        def pv(slot):
            r = RING + 4 * slot
            for d in range(4):
                A(f"v_dot2c_f32_bf16_dpp v{ACC+2*d}, v{PLO}, v{r+d} row_newbcast:{slot} row_mask:0xf bank_mask:0xf")
                A(f"v_dot2c_f32_bf16_dpp v{ACC+2*d+1}, v{PHI}, v{r+d} row_newbcast:{slot} row_mask:0xf bank_mask:0xf")
        A("L_vloop:")
        A(f"v_cvt_pk_bf16_f32 v{PLO}, v{S}, 0")
        A(f"v_cvt_pk_bf16_f32 v{PHI}, 0, v{S}")
        for i in range(7):
            A(f"v_mov_b32 v{S+i}, v{S+i+1}")
        for j in range(16):
            if j == 16 - DV and self.prog:
                A("s_memrealtime s[90:91]")
            if j == 16 - DV:
                A("s_add_u32 s50, s50, 0x10000")
            swait(DV)
            load((j + DV) % 16, "s[12:15]", "s50")
            pv(j)
            bal(j, True)
        if self.prog:
            A("s_waitcnt lgkmcnt(0)")
            A("s_add_u32 m0, s54, 8"); A("s_nop 0")
            A("v_writelane_b32 v60, s90, m0")
        A("s_add_u32 s54, s54, 1")
        A("s_cmp_lt_u32 s54, 8")
        A("s_cbranch_scc1 L_vloop")
        self.stamp(4)
        A("s_nop 1")
        for d in range(4):
            A(f"v_cvt_pk_bf16_f32 v{20+d}, v{ACC+2*d}, v{ACC+2*d+1}")
        A(f"ds_write_b128 v17, v[20:23] offset:{OB}")
        A("s_waitcnt lgkmcnt(0)")
        A("s_barrier")
        self.dump_stamps(5, 24)
        if self.prog:
            A("s_lshl_b32 s60, s2, 2"); A("s_add_u32 s60, s60, s3"); A("s_lshl_b32 s60, s60, 6")
            A(f"s_add_u32 s60, s60, {WS_DIAG + 0x80000:#x}")
            A("v_lshlrev_b32 v24, 2, v4")
            A("v_add_u32 v24, s60, v24")
            A("s_mov_b64 exec, 0xffff")
            A("global_store_dword v24, v60, s[40:41]")
        A("s_endpgm")

    TB = 100
    def tag4(self, R, n=4):
        for i in range(n):
            self.A(f"v_and_or_b32 v{R+i}, v{R+i}, v15, s{96 + i % 4}")
    def chk(self, acc, R, n, D=None):
        D = R if D is None else D
        for i in range(n):
            self.A(f"v_xor_b32 v{D+i}, s{96 + i % 4}, v{R+i}")
        self.A(f"v_or3_b32 v{acc}, v{D}, v{D+1}, v{D+2}")
        i = 3
        while i < n:
            if i + 1 < n:
                self.A(f"v_or3_b32 v{acc}, v{acc}, v{D+i}, v{D+i+1}"); i += 2
            else:
                self.A(f"v_or_b32 v{acc}, v{acc}, v{D+i}"); i += 1
    def chk_branch(self, acc, lab, sleep):
        A = self.A
        A(f"v_cmp_ne_u32_sdwa vcc, v{acc}, v10 src0_sel:BYTE_0 src1_sel:DWORD")
        A(f"s_cbranch_vccz {lab}_done")
        self.spin_end(lab, sleep)
        A(f"{lab}_done:")

    def set_tag(self):
        for k in range(4):
            self.A(f"s_bfe_u32 s{96+k}, s63, {0x80000 + 8*k:#x}")

    def helper(self):
        A, C = self.A, self.C
        wf, mf = self.wflags, self.mflags
        RA, RD = 16, 32
        RB = 64
        ST = 192
        T = 224
        A("L_helper:")
        C("===== helper waves =====")
        A("s_sub_u32 s7, s3, 4")
        if self.touch:
            C("helper 2 touches one word of every buffer this CU uses later (address translation warm-up)")
            A("s_cmp_lg_u32 s7, 2")
            A("s_cbranch_scc1 L_notouch")
            A("s_lshl_b32 s42, s59, 19"); A("v_mov_b32 v16, s42")
            A("s_lshl_b32 s42, s4, 17"); A("v_mov_b32 v17, s42")
            A("s_lshl_b32 s42, s2, 7"); A("s_add_u32 s42, s42, 0xa0000"); A("v_mov_b32 v18, s42")
            A("s_lshr_b32 s42, s2, 3"); A("s_min_u32 s42, s42, 27"); A("s_lshl_b32 s42, s42, 16"); A("v_mov_b32 v19, s42")
            A("v_mov_b32 v20, 0")
            A("s_mov_b64 exec, 1")
            A("s_waitcnt lgkmcnt(0)")
            tt = {"v": (16, 20), "wo": (17, 24), "ws": (18, 40), "w2": (19, 32), "b1": (20, 30), "b2": (20, 34), "out": (20, 36)}
            for i, k in enumerate(self.touch):
                A(f"global_load_dword v{24+i}, v{tt[k][0]}, s[{tt[k][1]}:{tt[k][1]+1}] nt")
            A("s_mov_b64 exec, -1")
            A("L_notouch:")
        if self.bal:
            C("the first WG of a team clears the team's progress counter (used for pacing only)")
            A(f"s_and_b32 s42, s2, {(1 << self.tlog) - 1}"); A("s_lshl_b32 s42, s42, 2"); A("s_or_b32 s42, s42, s7")
            A("s_cmp_lg_u32 s42, 2")
            A("s_cbranch_scc1 L_nobal")
            A(f"s_lshr_b32 s42, s2, {self.tlog}"); A("s_lshl_b32 s42, s42, 7"); A(f"s_add_u32 s42, s42, {WS_BAL:#x}")
            A("v_mov_b32 v16, s42"); A("v_mov_b32 v17, 0")
            A("s_mov_b64 exec, 1")
            A("s_waitcnt lgkmcnt(0)")
            A("global_store_dword v16, v17, s[40:41] sc1")
            A("s_mov_b64 exec, -1")
            A("L_nobal:")
        if self.bare == 1:
            A("s_waitcnt lgkmcnt(0)")
            A("s_barrier"); A("s_barrier"); A("s_branch L_hend")
        A("s_mov_b32 s48, 0x05040100"); A("s_mov_b32 s49, 0x07060302")
        A("v_lshlrev_b32 v6, 4, v4")
        A("v_mov_b32 v10, 0")
        A("v_mov_b32 v15, 0xffffff00")
        A("s_mov_b32 s11, 0x20000"); A("s_mov_b32 s15, 0x20000")
        C("s62 = MLP unit of this WG (>= NUNIT: none)")
        A("s_lshr_b32 s62, s2, 1")
        A("s_and_b32 s42, s2, 1"); A(f"s_cmp_eq_u32 s42, {self.mpar}")
        A("s_cselect_b32 s62, s62, 255")
        A("s_cmp_ge_u32 s7, 2")
        A("s_cbranch_scc1 L_nofront")
        A("s_cmp_eq_u32 s7, 0")
        A("s_cbranch_scc1 L_front")
        A(f"s_cmp_ge_u32 s62, {NUNIT}")
        A("s_cbranch_scc1 L_nofront")
        if "s1" in self.skip:
            A("s_branch L_nofront")
        A("L_front:")
        C("front units, 64 rows x 128 cols for all 4 batch rows. helper 0: wq rows 64(wg>>5).., cols 128h..")
        C("helper 1: w1 rows 64(u&7).., cols 128(u>>3)..")
        A(f"s_setprio {self.fprio}")
        A("s_lshr_b32 s42, s2, 5" if self.hmap == 0 else "s_and_b32 s42, s2, 7"); A("s_and_b32 s43, s62, 7")
        A("s_lshr_b32 s44, s62, 3")
        A("s_mov_b32 s51, 3584")
        A("s_cmp_eq_u32 s7, 0")
        A("s_cselect_b32 s53, s42, s43")
        A("s_cselect_b32 s44, s4, s44")
        A("s_cselect_b32 s51, 8192, s51")
        A("s_lshl_b32 s10, s51, 9")
        A("s_mul_i32 s52, s51, 25")
        A("s_mul_i32 s50, s53, s51"); A("s_lshl_b32 s50, s50, 6"); A("s_lshl_b32 s44, s44, 8"); A("s_add_u32 s50, s50, s44")
        A("s_lshl_b32 s42, s51, 3")
        A("v_mul_u32_u24 v5, s42, v3")
        A("v_lshl_add_u32 v5, v2, 4, v5")
        A("v_lshlrev_b32 v12, 10, v3")
        A("v_lshl_add_u32 v12, v2, 4, v12")
        A("s_cmp_eq_u32 s7, 0")
        A("s_waitcnt lgkmcnt(0)")
        for t in range(4):
            A(f"global_load_dwordx4 v[{RB+32+4*t}:{RB+35+4*t}], v12, s[16:17] offset:{256*t}")
        C("the word the previous launch left only serves to pick a tag that differs from that launch's")
        A(f"s_load_dword s63, s[40:41], {WS_EP:#x}")
        A("s_cselect_b32 s8, s22, s28"); A("s_cselect_b32 s9, s23, s29")
        if "fld" in self.skip:
            A("s_mov_b32 s10, 0")
        self.slabload(RB + 96, "s[8:11]", 5, "s51", mf, last_inc="s52")
        self.slabload(ST, "s[8:11]", 5, "s51", mf)
        A("s_lshl_b32 s42, s7, 12")
        A("v_add_u32 v12, s42, v12")
        C("A operand: rows[i>>2][64*blk + 32n + 8kk]")
        A("v_lshrrev_b32 v13, 2, v2")
        A("v_lshlrev_b32 v13, 10, v13")
        A("v_lshl_add_u32 v13, v3, 4, v13")
        A("s_lshl_b32 s43, s53, 7"); A("s_add_u32 s42, s42, s43")
        A("v_add_u32 v13, s42, v13")
        A("s_mov_b32 s54, s7")
        A("s_waitcnt vmcnt(16)")
        self.stamp(1)
        A("L_ln:")
        self.unpack(RB, RB + 32, 16)
        self.layernorm(RB, 32, T, RB + 32, unpack_after=False)
        A("s_sub_u32 s54, s54, 1")
        A("s_cbranch_scc0 L_ln")
        for t in range(4):
            A(f"ds_write_b128 v12, v[{RB+32+4*t}:{RB+35+4*t}] offset:{XN + 256*t}")
        A("s_waitcnt vmcnt(8)")
        self.slabperm(RB + 64, RB + 96)
        A("s_waitcnt lgkmcnt(0)")
        A(f"ds_read_b128 v[{RA}:{RA+3}], v13 offset:{XN}")
        A(f"ds_read_b128 v[{RA+4}:{RA+7}], v13 offset:{XN+64}")
        A("s_add_u32 s63, s63, 0x61c88647")
        self.set_tag()
        A("s_waitcnt vmcnt(0)")
        self.slabperm(RB + 96, ST)
        A("s_waitcnt lgkmcnt(0)")
        self.slabmfma(RD, RA, RB + 64, True)
        self.slabmfma(RD, RA + 4, RB + 96, False)
        A("s_cmp_eq_u32 s7, 0")
        A("s_cbranch_scc1 L_qaddr")
        C("U[u][sub=c>>2][half][b=kk][c&3][4]")
        A("s_lshl_b32 s42, s62, 11"); A(f"s_add_u32 s42, s42, {WS_U:#x}")
        A("v_lshrrev_b32 v12, 2, v2"); A("v_lshlrev_b32 v12, 9, v12")
        A("v_lshl_add_u32 v12, v3, 6, v12")
        A("v_and_b32 v13, 3, v2"); A("v_lshl_add_u32 v12, v13, 4, v12")
        A("s_branch L_fst")
        A("L_qaddr:")
        C("Q[h][b=kk][s][half][c][4]")
        A("s_lshl_b32 s42, s4, 14"); A("s_lshl_b32 s43, s53, 9"); A("s_add_u32 s42, s42, s43")
        A(f"s_add_u32 s42, s42, {WS_Q:#x}")
        A("v_lshlrev_b32 v12, 12, v3")
        A("v_lshl_add_u32 v12, v2, 4, v12")
        A("L_fst:")
        A("v_add_u32 v12, s42, v12")
        for jj in range(8):
            A(f"v_and_or_b32 v{T+jj}, v{RD+4*jj}, v15, s{96 + jj % 4}")
        if "fst" not in self.skip:
            A(f"global_store_dwordx4 v12, v[{T}:{T+3}], s[40:41] sc1")
            A(f"global_store_dwordx4 v12, v[{T+4}:{T+7}], s[40:41] offset:256 sc1")
        self.stamp(2)
        A("s_cmp_lg_u32 s7, 0")
        A("s_cbranch_scc1 L_fdone")
        C("helper 0: gather the 8 partials of q[b][h], LDS init")
        A("s_lshl_b32 s42, s4, 14"); A("s_lshl_b32 s43, s5, 12"); A("s_add_u32 s42, s42, s43")
        A(f"s_add_u32 s42, s42, {WS_Q:#x}")
        A("v_add_u32 v12, s42, v6")
        A("v_lshlrev_b32 v8, 2, v4")
        A("v_mov_b32 v9, -1")
        A(f"ds_write_b32 v8, v9 offset:{MLM}")
        A("v_mov_b32 v9, s63")
        A(f"ds_write_b32 v10, v9 offset:{TAGL}")
        A("v_bfe_u32 v9, v4, 4, 1")
        A("v_lshlrev_b32 v9, 3, v9")
        A("v_lshl_add_u32 v9, v2, 4, v9")
        if "qpoll" in self.skip:
            A("s_branch L_sp_q_done")
        if self.qack:
            A("s_waitcnt vmcnt(0)")
        if self.qdelay:
            A(f"s_sleep {self.qdelay}")
        self.spin_begin("L_sp_q")
        for t in range(4):
            A(f"global_load_dwordx4 v[{RD+4*t}:{RD+4*t+3}], v12, s[40:41] offset:{1024*t} sc1")
        A("s_waitcnt vmcnt(0)")
        self.chk(13, RD, 16)
        self.chk_branch(13, "L_sp_q", self.qsleep)
        for d in range(4):
            A(f"v_add_f32 v{RD+d}, v{RD+d}, v{RD+4+d}")
            A(f"v_add_f32 v{RD+8+d}, v{RD+8+d}, v{RD+12+d}")
        for d in range(4):
            A(f"v_add_f32 v{RD+d}, v{RD+d}, v{RD+8+d}")
        for d in range(4):
            A(f"v_mov_b32 v{RD+4+d}, v{RD+d}")
        A("s_nop 1")
        for d in range(4):
            A(f"v_permlane32_swap_b32 v{RD+d}, v{RD+4+d}")
        for d in range(4):
            A(f"v_add_f32 v{RD+d}, v{RD+d}, v{RD+4+d}")
        for d in range(2):
            A(f"v_cvt_pk_bf16_f32 v{RD+d}, v{RD+2*d}, v{RD+2*d+1}")
        A(f"ds_write_b64 v9, v[{RD}:{RD+1}] offset:{QP}")
        A("L_fdone:")
        A("s_setprio 0")
        A("L_nofront:")
        A("s_waitcnt lgkmcnt(0)")
        self.stamp(3)
        A("s_barrier")
        self.stamp(10)
        if self.bare == 2:
            A("s_barrier"); A("s_branch L_hend")
        A(f"ds_read_b32 v13, v10 offset:{TAGL}")
        C("----- wo block: rows 128h.., cols 128j.. (paced; helper 2 keeps one more load in flight) -----")
        A("v_lshlrev_b32 v5, 4, v2")
        A("v_lshl_or_b32 v5, v3, 13, v5")
        A("s_lshl_b32 s50, s4, 17"); A("s_lshl_b32 s43, s7, 8"); A("s_add_u32 s50, s50, s43")
        A("s_mov_b32 s8, s24"); A("s_mov_b32 s9, s25"); A("s_mov_b32 s10, 0x400000")
        A("s_waitcnt lgkmcnt(0)")
        A("v_readfirstlane_b32 s63, v13")
        self.set_tag()
        A("s_cmp_eq_u32 s7, 2")
        A("s_cselect_b64 vcc, -1, 0")
        def wo_round(n):
            wd = self.wdepth
            for e in range(8):
                r = ST + 4 * e
                if e >= wd:
                    A(f"s_waitcnt vmcnt({wd})")
                    A(f"s_cbranch_vccnz L_wo{n}_{e}")
                    A(f"s_waitcnt vmcnt({wd-1})")
                    A(f"L_wo{n}_{e}:")
                A(f"buffer_load_dwordx4 v[{r}:{r+3}], v5, s[8:11], s50 offen {wf}".rstrip())
                A(f"s_add_u32 s50, s50, {1024 if e < 7 else 25*1024}")
            A("s_waitcnt vmcnt(0)")
            self.slabperm(RB + 32 * n, ST)
        wo_round(0)
        A("s_cmp_lg_u32 s7, 1")
        A("s_cbranch_scc1 L_not1")
        if self.mpar2 != self.mpar:
            A("s_lshr_b32 s62, s2, 1")
            A("s_and_b32 s42, s2, 1"); A(f"s_cmp_eq_u32 s42, {self.mpar2}")
            A("s_cselect_b32 s62, s62, 255")
        A(f"s_cmp_ge_u32 s62, {NUNIT}")
        A("s_cbranch_scc1 L_not1")
        if "s2" in self.skip:
            A("s_branch L_not1")
        C("stage 2 unit: r = u>>2 (hidden rows 64r..), cq = u&3 (cols 128cq..)")
        A("s_mov_b32 s51, s50")
        A("s_lshr_b32 s60, s62, 2"); A("s_and_b32 s61, s62, 3")
        A("s_lshl_b32 s50, s60, 16"); A("s_lshl_b32 s43, s61, 8"); A("s_add_u32 s50, s50, s43")
        A("s_mov_b32 s12, s32"); A("s_mov_b32 s13, s33"); A(f"s_mov_b32 s14, {1792*1024}")
        if "w2ld" in self.skip:
            A("s_mov_b32 s14, 0")
        self.slabload(ST, "s[12:15]", 5, 1024, mf, last_inc=25 * 1024, pace=self.w2p)
        self.slabload(RD, "s[12:15]", 5, 1024, mf, pace=self.w2p, cont=True)
        A("s_lshl_b32 s43, s60, 7")
        A("v_lshlrev_b32 v13, 4, v3")
        A("v_add_u32 v13, s43, v13")
        A(f"global_load_dwordx4 v[{T+16}:{T+19}], v13, s[30:31]")
        A(f"global_load_dwordx4 v[{T+20}:{T+23}], v13, s[30:31] offset:64")
        A("s_mov_b32 s50, s51")
        C("U[m*8 + 4t + (c&3)][2(r&1) + n][half][b=c>>2][kk][4]")
        A("v_and_b32 v12, 3, v2"); A("v_lshlrev_b32 v12, 11, v12")
        A("v_lshrrev_b32 v13, 2, v2"); A("v_lshl_add_u32 v12, v13, 6, v12")
        A("v_lshl_add_u32 v12, v3, 4, v12")
        A("s_lshr_b32 s42, s60, 1"); A("s_lshl_b32 s42, s42, 14")
        A("s_and_b32 s43, s60, 1"); A("s_lshl_b32 s43, s43, 10"); A("s_add_u32 s42, s42, s43")
        A(f"s_add_u32 s42, s42, {WS_U:#x}")
        A(f"v_add_u32 v{T}, s42, v12")
        A(f"v_add_u32 v{T+1}, 0x2000, v{T}")
        UU, W, BB = RB + 64, RB + 80, RB + 112
        if "upoll" in self.skip:
            A("s_waitcnt vmcnt(0)")
            A("s_branch L_sp_u_done")
        self.spin_begin("L_sp_u")
        for t in range(2):
            for q in range(4):
                A(f"global_load_dwordx4 v[{UU+16*t+4*q}:{UU+16*t+4*q+3}], v{T+t}, s[40:41] offset:{256*q} {self.ufl}")
        A("s_waitcnt vmcnt(0)")
        self.chk(13, UU, 32)
        self.chk_branch(13, "L_sp_u", 32)
        self.unpack(BB, T + 16, 8)
        for i in range(16):
            A(f"v_add_f32 v{UU+i}, v{UU+i}, v{UU+16+i}")
        for m in ("quad_perm:[1,0,3,2]", "quad_perm:[2,3,0,1]"):
            for i in range(16):
                A(f"v_add_f32_dpp v{UU+i}, v{UU+i}, v{UU+i} {m} row_mask:0xf bank_mask:0xf")
        for i in range(16):
            self.rnd(UU + i, UU + i)
        for i in range(16):
            A(f"v_add_f32 v{UU+i}, v{UU+i}, v{BB+i}")
        for i in range(16):
            self.rnd(UU + i, UU + i)
        C("gelu(tanh form) = u / (1 + exp(-2k(u + 0.044715 u^3)))")
        k2 = -2.0 * math.sqrt(2.0 / math.pi) * math.log2(math.e)
        A(f"s_mov_b32 s42, {f32(0.044715 * k2)}"); A(f"s_mov_b32 s43, {f32(k2)}")
        A("v_mov_b32 v12, s43")
        for i in range(16):
            A(f"v_mul_f32 v{W+i}, v{UU+i}, v{UU+i}")
        for i in range(16):
            A(f"v_fma_f32 v{W+i}, v{W+i}, s42, v12")
        for i in range(16):
            A(f"v_mul_f32 v{W+i}, v{W+i}, v{UU+i}")
        for i in range(16):
            A(f"v_exp_f32 v{W+i}, v{W+i}")
        for i in range(16):
            A(f"v_add_f32 v{W+i}, 1.0, v{W+i}")
        for i in range(16):
            A(f"v_rcp_f32 v{W+i}, v{W+i}")
        for i in range(16):
            A(f"v_mul_f32 v{UU+i}, v{UU+i}, v{W+i}")
        for d in range(8):
            A(f"v_cvt_pk_bf16_f32 v{RA+d}, v{UU+2*d}, v{UU+2*d+1}")
        self.slabperm(RB + 64, ST)
        self.slabperm(RB + 96, RD)
        self.slabmfma(RD, RA, RB + 64, True)
        self.slabmfma(RD, RA + 4, RB + 96, False)
        C("Z[b=kk][line 4cq + 2(c>>3) + half][r][(c&7)*4..]")
        A(f"v_mul_u32_u24 v12, {16*NZ*128}, v3")
        A("v_lshrrev_b32 v13, 3, v2")
        A(f"v_mul_u32_u24 v13, {2*NZ*128}, v13")
        A("v_add_u32 v12, v12, v13")
        A("v_and_b32 v13, 7, v2")
        A("v_lshl_add_u32 v12, v13, 4, v12")
        A(f"s_mul_i32 s42, s61, {4*NZ*128}"); A("s_lshl_b32 s43, s60, 7"); A("s_add_u32 s42, s42, s43")
        A(f"s_add_u32 s42, s42, {WS_Z:#x}")
        A("v_add_u32 v12, s42, v12")
        for jj in range(8):
            A(f"v_and_or_b32 v{T+jj}, v{RD+4*jj}, v15, s{96 + jj % 4}")
        if "zst" not in self.skip:
            A(f"global_store_dwordx4 v12, v[{T}:{T+3}], s[40:41] {self.zfl}")
            A(f"global_store_dwordx4 v12, v[{T+4}:{T+7}], s[40:41] offset:{NZ*128} {self.zfl}")
        A("s_mov_b64 vcc, 0")
        A("L_not1:")
        wo_round(1); wo_round(2); wo_round(3)
        self.stamp(4)
        if self.bare == 3:
            A("s_barrier"); A("s_branch L_hend")
        C("wait for the 16 (m,l) partials of this WG's stream waves")
        A("v_lshlrev_b32 v12, 2, v2")
        self.spin_begin("L_sp_m")
        A(f"ds_read_b32 v14, v12 offset:{MLM}")
        A(f"ds_read_b32 v11, v12 offset:{MLL}")
        A("s_waitcnt lgkmcnt(0)")
        A("v_max_u32 v13, v14, v11")
        A("v_cmp_eq_u32 vcc, -1, v13")
        A("s_cbranch_vccz L_sp_m_done")
        self.spin_end("L_sp_m", 4)
        A("L_sp_m_done:")
        CF = T + 28
        A("v_lshlrev_b32 v13, 4, v3")
        A(f"ds_read_b128 v[{CF}:{CF+3}], v13 offset:{MLM}")
        A(f"v_mov_b32 v{T}, v14")
        self.row_allreduce("max", T)
        A(f"v_sub_f32 v14, v14, v{T}")
        A("v_exp_f32 v14, v14")
        A("s_waitcnt lgkmcnt(0)")
        for r in range(4):
            A(f"v_sub_f32 v{CF+r}, v{CF+r}, v{T}")
        A(f"v_mul_f32 v{T+2}, v14, v11")
        for r in range(4):
            A(f"v_exp_f32 v{CF+r}, v{CF+r}")
        A("s_cmp_lg_u32 s7, 2")
        A("s_cbranch_scc1 L_nopub")
        C("helper 2 publishes {M, tag, L, tag} of this WG")
        self.row_allreduce("add", T + 2)
        A(f"v_mov_b32 v{T+1}, s63"); A(f"v_mov_b32 v{T+3}, s63")
        A(f"s_mul_i32 s42, s59, {self.mls}"); A(f"s_add_u32 s42, s42, {self.wsml:#x}")
        A("v_mov_b32 v12, s42")
        A("s_mov_b64 exec, 1")
        if "ml" not in self.skip:
            A(f"global_store_dwordx4 v12, v[{T}:{T+3}], s[40:41] sc1")
        A("s_mov_b64 exec, -1")
        A("L_nopub:")
        G, XV, COL, F = T + 24, T + 25, T + 26, T + 8
        TG = T + 22
        C("addresses for the tail")
        A(f"v_mul_u32_u24 v8, {OBS}, v2")
        A("v_lshl_add_u32 v8, v3, 4, v8")
        C("S row + j*512 + (c>>3)*256 + (kk>>1)*128 + (c&7)*16 + (kk&1)*8")
        A("s_lshl_b32 s42, s7, 9"); A("s_lshl_b32 s43, s59, 11"); A("s_add_u32 s42, s42, s43")
        A("v_lshrrev_b32 v9, 3, v2"); A("v_lshlrev_b32 v9, 8, v9")
        A("v_lshrrev_b32 v13, 1, v3"); A("v_lshl_add_u32 v9, v13, 7, v9")
        A("v_and_b32 v13, 7, v2"); A("v_lshl_add_u32 v9, v13, 4, v9")
        A("v_and_b32 v13, 1, v3"); A("v_lshl_add_u32 v9, v13, 3, v9")
        A("v_add_u32 v9, s42, v9")
        A("v_lshlrev_b32 v13, 4, v13")
        A(f"v_lshrrev_b32 v{TG}, v13, s63")
        A(f"v_bfe_u32 v{TG+1}, v{TG}, 8, 8")
        A(f"v_and_b32 v{TG}, 0xff, v{TG}")
        A(f"v_mov_b32 v{COL}, 0")
        A("v_mov_b32 v7, 0")
        A("s_mov_b32 s8, s40"); A("s_mov_b32 s9, s41"); A("s_mov_b32 s10, 0x80000")
        C("s58 = 1 on consumer waves: helper 3 of WGs >= 128 of one parity")
        A(f"s_and_b32 s42, s2, 0x81"); A("s_lshl_b32 s43, s7, 1"); A("s_or_b32 s42, s42, s43")
        A(f"s_cmp_eq_u32 s42, {0x86 | self.cpar:#x}")
        A("s_cselect_b32 s58, 1, 0")
        A("s_cbranch_scc0 L_nog")
        if "cons" in self.skip:
            A("s_mov_b32 s58, 0")
            A("s_branch L_nog")
        C("consumer: batch bc, line cb: gate and merge factors")
        A("s_bfe_u32 s62, s2, 0x60001")
        A("s_lshr_b32 s60, s62, 4"); A("s_and_b32 s61, s62, 15")
        A("v_and_b32 v12, 7, v4")
        C("S poll address: S[bc][(l>>3) + 8it][line cb] + (l&7)*16")
        A("s_lshl_b32 s42, s60, 17"); A("s_lshl_b32 s43, s61, 7"); A("s_add_u32 s42, s42, s43")
        A("v_lshrrev_b32 v13, 3, v4"); A("v_lshlrev_b32 v13, 11, v13")
        A("v_lshl_add_u32 v7, v12, 4, v13")
        A("v_add_u32 v7, s42, v7")
        C("column = 64(cb>>1) + 4(cb&1) + 8(l&7) + 2(l>>5) + ((l>>4)&1)")
        A("v_lshlrev_b32 v12, 3, v12")
        A("v_lshrrev_b32 v13, 5, v4"); A("v_lshl_add_u32 v12, v13, 1, v12")
        A("v_bfe_u32 v13, v4, 4, 1"); A("v_add_u32 v12, v12, v13")
        A("s_lshr_b32 s42, s61, 1"); A("s_lshl_b32 s42, s42, 6")
        A("s_and_b32 s43, s61, 1"); A("s_lshl_b32 s43, s43, 2"); A("s_add_u32 s42, s42, s43")
        A(f"v_add_u32 v{COL}, s42, v12")
        A(f"v_lshlrev_b32 v13, 1, v{COL}")
        A(f"global_load_ushort v{G}, v13, s[34:35]")
        A("s_lshl_b32 s42, s60, 10")
        A(f"v_add_u32 v{COL}, s42, v13")
        A(f"global_load_ushort v{XV}, v{COL}, s[16:17]")
        A(f"s_mul_i32 s42, s62, {NZ*128}"); A(f"s_add_u32 s42, s42, {WS_Z:#x}")
        A("v_add_u32 v12, s42, v6")
        self.spin_begin("L_sp_z")
        C("28 lines: the upper half of the last load is masked off and holds tagged zeros")
        for d in range(4):
            A(f"v_mov_b32 v{RD+12+d}, s{96+d}")
        for it in range(4):
            if it == 3:
                A("s_mov_b32 exec_hi, 0")
            A(f"global_load_dwordx4 v[{RD+4*it}:{RD+4*it+3}], v12, s[40:41] offset:{it*1024} sc1")
        A("s_mov_b32 exec_hi, -1")
        A("s_waitcnt vmcnt(0)")
        self.chk(13, RD, 16)
        self.chk_branch(13, "L_sp_z", 32)
        A(f"s_mul_i32 s42, s60, {64*self.mls}"); A(f"s_add_u32 s42, s42, {self.wsml:#x}")
        A(f"v_mul_u32_u24 v12, {self.mls}, v4")
        A("v_add_u32 v12, s42, v12")
        A(f"v_lshlrev_b32 v{G}, 16, v{G}")
        A(f"v_lshlrev_b32 v{XV}, 16, v{XV}")
        for it in range(1, 4):
            for d in range(4):
                A(f"v_add_f32 v{RD+d}, v{RD+d}, v{RD+4*it+d}")
        self.xl_reduce4(RD)
        self.rnd(RD, RD)
        A(f"v_add_f32 v{RD}, v{RD}, v{G}")
        self.rnd(RD, RD)
        A(f"v_mul_f32 v{RD+1}, {f32(-math.log2(math.e))}, v{RD}")
        A(f"v_exp_f32 v{RD+1}, v{RD+1}")
        A("s_nop 0")
        A(f"v_add_f32 v{RD+1}, 1.0, v{RD+1}")
        A(f"v_rcp_f32 v{RD+1}, v{RD+1}")
        A("s_nop 0")
        A(f"v_mul_f32 v{G}, v{RD}, v{RD+1}")
        self.rnd(G, G)
        self.spin_begin("L_sp_p")
        A(f"global_load_dwordx4 v[{T}:{T+3}], v12, s[40:41] sc1")
        A("s_waitcnt vmcnt(0)")
        A(f"v_xor_b32 v13, s63, v{T+1}")
        A(f"v_bitop3_b32 v13, v13, v{T+3}, s63 bitop3:0xf6")
        A("v_cmp_ne_u32 vcc, 0, v13")
        A("s_cbranch_vccz L_sp_p_done")
        self.spin_end("L_sp_p", 32)
        A("L_sp_p_done:")
        C("factor of producer p=lane: exp(M_p - M_h) / L_h, partner = lane^1")
        A(f"v_max_f32_dpp v{T+1}, v{T}, v{T} quad_perm:[1,0,3,2] row_mask:0xf bank_mask:0xf")
        A(f"v_sub_f32 v{T}, v{T}, v{T+1}")
        A(f"v_exp_f32 v{T}, v{T}")
        A("s_nop 0")
        A(f"v_mul_f32 v{T+1}, v{T}, v{T+2}")
        A("s_nop 1")
        A(f"v_add_f32_dpp v{T+1}, v{T+1}, v{T+1} quad_perm:[1,0,3,2] row_mask:0xf bank_mask:0xf")
        A(f"v_rcp_f32 v{T+1}, v{T+1}")
        C("F[p] stored at ((p&7)*8 + (p>>3)) so that lane group g = l>>3 reads its 8 factors contiguously")
        A("v_and_b32 v12, 7, v4"); A("v_lshlrev_b32 v12, 5, v12")
        A("v_lshrrev_b32 v13, 3, v4"); A("v_lshl_add_u32 v12, v13, 2, v12")
        A(f"v_mul_f32 v{T}, v{T}, v{T+1}")
        A(f"ds_write_b32 v12, v{T} offset:{FLD}")
        A("v_lshlrev_b32 v13, 5, v13")
        A("s_waitcnt lgkmcnt(0)")
        A(f"ds_read_b128 v[{F}:{F+3}], v13 offset:{FLD}")
        A(f"ds_read_b128 v[{F+4}:{F+7}], v13 offset:{FLD+16}")
        A("s_cmp_lg_u32 s62, 63")
        A("s_cbranch_scc1 L_nobump")
        C("every reader of the tag word is done by now (this wave has seen data that depends on all of them)")
        A(f"v_mov_b32 v12, {WS_EP:#x}")
        A("v_mov_b32 v13, s63")
        A("s_mov_b64 exec, 1")
        A("global_store_dword v12, v13, s[40:41] sc1")
        A("s_mov_b64 exec, -1")
        A("L_nobump:")
        A("s_waitcnt lgkmcnt(0)")
        A("L_nog:")
        self.stamp(5)
        A("s_barrier")
        self.stamp(6)
        if self.echo and len(self.echo) == 5:
            A("s_cmp_lg_u32 s7, 2")
            A("s_cbranch_scc1 L_e2")
            A("s_getreg_b32 s42, hwreg(HW_REG_XCC_ID)")
            A("s_waitcnt lgkmcnt(0)")
            A(f"v_mov_b32 v{ST}, s64"); A(f"v_mov_b32 v{ST+1}, s84"); A(f"v_mov_b32 v{ST+2}, s76"); A(f"v_mov_b32 v{ST+3}, s42")
            A("s_lshl_b32 s42, s59, 4"); A(f"s_add_u32 s42, s42, {WS_DIAG:#x}")
            A("v_mov_b32 v12, s42")
            A("s_mov_b64 exec, 1")
            A(f"global_store_dwordx4 v12, v[{ST}:{ST+3}], s[40:41] sc1")
            A("s_mov_b64 exec, -1")
            A("s_waitcnt vmcnt(0)")
            A("L_e2:")
        for n in range(4):
            A(f"ds_read_b128 v[{RA+4*n}:{RA+4*n+3}], v8 offset:{OB + 64*n}")
        for n in range(4):
            A(f"s_waitcnt lgkmcnt({3-n})")
            self.slabmfma(RD, RA + 4 * n, RB + 32 * n, n == 0)
        A("s_nop 0")
        for jj in range(8):
            A(f"v_mul_f32 v{T+jj}, v{CF}, v{RD+4*jj}")
        for r in range(1, 4):
            for jj in range(8):
                A(f"v_fmac_f32 v{T+jj}, v{CF+r}, v{RD+4*jj+r}")
        for d in range(4):
            A(f"v_permlane32_swap_b32 v{T+d}, v{T+d+4}")
        for d in range(4):
            A(f"v_add_f32 v{T+d}, v{T+d}, v{T+d+4}")
        A("s_nop 0")
        for d in range(2):
            A(f"v_permlane16_swap_b32 v{T+d}, v{T+d+2}")
        for d in range(2):
            A(f"v_add_f32 v{T+d}, v{T+d}, v{T+d+2}")
        for d in range(2):
            A(f"v_and_or_b32 v{T+d}, v{T+d}, v15, v{TG+d}")
        A(f"global_store_dwordx2 v9, v[{T}:{T+1}], s[40:41] sc1")
        self.stamp(7)
        A("s_cmp_lg_u32 s58, 1")
        A("s_cbranch_scc1 L_hend")
        C("consumer: poll the 64 producers' lines in 8 groups (complete groups are not re-loaded), then reduce")
        MK = 16
        for it in range(8):
            A(f"s_mov_b64 s[{MK+2*it}:{MK+2*it+1}], -1")
        self.spin_begin("L_sp_s")
        A("s_mov_b32 s50, 0")
        for it in range(8):
            A(f"s_mov_b64 exec, s[{MK+2*it}:{MK+2*it+1}]")
            A(f"buffer_load_dwordx4 v[{RD+4*it}:{RD+4*it+3}], v7, s[8:11], s50 offen sc1")
            if it < 7:
                A("s_add_u32 s50, s50, 0x4000")
        A("s_mov_b64 exec, -1")
        A("s_waitcnt vmcnt(0)")
        for it in range(8):
            self.chk(RA + it, RD + 4 * it, 4, ST + 4 * it)
        A(f"v_or3_b32 v13, v{RA}, v{RA+1}, v{RA+2}")
        A(f"v_or3_b32 v12, v{RA+3}, v{RA+4}, v{RA+5}")
        A(f"v_or3_b32 v13, v13, v{RA+6}, v{RA+7}")
        A("v_or_b32 v13, v13, v12")
        A("v_cmp_ne_u32_sdwa vcc, v13, v10 src0_sel:BYTE_0 src1_sel:DWORD")
        A("s_cbranch_vccz L_sp_s_done")
        for it in range(8):
            A(f"v_cmp_ne_u32_sdwa s[{MK+2*it}:{MK+2*it+1}], v{RA+it}, v10 src0_sel:BYTE_0 src1_sel:DWORD")
        for it in range(8):
            A(f"s_cmp_lg_u64 s[{MK+2*it}:{MK+2*it+1}], 0")
            A(f"s_cselect_b64 s[{MK+2*it}:{MK+2*it+1}], -1, 0")
        self.spin_end("L_sp_s", 1)
        A("L_sp_s_done:")
        self.stamp(8)
        for d in range(4):
            A(f"v_mul_f32 v{RD+d}, v{F}, v{ST+d}")
        for it in range(1, 8):
            for d in range(4):
                A(f"v_fmac_f32 v{RD+d}, v{F+it}, v{ST+4*it+d}")
        self.xl_reduce4(RD)
        self.rnd(RD, RD)
        A(f"v_mul_f32 v{RD}, v{RD}, v{G}")
        self.rnd(RD, RD)
        A(f"v_add_f32 v{RD}, v{RD}, v{XV}")
        A(f"v_cvt_pk_bf16_f32 v{RD}, v{RD}, 0")
        A("s_mov_b32 s42, 0x00ff00ff"); A("s_mov_b32 s43, 0x00ff00ff")
        A("s_mov_b64 exec, s[42:43]")
        A(f"global_store_short v{COL}, v{RD}, s[36:37]")
        A("s_mov_b64 exec, -1")
        self.stamp(9)
        if self.echo:
            if len(self.echo) == 3:
                a, b, K = self.echo
                A("s_waitcnt lgkmcnt(0)")
                A(f"s_sub_u32 s42, s{64+2*b}, s{64+2*a}")
            else:
                fld, op, xm, xv, K = self.echo
                A("s_sleep 64")
                A("s_lshl_b32 s42, s60, 10"); A(f"s_add_u32 s42, s42, {WS_DIAG:#x}")
                A("v_add_u32 v12, s42, v6")
                A(f"global_load_dwordx4 v[{ST}:{ST+3}], v12, s[40:41] sc1")
                A("s_waitcnt vmcnt(0) lgkmcnt(0)")
                for i in range(3):
                    A(f"v_subrev_u32 v{ST+i}, s64, v{ST+i}")
                    A(f"v_cvt_f32_i32 v{ST+i}, v{ST+i}")
                A(f"v_mov_b32 v{ST+4}, v{ST}")
                self.wave_allreduce_add(ST + 4, ST + 5, "min")
                A(f"v_sub_f32 v{ST+6}, v{ST+fld}, v{ST+4}")
                A(f"v_and_b32 v{ST+3}, {xm}, v{ST+3}")
                A(f"v_cmp_eq_u32 vcc, {xv}, v{ST+3}")
                A(f"v_mov_b32 v{ST+7}, {'0' if op != 'min' else '0x49742400'}")
                A(f"v_cndmask_b32 v{ST+6}, v{ST+7}, v{ST+6}, vcc")
                self.wave_allreduce_add(ST + 6, ST + 5, op)
                if op == "add":
                    n = 64 >> bin(xm).count("1")
                    A(f"v_mul_f32 v{ST+6}, {f32(1.0/n)}, v{ST+6}")
                A(f"v_cvt_i32_f32 v{ST+6}, v{ST+6}")
                A("s_nop 1")
                A(f"v_readfirstlane_b32 s42, v{ST+6}")
                A("s_memrealtime s[82:83]")
                A("s_waitcnt lgkmcnt(0)")
            A(f"s_mul_i32 s42, s42, {K}")
            A("s_min_u32 s42, s42, 100000")
            A("s_add_u32 s42, s42, s82")
            A("L_echo:")
            A("s_memrealtime s[90:91]")
            A("s_waitcnt lgkmcnt(0)")
            A("s_sub_u32 s43, s42, s90")
            A("s_cmp_gt_i32 s43, 0")
            A("s_cbranch_scc1 L_echo")
        A("L_hend:")
        self.dump_stamps(10, 16)

def gen(**kw):
    return Gen(**kw).gen()

if __name__ == "__main__":
    out = sys.argv[1] if len(sys.argv) > 1 else "recurrent_scan__mha_block_cached__mixer_channel_mlp__decode.s"
    kw = eval("dict(" + (sys.argv[2] if len(sys.argv) > 2 else "") + ")")
    open(out, "w").write(gen(**kw))
```

```python
import sys, math, struct
NAME = "recurrent_scan__mha_block_cached__mixer_channel_mlp__decode_kernel"

def f32(x):
    return "0x%08x" % struct.unpack("<I", struct.pack("<f", x))[0]

HEADER = """; Kernarg layout for this problem (104 bytes, ptrs only, base s[0:1]):
"""

XN, QP, MLM, MLL, TAGL, FLD, OB = 0, 8192, 8448, 8512, 8704, 8960, 9216
OBS = 272
LDS_BYTES = 13824
WS_S, WS_ML, WS_EP, WS_Q, WS_U, WS_Z, WS_DIAG = 0, 0x80000, 0x90000, 0x100000, 0x180000, 0x1c0000, 0x200000
NUNIT = 112
NZ = 28
SPIN_MAX = 1 << 18
RK = 8720
WS_BAL = 0xb0000

class Gen:
    def __init__(self, kvflags="nt", wflags="", mflags="nt", qflags="nt", diag=False, DK=8, DV=8, pre=3, wdepth=2, dks=8,
                 bare=0, skip=(), pat="A", prog=False, mpar=0, cpar=0, fprio=3, qdelay=0, qsleep=1, adel=0, apar=0, touch=(), qack=1, mpar2=None, bal=0, thr=4, tlog=3, binit=0, bend=7, echo=None, hmap=0, mls=16, w2p=4, zfl='sc1', ufl='sc1'):
        self.echo = echo; self.hmap = hmap; self.mls = mls; self.wsml = WS_ML if mls <= 256 else 0x300000
        self.w2p, self.zfl, self.ufl = w2p, zfl, ufl
        self.bal, self.thr, self.tlog, self.binit, self.bend = bal, thr, tlog, binit, bend
        self.mpar2 = mpar if mpar2 is None else mpar2
        self.touch, self.qack = touch, qack
        self.adel, self.apar = adel, apar
        self.nlab = 0
        self.qdelay, self.qsleep = qdelay, qsleep
        self.L = []
        self.kvflags, self.wflags, self.mflags, self.qflags = kvflags, wflags, mflags, qflags
        self.diag, self.prog, self.bare, self.skip, self.pat = diag, prog, bare, set(skip), pat
        self.DK, self.DV, self.pre, self.wdepth, self.dks = DK, DV, pre, wdepth, dks
        self.mpar, self.cpar, self.fprio = mpar, cpar, fprio
    def A(self, s):
        self.L.append("  " + s if not s.endswith(":") else s)
    def C(self, s):
        self.L.append("  ; " + s)

    def stamp(self, idx):
        if self.diag or self.echo:
            self.A(f"s_memrealtime s[{64+2*idx}:{65+2*idx}]")
    def dump_stamps(self, n, vt):
        if not self.diag:
            return
        A = self.A
        A("s_waitcnt lgkmcnt(0)")
        A("s_lshl_b32 s60, s2, 3"); A("s_add_u32 s60, s60, s3"); A("s_lshl_b32 s60, s60, 7")
        A(f"s_add_u32 s60, s60, {WS_DIAG:#x}")
        A(f"v_mov_b32 v{vt}, s60")
        A("s_mov_b64 exec, 1")
        for j in range(n):
            A(f"v_mov_b32 v{vt+2}, s{64+2*j}"); A(f"v_mov_b32 v{vt+3}, s{65+2*j}")
            A(f"global_store_dwordx2 v{vt}, v[{vt+2}:{vt+3}], s[40:41] offset:{8*j}")
        A("s_getreg_b32 s60, hwreg(HW_REG_XCC_ID)")
        A(f"v_mov_b32 v{vt+2}, s60")
        A(f"global_store_dword v{vt}, v{vt+2}, s[40:41] offset:120")
        A("s_mov_b64 exec, -1")

    def row_allreduce(self, op, r):
        A = self.A
        for m in ("quad_perm:[1,0,3,2]", "quad_perm:[2,3,0,1]", "row_half_mirror", "row_mirror"):
            A("s_nop 1")
            A(f"v_{op}_f32_dpp v{r}, v{r}, v{r} {m} row_mask:0xf bank_mask:0xf")
    def wave_allreduce_add(self, r, t, op="add"):
        A = self.A
        self.row_allreduce(op, r)
        for sw in ("v_permlane16_swap_b32", "v_permlane32_swap_b32"):
            A(f"v_mov_b32 v{t}, v{r}")
            A("s_nop 1")
            A(f"{sw} v{r}, v{t}")
            A(f"v_{op}_f32 v{r}, v{r}, v{t}")
    def rnd(self, d, s):
        self.A(f"v_cvt_pk_bf16_f32 v{d}, 0, v{s}")

    def layernorm(self, X, n, T, P, unpack_after=True):
        A = self.A
        s, t, q, d = T, T + 1, T + 2, T + 3
        red = (lambda r: self.wave_allreduce_add(r, t)) if n == 8 else (lambda r: self.row_allreduce("add", r))
        A(f"v_add_f32 v{s}, v{X}, v{X+1}")
        for i in range(2, n):
            A(f"v_add_f32 v{s}, v{s}, v{X+i}")
        red(s)
        A(f"v_mul_f32 v{s}, {f32(1.0/512)}, v{s}")
        A(f"v_sub_f32 v{d}, v{X}, v{s}")
        A(f"v_mul_f32 v{q}, v{d}, v{d}")
        for i in range(1, n):
            dd = d if i % 2 == 0 else t
            A(f"v_sub_f32 v{dd}, v{X+i}, v{s}")
            A(f"v_fmac_f32 v{q}, v{dd}, v{dd}")
        red(q)
        A(f"v_mul_f32 v{q}, {f32(1.0/512)}, v{q}")
        self.rnd(s, s)
        self.rnd(q, q)
        A(f"v_add_f32 v{q}, {f32(1e-5)}, v{q}")
        self.rnd(q, q)
        A(f"v_sqrt_f32 v{q}, v{q}")
        A("s_nop 0")
        self.rnd(q, q)
        A(f"v_rcp_f32 v{q}, v{q}")
        for i in range(n):
            A(f"v_sub_f32 v{X+i}, v{X+i}, v{s}")
        for i in range(n):
            self.rnd(X + i, X + i)
        for i in range(n):
            A(f"v_mul_f32 v{X+i}, v{X+i}, v{q}")
        for i in range(n // 2):
            A(f"v_cvt_pk_bf16_f32 v{P+i}, v{X+2*i}, v{X+2*i+1}")
        if unpack_after:
            self.unpack(X, P, n // 2)
    def unpack(self, X, P, n):
        for i in range(n):
            self.A(f"v_lshlrev_b32 v{X+2*i}, 16, v{P+i}")
            self.A(f"v_and_b32 v{X+2*i+1}, 0xffff0000, v{P+i}")

    def slabload(self, dst, srd, voff, stride, flags, last_inc=None, pace=None, cont=False):
        A = self.A
        for e in range(8):
            r = dst + 4 * e
            if pace is not None and (e >= pace or cont):
                A(f"s_waitcnt vmcnt({pace-1})")
            A(f"buffer_load_dwordx4 v[{r}:{r+3}], v{voff}, {srd}, s50 offen {flags}".rstrip())
            inc = stride if e < 7 else last_inc
            if inc is not None:
                A(f"s_add_u32 s50, s50, {inc}")
    def slabperm(self, dst, src):
        A = self.A
        for d in range(4):
            for hf in range(2):
                jj = 2 * d + hf
                for q in range(4):
                    A(f"v_perm_b32 v{dst + 4*jj + q}, v{src + 4*(2*q+1) + d}, v{src + 4*(2*q) + d}, s{48 + hf}")
    def slabmfma(self, RD, RA, B, first):
        A = self.A
        for jj in range(8):
            b = B + 4 * jj
            c = "0" if first else f"v[{RD+4*jj}:{RD+4*jj+3}]"
            A(f"v_mfma_f32_16x16x32_bf16 v[{RD+4*jj}:{RD+4*jj+3}], v[{RA}:{RA+3}], v[{b}:{b+3}], {c}")

    def spin_begin(self, lab):
        self.A(f"s_mov_b32 s55, {SPIN_MAX}")
        self.A(f"{lab}:")
    def spin_end(self, lab, sleep):
        A = self.A
        A(f"s_sleep {sleep}")
        A("s_sub_u32 s55, s55, 1")
        A("s_cmp_lg_u32 s55, 0")
        A(f"s_cbranch_scc1 {lab}")
    def xl_reduce4(self, R):
        A = self.A
        A("s_nop 0")
        for d in range(2):
            A(f"v_permlane32_swap_b32 v{R+d}, v{R+d+2}")
        for d in range(2):
            A(f"v_add_f32 v{R+d}, v{R+d}, v{R+d+2}")
        A("s_nop 1")
        A(f"v_permlane16_swap_b32 v{R}, v{R+1}")
        A(f"v_add_f32 v{R}, v{R}, v{R+1}")
        A("s_nop 1")
        A(f"v_add_f32_dpp v{R}, v{R}, v{R} row_ror:8 row_mask:0xf bank_mask:0xf")

    def gen(self):
        A, C = self.A, self.C
        self.L.append(HEADER.rstrip())
        self.L.append(f"; @launch grid=(256,1,1) block=(512,1,1) lds={LDS_BYTES}")
        self.L.append('.amdgcn_target "amdgcn-amd-amdhsa--gfx950"')
        self.L.append(".text"); self.L.append(f".globl {NAME}"); self.L.append(".p2align 8")
        self.L.append(f".type {NAME},@function"); self.L.append(f"{NAME}:")
        A("s_cmp_ge_u32 s2, 256")
        A("s_cbranch_scc1 L_end")
        self.stamp(0)
        A("s_load_dwordx16 s[16:31], s[0:1], 0")
        A("s_load_dwordx8 s[32:39], s[0:1], 64")
        A("s_load_dwordx2 s[40:41], s[0:1], 96")
        A("v_lshrrev_b32 v1, 6, v0")
        A("v_and_b32 v2, 15, v0")
        A("v_readfirstlane_b32 s3, v1")
        A("v_bfe_u32 v3, v0, 4, 2")
        A("v_and_b32 v4, 63, v0")
        C("decode: h = 4*(wg&7) + ((wg>>3)&3); b = (wg>>5)&3; side = wg>>7")
        if self.hmap == 0:
            A("s_and_b32 s4, s2, 7"); A("s_lshl_b32 s4, s4, 2")
            A("s_bfe_u32 s5, s2, 0x20003"); A("s_or_b32 s4, s4, s5")
            A("s_bfe_u32 s5, s2, 0x20005")
            A("s_lshr_b32 s6, s2, 7")
        else:
            A("s_lshr_b32 s4, s2, 3")
            A("s_bfe_u32 s5, s2, 0x20001")
            A("s_and_b32 s6, s2, 1")
        A("s_lshl_b32 s59, s5, 5"); A("s_or_b32 s59, s59, s4"); A("s_lshl_b32 s59, s59, 1"); A("s_or_b32 s59, s59, s6")
        C("s59 = producer index b*64 + 2h + side")
        A("s_cmp_ge_u32 s3, 4")
        A("s_cbranch_scc1 L_helper")
        self.stream()
        self.helper()
        A("L_end:")
        A("s_endpgm")
        L = self.L
        L.append('.section .rodata,"a"'); L.append(".p2align 6"); L.append(f".amdhsa_kernel {NAME}")
        L.append("  .amdhsa_next_free_vgpr 256"); L.append("  .amdhsa_next_free_sgpr 102"); L.append("  .amdhsa_accum_offset 256")
        L.append("  .amdhsa_group_segment_fixed_size 0"); L.append("  .amdhsa_kernarg_size 104")
        L.append("  .amdhsa_user_sgpr_count 2"); L.append("  .amdhsa_user_sgpr_kernarg_segment_ptr 1")
        L.append("  .amdhsa_system_sgpr_workgroup_id_x 1")
        L.append("  .amdhsa_float_denorm_mode_32 3")
        L.append(".end_amdhsa_kernel")
        return "\n".join(L) + "\n"

    def stream(self):
        A, C = self.A, self.C
        RING = 64
        P = 24
        Q = 8
        S = 40
        ACC = 48
        PLO, PHI = 12, 13
        VOFF = 5
        fl = self.kvflags
        DK, DV, pre = self.DK, self.DV, self.pre
        C("===== stream waves =====")
        A("v_lshlrev_b32 v5, 4, v2")
        if self.pat == "A":
            A("v_lshl_or_b32 v5, v3, 12, v5")
            A("v_lshl_or_b32 v5, v1, 14, v5")
        else:
            wp, tp = {"B": (12, 14), "C": (14, 12)}[self.pat]
            A("v_lshl_or_b32 v5, v3, 8, v5")
            A(f"v_lshl_or_b32 v56, v1, {wp}, v5")
            for t in range(1, 4):
                A(f"v_add_u32 v{56+t}, {t << tp:#x}, v56")
        A("s_lshl_b32 s7, s59, 19")
        A("s_mov_b32 s10, 0x80000"); A("s_mov_b32 s11, 0x20000")
        A("s_mov_b32 s14, 0x80000"); A("s_mov_b32 s15, 0x20000")
        A("s_mov_b32 s46, 0x80000"); A("s_mov_b32 s47, 0x20000")
        A("s_mov_b32 s50, 0")
        A("s_waitcnt lgkmcnt(0)")
        A("s_add_u32 s8, s18, s7"); A("s_addc_u32 s9, s19, 0")
        issued = []
        def load(slot, srd, so, tag=None):
            r = RING + 4 * slot
            if self.pat == "A":
                A(f"buffer_load_dwordx4 v[{r}:{r+3}], v{VOFF}, {srd}, {so} offen offset:{(slot % 16)*256} {fl}".rstrip())
            else:
                A(f"buffer_load_dwordx4 v[{r}:{r+3}], v{56 + (slot % 16)//4}, {srd}, {so} offen offset:{(slot % 4)*1024} {fl}".rstrip())
            issued.append(tag)
        def wait(tag):
            A(f"s_waitcnt vmcnt({len(issued) - 1 - issued.index(tag)})")
        def swait(D):
            A(f"s_waitcnt vmcnt({D-1})")
            if self.adel:
                self.nlab += 1
                A(f"s_cbranch_vccnz L_ad{self.nlab}")
                A(f"s_waitcnt vmcnt({D-1-self.adel})")
                A(f"L_ad{self.nlab}:")
        if self.bal:
            A(f"s_mov_b64 vcc, {-self.binit}")
        elif self.adel:
            A(f"s_bitcmp{1-self.apar}_b32 s2, 0")
            A("s_cselect_b64 vcc, -1, 0")
        def bal(j, vph=False):
            if not self.bal:
                return
            self.nlab += 1
            if j == 8:
                A("s_cmp_ge_i32 s54, s62" if vph else "s_cmp_lg_u32 s3, 0")
                A(f"s_cbranch_scc1 L_bl{self.nlab}")
                A("s_mov_b64 exec, 1")
                A("global_atomic_add v61, v62, v63, s[40:41] sc0 sc1")
                A("s_mov_b64 exec, -1")
                A(f"L_bl{self.nlab}:")
            elif j == 0:
                A("s_cmp_gt_i32 s54, s62" if vph else "s_cmp_lg_u32 s3, 0")
                A(f"s_cbranch_scc1 L_bl{self.nlab}")
                A("v_subrev_u32 v61, s61, v61")
                A(f"s_add_u32 s61, s61, {1 << self.tlog}")
                A("s_mov_b64 exec, 1")
                A(f"ds_write_b32 v59, v61 offset:{RK}")
                A("s_mov_b64 exec, -1")
                A(f"L_bl{self.nlab}:")
            elif j == 2:
                A(f"ds_read_b32 v58, v59 offset:{RK}")
            elif j == 4:
                A("s_waitcnt lgkmcnt(0)")
                A(f"v_cmp_le_i32 vcc, {self.thr}, v58")
        for gi in range(pre):
            for j in range(16):
                n = 16 * gi + j
                dd = self.dks
                if dd and n >= dd:
                    swait(dd)
                load(n, "s[8:11]", "s50", (gi, j))
            A("s_add_u32 s50, s50, 0x10000")
        A("s_add_u32 s12, s20, s7"); A("s_addc_u32 s13, s21, 0")
        A("s_mov_b32 s52, 0xaaaaaaaa"); A("s_mov_b32 s53, 0xaaaaaaaa")
        A("s_mov_b32 s56, 0xcccccccc"); A("s_mov_b32 s57, 0xcccccccc")
        A("v_lshlrev_b32 v7, 4, v2")
        if self.bal:
            A(f"s_lshr_b32 s61, s2, {self.tlog}"); A("s_lshl_b32 s61, s61, 7"); A(f"s_add_u32 s61, s61, {WS_BAL:#x}")
            A("v_mov_b32 v62, s61"); A("v_mov_b32 v63, 1"); A("v_mov_b32 v59, 0")
            A(f"v_mov_b32 v61, {self.thr - 1 + self.binit}")
            A("s_mov_b32 s61, 0")
            A("s_cmp_eq_u32 s3, 0"); A(f"s_cselect_b32 s62, {self.bend}, -1")
            A(f"ds_write_b32 v59, v61 offset:{RK}")
            A("s_waitcnt lgkmcnt(0)")
        self.stamp(1)
        A("s_barrier")
        A(f"ds_read_b128 v[{Q}:{Q+3}], v7 offset:{QP}")
        self.stamp(2)
        A("s_waitcnt lgkmcnt(0)")
        def qk(slots):
            for d in range(4):
                for slot in slots:
                    r = RING + 4 * slot
                    p = P + slot % 16
                    c = "0" if d == 0 else f"v{p}"
                    A(f"v_dot2_f32_bf16 v{p}, v{r+d}, v{Q+d}, {c}")
        def treduce(dst, mid=()):
            C("transposing reduction: lane (g,c) <- score of load c, key g")
            for t in range(8):
                A(f"v_add_f32_dpp v{P+t}, v{P+t}, v{P+t} row_ror:8 row_mask:0xf bank_mask:0x3")
            for t in range(8):
                A(f"v_add_f32_dpp v{P+t}, v{P+t+8}, v{P+t+8} row_ror:8 row_mask:0xf bank_mask:0xc")
            for t in range(4):
                A(f"v_add_f32_dpp v{P+t}, v{P+t}, v{P+t} row_half_mirror row_mask:0xf bank_mask:0x5")
            for t in range(4):
                A(f"v_add_f32_dpp v{P+t}, v{P+t+4}, v{P+t+4} row_half_mirror row_mask:0xf bank_mask:0xa")
            U0, U1, T0, T1 = P + 8, P + 9, P + 10, P + 11
            A(f"v_cndmask_b32 v{U0}, v{P+1}, v{P}, s[52:53]")
            A(f"v_cndmask_b32 v{U1}, v{P+3}, v{P+2}, s[52:53]")
            A(f"v_cndmask_b32 v{T0}, v{P}, v{P+1}, s[52:53]")
            A(f"v_cndmask_b32 v{T1}, v{P+2}, v{P+3}, s[52:53]")
            A("s_nop 1")
            A(f"v_add_f32_dpp v{T0}, v{U0}, v{T0} quad_perm:[1,0,3,2] row_mask:0xf bank_mask:0xf")
            A(f"v_add_f32_dpp v{T1}, v{U1}, v{T1} quad_perm:[1,0,3,2] row_mask:0xf bank_mask:0xf")
            A(f"v_cndmask_b32 v{U0}, v{T1}, v{T0}, s[56:57]")
            A(f"v_cndmask_b32 v{U1}, v{T0}, v{T1}, s[56:57]")
            if mid:
                for m in mid:
                    A(m)
            else:
                A("s_nop 1")
            A(f"v_add_f32_dpp v{dst}, v{U0}, v{U1} quad_perm:[2,3,0,1] row_mask:0xf bank_mask:0xf")
        C("catch-up over the prefetched groups; group `pre` is loaded into ring slots 0..15 meanwhile")
        nxt = 0
        for gi in range(pre):
            for j in range(0, 16, 2):
                wait((gi, j + 1))
                qk([16 * gi + j, 16 * gi + j + 1])
                if gi == 0:
                    want = j + 2 if (j < 8 or pre == 1) else 8
                elif gi == 1:
                    want = 8 + j // 2 + 1
                else:
                    want = 16
                while nxt < want:
                    load(nxt, "s[8:11]", "s50", (pre, nxt)); nxt += 1
            A("s_nop 0")
            treduce(S + 8 - pre + gi)
        assert nxt == 16
        for j in range(16 - DK):
            wait((pre, j))
            qk([j])
        A(f"s_mov_b32 s54, {pre}")
        A("s_branch L_kmid")
        A("L_kloop:")
        for j in range(16 - DK):
            swait(DK)
            load(j + DK, "s[8:11]", "s50")
            qk([j])
            if j < 8:
                bal(j)
        A("L_kmid:")
        if self.prog:
            A("s_memrealtime s[90:91]")
        C("the rest refills from the next group (V group 0 after the last K group)")
        A("s_add_u32 s50, s50, 0x10000")
        A("s_cmp_eq_u32 s54, 7")
        A("s_cselect_b32 s44, s12, s8"); A("s_cselect_b32 s45, s13, s9"); A("s_cselect_b32 s51, 0, s50")
        for j in range(16 - DK, 16):
            swait(DK)
            load(j + DK - 16, "s[44:47]", "s51")
            qk([j])
            if j == 16 - DK:
                bal(8)
        if self.prog:
            A("s_waitcnt lgkmcnt(0)")
            A("s_mov_b32 m0, s54"); A("s_nop 0")
            A("v_writelane_b32 v60, s90, m0")
        for i in range(7):
            A(f"v_mov_b32 v{S+i}, v{S+i+1}")
        treduce(S + 7, ("s_add_u32 s54, s54, 1", "s_cmp_lt_u32 s54, 8"))
        A("s_cbranch_scc1 L_kloop")
        self.stamp(3)
        A("s_mov_b32 s50, 0")
        for j in range(DK, DV):
            load(j, "s[12:15]", "s50")
        C("softmax over this row's 128 keys (true max of the partial; partials are merged exactly later)")
        M, Ls = 14, 15
        cs = math.log2(math.e) / math.sqrt(128.0)
        A(f"s_mov_b32 s58, {f32(cs)}")
        A(f"v_max3_f32 v{M}, v{S}, v{S+1}, v{S+2}")
        A(f"v_max3_f32 v{M}, v{M}, v{S+3}, v{S+4}")
        A(f"v_max3_f32 v{M}, v{M}, v{S+5}, v{S+6}")
        A(f"v_max_f32 v{M}, v{M}, v{S+7}")
        self.row_allreduce("max", M)
        A(f"v_mul_f32 v{M}, s58, v{M}")
        for i in range(8):
            A(f"v_fma_f32 v{S+i}, v{S+i}, s58, -v{M}")
        for i in range(8):
            A(f"v_exp_f32 v{S+i}, v{S+i}")
        for i in range(8):
            A(f"v_mov_b32 v{ACC+i}, 0")
        A(f"v_add_f32 v{Ls}, v{S}, v{S+1}")
        for i in range(2, 8):
            A(f"v_add_f32 v{Ls}, v{Ls}, v{S+i}")
        self.row_allreduce("add", Ls)
        A(f"v_lshrrev_b32 v7, 4, v0")
        A(f"v_lshlrev_b32 v16, 2, v7")
        A(f"v_min_u32 v{M}, -2, v{M}")
        A(f"v_min_u32 v{Ls}, -2, v{Ls}")
        A(f"ds_write_b32 v16, v{M} offset:{MLM}")
        A(f"ds_write_b32 v16, v{Ls} offset:{MLL}")
        A(f"v_mul_u32_u24 v17, {OBS}, v7")
        A("v_lshl_add_u32 v17, v2, 4, v17")
        A("s_mov_b32 s54, 0")
        assert DV >= DK
        def pv(slot):
            r = RING + 4 * slot
            for d in range(4):
                A(f"v_dot2c_f32_bf16_dpp v{ACC+2*d}, v{PLO}, v{r+d} row_newbcast:{slot} row_mask:0xf bank_mask:0xf")
                A(f"v_dot2c_f32_bf16_dpp v{ACC+2*d+1}, v{PHI}, v{r+d} row_newbcast:{slot} row_mask:0xf bank_mask:0xf")
        A("L_vloop:")
        A(f"v_cvt_pk_bf16_f32 v{PLO}, v{S}, 0")
        A(f"v_cvt_pk_bf16_f32 v{PHI}, 0, v{S}")
        for i in range(7):
            A(f"v_mov_b32 v{S+i}, v{S+i+1}")
        for j in range(16):
            if j == 16 - DV and self.prog:
                A("s_memrealtime s[90:91]")
            if j == 16 - DV:
                A("s_add_u32 s50, s50, 0x10000")
            swait(DV)
            load((j + DV) % 16, "s[12:15]", "s50")
            pv(j)
            bal(j, True)
        if self.prog:
            A("s_waitcnt lgkmcnt(0)")
            A("s_add_u32 m0, s54, 8"); A("s_nop 0")
            A("v_writelane_b32 v60, s90, m0")
        A("s_add_u32 s54, s54, 1")
        A("s_cmp_lt_u32 s54, 8")
        A("s_cbranch_scc1 L_vloop")
        self.stamp(4)
        A("s_nop 1")
        for d in range(4):
            A(f"v_cvt_pk_bf16_f32 v{20+d}, v{ACC+2*d}, v{ACC+2*d+1}")
        A(f"ds_write_b128 v17, v[20:23] offset:{OB}")
        A("s_waitcnt lgkmcnt(0)")
        A("s_barrier")
        self.dump_stamps(5, 24)
        if self.prog:
            A("s_lshl_b32 s60, s2, 2"); A("s_add_u32 s60, s60, s3"); A("s_lshl_b32 s60, s60, 6")
            A(f"s_add_u32 s60, s60, {WS_DIAG + 0x80000:#x}")
            A("v_lshlrev_b32 v24, 2, v4")
            A("v_add_u32 v24, s60, v24")
            A("s_mov_b64 exec, 0xffff")
            A("global_store_dword v24, v60, s[40:41]")
        A("s_endpgm")

    TB = 100
    def tag4(self, R, n=4):
        for i in range(n):
            self.A(f"v_and_or_b32 v{R+i}, v{R+i}, v15, s{96 + i % 4}")
    def chk(self, acc, R, n, D=None):
        D = R if D is None else D
        for i in range(n):
            self.A(f"v_xor_b32 v{D+i}, s{96 + i % 4}, v{R+i}")
        self.A(f"v_or3_b32 v{acc}, v{D}, v{D+1}, v{D+2}")
        i = 3
        while i < n:
            if i + 1 < n:
                self.A(f"v_or3_b32 v{acc}, v{acc}, v{D+i}, v{D+i+1}"); i += 2
            else:
                self.A(f"v_or_b32 v{acc}, v{acc}, v{D+i}"); i += 1
    def chk_branch(self, acc, lab, sleep):
        A = self.A
        A(f"v_cmp_ne_u32_sdwa vcc, v{acc}, v10 src0_sel:BYTE_0 src1_sel:DWORD")
        A(f"s_cbranch_vccz {lab}_done")
        self.spin_end(lab, sleep)
        A(f"{lab}_done:")

    def set_tag(self):
        for k in range(4):
            self.A(f"s_bfe_u32 s{96+k}, s63, {0x80000 + 8*k:#x}")

    def helper(self):
        A, C = self.A, self.C
        wf, mf = self.wflags, self.mflags
        RA, RD = 16, 32
        RB = 64
        ST = 192
        T = 224
        A("L_helper:")
        C("===== helper waves =====")
        A("s_sub_u32 s7, s3, 4")
        if self.touch:
            C("helper 2 touches one word of every buffer this CU uses later (address translation warm-up)")
            A("s_cmp_lg_u32 s7, 2")
            A("s_cbranch_scc1 L_notouch")
            A("s_lshl_b32 s42, s59, 19"); A("v_mov_b32 v16, s42")
            A("s_lshl_b32 s42, s4, 17"); A("v_mov_b32 v17, s42")
            A("s_lshl_b32 s42, s2, 7"); A("s_add_u32 s42, s42, 0xa0000"); A("v_mov_b32 v18, s42")
            A("s_lshr_b32 s42, s2, 3"); A("s_min_u32 s42, s42, 27"); A("s_lshl_b32 s42, s42, 16"); A("v_mov_b32 v19, s42")
            A("v_mov_b32 v20, 0")
            A("s_mov_b64 exec, 1")
            A("s_waitcnt lgkmcnt(0)")
            tt = {"v": (16, 20), "wo": (17, 24), "ws": (18, 40), "w2": (19, 32), "b1": (20, 30), "b2": (20, 34), "out": (20, 36)}
            for i, k in enumerate(self.touch):
                A(f"global_load_dword v{24+i}, v{tt[k][0]}, s[{tt[k][1]}:{tt[k][1]+1}] nt")
            A("s_mov_b64 exec, -1")
            A("L_notouch:")
        if self.bal:
            C("the first WG of a team clears the team's progress counter (used for pacing only)")
            A(f"s_and_b32 s42, s2, {(1 << self.tlog) - 1}"); A("s_lshl_b32 s42, s42, 2"); A("s_or_b32 s42, s42, s7")
            A("s_cmp_lg_u32 s42, 2")
            A("s_cbranch_scc1 L_nobal")
            A(f"s_lshr_b32 s42, s2, {self.tlog}"); A("s_lshl_b32 s42, s42, 7"); A(f"s_add_u32 s42, s42, {WS_BAL:#x}")
            A("v_mov_b32 v16, s42"); A("v_mov_b32 v17, 0")
            A("s_mov_b64 exec, 1")
            A("s_waitcnt lgkmcnt(0)")
            A("global_store_dword v16, v17, s[40:41] sc1")
            A("s_mov_b64 exec, -1")
            A("L_nobal:")
        if self.bare == 1:
            A("s_waitcnt lgkmcnt(0)")
            A("s_barrier"); A("s_barrier"); A("s_branch L_hend")
        A("s_mov_b32 s48, 0x05040100"); A("s_mov_b32 s49, 0x07060302")
        A("v_lshlrev_b32 v6, 4, v4")
        A("v_mov_b32 v10, 0")
        A("v_mov_b32 v15, 0xffffff00")
        A("s_mov_b32 s11, 0x20000"); A("s_mov_b32 s15, 0x20000")
        C("s62 = MLP unit of this WG (>= NUNIT: none)")
        A("s_lshr_b32 s62, s2, 1")
        A("s_and_b32 s42, s2, 1"); A(f"s_cmp_eq_u32 s42, {self.mpar}")
        A("s_cselect_b32 s62, s62, 255")
        A("s_cmp_ge_u32 s7, 2")
        A("s_cbranch_scc1 L_nofront")
        A("s_cmp_eq_u32 s7, 0")
        A("s_cbranch_scc1 L_front")
        A(f"s_cmp_ge_u32 s62, {NUNIT}")
        A("s_cbranch_scc1 L_nofront")
        if "s1" in self.skip:
            A("s_branch L_nofront")
        A("L_front:")
        C("front units, 64 rows x 128 cols for all 4 batch rows. helper 0: wq rows 64(wg>>5).., cols 128h..")
        C("helper 1: w1 rows 64(u&7).., cols 128(u>>3)..")
        A(f"s_setprio {self.fprio}")
        A("s_lshr_b32 s42, s2, 5" if self.hmap == 0 else "s_and_b32 s42, s2, 7"); A("s_and_b32 s43, s62, 7")
        A("s_lshr_b32 s44, s62, 3")
        A("s_mov_b32 s51, 3584")
        A("s_cmp_eq_u32 s7, 0")
        A("s_cselect_b32 s53, s42, s43")
        A("s_cselect_b32 s44, s4, s44")
        A("s_cselect_b32 s51, 8192, s51")
        A("s_lshl_b32 s10, s51, 9")
        A("s_mul_i32 s52, s51, 25")
        A("s_mul_i32 s50, s53, s51"); A("s_lshl_b32 s50, s50, 6"); A("s_lshl_b32 s44, s44, 8"); A("s_add_u32 s50, s50, s44")
        A("s_lshl_b32 s42, s51, 3")
        A("v_mul_u32_u24 v5, s42, v3")
        A("v_lshl_add_u32 v5, v2, 4, v5")
        A("v_lshlrev_b32 v12, 10, v3")
        A("v_lshl_add_u32 v12, v2, 4, v12")
        A("s_cmp_eq_u32 s7, 0")
        A("s_waitcnt lgkmcnt(0)")
        for t in range(4):
            A(f"global_load_dwordx4 v[{RB+32+4*t}:{RB+35+4*t}], v12, s[16:17] offset:{256*t}")
        C("the word the previous launch left only serves to pick a tag that differs from that launch's")
        A(f"s_load_dword s63, s[40:41], {WS_EP:#x}")
        A("s_cselect_b32 s8, s22, s28"); A("s_cselect_b32 s9, s23, s29")
        if "fld" in self.skip:
            A("s_mov_b32 s10, 0")
        self.slabload(RB + 96, "s[8:11]", 5, "s51", mf, last_inc="s52")
        self.slabload(ST, "s[8:11]", 5, "s51", mf)
        A("s_lshl_b32 s42, s7, 12")
        A("v_add_u32 v12, s42, v12")
        C("A operand: rows[i>>2][64*blk + 32n + 8kk]")
        A("v_lshrrev_b32 v13, 2, v2")
        A("v_lshlrev_b32 v13, 10, v13")
        A("v_lshl_add_u32 v13, v3, 4, v13")
        A("s_lshl_b32 s43, s53, 7"); A("s_add_u32 s42, s42, s43")
        A("v_add_u32 v13, s42, v13")
        A("s_mov_b32 s54, s7")
        A("s_waitcnt vmcnt(16)")
        self.stamp(1)
        A("L_ln:")
        self.unpack(RB, RB + 32, 16)
        self.layernorm(RB, 32, T, RB + 32, unpack_after=False)
        A("s_sub_u32 s54, s54, 1")
        A("s_cbranch_scc0 L_ln")
        for t in range(4):
            A(f"ds_write_b128 v12, v[{RB+32+4*t}:{RB+35+4*t}] offset:{XN + 256*t}")
        A("s_waitcnt vmcnt(8)")
        self.slabperm(RB + 64, RB + 96)
        A("s_waitcnt lgkmcnt(0)")
        A(f"ds_read_b128 v[{RA}:{RA+3}], v13 offset:{XN}")
        A(f"ds_read_b128 v[{RA+4}:{RA+7}], v13 offset:{XN+64}")
        A("s_add_u32 s63, s63, 0x61c88647")
        self.set_tag()
        A("s_waitcnt vmcnt(0)")
        self.slabperm(RB + 96, ST)
        A("s_waitcnt lgkmcnt(0)")
        self.slabmfma(RD, RA, RB + 64, True)
        self.slabmfma(RD, RA + 4, RB + 96, False)
        A("s_cmp_eq_u32 s7, 0")
        A("s_cbranch_scc1 L_qaddr")
        C("U[u][sub=c>>2][half][b=kk][c&3][4]")
        A("s_lshl_b32 s42, s62, 11"); A(f"s_add_u32 s42, s42, {WS_U:#x}")
        A("v_lshrrev_b32 v12, 2, v2"); A("v_lshlrev_b32 v12, 9, v12")
        A("v_lshl_add_u32 v12, v3, 6, v12")
        A("v_and_b32 v13, 3, v2"); A("v_lshl_add_u32 v12, v13, 4, v12")
        A("s_branch L_fst")
        A("L_qaddr:")
        C("Q[h][b=kk][s][half][c][4]")
        A("s_lshl_b32 s42, s4, 14"); A("s_lshl_b32 s43, s53, 9"); A("s_add_u32 s42, s42, s43")
        A(f"s_add_u32 s42, s42, {WS_Q:#x}")
        A("v_lshlrev_b32 v12, 12, v3")
        A("v_lshl_add_u32 v12, v2, 4, v12")
        A("L_fst:")
        A("v_add_u32 v12, s42, v12")
        for jj in range(8):
            A(f"v_and_or_b32 v{T+jj}, v{RD+4*jj}, v15, s{96 + jj % 4}")
        if "fst" not in self.skip:
            A(f"global_store_dwordx4 v12, v[{T}:{T+3}], s[40:41] sc1")
            A(f"global_store_dwordx4 v12, v[{T+4}:{T+7}], s[40:41] offset:256 sc1")
        self.stamp(2)
        A("s_cmp_lg_u32 s7, 0")
        A("s_cbranch_scc1 L_fdone")
        C("helper 0: gather the 8 partials of q[b][h], LDS init")
        A("s_lshl_b32 s42, s4, 14"); A("s_lshl_b32 s43, s5, 12"); A("s_add_u32 s42, s42, s43")
        A(f"s_add_u32 s42, s42, {WS_Q:#x}")
        A("v_add_u32 v12, s42, v6")
        A("v_lshlrev_b32 v8, 2, v4")
        A("v_mov_b32 v9, -1")
        A(f"ds_write_b32 v8, v9 offset:{MLM}")
        A("v_mov_b32 v9, s63")
        A(f"ds_write_b32 v10, v9 offset:{TAGL}")
        A("v_bfe_u32 v9, v4, 4, 1")
        A("v_lshlrev_b32 v9, 3, v9")
        A("v_lshl_add_u32 v9, v2, 4, v9")
        if "qpoll" in self.skip:
            A("s_branch L_sp_q_done")
        if self.qack:
            A("s_waitcnt vmcnt(0)")
        if self.qdelay:
            A(f"s_sleep {self.qdelay}")
        self.spin_begin("L_sp_q")
        for t in range(4):
            A(f"global_load_dwordx4 v[{RD+4*t}:{RD+4*t+3}], v12, s[40:41] offset:{1024*t} sc1")
        A("s_waitcnt vmcnt(0)")
        self.chk(13, RD, 16)
        self.chk_branch(13, "L_sp_q", self.qsleep)
        for d in range(4):
            A(f"v_add_f32 v{RD+d}, v{RD+d}, v{RD+4+d}")
            A(f"v_add_f32 v{RD+8+d}, v{RD+8+d}, v{RD+12+d}")
        for d in range(4):
            A(f"v_add_f32 v{RD+d}, v{RD+d}, v{RD+8+d}")
        for d in range(4):
            A(f"v_mov_b32 v{RD+4+d}, v{RD+d}")
        A("s_nop 1")
        for d in range(4):
            A(f"v_permlane32_swap_b32 v{RD+d}, v{RD+4+d}")
        for d in range(4):
            A(f"v_add_f32 v{RD+d}, v{RD+d}, v{RD+4+d}")
        for d in range(2):
            A(f"v_cvt_pk_bf16_f32 v{RD+d}, v{RD+2*d}, v{RD+2*d+1}")
        A(f"ds_write_b64 v9, v[{RD}:{RD+1}] offset:{QP}")
        A("L_fdone:")
        A("s_setprio 0")
        A("L_nofront:")
        A("s_waitcnt lgkmcnt(0)")
        self.stamp(3)
        A("s_barrier")
        self.stamp(10)
        if self.bare == 2:
            A("s_barrier"); A("s_branch L_hend")
        A(f"ds_read_b32 v13, v10 offset:{TAGL}")
        C("----- wo block: rows 128h.., cols 128j.. (paced; helper 2 keeps one more load in flight) -----")
        A("v_lshlrev_b32 v5, 4, v2")
        A("v_lshl_or_b32 v5, v3, 13, v5")
        A("s_lshl_b32 s50, s4, 17"); A("s_lshl_b32 s43, s7, 8"); A("s_add_u32 s50, s50, s43")
        A("s_mov_b32 s8, s24"); A("s_mov_b32 s9, s25"); A("s_mov_b32 s10, 0x400000")
        A("s_waitcnt lgkmcnt(0)")
        A("v_readfirstlane_b32 s63, v13")
        self.set_tag()
        A("s_cmp_eq_u32 s7, 2")
        A("s_cselect_b64 vcc, -1, 0")
        def wo_round(n):
            wd = self.wdepth
            for e in range(8):
                r = ST + 4 * e
                if e >= wd:
                    A(f"s_waitcnt vmcnt({wd})")
                    A(f"s_cbranch_vccnz L_wo{n}_{e}")
                    A(f"s_waitcnt vmcnt({wd-1})")
                    A(f"L_wo{n}_{e}:")
                A(f"buffer_load_dwordx4 v[{r}:{r+3}], v5, s[8:11], s50 offen {wf}".rstrip())
                A(f"s_add_u32 s50, s50, {1024 if e < 7 else 25*1024}")
            A("s_waitcnt vmcnt(0)")
            self.slabperm(RB + 32 * n, ST)
        wo_round(0)
        A("s_cmp_lg_u32 s7, 1")
        A("s_cbranch_scc1 L_not1")
        if self.mpar2 != self.mpar:
            A("s_lshr_b32 s62, s2, 1")
            A("s_and_b32 s42, s2, 1"); A(f"s_cmp_eq_u32 s42, {self.mpar2}")
            A("s_cselect_b32 s62, s62, 255")
        A(f"s_cmp_ge_u32 s62, {NUNIT}")
        A("s_cbranch_scc1 L_not1")
        if "s2" in self.skip:
            A("s_branch L_not1")
        C("stage 2 unit: r = u>>2 (hidden rows 64r..), cq = u&3 (cols 128cq..)")
        A("s_mov_b32 s51, s50")
        A("s_lshr_b32 s60, s62, 2"); A("s_and_b32 s61, s62, 3")
        A("s_lshl_b32 s50, s60, 16"); A("s_lshl_b32 s43, s61, 8"); A("s_add_u32 s50, s50, s43")
        A("s_mov_b32 s12, s32"); A("s_mov_b32 s13, s33"); A(f"s_mov_b32 s14, {1792*1024}")
        if "w2ld" in self.skip:
            A("s_mov_b32 s14, 0")
        self.slabload(ST, "s[12:15]", 5, 1024, mf, last_inc=25 * 1024, pace=self.w2p)
        self.slabload(RD, "s[12:15]", 5, 1024, mf, pace=self.w2p, cont=True)
        A("s_lshl_b32 s43, s60, 7")
        A("v_lshlrev_b32 v13, 4, v3")
        A("v_add_u32 v13, s43, v13")
        A(f"global_load_dwordx4 v[{T+16}:{T+19}], v13, s[30:31]")
        A(f"global_load_dwordx4 v[{T+20}:{T+23}], v13, s[30:31] offset:64")
        A("s_mov_b32 s50, s51")
        C("U[m*8 + 4t + (c&3)][2(r&1) + n][half][b=c>>2][kk][4]")
        A("v_and_b32 v12, 3, v2"); A("v_lshlrev_b32 v12, 11, v12")
        A("v_lshrrev_b32 v13, 2, v2"); A("v_lshl_add_u32 v12, v13, 6, v12")
        A("v_lshl_add_u32 v12, v3, 4, v12")
        A("s_lshr_b32 s42, s60, 1"); A("s_lshl_b32 s42, s42, 14")
        A("s_and_b32 s43, s60, 1"); A("s_lshl_b32 s43, s43, 10"); A("s_add_u32 s42, s42, s43")
        A(f"s_add_u32 s42, s42, {WS_U:#x}")
        A(f"v_add_u32 v{T}, s42, v12")
        A(f"v_add_u32 v{T+1}, 0x2000, v{T}")
        UU, W, BB = RB + 64, RB + 80, RB + 112
        if "upoll" in self.skip:
            A("s_waitcnt vmcnt(0)")
            A("s_branch L_sp_u_done")
        self.spin_begin("L_sp_u")
        for t in range(2):
            for q in range(4):
                A(f"global_load_dwordx4 v[{UU+16*t+4*q}:{UU+16*t+4*q+3}], v{T+t}, s[40:41] offset:{256*q} {self.ufl}")
        A("s_waitcnt vmcnt(0)")
        self.chk(13, UU, 32)
        self.chk_branch(13, "L_sp_u", 32)
        self.unpack(BB, T + 16, 8)
        for i in range(16):
            A(f"v_add_f32 v{UU+i}, v{UU+i}, v{UU+16+i}")
        for m in ("quad_perm:[1,0,3,2]", "quad_perm:[2,3,0,1]"):
            for i in range(16):
                A(f"v_add_f32_dpp v{UU+i}, v{UU+i}, v{UU+i} {m} row_mask:0xf bank_mask:0xf")
        for i in range(16):
            self.rnd(UU + i, UU + i)
        for i in range(16):
            A(f"v_add_f32 v{UU+i}, v{UU+i}, v{BB+i}")
        for i in range(16):
            self.rnd(UU + i, UU + i)
        C("gelu(tanh form) = u / (1 + exp(-2k(u + 0.044715 u^3)))")
        k2 = -2.0 * math.sqrt(2.0 / math.pi) * math.log2(math.e)
        A(f"s_mov_b32 s42, {f32(0.044715 * k2)}"); A(f"s_mov_b32 s43, {f32(k2)}")
        A("v_mov_b32 v12, s43")
        for i in range(16):
            A(f"v_mul_f32 v{W+i}, v{UU+i}, v{UU+i}")
        for i in range(16):
            A(f"v_fma_f32 v{W+i}, v{W+i}, s42, v12")
        for i in range(16):
            A(f"v_mul_f32 v{W+i}, v{W+i}, v{UU+i}")
        for i in range(16):
            A(f"v_exp_f32 v{W+i}, v{W+i}")
        for i in range(16):
            A(f"v_add_f32 v{W+i}, 1.0, v{W+i}")
        for i in range(16):
            A(f"v_rcp_f32 v{W+i}, v{W+i}")
        for i in range(16):
            A(f"v_mul_f32 v{UU+i}, v{UU+i}, v{W+i}")
        for d in range(8):
            A(f"v_cvt_pk_bf16_f32 v{RA+d}, v{UU+2*d}, v{UU+2*d+1}")
        self.slabperm(RB + 64, ST)
        self.slabperm(RB + 96, RD)
        self.slabmfma(RD, RA, RB + 64, True)
        self.slabmfma(RD, RA + 4, RB + 96, False)
        C("Z[b=kk][line 4cq + 2(c>>3) + half][r][(c&7)*4..]")
        A(f"v_mul_u32_u24 v12, {16*NZ*128}, v3")
        A("v_lshrrev_b32 v13, 3, v2")
        A(f"v_mul_u32_u24 v13, {2*NZ*128}, v13")
        A("v_add_u32 v12, v12, v13")
        A("v_and_b32 v13, 7, v2")
        A("v_lshl_add_u32 v12, v13, 4, v12")
        A(f"s_mul_i32 s42, s61, {4*NZ*128}"); A("s_lshl_b32 s43, s60, 7"); A("s_add_u32 s42, s42, s43")
        A(f"s_add_u32 s42, s42, {WS_Z:#x}")
        A("v_add_u32 v12, s42, v12")
        for jj in range(8):
            A(f"v_and_or_b32 v{T+jj}, v{RD+4*jj}, v15, s{96 + jj % 4}")
        if "zst" not in self.skip:
            A(f"global_store_dwordx4 v12, v[{T}:{T+3}], s[40:41] {self.zfl}")
            A(f"global_store_dwordx4 v12, v[{T+4}:{T+7}], s[40:41] offset:{NZ*128} {self.zfl}")
        A("s_mov_b64 vcc, 0")
        A("L_not1:")
        wo_round(1); wo_round(2); wo_round(3)
        self.stamp(4)
        if self.bare == 3:
            A("s_barrier"); A("s_branch L_hend")
        C("wait for the 16 (m,l) partials of this WG's stream waves")
        A("v_lshlrev_b32 v12, 2, v2")
        self.spin_begin("L_sp_m")
        A(f"ds_read_b32 v14, v12 offset:{MLM}")
        A(f"ds_read_b32 v11, v12 offset:{MLL}")
        A("s_waitcnt lgkmcnt(0)")
        A("v_max_u32 v13, v14, v11")
        A("v_cmp_eq_u32 vcc, -1, v13")
        A("s_cbranch_vccz L_sp_m_done")
        self.spin_end("L_sp_m", 4)
        A("L_sp_m_done:")
        CF = T + 28
        A("v_lshlrev_b32 v13, 4, v3")
        A(f"ds_read_b128 v[{CF}:{CF+3}], v13 offset:{MLM}")
        A(f"v_mov_b32 v{T}, v14")
        self.row_allreduce("max", T)
        A(f"v_sub_f32 v14, v14, v{T}")
        A("v_exp_f32 v14, v14")
        A("s_waitcnt lgkmcnt(0)")
        for r in range(4):
            A(f"v_sub_f32 v{CF+r}, v{CF+r}, v{T}")
        A(f"v_mul_f32 v{T+2}, v14, v11")
        for r in range(4):
            A(f"v_exp_f32 v{CF+r}, v{CF+r}")
        A("s_cmp_lg_u32 s7, 2")
        A("s_cbranch_scc1 L_nopub")
        C("helper 2 publishes {M, tag, L, tag} of this WG")
        self.row_allreduce("add", T + 2)
        A(f"v_mov_b32 v{T+1}, s63"); A(f"v_mov_b32 v{T+3}, s63")
        A(f"s_mul_i32 s42, s59, {self.mls}"); A(f"s_add_u32 s42, s42, {self.wsml:#x}")
        A("v_mov_b32 v12, s42")
        A("s_mov_b64 exec, 1")
        if "ml" not in self.skip:
            A(f"global_store_dwordx4 v12, v[{T}:{T+3}], s[40:41] sc1")
        A("s_mov_b64 exec, -1")
        A("L_nopub:")
        G, XV, COL, F = T + 24, T + 25, T + 26, T + 8
        TG = T + 22
        C("addresses for the tail")
        A(f"v_mul_u32_u24 v8, {OBS}, v2")
        A("v_lshl_add_u32 v8, v3, 4, v8")
        C("S row + j*512 + (c>>3)*256 + (kk>>1)*128 + (c&7)*16 + (kk&1)*8")
        A("s_lshl_b32 s42, s7, 9"); A("s_lshl_b32 s43, s59, 11"); A("s_add_u32 s42, s42, s43")
        A("v_lshrrev_b32 v9, 3, v2"); A("v_lshlrev_b32 v9, 8, v9")
        A("v_lshrrev_b32 v13, 1, v3"); A("v_lshl_add_u32 v9, v13, 7, v9")
        A("v_and_b32 v13, 7, v2"); A("v_lshl_add_u32 v9, v13, 4, v9")
        A("v_and_b32 v13, 1, v3"); A("v_lshl_add_u32 v9, v13, 3, v9")
        A("v_add_u32 v9, s42, v9")
        A("v_lshlrev_b32 v13, 4, v13")
        A(f"v_lshrrev_b32 v{TG}, v13, s63")
        A(f"v_bfe_u32 v{TG+1}, v{TG}, 8, 8")
        A(f"v_and_b32 v{TG}, 0xff, v{TG}")
        A(f"v_mov_b32 v{COL}, 0")
        A("v_mov_b32 v7, 0")
        A("s_mov_b32 s8, s40"); A("s_mov_b32 s9, s41"); A("s_mov_b32 s10, 0x80000")
        C("s58 = 1 on consumer waves: helper 3 of WGs >= 128 of one parity")
        A(f"s_and_b32 s42, s2, 0x81"); A("s_lshl_b32 s43, s7, 1"); A("s_or_b32 s42, s42, s43")
        A(f"s_cmp_eq_u32 s42, {0x86 | self.cpar:#x}")
        A("s_cselect_b32 s58, 1, 0")
        A("s_cbranch_scc0 L_nog")
        if "cons" in self.skip:
            A("s_mov_b32 s58, 0")
            A("s_branch L_nog")
        C("consumer: batch bc, line cb: gate and merge factors")
        A("s_bfe_u32 s62, s2, 0x60001")
        A("s_lshr_b32 s60, s62, 4"); A("s_and_b32 s61, s62, 15")
        A("v_and_b32 v12, 7, v4")
        C("S poll address: S[bc][(l>>3) + 8it][line cb] + (l&7)*16")
        A("s_lshl_b32 s42, s60, 17"); A("s_lshl_b32 s43, s61, 7"); A("s_add_u32 s42, s42, s43")
        A("v_lshrrev_b32 v13, 3, v4"); A("v_lshlrev_b32 v13, 11, v13")
        A("v_lshl_add_u32 v7, v12, 4, v13")
        A("v_add_u32 v7, s42, v7")
        C("column = 64(cb>>1) + 4(cb&1) + 8(l&7) + 2(l>>5) + ((l>>4)&1)")
        A("v_lshlrev_b32 v12, 3, v12")
        A("v_lshrrev_b32 v13, 5, v4"); A("v_lshl_add_u32 v12, v13, 1, v12")
        A("v_bfe_u32 v13, v4, 4, 1"); A("v_add_u32 v12, v12, v13")
        A("s_lshr_b32 s42, s61, 1"); A("s_lshl_b32 s42, s42, 6")
        A("s_and_b32 s43, s61, 1"); A("s_lshl_b32 s43, s43, 2"); A("s_add_u32 s42, s42, s43")
        A(f"v_add_u32 v{COL}, s42, v12")
        A(f"v_lshlrev_b32 v13, 1, v{COL}")
        A(f"global_load_ushort v{G}, v13, s[34:35]")
        A("s_lshl_b32 s42, s60, 10")
        A(f"v_add_u32 v{COL}, s42, v13")
        A(f"global_load_ushort v{XV}, v{COL}, s[16:17]")
        A(f"s_mul_i32 s42, s62, {NZ*128}"); A(f"s_add_u32 s42, s42, {WS_Z:#x}")
        A("v_add_u32 v12, s42, v6")
        self.spin_begin("L_sp_z")
        C("28 lines: the upper half of the last load is masked off and holds tagged zeros")
        for d in range(4):
            A(f"v_mov_b32 v{RD+12+d}, s{96+d}")
        for it in range(4):
            if it == 3:
                A("s_mov_b32 exec_hi, 0")
            A(f"global_load_dwordx4 v[{RD+4*it}:{RD+4*it+3}], v12, s[40:41] offset:{it*1024} sc1")
        A("s_mov_b32 exec_hi, -1")
        A("s_waitcnt vmcnt(0)")
        self.chk(13, RD, 16)
        self.chk_branch(13, "L_sp_z", 32)
        A(f"s_mul_i32 s42, s60, {64*self.mls}"); A(f"s_add_u32 s42, s42, {self.wsml:#x}")
        A(f"v_mul_u32_u24 v12, {self.mls}, v4")
        A("v_add_u32 v12, s42, v12")
        A(f"v_lshlrev_b32 v{G}, 16, v{G}")
        A(f"v_lshlrev_b32 v{XV}, 16, v{XV}")
        for it in range(1, 4):
            for d in range(4):
                A(f"v_add_f32 v{RD+d}, v{RD+d}, v{RD+4*it+d}")
        self.xl_reduce4(RD)
        self.rnd(RD, RD)
        A(f"v_add_f32 v{RD}, v{RD}, v{G}")
        self.rnd(RD, RD)
        A(f"v_mul_f32 v{RD+1}, {f32(-math.log2(math.e))}, v{RD}")
        A(f"v_exp_f32 v{RD+1}, v{RD+1}")
        A("s_nop 0")
        A(f"v_add_f32 v{RD+1}, 1.0, v{RD+1}")
        A(f"v_rcp_f32 v{RD+1}, v{RD+1}")
        A("s_nop 0")
        A(f"v_mul_f32 v{G}, v{RD}, v{RD+1}")
        self.rnd(G, G)
        self.spin_begin("L_sp_p")
        A(f"global_load_dwordx4 v[{T}:{T+3}], v12, s[40:41] sc1")
        A("s_waitcnt vmcnt(0)")
        A(f"v_xor_b32 v13, s63, v{T+1}")
        A(f"v_bitop3_b32 v13, v13, v{T+3}, s63 bitop3:0xf6")
        A("v_cmp_ne_u32 vcc, 0, v13")
        A("s_cbranch_vccz L_sp_p_done")
        self.spin_end("L_sp_p", 32)
        A("L_sp_p_done:")
        C("factor of producer p=lane: exp(M_p - M_h) / L_h, partner = lane^1")
        A(f"v_max_f32_dpp v{T+1}, v{T}, v{T} quad_perm:[1,0,3,2] row_mask:0xf bank_mask:0xf")
        A(f"v_sub_f32 v{T}, v{T}, v{T+1}")
        A(f"v_exp_f32 v{T}, v{T}")
        A("s_nop 0")
        A(f"v_mul_f32 v{T+1}, v{T}, v{T+2}")
        A("s_nop 1")
        A(f"v_add_f32_dpp v{T+1}, v{T+1}, v{T+1} quad_perm:[1,0,3,2] row_mask:0xf bank_mask:0xf")
        A(f"v_rcp_f32 v{T+1}, v{T+1}")
        C("F[p] stored at ((p&7)*8 + (p>>3)) so that lane group g = l>>3 reads its 8 factors contiguously")
        A("v_and_b32 v12, 7, v4"); A("v_lshlrev_b32 v12, 5, v12")
        A("v_lshrrev_b32 v13, 3, v4"); A("v_lshl_add_u32 v12, v13, 2, v12")
        A(f"v_mul_f32 v{T}, v{T}, v{T+1}")
        A(f"ds_write_b32 v12, v{T} offset:{FLD}")
        A("v_lshlrev_b32 v13, 5, v13")
        A("s_waitcnt lgkmcnt(0)")
        A(f"ds_read_b128 v[{F}:{F+3}], v13 offset:{FLD}")
        A(f"ds_read_b128 v[{F+4}:{F+7}], v13 offset:{FLD+16}")
        A("s_cmp_lg_u32 s62, 63")
        A("s_cbranch_scc1 L_nobump")
        C("every reader of the tag word is done by now (this wave has seen data that depends on all of them)")
        A(f"v_mov_b32 v12, {WS_EP:#x}")
        A("v_mov_b32 v13, s63")
        A("s_mov_b64 exec, 1")
        A("global_store_dword v12, v13, s[40:41] sc1")
        A("s_mov_b64 exec, -1")
        A("L_nobump:")
        A("s_waitcnt lgkmcnt(0)")
        A("L_nog:")
        self.stamp(5)
        A("s_barrier")
        self.stamp(6)
        for n in range(4):
            A(f"ds_read_b128 v[{RA+4*n}:{RA+4*n+3}], v8 offset:{OB + 64*n}")
        for n in range(4):
            A(f"s_waitcnt lgkmcnt({3-n})")
            self.slabmfma(RD, RA + 4 * n, RB + 32 * n, n == 0)
        A("s_nop 0")
        for jj in range(8):
            A(f"v_mul_f32 v{T+jj}, v{CF}, v{RD+4*jj}")
        for r in range(1, 4):
            for jj in range(8):
                A(f"v_fmac_f32 v{T+jj}, v{CF+r}, v{RD+4*jj+r}")
        for d in range(4):
            A(f"v_permlane32_swap_b32 v{T+d}, v{T+d+4}")
        for d in range(4):
            A(f"v_add_f32 v{T+d}, v{T+d}, v{T+d+4}")
        A("s_nop 0")
        for d in range(2):
            A(f"v_permlane16_swap_b32 v{T+d}, v{T+d+2}")
        for d in range(2):
            A(f"v_add_f32 v{T+d}, v{T+d}, v{T+d+2}")
        for d in range(2):
            A(f"v_and_or_b32 v{T+d}, v{T+d}, v15, v{TG+d}")
        A(f"global_store_dwordx2 v9, v[{T}:{T+1}], s[40:41] sc1")
        self.stamp(7)
        if self.echo and len(self.echo) == 5:
            A("s_cmp_lg_u32 s7, 2")
            A("s_cbranch_scc1 L_e2")
            A("s_getreg_b32 s42, hwreg(HW_REG_XCC_ID)")
            A("s_waitcnt lgkmcnt(0)")
            A(f"v_mov_b32 v{ST}, s64"); A(f"v_mov_b32 v{ST+1}, s{78 if self.echo[0] == 4 else 84}"); A(f"v_mov_b32 v{ST+2}, s76"); A(f"v_mov_b32 v{ST+3}, s42")
            A("s_lshl_b32 s42, s59, 4"); A(f"s_add_u32 s42, s42, {WS_DIAG:#x}")
            A("v_mov_b32 v12, s42")
            A("s_mov_b64 exec, 1")
            A(f"global_store_dwordx4 v12, v[{ST}:{ST+3}], s[40:41] sc1")
            A("s_mov_b64 exec, -1")
            A("L_e2:")
        A("s_cmp_lg_u32 s58, 1")
        A("s_cbranch_scc1 L_hend")
        C("consumer: poll the 64 producers' lines in 8 groups (complete groups are not re-loaded), then reduce")
        MK = 16
        for it in range(8):
            A(f"s_mov_b64 s[{MK+2*it}:{MK+2*it+1}], -1")
        self.spin_begin("L_sp_s")
        A("s_mov_b32 s50, 0")
        for it in range(8):
            A(f"s_mov_b64 exec, s[{MK+2*it}:{MK+2*it+1}]")
            A(f"buffer_load_dwordx4 v[{RD+4*it}:{RD+4*it+3}], v7, s[8:11], s50 offen sc1")
            if it < 7:
                A("s_add_u32 s50, s50, 0x4000")
        A("s_mov_b64 exec, -1")
        A("s_waitcnt vmcnt(0)")
        for it in range(8):
            self.chk(RA + it, RD + 4 * it, 4, ST + 4 * it)
        A(f"v_or3_b32 v13, v{RA}, v{RA+1}, v{RA+2}")
        A(f"v_or3_b32 v12, v{RA+3}, v{RA+4}, v{RA+5}")
        A(f"v_or3_b32 v13, v13, v{RA+6}, v{RA+7}")
        A("v_or_b32 v13, v13, v12")
        A("v_cmp_ne_u32_sdwa vcc, v13, v10 src0_sel:BYTE_0 src1_sel:DWORD")
        A("s_cbranch_vccz L_sp_s_done")
        for it in range(8):
            A(f"v_cmp_ne_u32_sdwa s[{MK+2*it}:{MK+2*it+1}], v{RA+it}, v10 src0_sel:BYTE_0 src1_sel:DWORD")
        for it in range(8):
            A(f"s_cmp_lg_u64 s[{MK+2*it}:{MK+2*it+1}], 0")
            A(f"s_cselect_b64 s[{MK+2*it}:{MK+2*it+1}], -1, 0")
        self.spin_end("L_sp_s", 1)
        A("L_sp_s_done:")
        self.stamp(8)
        for d in range(4):
            A(f"v_mul_f32 v{RD+d}, v{F}, v{ST+d}")
        for it in range(1, 8):
            for d in range(4):
                A(f"v_fmac_f32 v{RD+d}, v{F+it}, v{ST+4*it+d}")
        self.xl_reduce4(RD)
        self.rnd(RD, RD)
        A(f"v_mul_f32 v{RD}, v{RD}, v{G}")
        self.rnd(RD, RD)
        A(f"v_add_f32 v{RD}, v{RD}, v{XV}")
        A(f"v_cvt_pk_bf16_f32 v{RD}, v{RD}, 0")
        A("s_mov_b32 s42, 0x00ff00ff"); A("s_mov_b32 s43, 0x00ff00ff")
        A("s_mov_b64 exec, s[42:43]")
        A(f"global_store_short v{COL}, v{RD}, s[36:37]")
        A("s_mov_b64 exec, -1")
        self.stamp(9)
        if self.echo:
            if len(self.echo) == 3:
                a, b, K = self.echo
                A("s_waitcnt lgkmcnt(0)")
                A(f"s_sub_u32 s42, s{64+2*b}, s{64+2*a}")
            else:
                fld, op, xm, xv, K = self.echo
                A("s_sleep 64")
                A("s_lshl_b32 s42, s60, 10"); A(f"s_add_u32 s42, s42, {WS_DIAG:#x}")
                A("v_add_u32 v12, s42, v6")
                A(f"global_load_dwordx4 v[{ST}:{ST+3}], v12, s[40:41] sc1")
                A("s_waitcnt vmcnt(0) lgkmcnt(0)")
                for i in range(3):
                    A(f"v_subrev_u32 v{ST+i}, s64, v{ST+i}")
                    A(f"v_cvt_f32_i32 v{ST+i}, v{ST+i}")
                A(f"v_mov_b32 v{ST+4}, v{ST}")
                self.wave_allreduce_add(ST + 4, ST + 5, "min")
                if fld >= 3:
                    A("s_sub_u32 s42, s82, s64")
                    A(f"v_cvt_f32_i32 v{ST+4}, s42")
                    A(f"v_sub_f32 v{ST+6}, v{ST+4}, v{ST + (2 if fld == 3 else 1)}")
                else:
                    A(f"v_sub_f32 v{ST+6}, v{ST+fld}, v{ST+4}")
                A(f"v_and_b32 v{ST+3}, {xm}, v{ST+3}")
                A(f"v_cmp_eq_u32 vcc, {xv}, v{ST+3}")
                A(f"v_mov_b32 v{ST+7}, {'0' if op != 'min' else '0x49742400'}")
                A(f"v_cndmask_b32 v{ST+6}, v{ST+7}, v{ST+6}, vcc")
                self.wave_allreduce_add(ST + 6, ST + 5, op)
                if op == "add":
                    n = 64 >> bin(xm).count("1")
                    A(f"v_mul_f32 v{ST+6}, {f32(1.0/n)}, v{ST+6}")
                A(f"v_cvt_i32_f32 v{ST+6}, v{ST+6}")
                A("s_nop 1")
                A(f"v_readfirstlane_b32 s42, v{ST+6}")
                A("s_memrealtime s[82:83]")
                A("s_waitcnt lgkmcnt(0)")
            A(f"s_mul_i32 s42, s42, {K}")
            A("s_min_u32 s42, s42, 100000")
            A("s_add_u32 s42, s42, s82")
            A("L_echo:")
            A("s_memrealtime s[90:91]")
            A("s_waitcnt lgkmcnt(0)")
            A("s_sub_u32 s43, s42, s90")
            A("s_cmp_gt_i32 s43, 0")
            A("s_cbranch_scc1 L_echo")
        A("L_hend:")
        self.dump_stamps(10, 16)

def gen(**kw):
    return Gen(**kw).gen()

if __name__ == "__main__":
    out = sys.argv[1] if len(sys.argv) > 1 else "recurrent_scan__mha_block_cached__mixer_channel_mlp__decode.s"
    kw = eval("dict(" + (sys.argv[2] if len(sys.argv) > 2 else "") + ")")
    open(out, "w").write(gen(**kw))
```

```python
import sys, math, struct
NAME = "recurrent_scan__mha_block_cached__mixer_channel_mlp__decode_kernel"

def f32(x):
    return "0x%08x" % struct.unpack("<I", struct.pack("<f", x))[0]

HEADER = """; Kernarg layout for this problem (104 bytes, ptrs only, base s[0:1]):
"""

XN, QP, MLM, MLL, TAGL, FLD, OB = 0, 8192, 8448, 8512, 8704, 8960, 9216
OBS = 272
LDS_BYTES = 13824
WS_S, WS_ML, WS_EP, WS_Q, WS_U, WS_Z, WS_DIAG = 0, 0x80000, 0x90000, 0x100000, 0x180000, 0x1c0000, 0x200000
NUNIT = 112
NZ = 28
SPIN_MAX = 1 << 18
RK = 8720
WS_BAL = 0xb0000

class Gen:
    def __init__(self, kvflags="nt", wflags="", mflags="nt", qflags="nt", diag=False, DK=8, DV=8, pre=3, wdepth=2, dks=8,
                 bare=0, skip=(), pat="A", prog=False, mpar=0, cpar=0, fprio=3, qdelay=0, qsleep=1, adel=0, apar=0, touch=(), qack=1, mpar2=None, bal=0, thr=4, tlog=3, binit=0, bend=7, bstr=128, bmask=0, eadd=0, ofl='', echo=None, hmap=0, mls=16, w2p=4, zfl='sc1', ufl='sc1'):
        self.bstr, self.bmask = bstr, bmask; self.eadd = eadd; self.ofl = ofl; self.echo = echo; self.hmap = hmap; self.mls = mls; self.wsml = WS_ML if mls <= 256 else 0x300000
        self.w2p, self.zfl, self.ufl = w2p, zfl, ufl
        self.bal, self.thr, self.tlog, self.binit, self.bend = bal, thr, tlog, binit, bend
        self.mpar2 = mpar if mpar2 is None else mpar2
        self.touch, self.qack = touch, qack
        self.adel, self.apar = adel, apar
        self.nlab = 0
        self.qdelay, self.qsleep = qdelay, qsleep
        self.L = []
        self.kvflags, self.wflags, self.mflags, self.qflags = kvflags, wflags, mflags, qflags
        self.diag, self.prog, self.bare, self.skip, self.pat = diag, prog, bare, set(skip), pat
        self.DK, self.DV, self.pre, self.wdepth, self.dks = DK, DV, pre, wdepth, dks
        self.mpar, self.cpar, self.fprio = mpar, cpar, fprio
    def A(self, s):
        self.L.append("  " + s if not s.endswith(":") else s)
    def C(self, s):
        self.L.append("  ; " + s)

    def stamp(self, idx):
        if self.diag or self.echo:
            self.A(f"s_memrealtime s[{64+2*idx}:{65+2*idx}]")
    def dump_stamps(self, n, vt):
        if not self.diag:
            return
        A = self.A
        A("s_waitcnt lgkmcnt(0)")
        A("s_lshl_b32 s60, s2, 3"); A("s_add_u32 s60, s60, s3"); A("s_lshl_b32 s60, s60, 7")
        A(f"s_add_u32 s60, s60, {WS_DIAG:#x}")
        A(f"v_mov_b32 v{vt}, s60")
        A("s_mov_b64 exec, 1")
        for j in range(n):
            A(f"v_mov_b32 v{vt+2}, s{64+2*j}"); A(f"v_mov_b32 v{vt+3}, s{65+2*j}")
            A(f"global_store_dwordx2 v{vt}, v[{vt+2}:{vt+3}], s[40:41] offset:{8*j}")
        A("s_getreg_b32 s60, hwreg(HW_REG_XCC_ID)")
        A(f"v_mov_b32 v{vt+2}, s60")
        A(f"global_store_dword v{vt}, v{vt+2}, s[40:41] offset:120")
        A("s_mov_b64 exec, -1")

    def row_allreduce(self, op, r):
        A = self.A
        for m in ("quad_perm:[1,0,3,2]", "quad_perm:[2,3,0,1]", "row_half_mirror", "row_mirror"):
            A("s_nop 1")
            A(f"v_{op}_f32_dpp v{r}, v{r}, v{r} {m} row_mask:0xf bank_mask:0xf")
    def wave_allreduce_add(self, r, t, op="add"):
        A = self.A
        self.row_allreduce(op, r)
        for sw in ("v_permlane16_swap_b32", "v_permlane32_swap_b32"):
            A(f"v_mov_b32 v{t}, v{r}")
            A("s_nop 1")
            A(f"{sw} v{r}, v{t}")
            A(f"v_{op}_f32 v{r}, v{r}, v{t}")
    def rnd(self, d, s):
        self.A(f"v_cvt_pk_bf16_f32 v{d}, 0, v{s}")

    def layernorm(self, X, n, T, P, unpack_after=True):
        A = self.A
        s, t, q, d = T, T + 1, T + 2, T + 3
        red = (lambda r: self.wave_allreduce_add(r, t)) if n == 8 else (lambda r: self.row_allreduce("add", r))
        A(f"v_add_f32 v{s}, v{X}, v{X+1}")
        for i in range(2, n):
            A(f"v_add_f32 v{s}, v{s}, v{X+i}")
        red(s)
        A(f"v_mul_f32 v{s}, {f32(1.0/512)}, v{s}")
        A(f"v_sub_f32 v{d}, v{X}, v{s}")
        A(f"v_mul_f32 v{q}, v{d}, v{d}")
        for i in range(1, n):
            dd = d if i % 2 == 0 else t
            A(f"v_sub_f32 v{dd}, v{X+i}, v{s}")
            A(f"v_fmac_f32 v{q}, v{dd}, v{dd}")
        red(q)
        A(f"v_mul_f32 v{q}, {f32(1.0/512)}, v{q}")
        self.rnd(s, s)
        self.rnd(q, q)
        A(f"v_add_f32 v{q}, {f32(1e-5)}, v{q}")
        self.rnd(q, q)
        A(f"v_sqrt_f32 v{q}, v{q}")
        A("s_nop 0")
        self.rnd(q, q)
        A(f"v_rcp_f32 v{q}, v{q}")
        for i in range(n):
            A(f"v_sub_f32 v{X+i}, v{X+i}, v{s}")
        for i in range(n):
            self.rnd(X + i, X + i)
        for i in range(n):
            A(f"v_mul_f32 v{X+i}, v{X+i}, v{q}")
        for i in range(n // 2):
            A(f"v_cvt_pk_bf16_f32 v{P+i}, v{X+2*i}, v{X+2*i+1}")
        if unpack_after:
            self.unpack(X, P, n // 2)
    def unpack(self, X, P, n):
        for i in range(n):
            self.A(f"v_lshlrev_b32 v{X+2*i}, 16, v{P+i}")
            self.A(f"v_and_b32 v{X+2*i+1}, 0xffff0000, v{P+i}")

    def slabload(self, dst, srd, voff, stride, flags, last_inc=None, pace=None, cont=False):
        A = self.A
        for e in range(8):
            r = dst + 4 * e
            if pace is not None and (e >= pace or cont):
                A(f"s_waitcnt vmcnt({pace-1})")
            A(f"buffer_load_dwordx4 v[{r}:{r+3}], v{voff}, {srd}, s50 offen {flags}".rstrip())
            inc = stride if e < 7 else last_inc
            if inc is not None:
                A(f"s_add_u32 s50, s50, {inc}")
    def slabperm(self, dst, src):
        A = self.A
        for d in range(4):
            for hf in range(2):
                jj = 2 * d + hf
                for q in range(4):
                    A(f"v_perm_b32 v{dst + 4*jj + q}, v{src + 4*(2*q+1) + d}, v{src + 4*(2*q) + d}, s{48 + hf}")
    def slabmfma(self, RD, RA, B, first):
        A = self.A
        for jj in range(8):
            b = B + 4 * jj
            c = "0" if first else f"v[{RD+4*jj}:{RD+4*jj+3}]"
            A(f"v_mfma_f32_16x16x32_bf16 v[{RD+4*jj}:{RD+4*jj+3}], v[{RA}:{RA+3}], v[{b}:{b+3}], {c}")

    def spin_begin(self, lab):
        self.A(f"s_mov_b32 s55, {SPIN_MAX}")
        self.A(f"{lab}:")
    def spin_end(self, lab, sleep):
        A = self.A
        A(f"s_sleep {sleep}")
        A("s_sub_u32 s55, s55, 1")
        A("s_cmp_lg_u32 s55, 0")
        A(f"s_cbranch_scc1 {lab}")
    def xl_reduce4(self, R):
        A = self.A
        A("s_nop 0")
        for d in range(2):
            A(f"v_permlane32_swap_b32 v{R+d}, v{R+d+2}")
        for d in range(2):
            A(f"v_add_f32 v{R+d}, v{R+d}, v{R+d+2}")
        A("s_nop 1")
        A(f"v_permlane16_swap_b32 v{R}, v{R+1}")
        A(f"v_add_f32 v{R}, v{R}, v{R+1}")
        A("s_nop 1")
        A(f"v_add_f32_dpp v{R}, v{R}, v{R} row_ror:8 row_mask:0xf bank_mask:0xf")

    def gen(self):
        A, C = self.A, self.C
        self.L.append(HEADER.rstrip())
        self.L.append(f"; @launch grid=(256,1,1) block=(512,1,1) lds={LDS_BYTES}")
        self.L.append('.amdgcn_target "amdgcn-amd-amdhsa--gfx950"')
        self.L.append(".text"); self.L.append(f".globl {NAME}"); self.L.append(".p2align 8")
        self.L.append(f".type {NAME},@function"); self.L.append(f"{NAME}:")
        A("s_cmp_ge_u32 s2, 256")
        A("s_cbranch_scc1 L_end")
        self.stamp(0)
        A("s_load_dwordx16 s[16:31], s[0:1], 0")
        A("s_load_dwordx8 s[32:39], s[0:1], 64")
        A("s_load_dwordx2 s[40:41], s[0:1], 96")
        A("v_lshrrev_b32 v1, 6, v0")
        A("v_and_b32 v2, 15, v0")
        A("v_readfirstlane_b32 s3, v1")
        A("v_bfe_u32 v3, v0, 4, 2")
        A("v_and_b32 v4, 63, v0")
        C("decode: h = 4*(wg&7) + ((wg>>3)&3); b = (wg>>5)&3; side = wg>>7")
        if self.hmap == 0:
            A("s_and_b32 s4, s2, 7"); A("s_lshl_b32 s4, s4, 2")
            A("s_bfe_u32 s5, s2, 0x20003"); A("s_or_b32 s4, s4, s5")
            A("s_bfe_u32 s5, s2, 0x20005")
            A("s_lshr_b32 s6, s2, 7")
        else:
            A("s_lshr_b32 s4, s2, 3")
            A("s_bfe_u32 s5, s2, 0x20001")
            A("s_and_b32 s6, s2, 1")
        A("s_lshl_b32 s59, s5, 5"); A("s_or_b32 s59, s59, s4"); A("s_lshl_b32 s59, s59, 1"); A("s_or_b32 s59, s59, s6")
        C("s59 = producer index b*64 + 2h + side")
        A("s_cmp_ge_u32 s3, 4")
        A("s_cbranch_scc1 L_helper")
        self.stream()
        self.helper()
        A("L_end:")
        A("s_endpgm")
        L = self.L
        L.append('.section .rodata,"a"'); L.append(".p2align 6"); L.append(f".amdhsa_kernel {NAME}")
        L.append("  .amdhsa_next_free_vgpr 256"); L.append("  .amdhsa_next_free_sgpr 102"); L.append("  .amdhsa_accum_offset 256")
        L.append("  .amdhsa_group_segment_fixed_size 0"); L.append("  .amdhsa_kernarg_size 104")
        L.append("  .amdhsa_user_sgpr_count 2"); L.append("  .amdhsa_user_sgpr_kernarg_segment_ptr 1")
        L.append("  .amdhsa_system_sgpr_workgroup_id_x 1")
        L.append("  .amdhsa_float_denorm_mode_32 3")
        L.append(".end_amdhsa_kernel")
        return "\n".join(L) + "\n"

    def stream(self):
        A, C = self.A, self.C
        RING = 64
        P = 24
        Q = 8
        S = 40
        ACC = 48
        PLO, PHI = 12, 13
        VOFF = 5
        fl = self.kvflags
        DK, DV, pre = self.DK, self.DV, self.pre
        C("===== stream waves =====")
        A("v_lshlrev_b32 v5, 4, v2")
        if self.pat == "A":
            A("v_lshl_or_b32 v5, v3, 12, v5")
            A("v_lshl_or_b32 v5, v1, 14, v5")
        else:
            wp, tp = {"B": (12, 14), "C": (14, 12)}[self.pat]
            A("v_lshl_or_b32 v5, v3, 8, v5")
            A(f"v_lshl_or_b32 v56, v1, {wp}, v5")
            for t in range(1, 4):
                A(f"v_add_u32 v{56+t}, {t << tp:#x}, v56")
        A("s_lshl_b32 s7, s59, 19")
        A("s_mov_b32 s10, 0x80000"); A("s_mov_b32 s11, 0x20000")
        A("s_mov_b32 s14, 0x80000"); A("s_mov_b32 s15, 0x20000")
        A("s_mov_b32 s46, 0x80000"); A("s_mov_b32 s47, 0x20000")
        A("s_mov_b32 s50, 0")
        A("s_waitcnt lgkmcnt(0)")
        A("s_add_u32 s8, s18, s7"); A("s_addc_u32 s9, s19, 0")
        self.stamp(5)
        issued = []
        def load(slot, srd, so, tag=None):
            r = RING + 4 * slot
            if self.pat == "A":
                A(f"buffer_load_dwordx4 v[{r}:{r+3}], v{VOFF}, {srd}, {so} offen offset:{(slot % 16)*256} {fl}".rstrip())
            else:
                A(f"buffer_load_dwordx4 v[{r}:{r+3}], v{56 + (slot % 16)//4}, {srd}, {so} offen offset:{(slot % 4)*1024} {fl}".rstrip())
            issued.append(tag)
        def wait(tag):
            A(f"s_waitcnt vmcnt({len(issued) - 1 - issued.index(tag)})")
        def swait(D):
            A(f"s_waitcnt vmcnt({D-1})")
            if self.adel:
                self.nlab += 1
                A(f"s_cbranch_vccnz L_ad{self.nlab}")
                A(f"s_waitcnt vmcnt({D-1-self.adel})")
                A(f"L_ad{self.nlab}:")
        if self.bal:
            A(f"s_mov_b64 vcc, {-self.binit}")
        elif self.adel:
            A(f"s_bitcmp{1-self.apar}_b32 s2, 0")
            A("s_cselect_b64 vcc, -1, 0")
        def bal(j, vph=False):
            if not self.bal:
                return
            self.nlab += 1
            if j == 8:
                A("s_cmp_ge_i32 s54, s62" if vph else "s_cmp_lg_u32 s3, 0")
                A(f"s_cbranch_scc1 L_bl{self.nlab}")
                if self.bmask:
                    A(f"s_and_b32 s60, s54, {self.bmask}"); A(f"s_cmp_lg_u32 s60, {self.bmask}")
                    A(f"s_cbranch_scc1 L_bl{self.nlab}")
                A("s_mov_b64 exec, 1")
                A("global_atomic_add v61, v62, v63, s[40:41] sc0 sc1")
                A("s_mov_b64 exec, -1")
                A(f"L_bl{self.nlab}:")
            elif j == 0:
                A("s_cmp_gt_i32 s54, s62" if vph else "s_cmp_lg_u32 s3, 0")
                A(f"s_cbranch_scc1 L_bl{self.nlab}")
                if self.bmask:
                    A(f"s_and_b32 s60, s54, {self.bmask}")
                    A(f"s_cbranch_scc1 L_bl{self.nlab}")
                A("v_subrev_u32 v61, s61, v61")
                A(f"s_add_u32 s61, s61, {1 << self.tlog}")
                A("s_mov_b64 exec, 1")
                A(f"ds_write_b32 v59, v61 offset:{RK}")
                A("s_mov_b64 exec, -1")
                A(f"L_bl{self.nlab}:")
            elif j == 2:
                A(f"ds_read_b32 v58, v59 offset:{RK}")
            elif j == 4:
                A("s_waitcnt lgkmcnt(0)")
                A(f"v_cmp_le_i32 vcc, {self.thr}, v58")
        for gi in range(pre):
            for j in range(16):
                n = 16 * gi + j
                dd = self.dks
                if n == dd:
                    self.stamp(6)
                if dd and n >= dd:
                    swait(dd)
                if n == dd:
                    self.stamp(7)
                if n == 2 * dd:
                    self.stamp(8)
                load(n, "s[8:11]", "s50", (gi, j))
            A("s_add_u32 s50, s50, 0x10000")
        A("s_add_u32 s12, s20, s7"); A("s_addc_u32 s13, s21, 0")
        A("s_mov_b32 s52, 0xaaaaaaaa"); A("s_mov_b32 s53, 0xaaaaaaaa")
        A("s_mov_b32 s56, 0xcccccccc"); A("s_mov_b32 s57, 0xcccccccc")
        A("v_lshlrev_b32 v7, 4, v2")
        if self.bal:
            A(f"s_lshr_b32 s61, s2, {self.tlog}"); A(f"s_mul_i32 s61, s61, {self.bstr}"); A(f"s_add_u32 s61, s61, {WS_BAL:#x}")
            A("v_mov_b32 v62, s61"); A("v_mov_b32 v63, 1"); A("v_mov_b32 v59, 0")
            A(f"v_mov_b32 v61, {self.thr - 1 + self.binit}")
            A("s_mov_b32 s61, 0")
            A("s_cmp_eq_u32 s3, 0"); A(f"s_cselect_b32 s62, {self.bend}, -1")
            A(f"ds_write_b32 v59, v61 offset:{RK}")
            A("s_waitcnt lgkmcnt(0)")
        self.stamp(1)
        A("s_barrier")
        A(f"ds_read_b128 v[{Q}:{Q+3}], v7 offset:{QP}")
        self.stamp(2)
        A("s_waitcnt lgkmcnt(0)")
        def qk(slots):
            for d in range(4):
                for slot in slots:
                    r = RING + 4 * slot
                    p = P + slot % 16
                    c = "0" if d == 0 else f"v{p}"
                    A(f"v_dot2_f32_bf16 v{p}, v{r+d}, v{Q+d}, {c}")
        def treduce(dst, mid=()):
            C("transposing reduction: lane (g,c) <- score of load c, key g")
            for t in range(8):
                A(f"v_add_f32_dpp v{P+t}, v{P+t}, v{P+t} row_ror:8 row_mask:0xf bank_mask:0x3")
            for t in range(8):
                A(f"v_add_f32_dpp v{P+t}, v{P+t+8}, v{P+t+8} row_ror:8 row_mask:0xf bank_mask:0xc")
            for t in range(4):
                A(f"v_add_f32_dpp v{P+t}, v{P+t}, v{P+t} row_half_mirror row_mask:0xf bank_mask:0x5")
            for t in range(4):
                A(f"v_add_f32_dpp v{P+t}, v{P+t+4}, v{P+t+4} row_half_mirror row_mask:0xf bank_mask:0xa")
            U0, U1, T0, T1 = P + 8, P + 9, P + 10, P + 11
            A(f"v_cndmask_b32 v{U0}, v{P+1}, v{P}, s[52:53]")
            A(f"v_cndmask_b32 v{U1}, v{P+3}, v{P+2}, s[52:53]")
            A(f"v_cndmask_b32 v{T0}, v{P}, v{P+1}, s[52:53]")
            A(f"v_cndmask_b32 v{T1}, v{P+2}, v{P+3}, s[52:53]")
            A("s_nop 1")
            A(f"v_add_f32_dpp v{T0}, v{U0}, v{T0} quad_perm:[1,0,3,2] row_mask:0xf bank_mask:0xf")
            A(f"v_add_f32_dpp v{T1}, v{U1}, v{T1} quad_perm:[1,0,3,2] row_mask:0xf bank_mask:0xf")
            A(f"v_cndmask_b32 v{U0}, v{T1}, v{T0}, s[56:57]")
            A(f"v_cndmask_b32 v{U1}, v{T0}, v{T1}, s[56:57]")
            if mid:
                for m in mid:
                    A(m)
            else:
                A("s_nop 1")
            A(f"v_add_f32_dpp v{dst}, v{U0}, v{U1} quad_perm:[2,3,0,1] row_mask:0xf bank_mask:0xf")
        C("catch-up over the prefetched groups; group `pre` is loaded into ring slots 0..15 meanwhile")
        nxt = 0
        for gi in range(pre):
            for j in range(0, 16, 2):
                wait((gi, j + 1))
                qk([16 * gi + j, 16 * gi + j + 1])
                if gi == 0:
                    want = j + 2 if (j < 8 or pre == 1) else 8
                elif gi == 1:
                    want = 8 + j // 2 + 1
                else:
                    want = 16
                while nxt < want:
                    load(nxt, "s[8:11]", "s50", (pre, nxt)); nxt += 1
            A("s_nop 0")
            treduce(S + 8 - pre + gi)
        assert nxt == 16
        for j in range(16 - DK):
            wait((pre, j))
            qk([j])
        A(f"s_mov_b32 s54, {pre}")
        A("s_branch L_kmid")
        A("L_kloop:")
        for j in range(16 - DK):
            swait(DK)
            load(j + DK, "s[8:11]", "s50")
            qk([j])
            if j < 8:
                bal(j)
        A("L_kmid:")
        if self.prog:
            A("s_memrealtime s[90:91]")
        C("the rest refills from the next group (V group 0 after the last K group)")
        A("s_add_u32 s50, s50, 0x10000")
        A("s_cmp_eq_u32 s54, 7")
        A("s_cselect_b32 s44, s12, s8"); A("s_cselect_b32 s45, s13, s9"); A("s_cselect_b32 s51, 0, s50")
        for j in range(16 - DK, 16):
            swait(DK)
            load(j + DK - 16, "s[44:47]", "s51")
            qk([j])
            if j == 16 - DK:
                bal(8)
        if self.prog:
            A("s_waitcnt lgkmcnt(0)")
            A("s_mov_b32 m0, s54"); A("s_nop 0")
            A("v_writelane_b32 v60, s90, m0")
        for i in range(7):
            A(f"v_mov_b32 v{S+i}, v{S+i+1}")
        treduce(S + 7, ("s_add_u32 s54, s54, 1", "s_cmp_lt_u32 s54, 8"))
        A("s_cbranch_scc1 L_kloop")
        self.stamp(3)
        A("s_mov_b32 s50, 0")
        for j in range(DK, DV):
            load(j, "s[12:15]", "s50")
        C("softmax over this row's 128 keys (true max of the partial; partials are merged exactly later)")
        M, Ls = 14, 15
        cs = math.log2(math.e) / math.sqrt(128.0)
        A(f"s_mov_b32 s58, {f32(cs)}")
        A(f"v_max3_f32 v{M}, v{S}, v{S+1}, v{S+2}")
        A(f"v_max3_f32 v{M}, v{M}, v{S+3}, v{S+4}")
        A(f"v_max3_f32 v{M}, v{M}, v{S+5}, v{S+6}")
        A(f"v_max_f32 v{M}, v{M}, v{S+7}")
        self.row_allreduce("max", M)
        A(f"v_mul_f32 v{M}, s58, v{M}")
        for i in range(8):
            A(f"v_fma_f32 v{S+i}, v{S+i}, s58, -v{M}")
        for i in range(8):
            A(f"v_exp_f32 v{S+i}, v{S+i}")
        for i in range(8):
            A(f"v_mov_b32 v{ACC+i}, 0")
        A(f"v_add_f32 v{Ls}, v{S}, v{S+1}")
        for i in range(2, 8):
            A(f"v_add_f32 v{Ls}, v{Ls}, v{S+i}")
        self.row_allreduce("add", Ls)
        A(f"v_lshrrev_b32 v7, 4, v0")
        A(f"v_lshlrev_b32 v16, 2, v7")
        A(f"v_min_u32 v{M}, -2, v{M}")
        A(f"v_min_u32 v{Ls}, -2, v{Ls}")
        A(f"ds_write_b32 v16, v{M} offset:{MLM}")
        A(f"ds_write_b32 v16, v{Ls} offset:{MLL}")
        A(f"v_mul_u32_u24 v17, {OBS}, v7")
        A("v_lshl_add_u32 v17, v2, 4, v17")
        A("s_mov_b32 s54, 0")
        assert DV >= DK
        def pv(slot):
            r = RING + 4 * slot
            for d in range(4):
                A(f"v_dot2c_f32_bf16_dpp v{ACC+2*d}, v{PLO}, v{r+d} row_newbcast:{slot} row_mask:0xf bank_mask:0xf")
                A(f"v_dot2c_f32_bf16_dpp v{ACC+2*d+1}, v{PHI}, v{r+d} row_newbcast:{slot} row_mask:0xf bank_mask:0xf")
        A("L_vloop:")
        A(f"v_cvt_pk_bf16_f32 v{PLO}, v{S}, 0")
        A(f"v_cvt_pk_bf16_f32 v{PHI}, 0, v{S}")
        for i in range(7):
            A(f"v_mov_b32 v{S+i}, v{S+i+1}")
        for j in range(16):
            if j == 16 - DV and self.prog:
                A("s_memrealtime s[90:91]")
            if j == 16 - DV:
                A("s_add_u32 s50, s50, 0x10000")
            swait(DV)
            load((j + DV) % 16, "s[12:15]", "s50")
            pv(j)
            bal(j, True)
        if self.prog:
            A("s_waitcnt lgkmcnt(0)")
            A("s_add_u32 m0, s54, 8"); A("s_nop 0")
            A("v_writelane_b32 v60, s90, m0")
        A("s_add_u32 s54, s54, 1")
        A("s_cmp_lt_u32 s54, 8")
        A("s_cbranch_scc1 L_vloop")
        self.stamp(4)
        A("s_nop 1")
        for d in range(4):
            A(f"v_cvt_pk_bf16_f32 v{20+d}, v{ACC+2*d}, v{ACC+2*d+1}")
        A(f"ds_write_b128 v17, v[20:23] offset:{OB}")
        A("s_waitcnt lgkmcnt(0)")
        A("s_barrier")
        self.dump_stamps(9, 24)
        if self.prog:
            A("s_lshl_b32 s60, s2, 2"); A("s_add_u32 s60, s60, s3"); A("s_lshl_b32 s60, s60, 6")
            A(f"s_add_u32 s60, s60, {WS_DIAG + 0x80000:#x}")
            A("v_lshlrev_b32 v24, 2, v4")
            A("v_add_u32 v24, s60, v24")
            A("s_mov_b64 exec, 0xffff")
            A("global_store_dword v24, v60, s[40:41]")
        A("s_endpgm")

    TB = 100
    def tag4(self, R, n=4):
        for i in range(n):
            self.A(f"v_and_or_b32 v{R+i}, v{R+i}, v15, s{96 + i % 4}")
    def chk(self, acc, R, n, D=None):
        D = R if D is None else D
        for i in range(n):
            self.A(f"v_xor_b32 v{D+i}, s{96 + i % 4}, v{R+i}")
        self.A(f"v_or3_b32 v{acc}, v{D}, v{D+1}, v{D+2}")
        i = 3
        while i < n:
            if i + 1 < n:
                self.A(f"v_or3_b32 v{acc}, v{acc}, v{D+i}, v{D+i+1}"); i += 2
            else:
                self.A(f"v_or_b32 v{acc}, v{acc}, v{D+i}"); i += 1
    def chk_branch(self, acc, lab, sleep):
        A = self.A
        A(f"v_cmp_ne_u32_sdwa vcc, v{acc}, v10 src0_sel:BYTE_0 src1_sel:DWORD")
        A(f"s_cbranch_vccz {lab}_done")
        self.spin_end(lab, sleep)
        A(f"{lab}_done:")

    def set_tag(self):
        for k in range(4):
            self.A(f"s_bfe_u32 s{96+k}, s63, {0x80000 + 8*k:#x}")

    def helper(self):
        A, C = self.A, self.C
        wf, mf = self.wflags, self.mflags
        RA, RD = 16, 32
        RB = 64
        ST = 192
        T = 224
        A("L_helper:")
        C("===== helper waves =====")
        A("s_sub_u32 s7, s3, 4")
        if self.touch:
            C("helper 2 touches one word of every buffer this CU uses later (address translation warm-up)")
            A("s_cmp_lg_u32 s7, 2")
            A("s_cbranch_scc1 L_notouch")
            A("s_lshl_b32 s42, s59, 19"); A("v_mov_b32 v16, s42")
            A("s_lshl_b32 s42, s4, 17"); A("v_mov_b32 v17, s42")
            A("s_lshl_b32 s42, s2, 7"); A("s_add_u32 s42, s42, 0xa0000"); A("v_mov_b32 v18, s42")
            A("s_lshr_b32 s42, s2, 3"); A("s_min_u32 s42, s42, 27"); A("s_lshl_b32 s42, s42, 16"); A("v_mov_b32 v19, s42")
            A("v_mov_b32 v20, 0")
            A("s_mov_b64 exec, 1")
            A("s_waitcnt lgkmcnt(0)")
            tt = {"v": (16, 20), "wo": (17, 24), "ws": (18, 40), "w2": (19, 32), "b1": (20, 30), "b2": (20, 34), "out": (20, 36)}
            for i, k in enumerate(self.touch):
                A(f"global_load_dword v{24+i}, v{tt[k][0]}, s[{tt[k][1]}:{tt[k][1]+1}] nt")
            A("s_mov_b64 exec, -1")
            A("L_notouch:")
        if self.bal:
            C("the first WG of a team clears the team's progress counter (used for pacing only)")
            A(f"s_and_b32 s42, s2, {(1 << self.tlog) - 1}"); A("s_lshl_b32 s42, s42, 2"); A("s_or_b32 s42, s42, s7")
            A("s_cmp_lg_u32 s42, 2")
            A("s_cbranch_scc1 L_nobal")
            A(f"s_lshr_b32 s42, s2, {self.tlog}"); A(f"s_mul_i32 s42, s42, {self.bstr}"); A(f"s_add_u32 s42, s42, {WS_BAL:#x}")
            A("v_mov_b32 v16, s42"); A("v_mov_b32 v17, 0")
            A("s_mov_b64 exec, 1")
            A("s_waitcnt lgkmcnt(0)")
            A("global_store_dword v16, v17, s[40:41] sc1")
            A("s_mov_b64 exec, -1")
            A("L_nobal:")
        if self.bare == 1:
            A("s_waitcnt lgkmcnt(0)")
            A("s_barrier"); A("s_barrier"); A("s_branch L_hend")
        A("s_mov_b32 s48, 0x05040100"); A("s_mov_b32 s49, 0x07060302")
        A("v_lshlrev_b32 v6, 4, v4")
        A("v_mov_b32 v10, 0")
        A("v_mov_b32 v15, 0xffffff00")
        A("s_mov_b32 s11, 0x20000"); A("s_mov_b32 s15, 0x20000")
        C("s62 = MLP unit of this WG (>= NUNIT: none)")
        A("s_lshr_b32 s62, s2, 1")
        A("s_and_b32 s42, s2, 1"); A(f"s_cmp_eq_u32 s42, {self.mpar}")
        A("s_cselect_b32 s62, s62, 255")
        A("s_cmp_ge_u32 s7, 2")
        A("s_cbranch_scc1 L_nofront")
        A("s_cmp_eq_u32 s7, 0")
        A("s_cbranch_scc1 L_front")
        A(f"s_cmp_ge_u32 s62, {NUNIT}")
        A("s_cbranch_scc1 L_nofront")
        if "s1" in self.skip:
            A("s_branch L_nofront")
        A("L_front:")
        C("front units, 64 rows x 128 cols for all 4 batch rows. helper 0: wq rows 64(wg>>5).., cols 128h..")
        C("helper 1: w1 rows 64(u&7).., cols 128(u>>3)..")
        A(f"s_setprio {self.fprio}")
        A("s_lshr_b32 s42, s2, 5" if self.hmap == 0 else "s_and_b32 s42, s2, 7"); A("s_and_b32 s43, s62, 7")
        A("s_lshr_b32 s44, s62, 3")
        A("s_mov_b32 s51, 3584")
        A("s_cmp_eq_u32 s7, 0")
        A("s_cselect_b32 s53, s42, s43")
        A("s_cselect_b32 s44, s4, s44")
        A("s_cselect_b32 s51, 8192, s51")
        A("s_lshl_b32 s10, s51, 9")
        A("s_mul_i32 s52, s51, 25")
        A("s_mul_i32 s50, s53, s51"); A("s_lshl_b32 s50, s50, 6"); A("s_lshl_b32 s44, s44, 8"); A("s_add_u32 s50, s50, s44")
        A("s_lshl_b32 s42, s51, 3")
        A("v_mul_u32_u24 v5, s42, v3")
        A("v_lshl_add_u32 v5, v2, 4, v5")
        A("v_lshlrev_b32 v12, 10, v3")
        A("v_lshl_add_u32 v12, v2, 4, v12")
        A("s_cmp_eq_u32 s7, 0")
        A("s_waitcnt lgkmcnt(0)")
        for t in range(4):
            A(f"global_load_dwordx4 v[{RB+32+4*t}:{RB+35+4*t}], v12, s[16:17] offset:{256*t}")
        C("the word the previous launch left only serves to pick a tag that differs from that launch's")
        A(f"s_load_dword s63, s[40:41], {WS_EP:#x}")
        A("s_cselect_b32 s8, s22, s28"); A("s_cselect_b32 s9, s23, s29")
        if "fld" in self.skip:
            A("s_mov_b32 s10, 0")
        self.slabload(RB + 96, "s[8:11]", 5, "s51", mf, last_inc="s52")
        self.slabload(ST, "s[8:11]", 5, "s51", mf)
        A("s_lshl_b32 s42, s7, 12")
        A("v_add_u32 v12, s42, v12")
        C("A operand: rows[i>>2][64*blk + 32n + 8kk]")
        A("v_lshrrev_b32 v13, 2, v2")
        A("v_lshlrev_b32 v13, 10, v13")
        A("v_lshl_add_u32 v13, v3, 4, v13")
        A("s_lshl_b32 s43, s53, 7"); A("s_add_u32 s42, s42, s43")
        A("v_add_u32 v13, s42, v13")
        A("s_mov_b32 s54, s7")
        A("s_waitcnt vmcnt(16)")
        self.stamp(1)
        A("L_ln:")
        self.unpack(RB, RB + 32, 16)
        self.layernorm(RB, 32, T, RB + 32, unpack_after=False)
        A("s_sub_u32 s54, s54, 1")
        A("s_cbranch_scc0 L_ln")
        for t in range(4):
            A(f"ds_write_b128 v12, v[{RB+32+4*t}:{RB+35+4*t}] offset:{XN + 256*t}")
        A("s_waitcnt vmcnt(8)")
        self.slabperm(RB + 64, RB + 96)
        A("s_waitcnt lgkmcnt(0)")
        A(f"ds_read_b128 v[{RA}:{RA+3}], v13 offset:{XN}")
        A(f"ds_read_b128 v[{RA+4}:{RA+7}], v13 offset:{XN+64}")
        A("s_add_u32 s63, s63, 0x61c88647")
        self.set_tag()
        A("s_waitcnt vmcnt(0)")
        self.slabperm(RB + 96, ST)
        A("s_waitcnt lgkmcnt(0)")
        self.slabmfma(RD, RA, RB + 64, True)
        self.slabmfma(RD, RA + 4, RB + 96, False)
        A("s_cmp_eq_u32 s7, 0")
        A("s_cbranch_scc1 L_qaddr")
        C("U[u][sub=c>>2][half][b=kk][c&3][4]")
        A("s_lshl_b32 s42, s62, 11"); A(f"s_add_u32 s42, s42, {WS_U:#x}")
        A("v_lshrrev_b32 v12, 2, v2"); A("v_lshlrev_b32 v12, 9, v12")
        A("v_lshl_add_u32 v12, v3, 6, v12")
        A("v_and_b32 v13, 3, v2"); A("v_lshl_add_u32 v12, v13, 4, v12")
        A("s_branch L_fst")
        A("L_qaddr:")
        C("Q[h][b=kk][s][half][c][4]")
        A("s_lshl_b32 s42, s4, 14"); A("s_lshl_b32 s43, s53, 9"); A("s_add_u32 s42, s42, s43")
        A(f"s_add_u32 s42, s42, {WS_Q:#x}")
        A("v_lshlrev_b32 v12, 12, v3")
        A("v_lshl_add_u32 v12, v2, 4, v12")
        A("L_fst:")
        A("v_add_u32 v12, s42, v12")
        for jj in range(8):
            A(f"v_and_or_b32 v{T+jj}, v{RD+4*jj}, v15, s{96 + jj % 4}")
        if "fst" not in self.skip:
            A(f"global_store_dwordx4 v12, v[{T}:{T+3}], s[40:41] sc1")
            A(f"global_store_dwordx4 v12, v[{T+4}:{T+7}], s[40:41] offset:256 sc1")
        self.stamp(2)
        A("s_cmp_lg_u32 s7, 0")
        A("s_cbranch_scc1 L_fdone")
        C("helper 0: gather the 8 partials of q[b][h], LDS init")
        A("s_lshl_b32 s42, s4, 14"); A("s_lshl_b32 s43, s5, 12"); A("s_add_u32 s42, s42, s43")
        A(f"s_add_u32 s42, s42, {WS_Q:#x}")
        A("v_add_u32 v12, s42, v6")
        A("v_lshlrev_b32 v8, 2, v4")
        A("v_mov_b32 v9, -1")
        A(f"ds_write_b32 v8, v9 offset:{MLM}")
        A("v_mov_b32 v9, s63")
        A(f"ds_write_b32 v10, v9 offset:{TAGL}")
        A("v_bfe_u32 v9, v4, 4, 1")
        A("v_lshlrev_b32 v9, 3, v9")
        A("v_lshl_add_u32 v9, v2, 4, v9")
        if "qpoll" in self.skip:
            A("s_branch L_sp_q_done")
        if self.qack:
            A("s_waitcnt vmcnt(0)")
        if self.qdelay:
            A(f"s_sleep {self.qdelay}")
        self.spin_begin("L_sp_q")
        for t in range(4):
            A(f"global_load_dwordx4 v[{RD+4*t}:{RD+4*t+3}], v12, s[40:41] offset:{1024*t} sc1")
        A("s_waitcnt vmcnt(0)")
        self.chk(13, RD, 16)
        self.chk_branch(13, "L_sp_q", self.qsleep)
        for d in range(4):
            A(f"v_add_f32 v{RD+d}, v{RD+d}, v{RD+4+d}")
            A(f"v_add_f32 v{RD+8+d}, v{RD+8+d}, v{RD+12+d}")
        for d in range(4):
            A(f"v_add_f32 v{RD+d}, v{RD+d}, v{RD+8+d}")
        for d in range(4):
            A(f"v_mov_b32 v{RD+4+d}, v{RD+d}")
        A("s_nop 1")
        for d in range(4):
            A(f"v_permlane32_swap_b32 v{RD+d}, v{RD+4+d}")
        for d in range(4):
            A(f"v_add_f32 v{RD+d}, v{RD+d}, v{RD+4+d}")
        for d in range(2):
            A(f"v_cvt_pk_bf16_f32 v{RD+d}, v{RD+2*d}, v{RD+2*d+1}")
        A(f"ds_write_b64 v9, v[{RD}:{RD+1}] offset:{QP}")
        A("L_fdone:")
        A("s_setprio 0")
        A("L_nofront:")
        A("s_waitcnt lgkmcnt(0)")
        self.stamp(3)
        A("s_barrier")
        self.stamp(10)
        if self.bare == 2:
            A("s_barrier"); A("s_branch L_hend")
        A(f"ds_read_b32 v13, v10 offset:{TAGL}")
        C("----- wo block: rows 128h.., cols 128j.. (paced; helper 2 keeps one more load in flight) -----")
        A("v_lshlrev_b32 v5, 4, v2")
        A("v_lshl_or_b32 v5, v3, 13, v5")
        A("s_lshl_b32 s50, s4, 17"); A("s_lshl_b32 s43, s7, 8"); A("s_add_u32 s50, s50, s43")
        A("s_mov_b32 s8, s24"); A("s_mov_b32 s9, s25"); A("s_mov_b32 s10, 0x400000")
        A("s_waitcnt lgkmcnt(0)")
        A("v_readfirstlane_b32 s63, v13")
        self.set_tag()
        A("s_cmp_eq_u32 s7, 2")
        A("s_cselect_b64 vcc, -1, 0")
        def wo_round(n):
            wd = self.wdepth
            for e in range(8):
                r = ST + 4 * e
                if e >= wd:
                    A(f"s_waitcnt vmcnt({wd})")
                    A(f"s_cbranch_vccnz L_wo{n}_{e}")
                    A(f"s_waitcnt vmcnt({wd-1})")
                    A(f"L_wo{n}_{e}:")
                A(f"buffer_load_dwordx4 v[{r}:{r+3}], v5, s[8:11], s50 offen {wf}".rstrip())
                A(f"s_add_u32 s50, s50, {1024 if e < 7 else 25*1024}")
            A("s_waitcnt vmcnt(0)")
            self.slabperm(RB + 32 * n, ST)
        wo_round(0)
        A("s_cmp_lg_u32 s7, 1")
        A("s_cbranch_scc1 L_not1")
        if self.mpar2 != self.mpar:
            A("s_lshr_b32 s62, s2, 1")
            A("s_and_b32 s42, s2, 1"); A(f"s_cmp_eq_u32 s42, {self.mpar2}")
            A("s_cselect_b32 s62, s62, 255")
        A(f"s_cmp_ge_u32 s62, {NUNIT}")
        A("s_cbranch_scc1 L_not1")
        if "s2" in self.skip:
            A("s_branch L_not1")
        C("stage 2 unit: r = u>>2 (hidden rows 64r..), cq = u&3 (cols 128cq..)")
        A("s_mov_b32 s51, s50")
        A("s_lshr_b32 s60, s62, 2"); A("s_and_b32 s61, s62, 3")
        A("s_lshl_b32 s50, s60, 16"); A("s_lshl_b32 s43, s61, 8"); A("s_add_u32 s50, s50, s43")
        A("s_mov_b32 s12, s32"); A("s_mov_b32 s13, s33"); A(f"s_mov_b32 s14, {1792*1024}")
        if "w2ld" in self.skip:
            A("s_mov_b32 s14, 0")
        self.slabload(ST, "s[12:15]", 5, 1024, mf, last_inc=25 * 1024, pace=self.w2p)
        self.slabload(RD, "s[12:15]", 5, 1024, mf, pace=self.w2p, cont=True)
        A("s_lshl_b32 s43, s60, 7")
        A("v_lshlrev_b32 v13, 4, v3")
        A("v_add_u32 v13, s43, v13")
        A(f"global_load_dwordx4 v[{T+16}:{T+19}], v13, s[30:31]")
        A(f"global_load_dwordx4 v[{T+20}:{T+23}], v13, s[30:31] offset:64")
        A("s_mov_b32 s50, s51")
        C("U[m*8 + 4t + (c&3)][2(r&1) + n][half][b=c>>2][kk][4]")
        A("v_and_b32 v12, 3, v2"); A("v_lshlrev_b32 v12, 11, v12")
        A("v_lshrrev_b32 v13, 2, v2"); A("v_lshl_add_u32 v12, v13, 6, v12")
        A("v_lshl_add_u32 v12, v3, 4, v12")
        A("s_lshr_b32 s42, s60, 1"); A("s_lshl_b32 s42, s42, 14")
        A("s_and_b32 s43, s60, 1"); A("s_lshl_b32 s43, s43, 10"); A("s_add_u32 s42, s42, s43")
        A(f"s_add_u32 s42, s42, {WS_U:#x}")
        A(f"v_add_u32 v{T}, s42, v12")
        A(f"v_add_u32 v{T+1}, 0x2000, v{T}")
        UU, W, BB = RB + 64, RB + 80, RB + 112
        if "upoll" in self.skip:
            A("s_waitcnt vmcnt(0)")
            A("s_branch L_sp_u_done")
        self.spin_begin("L_sp_u")
        for t in range(2):
            for q in range(4):
                A(f"global_load_dwordx4 v[{UU+16*t+4*q}:{UU+16*t+4*q+3}], v{T+t}, s[40:41] offset:{256*q} {self.ufl}")
        A("s_waitcnt vmcnt(0)")
        self.chk(13, UU, 32)
        self.chk_branch(13, "L_sp_u", 32)
        self.unpack(BB, T + 16, 8)
        for i in range(16):
            A(f"v_add_f32 v{UU+i}, v{UU+i}, v{UU+16+i}")
        for m in ("quad_perm:[1,0,3,2]", "quad_perm:[2,3,0,1]"):
            for i in range(16):
                A(f"v_add_f32_dpp v{UU+i}, v{UU+i}, v{UU+i} {m} row_mask:0xf bank_mask:0xf")
        for i in range(16):
            self.rnd(UU + i, UU + i)
        for i in range(16):
            A(f"v_add_f32 v{UU+i}, v{UU+i}, v{BB+i}")
        for i in range(16):
            self.rnd(UU + i, UU + i)
        C("gelu(tanh form) = u / (1 + exp(-2k(u + 0.044715 u^3)))")
        k2 = -2.0 * math.sqrt(2.0 / math.pi) * math.log2(math.e)
        A(f"s_mov_b32 s42, {f32(0.044715 * k2)}"); A(f"s_mov_b32 s43, {f32(k2)}")
        A("v_mov_b32 v12, s43")
        for i in range(16):
            A(f"v_mul_f32 v{W+i}, v{UU+i}, v{UU+i}")
        for i in range(16):
            A(f"v_fma_f32 v{W+i}, v{W+i}, s42, v12")
        for i in range(16):
            A(f"v_mul_f32 v{W+i}, v{W+i}, v{UU+i}")
        for i in range(16):
            A(f"v_exp_f32 v{W+i}, v{W+i}")
        for i in range(16):
            A(f"v_add_f32 v{W+i}, 1.0, v{W+i}")
        for i in range(16):
            A(f"v_rcp_f32 v{W+i}, v{W+i}")
        for i in range(16):
            A(f"v_mul_f32 v{UU+i}, v{UU+i}, v{W+i}")
        for d in range(8):
            A(f"v_cvt_pk_bf16_f32 v{RA+d}, v{UU+2*d}, v{UU+2*d+1}")
        self.slabperm(RB + 64, ST)
        self.slabperm(RB + 96, RD)
        self.slabmfma(RD, RA, RB + 64, True)
        self.slabmfma(RD, RA + 4, RB + 96, False)
        C("Z[b=kk][line 4cq + 2(c>>3) + half][r][(c&7)*4..]")
        A(f"v_mul_u32_u24 v12, {16*NZ*128}, v3")
        A("v_lshrrev_b32 v13, 3, v2")
        A(f"v_mul_u32_u24 v13, {2*NZ*128}, v13")
        A("v_add_u32 v12, v12, v13")
        A("v_and_b32 v13, 7, v2")
        A("v_lshl_add_u32 v12, v13, 4, v12")
        A(f"s_mul_i32 s42, s61, {4*NZ*128}"); A("s_lshl_b32 s43, s60, 7"); A("s_add_u32 s42, s42, s43")
        A(f"s_add_u32 s42, s42, {WS_Z:#x}")
        A("v_add_u32 v12, s42, v12")
        for jj in range(8):
            A(f"v_and_or_b32 v{T+jj}, v{RD+4*jj}, v15, s{96 + jj % 4}")
        if "zst" not in self.skip:
            A(f"global_store_dwordx4 v12, v[{T}:{T+3}], s[40:41] {self.zfl}")
            A(f"global_store_dwordx4 v12, v[{T+4}:{T+7}], s[40:41] offset:{NZ*128} {self.zfl}")
        A("s_mov_b64 vcc, 0")
        A("L_not1:")
        wo_round(1); wo_round(2); wo_round(3)
        self.stamp(4)
        if self.bare == 3:
            A("s_barrier"); A("s_branch L_hend")
        C("wait for the 16 (m,l) partials of this WG's stream waves")
        A("v_lshlrev_b32 v12, 2, v2")
        self.spin_begin("L_sp_m")
        A(f"ds_read_b32 v14, v12 offset:{MLM}")
        A(f"ds_read_b32 v11, v12 offset:{MLL}")
        A("s_waitcnt lgkmcnt(0)")
        A("v_max_u32 v13, v14, v11")
        A("v_cmp_eq_u32 vcc, -1, v13")
        A("s_cbranch_vccz L_sp_m_done")
        self.spin_end("L_sp_m", 4)
        A("L_sp_m_done:")
        CF = T + 28
        A("v_lshlrev_b32 v13, 4, v3")
        A(f"ds_read_b128 v[{CF}:{CF+3}], v13 offset:{MLM}")
        A(f"v_mov_b32 v{T}, v14")
        self.row_allreduce("max", T)
        A(f"v_sub_f32 v14, v14, v{T}")
        A("v_exp_f32 v14, v14")
        A("s_waitcnt lgkmcnt(0)")
        for r in range(4):
            A(f"v_sub_f32 v{CF+r}, v{CF+r}, v{T}")
        A(f"v_mul_f32 v{T+2}, v14, v11")
        for r in range(4):
            A(f"v_exp_f32 v{CF+r}, v{CF+r}")
        A("s_cmp_lg_u32 s7, 2")
        A("s_cbranch_scc1 L_nopub")
        C("helper 2 publishes {M, tag, L, tag} of this WG")
        self.row_allreduce("add", T + 2)
        A(f"v_mov_b32 v{T+1}, s63"); A(f"v_mov_b32 v{T+3}, s63")
        A(f"s_mul_i32 s42, s59, {self.mls}"); A(f"s_add_u32 s42, s42, {self.wsml:#x}")
        A("v_mov_b32 v12, s42")
        A("s_mov_b64 exec, 1")
        if "ml" not in self.skip:
            A(f"global_store_dwordx4 v12, v[{T}:{T+3}], s[40:41] sc1")
        A("s_mov_b64 exec, -1")
        A("L_nopub:")
        G, XV, COL, F = T + 24, T + 25, T + 26, T + 8
        TG = T + 22
        C("addresses for the tail")
        A(f"v_mul_u32_u24 v8, {OBS}, v2")
        A("v_lshl_add_u32 v8, v3, 4, v8")
        C("S row + j*512 + (c>>3)*256 + (kk>>1)*128 + (c&7)*16 + (kk&1)*8")
        A("s_lshl_b32 s42, s7, 9"); A("s_lshl_b32 s43, s59, 11"); A("s_add_u32 s42, s42, s43")
        A("v_lshrrev_b32 v9, 3, v2"); A("v_lshlrev_b32 v9, 8, v9")
        A("v_lshrrev_b32 v13, 1, v3"); A("v_lshl_add_u32 v9, v13, 7, v9")
        A("v_and_b32 v13, 7, v2"); A("v_lshl_add_u32 v9, v13, 4, v9")
        A("v_and_b32 v13, 1, v3"); A("v_lshl_add_u32 v9, v13, 3, v9")
        A("v_add_u32 v9, s42, v9")
        A("v_lshlrev_b32 v13, 4, v13")
        A(f"v_lshrrev_b32 v{TG}, v13, s63")
        A(f"v_bfe_u32 v{TG+1}, v{TG}, 8, 8")
        A(f"v_and_b32 v{TG}, 0xff, v{TG}")
        A(f"v_mov_b32 v{COL}, 0")
        A("v_mov_b32 v7, 0")
        A("s_mov_b32 s8, s40"); A("s_mov_b32 s9, s41"); A("s_mov_b32 s10, 0x80000")
        C("s58 = 1 on consumer waves: helper 3 of WGs >= 128 of one parity")
        A(f"s_and_b32 s42, s2, 0x81"); A("s_lshl_b32 s43, s7, 1"); A("s_or_b32 s42, s42, s43")
        A(f"s_cmp_eq_u32 s42, {0x86 | self.cpar:#x}")
        A("s_cselect_b32 s58, 1, 0")
        A("s_cbranch_scc0 L_nog")
        if "cons" in self.skip:
            A("s_mov_b32 s58, 0")
            A("s_branch L_nog")
        C("consumer: batch bc, line cb: gate and merge factors")
        A("s_bfe_u32 s62, s2, 0x60001")
        A("s_lshr_b32 s60, s62, 4"); A("s_and_b32 s61, s62, 15")
        A("v_and_b32 v12, 7, v4")
        C("S poll address: S[bc][(l>>3) + 8it][line cb] + (l&7)*16")
        A("s_lshl_b32 s42, s60, 17"); A("s_lshl_b32 s43, s61, 7"); A("s_add_u32 s42, s42, s43")
        A("v_lshrrev_b32 v13, 3, v4"); A("v_lshlrev_b32 v13, 11, v13")
        A("v_lshl_add_u32 v7, v12, 4, v13")
        A("v_add_u32 v7, s42, v7")
        C("column = 64(cb>>1) + 4(cb&1) + 8(l&7) + 2(l>>5) + ((l>>4)&1)")
        A("v_lshlrev_b32 v12, 3, v12")
        A("v_lshrrev_b32 v13, 5, v4"); A("v_lshl_add_u32 v12, v13, 1, v12")
        A("v_bfe_u32 v13, v4, 4, 1"); A("v_add_u32 v12, v12, v13")
        A("s_lshr_b32 s42, s61, 1"); A("s_lshl_b32 s42, s42, 6")
        A("s_and_b32 s43, s61, 1"); A("s_lshl_b32 s43, s43, 2"); A("s_add_u32 s42, s42, s43")
        A(f"v_add_u32 v{COL}, s42, v12")
        A(f"v_lshlrev_b32 v13, 1, v{COL}")
        A(f"global_load_ushort v{G}, v13, s[34:35]")
        A("s_lshl_b32 s42, s60, 10")
        A(f"v_add_u32 v{COL}, s42, v13")
        A(f"global_load_ushort v{XV}, v{COL}, s[16:17]")
        A(f"s_mul_i32 s42, s62, {NZ*128}"); A(f"s_add_u32 s42, s42, {WS_Z:#x}")
        A("v_add_u32 v12, s42, v6")
        self.spin_begin("L_sp_z")
        C("28 lines: the upper half of the last load is masked off and holds tagged zeros")
        for d in range(4):
            A(f"v_mov_b32 v{RD+12+d}, s{96+d}")
        for it in range(4):
            if it == 3:
                A("s_mov_b32 exec_hi, 0")
            A(f"global_load_dwordx4 v[{RD+4*it}:{RD+4*it+3}], v12, s[40:41] offset:{it*1024} sc1")
        A("s_mov_b32 exec_hi, -1")
        A("s_waitcnt vmcnt(0)")
        self.chk(13, RD, 16)
        self.chk_branch(13, "L_sp_z", 32)
        A(f"s_mul_i32 s42, s60, {64*self.mls}"); A(f"s_add_u32 s42, s42, {self.wsml:#x}")
        A(f"v_mul_u32_u24 v12, {self.mls}, v4")
        A("v_add_u32 v12, s42, v12")
        A(f"v_lshlrev_b32 v{G}, 16, v{G}")
        A(f"v_lshlrev_b32 v{XV}, 16, v{XV}")
        for it in range(1, 4):
            for d in range(4):
                A(f"v_add_f32 v{RD+d}, v{RD+d}, v{RD+4*it+d}")
        self.xl_reduce4(RD)
        self.rnd(RD, RD)
        A(f"v_add_f32 v{RD}, v{RD}, v{G}")
        self.rnd(RD, RD)
        A(f"v_mul_f32 v{RD+1}, {f32(-math.log2(math.e))}, v{RD}")
        A(f"v_exp_f32 v{RD+1}, v{RD+1}")
        A("s_nop 0")
        A(f"v_add_f32 v{RD+1}, 1.0, v{RD+1}")
        A(f"v_rcp_f32 v{RD+1}, v{RD+1}")
        A("s_nop 0")
        A(f"v_mul_f32 v{G}, v{RD}, v{RD+1}")
        self.rnd(G, G)
        self.spin_begin("L_sp_p")
        A(f"global_load_dwordx4 v[{T}:{T+3}], v12, s[40:41] sc1")
        A("s_waitcnt vmcnt(0)")
        A(f"v_xor_b32 v13, s63, v{T+1}")
        A(f"v_bitop3_b32 v13, v13, v{T+3}, s63 bitop3:0xf6")
        A("v_cmp_ne_u32 vcc, 0, v13")
        A("s_cbranch_vccz L_sp_p_done")
        self.spin_end("L_sp_p", 32)
        A("L_sp_p_done:")
        C("factor of producer p=lane: exp(M_p - M_h) / L_h, partner = lane^1")
        A(f"v_max_f32_dpp v{T+1}, v{T}, v{T} quad_perm:[1,0,3,2] row_mask:0xf bank_mask:0xf")
        A(f"v_sub_f32 v{T}, v{T}, v{T+1}")
        A(f"v_exp_f32 v{T}, v{T}")
        A("s_nop 0")
        A(f"v_mul_f32 v{T+1}, v{T}, v{T+2}")
        A("s_nop 1")
        A(f"v_add_f32_dpp v{T+1}, v{T+1}, v{T+1} quad_perm:[1,0,3,2] row_mask:0xf bank_mask:0xf")
        A(f"v_rcp_f32 v{T+1}, v{T+1}")
        C("F[p] stored at ((p&7)*8 + (p>>3)) so that lane group g = l>>3 reads its 8 factors contiguously")
        A("v_and_b32 v12, 7, v4"); A("v_lshlrev_b32 v12, 5, v12")
        A("v_lshrrev_b32 v13, 3, v4"); A("v_lshl_add_u32 v12, v13, 2, v12")
        A(f"v_mul_f32 v{T}, v{T}, v{T+1}")
        A(f"ds_write_b32 v12, v{T} offset:{FLD}")
        A("v_lshlrev_b32 v13, 5, v13")
        A("s_waitcnt lgkmcnt(0)")
        A(f"ds_read_b128 v[{F}:{F+3}], v13 offset:{FLD}")
        A(f"ds_read_b128 v[{F+4}:{F+7}], v13 offset:{FLD+16}")
        A("s_cmp_lg_u32 s62, 63")
        A("s_cbranch_scc1 L_nobump")
        C("every reader of the tag word is done by now (this wave has seen data that depends on all of them)")
        A(f"v_mov_b32 v12, {WS_EP:#x}")
        A("v_mov_b32 v13, s63")
        A("s_mov_b64 exec, 1")
        A("global_store_dword v12, v13, s[40:41] sc1")
        A("s_mov_b64 exec, -1")
        A("L_nobump:")
        A("s_waitcnt lgkmcnt(0)")
        A("L_nog:")
        self.stamp(5)
        A("s_barrier")
        self.stamp(6)
        for n in range(4):
            A(f"ds_read_b128 v[{RA+4*n}:{RA+4*n+3}], v8 offset:{OB + 64*n}")
        for n in range(4):
            A(f"s_waitcnt lgkmcnt({3-n})")
            self.slabmfma(RD, RA + 4 * n, RB + 32 * n, n == 0)
        A("s_nop 0")
        for jj in range(8):
            A(f"v_mul_f32 v{T+jj}, v{CF}, v{RD+4*jj}")
        for r in range(1, 4):
            for jj in range(8):
                A(f"v_fmac_f32 v{T+jj}, v{CF+r}, v{RD+4*jj+r}")
        for d in range(4):
            A(f"v_permlane32_swap_b32 v{T+d}, v{T+d+4}")
        for d in range(4):
            A(f"v_add_f32 v{T+d}, v{T+d}, v{T+d+4}")
        A("s_nop 0")
        for d in range(2):
            A(f"v_permlane16_swap_b32 v{T+d}, v{T+d+2}")
        for d in range(2):
            A(f"v_add_f32 v{T+d}, v{T+d}, v{T+d+2}")
        for d in range(2):
            A(f"v_and_or_b32 v{T+d}, v{T+d}, v15, v{TG+d}")
        A(f"global_store_dwordx2 v9, v[{T}:{T+1}], s[40:41] sc1")
        self.stamp(7)
        if self.echo and len(self.echo) == 5:
            A("s_cmp_lg_u32 s7, 2")
            A("s_cbranch_scc1 L_e2")
            A("s_getreg_b32 s42, hwreg(HW_REG_XCC_ID)")
            A("s_waitcnt lgkmcnt(0)")
            A(f"v_mov_b32 v{ST}, s64"); A(f"v_mov_b32 v{ST+1}, s{78 if self.echo[0] == 4 else 84}"); A(f"v_mov_b32 v{ST+2}, s76"); A(f"v_mov_b32 v{ST+3}, s42")
            A("s_lshl_b32 s42, s59, 4"); A(f"s_add_u32 s42, s42, {WS_DIAG:#x}")
            A("v_mov_b32 v12, s42")
            A("s_mov_b64 exec, 1")
            A(f"global_store_dwordx4 v12, v[{ST}:{ST+3}], s[40:41] sc1")
            A("s_mov_b64 exec, -1")
            A("L_e2:")
        A("s_cmp_lg_u32 s58, 1")
        A("s_cbranch_scc1 L_hend")
        C("consumer: poll the 64 producers' lines in 8 groups (complete groups are not re-loaded), then reduce")
        MK = 16
        for it in range(8):
            A(f"s_mov_b64 s[{MK+2*it}:{MK+2*it+1}], -1")
        self.spin_begin("L_sp_s")
        A("s_mov_b32 s50, 0")
        for it in range(8):
            A(f"s_mov_b64 exec, s[{MK+2*it}:{MK+2*it+1}]")
            A(f"buffer_load_dwordx4 v[{RD+4*it}:{RD+4*it+3}], v7, s[8:11], s50 offen sc1")
            if it < 7:
                A("s_add_u32 s50, s50, 0x4000")
        A("s_mov_b64 exec, -1")
        A("s_waitcnt vmcnt(0)")
        for it in range(8):
            self.chk(RA + it, RD + 4 * it, 4, ST + 4 * it)
        A(f"v_or3_b32 v13, v{RA}, v{RA+1}, v{RA+2}")
        A(f"v_or3_b32 v12, v{RA+3}, v{RA+4}, v{RA+5}")
        A(f"v_or3_b32 v13, v13, v{RA+6}, v{RA+7}")
        A("v_or_b32 v13, v13, v12")
        A("v_cmp_ne_u32_sdwa vcc, v13, v10 src0_sel:BYTE_0 src1_sel:DWORD")
        A("s_cbranch_vccz L_sp_s_done")
        for it in range(8):
            A(f"v_cmp_ne_u32_sdwa s[{MK+2*it}:{MK+2*it+1}], v{RA+it}, v10 src0_sel:BYTE_0 src1_sel:DWORD")
        for it in range(8):
            A(f"s_cmp_lg_u64 s[{MK+2*it}:{MK+2*it+1}], 0")
            A(f"s_cselect_b64 s[{MK+2*it}:{MK+2*it+1}], -1, 0")
        self.spin_end("L_sp_s", 1)
        A("L_sp_s_done:")
        self.stamp(8)
        for d in range(4):
            A(f"v_mul_f32 v{RD+d}, v{F}, v{ST+d}")
        for it in range(1, 8):
            for d in range(4):
                A(f"v_fmac_f32 v{RD+d}, v{F+it}, v{ST+4*it+d}")
        self.xl_reduce4(RD)
        self.rnd(RD, RD)
        A(f"v_mul_f32 v{RD}, v{RD}, v{G}")
        self.rnd(RD, RD)
        A(f"v_add_f32 v{RD}, v{RD}, v{XV}")
        A(f"v_cvt_pk_bf16_f32 v{RD}, v{RD}, 0")
        A("s_mov_b32 s42, 0x00ff00ff"); A("s_mov_b32 s43, 0x00ff00ff")
        A("s_mov_b64 exec, s[42:43]")
        A(f"global_store_short v{COL}, v{RD}, s[36:37] {self.ofl}".rstrip())
        A("s_mov_b64 exec, -1")
        self.stamp(9)
        if self.echo:
            if len(self.echo) == 3:
                a, b, K = self.echo
                A("s_waitcnt lgkmcnt(0)")
                A(f"s_sub_u32 s42, s{64+2*b}, s{64+2*a}")
            else:
                fld, op, xm, xv, K = self.echo
                A("s_sleep 64")
                A("s_lshl_b32 s42, s60, 10"); A(f"s_add_u32 s42, s42, {WS_DIAG:#x}")
                A("v_add_u32 v12, s42, v6")
                A(f"global_load_dwordx4 v[{ST}:{ST+3}], v12, s[40:41] sc1")
                A("s_waitcnt vmcnt(0) lgkmcnt(0)")
                for i in range(3):
                    A(f"v_subrev_u32 v{ST+i}, s64, v{ST+i}")
                    A(f"v_cvt_f32_i32 v{ST+i}, v{ST+i}")
                A(f"v_mov_b32 v{ST+4}, v{ST}")
                self.wave_allreduce_add(ST + 4, ST + 5, "min")
                if fld >= 3:
                    A("s_sub_u32 s42, s82, s64")
                    A(f"v_cvt_f32_i32 v{ST+4}, s42")
                    A(f"v_sub_f32 v{ST+6}, v{ST+4}, v{ST + (2 if fld == 3 else 1)}")
                else:
                    A(f"v_sub_f32 v{ST+6}, v{ST+fld}, v{ST+4}")
                A(f"v_and_b32 v{ST+3}, {xm}, v{ST+3}")
                A(f"v_cmp_eq_u32 vcc, {xv}, v{ST+3}")
                A(f"v_mov_b32 v{ST+7}, {'0' if op != 'min' else '0x49742400'}")
                A(f"v_cndmask_b32 v{ST+6}, v{ST+7}, v{ST+6}, vcc")
                self.wave_allreduce_add(ST + 6, ST + 5, op)
                if op == "add":
                    n = 64 >> bin(xm).count("1")
                    A(f"v_mul_f32 v{ST+6}, {f32(1.0/n)}, v{ST+6}")
                A(f"v_cvt_i32_f32 v{ST+6}, v{ST+6}")
                A("s_nop 1")
                A(f"v_readfirstlane_b32 s42, v{ST+6}")
                A("s_memrealtime s[82:83]")
                A("s_waitcnt lgkmcnt(0)")
            A(f"s_mul_i32 s42, s42, {K}")
            A(f"s_add_u32 s42, s42, {self.eadd}")
            A("s_min_u32 s42, s42, 100000")
            A("s_add_u32 s42, s42, s82")
            A("L_echo:")
            A("s_memrealtime s[90:91]")
            A("s_waitcnt lgkmcnt(0)")
            A("s_sub_u32 s43, s42, s90")
            A("s_cmp_gt_i32 s43, 0")
            A("s_cbranch_scc1 L_echo")
        A("L_hend:")
        self.dump_stamps(10, 16)

def gen(**kw):
    return Gen(**kw).gen()

if __name__ == "__main__":
    out = sys.argv[1] if len(sys.argv) > 1 else "recurrent_scan__mha_block_cached__mixer_channel_mlp__decode.s"
    kw = eval("dict(" + (sys.argv[2] if len(sys.argv) > 2 else "") + ")")
    open(out, "w").write(gen(**kw))
```

```python
import sys, math, struct
NAME = "recurrent_scan__mha_block_cached__mixer_channel_mlp__decode_kernel"

def f32(x):
    return "0x%08x" % struct.unpack("<I", struct.pack("<f", x))[0]

HEADER = """; Kernarg layout for this problem (104 bytes, ptrs only, base s[0:1]):
"""

XN, QP, MLM, MLL, TAGL, FLD, OB = 0, 8192, 8448, 8512, 8704, 8960, 9216
OBS = 272
LDS_BYTES = 13824
WS_S, WS_ML, WS_EP, WS_Q, WS_U, WS_Z, WS_DIAG = 0, 0x80000, 0x90000, 0x100000, 0x180000, 0x1c0000, 0x200000
NUNIT = 112
NZ = 28
SPIN_MAX = 1 << 18
RK = 8720
WS_BAL = 0xb0000

class Gen:
    DEF = dict(kvflags="nt", wflags="", mflags="nt", diag=False, prog=False, DK=8, DV=8, pre=3, wdepth=2, dks=8,
               bare=0, skip=(), mpar=0, mpar2=None, cpar=0, fprio=3, qsleep=1, adel=0, apar=0, w2p=4,
               echo=None, eadd=0, cpf=3, wearly=0, fb=0, fbn0=8, fbk=14, fboff=0, kdeep=1, ppoll=0, pfast=2, mil=1, pp2=1, pline=0, pdepth=8, sfl='sc1', lfl='sc1')
    def __init__(self, **kw):
        self.L = []
        self.nlab = 0
        for k in kw:
            assert k in self.DEF, k
        for k, v in self.DEF.items():
            setattr(self, k, kw.get(k, v))
        self.skip = set(self.skip)
        if self.mpar2 is None:
            self.mpar2 = self.mpar
    def A(self, s):
        if s.endswith(" sc1"):
            s = s[:-3] + (self.sfl if "_store_" in s else self.lfl)
        self.L.append("  " + s if not s.endswith(":") else s)
    def C(self, s):
        self.L.append("  ; " + s)

    def stamp(self, idx):
        if self.diag or self.echo:
            self.A(f"s_memrealtime s[{64+2*idx}:{65+2*idx}]")
    def dump_stamps(self, n, vt):
        if not self.diag:
            return
        A = self.A
        A("s_waitcnt lgkmcnt(0)")
        A("s_lshl_b32 s60, s2, 3"); A("s_add_u32 s60, s60, s3"); A("s_lshl_b32 s60, s60, 7")
        A(f"s_add_u32 s60, s60, {WS_DIAG:#x}")
        A(f"v_mov_b32 v{vt}, s60")
        A("s_mov_b64 exec, 1")
        for j in range(n):
            A(f"v_mov_b32 v{vt+2}, s{64+2*j}"); A(f"v_mov_b32 v{vt+3}, s{65+2*j}")
            A(f"global_store_dwordx2 v{vt}, v[{vt+2}:{vt+3}], s[40:41] offset:{8*j}")
        A("s_getreg_b32 s60, hwreg(HW_REG_XCC_ID)")
        A(f"v_mov_b32 v{vt+2}, s60")
        A(f"global_store_dword v{vt}, v{vt+2}, s[40:41] offset:120")
        A("s_mov_b64 exec, -1")

    def row_allreduce(self, op, r):
        A = self.A
        for m in ("quad_perm:[1,0,3,2]", "quad_perm:[2,3,0,1]", "row_half_mirror", "row_mirror"):
            A("s_nop 1")
            A(f"v_{op}_f32_dpp v{r}, v{r}, v{r} {m} row_mask:0xf bank_mask:0xf")
    def wave_allreduce_add(self, r, t, op="add"):
        A = self.A
        self.row_allreduce(op, r)
        for sw in ("v_permlane16_swap_b32", "v_permlane32_swap_b32"):
            A(f"v_mov_b32 v{t}, v{r}")
            A("s_nop 1")
            A(f"{sw} v{r}, v{t}")
            A(f"v_{op}_f32 v{r}, v{r}, v{t}")
    def rnd(self, d, s):
        self.A(f"v_cvt_pk_bf16_f32 v{d}, 0, v{s}")

    def layernorm(self, X, n, T, P, unpack_after=True):
        A = self.A
        s, t, q, d = T, T + 1, T + 2, T + 3
        red = (lambda r: self.wave_allreduce_add(r, t)) if n == 8 else (lambda r: self.row_allreduce("add", r))
        A(f"v_add_f32 v{s}, v{X}, v{X+1}")
        for i in range(2, n):
            A(f"v_add_f32 v{s}, v{s}, v{X+i}")
        red(s)
        A(f"v_mul_f32 v{s}, {f32(1.0/512)}, v{s}")
        A(f"v_sub_f32 v{d}, v{X}, v{s}")
        A(f"v_mul_f32 v{q}, v{d}, v{d}")
        for i in range(1, n):
            dd = d if i % 2 == 0 else t
            A(f"v_sub_f32 v{dd}, v{X+i}, v{s}")
            A(f"v_fmac_f32 v{q}, v{dd}, v{dd}")
        red(q)
        A(f"v_mul_f32 v{q}, {f32(1.0/512)}, v{q}")
        self.rnd(s, s)
        self.rnd(q, q)
        A(f"v_add_f32 v{q}, {f32(1e-5)}, v{q}")
        self.rnd(q, q)
        A(f"v_sqrt_f32 v{q}, v{q}")
        A("s_nop 0")
        self.rnd(q, q)
        A(f"v_rcp_f32 v{q}, v{q}")
        for i in range(n):
            A(f"v_sub_f32 v{X+i}, v{X+i}, v{s}")
        for i in range(n):
            self.rnd(X + i, X + i)
        for i in range(n):
            A(f"v_mul_f32 v{X+i}, v{X+i}, v{q}")
        for i in range(n // 2):
            A(f"v_cvt_pk_bf16_f32 v{P+i}, v{X+2*i}, v{X+2*i+1}")
        if unpack_after:
            self.unpack(X, P, n // 2)
    def unpack(self, X, P, n):
        for i in range(n):
            self.A(f"v_lshlrev_b32 v{X+2*i}, 16, v{P+i}")
            self.A(f"v_and_b32 v{X+2*i+1}, 0xffff0000, v{P+i}")

    def slabload(self, dst, srd, voff, stride, flags, last_inc=None, pace=None, cont=False):
        A = self.A
        for e in range(8):
            r = dst + 4 * e
            if pace is not None and (e >= pace or cont):
                A(f"s_waitcnt vmcnt({pace-1})")
            A(f"buffer_load_dwordx4 v[{r}:{r+3}], v{voff}, {srd}, s50 offen {flags}".rstrip())
            inc = stride if e < 7 else last_inc
            if inc is not None:
                A(f"s_add_u32 s50, s50, {inc}")
    def slabperm(self, dst, src):
        A = self.A
        for d in range(4):
            for hf in range(2):
                jj = 2 * d + hf
                for q in range(4):
                    A(f"v_perm_b32 v{dst + 4*jj + q}, v{src + 4*(2*q+1) + d}, v{src + 4*(2*q) + d}, s{48 + hf}")
    def slabmfma(self, RD, RA, B, first):
        A = self.A
        for jj in range(8):
            b = B + 4 * jj
            c = "0" if first else f"v[{RD+4*jj}:{RD+4*jj+3}]"
            A(f"v_mfma_f32_16x16x32_bf16 v[{RD+4*jj}:{RD+4*jj+3}], v[{RA}:{RA+3}], v[{b}:{b+3}], {c}")

    def spin_begin(self, lab):
        self.A(f"s_mov_b32 s55, {SPIN_MAX}")
        self.A(f"{lab}:")
    def spin_end(self, lab, sleep):
        A = self.A
        A(f"s_sleep {sleep}")
        A("s_sub_u32 s55, s55, 1")
        A("s_cmp_lg_u32 s55, 0")
        A(f"s_cbranch_scc1 {lab}")
    def xl_reduce4(self, R):
        A = self.A
        A("s_nop 0")
        for d in range(2):
            A(f"v_permlane32_swap_b32 v{R+d}, v{R+d+2}")
        for d in range(2):
            A(f"v_add_f32 v{R+d}, v{R+d}, v{R+d+2}")
        A("s_nop 1")
        A(f"v_permlane16_swap_b32 v{R}, v{R+1}")
        A(f"v_add_f32 v{R}, v{R}, v{R+1}")
        A("s_nop 1")
        A(f"v_add_f32_dpp v{R}, v{R}, v{R} row_ror:8 row_mask:0xf bank_mask:0xf")

    def gen(self):
        A, C = self.A, self.C
        self.L.append(HEADER.rstrip())
        self.L.append(f"; @launch grid=(256,1,1) block=(512,1,1) lds={LDS_BYTES}")
        self.L.append('.amdgcn_target "amdgcn-amd-amdhsa--gfx950"')
        self.L.append(".text"); self.L.append(f".globl {NAME}"); self.L.append(".p2align 8")
        self.L.append(f".type {NAME},@function"); self.L.append(f"{NAME}:")
        self.stamp(0)
        A("s_load_dwordx16 s[16:31], s[0:1], 0")
        A("s_load_dwordx8 s[32:39], s[0:1], 64")
        A("s_load_dwordx2 s[40:41], s[0:1], 96")
        A("s_cmp_ge_u32 s2, 256")
        A("s_cbranch_scc1 L_end")
        A("v_lshrrev_b32 v1, 6, v0")
        A("v_and_b32 v2, 15, v0")
        A("v_readfirstlane_b32 s3, v1")
        C("s59 = producer index b*64 + 2h + side, b = wg>>6, h = 4(wg&7) + ((wg>>4)&3), side = (wg>>3)&1")
        A("s_and_b32 s59, s2, 0xc0"); A("s_and_b32 s4, s2, 7"); A("s_lshl3_add_u32 s59, s4, s59")
        A("s_bfe_u32 s4, s2, 0x30003"); A("s_or_b32 s59, s59, s4")
        if self.cpf:
            A("s_cmp_lt_u32 s3, 4")
            A("s_cbranch_scc1 L_stream")
            C("helper waves pull a slice of this kernel's code towards the L2")
            A("s_getpc_b64 s[42:43]")
            A("L_pc:")
            A("s_lshr_b32 s44, s2, 3"); A("s_lshl2_add_u32 s44, s44, s3")
            A(f"s_mul_i32 s44, s44, {64*self.cpf}")
            A(f"s_min_u32 s44, s44, L_end-L_pc-{64*(self.cpf-1)}")
            for k in range(self.cpf):
                A(f"s_load_dword s{45+k}, s[42:43], s44 offset:{64*k}")
            A("s_branch L_helper")
            A("L_stream:")
        else:
            A("s_cmp_ge_u32 s3, 4")
            A("s_cbranch_scc1 L_helper")
        self.stream()
        self.helper()
        A("L_end:")
        A("s_endpgm")
        L = self.L
        L.append('.section .rodata,"a"'); L.append(".p2align 6"); L.append(f".amdhsa_kernel {NAME}")
        L.append("  .amdhsa_next_free_vgpr 256"); L.append("  .amdhsa_next_free_sgpr 102"); L.append("  .amdhsa_accum_offset 256")
        L.append("  .amdhsa_group_segment_fixed_size 0"); L.append("  .amdhsa_kernarg_size 104")
        L.append("  .amdhsa_user_sgpr_count 2"); L.append("  .amdhsa_user_sgpr_kernarg_segment_ptr 1")
        L.append("  .amdhsa_system_sgpr_workgroup_id_x 1")
        L.append("  .amdhsa_float_denorm_mode_32 3")
        L.append(".end_amdhsa_kernel")
        return "\n".join(L) + "\n"

    def stream(self):
        A, C = self.A, self.C
        RING = 64
        P = 24
        Q = 8
        S = 40
        ACC = 48
        PLO, PHI = 12, 13
        VOFF = 5
        fl = self.kvflags
        DK, DV, pre = self.DK, self.DV, self.pre
        C("===== stream waves =====")
        A("v_lshlrev_b32 v7, 4, v2")
        A("v_lshrrev_b32 v6, 4, v0")
        A("v_lshl_or_b32 v5, v6, 12, v7")
        A("s_lshl_b32 s7, s59, 19")
        A("s_mov_b32 s10, 0x80000"); A("s_mov_b32 s11, 0x20000")
        A("s_waitcnt lgkmcnt(0)")
        A("s_add_u32 s8, s18, s7"); A("s_addc_u32 s9, s19, 0")
        self.stamp(5)
        issued = []
        def load(slot, srd, so, tag=None):
            r = RING + 4 * slot
            A(f"buffer_load_dwordx4 v[{r}:{r+3}], v{VOFF}, {srd}, {so} offen offset:{(slot % 16)*256} {fl}".rstrip())
            issued.append(tag)
        def wait(tag):
            A(f"s_waitcnt vmcnt({len(issued) - 1 - issued.index(tag)})")
        def swait(D, cond=False):
            A(f"s_waitcnt vmcnt({D-1})")
            if cond and self.adel:
                self.nlab += 1
                A(f"s_cbranch_vccnz L_ad{self.nlab}")
                A(f"s_waitcnt vmcnt({D-1-self.adel})")
                A(f"L_ad{self.nlab}:")
        for gi in range(pre):
            for j in range(16):
                n = 16 * gi + j
                dd = self.dks
                if n == dd:
                    self.stamp(6)
                if dd and n >= dd:
                    swait(dd)
                if n == dd:
                    self.stamp(7)
                if n == 2 * dd:
                    self.stamp(8)
                load(n, "s[8:11]", "s50" if gi else "0", (gi, j))
            A(f"s_mov_b32 s50, {(gi + 1) << 16:#x}")
        A("s_mov_b32 s14, s10"); A("s_mov_b32 s15, s11"); A("s_mov_b32 s46, s10"); A("s_mov_b32 s47, s11")
        A("s_add_u32 s12, s20, s7"); A("s_addc_u32 s13, s21, 0")
        A("s_mov_b32 s52, 0xaaaaaaaa"); A("s_mov_b32 s53, 0xaaaaaaaa")
        A("s_mov_b32 s56, 0xcccccccc"); A("s_mov_b32 s57, 0xcccccccc")
        self.stamp(1)
        A("s_barrier")
        A(f"ds_read_b128 v[{Q}:{Q+3}], v7 offset:{QP}")
        self.stamp(2)
        A("s_waitcnt lgkmcnt(0)")
        def qk(slots):
            for d in range(4):
                for slot in slots:
                    r = RING + 4 * slot
                    p = P + slot % 16
                    c = "0" if d == 0 else f"v{p}"
                    A(f"v_dot2_f32_bf16 v{p}, v{r+d}, v{Q+d}, {c}")
        def treduce(dst, mid=()):
            C("transposing reduction: lane (g,c) <- score of load c, key g")
            for t in range(8):
                A(f"v_add_f32_dpp v{P+t}, v{P+t}, v{P+t} row_ror:8 row_mask:0xf bank_mask:0x3")
            for t in range(8):
                A(f"v_add_f32_dpp v{P+t}, v{P+t+8}, v{P+t+8} row_ror:8 row_mask:0xf bank_mask:0xc")
            for t in range(4):
                A(f"v_add_f32_dpp v{P+t}, v{P+t}, v{P+t} row_half_mirror row_mask:0xf bank_mask:0x5")
            for t in range(4):
                A(f"v_add_f32_dpp v{P+t}, v{P+t+4}, v{P+t+4} row_half_mirror row_mask:0xf bank_mask:0xa")
            U0, U1, T0, T1 = P + 8, P + 9, P + 10, P + 11
            A(f"v_cndmask_b32 v{U0}, v{P+1}, v{P}, s[52:53]")
            A(f"v_cndmask_b32 v{U1}, v{P+3}, v{P+2}, s[52:53]")
            A(f"v_cndmask_b32 v{T0}, v{P}, v{P+1}, s[52:53]")
            A(f"v_cndmask_b32 v{T1}, v{P+2}, v{P+3}, s[52:53]")
            A("s_nop 1")
            A(f"v_add_f32_dpp v{T0}, v{U0}, v{T0} quad_perm:[1,0,3,2] row_mask:0xf bank_mask:0xf")
            A(f"v_add_f32_dpp v{T1}, v{U1}, v{T1} quad_perm:[1,0,3,2] row_mask:0xf bank_mask:0xf")
            A(f"v_cndmask_b32 v{U0}, v{T1}, v{T0}, s[56:57]")
            A(f"v_cndmask_b32 v{U1}, v{T0}, v{T1}, s[56:57]")
            if mid:
                for m in mid:
                    A(m)
            else:
                A("s_nop 1")
            A(f"v_add_f32_dpp v{dst}, v{U0}, v{U1} quad_perm:[2,3,0,1] row_mask:0xf bank_mask:0xf")
        C("catch-up over the prefetched groups; group `pre` is loaded into ring slots 0..15 meanwhile")
        nxt = 0
        for gi in range(pre):
            for j in range(0, 16, 2):
                wait((gi, j + 1))
                qk([16 * gi + j, 16 * gi + j + 1])
                if gi == 0:
                    want = j + 2 if (j < 8 or pre == 1) else 8
                elif gi == 1:
                    want = 8 + j // 2 + 1
                else:
                    want = 16
                while nxt < want:
                    load(nxt, "s[8:11]", "s50", (pre, nxt)); nxt += 1
            A("s_nop 0")
            treduce(S + 8 - pre + gi)
        assert nxt == 16
        for j in range(16 - DK):
            wait((pre, j))
            qk([j])
        A(f"s_mov_b32 s54, {pre}")
        A("s_branch L_kmid")
        A("L_kloop:")
        for j in range(16 - DK):
            swait(DK)
            load(j + DK, "s[8:11]", "s50")
            qk([j])
        A("L_kmid:")
        if self.prog:
            A("s_memrealtime s[90:91]")
        C("the rest refills from the next group (V group 0 after the last K group)")
        A("s_add_u32 s50, s50, 0x10000")
        A("s_cmp_eq_u32 s54, 7")
        A("s_cselect_b32 s44, s12, s8"); A("s_cselect_b32 s45, s13, s9"); A("s_cselect_b32 s51, 0, s50")
        for j in range(16 - DK, 16):
            swait(DK)
            load(j + DK - 16, "s[44:47]", "s51")
            qk([j])
        if self.prog:
            A("s_waitcnt lgkmcnt(0)")
            A("s_mov_b32 m0, s54"); A("s_nop 0")
            A("v_writelane_b32 v60, s90, m0")
        for i in range(7):
            A(f"v_mov_b32 v{S+i}, v{S+i+1}")
        treduce(S + 7, ("s_add_u32 s54, s54, 1", "s_cmp_lt_u32 s54, 8"))
        A("s_cbranch_scc1 L_kloop")
        self.stamp(3)
        A("s_mov_b32 s50, 0")
        for j in range(DK, DV):
            load(j, "s[12:15]", "s50")
        C("softmax over this row's 128 keys (true max of the partial; partials are merged exactly later)")
        M, Ls = 14, 15
        cs = math.log2(math.e) / math.sqrt(128.0)
        A(f"s_mov_b32 s58, {f32(cs)}")
        A(f"v_max3_f32 v{M}, v{S}, v{S+1}, v{S+2}")
        A(f"v_max3_f32 v{M}, v{M}, v{S+3}, v{S+4}")
        A(f"v_max3_f32 v{M}, v{M}, v{S+5}, v{S+6}")
        A(f"v_max_f32 v{M}, v{M}, v{S+7}")
        self.row_allreduce("max", M)
        A(f"v_mul_f32 v{M}, s58, v{M}")
        for i in range(8):
            A(f"v_fma_f32 v{S+i}, v{S+i}, s58, -v{M}")
        for i in range(8):
            A(f"v_exp_f32 v{S+i}, v{S+i}")
        for i in range(8):
            A(f"v_mov_b32 v{ACC+i}, 0")
        A(f"v_add_f32 v{Ls}, v{S}, v{S+1}")
        for i in range(2, 8):
            A(f"v_add_f32 v{Ls}, v{Ls}, v{S+i}")
        self.row_allreduce("add", Ls)
        A(f"v_lshlrev_b32 v16, 2, v6")
        A(f"v_min_u32 v{M}, -2, v{M}")
        A(f"v_min_u32 v{Ls}, -2, v{Ls}")
        A(f"ds_write_b32 v16, v{M} offset:{MLM}")
        A(f"ds_write_b32 v16, v{Ls} offset:{MLL}")
        A(f"v_mul_u32_u24 v17, {OBS}, v6")
        A("v_add_u32 v17, v7, v17")
        A("s_mov_b32 s54, 0")
        if self.fb:
            A("v_mov_b32 v59, 0"); A("s_mov_b32 s61, 0")
            A(f"s_mov_b64 vcc, {0 if self.fbn0 > 0 else -1}")
        elif self.adel:
            A(f"s_bitcmp{1-self.apar}_b32 s2, 0")
            A("s_cselect_b64 vcc, -1, 0")
        assert DV >= DK
        def pv(slot):
            r = RING + 4 * slot
            for d in range(4):
                A(f"v_dot2c_f32_bf16_dpp v{ACC+2*d}, v{PLO}, v{r+d} row_newbcast:{slot} row_mask:0xf bank_mask:0xf")
                A(f"v_dot2c_f32_bf16_dpp v{ACC+2*d+1}, v{PHI}, v{r+d} row_newbcast:{slot} row_mask:0xf bank_mask:0xf")
        A("L_vloop:")
        A(f"v_cvt_pk_bf16_f32 v{PLO}, v{S}, 0")
        A(f"v_cvt_pk_bf16_f32 v{PHI}, 0, v{S}")
        for i in range(7):
            A(f"v_mov_b32 v{S+i}, v{S+i+1}")
        for j in range(16):
            if j == 16 - DV and self.prog:
                A("s_memrealtime s[90:91]")
            if j == 16 - DV:
                A("s_add_u32 s50, s50, 0x10000")
            swait(DV, True)
            load((j + DV) % 16, "s[12:15]", "s50")
            pv(j)
            if self.fb and j % 8 == 2:
                A(f"ds_read_b32 v58, v59 offset:{RK}")
            if self.fb and j % 8 == 4:
                A("s_waitcnt lgkmcnt(0)")
                A("v_cmp_ge_i32 vcc, s61, v58")
                A("s_add_u32 s61, s61, 1")
        if self.prog:
            A("s_waitcnt lgkmcnt(0)")
            A("s_add_u32 m0, s54, 8"); A("s_nop 0")
            A("v_writelane_b32 v60, s90, m0")
        A("s_add_u32 s54, s54, 1")
        A("s_cmp_lt_u32 s54, 8")
        A("s_cbranch_scc1 L_vloop")
        self.stamp(4)
        A("s_nop 1")
        for d in range(4):
            A(f"v_cvt_pk_bf16_f32 v{20+d}, v{ACC+2*d}, v{ACC+2*d+1}")
        A(f"ds_write_b128 v17, v[20:23] offset:{OB}")
        A("s_waitcnt lgkmcnt(0)")
        A("s_barrier")
        self.dump_stamps(9, 24)
        if self.prog:
            A("s_lshl_b32 s60, s2, 2"); A("s_add_u32 s60, s60, s3"); A("s_lshl_b32 s60, s60, 6")
            A(f"s_add_u32 s60, s60, {WS_DIAG + 0x80000:#x}")
            A("v_and_b32 v24, 63, v0"); A("v_lshlrev_b32 v24, 2, v24")
            A("v_add_u32 v24, s60, v24")
            A("s_mov_b64 exec, 0xffff")
            A("global_store_dword v24, v60, s[40:41]")
        A("s_endpgm")

    TB = 100
    def tag4(self, R, n=4):
        for i in range(n):
            self.A(f"v_and_or_b32 v{R+i}, v{R+i}, v15, s{96 + i % 4}")
    def chk(self, acc, R, n, D=None):
        D = R if D is None else D
        for i in range(n):
            self.A(f"v_xor_b32 v{D+i}, s{96 + i % 4}, v{R+i}")
        self.A(f"v_or3_b32 v{acc}, v{D}, v{D+1}, v{D+2}")
        i = 3
        while i < n:
            if i + 1 < n:
                self.A(f"v_or3_b32 v{acc}, v{acc}, v{D+i}, v{D+i+1}"); i += 2
            else:
                self.A(f"v_or_b32 v{acc}, v{acc}, v{D+i}"); i += 1
    def chk_branch(self, acc, lab, sleep):
        A = self.A
        A(f"v_cmp_ne_u32_sdwa vcc, v{acc}, v10 src0_sel:BYTE_0 src1_sel:DWORD")
        A(f"s_cbranch_vccz {lab}_done")
        self.spin_end(lab, sleep)
        A(f"{lab}_done:")

    def set_tag(self):
        for k in range(4):
            self.A(f"s_bfe_u32 s{96+k}, s63, {0x80000 + 8*k:#x}")

    def ppoll_code(self, RD, ST):
        A = self.A
        MK = 16
        for it in range(8):
            A(f"s_mov_b64 s[{MK+2*it}:{MK+2*it+1}], -1")
            A(f"s_mov_b32 s{44+it}, {it*0x4000:#x}")
        A("s_mov_b32 s56, 512")
        self.spin_begin("L_sp_s")
        for it in range(8):
            A(f"s_mov_b64 exec, s[{MK+2*it}:{MK+2*it+1}]")
            A(f"buffer_load_dwordx4 v[{RD+4*it}:{RD+4*it+3}], v7, s[8:11], s{44+it} offen sc1")
        A(f"s_cmp_le_u32 s56, {8*self.pfast}")
        A("s_cbranch_scc1 L_sp_f")
        A("s_waitcnt vmcnt(0)")
        A("L_sp_f:")
        A(f"s_waitcnt vmcnt({8*(self.ppoll-1)})")
        A("s_mov_b32 s56, 0")
        for it in range(8):
            m = f"s[{MK+2*it}:{MK+2*it+1}]"
            A(f"s_mov_b64 exec, {m}")
            A(f"s_cbranch_execz L_sp_g{it}")
            self.chk(13, RD + 4 * it, 4, ST + 4 * it)
            for mm in ("quad_perm:[1,0,3,2]", "quad_perm:[2,3,0,1]", "row_half_mirror"):
                A("s_nop 1")
                A(f"v_or_b32_dpp v13, v13, v13 {mm} row_mask:0xf bank_mask:0xf")
            A(f"v_cmp_ne_u32_sdwa {m}, v13, v10 src0_sel:BYTE_0 src1_sel:DWORD")
            A(f"s_bcnt1_i32_b64 s42, {m}")
            A("s_add_u32 s56, s56, s42")
            A(f"L_sp_g{it}:")
        A("s_cmp_eq_u32 s56, 0")
        A("s_cbranch_scc1 L_sp_s_done")
        A("s_sub_u32 s55, s55, 1")
        A("s_cbranch_scc0 L_sp_s")

    def pp2_setup(self, ST):
        A = self.A
        A("s_xor_b32 s42, s96, 1")
        for it in range(8):
            A(f"s_mov_b64 s[{16+2*it}:{17+2*it}], -1")
            A(f"s_mov_b32 s{44+it}, {it*0x4000:#x}")
            A(f"v_mov_b32 v{ST+4*it}, s42")
        A("s_mov_b32 s56, 0xff")
        A(f"s_mov_b32 s55, {SPIN_MAX*8}")
    def pp2_code(self, RD, ST):
        A = self.A
        def ld(it):
            A(f"buffer_load_dwordx4 v[{ST+4*it}:{ST+4*it+3}], v7, s[8:11], s{44+it} offen sc1")
        for it in range(8):
            ld(it)
        A("L_sp_s:")
        for it in range(8):
            m = f"s[{16+2*it}:{17+2*it}]"
            if self.pline:
                A(f"s_mov_b64 exec, {m}")
                A(f"s_cbranch_execz L_pg{it+1}")
            else:
                A(f"s_bitcmp1_b32 s56, {it}")
                A(f"s_cbranch_scc0 L_pg{it+1}")
            A(f"L_ps{it}:")
            A(f"s_waitcnt vmcnt({self.pdepth-1})")
            self.chk(13, ST + 4 * it, 4, RD + 4 * it)
            if self.pline:
                for mm in ("quad_perm:[1,0,3,2]", "quad_perm:[2,3,0,1]", "row_half_mirror"):
                    A("s_nop 1")
                    A(f"v_or_b32_dpp v13, v13, v13 {mm} row_mask:0xf bank_mask:0xf")
                A(f"v_cmp_ne_u32_sdwa {m}, v13, v10 src0_sel:BYTE_0 src1_sel:DWORD")
                A(f"s_mov_b64 exec, {m}")
                A(f"s_cbranch_execz L_pd{it}")
            else:
                A(f"v_cmp_ne_u32_sdwa vcc, v13, v10 src0_sel:BYTE_0 src1_sel:DWORD")
                A(f"s_cbranch_vccz L_pd{it}")
            ld(it)
            A(f"s_cmp_lg_u32 s56, {1 << it}")
            A(f"s_cbranch_scc1 L_pg{it+1}")
            A("s_sub_u32 s55, s55, 1")
            A(f"s_cbranch_scc0 L_ps{it}")
            A("s_branch L_sp_s_done")
            A(f"L_pd{it}:")
            A(f"s_andn2_b32 s56, s56, {1 << it}")
            A("s_cbranch_scc0 L_sp_s_done")
            A(f"L_pg{it+1}:")
        A("s_sub_u32 s55, s55, 1")
        A("s_cbranch_scc0 L_sp_s")

    def helper(self):
        A, C = self.A, self.C
        wf, mf = self.wflags, self.mflags
        RA, RD = 16, 32
        RB = 64
        ST = 192
        T = 224
        A("L_helper:")
        C("===== helper waves =====")
        A("s_sub_u32 s7, s3, 4")
        A("v_bfe_u32 v3, v0, 4, 2")
        A("v_and_b32 v4, 63, v0")
        A("s_bfe_u32 s4, s59, 0x50001")
        A("s_lshr_b32 s5, s2, 6")
        A("s_mov_b32 s57, 0")
        if self.bare == 1:
            A("s_waitcnt lgkmcnt(0)")
            A("s_barrier"); A("s_barrier"); A("s_branch L_hend")
        A("s_mov_b32 s48, 0x05040100"); A("s_mov_b32 s49, 0x07060302")
        A("v_lshlrev_b32 v6, 4, v4")
        A("v_mov_b32 v10, 0")
        A("v_mov_b32 v15, 0xffffff00")
        A("s_mov_b32 s11, 0x20000"); A("s_mov_b32 s15, 0x20000")
        C("s62 = MLP unit of this WG (>= NUNIT: none)")
        A("s_lshr_b32 s62, s2, 1")
        A("s_and_b32 s42, s2, 1"); A(f"s_cmp_eq_u32 s42, {self.mpar}")
        A("s_cselect_b32 s62, s62, 255")
        A("s_cmp_ge_u32 s7, 2")
        A("s_cbranch_scc1 L_nofront")
        A("s_cmp_eq_u32 s7, 0")
        A("s_cbranch_scc1 L_front")
        A(f"s_cmp_ge_u32 s62, {NUNIT}")
        A("s_cbranch_scc1 L_nofront")
        if "s1" in self.skip:
            A("s_branch L_nofront")
        A("L_front:")
        C("front units, 64 rows x 128 cols for all 4 batch rows. helper 0: wq rows 64(2b+side).., cols 128h..")
        C("helper 1: w1 rows 64(u&7).., cols 128(u>>3)..")
        A(f"s_setprio {self.fprio}")
        A("s_mov_b32 s57, 1")
        A("s_and_b32 s42, s59, 1"); A("s_lshl1_add_u32 s42, s5, s42"); A("s_and_b32 s43, s62, 7")
        A("s_lshr_b32 s44, s62, 3")
        A("s_mov_b32 s51, 3584")
        A("s_cmp_eq_u32 s7, 0")
        A("s_cselect_b32 s53, s42, s43")
        A("s_cselect_b32 s44, s4, s44")
        A("s_cselect_b32 s51, 8192, s51")
        A("s_lshl_b32 s10, s51, 9")
        A("s_mul_i32 s52, s51, 25")
        A("s_mul_i32 s50, s53, s51"); A("s_lshl_b32 s50, s50, 6"); A("s_lshl_b32 s44, s44, 8"); A("s_add_u32 s50, s50, s44")
        A("s_lshl_b32 s42, s51, 3")
        A("v_mul_u32_u24 v5, s42, v3")
        A("v_lshl_add_u32 v5, v2, 4, v5")
        A("v_lshlrev_b32 v12, 10, v3")
        A("v_lshl_add_u32 v12, v2, 4, v12")
        A("s_cmp_eq_u32 s7, 0")
        A("s_waitcnt lgkmcnt(0)")
        for t in range(4):
            A(f"global_load_dwordx4 v[{RB+32+4*t}:{RB+35+4*t}], v12, s[16:17] offset:{256*t}")
        C("the word the previous launch left only serves to pick a tag that differs from that launch's")
        A(f"s_load_dword s63, s[40:41], {WS_EP:#x}")
        A("s_cselect_b32 s8, s22, s28"); A("s_cselect_b32 s9, s23, s29")
        if "fld" in self.skip:
            A("s_mov_b32 s10, 0")
        self.slabload(RB + 96, "s[8:11]", 5, "s51", mf, last_inc="s52")
        self.slabload(ST, "s[8:11]", 5, "s51", mf)
        A("s_lshl_b32 s42, s7, 12")
        A("v_add_u32 v12, s42, v12")
        C("A operand: rows[i>>2][64*blk + 32n + 8kk]")
        A("v_lshrrev_b32 v13, 2, v2")
        A("v_lshlrev_b32 v13, 10, v13")
        A("v_lshl_add_u32 v13, v3, 4, v13")
        A("s_lshl_b32 s43, s53, 7"); A("s_add_u32 s42, s42, s43")
        A("v_add_u32 v13, s42, v13")
        A("s_mov_b32 s54, s7")
        A("s_waitcnt vmcnt(16)")
        self.stamp(1)
        A("L_ln:")
        self.unpack(RB, RB + 32, 16)
        self.layernorm(RB, 32, T, RB + 32, unpack_after=False)
        A("s_sub_u32 s54, s54, 1")
        A("s_cbranch_scc0 L_ln")
        for t in range(4):
            A(f"ds_write_b128 v12, v[{RB+32+4*t}:{RB+35+4*t}] offset:{XN + 256*t}")
        A("s_waitcnt vmcnt(8)")
        self.slabperm(RB + 64, RB + 96)
        A("s_waitcnt lgkmcnt(0)")
        A(f"ds_read_b128 v[{RA}:{RA+3}], v13 offset:{XN}")
        A(f"ds_read_b128 v[{RA+4}:{RA+7}], v13 offset:{XN+64}")
        A("s_add_u32 s63, s63, 0x61c88647")
        self.set_tag()
        A("s_waitcnt vmcnt(0)")
        self.slabperm(RB + 96, ST)
        A("s_waitcnt lgkmcnt(0)")
        self.slabmfma(RD, RA, RB + 64, True)
        self.slabmfma(RD, RA + 4, RB + 96, False)
        A("s_cmp_eq_u32 s7, 0")
        A("s_cbranch_scc1 L_qaddr")
        C("U[u][sub=c>>2][half][b=kk][c&3][4]")
        A("s_lshl_b32 s42, s62, 11"); A(f"s_add_u32 s42, s42, {WS_U:#x}")
        A("v_lshrrev_b32 v12, 2, v2"); A("v_lshlrev_b32 v12, 9, v12")
        A("v_lshl_add_u32 v12, v3, 6, v12")
        A("v_and_b32 v13, 3, v2"); A("v_lshl_add_u32 v12, v13, 4, v12")
        A("s_branch L_fst")
        A("L_qaddr:")
        C("Q[h][b=kk][s][half][c][4]")
        A("s_lshl_b32 s42, s4, 14"); A("s_lshl_b32 s43, s53, 9"); A("s_add_u32 s42, s42, s43")
        A(f"s_add_u32 s42, s42, {WS_Q:#x}")
        A("v_lshlrev_b32 v12, 12, v3")
        A("v_lshl_add_u32 v12, v2, 4, v12")
        A("L_fst:")
        A("v_add_u32 v12, s42, v12")
        for jj in range(8):
            A(f"v_and_or_b32 v{T+jj}, v{RD+4*jj}, v15, s{96 + jj % 4}")
        if "fst" not in self.skip:
            A(f"global_store_dwordx4 v12, v[{T}:{T+3}], s[40:41] sc1")
            A(f"global_store_dwordx4 v12, v[{T+4}:{T+7}], s[40:41] offset:256 sc1")
        self.stamp(2)
        A("s_cmp_lg_u32 s7, 0")
        A("s_cbranch_scc1 L_fdone")
        C("helper 0: gather the 8 partials of q[b][h], LDS init")
        A("s_lshl_b32 s42, s4, 14"); A("s_lshl_b32 s43, s5, 12"); A("s_add_u32 s42, s42, s43")
        A(f"s_add_u32 s42, s42, {WS_Q:#x}")
        A("v_add_u32 v12, s42, v6")
        A("v_lshlrev_b32 v8, 2, v4")
        A("v_mov_b32 v9, -1")
        A(f"ds_write_b32 v8, v9 offset:{MLM}")
        A("v_mov_b32 v9, s63")
        A(f"ds_write_b32 v10, v9 offset:{TAGL}")
        if self.fb:
            A(f"v_mov_b32 v9, {self.fbn0}")
            A(f"ds_write_b32 v10, v9 offset:{RK}")
        A("v_bfe_u32 v9, v4, 4, 1")
        A("v_lshlrev_b32 v9, 3, v9")
        A("v_lshl_add_u32 v9, v2, 4, v9")
        if "qpoll" in self.skip:
            A("s_branch L_sp_q_done")
        C("the partners publish at about the same time: look once the own stores are acknowledged")
        A("s_waitcnt vmcnt(0)")
        self.spin_begin("L_sp_q")
        for t in range(4):
            A(f"global_load_dwordx4 v[{RD+4*t}:{RD+4*t+3}], v12, s[40:41] offset:{1024*t} sc1")
        A("s_waitcnt vmcnt(0)")
        self.chk(13, RD, 16)
        self.chk_branch(13, "L_sp_q", self.qsleep)
        for d in range(4):
            A(f"v_add_f32 v{RD+d}, v{RD+d}, v{RD+4+d}")
            A(f"v_add_f32 v{RD+8+d}, v{RD+8+d}, v{RD+12+d}")
        for d in range(4):
            A(f"v_add_f32 v{RD+d}, v{RD+d}, v{RD+8+d}")
        for d in range(4):
            A(f"v_mov_b32 v{RD+4+d}, v{RD+d}")
        A("s_nop 1")
        for d in range(4):
            A(f"v_permlane32_swap_b32 v{RD+d}, v{RD+4+d}")
        for d in range(4):
            A(f"v_add_f32 v{RD+d}, v{RD+d}, v{RD+4+d}")
        for d in range(2):
            A(f"v_cvt_pk_bf16_f32 v{RD+d}, v{RD+2*d}, v{RD+2*d+1}")
        A(f"ds_write_b64 v9, v[{RD}:{RD+1}] offset:{QP}")
        A("L_fdone:")
        A("s_setprio 0")
        A("L_nofront:")
        A("s_waitcnt lgkmcnt(0)")
        self.stamp(3)
        if self.bare == 2:
            A("s_barrier"); A("s_barrier"); A("s_branch L_hend")
        C("----- wo block: rows 128h.., cols 128j.. (paced; helper 2 keeps one more load in flight) -----")
        A("v_lshlrev_b32 v5, 4, v2")
        A("v_lshl_or_b32 v5, v3, 13, v5")
        A("s_lshl_b32 s50, s4, 17"); A("s_lshl_b32 s43, s7, 8"); A("s_add_u32 s50, s50, s43")
        A("s_mov_b32 s8, s24"); A("s_mov_b32 s9, s25"); A("s_mov_b32 s10, 0x400000")
        A("s_cmp_eq_u32 s7, 2")
        A("s_cselect_b64 vcc, -1, 0")
        if self.wearly == 1:
            C("waves without front work take their first round before the barrier")
            A("s_cmp_eq_u32 s57, 0")
            A("s_cbranch_scc1 L_nb1")
        elif self.wearly == 2:
            A("s_cselect_b32 s57, 0, 1")
            A("s_cbranch_scc1 L_nb1")
        A("s_barrier")
        A("L_nb1:")
        def wo_round(n):
            wd = self.wdepth
            for e in range(8):
                r = ST + 4 * e
                if e >= wd:
                    A(f"s_waitcnt vmcnt({wd})")
                    A(f"s_cbranch_vccnz L_wo{n}_{e}")
                    A(f"s_waitcnt vmcnt({wd-1})")
                    A(f"L_wo{n}_{e}:")
                A(f"buffer_load_dwordx4 v[{r}:{r+3}], v5, s[8:11], s50 offen {wf}".rstrip())
                A(f"s_add_u32 s50, s50, {1024 if e < 7 else 25*1024}")
            A("s_waitcnt vmcnt(0)")
            self.slabperm(RB + 32 * n, ST)
        wo_round(0)
        if self.wearly:
            A("s_cmp_lg_u32 s57, 0")
            A("s_cbranch_scc1 L_nb2")
            self.stamp(3)
            A("s_barrier")
            A("L_nb2:")
        self.stamp(10)
        A(f"ds_read_b32 v13, v10 offset:{TAGL}")
        A("s_waitcnt lgkmcnt(0)")
        A("v_readfirstlane_b32 s63, v13")
        self.set_tag()
        A("s_cmp_lg_u32 s7, 1")
        A("s_cbranch_scc1 L_not1")
        if self.mpar2 != self.mpar:
            A("s_lshr_b32 s62, s2, 1")
            A("s_and_b32 s42, s2, 1"); A(f"s_cmp_eq_u32 s42, {self.mpar2}")
            A("s_cselect_b32 s62, s62, 255")
        A(f"s_cmp_ge_u32 s62, {NUNIT}")
        A("s_cbranch_scc1 L_not1")
        if "s2" in self.skip:
            A("s_branch L_not1")
        C("stage 2 unit: r = u>>2 (hidden rows 64r..), cq = u&3 (cols 128cq..)")
        A("s_mov_b32 s51, s50")
        A("s_lshr_b32 s60, s62, 2"); A("s_and_b32 s61, s62, 3")
        A("s_lshl_b32 s50, s60, 16"); A("s_lshl_b32 s43, s61, 8"); A("s_add_u32 s50, s50, s43")
        A("s_mov_b32 s12, s32"); A("s_mov_b32 s13, s33"); A(f"s_mov_b32 s14, {1792*1024}")
        if "w2ld" in self.skip:
            A("s_mov_b32 s14, 0")
        self.slabload(ST, "s[12:15]", 5, 1024, mf, last_inc=25 * 1024, pace=self.w2p)
        self.slabload(RD, "s[12:15]", 5, 1024, mf, pace=self.w2p, cont=True)
        A("s_lshl_b32 s43, s60, 7")
        A("v_lshlrev_b32 v13, 4, v3")
        A("v_add_u32 v13, s43, v13")
        A(f"global_load_dwordx4 v[{T+16}:{T+19}], v13, s[30:31]")
        A(f"global_load_dwordx4 v[{T+20}:{T+23}], v13, s[30:31] offset:64")
        A("s_mov_b32 s50, s51")
        C("U[m*8 + 4t + (c&3)][2(r&1) + n][half][b=c>>2][kk][4]")
        A("v_and_b32 v12, 3, v2"); A("v_lshlrev_b32 v12, 11, v12")
        A("v_lshrrev_b32 v13, 2, v2"); A("v_lshl_add_u32 v12, v13, 6, v12")
        A("v_lshl_add_u32 v12, v3, 4, v12")
        A("s_lshr_b32 s42, s60, 1"); A("s_lshl_b32 s42, s42, 14")
        A("s_and_b32 s43, s60, 1"); A("s_lshl_b32 s43, s43, 10"); A("s_add_u32 s42, s42, s43")
        A(f"s_add_u32 s42, s42, {WS_U:#x}")
        A(f"v_add_u32 v{T}, s42, v12")
        A(f"v_add_u32 v{T+1}, 0x2000, v{T}")
        UU, W, BB = RB + 64, RB + 80, RB + 112
        if "upoll" in self.skip:
            A("s_waitcnt vmcnt(0)")
            A("s_branch L_sp_u_done")
        self.spin_begin("L_sp_u")
        for t in range(2):
            for q in range(4):
                A(f"global_load_dwordx4 v[{UU+16*t+4*q}:{UU+16*t+4*q+3}], v{T+t}, s[40:41] offset:{256*q} sc1")
        A("s_waitcnt vmcnt(0)")
        self.chk(13, UU, 32)
        self.chk_branch(13, "L_sp_u", 32)
        self.unpack(BB, T + 16, 8)
        for i in range(16):
            A(f"v_add_f32 v{UU+i}, v{UU+i}, v{UU+16+i}")
        for m in ("quad_perm:[1,0,3,2]", "quad_perm:[2,3,0,1]"):
            for i in range(16):
                A(f"v_add_f32_dpp v{UU+i}, v{UU+i}, v{UU+i} {m} row_mask:0xf bank_mask:0xf")
        for i in range(16):
            self.rnd(UU + i, UU + i)
        for i in range(16):
            A(f"v_add_f32 v{UU+i}, v{UU+i}, v{BB+i}")
        for i in range(16):
            self.rnd(UU + i, UU + i)
        C("gelu(tanh form) = u / (1 + exp(-2k(u + 0.044715 u^3)))")
        k2 = -2.0 * math.sqrt(2.0 / math.pi) * math.log2(math.e)
        A(f"s_mov_b32 s42, {f32(0.044715 * k2)}"); A(f"s_mov_b32 s43, {f32(k2)}")
        A("v_mov_b32 v12, s43")
        for i in range(16):
            A(f"v_mul_f32 v{W+i}, v{UU+i}, v{UU+i}")
        for i in range(16):
            A(f"v_fma_f32 v{W+i}, v{W+i}, s42, v12")
        for i in range(16):
            A(f"v_mul_f32 v{W+i}, v{W+i}, v{UU+i}")
        for i in range(16):
            A(f"v_exp_f32 v{W+i}, v{W+i}")
        for i in range(16):
            A(f"v_add_f32 v{W+i}, 1.0, v{W+i}")
        for i in range(16):
            A(f"v_rcp_f32 v{W+i}, v{W+i}")
        for i in range(16):
            A(f"v_mul_f32 v{UU+i}, v{UU+i}, v{W+i}")
        for d in range(8):
            A(f"v_cvt_pk_bf16_f32 v{RA+d}, v{UU+2*d}, v{UU+2*d+1}")
        self.slabperm(RB + 64, ST)
        self.slabperm(RB + 96, RD)
        self.slabmfma(RD, RA, RB + 64, True)
        self.slabmfma(RD, RA + 4, RB + 96, False)
        C("Z[b=kk][line 4cq + 2(c>>3) + half][r][(c&7)*4..]")
        A(f"v_mul_u32_u24 v12, {16*NZ*128}, v3")
        A("v_lshrrev_b32 v13, 3, v2")
        A(f"v_mul_u32_u24 v13, {2*NZ*128}, v13")
        A("v_add_u32 v12, v12, v13")
        A("v_and_b32 v13, 7, v2")
        A("v_lshl_add_u32 v12, v13, 4, v12")
        A(f"s_mul_i32 s42, s61, {4*NZ*128}"); A("s_lshl_b32 s43, s60, 7"); A("s_add_u32 s42, s42, s43")
        A(f"s_add_u32 s42, s42, {WS_Z:#x}")
        A("v_add_u32 v12, s42, v12")
        for jj in range(8):
            A(f"v_and_or_b32 v{T+jj}, v{RD+4*jj}, v15, s{96 + jj % 4}")
        if "zst" not in self.skip:
            A(f"global_store_dwordx4 v12, v[{T}:{T+3}], s[40:41] sc1")
            A(f"global_store_dwordx4 v12, v[{T+4}:{T+7}], s[40:41] offset:{NZ*128} sc1")
        A("s_mov_b64 vcc, 0")
        A("L_not1:")
        wo_round(1); wo_round(2); wo_round(3)
        self.stamp(4)
        if self.bare == 3:
            A("s_barrier"); A("s_branch L_hend")
        C("wait for the 16 (m,l) partials of this WG's stream waves")
        A("v_lshlrev_b32 v12, 2, v2")
        self.spin_begin("L_sp_m")
        A(f"ds_read_b32 v14, v12 offset:{MLM}")
        A(f"ds_read_b32 v11, v12 offset:{MLL}")
        A("s_waitcnt lgkmcnt(0)")
        A("v_max_u32 v13, v14, v11")
        A("v_cmp_eq_u32 vcc, -1, v13")
        A("s_cbranch_vccz L_sp_m_done")
        self.spin_end("L_sp_m", 4)
        A("L_sp_m_done:")
        CF = T + 28
        A("v_lshlrev_b32 v13, 4, v3")
        A(f"ds_read_b128 v[{CF}:{CF+3}], v13 offset:{MLM}")
        A(f"v_mov_b32 v{T}, v14")
        self.row_allreduce("max", T)
        A(f"v_sub_f32 v14, v14, v{T}")
        A("v_exp_f32 v14, v14")
        A("s_waitcnt lgkmcnt(0)")
        for r in range(4):
            A(f"v_sub_f32 v{CF+r}, v{CF+r}, v{T}")
        A(f"v_mul_f32 v{T+2}, v14, v11")
        for r in range(4):
            A(f"v_exp_f32 v{CF+r}, v{CF+r}")
        A("s_cmp_lg_u32 s7, 2")
        A("s_cbranch_scc1 L_nopub")
        C("helper 2 publishes {M, tag, L, tag} of this WG")
        self.row_allreduce("add", T + 2)
        A(f"v_mov_b32 v{T+1}, s63"); A(f"v_mov_b32 v{T+3}, s63")
        A("s_lshl_b32 s42, s59, 4"); A(f"s_add_u32 s42, s42, {WS_ML:#x}")
        A("v_mov_b32 v12, s42")
        A("s_mov_b64 exec, 1")
        if "ml" not in self.skip:
            A(f"global_store_dwordx4 v12, v[{T}:{T+3}], s[40:41] sc1")
        A("s_mov_b64 exec, -1")
        if self.fb:
            C("pacing hint: the fewer WGs of this batch row are as far, the longer this WG keeps fewer loads in flight")
            A("s_lshl_b32 s42, s5, 10"); A(f"s_add_u32 s42, s42, {WS_ML:#x}")
            A("v_add_u32 v12, s42, v6")
            if self.fb == 1:
                A("s_waitcnt vmcnt(0)")
            A(f"global_load_dword v13, v12, s[40:41] offset:4 sc1")
            A("s_waitcnt vmcnt(0)")
            A("v_cmp_ne_u32 vcc, s63, v13")
            A("s_bcnt1_i32_b64 s42, vcc")
            A(f"s_mul_i32 s42, s42, {self.fbk}"); A("s_lshr_b32 s42, s42, 6")
            A(f"s_add_i32 s42, s42, {self.fboff}")
            A("v_mov_b32 v13, s42")
            A(f"ds_write_b32 v10, v13 offset:{RK}")
        A("L_nopub:")
        G, XV, COL, F = T + 24, T + 25, T + 26, T + 8
        TG = T + 22
        C("addresses for the tail")
        A(f"v_mul_u32_u24 v8, {OBS}, v2")
        A("v_lshl_add_u32 v8, v3, 4, v8")
        C("S row + j*512 + (c>>3)*256 + (kk>>1)*128 + (c&7)*16 + (kk&1)*8")
        A("s_lshl_b32 s42, s7, 9"); A("s_lshl_b32 s43, s59, 11"); A("s_add_u32 s42, s42, s43")
        A("v_lshrrev_b32 v9, 3, v2"); A("v_lshlrev_b32 v9, 8, v9")
        A("v_lshrrev_b32 v13, 1, v3"); A("v_lshl_add_u32 v9, v13, 7, v9")
        A("v_and_b32 v13, 7, v2"); A("v_lshl_add_u32 v9, v13, 4, v9")
        A("v_and_b32 v13, 1, v3"); A("v_lshl_add_u32 v9, v13, 3, v9")
        A("v_add_u32 v9, s42, v9")
        A("v_lshlrev_b32 v13, 4, v13")
        A(f"v_lshrrev_b32 v{TG}, v13, s63")
        A(f"v_bfe_u32 v{TG+1}, v{TG}, 8, 8")
        A(f"v_and_b32 v{TG}, 0xff, v{TG}")
        A(f"v_mov_b32 v{COL}, 0")
        A("v_mov_b32 v7, 0")
        A("s_mov_b32 s8, s40"); A("s_mov_b32 s9, s41"); A("s_mov_b32 s10, 0x80000")
        C("s58 = 1 on consumer waves: helper 3 of WGs >= 128 of one parity")
        A(f"s_and_b32 s42, s2, 0x81"); A("s_lshl_b32 s43, s7, 1"); A("s_or_b32 s42, s42, s43")
        A(f"s_cmp_eq_u32 s42, {0x86 | self.cpar:#x}")
        A("s_cselect_b32 s58, 1, 0")
        A("s_cbranch_scc0 L_nog")
        if "cons" in self.skip:
            A("s_mov_b32 s58, 0")
            A("s_branch L_nog")
        C("consumer: batch bc, line cb: gate and merge factors")
        A("s_bfe_u32 s62, s2, 0x60001")
        A("s_lshr_b32 s60, s62, 4"); A("s_and_b32 s61, s62, 15")
        A("v_and_b32 v12, 7, v4")
        C("S poll address: S[bc][(l>>3) + 8it][line cb] + (l&7)*16")
        A("s_lshl_b32 s42, s60, 17"); A("s_lshl_b32 s43, s61, 7"); A("s_add_u32 s42, s42, s43")
        A("v_lshrrev_b32 v13, 3, v4"); A("v_lshlrev_b32 v13, 11, v13")
        A("v_lshl_add_u32 v7, v12, 4, v13")
        A("v_add_u32 v7, s42, v7")
        C("column = 64(cb>>1) + 4(cb&1) + 8(l&7) + 2(l>>5) + ((l>>4)&1)")
        A("v_lshlrev_b32 v12, 3, v12")
        A("v_lshrrev_b32 v13, 5, v4"); A("v_lshl_add_u32 v12, v13, 1, v12")
        A("v_bfe_u32 v13, v4, 4, 1"); A("v_add_u32 v12, v12, v13")
        A("s_lshr_b32 s42, s61, 1"); A("s_lshl_b32 s42, s42, 6")
        A("s_and_b32 s43, s61, 1"); A("s_lshl_b32 s43, s43, 2"); A("s_add_u32 s42, s42, s43")
        A(f"v_add_u32 v{COL}, s42, v12")
        A(f"v_lshlrev_b32 v13, 1, v{COL}")
        A(f"global_load_ushort v{G}, v13, s[34:35]")
        A("s_lshl_b32 s42, s60, 10")
        A(f"v_add_u32 v{COL}, s42, v13")
        A(f"global_load_ushort v{XV}, v{COL}, s[16:17]")
        A(f"s_mul_i32 s42, s62, {NZ*128}"); A(f"s_add_u32 s42, s42, {WS_Z:#x}")
        A("v_add_u32 v12, s42, v6")
        self.spin_begin("L_sp_z")
        C("28 lines: the upper half of the last load is masked off and holds tagged zeros")
        for d in range(4):
            A(f"v_mov_b32 v{RD+12+d}, s{96+d}")
        for it in range(4):
            if it == 3:
                A("s_mov_b32 exec_hi, 0")
            A(f"global_load_dwordx4 v[{RD+4*it}:{RD+4*it+3}], v12, s[40:41] offset:{it*1024} sc1")
        A("s_mov_b32 exec_hi, -1")
        A("s_waitcnt vmcnt(0)")
        self.chk(13, RD, 16)
        self.chk_branch(13, "L_sp_z", 32)
        A("s_lshl_b32 s42, s60, 10"); A(f"s_add_u32 s42, s42, {WS_ML:#x}")
        A("v_add_u32 v12, s42, v6")
        A(f"v_lshlrev_b32 v{G}, 16, v{G}")
        A(f"v_lshlrev_b32 v{XV}, 16, v{XV}")
        for it in range(1, 4):
            for d in range(4):
                A(f"v_add_f32 v{RD+d}, v{RD+d}, v{RD+4*it+d}")
        self.xl_reduce4(RD)
        self.rnd(RD, RD)
        A(f"v_add_f32 v{RD}, v{RD}, v{G}")
        self.rnd(RD, RD)
        A(f"v_mul_f32 v{RD+1}, {f32(-math.log2(math.e))}, v{RD}")
        A(f"v_exp_f32 v{RD+1}, v{RD+1}")
        A("s_nop 0")
        A(f"v_add_f32 v{RD+1}, 1.0, v{RD+1}")
        A(f"v_rcp_f32 v{RD+1}, v{RD+1}")
        A("s_nop 0")
        A(f"v_mul_f32 v{G}, v{RD}, v{RD+1}")
        self.rnd(G, G)
        self.spin_begin("L_sp_p")
        A(f"global_load_dwordx4 v[{T}:{T+3}], v12, s[40:41] sc1")
        A("s_waitcnt vmcnt(0)")
        A(f"v_xor_b32 v13, s63, v{T+1}")
        A(f"v_bitop3_b32 v13, v13, v{T+3}, s63 bitop3:0xf6")
        A("v_cmp_ne_u32 vcc, 0, v13")
        A("s_cbranch_vccz L_sp_p_done")
        self.spin_end("L_sp_p", 32)
        A("L_sp_p_done:")
        C("factor of producer p=lane: exp(M_p - M_h) / L_h, partner = lane^1")
        A(f"v_max_f32_dpp v{T+1}, v{T}, v{T} quad_perm:[1,0,3,2] row_mask:0xf bank_mask:0xf")
        A(f"v_sub_f32 v{T}, v{T}, v{T+1}")
        A(f"v_exp_f32 v{T}, v{T}")
        A("s_nop 0")
        A(f"v_mul_f32 v{T+1}, v{T}, v{T+2}")
        A("s_nop 1")
        A(f"v_add_f32_dpp v{T+1}, v{T+1}, v{T+1} quad_perm:[1,0,3,2] row_mask:0xf bank_mask:0xf")
        A(f"v_rcp_f32 v{T+1}, v{T+1}")
        C("F[p] stored at ((p&7)*8 + (p>>3)) so that lane group g = l>>3 reads its 8 factors contiguously")
        A("v_and_b32 v12, 7, v4"); A("v_lshlrev_b32 v12, 5, v12")
        A("v_lshrrev_b32 v13, 3, v4"); A("v_lshl_add_u32 v12, v13, 2, v12")
        A(f"v_mul_f32 v{T}, v{T}, v{T+1}")
        A(f"ds_write_b32 v12, v{T} offset:{FLD}")
        A("v_lshlrev_b32 v13, 5, v13")
        A("s_waitcnt lgkmcnt(0)")
        A(f"ds_read_b128 v[{F}:{F+3}], v13 offset:{FLD}")
        A(f"ds_read_b128 v[{F+4}:{F+7}], v13 offset:{FLD+16}")
        A("s_cmp_lg_u32 s62, 63")
        A("s_cbranch_scc1 L_nobump")
        C("every reader of the tag word is done by now (this wave has seen data that depends on all of them)")
        A(f"v_mov_b32 v12, {WS_EP:#x}")
        A("v_mov_b32 v13, s63")
        A("s_mov_b64 exec, 1")
        A("global_store_dword v12, v13, s[40:41] sc1")
        A("s_mov_b64 exec, -1")
        A("L_nobump:")
        if self.pp2:
            self.pp2_setup(ST)
        A("s_waitcnt lgkmcnt(0)")
        A("L_nog:")
        self.stamp(5)
        A("s_barrier")
        self.stamp(6)
        for n in range(4):
            A(f"ds_read_b128 v[{RA+4*n}:{RA+4*n+3}], v8 offset:{OB + 64*n}")
        def comb(jj, r):
            if r == 0:
                A(f"v_mul_f32 v{T+jj}, v{CF}, v{RD+4*jj}")
            else:
                A(f"v_fmac_f32 v{T+jj}, v{CF+r}, v{RD+4*jj+r}")
        if not self.mil:
            for n in range(4):
                A(f"s_waitcnt lgkmcnt({3-n})")
                self.slabmfma(RD, RA + 4 * n, RB + 32 * n, n == 0)
            A("s_nop 0")
            for r in range(4):
                for jj in range(8):
                    comb(jj, r)
        else:
            C("one column group after the other; the row combination of a finished group rides in the MFMA shadow")
            for jj in range(8):
                for n in range(4):
                    if jj == 0:
                        A(f"s_waitcnt lgkmcnt({3-n})")
                    d, b = RD + 4 * jj, RB + 32 * n + 4 * jj
                    c = "0" if n == 0 else f"v[{d}:{d+3}]"
                    A(f"v_mfma_f32_16x16x32_bf16 v[{d}:{d+3}], v[{RA+4*n}:{RA+4*n+3}], v[{b}:{b+3}], {c}")
                    if jj >= 2:
                        comb(jj - 2, n)
                    elif jj == 1:
                        A("s_nop 0")
            for r in range(4):
                comb(6, r)
            A("s_nop 2")
            for r in range(4):
                comb(7, r)
            A("s_nop 0")
        for d in range(4):
            A(f"v_permlane32_swap_b32 v{T+d}, v{T+d+4}")
        for d in range(4):
            A(f"v_add_f32 v{T+d}, v{T+d}, v{T+d+4}")
        A("s_nop 0")
        for d in range(2):
            A(f"v_permlane16_swap_b32 v{T+d}, v{T+d+2}")
        for d in range(2):
            A(f"v_add_f32 v{T+d}, v{T+d}, v{T+d+2}")
        for d in range(2):
            A(f"v_and_or_b32 v{T+d}, v{T+d}, v15, v{TG+d}")
        A(f"global_store_dwordx2 v9, v[{T}:{T+1}], s[40:41] sc1")
        self.stamp(7)
        if self.echo and len(self.echo) == 5:
            A("s_cmp_lg_u32 s7, 2")
            A("s_cbranch_scc1 L_e2")
            A("s_getreg_b32 s42, hwreg(HW_REG_XCC_ID)")
            A("s_waitcnt lgkmcnt(0)")
            A(f"v_mov_b32 v{ST}, s64"); A(f"v_mov_b32 v{ST+1}, s{78 if self.echo[0] == 4 else 84}"); A(f"v_mov_b32 v{ST+2}, s76"); A(f"v_mov_b32 v{ST+3}, s42")
            A("s_lshl_b32 s42, s59, 4"); A(f"s_add_u32 s42, s42, {WS_DIAG:#x}")
            A("v_mov_b32 v12, s42")
            A("s_mov_b64 exec, 1")
            A(f"global_store_dwordx4 v12, v[{ST}:{ST+3}], s[40:41] sc1")
            A("s_mov_b64 exec, -1")
            A("L_e2:")
        A("s_cmp_lg_u32 s58, 1")
        A("s_cbranch_scc1 L_hend")
        C("consumer: poll the 64 producers' lines in 8 groups (complete groups are not re-loaded), then reduce")
        if self.pp2:
            self.pp2_code(RD, ST)
        elif self.ppoll:
            self.ppoll_code(RD, ST)
        else:
            MK = 16
            for it in range(8):
                A(f"s_mov_b64 s[{MK+2*it}:{MK+2*it+1}], -1")
            self.spin_begin("L_sp_s")
            A("s_mov_b32 s50, 0")
            for it in range(8):
                A(f"s_mov_b64 exec, s[{MK+2*it}:{MK+2*it+1}]")
                A(f"buffer_load_dwordx4 v[{RD+4*it}:{RD+4*it+3}], v7, s[8:11], s50 offen sc1")
                if it < 7:
                    A("s_add_u32 s50, s50, 0x4000")
            A("s_mov_b64 exec, -1")
            A("s_waitcnt vmcnt(0)")
            for it in range(8):
                self.chk(RA + it, RD + 4 * it, 4, ST + 4 * it)
            A(f"v_or3_b32 v13, v{RA}, v{RA+1}, v{RA+2}")
            A(f"v_or3_b32 v12, v{RA+3}, v{RA+4}, v{RA+5}")
            A(f"v_or3_b32 v13, v13, v{RA+6}, v{RA+7}")
            A("v_or_b32 v13, v13, v12")
            A("v_cmp_ne_u32_sdwa vcc, v13, v10 src0_sel:BYTE_0 src1_sel:DWORD")
            A("s_cbranch_vccz L_sp_s_done")
            for it in range(8):
                A(f"v_cmp_ne_u32_sdwa s[{MK+2*it}:{MK+2*it+1}], v{RA+it}, v10 src0_sel:BYTE_0 src1_sel:DWORD")
            for it in range(8):
                A(f"s_cmp_lg_u64 s[{MK+2*it}:{MK+2*it+1}], 0")
                A(f"s_cselect_b64 s[{MK+2*it}:{MK+2*it+1}], -1, 0")
            self.spin_end("L_sp_s", 1)
        A("L_sp_s_done:")
        A("s_mov_b64 exec, -1")
        self.stamp(8)
        SRC = RD if self.pp2 else ST
        for it in range(8):
            for d in (0, 2):
                fp, sel = F + (it & ~1), it & 1
                if it == 0:
                    A(f"v_pk_mul_f32 v[{RA+d}:{RA+d+1}], v[{SRC+d}:{SRC+d+1}], v[{fp}:{fp+1}] op_sel:[0,{sel}] op_sel_hi:[1,{sel}]")
                else:
                    A(f"v_pk_fma_f32 v[{RA+d}:{RA+d+1}], v[{SRC+4*it+d}:{SRC+4*it+d+1}], v[{fp}:{fp+1}], v[{RA+d}:{RA+d+1}] op_sel:[0,{sel},0] op_sel_hi:[1,{sel},1]")
        A("s_nop 0")
        self.xl_reduce4(RA)
        self.rnd(RA, RA)
        A(f"v_mul_f32 v{RA}, v{RA}, v{G}")
        self.rnd(RA, RA)
        A(f"v_add_f32 v{RA}, v{RA}, v{XV}")
        A(f"v_cvt_pk_bf16_f32 v{RA}, v{RA}, 0")
        A("s_mov_b32 s42, 0x00ff00ff"); A("s_mov_b32 s43, 0x00ff00ff")
        A("s_mov_b64 exec, s[42:43]")
        A(f"global_store_short v{COL}, v{RA}, s[36:37]")
        A("s_mov_b64 exec, -1")
        self.stamp(9)
        if self.echo:
            if len(self.echo) == 3:
                a, b, K = self.echo
                A("s_waitcnt lgkmcnt(0)")
                A(f"s_sub_u32 s42, s{64+2*b}, s{64+2*a}")
            else:
                fld, op, xm, xv, K = self.echo
                A("s_sleep 64")
                A("s_lshl_b32 s42, s60, 10"); A(f"s_add_u32 s42, s42, {WS_DIAG:#x}")
                A("v_add_u32 v12, s42, v6")
                A(f"global_load_dwordx4 v[{ST}:{ST+3}], v12, s[40:41] sc1")
                A("s_waitcnt vmcnt(0) lgkmcnt(0)")
                for i in range(3):
                    A(f"v_subrev_u32 v{ST+i}, s64, v{ST+i}")
                    A(f"v_cvt_f32_i32 v{ST+i}, v{ST+i}")
                A(f"v_mov_b32 v{ST+4}, v{ST}")
                self.wave_allreduce_add(ST + 4, ST + 5, "min")
                if fld >= 3:
                    A("s_sub_u32 s42, s82, s64")
                    A(f"v_cvt_f32_i32 v{ST+4}, s42")
                    A(f"v_sub_f32 v{ST+6}, v{ST+4}, v{ST + (2 if fld == 3 else 1)}")
                else:
                    A(f"v_sub_f32 v{ST+6}, v{ST+fld}, v{ST+4}")
                A(f"v_and_b32 v{ST+3}, {xm}, v{ST+3}")
                A(f"v_cmp_eq_u32 vcc, {xv}, v{ST+3}")
                A(f"v_mov_b32 v{ST+7}, {'0' if op != 'min' else '0x49742400'}")
                A(f"v_cndmask_b32 v{ST+6}, v{ST+7}, v{ST+6}, vcc")
                self.wave_allreduce_add(ST + 6, ST + 5, op)
                if op == "add":
                    n = 64 >> bin(xm).count("1")
                    A(f"v_mul_f32 v{ST+6}, {f32(1.0/n)}, v{ST+6}")
                A(f"v_cvt_i32_f32 v{ST+6}, v{ST+6}")
                A("s_nop 1")
                A(f"v_readfirstlane_b32 s42, v{ST+6}")
                A("s_memrealtime s[82:83]")
                A("s_waitcnt lgkmcnt(0)")
            A(f"s_mul_i32 s42, s42, {K}")
            A(f"s_add_u32 s42, s42, {self.eadd}")
            A("s_min_u32 s42, s42, 100000")
            A("s_add_u32 s42, s42, s82")
            A("L_echo:")
            A("s_memrealtime s[90:91]")
            A("s_waitcnt lgkmcnt(0)")
            A("s_sub_u32 s43, s42, s90")
            A("s_cmp_gt_i32 s43, 0")
            A("s_cbranch_scc1 L_echo")
        A("L_hend:")
        self.dump_stamps(10, 16)

def gen(**kw):
    return Gen(**kw).gen()

if __name__ == "__main__":
    out = sys.argv[1] if len(sys.argv) > 1 else "recurrent_scan__mha_block_cached__mixer_channel_mlp__decode.s"
    kw = eval("dict(" + (sys.argv[2] if len(sys.argv) > 2 else "") + ")")
    open(out, "w").write(gen(**kw))
```

```python
import sys, math, struct
NAME = "recurrent_scan__mha_block_cached__mixer_channel_mlp__decode_kernel"

def f32(x):
    return "0x%08x" % struct.unpack("<I", struct.pack("<f", x))[0]

HEADER = """; Kernarg layout for this problem (104 bytes, ptrs only, base s[0:1]):
"""

XN, QP, MLM, MLL, TAGL, FLD, OB = 0, 8192, 8448, 8512, 8704, 8960, 9216
OBS = 272
LDS_BYTES = 13824
WS_S, WS_ML, WS_EP, WS_Q, WS_U, WS_Z, WS_DIAG = 0, 0x80000, 0x90000, 0x100000, 0x180000, 0x1c0000, 0x200000
NUNIT = 112
SPIN_MAX = 1 << 18
RK = 8720
WS_BAL = 0xb0000

class Gen:
    DEF = dict(kvflags="nt", wflags="", mflags="nt", diag=False, prog=False, DK=8, DV=8, pre=3, wdepth=2, dks=8,
               bare=0, skip=(), mpar=0, mpar2=None, cpar=0, fprio=3, qsleep=1, adel=0, apar=0, w2p=4,
               echo=None, eadd=0, cpf=0, wearly=0, fb=0, fbn0=8, fbk=14, fboff=0, kdeep=1, ppoll=0, pfast=2, mil=1, pp2=1, pline=0, pdepth=8, sfl='sc1', lfl='sc1', loc=None, fh=2, zh=2, pm=0)
    def __init__(self, **kw):
        self.L = []
        self.nlab = 0
        for k in kw:
            assert k in self.DEF, k
        for k, v in self.DEF.items():
            setattr(self, k, kw.get(k, v))
        self.skip = set(self.skip)
        self.NZ = 28 >> self.zh
        if self.mpar2 is None:
            self.mpar2 = self.mpar
    def A(self, s):
        if s.endswith(" sc1"):
            s = s[:-3] + (self.sfl if "_store_" in s else self.lfl)
        self.L.append("  " + s if not s.endswith(":") else s)
    def C(self, s):
        self.L.append("  ; " + s)

    def stamp(self, idx):
        if self.diag or self.echo:
            self.A(f"s_memrealtime s[{64+2*idx}:{65+2*idx}]")
    def dump_stamps(self, n, vt):
        if not self.diag:
            return
        A = self.A
        A("s_waitcnt lgkmcnt(0)")
        A("s_lshl_b32 s60, s2, 3"); A("s_add_u32 s60, s60, s3"); A("s_lshl_b32 s60, s60, 7")
        A(f"s_add_u32 s60, s60, {WS_DIAG:#x}")
        A(f"v_mov_b32 v{vt}, s60")
        A("s_mov_b64 exec, 1")
        for j in range(n):
            A(f"v_mov_b32 v{vt+2}, s{64+2*j}"); A(f"v_mov_b32 v{vt+3}, s{65+2*j}")
            A(f"global_store_dwordx2 v{vt}, v[{vt+2}:{vt+3}], s[40:41] offset:{8*j}")
        A("s_getreg_b32 s60, hwreg(HW_REG_XCC_ID)")
        A(f"v_mov_b32 v{vt+2}, s60")
        A(f"global_store_dword v{vt}, v{vt+2}, s[40:41] offset:120")
        A("s_mov_b64 exec, -1")

    def row_allreduce(self, op, r):
        A = self.A
        for m in ("quad_perm:[1,0,3,2]", "quad_perm:[2,3,0,1]", "row_half_mirror", "row_mirror"):
            A("s_nop 1")
            A(f"v_{op}_f32_dpp v{r}, v{r}, v{r} {m} row_mask:0xf bank_mask:0xf")
    def wave_allreduce_add(self, r, t, op="add"):
        A = self.A
        self.row_allreduce(op, r)
        for sw in ("v_permlane16_swap_b32", "v_permlane32_swap_b32"):
            A(f"v_mov_b32 v{t}, v{r}")
            A("s_nop 1")
            A(f"{sw} v{r}, v{t}")
            A(f"v_{op}_f32 v{r}, v{r}, v{t}")
    def rnd(self, d, s):
        self.A(f"v_cvt_pk_bf16_f32 v{d}, 0, v{s}")

    def layernorm(self, X, n, T, P, unpack_after=True):
        A = self.A
        s, t, q, d = T, T + 1, T + 2, T + 3
        red = (lambda r: self.wave_allreduce_add(r, t)) if n == 8 else (lambda r: self.row_allreduce("add", r))
        A(f"v_add_f32 v{s}, v{X}, v{X+1}")
        for i in range(2, n):
            A(f"v_add_f32 v{s}, v{s}, v{X+i}")
        red(s)
        A(f"v_mul_f32 v{s}, {f32(1.0/512)}, v{s}")
        A(f"v_sub_f32 v{d}, v{X}, v{s}")
        A(f"v_mul_f32 v{q}, v{d}, v{d}")
        for i in range(1, n):
            dd = d if i % 2 == 0 else t
            A(f"v_sub_f32 v{dd}, v{X+i}, v{s}")
            A(f"v_fmac_f32 v{q}, v{dd}, v{dd}")
        red(q)
        A(f"v_mul_f32 v{q}, {f32(1.0/512)}, v{q}")
        self.rnd(s, s)
        self.rnd(q, q)
        A(f"v_add_f32 v{q}, {f32(1e-5)}, v{q}")
        self.rnd(q, q)
        A(f"v_sqrt_f32 v{q}, v{q}")
        A("s_nop 0")
        self.rnd(q, q)
        A(f"v_rcp_f32 v{q}, v{q}")
        for i in range(n):
            A(f"v_sub_f32 v{X+i}, v{X+i}, v{s}")
        for i in range(n):
            self.rnd(X + i, X + i)
        for i in range(n):
            A(f"v_mul_f32 v{X+i}, v{X+i}, v{q}")
        for i in range(n // 2):
            A(f"v_cvt_pk_bf16_f32 v{P+i}, v{X+2*i}, v{X+2*i+1}")
        if unpack_after:
            self.unpack(X, P, n // 2)
    def unpack(self, X, P, n):
        for i in range(n):
            self.A(f"v_lshlrev_b32 v{X+2*i}, 16, v{P+i}")
            self.A(f"v_and_b32 v{X+2*i+1}, 0xffff0000, v{P+i}")

    def slabload(self, dst, srd, voff, stride, flags, last_inc=None, pace=None, cont=False):
        A = self.A
        for e in range(8):
            r = dst + 4 * e
            if pace is not None and (e >= pace or cont):
                A(f"s_waitcnt vmcnt({pace-1})")
            A(f"buffer_load_dwordx4 v[{r}:{r+3}], v{voff}, {srd}, s50 offen {flags}".rstrip())
            inc = stride if e < 7 else last_inc
            if inc is not None:
                A(f"s_add_u32 s50, s50, {inc}")
    def slabperm(self, dst, src):
        A = self.A
        for d in range(4):
            for hf in range(2):
                jj = 2 * d + hf
                for q in range(4):
                    A(f"v_perm_b32 v{dst + 4*jj + q}, v{src + 4*(2*q+1) + d}, v{src + 4*(2*q) + d}, s{48 + hf}")
    def slabmfma(self, RD, RA, B, first):
        A = self.A
        for jj in range(8):
            b = B + 4 * jj
            c = "0" if first else f"v[{RD+4*jj}:{RD+4*jj+3}]"
            A(f"v_mfma_f32_16x16x32_bf16 v[{RD+4*jj}:{RD+4*jj+3}], v[{RA}:{RA+3}], v[{b}:{b+3}], {c}")

    def fold(self, T, RD):
        A = self.A
        for q in range(4):
            A(f"v_add_f32_dpp v{T+q}, v{RD+4*q+1}, v{RD+4*q} row_ror:8 row_mask:0xf bank_mask:0x3")
        for q in range(4):
            A(f"v_add_f32_dpp v{T+q}, v{RD+4*q+16}, v{RD+4*q+17} row_ror:8 row_mask:0xf bank_mask:0xc")
        self.tag4(T)
    def fold4(self, T, RD):
        A = self.A
        for bk in range(4):
            for q in range(4):
                d = RD + 4 * q + 16 * (bk >> 1)
                A(f"v_add_f32_dpp v{T+q}, v{d + (bk ^ 2)}, v{d + bk} row_ror:8 row_mask:0xf bank_mask:{1 << bk:#x}")
        for q in range(4):
            A(f"v_add_f32_dpp v{T+q}, v{T+q}, v{T+q} row_shl:4 row_mask:0xf bank_mask:0x5")
        A("s_mov_b32 exec_lo, 0x0f0f0f0f"); A("s_mov_b32 exec_hi, 0x0f0f0f0f")
        self.tag4(T)
    def spin_begin(self, lab):
        self.A(f"s_mov_b32 s55, {SPIN_MAX}")
        self.A(f"{lab}:")
    def spin_end(self, lab, sleep):
        A = self.A
        A(f"s_sleep {sleep}")
        A("s_sub_u32 s55, s55, 1")
        A("s_cmp_lg_u32 s55, 0")
        A(f"s_cbranch_scc1 {lab}")
    def xl_reduce4(self, R):
        A = self.A
        A("s_nop 0")
        for d in range(2):
            A(f"v_permlane32_swap_b32 v{R+d}, v{R+d+2}")
        for d in range(2):
            A(f"v_add_f32 v{R+d}, v{R+d}, v{R+d+2}")
        A("s_nop 1")
        A(f"v_permlane16_swap_b32 v{R}, v{R+1}")
        A(f"v_add_f32 v{R}, v{R}, v{R+1}")
        A("s_nop 1")
        A(f"v_add_f32_dpp v{R}, v{R}, v{R} row_ror:8 row_mask:0xf bank_mask:0xf")

    def gen(self):
        A, C = self.A, self.C
        self.L.append(HEADER.rstrip())
        self.L.append(f"; @launch grid=(256,1,1) block=(512,1,1) lds={LDS_BYTES}")
        self.L.append('.amdgcn_target "amdgcn-amd-amdhsa--gfx950"')
        self.L.append(".text"); self.L.append(f".globl {NAME}"); self.L.append(".p2align 8")
        self.L.append(f".type {NAME},@function"); self.L.append(f"{NAME}:")
        self.stamp(0)
        A("s_load_dwordx16 s[16:31], s[0:1], 0")
        A("s_load_dwordx8 s[32:39], s[0:1], 64")
        A("s_load_dwordx2 s[40:41], s[0:1], 96")
        A("s_cmp_ge_u32 s2, 256")
        A("s_cbranch_scc1 L_end")
        A("v_lshrrev_b32 v1, 6, v0")
        A("v_and_b32 v2, 15, v0")
        A("v_readfirstlane_b32 s3, v1")
        C("s59 = producer index b*64 + 2h + side, b = wg>>6, h = 4(wg&7) + ((wg>>4)&3), side = (wg>>3)&1")
        if self.pm:
            C("side = (wg>>2)&1, h = 8((wg&3)^side) + ((wg>>3)&7): the two sides of a head are WGs wg and wg^5")
            A("s_bfe_u32 s5, s2, 0x10002")
            A("s_and_b32 s59, s2, 0xc0"); A("s_and_b32 s4, s2, 3"); A("s_xor_b32 s4, s4, s5"); A("s_lshl4_add_u32 s59, s4, s59")
            A("s_bfe_u32 s4, s2, 0x30003"); A("s_lshl1_add_u32 s59, s4, s59")
            A("s_or_b32 s59, s59, s5")
        elif self.loc is None:
            A("s_and_b32 s59, s2, 0xc0"); A("s_and_b32 s4, s2, 7"); A("s_lshl3_add_u32 s59, s4, s59")
            A("s_bfe_u32 s4, s2, 0x30003"); A("s_or_b32 s59, s59, s4")
        else:
            C("h = 8(wg&3) + ((wg>>3)&7), side = (wg>>2)&1")
            A("s_and_b32 s59, s2, 0xc0"); A("s_and_b32 s4, s2, 3"); A("s_lshl4_add_u32 s59, s4, s59")
            A("s_bfe_u32 s4, s2, 0x30003"); A("s_lshl1_add_u32 s59, s4, s59")
            A("s_bfe_u32 s4, s2, 0x10002"); A("s_or_b32 s59, s59, s4")
        if self.cpf:
            A("s_cmp_lt_u32 s3, 4")
            A("s_cbranch_scc1 L_stream")
            C("helper waves pull a slice of this kernel's code towards the L2")
            A("s_getpc_b64 s[42:43]")
            A("L_pc:")
            A("s_lshr_b32 s44, s2, 3"); A("s_lshl2_add_u32 s44, s44, s3")
            A(f"s_mul_i32 s44, s44, {64*self.cpf}")
            A(f"s_min_u32 s44, s44, L_end-L_pc-{64*(self.cpf-1)}")
            for k in range(self.cpf):
                A(f"s_load_dword s{45+k}, s[42:43], s44 offset:{64*k}")
            A("s_branch L_helper")
            A("L_stream:")
        else:
            A("s_cmp_ge_u32 s3, 4")
            A("s_cbranch_scc1 L_helper")
        self.stream()
        self.helper()
        A("L_end:")
        A("s_endpgm")
        L = self.L
        L.append('.section .rodata,"a"'); L.append(".p2align 6"); L.append(f".amdhsa_kernel {NAME}")
        L.append("  .amdhsa_next_free_vgpr 256"); L.append("  .amdhsa_next_free_sgpr 102"); L.append("  .amdhsa_accum_offset 256")
        L.append("  .amdhsa_group_segment_fixed_size 0"); L.append("  .amdhsa_kernarg_size 104")
        L.append("  .amdhsa_user_sgpr_count 2"); L.append("  .amdhsa_user_sgpr_kernarg_segment_ptr 1")
        L.append("  .amdhsa_system_sgpr_workgroup_id_x 1")
        L.append("  .amdhsa_float_denorm_mode_32 3")
        L.append(".end_amdhsa_kernel")
        return "\n".join(L) + "\n"

    def stream(self):
        A, C = self.A, self.C
        RING = 64
        P = 24
        Q = 8
        S = 40
        ACC = 48
        PLO, PHI = 12, 13
        VOFF = 5
        fl = self.kvflags
        DK, DV, pre = self.DK, self.DV, self.pre
        C("===== stream waves =====")
        A("v_lshlrev_b32 v7, 4, v2")
        A("v_lshrrev_b32 v6, 4, v0")
        GS = 16 if self.loc is None else 17
        if self.loc is None:
            A("v_lshl_or_b32 v5, v6, 12, v7")
            A("s_lshl_b32 s7, s59, 19")
            A("s_mov_b32 s10, 0x80000"); A("s_mov_b32 s11, 0x20000")
            A("s_waitcnt lgkmcnt(0)")
            A("s_add_u32 s8, s18, s7"); A("s_addc_u32 s9, s19, 0")
        else:
            A("v_and_b32 v5, 1, v6"); A("v_lshl_or_b32 v5, v5, 12, v7")
            A("v_lshrrev_b32 v8, 1, v6"); A("v_lshl_or_b32 v5, v8, 14, v5")
            A("s_lshr_b32 s7, s59, 1"); A("s_lshl_b32 s7, s7, 20")
            A("s_lshr_b32 s6, s59, 2"); A("s_xor_b32 s6, s6, s59"); A("s_and_b32 s6, s6, 1")
            if self.loc[2]:
                A("s_lshr_b32 s4, s2, 6"); A("s_xor_b32 s6, s6, s4"); A("s_and_b32 s6, s6, 1")
            A(f"s_xor_b32 s4, s6, {self.loc[0]}"); A("s_lshl_b32 s4, s4, 13"); A("s_add_u32 s4, s4, s7")
            A(f"s_xor_b32 s6, s6, {self.loc[1]}"); A("s_lshl_b32 s6, s6, 13"); A("s_add_u32 s7, s6, s7")
            A("s_mov_b32 s10, 0xfe000"); A("s_mov_b32 s11, 0x20000")
            A("s_waitcnt lgkmcnt(0)")
            A("s_add_u32 s8, s18, s4"); A("s_addc_u32 s9, s19, 0")
        self.stamp(5)
        issued = []
        def load(slot, srd, so, tag=None):
            r = RING + 4 * slot
            A(f"buffer_load_dwordx4 v[{r}:{r+3}], v{VOFF}, {srd}, {so} offen offset:{(slot % 16)*256} {fl}".rstrip())
            issued.append(tag)
        def wait(tag):
            A(f"s_waitcnt vmcnt({len(issued) - 1 - issued.index(tag)})")
        def swait(D, cond=False):
            A(f"s_waitcnt vmcnt({D-1})")
            if cond and self.adel:
                self.nlab += 1
                A(f"s_cbranch_vccnz L_ad{self.nlab}")
                A(f"s_waitcnt vmcnt({D-1-self.adel})")
                A(f"L_ad{self.nlab}:")
        for gi in range(pre):
            for j in range(16):
                n = 16 * gi + j
                dd = self.dks
                if n == dd:
                    self.stamp(6)
                if dd and n >= dd:
                    swait(dd)
                if n == dd:
                    self.stamp(7)
                if n == 2 * dd:
                    self.stamp(8)
                load(n, "s[8:11]", "s50" if gi else "0", (gi, j))
            A(f"s_mov_b32 s50, {(gi + 1) << GS:#x}")
        A("s_mov_b32 s14, s10"); A("s_mov_b32 s15, s11"); A("s_mov_b32 s46, s10"); A("s_mov_b32 s47, s11")
        A("s_add_u32 s12, s20, s7"); A("s_addc_u32 s13, s21, 0")
        A("s_mov_b32 s52, 0xaaaaaaaa"); A("s_mov_b32 s53, 0xaaaaaaaa")
        A("s_mov_b32 s56, 0xcccccccc"); A("s_mov_b32 s57, 0xcccccccc")
        self.stamp(1)
        A("s_barrier")
        A(f"ds_read_b128 v[{Q}:{Q+3}], v7 offset:{QP}")
        self.stamp(2)
        A("s_waitcnt lgkmcnt(0)")
        def qk(slots):
            for d in range(4):
                for slot in slots:
                    r = RING + 4 * slot
                    p = P + slot % 16
                    c = "0" if d == 0 else f"v{p}"
                    A(f"v_dot2_f32_bf16 v{p}, v{r+d}, v{Q+d}, {c}")
        def treduce(dst, mid=()):
            C("transposing reduction: lane (g,c) <- score of load c, key g")
            for t in range(8):
                A(f"v_add_f32_dpp v{P+t}, v{P+t}, v{P+t} row_ror:8 row_mask:0xf bank_mask:0x3")
            for t in range(8):
                A(f"v_add_f32_dpp v{P+t}, v{P+t+8}, v{P+t+8} row_ror:8 row_mask:0xf bank_mask:0xc")
            for t in range(4):
                A(f"v_add_f32_dpp v{P+t}, v{P+t}, v{P+t} row_half_mirror row_mask:0xf bank_mask:0x5")
            for t in range(4):
                A(f"v_add_f32_dpp v{P+t}, v{P+t+4}, v{P+t+4} row_half_mirror row_mask:0xf bank_mask:0xa")
            U0, U1, T0, T1 = P + 8, P + 9, P + 10, P + 11
            A(f"v_cndmask_b32 v{U0}, v{P+1}, v{P}, s[52:53]")
            A(f"v_cndmask_b32 v{U1}, v{P+3}, v{P+2}, s[52:53]")
            A(f"v_cndmask_b32 v{T0}, v{P}, v{P+1}, s[52:53]")
            A(f"v_cndmask_b32 v{T1}, v{P+2}, v{P+3}, s[52:53]")
            A("s_nop 1")
            A(f"v_add_f32_dpp v{T0}, v{U0}, v{T0} quad_perm:[1,0,3,2] row_mask:0xf bank_mask:0xf")
            A(f"v_add_f32_dpp v{T1}, v{U1}, v{T1} quad_perm:[1,0,3,2] row_mask:0xf bank_mask:0xf")
            A(f"v_cndmask_b32 v{U0}, v{T1}, v{T0}, s[56:57]")
            A(f"v_cndmask_b32 v{U1}, v{T0}, v{T1}, s[56:57]")
            if mid:
                for m in mid:
                    A(m)
            else:
                A("s_nop 1")
            A(f"v_add_f32_dpp v{dst}, v{U0}, v{U1} quad_perm:[2,3,0,1] row_mask:0xf bank_mask:0xf")
        C("catch-up over the prefetched groups; group `pre` is loaded into ring slots 0..15 meanwhile")
        nxt = 0
        for gi in range(pre):
            for j in range(0, 16, 2):
                wait((gi, j + 1))
                qk([16 * gi + j, 16 * gi + j + 1])
                if gi == 0:
                    want = j + 2 if (j < 8 or pre == 1) else 8
                elif gi == 1:
                    want = 8 + j // 2 + 1
                else:
                    want = 16
                while nxt < want:
                    load(nxt, "s[8:11]", "s50", (pre, nxt)); nxt += 1
            A("s_nop 0")
            treduce(S + 8 - pre + gi)
        assert nxt == 16
        for j in range(16 - DK):
            wait((pre, j))
            qk([j])
        A(f"s_mov_b32 s54, {pre}")
        A("s_branch L_kmid")
        A("L_kloop:")
        for j in range(16 - DK):
            swait(DK)
            load(j + DK, "s[8:11]", "s50")
            qk([j])
        A("L_kmid:")
        if self.prog:
            A("s_memrealtime s[90:91]")
        C("the rest refills from the next group (V group 0 after the last K group)")
        A(f"s_add_u32 s50, s50, {1 << GS:#x}")
        A("s_cmp_eq_u32 s54, 7")
        A("s_cselect_b32 s44, s12, s8"); A("s_cselect_b32 s45, s13, s9"); A("s_cselect_b32 s51, 0, s50")
        for j in range(16 - DK, 16):
            swait(DK)
            load(j + DK - 16, "s[44:47]", "s51")
            qk([j])
        if self.prog:
            A("s_waitcnt lgkmcnt(0)")
            A("s_mov_b32 m0, s54"); A("s_nop 0")
            A("v_writelane_b32 v60, s90, m0")
        for i in range(7):
            A(f"v_mov_b32 v{S+i}, v{S+i+1}")
        treduce(S + 7, ("s_add_u32 s54, s54, 1", "s_cmp_lt_u32 s54, 8"))
        A("s_cbranch_scc1 L_kloop")
        self.stamp(3)
        A("s_mov_b32 s50, 0")
        for j in range(DK, DV):
            load(j, "s[12:15]", "s50")
        C("softmax over this row's 128 keys (true max of the partial; partials are merged exactly later)")
        M, Ls = 14, 15
        cs = math.log2(math.e) / math.sqrt(128.0)
        A(f"s_mov_b32 s58, {f32(cs)}")
        A(f"v_max3_f32 v{M}, v{S}, v{S+1}, v{S+2}")
        A(f"v_max3_f32 v{M}, v{M}, v{S+3}, v{S+4}")
        A(f"v_max3_f32 v{M}, v{M}, v{S+5}, v{S+6}")
        A(f"v_max_f32 v{M}, v{M}, v{S+7}")
        self.row_allreduce("max", M)
        A(f"v_mul_f32 v{M}, s58, v{M}")
        for i in range(8):
            A(f"v_fma_f32 v{S+i}, v{S+i}, s58, -v{M}")
        for i in range(8):
            A(f"v_exp_f32 v{S+i}, v{S+i}")
        for i in range(8):
            A(f"v_mov_b32 v{ACC+i}, 0")
        A(f"v_add_f32 v{Ls}, v{S}, v{S+1}")
        for i in range(2, 8):
            A(f"v_add_f32 v{Ls}, v{Ls}, v{S+i}")
        self.row_allreduce("add", Ls)
        A(f"v_lshlrev_b32 v16, 2, v6")
        A(f"v_min_u32 v{M}, -2, v{M}")
        A(f"v_min_u32 v{Ls}, -2, v{Ls}")
        A(f"ds_write_b32 v16, v{M} offset:{MLM}")
        A(f"ds_write_b32 v16, v{Ls} offset:{MLL}")
        A(f"v_mul_u32_u24 v17, {OBS}, v6")
        A("v_add_u32 v17, v7, v17")
        A("s_mov_b32 s54, 0")
        if self.fb:
            A("v_mov_b32 v59, 0"); A("s_mov_b32 s61, 0")
            A(f"s_mov_b64 vcc, {0 if self.fbn0 > 0 else -1}")
        elif self.adel:
            A(f"s_bitcmp{1-self.apar}_b32 s2, 0")
            A("s_cselect_b64 vcc, -1, 0")
        assert DV >= DK
        def pv(slot):
            r = RING + 4 * slot
            for d in range(4):
                A(f"v_dot2c_f32_bf16_dpp v{ACC+2*d}, v{PLO}, v{r+d} row_newbcast:{slot} row_mask:0xf bank_mask:0xf")
                A(f"v_dot2c_f32_bf16_dpp v{ACC+2*d+1}, v{PHI}, v{r+d} row_newbcast:{slot} row_mask:0xf bank_mask:0xf")
        A("L_vloop:")
        A(f"v_cvt_pk_bf16_f32 v{PLO}, v{S}, 0")
        A(f"v_cvt_pk_bf16_f32 v{PHI}, 0, v{S}")
        for i in range(7):
            A(f"v_mov_b32 v{S+i}, v{S+i+1}")
        for j in range(16):
            if j == 16 - DV and self.prog:
                A("s_memrealtime s[90:91]")
            if j == 16 - DV:
                A(f"s_add_u32 s50, s50, {1 << GS:#x}")
            swait(DV, True)
            load((j + DV) % 16, "s[12:15]", "s50")
            pv(j)
            if self.fb and j % 8 == 2:
                A(f"ds_read_b32 v58, v59 offset:{RK}")
            if self.fb and j % 8 == 4:
                A("s_waitcnt lgkmcnt(0)")
                A("v_cmp_ge_i32 vcc, s61, v58")
                A("s_add_u32 s61, s61, 1")
        if self.prog:
            A("s_waitcnt lgkmcnt(0)")
            A("s_add_u32 m0, s54, 8"); A("s_nop 0")
            A("v_writelane_b32 v60, s90, m0")
        A("s_add_u32 s54, s54, 1")
        A("s_cmp_lt_u32 s54, 8")
        A("s_cbranch_scc1 L_vloop")
        self.stamp(4)
        A("s_nop 1")
        for d in range(4):
            A(f"v_cvt_pk_bf16_f32 v{20+d}, v{ACC+2*d}, v{ACC+2*d+1}")
        A(f"ds_write_b128 v17, v[20:23] offset:{OB}")
        A("s_waitcnt lgkmcnt(0)")
        A("s_barrier")
        self.dump_stamps(9, 24)
        if self.prog:
            A("s_lshl_b32 s60, s2, 2"); A("s_add_u32 s60, s60, s3"); A("s_lshl_b32 s60, s60, 6")
            A(f"s_add_u32 s60, s60, {WS_DIAG + 0x80000:#x}")
            A("v_and_b32 v24, 63, v0"); A("v_lshlrev_b32 v24, 2, v24")
            A("v_add_u32 v24, s60, v24")
            A("s_mov_b64 exec, 0xffff")
            A("global_store_dword v24, v60, s[40:41]")
        A("s_endpgm")

    TB = 100
    def tag4(self, R, n=4):
        for i in range(n):
            self.A(f"v_and_or_b32 v{R+i}, v{R+i}, v15, s{96 + i % 4}")
    def chk(self, acc, R, n, D=None):
        D = R if D is None else D
        for i in range(n):
            self.A(f"v_xor_b32 v{D+i}, s{96 + i % 4}, v{R+i}")
        self.A(f"v_or3_b32 v{acc}, v{D}, v{D+1}, v{D+2}")
        i = 3
        while i < n:
            if i + 1 < n:
                self.A(f"v_or3_b32 v{acc}, v{acc}, v{D+i}, v{D+i+1}"); i += 2
            else:
                self.A(f"v_or_b32 v{acc}, v{acc}, v{D+i}"); i += 1
    def chk_branch(self, acc, lab, sleep):
        A = self.A
        A(f"v_cmp_ne_u32_sdwa vcc, v{acc}, v10 src0_sel:BYTE_0 src1_sel:DWORD")
        A(f"s_cbranch_vccz {lab}_done")
        self.spin_end(lab, sleep)
        A(f"{lab}_done:")

    def set_tag(self):
        for k in range(4):
            self.A(f"s_bfe_u32 s{96+k}, s63, {0x80000 + 8*k:#x}")

    def ppoll_code(self, RD, ST):
        A = self.A
        MK = 16
        for it in range(8):
            A(f"s_mov_b64 s[{MK+2*it}:{MK+2*it+1}], -1")
            A(f"s_mov_b32 s{44+it}, {it*0x4000:#x}")
        A("s_mov_b32 s56, 512")
        self.spin_begin("L_sp_s")
        for it in range(8):
            A(f"s_mov_b64 exec, s[{MK+2*it}:{MK+2*it+1}]")
            A(f"buffer_load_dwordx4 v[{RD+4*it}:{RD+4*it+3}], v7, s[8:11], s{44+it} offen sc1")
        A(f"s_cmp_le_u32 s56, {8*self.pfast}")
        A("s_cbranch_scc1 L_sp_f")
        A("s_waitcnt vmcnt(0)")
        A("L_sp_f:")
        A(f"s_waitcnt vmcnt({8*(self.ppoll-1)})")
        A("s_mov_b32 s56, 0")
        for it in range(8):
            m = f"s[{MK+2*it}:{MK+2*it+1}]"
            A(f"s_mov_b64 exec, {m}")
            A(f"s_cbranch_execz L_sp_g{it}")
            self.chk(13, RD + 4 * it, 4, ST + 4 * it)
            for mm in ("quad_perm:[1,0,3,2]", "quad_perm:[2,3,0,1]", "row_half_mirror"):
                A("s_nop 1")
                A(f"v_or_b32_dpp v13, v13, v13 {mm} row_mask:0xf bank_mask:0xf")
            A(f"v_cmp_ne_u32_sdwa {m}, v13, v10 src0_sel:BYTE_0 src1_sel:DWORD")
            A(f"s_bcnt1_i32_b64 s42, {m}")
            A("s_add_u32 s56, s56, s42")
            A(f"L_sp_g{it}:")
        A("s_cmp_eq_u32 s56, 0")
        A("s_cbranch_scc1 L_sp_s_done")
        A("s_sub_u32 s55, s55, 1")
        A("s_cbranch_scc0 L_sp_s")

    def pp2_setup(self, ST):
        A = self.A
        A("s_xor_b32 s42, s96, 1")
        for it in range(8):
            A(f"s_mov_b64 s[{16+2*it}:{17+2*it}], -1")
            A(f"s_mov_b32 s{44+it}, {it*0x4000:#x}")
            A(f"v_mov_b32 v{ST+4*it}, s42")
        A("s_mov_b32 s56, 0xff")
        A(f"s_mov_b32 s55, {SPIN_MAX*8}")
    def pp2_code(self, RD, ST):
        A = self.A
        def ld(it):
            A(f"buffer_load_dwordx4 v[{ST+4*it}:{ST+4*it+3}], v7, s[8:11], s{44+it} offen sc1")
        for it in range(8):
            ld(it)
        A("L_sp_s:")
        for it in range(8):
            m = f"s[{16+2*it}:{17+2*it}]"
            if self.pline:
                A(f"s_mov_b64 exec, {m}")
                A(f"s_cbranch_execz L_pg{it+1}")
            else:
                A(f"s_bitcmp1_b32 s56, {it}")
                A(f"s_cbranch_scc0 L_pg{it+1}")
            A(f"L_ps{it}:")
            A(f"s_waitcnt vmcnt({self.pdepth-1})")
            self.chk(13, ST + 4 * it, 4, RD + 4 * it)
            if self.pline == 2:
                A(f"v_cmp_ne_u32_sdwa vcc, v13, v10 src0_sel:BYTE_0 src1_sel:DWORD")
                A(f"s_wqm_b64 {m}, vcc")
                A(f"s_cbranch_scc0 L_pd{it}")
                A(f"s_mov_b64 exec, {m}")
            elif self.pline:
                for mm in ("quad_perm:[1,0,3,2]", "quad_perm:[2,3,0,1]", "row_half_mirror"):
                    A("s_nop 1")
                    A(f"v_or_b32_dpp v13, v13, v13 {mm} row_mask:0xf bank_mask:0xf")
                A(f"v_cmp_ne_u32_sdwa {m}, v13, v10 src0_sel:BYTE_0 src1_sel:DWORD")
                A(f"s_mov_b64 exec, {m}")
                A(f"s_cbranch_execz L_pd{it}")
            else:
                A(f"v_cmp_ne_u32_sdwa vcc, v13, v10 src0_sel:BYTE_0 src1_sel:DWORD")
                A(f"s_cbranch_vccz L_pd{it}")
            ld(it)
            A(f"s_cmp_lg_u32 s56, {1 << it}")
            A(f"s_cbranch_scc1 L_pg{it+1}")
            A("s_sub_u32 s55, s55, 1")
            A(f"s_cbranch_scc0 L_ps{it}")
            A("s_branch L_sp_s_done")
            A(f"L_pd{it}:")
            A(f"s_andn2_b32 s56, s56, {1 << it}")
            A("s_cbranch_scc0 L_sp_s_done")
            A(f"L_pg{it+1}:")
        A("s_sub_u32 s55, s55, 1")
        A("s_cbranch_scc0 L_sp_s")

    def helper(self):
        A, C = self.A, self.C
        wf, mf = self.wflags, self.mflags
        RA, RD = 16, 32
        RB = 64
        ST = 192
        T = 224
        A("L_helper:")
        C("===== helper waves =====")
        A("s_sub_u32 s7, s3, 4")
        A("v_bfe_u32 v3, v0, 4, 2")
        A("v_and_b32 v4, 63, v0")
        A("s_bfe_u32 s4, s59, 0x50001")
        A("s_lshr_b32 s5, s2, 6")
        A("s_mov_b32 s57, 0")
        if self.bare == 1:
            A("s_waitcnt lgkmcnt(0)")
            A("s_barrier"); A("s_barrier"); A("s_branch L_hend")
        A("s_mov_b32 s48, 0x05040100"); A("s_mov_b32 s49, 0x07060302")
        A("v_lshlrev_b32 v6, 4, v4")
        A("v_mov_b32 v10, 0")
        A("v_mov_b32 v15, 0xffffff00")
        A("s_mov_b32 s11, 0x20000"); A("s_mov_b32 s15, 0x20000")
        C("s62 = MLP unit of this WG (>= NUNIT: none)")
        A("s_lshr_b32 s62, s2, 1")
        A("s_and_b32 s42, s2, 1"); A(f"s_cmp_eq_u32 s42, {self.mpar}")
        A("s_cselect_b32 s62, s62, 255")
        A("s_cmp_ge_u32 s7, 2")
        A("s_cbranch_scc1 L_nofront")
        A("s_cmp_eq_u32 s7, 0")
        A("s_cbranch_scc1 L_front")
        A(f"s_cmp_ge_u32 s62, {NUNIT}")
        A("s_cbranch_scc1 L_nofront")
        if "s1" in self.skip:
            A("s_branch L_nofront")
        A("L_front:")
        A(f"s_setprio {self.fprio}")
        A("s_mov_b32 s57, 1")
        if not self.fh:
            C("front units, 64 rows x 128 cols for all 4 batch rows. helper 0: wq rows 64(2b+side).., cols 128h..")
            C("helper 1: w1 rows 64(u&7).., cols 128(u>>3)..")
            A("s_and_b32 s42, s59, 1"); A("s_lshl1_add_u32 s42, s5, s42"); A("s_and_b32 s43, s62, 7")
            A("s_lshr_b32 s44, s62, 3")
            A("s_mov_b32 s51, 3584")
            A("s_cmp_eq_u32 s7, 0")
            A("s_cselect_b32 s53, s42, s43")
            A("s_cselect_b32 s44, s4, s44")
            A("s_cselect_b32 s51, 8192, s51")
            A("s_lshl_b32 s10, s51, 9")
            A("s_mul_i32 s52, s51, 25")
            A("s_mul_i32 s50, s53, s51"); A("s_lshl_b32 s50, s50, 6"); A("s_lshl_b32 s44, s44, 8"); A("s_add_u32 s50, s50, s44")
            A("s_lshl_b32 s42, s51, 3")
            A("v_mul_u32_u24 v5, s42, v3")
            A("v_lshl_add_u32 v5, v2, 4, v5")
        elif self.fh == 2:
            C("front units, 256 rows x 32 cols for all 4 batch rows. helper 0: wq rows 256(b>>1).., cols 32(4h + 2(b&1) + side)..")
            C("helper 1: w1 rows 256(u&1).., cols 32(4(u>>3) + (u&2) + ((u>>2)&1))..  The lane quads hold different 32-row blocks.")
            if self.pm:
                A("s_and_b32 s42, s59, 1"); A("s_and_b32 s61, s5, 1"); A("s_lshl1_add_u32 s61, s42, s61")
            else:
                A("s_and_b32 s42, s59, 1"); A("s_lshl1_add_u32 s42, s5, s42"); A("s_and_b32 s61, s42, 3")
            A("s_lshl2_add_u32 s42, s4, s61")
            A("s_lshr_b32 s44, s62, 3"); A("s_and_b32 s43, s62, 2"); A("s_lshl2_add_u32 s44, s44, s43")
            A("s_bfe_u32 s43, s62, 0x10002"); A("s_add_u32 s44, s44, s43")
            A("s_and_b32 s43, s62, 1"); A("s_lshr_b32 s53, s5, 1")
            A("s_mov_b32 s51, 3584")
            A("s_cmp_eq_u32 s7, 0")
            A("s_cselect_b32 s53, s53, s43")
            A("s_cselect_b32 s60, s42, s44")
            A("s_cselect_b32 s51, 8192, s51")
            A("s_lshl_b32 s10, s51, 9")
            A("s_mul_i32 s52, s51, 121")
            A("s_mul_i32 s50, s53, s51"); A("s_lshl2_add_u32 s50, s50, s60"); A("s_lshl_b32 s50, s50, 6")
            A("s_lshl_b32 s42, s51, 3")
            A("v_and_b32 v12, 12, v2"); A("v_add_u32 v5, v12, v3")
            A("v_mul_u32_u24 v5, s42, v5")
            A("v_and_b32 v12, 3, v2")
            A("v_lshl_add_u32 v5, v12, 4, v5")
        else:
            C("front units, 128 rows x 64 cols for all 4 batch rows. helper 0: wq rows 128b.., cols 64(2h+side)..")
            C("helper 1: w1 rows 128(u&3).., cols 64(u>>2)..  Lanes c<8 / c>=8 hold different 32-row blocks.")
            A("s_and_b32 s42, s59, 63"); A("s_and_b32 s43, s62, 3")
            A("s_lshr_b32 s44, s62, 2")
            A("s_mov_b32 s51, 3584")
            A("s_cmp_eq_u32 s7, 0")
            A("s_cselect_b32 s53, s5, s43")
            A("s_cselect_b32 s44, s42, s44")
            A("s_cselect_b32 s51, 8192, s51")
            A("s_lshl_b32 s10, s51, 9")
            A("s_mul_i32 s52, s51, 57")
            A("s_mul_i32 s50, s53, s51"); A("s_add_u32 s50, s50, s44"); A("s_lshl_b32 s50, s50, 7")
            A("s_lshl_b32 s42, s51, 3")
            A("v_lshrrev_b32 v12, 3, v2"); A("v_lshl_add_u32 v5, v12, 2, v3")
            A("v_mul_u32_u24 v5, s42, v5")
            A("v_and_b32 v12, 7, v2")
            A("v_lshl_add_u32 v5, v12, 4, v5")
        A("v_lshlrev_b32 v12, 10, v3")
        A("v_lshl_add_u32 v12, v2, 4, v12")
        A("s_cmp_eq_u32 s7, 0")
        A("s_waitcnt lgkmcnt(0)")
        for t in range(4):
            A(f"global_load_dwordx4 v[{RB+32+4*t}:{RB+35+4*t}], v12, s[16:17] offset:{256*t}")
        C("the word the previous launch left only serves to pick a tag that differs from that launch's")
        A(f"s_load_dword s63, s[40:41], {WS_EP:#x}")
        A("s_cselect_b32 s8, s22, s28"); A("s_cselect_b32 s9, s23, s29")
        if "fld" in self.skip:
            A("s_mov_b32 s10, 0")
        self.slabload(RB + 96, "s[8:11]", 5, "s51", mf, last_inc="s52")
        self.slabload(ST, "s[8:11]", 5, "s51", mf)
        A("s_lshl_b32 s42, s7, 12")
        A("v_add_u32 v12, s42, v12")
        A("v_lshrrev_b32 v13, 2, v2")
        A("v_lshlrev_b32 v13, 10, v13")
        A("v_lshl_add_u32 v13, v3, 4, v13")
        if not self.fh:
            C("A operand: rows[i>>2][64*blk + 32n + 8kk]")
            A("s_lshl_b32 s43, s53, 7"); A("s_add_u32 s42, s42, s43")
        else:
            C("A operand: rows[i>>2][unit rows: slab n, 32-row block from the low bits of i, 8kk]")
            A(f"v_and_b32 v14, {(1<<self.fh)-1}, v2"); A("v_lshl_add_u32 v13, v14, 6, v13")
            A(f"s_lshl_b32 s43, s53, {7+self.fh}"); A("s_add_u32 s42, s42, s43")
        A("v_add_u32 v13, s42, v13")
        A("s_mov_b32 s54, s7")
        A("s_waitcnt vmcnt(16)")
        self.stamp(1)
        A("L_ln:")
        self.unpack(RB, RB + 32, 16)
        self.layernorm(RB, 32, T, RB + 32, unpack_after=False)
        A("s_sub_u32 s54, s54, 1")
        A("s_cbranch_scc0 L_ln")
        for t in range(4):
            A(f"ds_write_b128 v12, v[{RB+32+4*t}:{RB+35+4*t}] offset:{XN + 256*t}")
        A("s_waitcnt vmcnt(8)")
        self.slabperm(RB + 64, RB + 96)
        A("s_waitcnt lgkmcnt(0)")
        A(f"ds_read_b128 v[{RA}:{RA+3}], v13 offset:{XN}")
        A(f"ds_read_b128 v[{RA+4}:{RA+7}], v13 offset:{XN+(64<<self.fh)}")
        A("s_add_u32 s63, s63, 0x61c88647")
        self.set_tag()
        A("s_waitcnt vmcnt(0)")
        self.slabperm(RB + 96, ST)
        A("s_waitcnt lgkmcnt(0)")
        self.slabmfma(RD, RA, RB + 64, True)
        self.slabmfma(RD, RA + 4, RB + 96, False)
        A("s_cmp_eq_u32 s7, 0")
        A("s_cbranch_scc1 L_qaddr")
        if not self.fh:
            C("U[u][sub=c>>2][half][b=kk][c&3][4]")
            A("s_lshl_b32 s42, s62, 11"); A(f"s_add_u32 s42, s42, {WS_U:#x}")
            A("v_lshrrev_b32 v12, 2, v2"); A("v_lshlrev_b32 v12, 9, v12")
            A("v_lshl_add_u32 v12, v3, 6, v12")
            A("v_and_b32 v13, 3, v2"); A("v_lshl_add_u32 v12, v13, 4, v12")
            A("s_branch L_fst")
            A("L_qaddr:")
            C("Q[h][b=kk][s][half][c][4]")
            A("s_lshl_b32 s42, s4, 14"); A("s_lshl_b32 s43, s53, 9"); A("s_add_u32 s42, s42, s43")
            A(f"s_add_u32 s42, s42, {WS_Q:#x}")
            A("v_lshlrev_b32 v12, 12, v3")
            A("v_lshl_add_u32 v12, v2, 4, v12")
            A("L_fst:")
            A("v_add_u32 v12, s42, v12")
            for jj in range(8):
                A(f"v_and_or_b32 v{T+jj}, v{RD+4*jj}, v15, s{96 + jj % 4}")
            if "fst" not in self.skip:
                A(f"global_store_dwordx4 v12, v[{T}:{T+3}], s[40:41] sc1")
                A(f"global_store_dwordx4 v12, v[{T+4}:{T+7}], s[40:41] offset:256 sc1")
        elif self.fh == 2:
            C("U[col block][row block][half=c>>3][b=kk][c&3][4]")
            A("s_lshl1_add_u32 s42, s60, s53"); A("s_lshl_b32 s42, s42, 9"); A(f"s_add_u32 s42, s42, {WS_U:#x}")
            A("v_lshrrev_b32 v12, 3, v2"); A("v_lshlrev_b32 v12, 8, v12")
            A("v_lshl_add_u32 v12, v3, 6, v12")
            A("v_and_b32 v13, 3, v2"); A("v_lshl_add_u32 v12, v13, 4, v12")
            A("s_branch L_fst")
            A("L_qaddr:")
            C("Q[h][b=kk][row block][col quarter][c&3][c>>3][4]")
            A("s_lshl_b32 s42, s4, 12"); A("s_lshl_b32 s43, s53, 9"); A("s_add_u32 s42, s42, s43")
            A("s_lshl_b32 s43, s61, 7"); A("s_add_u32 s42, s42, s43")
            A(f"s_add_u32 s42, s42, {WS_Q:#x}")
            A("v_lshlrev_b32 v12, 10, v3")
            A("v_and_b32 v13, 3, v2"); A("v_lshl_add_u32 v12, v13, 5, v12")
            A("v_lshrrev_b32 v13, 3, v2"); A("v_lshl_add_u32 v12, v13, 4, v12")
            A("L_fst:")
            A("v_add_u32 v12, s42, v12")
            self.fold4(T, RD)
            if "fst" not in self.skip:
                A(f"global_store_dwordx4 v12, v[{T}:{T+3}], s[40:41] sc1")
            A("s_mov_b64 exec, -1")
        else:
            C("U[u][n=(c>>2)&1][half=c>>3][b=kk][c&3][4]")
            A("s_lshl_b32 s42, s62, 10"); A(f"s_add_u32 s42, s42, {WS_U:#x}")
            A("v_bfe_u32 v12, v2, 2, 1"); A("v_lshlrev_b32 v12, 9, v12")
            A("v_lshrrev_b32 v13, 3, v2"); A("v_lshl_add_u32 v12, v13, 8, v12")
            A("v_lshl_add_u32 v12, v3, 6, v12")
            A("v_and_b32 v13, 3, v2"); A("v_lshl_add_u32 v12, v13, 4, v12")
            A("s_branch L_fst")
            A("L_qaddr:")
            C("Q[h][b=kk][row block][side][c&7][c>>3][4]")
            A("s_lshl_b32 s42, s4, 13"); A("s_lshl_b32 s43, s53, 9"); A("s_add_u32 s42, s42, s43")
            A("s_and_b32 s43, s59, 1"); A("s_lshl_b32 s43, s43, 8"); A("s_add_u32 s42, s42, s43")
            A(f"s_add_u32 s42, s42, {WS_Q:#x}")
            A("v_lshlrev_b32 v12, 11, v3")
            A("v_and_b32 v13, 7, v2"); A("v_lshl_add_u32 v12, v13, 5, v12")
            A("v_lshrrev_b32 v13, 3, v2"); A("v_lshl_add_u32 v12, v13, 4, v12")
            A("L_fst:")
            A("v_add_u32 v12, s42, v12")
            self.fold(T, RD)
            if "fst" not in self.skip:
                A(f"global_store_dwordx4 v12, v[{T}:{T+3}], s[40:41] sc1")
        self.stamp(2)
        A("s_cmp_lg_u32 s7, 0")
        A("s_cbranch_scc1 L_fdone")
        C("helper 0: gather the partials of q[b][h], LDS init")
        A(f"s_lshl_b32 s42, s4, {14-self.fh}"); A(f"s_lshl_b32 s43, s5, {12-self.fh}"); A("s_add_u32 s42, s42, s43")
        A(f"s_add_u32 s42, s42, {WS_Q:#x}")
        A("v_add_u32 v12, s42, v6")
        A("v_lshlrev_b32 v8, 2, v4")
        A("v_mov_b32 v9, -1")
        A(f"ds_write_b32 v8, v9 offset:{MLM}")
        A("v_mov_b32 v9, s63")
        A(f"ds_write_b32 v10, v9 offset:{TAGL}")
        if self.fb:
            A(f"v_mov_b32 v9, {self.fbn0}")
            A(f"ds_write_b32 v10, v9 offset:{RK}")
        if not self.fh:
            A("v_bfe_u32 v9, v4, 4, 1")
            A("v_lshlrev_b32 v9, 3, v9")
            A("v_lshl_add_u32 v9, v2, 4, v9")
        else:
            A("v_and_b32 v9, 31, v4"); A("v_lshlrev_b32 v9, 3, v9")
        if "qpoll" in self.skip:
            A("s_branch L_sp_q_done")
        C("the partners publish at about the same time: look once the own stores are acknowledged")
        A("s_waitcnt vmcnt(0)")
        self.spin_begin("L_sp_q")
        NQ = 4 >> self.fh
        for t in range(NQ):
            A(f"global_load_dwordx4 v[{RD+4*t}:{RD+4*t+3}], v12, s[40:41] offset:{1024*t} sc1")
        A("s_waitcnt vmcnt(0)")
        self.chk(13, RD, 4 * NQ)
        self.chk_branch(13, "L_sp_q", self.qsleep)
        for d in range(4 if NQ > 1 else 0):
            A(f"v_add_f32 v{RD+d}, v{RD+d}, v{RD+4+d}")
            if NQ == 4:
                A(f"v_add_f32 v{RD+8+d}, v{RD+8+d}, v{RD+12+d}")
        for d in range(4 if NQ == 4 else 0):
            A(f"v_add_f32 v{RD+d}, v{RD+d}, v{RD+8+d}")
        for d in range(4):
            A(f"v_mov_b32 v{RD+4+d}, v{RD+d}")
        A("s_nop 1")
        for d in range(4):
            A(f"v_permlane32_swap_b32 v{RD+d}, v{RD+4+d}")
        for d in range(4):
            A(f"v_add_f32 v{RD+d}, v{RD+d}, v{RD+4+d}")
        for d in range(2):
            A(f"v_cvt_pk_bf16_f32 v{RD+d}, v{RD+2*d}, v{RD+2*d+1}")
        A(f"ds_write_b64 v9, v[{RD}:{RD+1}] offset:{QP}")
        A("L_fdone:")
        A("s_setprio 0")
        A("L_nofront:")
        A("s_waitcnt lgkmcnt(0)")
        self.stamp(3)
        if self.bare == 2:
            A("s_barrier"); A("s_barrier"); A("s_branch L_hend")
        C("----- wo block: rows 128h.., cols 128j.. (paced; helper 2 keeps one more load in flight) -----")
        A("v_lshlrev_b32 v5, 4, v2")
        A("v_lshl_or_b32 v5, v3, 13, v5")
        A("s_lshl_b32 s50, s4, 17"); A("s_lshl_b32 s43, s7, 8"); A("s_add_u32 s50, s50, s43")
        A("s_mov_b32 s8, s24"); A("s_mov_b32 s9, s25"); A("s_mov_b32 s10, 0x400000")
        A("s_cmp_eq_u32 s7, 2")
        A("s_cselect_b64 vcc, -1, 0")
        if self.wearly == 1:
            C("waves without front work take their first round before the barrier")
            A("s_cmp_eq_u32 s57, 0")
            A("s_cbranch_scc1 L_nb1")
        elif self.wearly == 2:
            A("s_cselect_b32 s57, 0, 1")
            A("s_cbranch_scc1 L_nb1")
        A("s_barrier")
        A("L_nb1:")
        def wo_round(n):
            wd = self.wdepth
            for e in range(8):
                r = ST + 4 * e
                if e >= wd:
                    A(f"s_waitcnt vmcnt({wd})")
                    A(f"s_cbranch_vccnz L_wo{n}_{e}")
                    A(f"s_waitcnt vmcnt({wd-1})")
                    A(f"L_wo{n}_{e}:")
                A(f"buffer_load_dwordx4 v[{r}:{r+3}], v5, s[8:11], s50 offen {wf}".rstrip())
                A(f"s_add_u32 s50, s50, {1024 if e < 7 else 25*1024}")
            A("s_waitcnt vmcnt(0)")
            self.slabperm(RB + 32 * n, ST)
        wo_round(0)
        if self.wearly:
            A("s_cmp_lg_u32 s57, 0")
            A("s_cbranch_scc1 L_nb2")
            self.stamp(3)
            A("s_barrier")
            A("L_nb2:")
        self.stamp(10)
        A(f"ds_read_b32 v13, v10 offset:{TAGL}")
        A("s_waitcnt lgkmcnt(0)")
        A("v_readfirstlane_b32 s63, v13")
        self.set_tag()
        A("s_cmp_lg_u32 s7, 1")
        A("s_cbranch_scc1 L_not1")
        if self.mpar2 != self.mpar:
            A("s_lshr_b32 s62, s2, 1")
            A("s_and_b32 s42, s2, 1"); A(f"s_cmp_eq_u32 s42, {self.mpar2}")
            A("s_cselect_b32 s62, s62, 255")
        A(f"s_cmp_ge_u32 s62, {NUNIT}")
        A("s_cbranch_scc1 L_not1")
        if "s2" in self.skip:
            A("s_branch L_not1")
        A("s_mov_b32 s51, s50")
        zh, NZ = self.zh, self.NZ
        assert self.fh or not zh
        if not zh:
            C("stage 2 unit: r = u>>2 (hidden rows 64r..), cq = u&3 (cols 128cq..)")
            A("s_lshr_b32 s60, s62, 2"); A("s_and_b32 s61, s62, 3")
            A("s_lshl_b32 s50, s60, 16"); A("s_lshl_b32 s43, s61, 8"); A("s_add_u32 s50, s50, s43")
            W2V = 5
        elif zh == 2:
            C("stage 2 unit: r = u>>4 (hidden rows 256r..), cq = (u&8) + 2(u&3) + ((u>>2)&1) (cols 32cq..)")
            A("s_lshr_b32 s60, s62, 4"); A("s_and_b32 s61, s62, 3"); A("s_and_b32 s43, s62, 8"); A("s_lshl1_add_u32 s61, s61, s43")
            A("s_bfe_u32 s43, s62, 0x10002"); A("s_add_u32 s61, s61, s43")
            A("s_lshl_b32 s50, s60, 18"); A("s_lshl_b32 s43, s61, 6"); A("s_add_u32 s50, s50, s43")
            A("v_and_b32 v12, 12, v2"); A("v_add_u32 v14, v12, v3"); A("v_lshlrev_b32 v14, 13, v14")
            A("v_and_b32 v12, 3, v2"); A("v_lshl_add_u32 v14, v12, 4, v14")
            W2V = 14
        else:
            C("stage 2 unit: r = u>>3 (hidden rows 128r..), cq = u&7 (cols 64cq..)")
            A("s_lshr_b32 s60, s62, 3"); A("s_and_b32 s61, s62, 7")
            A("s_lshl_b32 s50, s60, 17"); A("s_lshl_b32 s43, s61, 7"); A("s_add_u32 s50, s50, s43")
            A("v_lshrrev_b32 v12, 3, v2"); A("v_lshl_add_u32 v14, v12, 2, v3"); A("v_lshlrev_b32 v14, 13, v14")
            A("v_and_b32 v12, 7, v2"); A("v_lshl_add_u32 v14, v12, 4, v14")
            W2V = 14
        A("s_mov_b32 s12, s32"); A("s_mov_b32 s13, s33"); A(f"s_mov_b32 s14, {1792*1024}")
        if "w2ld" in self.skip:
            A("s_mov_b32 s14, 0")
        self.slabload(ST, "s[12:15]", W2V, 1024, mf, last_inc=((32 << zh) - 7) * 1024, pace=self.w2p)
        self.slabload(RD, "s[12:15]", W2V, 1024, mf, pace=self.w2p, cont=True)
        A(f"s_lshl_b32 s43, s60, {7+zh}")
        A("v_lshlrev_b32 v13, 4, v3")
        if zh:
            A(f"v_and_b32 v12, {(1<<zh)-1}, v2"); A("v_lshl_add_u32 v13, v12, 6, v13")
        A("v_add_u32 v13, s43, v13")
        A(f"global_load_dwordx4 v[{T+16}:{T+19}], v13, s[30:31]")
        A(f"global_load_dwordx4 v[{T+20}:{T+23}], v13, s[30:31] offset:{64<<zh}")
        A("s_mov_b32 s50, s51")
        UU, W, BB = RB + 64, RB + 80, RB + 112
        if not self.fh:
            C("U[m*8 + 4t + (c&3)][2(r&1) + n][half][b=c>>2][kk][4]")
            A("v_and_b32 v12, 3, v2"); A("v_lshlrev_b32 v12, 11, v12")
            A("v_lshrrev_b32 v13, 2, v2"); A("v_lshl_add_u32 v12, v13, 6, v12")
            A("v_lshl_add_u32 v12, v3, 4, v12")
            A("s_lshr_b32 s42, s60, 1"); A("s_lshl_b32 s42, s42, 14")
            A("s_and_b32 s43, s60, 1"); A("s_lshl_b32 s43, s43, 10"); A("s_add_u32 s42, s42, s43")
            A(f"s_add_u32 s42, s42, {WS_U:#x}")
            A(f"v_add_u32 v{T}, s42, v12")
            A(f"v_add_u32 v{T+1}, 0x2000, v{T}")
            lds_ = [(UU + 16*t + 4*q, T + t, 256*q) for t in range(2) for q in range(4)]
            perms = ("quad_perm:[1,0,3,2]", "quad_perm:[2,3,0,1]")
        elif self.fh == 2:
            assert zh
            if zh == 1:
                C("U[4r + 2n + (c&1)][(c>>1)&1][half][b=c>>2][kk][4]")
                A("v_and_b32 v12, 1, v2"); A("v_lshlrev_b32 v12, 10, v12")
                A("v_bfe_u32 v13, v2, 1, 1"); A("v_lshl_add_u32 v12, v13, 9, v12")
            else:
                C("U[8r + 4n + (c&3)][t][half][b=c>>2][kk][4]")
                A("v_and_b32 v12, 3, v2"); A("v_lshlrev_b32 v12, 10, v12")
            A("v_lshrrev_b32 v13, 2, v2"); A("v_lshl_add_u32 v12, v13, 6, v12")
            A("v_lshl_add_u32 v12, v3, 4, v12")
            A(f"s_lshl_b32 s42, s60, {11+zh}")
            A(f"s_add_u32 s42, s42, {WS_U:#x}")
            A(f"v_add_u32 v{T}, s42, v12")
            if zh == 1:
                lds_ = [(UU + 8*n + 4*hf, T, 2048*n + 256*hf) for n in range(2) for hf in range(2)]
                perms = ("quad_perm:[2,3,0,1]",)
            else:
                A(f"v_add_u32 v{T+1}, 0x1000, v{T}")
                lds_ = [(UU + 16*t + 8*n + 4*hf, T + n, 512*t + 256*hf) for t in range(2) for n in range(2) for hf in range(2)]
                perms = ()
        elif not zh:
            C("U[4r + (c&3)][n][half][b=c>>2][kk][4]")
            A("v_and_b32 v12, 3, v2"); A("v_lshlrev_b32 v12, 10, v12")
            A("v_lshrrev_b32 v13, 2, v2"); A("v_lshl_add_u32 v12, v13, 6, v12")
            A("v_lshl_add_u32 v12, v3, 4, v12")
            A("s_lshl_b32 s42, s60, 12")
            A(f"s_add_u32 s42, s42, {WS_U:#x}")
            A(f"v_add_u32 v{T}, s42, v12")
            lds_ = [(UU + 4*q, T, 256*q) for q in range(4)]
            perms = ("quad_perm:[1,0,3,2]", "quad_perm:[2,3,0,1]")
        else:
            C("U[4(2r+n) + 2t + ((c>>1)&1)][c&1][half][b=c>>2][kk][4]")
            A("v_and_b32 v12, 3, v2"); A("v_lshlrev_b32 v12, 9, v12")
            A("v_lshrrev_b32 v13, 2, v2"); A("v_lshl_add_u32 v12, v13, 6, v12")
            A("v_lshl_add_u32 v12, v3, 4, v12")
            A("s_lshl_b32 s42, s60, 13")
            A(f"s_add_u32 s42, s42, {WS_U:#x}")
            A(f"v_add_u32 v{T}, s42, v12")
            A(f"v_add_u32 v{T+1}, 0x1000, v{T}")
            lds_ = [(UU + 16*t + 8*n + 4*hf, T + n, 2048*t + 256*hf) for t in range(2) for n in range(2) for hf in range(2)]
            perms = ("quad_perm:[2,3,0,1]",)
        if "upoll" in self.skip:
            A("s_waitcnt vmcnt(0)")
            A("s_branch L_sp_u_done")
        self.spin_begin("L_sp_u")
        for r, v, o in lds_:
            A(f"global_load_dwordx4 v[{r}:{r+3}], v{v}, s[40:41] offset:{o} sc1")
        A("s_waitcnt vmcnt(0)")
        self.chk(13, UU, 4 * len(lds_))
        self.chk_branch(13, "L_sp_u", 32)
        self.unpack(BB, T + 16, 8)
        for i in range(16 if len(lds_) == 8 else 0):
            A(f"v_add_f32 v{UU+i}, v{UU+i}, v{UU+16+i}")
        for m in perms:
            for i in range(16):
                A(f"v_add_f32_dpp v{UU+i}, v{UU+i}, v{UU+i} {m} row_mask:0xf bank_mask:0xf")
        for i in range(16):
            self.rnd(UU + i, UU + i)
        for i in range(16):
            A(f"v_add_f32 v{UU+i}, v{UU+i}, v{BB+i}")
        for i in range(16):
            self.rnd(UU + i, UU + i)
        C("gelu(tanh form) = u / (1 + exp(-2k(u + 0.044715 u^3)))")
        k2 = -2.0 * math.sqrt(2.0 / math.pi) * math.log2(math.e)
        A(f"s_mov_b32 s42, {f32(0.044715 * k2)}"); A(f"s_mov_b32 s43, {f32(k2)}")
        A("v_mov_b32 v12, s43")
        for i in range(16):
            A(f"v_mul_f32 v{W+i}, v{UU+i}, v{UU+i}")
        for i in range(16):
            A(f"v_fma_f32 v{W+i}, v{W+i}, s42, v12")
        for i in range(16):
            A(f"v_mul_f32 v{W+i}, v{W+i}, v{UU+i}")
        for i in range(16):
            A(f"v_exp_f32 v{W+i}, v{W+i}")
        for i in range(16):
            A(f"v_add_f32 v{W+i}, 1.0, v{W+i}")
        for i in range(16):
            A(f"v_rcp_f32 v{W+i}, v{W+i}")
        for i in range(16):
            A(f"v_mul_f32 v{UU+i}, v{UU+i}, v{W+i}")
        for d in range(8):
            A(f"v_cvt_pk_bf16_f32 v{RA+d}, v{UU+2*d}, v{UU+2*d+1}")
        self.slabperm(RB + 64, ST)
        self.slabperm(RB + 96, RD)
        self.slabmfma(RD, RA, RB + 64, True)
        self.slabmfma(RD, RA + 4, RB + 96, False)
        if zh < 2:
            C("Z[b=kk][line][r][(c&7)*4..]")
            A(f"v_mul_u32_u24 v12, {16*NZ*128}, v3")
            A("v_lshrrev_b32 v13, 3, v2")
            A(f"v_mul_u32_u24 v13, {(2>>zh)*NZ*128}, v13")
            A("v_add_u32 v12, v12, v13")
            A("v_and_b32 v13, 7, v2")
            A("v_lshl_add_u32 v12, v13, 4, v12")
        else:
            C("Z[b=kk][cq][r][half=c>>3][c&3][4]")
            A(f"v_mul_u32_u24 v12, {16*NZ*128}, v3")
            A("v_lshrrev_b32 v13, 3, v2")
            A("v_lshl_add_u32 v12, v13, 6, v12")
            A("v_and_b32 v13, 3, v2")
            A("v_lshl_add_u32 v12, v13, 4, v12")
        A(f"s_mul_i32 s42, s61, {(4>>zh)*NZ*128}"); A("s_lshl_b32 s43, s60, 7"); A("s_add_u32 s42, s42, s43")
        A(f"s_add_u32 s42, s42, {WS_Z:#x}")
        A("v_add_u32 v12, s42, v12")
        if zh == 2:
            self.fold4(T, RD)
        elif zh:
            self.fold(T, RD)
        else:
            for jj in range(8):
                A(f"v_and_or_b32 v{T+jj}, v{RD+4*jj}, v15, s{96 + jj % 4}")
        if "zst" not in self.skip:
            A(f"global_store_dwordx4 v12, v[{T}:{T+3}], s[40:41] sc1")
            if not zh:
                A(f"global_store_dwordx4 v12, v[{T+4}:{T+7}], s[40:41] offset:{NZ*128} sc1")
        if zh == 2:
            A("s_mov_b64 exec, -1")
        A("s_mov_b64 vcc, 0")
        A("L_not1:")
        wo_round(1); wo_round(2); wo_round(3)
        self.stamp(4)
        if self.bare == 3:
            A("s_barrier"); A("s_branch L_hend")
        C("wait for the 16 (m,l) partials of this WG's stream waves")
        A("v_lshlrev_b32 v12, 2, v2")
        self.spin_begin("L_sp_m")
        A(f"ds_read_b32 v14, v12 offset:{MLM}")
        A(f"ds_read_b32 v11, v12 offset:{MLL}")
        A("s_waitcnt lgkmcnt(0)")
        A("v_max_u32 v13, v14, v11")
        A("v_cmp_eq_u32 vcc, -1, v13")
        A("s_cbranch_vccz L_sp_m_done")
        self.spin_end("L_sp_m", 4)
        A("L_sp_m_done:")
        CF = T + 28
        A("v_lshlrev_b32 v13, 4, v3")
        A(f"ds_read_b128 v[{CF}:{CF+3}], v13 offset:{MLM}")
        A(f"v_mov_b32 v{T}, v14")
        self.row_allreduce("max", T)
        A(f"v_sub_f32 v14, v14, v{T}")
        A("v_exp_f32 v14, v14")
        A("s_waitcnt lgkmcnt(0)")
        for r in range(4):
            A(f"v_sub_f32 v{CF+r}, v{CF+r}, v{T}")
        A(f"v_mul_f32 v{T+2}, v14, v11")
        for r in range(4):
            A(f"v_exp_f32 v{CF+r}, v{CF+r}")
        A("s_cmp_lg_u32 s7, 2")
        A("s_cbranch_scc1 L_nopub")
        C("helper 2 publishes {M, tag, L, tag} of this WG")
        self.row_allreduce("add", T + 2)
        A(f"v_mov_b32 v{T+1}, s63"); A(f"v_mov_b32 v{T+3}, s63")
        A("s_lshl_b32 s42, s59, 4"); A(f"s_add_u32 s42, s42, {WS_ML:#x}")
        A("v_mov_b32 v12, s42")
        A("s_mov_b64 exec, 1")
        if "ml" not in self.skip:
            A(f"global_store_dwordx4 v12, v[{T}:{T+3}], s[40:41] sc1")
        A("s_mov_b64 exec, -1")
        if self.fb:
            C("pacing hint: the fewer WGs of this batch row are as far, the longer this WG keeps fewer loads in flight")
            A("s_lshl_b32 s42, s5, 10"); A(f"s_add_u32 s42, s42, {WS_ML:#x}")
            A("v_add_u32 v12, s42, v6")
            if self.fb == 1:
                A("s_waitcnt vmcnt(0)")
            A(f"global_load_dword v13, v12, s[40:41] offset:4 sc1")
            A("s_waitcnt vmcnt(0)")
            A("v_cmp_ne_u32 vcc, s63, v13")
            A("s_bcnt1_i32_b64 s42, vcc")
            A(f"s_mul_i32 s42, s42, {self.fbk}"); A("s_lshr_b32 s42, s42, 6")
            A(f"s_add_i32 s42, s42, {self.fboff}")
            A("v_mov_b32 v13, s42")
            A(f"ds_write_b32 v10, v13 offset:{RK}")
        A("L_nopub:")
        G, XV, COL, F = T + 24, T + 25, T + 26, T + 8
        TG = T + 22
        C("addresses for the tail")
        A(f"v_mul_u32_u24 v8, {OBS}, v2")
        A("v_lshl_add_u32 v8, v3, 4, v8")
        C("S row + j*512 + (c>>3)*256 + (kk>>1)*128 + (c&7)*16 + (kk&1)*8")
        A("s_lshl_b32 s42, s7, 9"); A("s_lshl_b32 s43, s59, 11"); A("s_add_u32 s42, s42, s43")
        A("v_lshrrev_b32 v9, 3, v2"); A("v_lshlrev_b32 v9, 8, v9")
        A("v_lshrrev_b32 v13, 1, v3"); A("v_lshl_add_u32 v9, v13, 7, v9")
        A("v_and_b32 v13, 7, v2"); A("v_lshl_add_u32 v9, v13, 4, v9")
        A("v_and_b32 v13, 1, v3"); A("v_lshl_add_u32 v9, v13, 3, v9")
        A("v_add_u32 v9, s42, v9")
        A("v_lshlrev_b32 v13, 4, v13")
        A(f"v_lshrrev_b32 v{TG}, v13, s63")
        A(f"v_bfe_u32 v{TG+1}, v{TG}, 8, 8")
        A(f"v_and_b32 v{TG}, 0xff, v{TG}")
        A(f"v_mov_b32 v{COL}, 0")
        A("v_mov_b32 v7, 0")
        A("s_mov_b32 s8, s40"); A("s_mov_b32 s9, s41"); A("s_mov_b32 s10, 0x80000")
        C("s58 = 1 on consumer waves: helper 3 of WGs >= 128 of one parity")
        A(f"s_and_b32 s42, s2, 0x81"); A("s_lshl_b32 s43, s7, 1"); A("s_or_b32 s42, s42, s43")
        A(f"s_cmp_eq_u32 s42, {0x86 | self.cpar:#x}")
        A("s_cselect_b32 s58, 1, 0")
        A("s_cbranch_scc0 L_nog")
        if "cons" in self.skip:
            A("s_mov_b32 s58, 0")
            A("s_branch L_nog")
        C("consumer: batch bc, line cb: gate and merge factors")
        A("s_bfe_u32 s62, s2, 0x60001")
        A("s_lshr_b32 s60, s62, 4"); A("s_and_b32 s61, s62, 15")
        A("v_and_b32 v12, 7, v4")
        C("S poll address: S[bc][(l>>3) + 8it][line cb] + (l&7)*16")
        A("s_lshl_b32 s42, s60, 17"); A("s_lshl_b32 s43, s61, 7"); A("s_add_u32 s42, s42, s43")
        A("v_lshrrev_b32 v13, 3, v4"); A("v_lshlrev_b32 v13, 11, v13")
        A("v_lshl_add_u32 v7, v12, 4, v13")
        A("v_add_u32 v7, s42, v7")
        C("column = 64(cb>>1) + 4(cb&1) + 8(l&7) + 2(l>>5) + ((l>>4)&1)")
        A("v_lshlrev_b32 v12, 3, v12")
        A("v_lshrrev_b32 v13, 5, v4"); A("v_lshl_add_u32 v12, v13, 1, v12")
        A("v_bfe_u32 v13, v4, 4, 1"); A("v_add_u32 v12, v12, v13")
        A("s_lshr_b32 s42, s61, 1"); A("s_lshl_b32 s42, s42, 6")
        A("s_and_b32 s43, s61, 1"); A("s_lshl_b32 s43, s43, 2"); A("s_add_u32 s42, s42, s43")
        A(f"v_add_u32 v{COL}, s42, v12")
        A(f"v_lshlrev_b32 v13, 1, v{COL}")
        A(f"global_load_ushort v{G}, v13, s[34:35]")
        A("s_lshl_b32 s42, s60, 10")
        A(f"v_add_u32 v{COL}, s42, v13")
        A(f"global_load_ushort v{XV}, v{COL}, s[16:17]")
        if zh < 2:
            A(f"s_mul_i32 s42, s62, {NZ*128}"); A(f"s_add_u32 s42, s42, {WS_Z:#x}")
            A("v_add_u32 v12, s42, v6")
        else:
            C("Z[bc][2(cb>>1) + ((l>>2)&1)][r=l>>3][cb&1][l&3][4]")
            A("s_andn2_b32 s42, s62, 1"); A(f"s_mul_i32 s42, s42, {NZ*128}"); A(f"s_add_u32 s42, s42, {WS_Z:#x}")
            A("s_and_b32 s43, s62, 1"); A("s_lshl_b32 s43, s43, 6"); A("s_add_u32 s42, s42, s43")
            A("v_bfe_u32 v12, v4, 2, 1"); A(f"v_mul_u32_u24 v12, {NZ*128}, v12")
            A("v_lshrrev_b32 v13, 3, v4"); A("v_lshl_add_u32 v12, v13, 7, v12")
            A("v_and_b32 v13, 3, v4"); A("v_lshl_add_u32 v12, v13, 4, v12")
            A("v_add_u32 v12, s42, v12")
        self.spin_begin("L_sp_z")
        C("the lanes of the last load past the last line are masked off and hold tagged zeros")
        NL = 4 >> zh
        for d in range(4):
            A(f"v_mov_b32 v{RD+4*NL-4+d}, s{96+d}")
        for it in range(NL):
            if it == NL - 1:
                A(f"s_mov_b32 exec_hi, {(0, 0xffff, 0xffffff)[zh]:#x}")
            A(f"global_load_dwordx4 v[{RD+4*it}:{RD+4*it+3}], v12, s[40:41] offset:{it*1024} sc1")
        A("s_mov_b32 exec_hi, -1")
        A("s_waitcnt vmcnt(0)")
        self.chk(13, RD, 4 * NL)
        self.chk_branch(13, "L_sp_z", 32)
        A("s_lshl_b32 s42, s60, 10"); A(f"s_add_u32 s42, s42, {WS_ML:#x}")
        A("v_add_u32 v12, s42, v6")
        A(f"v_lshlrev_b32 v{G}, 16, v{G}")
        A(f"v_lshlrev_b32 v{XV}, 16, v{XV}")
        for it in range(1, NL):
            for d in range(4):
                A(f"v_add_f32 v{RD+d}, v{RD+d}, v{RD+4*it+d}")
        self.xl_reduce4(RD)
        self.rnd(RD, RD)
        A(f"v_add_f32 v{RD}, v{RD}, v{G}")
        self.rnd(RD, RD)
        A(f"v_mul_f32 v{RD+1}, {f32(-math.log2(math.e))}, v{RD}")
        A(f"v_exp_f32 v{RD+1}, v{RD+1}")
        A("s_nop 0")
        A(f"v_add_f32 v{RD+1}, 1.0, v{RD+1}")
        A(f"v_rcp_f32 v{RD+1}, v{RD+1}")
        A("s_nop 0")
        A(f"v_mul_f32 v{G}, v{RD}, v{RD+1}")
        self.rnd(G, G)
        self.spin_begin("L_sp_p")
        A(f"global_load_dwordx4 v[{T}:{T+3}], v12, s[40:41] sc1")
        A("s_waitcnt vmcnt(0)")
        A(f"v_xor_b32 v13, s63, v{T+1}")
        A(f"v_bitop3_b32 v13, v13, v{T+3}, s63 bitop3:0xf6")
        A("v_cmp_ne_u32 vcc, 0, v13")
        A("s_cbranch_vccz L_sp_p_done")
        self.spin_end("L_sp_p", 32)
        A("L_sp_p_done:")
        C("factor of producer p=lane: exp(M_p - M_h) / L_h, partner = lane^1")
        A(f"v_max_f32_dpp v{T+1}, v{T}, v{T} quad_perm:[1,0,3,2] row_mask:0xf bank_mask:0xf")
        A(f"v_sub_f32 v{T}, v{T}, v{T+1}")
        A(f"v_exp_f32 v{T}, v{T}")
        A("s_nop 0")
        A(f"v_mul_f32 v{T+1}, v{T}, v{T+2}")
        A("s_nop 1")
        A(f"v_add_f32_dpp v{T+1}, v{T+1}, v{T+1} quad_perm:[1,0,3,2] row_mask:0xf bank_mask:0xf")
        A(f"v_rcp_f32 v{T+1}, v{T+1}")
        C("F[p] stored at ((p&7)*8 + (p>>3)) so that lane group g = l>>3 reads its 8 factors contiguously")
        A("v_and_b32 v12, 7, v4"); A("v_lshlrev_b32 v12, 5, v12")
        A("v_lshrrev_b32 v13, 3, v4"); A("v_lshl_add_u32 v12, v13, 2, v12")
        A(f"v_mul_f32 v{T}, v{T}, v{T+1}")
        A(f"ds_write_b32 v12, v{T} offset:{FLD}")
        A("v_lshlrev_b32 v13, 5, v13")
        A("s_waitcnt lgkmcnt(0)")
        A(f"ds_read_b128 v[{F}:{F+3}], v13 offset:{FLD}")
        A(f"ds_read_b128 v[{F+4}:{F+7}], v13 offset:{FLD+16}")
        A("s_cmp_lg_u32 s62, 63")
        A("s_cbranch_scc1 L_nobump")
        C("every reader of the tag word is done by now (this wave has seen data that depends on all of them)")
        A(f"v_mov_b32 v12, {WS_EP:#x}")
        A("v_mov_b32 v13, s63")
        A("s_mov_b64 exec, 1")
        A("global_store_dword v12, v13, s[40:41] sc1")
        A("s_mov_b64 exec, -1")
        A("L_nobump:")
        if self.pp2:
            self.pp2_setup(ST)
        A("s_waitcnt lgkmcnt(0)")
        A("L_nog:")
        self.stamp(5)
        A("s_barrier")
        self.stamp(6)
        for n in range(4):
            A(f"ds_read_b128 v[{RA+4*n}:{RA+4*n+3}], v8 offset:{OB + 64*n}")
        def comb(jj, r):
            if r == 0:
                A(f"v_mul_f32 v{T+jj}, v{CF}, v{RD+4*jj}")
            else:
                A(f"v_fmac_f32 v{T+jj}, v{CF+r}, v{RD+4*jj+r}")
        if not self.mil:
            for n in range(4):
                A(f"s_waitcnt lgkmcnt({3-n})")
                self.slabmfma(RD, RA + 4 * n, RB + 32 * n, n == 0)
            A("s_nop 0")
            for r in range(4):
                for jj in range(8):
                    comb(jj, r)
        else:
            C("one column group after the other; the row combination of a finished group rides in the MFMA shadow")
            for jj in range(8):
                for n in range(4):
                    if jj == 0:
                        A(f"s_waitcnt lgkmcnt({3-n})")
                    d, b = RD + 4 * jj, RB + 32 * n + 4 * jj
                    c = "0" if n == 0 else f"v[{d}:{d+3}]"
                    A(f"v_mfma_f32_16x16x32_bf16 v[{d}:{d+3}], v[{RA+4*n}:{RA+4*n+3}], v[{b}:{b+3}], {c}")
                    if jj >= 2:
                        comb(jj - 2, n)
                    elif jj == 1:
                        A("s_nop 0")
            for r in range(4):
                comb(6, r)
            A("s_nop 2")
            for r in range(4):
                comb(7, r)
            A("s_nop 0")
        for d in range(4):
            A(f"v_permlane32_swap_b32 v{T+d}, v{T+d+4}")
        for d in range(4):
            A(f"v_add_f32 v{T+d}, v{T+d}, v{T+d+4}")
        A("s_nop 0")
        for d in range(2):
            A(f"v_permlane16_swap_b32 v{T+d}, v{T+d+2}")
        for d in range(2):
            A(f"v_add_f32 v{T+d}, v{T+d}, v{T+d+2}")
        for d in range(2):
            A(f"v_and_or_b32 v{T+d}, v{T+d}, v15, v{TG+d}")
        A(f"global_store_dwordx2 v9, v[{T}:{T+1}], s[40:41] sc1")
        self.stamp(7)
        if self.echo and len(self.echo) == 5:
            A("s_cmp_lg_u32 s7, 2")
            A("s_cbranch_scc1 L_e2")
            A("s_getreg_b32 s42, hwreg(HW_REG_XCC_ID)")
            A("s_waitcnt lgkmcnt(0)")
            A(f"v_mov_b32 v{ST}, s64"); A(f"v_mov_b32 v{ST+1}, s{78 if self.echo[0] == 4 else 84}"); A(f"v_mov_b32 v{ST+2}, s76"); A(f"v_mov_b32 v{ST+3}, s42")
            A("s_lshl_b32 s42, s59, 4"); A(f"s_add_u32 s42, s42, {WS_DIAG:#x}")
            A("v_mov_b32 v12, s42")
            A("s_mov_b64 exec, 1")
            A(f"global_store_dwordx4 v12, v[{ST}:{ST+3}], s[40:41] sc1")
            A("s_mov_b64 exec, -1")
            A("L_e2:")
        A("s_cmp_lg_u32 s58, 1")
        A("s_cbranch_scc1 L_hend")
        C("consumer: poll the 64 producers' lines in 8 groups (complete groups are not re-loaded), then reduce")
        if self.pp2:
            self.pp2_code(RD, ST)
        elif self.ppoll:
            self.ppoll_code(RD, ST)
        else:
            MK = 16
            for it in range(8):
                A(f"s_mov_b64 s[{MK+2*it}:{MK+2*it+1}], -1")
            self.spin_begin("L_sp_s")
            A("s_mov_b32 s50, 0")
            for it in range(8):
                A(f"s_mov_b64 exec, s[{MK+2*it}:{MK+2*it+1}]")
                A(f"buffer_load_dwordx4 v[{RD+4*it}:{RD+4*it+3}], v7, s[8:11], s50 offen sc1")
                if it < 7:
                    A("s_add_u32 s50, s50, 0x4000")
            A("s_mov_b64 exec, -1")
            A("s_waitcnt vmcnt(0)")
            for it in range(8):
                self.chk(RA + it, RD + 4 * it, 4, ST + 4 * it)
            A(f"v_or3_b32 v13, v{RA}, v{RA+1}, v{RA+2}")
            A(f"v_or3_b32 v12, v{RA+3}, v{RA+4}, v{RA+5}")
            A(f"v_or3_b32 v13, v13, v{RA+6}, v{RA+7}")
            A("v_or_b32 v13, v13, v12")
            A("v_cmp_ne_u32_sdwa vcc, v13, v10 src0_sel:BYTE_0 src1_sel:DWORD")
            A("s_cbranch_vccz L_sp_s_done")
            for it in range(8):
                A(f"v_cmp_ne_u32_sdwa s[{MK+2*it}:{MK+2*it+1}], v{RA+it}, v10 src0_sel:BYTE_0 src1_sel:DWORD")
            for it in range(8):
                A(f"s_cmp_lg_u64 s[{MK+2*it}:{MK+2*it+1}], 0")
                A(f"s_cselect_b64 s[{MK+2*it}:{MK+2*it+1}], -1, 0")
            self.spin_end("L_sp_s", 1)
        A("L_sp_s_done:")
        A("s_mov_b64 exec, -1")
        self.stamp(8)
        SRC = RD if self.pp2 else ST
        for it in range(8):
            for d in (0, 2):
                fp, sel = F + (it & ~1), it & 1
                if it == 0:
                    A(f"v_pk_mul_f32 v[{RA+d}:{RA+d+1}], v[{SRC+d}:{SRC+d+1}], v[{fp}:{fp+1}] op_sel:[0,{sel}] op_sel_hi:[1,{sel}]")
                else:
                    A(f"v_pk_fma_f32 v[{RA+d}:{RA+d+1}], v[{SRC+4*it+d}:{SRC+4*it+d+1}], v[{fp}:{fp+1}], v[{RA+d}:{RA+d+1}] op_sel:[0,{sel},0] op_sel_hi:[1,{sel},1]")
        A("s_nop 0")
        self.xl_reduce4(RA)
        self.rnd(RA, RA)
        A(f"v_mul_f32 v{RA}, v{RA}, v{G}")
        self.rnd(RA, RA)
        A(f"v_add_f32 v{RA}, v{RA}, v{XV}")
        A(f"v_cvt_pk_bf16_f32 v{RA}, v{RA}, 0")
        A("s_mov_b32 s42, 0x00ff00ff"); A("s_mov_b32 s43, 0x00ff00ff")
        A("s_mov_b64 exec, s[42:43]")
        A(f"global_store_short v{COL}, v{RA}, s[36:37]")
        A("s_mov_b64 exec, -1")
        self.stamp(9)
        if self.echo:
            if len(self.echo) == 3:
                a, b, K = self.echo
                A("s_waitcnt lgkmcnt(0)")
                A(f"s_sub_u32 s42, s{64+2*b}, s{64+2*a}")
            else:
                fld, op, xm, xv, K = self.echo
                A("s_sleep 64")
                A("s_lshl_b32 s42, s60, 10"); A(f"s_add_u32 s42, s42, {WS_DIAG:#x}")
                A("v_add_u32 v12, s42, v6")
                A(f"global_load_dwordx4 v[{ST}:{ST+3}], v12, s[40:41] sc1")
                A("s_waitcnt vmcnt(0) lgkmcnt(0)")
                for i in range(3):
                    A(f"v_subrev_u32 v{ST+i}, s64, v{ST+i}")
                    A(f"v_cvt_f32_i32 v{ST+i}, v{ST+i}")
                A(f"v_mov_b32 v{ST+4}, v{ST}")
                self.wave_allreduce_add(ST + 4, ST + 5, "min")
                if fld >= 3:
                    A("s_sub_u32 s42, s82, s64")
                    A(f"v_cvt_f32_i32 v{ST+4}, s42")
                    A(f"v_sub_f32 v{ST+6}, v{ST+4}, v{ST + (2 if fld == 3 else 1)}")
                else:
                    A(f"v_sub_f32 v{ST+6}, v{ST+fld}, v{ST+4}")
                A(f"v_and_b32 v{ST+3}, {xm}, v{ST+3}")
                A(f"v_cmp_eq_u32 vcc, {xv}, v{ST+3}")
                A(f"v_mov_b32 v{ST+7}, {'0' if op != 'min' else '0x49742400'}")
                A(f"v_cndmask_b32 v{ST+6}, v{ST+7}, v{ST+6}, vcc")
                self.wave_allreduce_add(ST + 6, ST + 5, op)
                if op == "add":
                    n = 64 >> bin(xm).count("1")
                    A(f"v_mul_f32 v{ST+6}, {f32(1.0/n)}, v{ST+6}")
                A(f"v_cvt_i32_f32 v{ST+6}, v{ST+6}")
                A("s_nop 1")
                A(f"v_readfirstlane_b32 s42, v{ST+6}")
                A("s_memrealtime s[82:83]")
                A("s_waitcnt lgkmcnt(0)")
            A(f"s_mul_i32 s42, s42, {K}")
            A(f"s_add_u32 s42, s42, {self.eadd}")
            A("s_min_u32 s42, s42, 100000")
            A("s_add_u32 s42, s42, s82")
            A("L_echo:")
            A("s_memrealtime s[90:91]")
            A("s_waitcnt lgkmcnt(0)")
            A("s_sub_u32 s43, s42, s90")
            A("s_cmp_gt_i32 s43, 0")
            A("s_cbranch_scc1 L_echo")
        A("L_hend:")
        self.dump_stamps(10, 16)

def gen(**kw):
    return Gen(**kw).gen()

if __name__ == "__main__":
    out = sys.argv[1] if len(sys.argv) > 1 else "recurrent_scan__mha_block_cached__mixer_channel_mlp__decode.s"
    kw = eval("dict(" + (sys.argv[2] if len(sys.argv) > 2 else "") + ")")
    open(out, "w").write(gen(**kw))
```

```python
import sys, math, struct
NAME = "recurrent_scan__mha_block_cached__mixer_channel_mlp__decode_kernel"

def f32(x):
    return "0x%08x" % struct.unpack("<I", struct.pack("<f", x))[0]

HEADER = """; Kernarg layout for this problem (104 bytes, ptrs only, base s[0:1]):
"""

XN, QP, MLM, MLL, TAGL, FLD, OB = 0, 8192, 8448, 8512, 8704, 8960, 9216
OBS = 272
PRG, CFL, DEC, PL = 13824, 8576, 8640, 14080
LDS_BYTES = 15360
WS_S, WS_ML, WS_EP, WS_Q, WS_U, WS_Z, WS_DIAG = 0, 0x80000, 0x90000, 0x100000, 0x180000, 0x1c0000, 0x200000
NUNIT = 112
SPIN_MAX = 1 << 18
RK = 8720
WS_GH, WS_GP = 0xa0000, 0xc0000

class Gen:
    DEF = dict(kvflags="nt", wflags="", mflags="nt", diag=False, prog=False, DK=6, DV=6, pre=3, wdepth=2, dks=6,
               bare=0, skip=(), mpar=0, mpar2=None, cpar=0, fprio=3, qsleep=1, adel=0, apar=0, w2p=4,
               echo=None, eadd=0, cpf=0, wearly=0, fb=0, fbn0=8, fbk=14, fboff=0, kdeep=1, ppoll=0, pfast=2, mil=1, pp2=1, pline=0, pdepth=8, sfl='sc1', lfl='sc1', loc=None, fh=2, zh=2, pm=1,
               xc=94, xs=60, xd=52, xk=8, xmax=16, xsl=2, pstep=2, spi=7, spj=0)
    def __init__(self, **kw):
        self.L = []
        self.nlab = 0
        for k in kw:
            assert k in self.DEF, k
        for k, v in self.DEF.items():
            setattr(self, k, kw.get(k, v))
        self.skip = set(self.skip)
        self.NZ = 28 >> self.zh
        if self.mpar2 is None:
            self.mpar2 = self.mpar
    def A(self, s):
        if s.endswith(" sc1"):
            s = s[:-3] + (self.sfl if "_store_" in s else self.lfl)
        self.L.append("  " + s if not s.endswith(":") else s)
    def C(self, s):
        self.L.append("  ; " + s)

    def stamp(self, idx):
        if self.diag or self.echo:
            self.A(f"s_memrealtime s[{64+2*idx}:{65+2*idx}]")
    def dump_stamps(self, n, vt):
        if not self.diag:
            return
        A = self.A
        A("s_waitcnt lgkmcnt(0)")
        A("s_lshl_b32 s60, s2, 3"); A("s_add_u32 s60, s60, s3"); A("s_lshl_b32 s60, s60, 7")
        A(f"s_add_u32 s60, s60, {WS_DIAG:#x}")
        A(f"v_mov_b32 v{vt}, s60")
        A("s_mov_b64 exec, 1")
        for j in range(n):
            A(f"v_mov_b32 v{vt+2}, s{64+2*j}"); A(f"v_mov_b32 v{vt+3}, s{65+2*j}")
            A(f"global_store_dwordx2 v{vt}, v[{vt+2}:{vt+3}], s[40:41] offset:{8*j}")
        A("s_getreg_b32 s60, hwreg(HW_REG_XCC_ID)")
        A(f"v_mov_b32 v{vt+2}, s60")
        A(f"global_store_dword v{vt}, v{vt+2}, s[40:41] offset:120")
        A("s_mov_b64 exec, -1")

    def row_allreduce(self, op, r):
        A = self.A
        for m in ("quad_perm:[1,0,3,2]", "quad_perm:[2,3,0,1]", "row_half_mirror", "row_mirror"):
            A("s_nop 1")
            A(f"v_{op}_f32_dpp v{r}, v{r}, v{r} {m} row_mask:0xf bank_mask:0xf")
    def wave_allreduce_add(self, r, t, op="add"):
        A = self.A
        self.row_allreduce(op, r)
        for sw in ("v_permlane16_swap_b32", "v_permlane32_swap_b32"):
            A(f"v_mov_b32 v{t}, v{r}")
            A("s_nop 1")
            A(f"{sw} v{r}, v{t}")
            A(f"v_{op}_f32 v{r}, v{r}, v{t}")
    def rnd(self, d, s):
        self.A(f"v_cvt_pk_bf16_f32 v{d}, 0, v{s}")

    def layernorm(self, X, n, T, P, unpack_after=True):
        A = self.A
        s, t, q, d = T, T + 1, T + 2, T + 3
        red = (lambda r: self.wave_allreduce_add(r, t)) if n == 8 else (lambda r: self.row_allreduce("add", r))
        A(f"v_add_f32 v{s}, v{X}, v{X+1}")
        for i in range(2, n):
            A(f"v_add_f32 v{s}, v{s}, v{X+i}")
        red(s)
        A(f"v_mul_f32 v{s}, {f32(1.0/512)}, v{s}")
        A(f"v_sub_f32 v{d}, v{X}, v{s}")
        A(f"v_mul_f32 v{q}, v{d}, v{d}")
        for i in range(1, n):
            dd = d if i % 2 == 0 else t
            A(f"v_sub_f32 v{dd}, v{X+i}, v{s}")
            A(f"v_fmac_f32 v{q}, v{dd}, v{dd}")
        red(q)
        A(f"v_mul_f32 v{q}, {f32(1.0/512)}, v{q}")
        self.rnd(s, s)
        self.rnd(q, q)
        A(f"v_add_f32 v{q}, {f32(1e-5)}, v{q}")
        self.rnd(q, q)
        A(f"v_sqrt_f32 v{q}, v{q}")
        A("s_nop 0")
        self.rnd(q, q)
        A(f"v_rcp_f32 v{q}, v{q}")
        for i in range(n):
            A(f"v_sub_f32 v{X+i}, v{X+i}, v{s}")
        for i in range(n):
            self.rnd(X + i, X + i)
        for i in range(n):
            A(f"v_mul_f32 v{X+i}, v{X+i}, v{q}")
        for i in range(n // 2):
            A(f"v_cvt_pk_bf16_f32 v{P+i}, v{X+2*i}, v{X+2*i+1}")
        if unpack_after:
            self.unpack(X, P, n // 2)
    def unpack(self, X, P, n):
        for i in range(n):
            self.A(f"v_lshlrev_b32 v{X+2*i}, 16, v{P+i}")
            self.A(f"v_and_b32 v{X+2*i+1}, 0xffff0000, v{P+i}")

    def slabload(self, dst, srd, voff, stride, flags, last_inc=None, pace=None, cont=False):
        A = self.A
        for e in range(8):
            r = dst + 4 * e
            if pace is not None and (e >= pace or cont):
                A(f"s_waitcnt vmcnt({pace-1})")
            A(f"buffer_load_dwordx4 v[{r}:{r+3}], v{voff}, {srd}, s50 offen {flags}".rstrip())
            inc = stride if e < 7 else last_inc
            if inc is not None:
                A(f"s_add_u32 s50, s50, {inc}")
    def slabperm(self, dst, src):
        A = self.A
        for d in range(4):
            for hf in range(2):
                jj = 2 * d + hf
                for q in range(4):
                    A(f"v_perm_b32 v{dst + 4*jj + q}, v{src + 4*(2*q+1) + d}, v{src + 4*(2*q) + d}, s{48 + hf}")
    def slabmfma(self, RD, RA, B, first):
        A = self.A
        for jj in range(8):
            b = B + 4 * jj
            c = "0" if first else f"v[{RD+4*jj}:{RD+4*jj+3}]"
            A(f"v_mfma_f32_16x16x32_bf16 v[{RD+4*jj}:{RD+4*jj+3}], v[{RA}:{RA+3}], v[{b}:{b+3}], {c}")

    def fold(self, T, RD):
        A = self.A
        for q in range(4):
            A(f"v_add_f32_dpp v{T+q}, v{RD+4*q+1}, v{RD+4*q} row_ror:8 row_mask:0xf bank_mask:0x3")
        for q in range(4):
            A(f"v_add_f32_dpp v{T+q}, v{RD+4*q+16}, v{RD+4*q+17} row_ror:8 row_mask:0xf bank_mask:0xc")
        self.tag4(T)
    def fold4(self, T, RD):
        A = self.A
        for bk in range(4):
            for q in range(4):
                d = RD + 4 * q + 16 * (bk >> 1)
                A(f"v_add_f32_dpp v{T+q}, v{d + (bk ^ 2)}, v{d + bk} row_ror:8 row_mask:0xf bank_mask:{1 << bk:#x}")
        for q in range(4):
            A(f"v_add_f32_dpp v{T+q}, v{T+q}, v{T+q} row_shl:4 row_mask:0xf bank_mask:0x5")
        A("s_mov_b32 exec_lo, 0x0f0f0f0f"); A("s_mov_b32 exec_hi, 0x0f0f0f0f")
        self.tag4(T)
    def spin_begin(self, lab):
        self.A(f"s_mov_b32 s55, {SPIN_MAX}")
        self.A(f"{lab}:")
    def spin_end(self, lab, sleep):
        A = self.A
        A(f"s_sleep {sleep}")
        A("s_sub_u32 s55, s55, 1")
        A("s_cmp_lg_u32 s55, 0")
        A(f"s_cbranch_scc1 {lab}")
    def xl_reduce4(self, R):
        A = self.A
        A("s_nop 0")
        for d in range(2):
            A(f"v_permlane32_swap_b32 v{R+d}, v{R+d+2}")
        for d in range(2):
            A(f"v_add_f32 v{R+d}, v{R+d}, v{R+d+2}")
        A("s_nop 1")
        A(f"v_permlane16_swap_b32 v{R}, v{R+1}")
        A(f"v_add_f32 v{R}, v{R}, v{R+1}")
        A("s_nop 1")
        A(f"v_add_f32_dpp v{R}, v{R}, v{R} row_ror:8 row_mask:0xf bank_mask:0xf")

    def gen(self):
        A, C = self.A, self.C
        self.L.append(HEADER.rstrip())
        self.L.append(f"; @launch grid=(256,1,1) block=(512,1,1) lds={LDS_BYTES}")
        self.L.append('.amdgcn_target "amdgcn-amd-amdhsa--gfx950"')
        self.L.append(".text"); self.L.append(f".globl {NAME}"); self.L.append(".p2align 8")
        self.L.append(f".type {NAME},@function"); self.L.append(f"{NAME}:")
        self.stamp(0)
        A("s_load_dwordx16 s[16:31], s[0:1], 0")
        A("s_load_dwordx8 s[32:39], s[0:1], 64")
        A("s_load_dwordx2 s[40:41], s[0:1], 96")
        A("s_cmp_ge_u32 s2, 256")
        A("s_cbranch_scc1 L_end")
        A("v_lshrrev_b32 v1, 6, v0")
        A("v_and_b32 v2, 15, v0")
        A("v_readfirstlane_b32 s3, v1")
        C("s59 = producer index b*64 + 2h + side, b = wg>>6, h = 4(wg&7) + ((wg>>4)&3), side = (wg>>3)&1")
        if self.pm:
            C("side = (wg>>2)&1, h = 8((wg&3)^side) + ((wg>>3)&7): the two sides of a head are WGs wg and wg^5")
            A("s_bfe_u32 s5, s2, 0x10002")
            A("s_and_b32 s59, s2, 0xc0"); A("s_and_b32 s4, s2, 3"); A("s_xor_b32 s4, s4, s5"); A("s_lshl4_add_u32 s59, s4, s59")
            A("s_bfe_u32 s4, s2, 0x30003"); A("s_lshl1_add_u32 s59, s4, s59")
            A("s_or_b32 s59, s59, s5")
        elif self.loc is None:
            A("s_and_b32 s59, s2, 0xc0"); A("s_and_b32 s4, s2, 7"); A("s_lshl3_add_u32 s59, s4, s59")
            A("s_bfe_u32 s4, s2, 0x30003"); A("s_or_b32 s59, s59, s4")
        else:
            C("h = 8(wg&3) + ((wg>>3)&7), side = (wg>>2)&1")
            A("s_and_b32 s59, s2, 0xc0"); A("s_and_b32 s4, s2, 3"); A("s_lshl4_add_u32 s59, s4, s59")
            A("s_bfe_u32 s4, s2, 0x30003"); A("s_lshl1_add_u32 s59, s4, s59")
            A("s_bfe_u32 s4, s2, 0x10002"); A("s_or_b32 s59, s59, s4")
        if self.cpf:
            A("s_cmp_lt_u32 s3, 4")
            A("s_cbranch_scc1 L_stream")
            C("helper waves pull a slice of this kernel's code towards the L2")
            A("s_getpc_b64 s[42:43]")
            A("L_pc:")
            A("s_lshr_b32 s44, s2, 3"); A("s_lshl2_add_u32 s44, s44, s3")
            A(f"s_mul_i32 s44, s44, {64*self.cpf}")
            A(f"s_min_u32 s44, s44, L_end-L_pc-{64*(self.cpf-1)}")
            for k in range(self.cpf):
                A(f"s_load_dword s{45+k}, s[42:43], s44 offset:{64*k}")
            A("s_branch L_helper")
            A("L_stream:")
        else:
            A("s_cmp_ge_u32 s3, 4")
            A("s_cbranch_scc1 L_helper")
        self.stream()
        self.helper()
        A("L_end:")
        A("s_endpgm")
        L = self.L
        L.append('.section .rodata,"a"'); L.append(".p2align 6"); L.append(f".amdhsa_kernel {NAME}")
        L.append("  .amdhsa_next_free_vgpr 256"); L.append("  .amdhsa_next_free_sgpr 102"); L.append("  .amdhsa_accum_offset 256")
        L.append("  .amdhsa_group_segment_fixed_size 0"); L.append("  .amdhsa_kernarg_size 104")
        L.append("  .amdhsa_user_sgpr_count 2"); L.append("  .amdhsa_user_sgpr_kernarg_segment_ptr 1")
        L.append("  .amdhsa_system_sgpr_workgroup_id_x 1")
        L.append("  .amdhsa_float_denorm_mode_32 3")
        L.append(".end_amdhsa_kernel")
        return "\n".join(L) + "\n"

    def stream(self):
        A, C = self.A, self.C
        RING = 64
        P = 24
        Q = 8
        S = 40
        ACC = 48
        PLO, PHI = 12, 13
        VOFF = 5
        fl = self.kvflags
        DK, DV, pre = self.DK, self.DV, self.pre
        C("===== stream waves =====")
        A("v_lshlrev_b32 v7, 4, v2")
        A("v_lshrrev_b32 v6, 4, v0")
        GS = 16 if self.loc is None else 17
        if self.loc is None:
            A("v_lshl_or_b32 v5, v6, 12, v7")
            A("s_lshl_b32 s7, s59, 19")
            A("s_mov_b32 s10, 0x80000"); A("s_mov_b32 s11, 0x20000")
            A("s_waitcnt lgkmcnt(0)")
            A("s_add_u32 s8, s18, s7"); A("s_addc_u32 s9, s19, 0")
        else:
            A("v_and_b32 v5, 1, v6"); A("v_lshl_or_b32 v5, v5, 12, v7")
            A("v_lshrrev_b32 v8, 1, v6"); A("v_lshl_or_b32 v5, v8, 14, v5")
            A("s_lshr_b32 s7, s59, 1"); A("s_lshl_b32 s7, s7, 20")
            A("s_lshr_b32 s6, s59, 2"); A("s_xor_b32 s6, s6, s59"); A("s_and_b32 s6, s6, 1")
            if self.loc[2]:
                A("s_lshr_b32 s4, s2, 6"); A("s_xor_b32 s6, s6, s4"); A("s_and_b32 s6, s6, 1")
            A(f"s_xor_b32 s4, s6, {self.loc[0]}"); A("s_lshl_b32 s4, s4, 13"); A("s_add_u32 s4, s4, s7")
            A(f"s_xor_b32 s6, s6, {self.loc[1]}"); A("s_lshl_b32 s6, s6, 13"); A("s_add_u32 s7, s6, s7")
            A("s_mov_b32 s10, 0xfe000"); A("s_mov_b32 s11, 0x20000")
            A("s_waitcnt lgkmcnt(0)")
            A("s_add_u32 s8, s18, s4"); A("s_addc_u32 s9, s19, 0")
        self.stamp(5)
        issued = []
        def load(slot, srd, so, tag=None):
            r = RING + 4 * slot
            A(f"buffer_load_dwordx4 v[{r}:{r+3}], v{VOFF}, {srd}, {so} offen offset:{(slot % 16)*256} {fl}".rstrip())
            issued.append(tag)
        def wait(tag):
            A(f"s_waitcnt vmcnt({len(issued) - 1 - issued.index(tag)})")
        def swait(D, cond=False):
            A(f"s_waitcnt vmcnt({D-1})")
            if cond and self.adel:
                self.nlab += 1
                A(f"s_cbranch_vccnz L_ad{self.nlab}")
                A(f"s_waitcnt vmcnt({D-1-self.adel})")
                A(f"L_ad{self.nlab}:")
        for gi in range(pre):
            for j in range(16):
                n = 16 * gi + j
                dd = self.dks
                if n == dd:
                    self.stamp(6)
                if dd and n >= dd:
                    swait(dd)
                if n == dd:
                    self.stamp(7)
                if n == 2 * dd:
                    self.stamp(8)
                load(n, "s[8:11]", "s50" if gi else "0", (gi, j))
            A(f"s_mov_b32 s50, {(gi + 1) << GS:#x}")
        A("s_mov_b32 s14, s10"); A("s_mov_b32 s15, s11"); A("s_mov_b32 s46, s10"); A("s_mov_b32 s47, s11")
        A("s_add_u32 s12, s20, s7"); A("s_addc_u32 s13, s21, 0")
        A("s_mov_b32 s52, 0xaaaaaaaa"); A("s_mov_b32 s53, 0xaaaaaaaa")
        A("s_mov_b32 s56, 0xcccccccc"); A("s_mov_b32 s57, 0xcccccccc")
        self.stamp(1)
        A("s_barrier")
        A(f"ds_read_b128 v[{Q}:{Q+3}], v7 offset:{QP}")
        self.stamp(2)
        A("s_waitcnt lgkmcnt(0)")
        def qk(slots):
            for d in range(4):
                for slot in slots:
                    r = RING + 4 * slot
                    p = P + slot % 16
                    c = "0" if d == 0 else f"v{p}"
                    A(f"v_dot2_f32_bf16 v{p}, v{r+d}, v{Q+d}, {c}")
        def treduce(dst, mid=()):
            C("transposing reduction: lane (g,c) <- score of load c, key g")
            for t in range(8):
                A(f"v_add_f32_dpp v{P+t}, v{P+t}, v{P+t} row_ror:8 row_mask:0xf bank_mask:0x3")
            for t in range(8):
                A(f"v_add_f32_dpp v{P+t}, v{P+t+8}, v{P+t+8} row_ror:8 row_mask:0xf bank_mask:0xc")
            for t in range(4):
                A(f"v_add_f32_dpp v{P+t}, v{P+t}, v{P+t} row_half_mirror row_mask:0xf bank_mask:0x5")
            for t in range(4):
                A(f"v_add_f32_dpp v{P+t}, v{P+t+4}, v{P+t+4} row_half_mirror row_mask:0xf bank_mask:0xa")
            U0, U1, T0, T1 = P + 8, P + 9, P + 10, P + 11
            A(f"v_cndmask_b32 v{U0}, v{P+1}, v{P}, s[52:53]")
            A(f"v_cndmask_b32 v{U1}, v{P+3}, v{P+2}, s[52:53]")
            A(f"v_cndmask_b32 v{T0}, v{P}, v{P+1}, s[52:53]")
            A(f"v_cndmask_b32 v{T1}, v{P+2}, v{P+3}, s[52:53]")
            A("s_nop 1")
            A(f"v_add_f32_dpp v{T0}, v{U0}, v{T0} quad_perm:[1,0,3,2] row_mask:0xf bank_mask:0xf")
            A(f"v_add_f32_dpp v{T1}, v{U1}, v{T1} quad_perm:[1,0,3,2] row_mask:0xf bank_mask:0xf")
            A(f"v_cndmask_b32 v{U0}, v{T1}, v{T0}, s[56:57]")
            A(f"v_cndmask_b32 v{U1}, v{T0}, v{T1}, s[56:57]")
            if mid:
                for m in mid:
                    A(m)
            else:
                A("s_nop 1")
            A(f"v_add_f32_dpp v{dst}, v{U0}, v{U1} quad_perm:[2,3,0,1] row_mask:0xf bank_mask:0xf")
        C("catch-up over the prefetched groups; group `pre` is loaded into ring slots 0..15 meanwhile")
        nxt = 0
        for gi in range(pre):
            for j in range(0, 16, 2):
                wait((gi, j + 1))
                qk([16 * gi + j, 16 * gi + j + 1])
                if gi == 0:
                    want = j + 2 if (j < 8 or pre == 1) else 8
                elif gi == 1:
                    want = 8 + j // 2 + 1
                else:
                    want = 16
                while nxt < want:
                    load(nxt, "s[8:11]", "s50", (pre, nxt)); nxt += 1
            A("s_nop 0")
            treduce(S + 8 - pre + gi)
        assert nxt == 16
        for j in range(16 - DK):
            wait((pre, j))
            qk([j])
        A(f"s_mov_b32 s54, {pre}")
        A("s_branch L_kmid")
        A("L_kloop:")
        for j in range(16 - DK):
            swait(DK)
            load(j + DK, "s[8:11]", "s50")
            qk([j])
        A("L_kmid:")
        if self.prog:
            A("s_memrealtime s[90:91]")
        C("the rest refills from the next group (V group 0 after the last K group)")
        A(f"s_add_u32 s50, s50, {1 << GS:#x}")
        A("s_cmp_eq_u32 s54, 7")
        A("s_cselect_b32 s44, s12, s8"); A("s_cselect_b32 s45, s13, s9"); A("s_cselect_b32 s51, 0, s50")
        for j in range(16 - DK, 16):
            swait(DK)
            load(j + DK - 16, "s[44:47]", "s51")
            qk([j])
        if self.prog:
            A("s_waitcnt lgkmcnt(0)")
            A("s_mov_b32 m0, s54"); A("s_nop 0")
            A("v_writelane_b32 v60, s90, m0")
        for i in range(7):
            A(f"v_mov_b32 v{S+i}, v{S+i+1}")
        treduce(S + 7, ("s_add_u32 s54, s54, 1", "s_cmp_lt_u32 s54, 8"))
        A("s_cbranch_scc1 L_kloop")
        self.stamp(3)
        A("s_mov_b32 s50, 0")
        for j in range(DK, DV):
            load(j, "s[12:15]", "s50")
        C("softmax over this row's 128 keys (true max of the partial; partials are merged exactly later)")
        M, Ls = 14, 15
        cs = math.log2(math.e) / math.sqrt(128.0)
        A(f"s_mov_b32 s58, {f32(cs)}")
        A(f"v_max3_f32 v{M}, v{S}, v{S+1}, v{S+2}")
        A(f"v_max3_f32 v{M}, v{M}, v{S+3}, v{S+4}")
        A(f"v_max3_f32 v{M}, v{M}, v{S+5}, v{S+6}")
        A(f"v_max_f32 v{M}, v{M}, v{S+7}")
        self.row_allreduce("max", M)
        A(f"v_mul_f32 v{M}, s58, v{M}")
        for i in range(8):
            A(f"v_fma_f32 v{S+i}, v{S+i}, s58, -v{M}")
        for i in range(8):
            A(f"v_exp_f32 v{S+i}, v{S+i}")
        for i in range(8):
            A(f"v_mov_b32 v{ACC+i}, 0")
        A(f"v_add_f32 v{Ls}, v{S}, v{S+1}")
        for i in range(2, 8):
            A(f"v_add_f32 v{Ls}, v{Ls}, v{S+i}")
        self.row_allreduce("add", Ls)
        A(f"v_lshlrev_b32 v16, 2, v6")
        A("v_lshlrev_b32 v18, 2, v0")
        A(f"ds_write_b32 v18, v{S+7} offset:{PL}")
        A(f"v_min_u32 v{M}, -2, v{M}")
        A(f"v_min_u32 v{Ls}, -2, v{Ls}")
        A(f"ds_write_b32 v16, v{M} offset:{MLM}")
        A(f"ds_write_b32 v16, v{Ls} offset:{MLL}")
        A(f"v_mul_u32_u24 v17, {OBS}, v6")
        A("v_add_u32 v17, v7, v17")
        A("s_mov_b32 s54, 0")
        A("v_and_b32 v19, 0xfc, v18"); A("v_mov_b32 v56, 1")
        A("s_mov_b64 vcc, 0")
        A(f"s_mov_b32 s61, {144 - DV}")
        assert DV >= DK
        def pv(slot):
            r = RING + 4 * slot
            for d in range(4):
                A(f"v_dot2c_f32_bf16_dpp v{ACC+2*d}, v{PLO}, v{r+d} row_newbcast:{slot} row_mask:0xf bank_mask:0xf")
                A(f"v_dot2c_f32_bf16_dpp v{ACC+2*d+1}, v{PHI}, v{r+d} row_newbcast:{slot} row_mask:0xf bank_mask:0xf")
        A("L_vloop:")
        A("s_cmp_lg_u32 s54, 6")
        A("s_cbranch_scc1 L_nocf")
        C("from here on everything is scaled to the final softmax weights of the head")
        self.spin_begin("L_sp_cf")
        A(f"ds_read_b32 v57, v16 offset:{CFL}")
        A("s_waitcnt lgkmcnt(0)")
        A("v_cmp_eq_u32 vcc, -1, v57")
        A("s_cbranch_vccz L_sp_cf_done")
        self.spin_end("L_sp_cf", 1)
        A("L_sp_cf_done:")
        for r in list(range(ACC, ACC + 8)) + [S, S + 1]:
            A(f"v_mul_f32 v{r}, v57, v{r}")
        if self.adel and self.spj:
            A(f"s_mov_b64 vcc, {-1 if self.spi < 6 else 0}")
        A("L_nocf:")
        A("s_waitcnt lgkmcnt(0)")
        A(f"v_cvt_pk_bf16_f32 v{PLO}, v{S}, 0")
        A(f"v_cvt_pk_bf16_f32 v{PHI}, 0, v{S}")
        for i in range(7):
            A(f"v_mov_b32 v{S+i}, v{S+i+1}")
        for j in range(16):
            if j == 16 - DV:
                if self.prog:
                    A("s_memrealtime s[90:91]")
                    A("s_add_u32 m0, s54, 8")
                    A("s_waitcnt lgkmcnt(0)")
                    A("v_writelane_b32 v60, s90, m0")
                A(f"s_add_u32 s50, s50, {1 << GS:#x}")
                A("s_sub_u32 s42, s54, 6")
                A("s_cmp_gt_u32 s42, 1")
                A("s_cbranch_scc1 L_nodec")
                C("number of slots this WG works on: fewer when it hands some over, more when it takes some")
                A("s_lshl_b32 s42, s42, 2")
                A("v_mov_b32 v58, s42")
                self.spin_begin("L_sp_dec")
                A(f"ds_read_b32 v57, v58 offset:{DEC}")
                A("s_waitcnt lgkmcnt(0)")
                A("v_readfirstlane_b32 s61, v57")
                A("s_cmp_lg_u32 s61, -1")
                A("s_cbranch_scc1 L_sp_dec_done")
                self.spin_end("L_sp_dec", 1)
                A("L_sp_dec_done:")
                A("s_max_i32 s61, s61, 112"); A("s_min_i32 s61, s61, 144")
                A("s_sub_u32 s42, 144, s61")
                A("s_lshl_b32 s43, s54, 4"); A(f"s_add_u32 s43, s43, {DV}"); A("s_sub_u32 s61, s61, s43")
                A("s_cmp_lg_u32 s54, 7")
                A("s_cbranch_scc1 L_nodec")
                C("the slots taken over are the last ones of the other side's last group")
                A("s_xor_b32 s7, s7, 0x80000")
                A("s_add_u32 s12, s20, s7"); A("s_addc_u32 s13, s21, 0")
                A("s_lshl_b32 s50, s42, 8"); A("s_add_u32 s50, s50, 0x70000")
                A("v_lshl_add_u32 v58, s42, 2, v18")
                A(f"ds_read_b32 v{S}, v58 offset:{PL}")
                A("L_nodec:")
            if self.adel and j == self.spj:
                A(f"s_cmp_ge_u32 s54, {self.spi}")
                A("s_cselect_b64 vcc, -1, 0")
            swait(DV, True)
            A(f"s_cmp_gt_i32 s61, {j}")
            A("s_cselect_b32 s51, s50, s14")
            load((j + DV) % 16, "s[12:15]", "s51")
            pv(j)
            if j % self.pstep == 0:
                A(f"ds_add_u32 v19, v56 offset:{PRG}")
            A(f"s_cmp_le_i32 s61, {j + 1 - DV}")
            A("s_cbranch_scc1 L_vdone")
        A("s_add_u32 s54, s54, 1")
        A("s_sub_u32 s61, s61, 16")
        A("s_branch L_vloop")
        A("L_vdone:")
        self.stamp(4)
        A("s_nop 1")
        for d in range(4):
            A(f"v_cvt_pk_bf16_f32 v{20+d}, v{ACC+2*d}, v{ACC+2*d+1}")
        A(f"ds_write_b128 v17, v[20:23] offset:{OB}")
        A("s_waitcnt lgkmcnt(0)")
        A("s_barrier")
        self.dump_stamps(9, 24)
        if self.prog:
            A("s_lshl_b32 s60, s2, 2"); A("s_add_u32 s60, s60, s3"); A("s_lshl_b32 s60, s60, 6")
            A(f"s_add_u32 s60, s60, {WS_DIAG + 0x80000:#x}")
            A("v_and_b32 v24, 63, v0"); A("v_lshlrev_b32 v24, 2, v24")
            A("v_add_u32 v24, s60, v24")
            A("s_mov_b64 exec, 0xffff")
            A("global_store_dword v24, v60, s[40:41]")
        A("s_endpgm")

    TB = 100
    def tag4(self, R, n=4):
        for i in range(n):
            self.A(f"v_and_or_b32 v{R+i}, v{R+i}, v15, s{96 + i % 4}")
    def chk(self, acc, R, n, D=None):
        D = R if D is None else D
        for i in range(n):
            self.A(f"v_xor_b32 v{D+i}, s{96 + i % 4}, v{R+i}")
        self.A(f"v_or3_b32 v{acc}, v{D}, v{D+1}, v{D+2}")
        i = 3
        while i < n:
            if i + 1 < n:
                self.A(f"v_or3_b32 v{acc}, v{acc}, v{D+i}, v{D+i+1}"); i += 2
            else:
                self.A(f"v_or_b32 v{acc}, v{acc}, v{D+i}"); i += 1
    def chk_branch(self, acc, lab, sleep):
        A = self.A
        A(f"v_cmp_ne_u32_sdwa vcc, v{acc}, v10 src0_sel:BYTE_0 src1_sel:DWORD")
        A(f"s_cbranch_vccz {lab}_done")
        self.spin_end(lab, sleep)
        A(f"{lab}_done:")

    def set_tag(self):
        for k in range(4):
            self.A(f"s_bfe_u32 s{96+k}, s63, {0x80000 + 8*k:#x}")

    def ppoll_code(self, RD, ST):
        A = self.A
        MK = 16
        for it in range(8):
            A(f"s_mov_b64 s[{MK+2*it}:{MK+2*it+1}], -1")
            A(f"s_mov_b32 s{44+it}, {it*0x4000:#x}")
        A("s_mov_b32 s56, 512")
        self.spin_begin("L_sp_s")
        for it in range(8):
            A(f"s_mov_b64 exec, s[{MK+2*it}:{MK+2*it+1}]")
            A(f"buffer_load_dwordx4 v[{RD+4*it}:{RD+4*it+3}], v7, s[8:11], s{44+it} offen sc1")
        A(f"s_cmp_le_u32 s56, {8*self.pfast}")
        A("s_cbranch_scc1 L_sp_f")
        A("s_waitcnt vmcnt(0)")
        A("L_sp_f:")
        A(f"s_waitcnt vmcnt({8*(self.ppoll-1)})")
        A("s_mov_b32 s56, 0")
        for it in range(8):
            m = f"s[{MK+2*it}:{MK+2*it+1}]"
            A(f"s_mov_b64 exec, {m}")
            A(f"s_cbranch_execz L_sp_g{it}")
            self.chk(13, RD + 4 * it, 4, ST + 4 * it)
            for mm in ("quad_perm:[1,0,3,2]", "quad_perm:[2,3,0,1]", "row_half_mirror"):
                A("s_nop 1")
                A(f"v_or_b32_dpp v13, v13, v13 {mm} row_mask:0xf bank_mask:0xf")
            A(f"v_cmp_ne_u32_sdwa {m}, v13, v10 src0_sel:BYTE_0 src1_sel:DWORD")
            A(f"s_bcnt1_i32_b64 s42, {m}")
            A("s_add_u32 s56, s56, s42")
            A(f"L_sp_g{it}:")
        A("s_cmp_eq_u32 s56, 0")
        A("s_cbranch_scc1 L_sp_s_done")
        A("s_sub_u32 s55, s55, 1")
        A("s_cbranch_scc0 L_sp_s")

    def pp2_setup(self, ST):
        A = self.A
        A("s_xor_b32 s42, s96, 1")
        for it in range(8):
            A(f"s_mov_b64 s[{16+2*it}:{17+2*it}], -1")
            A(f"s_mov_b32 s{44+it}, {it*0x4000:#x}")
            A(f"v_mov_b32 v{ST+4*it}, s42")
        A("s_mov_b32 s56, 0xff")
        A(f"s_mov_b32 s55, {SPIN_MAX*8}")
    def pp2_code(self, RD, ST):
        A = self.A
        def ld(it):
            A(f"buffer_load_dwordx4 v[{ST+4*it}:{ST+4*it+3}], v7, s[8:11], s{44+it} offen sc1")
        for it in range(8):
            ld(it)
        A("L_sp_s:")
        for it in range(8):
            m = f"s[{16+2*it}:{17+2*it}]"
            if self.pline:
                A(f"s_mov_b64 exec, {m}")
                A(f"s_cbranch_execz L_pg{it+1}")
            else:
                A(f"s_bitcmp1_b32 s56, {it}")
                A(f"s_cbranch_scc0 L_pg{it+1}")
            A(f"L_ps{it}:")
            A(f"s_waitcnt vmcnt({self.pdepth-1})")
            self.chk(13, ST + 4 * it, 4, RD + 4 * it)
            if self.pline == 2:
                A(f"v_cmp_ne_u32_sdwa vcc, v13, v10 src0_sel:BYTE_0 src1_sel:DWORD")
                A(f"s_wqm_b64 {m}, vcc")
                A(f"s_cbranch_scc0 L_pd{it}")
                A(f"s_mov_b64 exec, {m}")
            elif self.pline:
                for mm in ("quad_perm:[1,0,3,2]", "quad_perm:[2,3,0,1]", "row_half_mirror"):
                    A("s_nop 1")
                    A(f"v_or_b32_dpp v13, v13, v13 {mm} row_mask:0xf bank_mask:0xf")
                A(f"v_cmp_ne_u32_sdwa {m}, v13, v10 src0_sel:BYTE_0 src1_sel:DWORD")
                A(f"s_mov_b64 exec, {m}")
                A(f"s_cbranch_execz L_pd{it}")
            else:
                A(f"v_cmp_ne_u32_sdwa vcc, v13, v10 src0_sel:BYTE_0 src1_sel:DWORD")
                A(f"s_cbranch_vccz L_pd{it}")
            ld(it)
            A(f"s_cmp_lg_u32 s56, {1 << it}")
            A(f"s_cbranch_scc1 L_pg{it+1}")
            A("s_sub_u32 s55, s55, 1")
            A(f"s_cbranch_scc0 L_ps{it}")
            A("s_branch L_sp_s_done")
            A(f"L_pd{it}:")
            A(f"s_andn2_b32 s56, s56, {1 << it}")
            A("s_cbranch_scc0 L_sp_s_done")
            A(f"L_pg{it+1}:")
        A("s_sub_u32 s55, s55, 1")
        A("s_cbranch_scc0 L_sp_s")

    def helper(self):
        A, C = self.A, self.C
        wf, mf = self.wflags, self.mflags
        RA, RD = 16, 32
        RB = 64
        ST = 192
        T = 224
        A("L_helper:")
        C("===== helper waves =====")
        A("s_sub_u32 s7, s3, 4")
        A("v_bfe_u32 v3, v0, 4, 2")
        A("v_and_b32 v4, 63, v0")
        A("s_bfe_u32 s4, s59, 0x50001")
        A("s_lshr_b32 s5, s2, 6")
        A("s_mov_b32 s57, 0")
        if self.bare == 1:
            A("s_waitcnt lgkmcnt(0)")
            A("s_barrier"); A("s_barrier"); A("s_branch L_hend")
        A("s_mov_b32 s48, 0x05040100"); A("s_mov_b32 s49, 0x07060302")
        A("v_lshlrev_b32 v6, 4, v4")
        A("v_mov_b32 v10, 0")
        A("v_mov_b32 v15, 0xffffff00")
        A("s_mov_b32 s11, 0x20000"); A("s_mov_b32 s15, 0x20000")
        C("s62 = MLP unit of this WG (>= NUNIT: none)")
        A("s_lshr_b32 s62, s2, 1")
        A("s_and_b32 s42, s2, 1"); A(f"s_cmp_eq_u32 s42, {self.mpar}")
        A("s_cselect_b32 s62, s62, 255")
        A("s_cmp_ge_u32 s7, 2")
        A("s_cbranch_scc1 L_nofront")
        A("s_cmp_eq_u32 s7, 0")
        A("s_cbranch_scc1 L_front")
        A(f"s_cmp_ge_u32 s62, {NUNIT}")
        A("s_cbranch_scc1 L_nofront")
        if "s1" in self.skip:
            A("s_branch L_nofront")
        A("L_front:")
        A(f"s_setprio {self.fprio}")
        A("s_mov_b32 s57, 1")
        if not self.fh:
            C("front units, 64 rows x 128 cols for all 4 batch rows. helper 0: wq rows 64(2b+side).., cols 128h..")
            C("helper 1: w1 rows 64(u&7).., cols 128(u>>3)..")
            A("s_and_b32 s42, s59, 1"); A("s_lshl1_add_u32 s42, s5, s42"); A("s_and_b32 s43, s62, 7")
            A("s_lshr_b32 s44, s62, 3")
            A("s_mov_b32 s51, 3584")
            A("s_cmp_eq_u32 s7, 0")
            A("s_cselect_b32 s53, s42, s43")
            A("s_cselect_b32 s44, s4, s44")
            A("s_cselect_b32 s51, 8192, s51")
            A("s_lshl_b32 s10, s51, 9")
            A("s_mul_i32 s52, s51, 25")
            A("s_mul_i32 s50, s53, s51"); A("s_lshl_b32 s50, s50, 6"); A("s_lshl_b32 s44, s44, 8"); A("s_add_u32 s50, s50, s44")
            A("s_lshl_b32 s42, s51, 3")
            A("v_mul_u32_u24 v5, s42, v3")
            A("v_lshl_add_u32 v5, v2, 4, v5")
        elif self.fh == 2:
            C("front units, 256 rows x 32 cols for all 4 batch rows. helper 0: wq rows 256(b>>1).., cols 32(4h + 2(b&1) + side)..")
            C("helper 1: w1 rows 256(u&1).., cols 32(4(u>>3) + (u&2) + ((u>>2)&1))..  The lane quads hold different 32-row blocks.")
            if self.pm:
                A("s_and_b32 s42, s59, 1"); A("s_and_b32 s61, s5, 1"); A("s_lshl1_add_u32 s61, s42, s61")
            else:
                A("s_and_b32 s42, s59, 1"); A("s_lshl1_add_u32 s42, s5, s42"); A("s_and_b32 s61, s42, 3")
            A("s_lshl2_add_u32 s42, s4, s61")
            A("s_lshr_b32 s44, s62, 3"); A("s_and_b32 s43, s62, 2"); A("s_lshl2_add_u32 s44, s44, s43")
            A("s_bfe_u32 s43, s62, 0x10002"); A("s_add_u32 s44, s44, s43")
            A("s_and_b32 s43, s62, 1"); A("s_lshr_b32 s53, s5, 1")
            A("s_mov_b32 s51, 3584")
            A("s_cmp_eq_u32 s7, 0")
            A("s_cselect_b32 s53, s53, s43")
            A("s_cselect_b32 s60, s42, s44")
            A("s_cselect_b32 s51, 8192, s51")
            A("s_lshl_b32 s10, s51, 9")
            A("s_mul_i32 s52, s51, 121")
            A("s_mul_i32 s50, s53, s51"); A("s_lshl2_add_u32 s50, s50, s60"); A("s_lshl_b32 s50, s50, 6")
            A("s_lshl_b32 s42, s51, 3")
            A("v_and_b32 v12, 12, v2"); A("v_add_u32 v5, v12, v3")
            A("v_mul_u32_u24 v5, s42, v5")
            A("v_and_b32 v12, 3, v2")
            A("v_lshl_add_u32 v5, v12, 4, v5")
        else:
            C("front units, 128 rows x 64 cols for all 4 batch rows. helper 0: wq rows 128b.., cols 64(2h+side)..")
            C("helper 1: w1 rows 128(u&3).., cols 64(u>>2)..  Lanes c<8 / c>=8 hold different 32-row blocks.")
            A("s_and_b32 s42, s59, 63"); A("s_and_b32 s43, s62, 3")
            A("s_lshr_b32 s44, s62, 2")
            A("s_mov_b32 s51, 3584")
            A("s_cmp_eq_u32 s7, 0")
            A("s_cselect_b32 s53, s5, s43")
            A("s_cselect_b32 s44, s42, s44")
            A("s_cselect_b32 s51, 8192, s51")
            A("s_lshl_b32 s10, s51, 9")
            A("s_mul_i32 s52, s51, 57")
            A("s_mul_i32 s50, s53, s51"); A("s_add_u32 s50, s50, s44"); A("s_lshl_b32 s50, s50, 7")
            A("s_lshl_b32 s42, s51, 3")
            A("v_lshrrev_b32 v12, 3, v2"); A("v_lshl_add_u32 v5, v12, 2, v3")
            A("v_mul_u32_u24 v5, s42, v5")
            A("v_and_b32 v12, 7, v2")
            A("v_lshl_add_u32 v5, v12, 4, v5")
        A("v_lshlrev_b32 v12, 10, v3")
        A("v_lshl_add_u32 v12, v2, 4, v12")
        A("s_cmp_eq_u32 s7, 0")
        A("s_waitcnt lgkmcnt(0)")
        for t in range(4):
            A(f"global_load_dwordx4 v[{RB+32+4*t}:{RB+35+4*t}], v12, s[16:17] offset:{256*t}")
        C("the word the previous launch left only serves to pick a tag that differs from that launch's")
        A(f"s_load_dword s63, s[40:41], {WS_EP:#x}")
        A("s_cselect_b32 s8, s22, s28"); A("s_cselect_b32 s9, s23, s29")
        if "fld" in self.skip:
            A("s_mov_b32 s10, 0")
        self.slabload(RB + 96, "s[8:11]", 5, "s51", mf, last_inc="s52")
        self.slabload(ST, "s[8:11]", 5, "s51", mf)
        A("s_lshl_b32 s42, s7, 12")
        A("v_add_u32 v12, s42, v12")
        A("v_lshrrev_b32 v13, 2, v2")
        A("v_lshlrev_b32 v13, 10, v13")
        A("v_lshl_add_u32 v13, v3, 4, v13")
        if not self.fh:
            C("A operand: rows[i>>2][64*blk + 32n + 8kk]")
            A("s_lshl_b32 s43, s53, 7"); A("s_add_u32 s42, s42, s43")
        else:
            C("A operand: rows[i>>2][unit rows: slab n, 32-row block from the low bits of i, 8kk]")
            A(f"v_and_b32 v14, {(1<<self.fh)-1}, v2"); A("v_lshl_add_u32 v13, v14, 6, v13")
            A(f"s_lshl_b32 s43, s53, {7+self.fh}"); A("s_add_u32 s42, s42, s43")
        A("v_add_u32 v13, s42, v13")
        A("s_mov_b32 s54, s7")
        A("s_waitcnt vmcnt(16)")
        self.stamp(1)
        A("L_ln:")
        self.unpack(RB, RB + 32, 16)
        self.layernorm(RB, 32, T, RB + 32, unpack_after=False)
        A("s_sub_u32 s54, s54, 1")
        A("s_cbranch_scc0 L_ln")
        for t in range(4):
            A(f"ds_write_b128 v12, v[{RB+32+4*t}:{RB+35+4*t}] offset:{XN + 256*t}")
        A("s_waitcnt vmcnt(8)")
        self.slabperm(RB + 64, RB + 96)
        A("s_waitcnt lgkmcnt(0)")
        A(f"ds_read_b128 v[{RA}:{RA+3}], v13 offset:{XN}")
        A(f"ds_read_b128 v[{RA+4}:{RA+7}], v13 offset:{XN+(64<<self.fh)}")
        A("s_add_u32 s63, s63, 0x61c88647")
        self.set_tag()
        A("s_waitcnt vmcnt(0)")
        self.slabperm(RB + 96, ST)
        A("s_waitcnt lgkmcnt(0)")
        self.slabmfma(RD, RA, RB + 64, True)
        self.slabmfma(RD, RA + 4, RB + 96, False)
        A("s_cmp_eq_u32 s7, 0")
        A("s_cbranch_scc1 L_qaddr")
        if not self.fh:
            C("U[u][sub=c>>2][half][b=kk][c&3][4]")
            A("s_lshl_b32 s42, s62, 11"); A(f"s_add_u32 s42, s42, {WS_U:#x}")
            A("v_lshrrev_b32 v12, 2, v2"); A("v_lshlrev_b32 v12, 9, v12")
            A("v_lshl_add_u32 v12, v3, 6, v12")
            A("v_and_b32 v13, 3, v2"); A("v_lshl_add_u32 v12, v13, 4, v12")
            A("s_branch L_fst")
            A("L_qaddr:")
            C("Q[h][b=kk][s][half][c][4]")
            A("s_lshl_b32 s42, s4, 14"); A("s_lshl_b32 s43, s53, 9"); A("s_add_u32 s42, s42, s43")
            A(f"s_add_u32 s42, s42, {WS_Q:#x}")
            A("v_lshlrev_b32 v12, 12, v3")
            A("v_lshl_add_u32 v12, v2, 4, v12")
            A("L_fst:")
            A("v_add_u32 v12, s42, v12")
            for jj in range(8):
                A(f"v_and_or_b32 v{T+jj}, v{RD+4*jj}, v15, s{96 + jj % 4}")
            if "fst" not in self.skip:
                A(f"global_store_dwordx4 v12, v[{T}:{T+3}], s[40:41] sc1")
                A(f"global_store_dwordx4 v12, v[{T+4}:{T+7}], s[40:41] offset:256 sc1")
        elif self.fh == 2:
            C("U[col block][row block][half=c>>3][b=kk][c&3][4]")
            A("s_lshl1_add_u32 s42, s60, s53"); A("s_lshl_b32 s42, s42, 9"); A(f"s_add_u32 s42, s42, {WS_U:#x}")
            A("v_lshrrev_b32 v12, 3, v2"); A("v_lshlrev_b32 v12, 8, v12")
            A("v_lshl_add_u32 v12, v3, 6, v12")
            A("v_and_b32 v13, 3, v2"); A("v_lshl_add_u32 v12, v13, 4, v12")
            A("s_branch L_fst")
            A("L_qaddr:")
            C("Q[h][b=kk][row block][col quarter][c&3][c>>3][4]")
            A("s_lshl_b32 s42, s4, 12"); A("s_lshl_b32 s43, s53, 9"); A("s_add_u32 s42, s42, s43")
            A("s_lshl_b32 s43, s61, 7"); A("s_add_u32 s42, s42, s43")
            A(f"s_add_u32 s42, s42, {WS_Q:#x}")
            A("v_lshlrev_b32 v12, 10, v3")
            A("v_and_b32 v13, 3, v2"); A("v_lshl_add_u32 v12, v13, 5, v12")
            A("v_lshrrev_b32 v13, 3, v2"); A("v_lshl_add_u32 v12, v13, 4, v12")
            A("L_fst:")
            A("v_add_u32 v12, s42, v12")
            self.fold4(T, RD)
            if "fst" not in self.skip:
                A(f"global_store_dwordx4 v12, v[{T}:{T+3}], s[40:41] sc1")
            A("s_mov_b64 exec, -1")
        else:
            C("U[u][n=(c>>2)&1][half=c>>3][b=kk][c&3][4]")
            A("s_lshl_b32 s42, s62, 10"); A(f"s_add_u32 s42, s42, {WS_U:#x}")
            A("v_bfe_u32 v12, v2, 2, 1"); A("v_lshlrev_b32 v12, 9, v12")
            A("v_lshrrev_b32 v13, 3, v2"); A("v_lshl_add_u32 v12, v13, 8, v12")
            A("v_lshl_add_u32 v12, v3, 6, v12")
            A("v_and_b32 v13, 3, v2"); A("v_lshl_add_u32 v12, v13, 4, v12")
            A("s_branch L_fst")
            A("L_qaddr:")
            C("Q[h][b=kk][row block][side][c&7][c>>3][4]")
            A("s_lshl_b32 s42, s4, 13"); A("s_lshl_b32 s43, s53, 9"); A("s_add_u32 s42, s42, s43")
            A("s_and_b32 s43, s59, 1"); A("s_lshl_b32 s43, s43, 8"); A("s_add_u32 s42, s42, s43")
            A(f"s_add_u32 s42, s42, {WS_Q:#x}")
            A("v_lshlrev_b32 v12, 11, v3")
            A("v_and_b32 v13, 7, v2"); A("v_lshl_add_u32 v12, v13, 5, v12")
            A("v_lshrrev_b32 v13, 3, v2"); A("v_lshl_add_u32 v12, v13, 4, v12")
            A("L_fst:")
            A("v_add_u32 v12, s42, v12")
            self.fold(T, RD)
            if "fst" not in self.skip:
                A(f"global_store_dwordx4 v12, v[{T}:{T+3}], s[40:41] sc1")
        self.stamp(2)
        A("s_cmp_lg_u32 s7, 0")
        A("s_cbranch_scc1 L_fdone")
        C("helper 0: gather the partials of q[b][h], LDS init")
        A(f"s_lshl_b32 s42, s4, {14-self.fh}"); A(f"s_lshl_b32 s43, s5, {12-self.fh}"); A("s_add_u32 s42, s42, s43")
        A(f"s_add_u32 s42, s42, {WS_Q:#x}")
        A("v_add_u32 v12, s42, v6")
        A("v_lshlrev_b32 v8, 2, v4")
        A("v_mov_b32 v9, -1")
        A(f"ds_write_b32 v8, v9 offset:{MLM}")
        A("v_mov_b32 v9, s63")
        A(f"ds_write_b32 v10, v9 offset:{TAGL}")
        A(f"ds_write_b32 v8, v10 offset:{PRG}")
        if not self.fh:
            A("v_bfe_u32 v9, v4, 4, 1")
            A("v_lshlrev_b32 v9, 3, v9")
            A("v_lshl_add_u32 v9, v2, 4, v9")
        else:
            A("v_and_b32 v9, 31, v4"); A("v_lshlrev_b32 v9, 3, v9")
        if "qpoll" in self.skip:
            A("s_branch L_sp_q_done")
        C("the partners publish at about the same time: look once the own stores are acknowledged")
        A("s_waitcnt vmcnt(0)")
        self.spin_begin("L_sp_q")
        NQ = 4 >> self.fh
        for t in range(NQ):
            A(f"global_load_dwordx4 v[{RD+4*t}:{RD+4*t+3}], v12, s[40:41] offset:{1024*t} sc1")
        A("s_waitcnt vmcnt(0)")
        self.chk(13, RD, 4 * NQ)
        self.chk_branch(13, "L_sp_q", self.qsleep)
        for d in range(4 if NQ > 1 else 0):
            A(f"v_add_f32 v{RD+d}, v{RD+d}, v{RD+4+d}")
            if NQ == 4:
                A(f"v_add_f32 v{RD+8+d}, v{RD+8+d}, v{RD+12+d}")
        for d in range(4 if NQ == 4 else 0):
            A(f"v_add_f32 v{RD+d}, v{RD+d}, v{RD+8+d}")
        for d in range(4):
            A(f"v_mov_b32 v{RD+4+d}, v{RD+d}")
        A("s_nop 1")
        for d in range(4):
            A(f"v_permlane32_swap_b32 v{RD+d}, v{RD+4+d}")
        for d in range(4):
            A(f"v_add_f32 v{RD+d}, v{RD+d}, v{RD+4+d}")
        for d in range(2):
            A(f"v_cvt_pk_bf16_f32 v{RD+d}, v{RD+2*d}, v{RD+2*d+1}")
        A(f"ds_write_b64 v9, v[{RD}:{RD+1}] offset:{QP}")
        A("L_fdone:")
        A("s_setprio 0")
        A("L_nofront:")
        A("s_waitcnt lgkmcnt(0)")
        self.stamp(3)
        if self.bare == 2:
            A("s_barrier"); A("s_barrier"); A("s_branch L_hend")
        C("----- wo block: rows 128h.., cols 128j.. (paced; helper 2 keeps one more load in flight) -----")
        A("v_lshlrev_b32 v5, 4, v2")
        A("v_lshl_or_b32 v5, v3, 13, v5")
        A("s_lshl_b32 s50, s4, 17"); A("s_lshl_b32 s43, s7, 8"); A("s_add_u32 s50, s50, s43")
        A("s_mov_b32 s8, s24"); A("s_mov_b32 s9, s25"); A("s_mov_b32 s10, 0x400000")
        A("s_cmp_eq_u32 s7, 2")
        A("s_cselect_b64 vcc, -1, 0")
        if self.wearly == 1:
            C("waves without front work take their first round before the barrier")
            A("s_cmp_eq_u32 s57, 0")
            A("s_cbranch_scc1 L_nb1")
        elif self.wearly == 2:
            A("s_cselect_b32 s57, 0, 1")
            A("s_cbranch_scc1 L_nb1")
        A("s_barrier")
        A("L_nb1:")
        def wo_round(n):
            wd = self.wdepth
            for e in range(8):
                r = ST + 4 * e
                if e >= wd:
                    A(f"s_waitcnt vmcnt({wd})")
                    A(f"s_cbranch_vccnz L_wo{n}_{e}")
                    A(f"s_waitcnt vmcnt({wd-1})")
                    A(f"L_wo{n}_{e}:")
                A(f"buffer_load_dwordx4 v[{r}:{r+3}], v5, s[8:11], s50 offen {wf}".rstrip())
                A(f"s_add_u32 s50, s50, {1024 if e < 7 else 25*1024}")
            A("s_waitcnt vmcnt(0)")
            self.slabperm(RB + 32 * n, ST)
        wo_round(0)
        if self.wearly:
            A("s_cmp_lg_u32 s57, 0")
            A("s_cbranch_scc1 L_nb2")
            self.stamp(3)
            A("s_barrier")
            A("L_nb2:")
        self.stamp(10)
        A(f"ds_read_b32 v13, v10 offset:{TAGL}")
        A("s_waitcnt lgkmcnt(0)")
        A("v_readfirstlane_b32 s63, v13")
        self.set_tag()
        A("s_cmp_lg_u32 s7, 1")
        A("s_cbranch_scc1 L_not1")
        if self.mpar2 != self.mpar:
            A("s_lshr_b32 s62, s2, 1")
            A("s_and_b32 s42, s2, 1"); A(f"s_cmp_eq_u32 s42, {self.mpar2}")
            A("s_cselect_b32 s62, s62, 255")
        A(f"s_cmp_ge_u32 s62, {NUNIT}")
        A("s_cbranch_scc1 L_not1")
        if "s2" in self.skip:
            A("s_branch L_not1")
        A("s_mov_b32 s51, s50")
        zh, NZ = self.zh, self.NZ
        assert self.fh or not zh
        if not zh:
            C("stage 2 unit: r = u>>2 (hidden rows 64r..), cq = u&3 (cols 128cq..)")
            A("s_lshr_b32 s60, s62, 2"); A("s_and_b32 s61, s62, 3")
            A("s_lshl_b32 s50, s60, 16"); A("s_lshl_b32 s43, s61, 8"); A("s_add_u32 s50, s50, s43")
            W2V = 5
        elif zh == 2:
            C("stage 2 unit: r = u>>4 (hidden rows 256r..), cq = (u&8) + 2(u&3) + ((u>>2)&1) (cols 32cq..)")
            A("s_lshr_b32 s60, s62, 4"); A("s_and_b32 s61, s62, 3"); A("s_and_b32 s43, s62, 8"); A("s_lshl1_add_u32 s61, s61, s43")
            A("s_bfe_u32 s43, s62, 0x10002"); A("s_add_u32 s61, s61, s43")
            A("s_lshl_b32 s50, s60, 18"); A("s_lshl_b32 s43, s61, 6"); A("s_add_u32 s50, s50, s43")
            A("v_and_b32 v12, 12, v2"); A("v_add_u32 v14, v12, v3"); A("v_lshlrev_b32 v14, 13, v14")
            A("v_and_b32 v12, 3, v2"); A("v_lshl_add_u32 v14, v12, 4, v14")
            W2V = 14
        else:
            C("stage 2 unit: r = u>>3 (hidden rows 128r..), cq = u&7 (cols 64cq..)")
            A("s_lshr_b32 s60, s62, 3"); A("s_and_b32 s61, s62, 7")
            A("s_lshl_b32 s50, s60, 17"); A("s_lshl_b32 s43, s61, 7"); A("s_add_u32 s50, s50, s43")
            A("v_lshrrev_b32 v12, 3, v2"); A("v_lshl_add_u32 v14, v12, 2, v3"); A("v_lshlrev_b32 v14, 13, v14")
            A("v_and_b32 v12, 7, v2"); A("v_lshl_add_u32 v14, v12, 4, v14")
            W2V = 14
        A("s_mov_b32 s12, s32"); A("s_mov_b32 s13, s33"); A(f"s_mov_b32 s14, {1792*1024}")
        if "w2ld" in self.skip:
            A("s_mov_b32 s14, 0")
        self.slabload(ST, "s[12:15]", W2V, 1024, mf, last_inc=((32 << zh) - 7) * 1024, pace=self.w2p)
        self.slabload(RD, "s[12:15]", W2V, 1024, mf, pace=self.w2p, cont=True)
        A(f"s_lshl_b32 s43, s60, {7+zh}")
        A("v_lshlrev_b32 v13, 4, v3")
        if zh:
            A(f"v_and_b32 v12, {(1<<zh)-1}, v2"); A("v_lshl_add_u32 v13, v12, 6, v13")
        A("v_add_u32 v13, s43, v13")
        A(f"global_load_dwordx4 v[{T+16}:{T+19}], v13, s[30:31]")
        A(f"global_load_dwordx4 v[{T+20}:{T+23}], v13, s[30:31] offset:{64<<zh}")
        A("s_mov_b32 s50, s51")
        UU, W, BB = RB + 64, RB + 80, RB + 112
        if not self.fh:
            C("U[m*8 + 4t + (c&3)][2(r&1) + n][half][b=c>>2][kk][4]")
            A("v_and_b32 v12, 3, v2"); A("v_lshlrev_b32 v12, 11, v12")
            A("v_lshrrev_b32 v13, 2, v2"); A("v_lshl_add_u32 v12, v13, 6, v12")
            A("v_lshl_add_u32 v12, v3, 4, v12")
            A("s_lshr_b32 s42, s60, 1"); A("s_lshl_b32 s42, s42, 14")
            A("s_and_b32 s43, s60, 1"); A("s_lshl_b32 s43, s43, 10"); A("s_add_u32 s42, s42, s43")
            A(f"s_add_u32 s42, s42, {WS_U:#x}")
            A(f"v_add_u32 v{T}, s42, v12")
            A(f"v_add_u32 v{T+1}, 0x2000, v{T}")
            lds_ = [(UU + 16*t + 4*q, T + t, 256*q) for t in range(2) for q in range(4)]
            perms = ("quad_perm:[1,0,3,2]", "quad_perm:[2,3,0,1]")
        elif self.fh == 2:
            assert zh
            if zh == 1:
                C("U[4r + 2n + (c&1)][(c>>1)&1][half][b=c>>2][kk][4]")
                A("v_and_b32 v12, 1, v2"); A("v_lshlrev_b32 v12, 10, v12")
                A("v_bfe_u32 v13, v2, 1, 1"); A("v_lshl_add_u32 v12, v13, 9, v12")
            else:
                C("U[8r + 4n + (c&3)][t][half][b=c>>2][kk][4]")
                A("v_and_b32 v12, 3, v2"); A("v_lshlrev_b32 v12, 10, v12")
            A("v_lshrrev_b32 v13, 2, v2"); A("v_lshl_add_u32 v12, v13, 6, v12")
            A("v_lshl_add_u32 v12, v3, 4, v12")
            A(f"s_lshl_b32 s42, s60, {11+zh}")
            A(f"s_add_u32 s42, s42, {WS_U:#x}")
            A(f"v_add_u32 v{T}, s42, v12")
            if zh == 1:
                lds_ = [(UU + 8*n + 4*hf, T, 2048*n + 256*hf) for n in range(2) for hf in range(2)]
                perms = ("quad_perm:[2,3,0,1]",)
            else:
                A(f"v_add_u32 v{T+1}, 0x1000, v{T}")
                lds_ = [(UU + 16*t + 8*n + 4*hf, T + n, 512*t + 256*hf) for t in range(2) for n in range(2) for hf in range(2)]
                perms = ()
        elif not zh:
            C("U[4r + (c&3)][n][half][b=c>>2][kk][4]")
            A("v_and_b32 v12, 3, v2"); A("v_lshlrev_b32 v12, 10, v12")
            A("v_lshrrev_b32 v13, 2, v2"); A("v_lshl_add_u32 v12, v13, 6, v12")
            A("v_lshl_add_u32 v12, v3, 4, v12")
            A("s_lshl_b32 s42, s60, 12")
            A(f"s_add_u32 s42, s42, {WS_U:#x}")
            A(f"v_add_u32 v{T}, s42, v12")
            lds_ = [(UU + 4*q, T, 256*q) for q in range(4)]
            perms = ("quad_perm:[1,0,3,2]", "quad_perm:[2,3,0,1]")
        else:
            C("U[4(2r+n) + 2t + ((c>>1)&1)][c&1][half][b=c>>2][kk][4]")
            A("v_and_b32 v12, 3, v2"); A("v_lshlrev_b32 v12, 9, v12")
            A("v_lshrrev_b32 v13, 2, v2"); A("v_lshl_add_u32 v12, v13, 6, v12")
            A("v_lshl_add_u32 v12, v3, 4, v12")
            A("s_lshl_b32 s42, s60, 13")
            A(f"s_add_u32 s42, s42, {WS_U:#x}")
            A(f"v_add_u32 v{T}, s42, v12")
            A(f"v_add_u32 v{T+1}, 0x1000, v{T}")
            lds_ = [(UU + 16*t + 8*n + 4*hf, T + n, 2048*t + 256*hf) for t in range(2) for n in range(2) for hf in range(2)]
            perms = ("quad_perm:[2,3,0,1]",)
        if "upoll" in self.skip:
            A("s_waitcnt vmcnt(0)")
            A("s_branch L_sp_u_done")
        self.spin_begin("L_sp_u")
        for r, v, o in lds_:
            A(f"global_load_dwordx4 v[{r}:{r+3}], v{v}, s[40:41] offset:{o} sc1")
        A("s_waitcnt vmcnt(0)")
        self.chk(13, UU, 4 * len(lds_))
        self.chk_branch(13, "L_sp_u", 32)
        self.unpack(BB, T + 16, 8)
        for i in range(16 if len(lds_) == 8 else 0):
            A(f"v_add_f32 v{UU+i}, v{UU+i}, v{UU+16+i}")
        for m in perms:
            for i in range(16):
                A(f"v_add_f32_dpp v{UU+i}, v{UU+i}, v{UU+i} {m} row_mask:0xf bank_mask:0xf")
        for i in range(16):
            self.rnd(UU + i, UU + i)
        for i in range(16):
            A(f"v_add_f32 v{UU+i}, v{UU+i}, v{BB+i}")
        for i in range(16):
            self.rnd(UU + i, UU + i)
        C("gelu(tanh form) = u / (1 + exp(-2k(u + 0.044715 u^3)))")
        k2 = -2.0 * math.sqrt(2.0 / math.pi) * math.log2(math.e)
        A(f"s_mov_b32 s42, {f32(0.044715 * k2)}"); A(f"s_mov_b32 s43, {f32(k2)}")
        A("v_mov_b32 v12, s43")
        for i in range(16):
            A(f"v_mul_f32 v{W+i}, v{UU+i}, v{UU+i}")
        for i in range(16):
            A(f"v_fma_f32 v{W+i}, v{W+i}, s42, v12")
        for i in range(16):
            A(f"v_mul_f32 v{W+i}, v{W+i}, v{UU+i}")
        for i in range(16):
            A(f"v_exp_f32 v{W+i}, v{W+i}")
        for i in range(16):
            A(f"v_add_f32 v{W+i}, 1.0, v{W+i}")
        for i in range(16):
            A(f"v_rcp_f32 v{W+i}, v{W+i}")
        for i in range(16):
            A(f"v_mul_f32 v{UU+i}, v{UU+i}, v{W+i}")
        for d in range(8):
            A(f"v_cvt_pk_bf16_f32 v{RA+d}, v{UU+2*d}, v{UU+2*d+1}")
        self.slabperm(RB + 64, ST)
        self.slabperm(RB + 96, RD)
        self.slabmfma(RD, RA, RB + 64, True)
        self.slabmfma(RD, RA + 4, RB + 96, False)
        if zh < 2:
            C("Z[b=kk][line][r][(c&7)*4..]")
            A(f"v_mul_u32_u24 v12, {16*NZ*128}, v3")
            A("v_lshrrev_b32 v13, 3, v2")
            A(f"v_mul_u32_u24 v13, {(2>>zh)*NZ*128}, v13")
            A("v_add_u32 v12, v12, v13")
            A("v_and_b32 v13, 7, v2")
            A("v_lshl_add_u32 v12, v13, 4, v12")
        else:
            C("Z[b=kk][cq][r][half=c>>3][c&3][4]")
            A(f"v_mul_u32_u24 v12, {16*NZ*128}, v3")
            A("v_lshrrev_b32 v13, 3, v2")
            A("v_lshl_add_u32 v12, v13, 6, v12")
            A("v_and_b32 v13, 3, v2")
            A("v_lshl_add_u32 v12, v13, 4, v12")
        A(f"s_mul_i32 s42, s61, {(4>>zh)*NZ*128}"); A("s_lshl_b32 s43, s60, 7"); A("s_add_u32 s42, s42, s43")
        A(f"s_add_u32 s42, s42, {WS_Z:#x}")
        A("v_add_u32 v12, s42, v12")
        if zh == 2:
            self.fold4(T, RD)
        elif zh:
            self.fold(T, RD)
        else:
            for jj in range(8):
                A(f"v_and_or_b32 v{T+jj}, v{RD+4*jj}, v15, s{96 + jj % 4}")
        if "zst" not in self.skip:
            A(f"global_store_dwordx4 v12, v[{T}:{T+3}], s[40:41] sc1")
            if not zh:
                A(f"global_store_dwordx4 v12, v[{T+4}:{T+7}], s[40:41] offset:{NZ*128} sc1")
        if zh == 2:
            A("s_mov_b64 exec, -1")
        A("s_mov_b64 vcc, 0")
        A("L_not1:")
        wo_round(1); wo_round(2); wo_round(3)
        self.stamp(4)
        if self.bare == 3:
            A("s_barrier"); A("s_branch L_hend")
        A("s_cmp_lg_u32 s7, 2")
        A("s_cbranch_scc1 L_nopub")
        C("helper 2: softmax bookkeeping with the other side of this head")
        A("v_lshlrev_b32 v12, 2, v2")
        self.spin_begin("L_sp_m")
        A(f"ds_read_b32 v14, v12 offset:{MLM}")
        A(f"ds_read_b32 v11, v12 offset:{MLL}")
        A("s_waitcnt lgkmcnt(0)")
        A("v_max_u32 v13, v14, v11")
        A("v_cmp_eq_u32 vcc, -1, v13")
        A("s_cbranch_vccz L_sp_m_done")
        self.spin_end("L_sp_m", 4)
        A("L_sp_m_done:")
        PW = T + 8
        A(f"ds_read_b128 v[{PW}:{PW+3}], v6 offset:{PL}")
        A(f"v_mov_b32 v{T}, v14")
        self.row_allreduce("max", T)
        A(f"v_sub_f32 v13, v14, v{T}")
        A("v_exp_f32 v13, v13")
        A(f"v_mov_b32 v{T+1}, s63"); A(f"v_mov_b32 v{T+3}, s63")
        A(f"v_mul_f32 v{T+2}, v13, v11")
        self.row_allreduce("add", T + 2)
        A("s_lshl_b32 s42, s59, 4"); A(f"s_add_u32 s42, s42, {WS_ML:#x}")
        A("v_mov_b32 v11, s42")
        A("s_mov_b64 exec, 1")
        A(f"global_store_dwordx4 v11, v[{T}:{T+3}], s[40:41] sc1")
        A("s_mov_b64 exec, -1")
        A("v_xor_b32 v11, 16, v11")
        self.spin_begin("L_sp_p")
        A(f"global_load_dwordx4 v[{T+4}:{T+7}], v11, s[40:41] sc1")
        A("s_waitcnt vmcnt(0)")
        A(f"v_xor_b32 v13, s63, v{T+5}")
        A(f"v_bitop3_b32 v13, v13, v{T+7}, s63 bitop3:0xf6")
        A("v_cmp_ne_u32 vcc, 0, v13")
        A("s_cbranch_vccz L_sp_p_done")
        self.spin_end("L_sp_p", 32)
        A("L_sp_p_done:")
        C("row factor exp(M_row - M_head) / L_head")
        A(f"v_max_f32 v{T+1}, v{T}, v{T+4}")
        A(f"v_sub_f32 v{T}, v{T}, v{T+1}"); A(f"v_sub_f32 v{T+4}, v{T+4}, v{T+1}"); A(f"v_sub_f32 v14, v14, v{T+1}")
        A(f"v_exp_f32 v{T}, v{T}"); A(f"v_exp_f32 v{T+4}, v{T+4}"); A("v_exp_f32 v14, v14")
        A(f"v_mul_f32 v{T+2}, v{T}, v{T+2}")
        A(f"v_fmac_f32 v{T+2}, v{T+4}, v{T+6}")
        A(f"v_rcp_f32 v{T+2}, v{T+2}")
        A("v_and_b32 v13, 0x3c, v4")
        A(f"v_mul_f32 v14, v14, v{T+2}")
        A("v_min_u32 v14, -2, v14")
        A(f"ds_write_b32 v12, v14 offset:{CFL}")
        A(f"ds_read_b32 v14, v13 offset:{CFL}")
        self.stamp(11)
        A("s_lshl_b32 s42, s59, 7"); A(f"s_add_u32 s42, s42, {WS_GH:#x}")
        A("v_mov_b32 v11, s42")
        A("v_xor_b32 v12, 0x80, v11")
        A("s_lshl_b32 s42, s59, 10"); A(f"s_add_u32 s42, s42, {WS_GP:#x}")
        A("v_add_u32 v9, s42, v6")
        A(f"v_mov_b32 v{T+1}, s63")
        A("s_waitcnt lgkmcnt(0)")
        for d in range(4):
            A(f"v_mul_f32 v{PW+d}, v14, v{PW+d}")
        self.tag4(PW)
        ps = self.pstep
        self.spin_begin("L_sp_a")
        A(f"ds_read_b32 v13, v10 offset:{PRG}")
        A("s_waitcnt lgkmcnt(0)")
        A("v_readfirstlane_b32 s42, v13")
        A(f"s_cmp_ge_u32 s42, {4*self.xs//ps}")
        A("s_cbranch_scc1 L_sp_a_done")
        self.spin_end("L_sp_a", 16)
        A("L_sp_a_done:")
        C("whoever finds the other side past the checkpoint before it is there itself hands over slots")
        self.spin_begin("L_sp_b")
        A(f"global_load_dwordx2 v[{T+4}:{T+5}], v12, s[40:41] sc1")
        A("s_waitcnt vmcnt(0)")
        A(f"ds_read_b32 v13, v10 offset:{PRG}")
        A(f"v_readfirstlane_b32 s43, v{T+5}")
        A("s_waitcnt lgkmcnt(0)")
        A("v_readfirstlane_b32 s42, v13")
        A("s_cmp_eq_u32 s43, s63")
        A("s_cbranch_scc1 L_give")
        A(f"s_cmp_ge_u32 s42, {4*self.xc//ps}")
        A("s_cbranch_scc1 L_pass")
        self.spin_end("L_sp_b", self.xsl)
        A("L_pass:")
        A(f"v_mov_b32 v{T}, 0")
        A("s_mov_b64 exec, 1")
        A(f"global_store_dwordx2 v11, v[{T}:{T+1}], s[40:41] sc1")
        A("s_mov_b64 exec, -1")
        A("v_mov_b32 v13, 128")
        A(f"ds_write_b32 v10, v13 offset:{DEC}")
        self.stamp(12)
        A("v_xor_b32 v9, 0x400, v9")
        self.spin_begin("L_sp_c")
        A(f"global_load_dwordx2 v[{T+4}:{T+5}], v12, s[40:41] sc1")
        A("s_waitcnt vmcnt(0)")
        A(f"v_readfirstlane_b32 s43, v{T+5}")
        A(f"v_readfirstlane_b32 s42, v{T+4}")
        A("s_cmp_eq_u32 s43, s63")
        A("s_cbranch_scc1 L_sp_c_done")
        self.spin_end("L_sp_c", self.xsl)
        A("L_sp_c_done:")
        A("s_cmp_eq_u32 s42, 0")
        A("s_cbranch_scc1 L_sp_d_done")
        self.spin_begin("L_sp_d")
        A(f"global_load_dwordx4 v[{PW}:{PW+3}], v9, s[40:41] sc1")
        A("s_waitcnt vmcnt(0)")
        self.chk(13, PW, 4)
        A(f"ds_write_b128 v6, v[{PW}:{PW+3}] offset:{PL}")
        self.chk_branch(13, "L_sp_d", 2)
        A("s_add_u32 s42, s42, 128")
        A("v_mov_b32 v13, s42")
        A(f"ds_write_b32 v10, v13 offset:{DEC+4}")
        self.stamp(13)
        if self.diag:
            A("s_mov_b32 s84, s42"); A("s_mov_b32 s85, 0")
        A("s_branch L_nopub")
        A("L_give:")
        A(f"s_sub_i32 s42, {(4*self.xc + self.xd)//ps}, s42")
        A(f"s_mul_i32 s42, s42, {self.xk*ps}"); A("s_ashr_i32 s42, s42, 6")
        A("s_max_i32 s42, s42, 0"); A(f"s_min_i32 s42, s42, {self.xmax}")
        A(f"v_mov_b32 v{T}, s42")
        A("s_cmp_eq_u32 s42, 0")
        A("s_cbranch_scc1 L_give0")
        A(f"global_store_dwordx4 v9, v[{PW}:{PW+3}], s[40:41] sc1")
        A("L_give0:")
        A("s_mov_b64 exec, 1")
        A(f"global_store_dwordx2 v11, v[{T}:{T+1}], s[40:41] sc1")
        A("s_mov_b64 exec, -1")
        A("s_sub_u32 s42, 128, s42")
        A("v_mov_b32 v12, s42"); A("v_mov_b32 v13, s42")
        A(f"ds_write_b64 v10, v[12:13] offset:{DEC}")
        self.stamp(12); self.stamp(13)
        if self.diag:
            A("s_mov_b32 s84, s42"); A("s_mov_b32 s85, 0")
        A("L_nopub:")
        G, XV, COL, F = T + 24, T + 25, T + 26, T + 8
        TG = T + 22
        C("addresses for the tail")
        A(f"v_mul_u32_u24 v8, {OBS}, v2")
        A("v_lshl_add_u32 v8, v3, 4, v8")
        C("S row + j*512 + (c>>3)*256 + (kk>>1)*128 + (c&7)*16 + (kk&1)*8")
        A("s_lshl_b32 s42, s7, 9"); A("s_lshl_b32 s43, s59, 11"); A("s_add_u32 s42, s42, s43")
        A("v_lshrrev_b32 v9, 3, v2"); A("v_lshlrev_b32 v9, 8, v9")
        A("v_lshrrev_b32 v13, 1, v3"); A("v_lshl_add_u32 v9, v13, 7, v9")
        A("v_and_b32 v13, 7, v2"); A("v_lshl_add_u32 v9, v13, 4, v9")
        A("v_and_b32 v13, 1, v3"); A("v_lshl_add_u32 v9, v13, 3, v9")
        A("v_add_u32 v9, s42, v9")
        A("v_lshlrev_b32 v13, 4, v13")
        A(f"v_lshrrev_b32 v{TG}, v13, s63")
        A(f"v_bfe_u32 v{TG+1}, v{TG}, 8, 8")
        A(f"v_and_b32 v{TG}, 0xff, v{TG}")
        A(f"v_mov_b32 v{COL}, 0")
        A("v_mov_b32 v7, 0")
        A("s_mov_b32 s8, s40"); A("s_mov_b32 s9, s41"); A("s_mov_b32 s10, 0x80000")
        C("s58 = 1 on consumer waves: helper 3 of WGs >= 128 of one parity")
        A(f"s_and_b32 s42, s2, 0x81"); A("s_lshl_b32 s43, s7, 1"); A("s_or_b32 s42, s42, s43")
        A(f"s_cmp_eq_u32 s42, {0x86 | self.cpar:#x}")
        A("s_cselect_b32 s58, 1, 0")
        A("s_cbranch_scc0 L_nog")
        if "cons" in self.skip:
            A("s_mov_b32 s58, 0")
            A("s_branch L_nog")
        C("consumer: batch bc, line cb: gate and merge factors")
        A("s_bfe_u32 s62, s2, 0x60001")
        A("s_lshr_b32 s60, s62, 4"); A("s_and_b32 s61, s62, 15")
        A("v_and_b32 v12, 7, v4")
        C("S poll address: S[bc][(l>>3) + 8it][line cb] + (l&7)*16")
        A("s_lshl_b32 s42, s60, 17"); A("s_lshl_b32 s43, s61, 7"); A("s_add_u32 s42, s42, s43")
        A("v_lshrrev_b32 v13, 3, v4"); A("v_lshlrev_b32 v13, 11, v13")
        A("v_lshl_add_u32 v7, v12, 4, v13")
        A("v_add_u32 v7, s42, v7")
        C("column = 64(cb>>1) + 4(cb&1) + 8(l&7) + 2(l>>5) + ((l>>4)&1)")
        A("v_lshlrev_b32 v12, 3, v12")
        A("v_lshrrev_b32 v13, 5, v4"); A("v_lshl_add_u32 v12, v13, 1, v12")
        A("v_bfe_u32 v13, v4, 4, 1"); A("v_add_u32 v12, v12, v13")
        A("s_lshr_b32 s42, s61, 1"); A("s_lshl_b32 s42, s42, 6")
        A("s_and_b32 s43, s61, 1"); A("s_lshl_b32 s43, s43, 2"); A("s_add_u32 s42, s42, s43")
        A(f"v_add_u32 v{COL}, s42, v12")
        A(f"v_lshlrev_b32 v13, 1, v{COL}")
        A(f"global_load_ushort v{G}, v13, s[34:35]")
        A("s_lshl_b32 s42, s60, 10")
        A(f"v_add_u32 v{COL}, s42, v13")
        A(f"global_load_ushort v{XV}, v{COL}, s[16:17]")
        if zh < 2:
            A(f"s_mul_i32 s42, s62, {NZ*128}"); A(f"s_add_u32 s42, s42, {WS_Z:#x}")
            A("v_add_u32 v12, s42, v6")
        else:
            C("Z[bc][2(cb>>1) + ((l>>2)&1)][r=l>>3][cb&1][l&3][4]")
            A("s_andn2_b32 s42, s62, 1"); A(f"s_mul_i32 s42, s42, {NZ*128}"); A(f"s_add_u32 s42, s42, {WS_Z:#x}")
            A("s_and_b32 s43, s62, 1"); A("s_lshl_b32 s43, s43, 6"); A("s_add_u32 s42, s42, s43")
            A("v_bfe_u32 v12, v4, 2, 1"); A(f"v_mul_u32_u24 v12, {NZ*128}, v12")
            A("v_lshrrev_b32 v13, 3, v4"); A("v_lshl_add_u32 v12, v13, 7, v12")
            A("v_and_b32 v13, 3, v4"); A("v_lshl_add_u32 v12, v13, 4, v12")
            A("v_add_u32 v12, s42, v12")
        self.spin_begin("L_sp_z")
        C("the lanes of the last load past the last line are masked off and hold tagged zeros")
        NL = 4 >> zh
        for d in range(4):
            A(f"v_mov_b32 v{RD+4*NL-4+d}, s{96+d}")
        for it in range(NL):
            if it == NL - 1:
                A(f"s_mov_b32 exec_hi, {(0, 0xffff, 0xffffff)[zh]:#x}")
            A(f"global_load_dwordx4 v[{RD+4*it}:{RD+4*it+3}], v12, s[40:41] offset:{it*1024} sc1")
        A("s_mov_b32 exec_hi, -1")
        A("s_waitcnt vmcnt(0)")
        self.chk(13, RD, 4 * NL)
        self.chk_branch(13, "L_sp_z", 32)
        A(f"v_lshlrev_b32 v{G}, 16, v{G}")
        A(f"v_lshlrev_b32 v{XV}, 16, v{XV}")
        for it in range(1, NL):
            for d in range(4):
                A(f"v_add_f32 v{RD+d}, v{RD+d}, v{RD+4*it+d}")
        self.xl_reduce4(RD)
        self.rnd(RD, RD)
        A(f"v_add_f32 v{RD}, v{RD}, v{G}")
        self.rnd(RD, RD)
        A(f"v_mul_f32 v{RD+1}, {f32(-math.log2(math.e))}, v{RD}")
        A(f"v_exp_f32 v{RD+1}, v{RD+1}")
        A("s_nop 0")
        A(f"v_add_f32 v{RD+1}, 1.0, v{RD+1}")
        A(f"v_rcp_f32 v{RD+1}, v{RD+1}")
        A("s_nop 0")
        A(f"v_mul_f32 v{G}, v{RD}, v{RD+1}")
        self.rnd(G, G)
        if self.pp2:
            self.pp2_setup(ST)
        A("s_waitcnt lgkmcnt(0)")
        A("L_nog:")
        self.stamp(5)
        A("s_barrier")
        self.stamp(6)
        for n in range(4):
            A(f"ds_read_b128 v[{RA+4*n}:{RA+4*n+3}], v8 offset:{OB + 64*n}")
        def comb(jj, r):
            d = RD + 4 * jj
            if r == 0:
                A(f"v_pk_add_f32 v[{d}:{d+1}], v[{d}:{d+1}], v[{d+2}:{d+3}]")
            elif r == 2:
                A(f"v_add_f32 v{T+jj}, v{d}, v{d+1}")
        if not self.mil:
            for n in range(4):
                A(f"s_waitcnt lgkmcnt({3-n})")
                self.slabmfma(RD, RA + 4 * n, RB + 32 * n, n == 0)
            A("s_nop 0")
            for r in range(4):
                for jj in range(8):
                    comb(jj, r)
        else:
            C("one column group after the other; the row combination of a finished group rides in the MFMA shadow")
            for jj in range(8):
                for n in range(4):
                    if jj == 0:
                        A(f"s_waitcnt lgkmcnt({3-n})")
                    d, b = RD + 4 * jj, RB + 32 * n + 4 * jj
                    c = "0" if n == 0 else f"v[{d}:{d+3}]"
                    A(f"v_mfma_f32_16x16x32_bf16 v[{d}:{d+3}], v[{RA+4*n}:{RA+4*n+3}], v[{b}:{b+3}], {c}")
                    if jj >= 2:
                        comb(jj - 2, n)
                    elif jj == 1:
                        A("s_nop 0")
            for r in range(4):
                comb(6, r)
            A("s_nop 5")
            for r in range(4):
                comb(7, r)
            A("s_nop 0")
        for d in range(4):
            A(f"v_permlane32_swap_b32 v{T+d}, v{T+d+4}")
        for d in range(4):
            A(f"v_add_f32 v{T+d}, v{T+d}, v{T+d+4}")
        A("s_nop 0")
        for d in range(2):
            A(f"v_permlane16_swap_b32 v{T+d}, v{T+d+2}")
        for d in range(2):
            A(f"v_add_f32 v{T+d}, v{T+d}, v{T+d+2}")
        for d in range(2):
            A(f"v_and_or_b32 v{T+d}, v{T+d}, v15, v{TG+d}")
        A(f"global_store_dwordx2 v9, v[{T}:{T+1}], s[40:41] sc1")
        self.stamp(7)
        if self.echo and len(self.echo) == 5:
            A("s_cmp_lg_u32 s7, 2")
            A("s_cbranch_scc1 L_e2")
            A("s_getreg_b32 s42, hwreg(HW_REG_XCC_ID)")
            A("s_waitcnt lgkmcnt(0)")
            A(f"v_mov_b32 v{ST}, s64"); A(f"v_mov_b32 v{ST+1}, s{78 if self.echo[0] == 4 else 84}"); A(f"v_mov_b32 v{ST+2}, s76"); A(f"v_mov_b32 v{ST+3}, s42")
            A("s_lshl_b32 s42, s59, 4"); A(f"s_add_u32 s42, s42, {WS_DIAG:#x}")
            A("v_mov_b32 v12, s42")
            A("s_mov_b64 exec, 1")
            A(f"global_store_dwordx4 v12, v[{ST}:{ST+3}], s[40:41] sc1")
            A("s_mov_b64 exec, -1")
            A("L_e2:")
        A("s_cmp_lg_u32 s58, 1")
        A("s_cbranch_scc1 L_hend")
        C("consumer: poll the 64 producers' lines in 8 groups (complete groups are not re-loaded), then reduce")
        if self.pp2:
            self.pp2_code(RD, ST)
        elif self.ppoll:
            self.ppoll_code(RD, ST)
        else:
            MK = 16
            for it in range(8):
                A(f"s_mov_b64 s[{MK+2*it}:{MK+2*it+1}], -1")
            self.spin_begin("L_sp_s")
            A("s_mov_b32 s50, 0")
            for it in range(8):
                A(f"s_mov_b64 exec, s[{MK+2*it}:{MK+2*it+1}]")
                A(f"buffer_load_dwordx4 v[{RD+4*it}:{RD+4*it+3}], v7, s[8:11], s50 offen sc1")
                if it < 7:
                    A("s_add_u32 s50, s50, 0x4000")
            A("s_mov_b64 exec, -1")
            A("s_waitcnt vmcnt(0)")
            for it in range(8):
                self.chk(RA + it, RD + 4 * it, 4, ST + 4 * it)
            A(f"v_or3_b32 v13, v{RA}, v{RA+1}, v{RA+2}")
            A(f"v_or3_b32 v12, v{RA+3}, v{RA+4}, v{RA+5}")
            A(f"v_or3_b32 v13, v13, v{RA+6}, v{RA+7}")
            A("v_or_b32 v13, v13, v12")
            A("v_cmp_ne_u32_sdwa vcc, v13, v10 src0_sel:BYTE_0 src1_sel:DWORD")
            A("s_cbranch_vccz L_sp_s_done")
            for it in range(8):
                A(f"v_cmp_ne_u32_sdwa s[{MK+2*it}:{MK+2*it+1}], v{RA+it}, v10 src0_sel:BYTE_0 src1_sel:DWORD")
            for it in range(8):
                A(f"s_cmp_lg_u64 s[{MK+2*it}:{MK+2*it+1}], 0")
                A(f"s_cselect_b64 s[{MK+2*it}:{MK+2*it+1}], -1, 0")
            self.spin_end("L_sp_s", 1)
        A("L_sp_s_done:")
        A("s_mov_b64 exec, -1")
        self.stamp(8)
        SRC = RD if self.pp2 else ST
        for st in (16, 8):
            for i in range(0, st, 2):
                A(f"v_pk_add_f32 v[{SRC+i}:{SRC+i+1}], v[{SRC+i}:{SRC+i+1}], v[{SRC+st+i}:{SRC+st+i+1}]")
        for d in (0, 2):
            A(f"v_pk_add_f32 v[{RA+d}:{RA+d+1}], v[{SRC+d}:{SRC+d+1}], v[{SRC+4+d}:{SRC+4+d+1}]")
        A("s_nop 0")
        self.xl_reduce4(RA)
        self.rnd(RA, RA)
        A(f"v_mul_f32 v{RA}, v{RA}, v{G}")
        self.rnd(RA, RA)
        A(f"v_add_f32 v{RA}, v{RA}, v{XV}")
        A(f"v_cvt_pk_bf16_f32 v{RA}, v{RA}, 0")
        A("s_mov_b32 s42, 0x00ff00ff"); A("s_mov_b32 s43, 0x00ff00ff")
        A("s_mov_b64 exec, s[42:43]")
        A(f"global_store_short v{COL}, v{RA}, s[36:37]")
        self.stamp(9)
        A("s_cmp_lg_u32 s62, 63")
        A("s_cbranch_scc1 L_nobump")
        C("every reader of the tag word is done by now (this wave has seen data that depends on all of them)")
        A("s_mov_b64 exec, 1")
        A(f"v_mov_b32 v12, {WS_EP:#x}")
        A("v_mov_b32 v13, s63")
        A("global_store_dword v12, v13, s[40:41] sc1")
        A("L_nobump:")
        A("s_mov_b64 exec, -1")
        if self.echo:
            if len(self.echo) == 3:
                a, b, K = self.echo
                A("s_waitcnt lgkmcnt(0)")
                A(f"s_sub_u32 s42, s{64+2*b}, s{64+2*a}")
            else:
                fld, op, xm, xv, K = self.echo
                A("s_sleep 64")
                A("s_lshl_b32 s42, s60, 10"); A(f"s_add_u32 s42, s42, {WS_DIAG:#x}")
                A("v_add_u32 v12, s42, v6")
                A(f"global_load_dwordx4 v[{ST}:{ST+3}], v12, s[40:41] sc1")
                A("s_waitcnt vmcnt(0) lgkmcnt(0)")
                for i in range(3):
                    A(f"v_subrev_u32 v{ST+i}, s64, v{ST+i}")
                    A(f"v_cvt_f32_i32 v{ST+i}, v{ST+i}")
                A(f"v_mov_b32 v{ST+4}, v{ST}")
                self.wave_allreduce_add(ST + 4, ST + 5, "min")
                if fld >= 3:
                    A("s_sub_u32 s42, s82, s64")
                    A(f"v_cvt_f32_i32 v{ST+4}, s42")
                    A(f"v_sub_f32 v{ST+6}, v{ST+4}, v{ST + (2 if fld == 3 else 1)}")
                else:
                    A(f"v_sub_f32 v{ST+6}, v{ST+fld}, v{ST+4}")
                A(f"v_and_b32 v{ST+3}, {xm}, v{ST+3}")
                A(f"v_cmp_eq_u32 vcc, {xv}, v{ST+3}")
                A(f"v_mov_b32 v{ST+7}, {'0' if op != 'min' else '0x49742400'}")
                A(f"v_cndmask_b32 v{ST+6}, v{ST+7}, v{ST+6}, vcc")
                self.wave_allreduce_add(ST + 6, ST + 5, op)
                if op == "add":
                    n = 64 >> bin(xm).count("1")
                    A(f"v_mul_f32 v{ST+6}, {f32(1.0/n)}, v{ST+6}")
                A(f"v_cvt_i32_f32 v{ST+6}, v{ST+6}")
                A("s_nop 1")
                A(f"v_readfirstlane_b32 s42, v{ST+6}")
                A("s_memrealtime s[82:83]")
                A("s_waitcnt lgkmcnt(0)")
            A(f"s_mul_i32 s42, s42, {K}")
            A(f"s_add_u32 s42, s42, {self.eadd}")
            A("s_min_u32 s42, s42, 100000")
            A("s_add_u32 s42, s42, s82")
            A("L_echo:")
            A("s_memrealtime s[90:91]")
            A("s_waitcnt lgkmcnt(0)")
            A("s_sub_u32 s43, s42, s90")
            A("s_cmp_gt_i32 s43, 0")
            A("s_cbranch_scc1 L_echo")
        A("L_hend:")
        self.dump_stamps(14, 16)

def gen(**kw):
    return Gen(**kw).gen()

if __name__ == "__main__":
    out = sys.argv[1] if len(sys.argv) > 1 else "recurrent_scan__mha_block_cached__mixer_channel_mlp__decode.s"
    kw = eval("dict(" + (sys.argv[2] if len(sys.argv) > 2 else "") + ")")
    open(out, "w").write(gen(**kw))
```

```python
import sys, math, struct
NAME = "recurrent_scan__mha_block_cached__mixer_channel_mlp__decode_kernel"

def f32(x):
    return "0x%08x" % struct.unpack("<I", struct.pack("<f", x))[0]

HEADER = """; Kernarg layout for this problem (104 bytes, ptrs only, base s[0:1]):
;   offset  32: d_in[4] A_wo  shape=(4096, 512) dtype=bfloat16
;   offset  96: d_ws      workspace
"""

XN, QP, MLM, MLL, TAGL = 0, 8192, 8448, 8512, 8704
CFL, DEC, RK = 8576, 8640, 8720
OA, OC, FC = 9216, 11264, 11520
PRG, PL = 11776, 12032
FA, GX = 0, 4096
FAS = 80
LDS_BYTES = 13312
WS_O, WS_ML, WS_EP, WS_Q, WS_U, WS_Z, WS_DIAG = 0x40000, 0x80000, 0x90000, 0x100000, 0x180000, 0x1c0000, 0x200000
WS_RP = 0x98000
WS_GH, WS_GP = 0xa0000, 0xc0000
NUNIT = 112
NZ = 7
SPIN_MAX = 1 << 18

class Gen:
    DEF = dict(kvflags="nt", mflags="nt", diag=False, prog=False, fine=0, DK=8, DV=8, adel=2, pre=3, dks=6, skip=(),
               mpar=0, cpar=1, fprio=3, qsleep=1, w2p=4, cpf=0, early=1, dsl=2,
               xc=92, xs=58, xd=52, xk=8, xmax=16, xsl=2, pstep=2,
               ctl=1, cg=8, cu0=24, culo=16, cuhi=32, cc0=2, clim=100, cb=6, csl=0, cbias=0, cend=106, rsl=8, bst=0x500,
               wpre=3, bg=(4, 3, 3), b2=1, pw=1, pd=2, pd1=1, dry=1, bx=2, wlate=0)
    def __init__(self, **kw):
        self.L = []
        self.nlab = 0
        for k in kw:
            assert k in self.DEF, k
        for k, v in self.DEF.items():
            setattr(self, k, kw.get(k, v))
        self.skip = set(self.skip)
    def A(self, s):
        self.L.append("  " + s if not s.endswith(":") else s)
    def C(self, s):
        self.L.append("  ; " + s)

    def stamp(self, idx):
        if self.diag:
            self.A(f"s_memrealtime s[{64+2*idx}:{65+2*idx}]")
    def dump_stamps(self, n, vt):
        if not self.diag:
            return
        A = self.A
        for k in range(self.dsl):
            A("s_sleep 127")
        A("s_waitcnt lgkmcnt(0)")
        A("s_lshl_b32 s60, s2, 3"); A("s_add_u32 s60, s60, s3"); A("s_lshl_b32 s60, s60, 7")
        A(f"s_add_u32 s60, s60, {WS_DIAG:#x}")
        A(f"v_mov_b32 v{vt}, s60")
        A("s_mov_b64 exec, 1")
        for j in range(n):
            A(f"v_mov_b32 v{vt+2}, s{64+2*j}"); A(f"v_mov_b32 v{vt+3}, s{65+2*j}")
            A(f"global_store_dwordx2 v{vt}, v[{vt+2}:{vt+3}], s[40:41] offset:{8*j}")
        A("s_getreg_b32 s60, hwreg(HW_REG_XCC_ID)")
        A(f"v_mov_b32 v{vt+2}, s60")
        A(f"global_store_dword v{vt}, v{vt+2}, s[40:41] offset:120")
        A("s_mov_b64 exec, -1")

    def row_allreduce(self, op, r):
        A = self.A
        for m in ("quad_perm:[1,0,3,2]", "quad_perm:[2,3,0,1]", "row_half_mirror", "row_mirror"):
            A("s_nop 1")
            A(f"v_{op}_f32_dpp v{r}, v{r}, v{r} {m} row_mask:0xf bank_mask:0xf")
    def wave_allreduce_add(self, r, t, op="add"):
        A = self.A
        self.row_allreduce(op, r)
        for sw in ("v_permlane16_swap_b32", "v_permlane32_swap_b32"):
            A(f"v_mov_b32 v{t}, v{r}")
            A("s_nop 1")
            A(f"{sw} v{r}, v{t}")
            A(f"v_{op}_f32 v{r}, v{r}, v{t}")
    def rnd(self, d, s):
        self.A(f"v_cvt_pk_bf16_f32 v{d}, 0, v{s}")

    def layernorm(self, X, n, T, P, unpack_after=True):
        A = self.A
        s, t, q, d = T, T + 1, T + 2, T + 3
        red = (lambda r: self.wave_allreduce_add(r, t)) if n == 8 else (lambda r: self.row_allreduce("add", r))
        A(f"v_add_f32 v{s}, v{X}, v{X+1}")
        for i in range(2, n):
            A(f"v_add_f32 v{s}, v{s}, v{X+i}")
        red(s)
        A(f"v_mul_f32 v{s}, {f32(1.0/512)}, v{s}")
        A(f"v_sub_f32 v{d}, v{X}, v{s}")
        A(f"v_mul_f32 v{q}, v{d}, v{d}")
        for i in range(1, n):
            dd = d if i % 2 == 0 else t
            A(f"v_sub_f32 v{dd}, v{X+i}, v{s}")
            A(f"v_fmac_f32 v{q}, v{dd}, v{dd}")
        red(q)
        A(f"v_mul_f32 v{q}, {f32(1.0/512)}, v{q}")
        self.rnd(s, s)
        self.rnd(q, q)
        A(f"v_add_f32 v{q}, {f32(1e-5)}, v{q}")
        self.rnd(q, q)
        A(f"v_sqrt_f32 v{q}, v{q}")
        A("s_nop 0")
        self.rnd(q, q)
        A(f"v_rcp_f32 v{q}, v{q}")
        for i in range(n):
            A(f"v_sub_f32 v{X+i}, v{X+i}, v{s}")
        for i in range(n):
            self.rnd(X + i, X + i)
        for i in range(n):
            A(f"v_mul_f32 v{X+i}, v{X+i}, v{q}")
        for i in range(n // 2):
            A(f"v_cvt_pk_bf16_f32 v{P+i}, v{X+2*i}, v{X+2*i+1}")
        if unpack_after:
            self.unpack(X, P, n // 2)
    def unpack(self, X, P, n):
        for i in range(n):
            self.A(f"v_lshlrev_b32 v{X+2*i}, 16, v{P+i}")
            self.A(f"v_and_b32 v{X+2*i+1}, 0xffff0000, v{P+i}")

    def slabload(self, dst, srd, voff, stride, flags, last_inc=None, pace=None, cont=False):
        A = self.A
        for e in range(8):
            r = dst + 4 * e
            if pace is not None and (e >= pace or cont):
                A(f"s_waitcnt vmcnt({pace-1})")
            A(f"buffer_load_dwordx4 v[{r}:{r+3}], v{voff}, {srd}, s50 offen {flags}".rstrip())
            inc = stride if e < 7 else last_inc
            if inc is not None:
                A(f"s_add_u32 s50, s50, {inc}")
    def slabperm(self, dst, src, js=4):
        A = self.A
        rows = src if isinstance(src, list) else [src + 4 * e for e in range(8)]
        for d in range(4):
            for hf in range(2):
                jj = 2 * d + hf
                for q in range(4):
                    A(f"v_perm_b32 v{dst + js*jj + q}, v{rows[2*q+1] + d}, v{rows[2*q] + d}, s{48 + hf}")
    def slabmfma(self, RD, RA, B, first):
        A = self.A
        for jj in range(8):
            b = B + 4 * jj
            c = "0" if first else f"v[{RD+4*jj}:{RD+4*jj+3}]"
            A(f"v_mfma_f32_16x16x32_bf16 v[{RD+4*jj}:{RD+4*jj+3}], v[{RA}:{RA+3}], v[{b}:{b+3}], {c}")

    def fold4(self, T, RD):
        A = self.A
        for bk in range(4):
            for q in range(4):
                d = RD + 4 * q + 16 * (bk >> 1)
                A(f"v_add_f32_dpp v{T+q}, v{d + (bk ^ 2)}, v{d + bk} row_ror:8 row_mask:0xf bank_mask:{1 << bk:#x}")
        for q in range(4):
            A(f"v_add_f32_dpp v{T+q}, v{T+q}, v{T+q} row_shl:4 row_mask:0xf bank_mask:0x5")
        A("s_mov_b32 exec_lo, 0x0f0f0f0f"); A("s_mov_b32 exec_hi, 0x0f0f0f0f")
        self.tag4(T)
    def spin_begin(self, lab):
        self.A(f"s_mov_b32 s55, {SPIN_MAX}")
        self.A(f"{lab}:")
    def spin_end(self, lab, sleep):
        A = self.A
        A(f"s_sleep {sleep}")
        A("s_sub_u32 s55, s55, 1")
        A("s_cmp_lg_u32 s55, 0")
        A(f"s_cbranch_scc1 {lab}")
    def xl_reduce4(self, R):
        A = self.A
        A("s_nop 0")
        for d in range(2):
            A(f"v_permlane32_swap_b32 v{R+d}, v{R+d+2}")
        for d in range(2):
            A(f"v_add_f32 v{R+d}, v{R+d}, v{R+d+2}")
        A("s_nop 1")
        A(f"v_permlane16_swap_b32 v{R}, v{R+1}")
        A(f"v_add_f32 v{R}, v{R}, v{R+1}")
        A("s_nop 1")
        A(f"v_add_f32_dpp v{R}, v{R}, v{R} row_ror:8 row_mask:0xf bank_mask:0xf")

    def gen(self):
        A, C = self.A, self.C
        self.L.append(HEADER.rstrip())
        self.L.append(f"; @launch grid=(256,1,1) block=(512,1,1) lds={LDS_BYTES}")
        self.L.append('.amdgcn_target "amdgcn-amd-amdhsa--gfx950"')
        self.L.append(".text"); self.L.append(f".globl {NAME}"); self.L.append(".p2align 8")
        self.L.append(f".type {NAME},@function"); self.L.append(f"{NAME}:")
        self.stamp(0)
        A("s_load_dwordx16 s[16:31], s[0:1], 0")
        A("s_load_dwordx8 s[32:39], s[0:1], 64")
        A("s_load_dwordx2 s[40:41], s[0:1], 96")
        A("s_cmp_ge_u32 s2, 256")
        A("s_cbranch_scc1 L_end")
        A("v_lshrrev_b32 v1, 6, v0")
        A("v_and_b32 v2, 15, v0")
        A("v_readfirstlane_b32 s3, v1")
        C("s59 = producer index b*64 + 2h + side, b = wg>>6, side = (wg>>2)&1, h = 8((wg&3)^side) + ((wg>>3)&7):")
        C("the two halves of a head's keys go to the WGs wg and wg^5")
        A("s_bfe_u32 s5, s2, 0x10002")
        A("s_and_b32 s59, s2, 0xc0"); A("s_and_b32 s4, s2, 3"); A("s_xor_b32 s4, s4, s5"); A("s_lshl4_add_u32 s59, s4, s59")
        A("s_bfe_u32 s4, s2, 0x30003"); A("s_lshl1_add_u32 s59, s4, s59")
        A("s_or_b32 s59, s59, s5")
        if self.cpf:
            A("s_cmp_lt_u32 s3, 4")
            A("s_cbranch_scc1 L_stream")
            C("helper waves pull a slice of this kernel's code towards the L2")
            A("s_getpc_b64 s[42:43]")
            A("L_pc:")
            A("s_lshr_b32 s44, s2, 3"); A("s_lshl2_add_u32 s44, s44, s3")
            A(f"s_mul_i32 s44, s44, {64*self.cpf}")
            A(f"s_min_u32 s44, s44, L_end-L_pc-{64*(self.cpf-1)}")
            for k in range(self.cpf):
                A(f"s_load_dword s{45+k}, s[42:43], s44 offset:{64*k}")
            A("s_branch L_helper")
            A("L_stream:")
        else:
            A("s_cmp_ge_u32 s3, 4")
            A("s_cbranch_scc1 L_helper")
        self.stream()
        self.helper()
        A("L_end:")
        A("s_endpgm")
        L = self.L
        L.append('.section .rodata,"a"'); L.append(".p2align 6"); L.append(f".amdhsa_kernel {NAME}")
        L.append("  .amdhsa_next_free_vgpr 256"); L.append("  .amdhsa_next_free_sgpr 102"); L.append("  .amdhsa_accum_offset 256")
        L.append("  .amdhsa_group_segment_fixed_size 0"); L.append("  .amdhsa_kernarg_size 104")
        L.append("  .amdhsa_user_sgpr_count 2"); L.append("  .amdhsa_user_sgpr_kernarg_segment_ptr 1")
        L.append("  .amdhsa_system_sgpr_workgroup_id_x 1")
        L.append("  .amdhsa_float_denorm_mode_32 3")
        L.append(".end_amdhsa_kernel")
        return "\n".join(L) + "\n"

    def is_cons(self):
        self.A("s_and_b32 s42, s2, 0x81"); self.A(f"s_cmp_eq_u32 s42, {0x80 | self.cpar:#x}")
        self.A("s_cselect_b32 s94, 1, 0")

    def stream(self):
        A, C = self.A, self.C
        RING = 64
        P = 24
        Q = 8
        S = 40
        ACC = 48
        PLO, PHI = 12, 13
        VOFF = 5
        fl = self.kvflags
        DK, DV, pre = self.DK, self.DV, self.pre
        assert DK <= DV <= 8
        C("===== stream waves =====")
        A("v_lshlrev_b32 v7, 4, v2")
        A("v_lshrrev_b32 v6, 4, v0")
        A("v_lshl_or_b32 v5, v6, 12, v7")
        A("s_lshl_b32 s7, s59, 19")
        A("s_mov_b32 s10, 0x80000"); A("s_mov_b32 s11, 0x20000")
        if self.bx:
            C("half of the heads walk the two halves of every 16-key run in the other order")
            A(f"s_and_b32 s50, s59, {1 << self.bx}"); A(f"s_lshl_b32 s50, s50, {11 - self.bx}")
        else:
            A("s_mov_b32 s50, 0")
        A("s_waitcnt lgkmcnt(0)")
        A("s_add_u32 s8, s18, s7"); A("s_addc_u32 s9, s19, 0")
        self.stamp(5)
        issued = []
        def load(slot, srd, so=None, tag=None, imm=True):
            r = RING + 4 * slot
            if so is None:
                so = "s62" if slot & 8 else "s50"
            off = f" offset:{(slot & 7)*256}" if imm else ""
            A(f"buffer_load_dwordx4 v[{r}:{r+3}], v{VOFF}, {srd}, {so} offen{off} {fl}".rstrip())
            issued.append(tag)
        def nextgroup():
            A("s_add_u32 s50, s50, 0x10000"); A("s_add_u32 s62, s62, 0x10000")
        def wait(tag):
            A(f"s_waitcnt vmcnt({len(issued) - 1 - issued.index(tag)})")
        def cwait(D, j):
            self.nlab += 1
            lo = self.culo // 4
            for L in range(D, lo - 1, -1):
                A(f"s_waitcnt vmcnt({L-1})")
                if L == D:
                    A(f"s_cbranch_scc0 L_cw{self.nlab}")
                if L > lo:
                    A(f"s_cmp_ge_u32 s62, {4*L - (j & 3)}")
                    A(f"s_cbranch_scc1 L_cw{self.nlab}")
            A(f"L_cw{self.nlab}:")
        def swait(D, lo=None):
            A(f"s_waitcnt vmcnt({D-1})")
            if lo is not None and lo < D:
                self.nlab += 1
                A(f"s_cbranch_vccnz L_ad{self.nlab}")
                A(f"s_waitcnt vmcnt({lo-1})")
                A(f"L_ad{self.nlab}:")
        def setup2():
            A("s_mov_b32 s6, s50"); A("s_xor_b32 s62, s50, 0x800")
            A("s_mov_b32 s14, s10"); A("s_mov_b32 s15, s11"); A("s_mov_b32 s46, s10"); A("s_mov_b32 s47, s11")
            A("s_add_u32 s12, s20, s7"); A("s_addc_u32 s13, s21, 0")
            A("s_mov_b32 s52, 0xaaaaaaaa"); A("s_mov_b32 s53, 0xaaaaaaaa")
            A("s_mov_b32 s56, 0xcccccccc"); A("s_mov_b32 s57, 0xcccccccc")
            C("s60 = key group before which this WG turns to its part of wo; it keeps more loads in flight in return")
            A(f"s_lshr_b32 s60, s2, {self.bg[2]}"); A(f"s_and_b32 s60, s60, {self.bg[1]}"); A(f"s_add_u32 s60, s60, {self.bg[0]}")
            self.is_cons()
            A("s_cselect_b64 vcc, -1, 0")
            A("s_cselect_b32 s60, s60, 0")
            A("v_mov_b32 v21, 0"); A("v_mov_b32 v62, 0")
        dd = self.dks
        for gi in range(pre):
            for j in range(16):
                n = 16 * gi + j
                if n == dd:
                    setup2()
                    self.stamp(6)
                if n >= dd:
                    swait(dd)
                if n == dd:
                    self.stamp(7)
                if n == 2 * dd:
                    self.stamp(8)
                load(n, "s[8:11]", None, (gi, j))
            nextgroup()
        self.stamp(1)
        A("s_barrier")
        A(f"ds_read_b128 v[{Q}:{Q+3}], v7 offset:{QP}")
        self.stamp(2)
        A("s_waitcnt lgkmcnt(0)")
        def qk(slots):
            for d in range(4):
                for slot in slots:
                    r = RING + 4 * slot
                    p = P + slot % 16
                    c = "0" if d == 0 else f"v{p}"
                    A(f"v_dot2_f32_bf16 v{p}, v{r+d}, v{Q+d}, {c}")
        def treduce(dst, mid=()):
            C("transposing reduction: lane (g,c) <- score of load c, key g")
            for t in range(8):
                A(f"v_add_f32_dpp v{P+t}, v{P+t}, v{P+t} row_ror:8 row_mask:0xf bank_mask:0x3")
            for t in range(8):
                A(f"v_add_f32_dpp v{P+t}, v{P+t+8}, v{P+t+8} row_ror:8 row_mask:0xf bank_mask:0xc")
            for t in range(4):
                A(f"v_add_f32_dpp v{P+t}, v{P+t}, v{P+t} row_half_mirror row_mask:0xf bank_mask:0x5")
            for t in range(4):
                A(f"v_add_f32_dpp v{P+t}, v{P+t+4}, v{P+t+4} row_half_mirror row_mask:0xf bank_mask:0xa")
            U0, U1, T0, T1 = P + 8, P + 9, P + 10, P + 11
            A(f"v_cndmask_b32 v{U0}, v{P+1}, v{P}, s[52:53]")
            A(f"v_cndmask_b32 v{U1}, v{P+3}, v{P+2}, s[52:53]")
            A(f"v_cndmask_b32 v{T0}, v{P}, v{P+1}, s[52:53]")
            A(f"v_cndmask_b32 v{T1}, v{P+2}, v{P+3}, s[52:53]")
            A("s_nop 1")
            A(f"v_add_f32_dpp v{T0}, v{U0}, v{T0} quad_perm:[1,0,3,2] row_mask:0xf bank_mask:0xf")
            A(f"v_add_f32_dpp v{T1}, v{U1}, v{T1} quad_perm:[1,0,3,2] row_mask:0xf bank_mask:0xf")
            A(f"v_cndmask_b32 v{U0}, v{T1}, v{T0}, s[56:57]")
            A(f"v_cndmask_b32 v{U1}, v{T0}, v{T1}, s[56:57]")
            if mid:
                for m in mid:
                    A(m)
            else:
                A("s_nop 1")
            A(f"v_add_f32_dpp v{dst}, v{U0}, v{U1} quad_perm:[2,3,0,1] row_mask:0xf bank_mask:0xf")
        C("catch-up over the prefetched groups; group `pre` is loaded into ring slots 0..15 meanwhile")
        nxt = 0
        for gi in range(pre):
            for j in range(0, 16, 2):
                wait((gi, j + 1))
                qk([16 * gi + j, 16 * gi + j + 1])
                if gi == 0:
                    want = j + 2 if (j < 8 or pre == 1) else 8
                elif gi == 1:
                    want = 8 + j // 2 + 1
                else:
                    want = 16
                while nxt < want:
                    load(nxt, "s[8:11]", None, (pre, nxt)); nxt += 1
            A("s_nop 0")
            treduce(S + 8 - pre + gi)
        assert nxt == 16
        for j in range(16 - DK):
            wait((pre, j))
            qk([j])
        A(f"s_mov_b32 s54, {pre}")
        A("s_branch L_kmid")
        A("L_kloop:")
        A("s_cmp_eq_u32 s54, s60")
        A("s_cbranch_scc1 L_burst")
        A("L_nobu:")
        for j in range(16 - DK):
            swait(DK, DK - self.adel)
            load(j + DK, "s[8:11]")
            qk([j])
        A("L_kmid:")
        if self.prog:
            A("s_memrealtime s[90:91]")
        C("the rest refills from the next group (V group 0 after the last K group)")
        nextgroup()
        A("s_and_b32 s51, s50, 0x7ffff")
        A("s_cmp_eq_u32 s54, 7")
        A("s_cselect_b32 s44, s12, s8"); A("s_cselect_b32 s45, s13, s9")
        for j in range(16 - DK, 16):
            swait(DK, DK - self.adel)
            load(j + DK - 16, "s[44:47]", "s51")
            qk([j])
        if self.prog:
            A("s_waitcnt lgkmcnt(0)")
            A("s_mov_b32 m0, s54"); A("s_nop 0")
            A("v_writelane_b32 v60, s90, m0")
        for i in range(7):
            A(f"v_mov_b32 v{S+i}, v{S+i+1}")
        treduce(S + 7, ("s_add_u32 s54, s54, 1", "s_cmp_lt_u32 s54, 8"))
        A("s_cbranch_scc1 L_kloop")
        for j in range(DK, DV):
            load(j, "s[12:15]", "s51")
        C("softmax over this row's 128 keys (true max of the partial; partials are merged exactly later)")
        M, Ls = 14, 15
        cs = math.log2(math.e) / math.sqrt(128.0)
        A(f"s_mov_b32 s58, {f32(cs)}")
        A(f"v_max3_f32 v{M}, v{S}, v{S+1}, v{S+2}")
        A(f"v_max3_f32 v{M}, v{M}, v{S+3}, v{S+4}")
        A(f"v_max3_f32 v{M}, v{M}, v{S+5}, v{S+6}")
        A(f"v_max_f32 v{M}, v{M}, v{S+7}")
        self.row_allreduce("max", M)
        A(f"v_mul_f32 v{M}, s58, v{M}")
        for i in range(8):
            A(f"v_fma_f32 v{S+i}, v{S+i}, s58, -v{M}")
        for i in range(8):
            A(f"v_exp_f32 v{S+i}, v{S+i}")
        for i in range(8):
            A(f"v_mov_b32 v{ACC+i}, 0")
        A(f"v_add_f32 v{Ls}, v{S}, v{S+1}")
        for i in range(2, 8):
            A(f"v_add_f32 v{Ls}, v{Ls}, v{S+i}")
        self.row_allreduce("add", Ls)
        A(f"v_lshlrev_b32 v16, 2, v6")
        A("v_lshlrev_b32 v18, 2, v0")
        A(f"ds_write_b32 v18, v{S+7} offset:{PL}")
        A(f"v_min_u32 v{M}, -2, v{M}")
        A(f"v_min_u32 v{Ls}, -2, v{Ls}")
        A(f"ds_write_b32 v16, v{M} offset:{MLM}")
        A(f"ds_write_b32 v16, v{Ls} offset:{MLL}")
        A("s_mov_b32 s54, 0")
        A(f"s_mov_b32 s50, {DV*256}")
        A("v_and_b32 v19, 0xfc, v18"); A("v_mov_b32 v56, 1")
        if self.ctl:
            A("v_mov_b32 v59, 0"); A(f"s_mov_b32 s62, {self.cu0}"); A(f"v_mov_b32 v61, {self.cu0}")
        A(f"s_mov_b32 s61, {144 - DV}")
        def pv(slot):
            r = RING + 4 * slot
            for d in range(4):
                A(f"v_dot2c_f32_bf16_dpp v{ACC+2*d}, v{PLO}, v{r+d} row_newbcast:{slot} row_mask:0xf bank_mask:0xf")
                A(f"v_dot2c_f32_bf16_dpp v{ACC+2*d+1}, v{PHI}, v{r+d} row_newbcast:{slot} row_mask:0xf bank_mask:0xf")
        A("L_vloop:")
        A("s_cmp_lg_u32 s54, 6")
        A("s_cbranch_scc1 L_nocf")
        C("from here on everything is scaled to the final softmax weights of the head")
        C("v17: dimension pair of lane (g,c) after the row reduction: 4c + 2(g&1) + (g>>1)")
        A("v_and_b32 v17, 1, v6"); A("v_lshl_add_u32 v17, v17, 3, v7")
        A("v_bfe_u32 v21, v6, 1, 1"); A("v_lshl_add_u32 v17, v21, 2, v17")
        A("s_lshl_b32 s42, s3, 9"); A("v_lshl_add_u32 v17, v17, 1, s42")
        A("s_lshl_b32 s42, s59, 8"); A(f"s_add_u32 s42, s42, {WS_O:#x}")
        A("v_lshlrev_b32 v22, 1, v19"); A("v_add_u32 v21, s42, v19")
        self.spin_begin("L_sp_cf")
        A(f"ds_read_b32 v57, v16 offset:{CFL}")
        A("s_waitcnt lgkmcnt(0)")
        A("v_cmp_eq_u32 vcc, -1, v57")
        A("s_cbranch_vccz L_sp_cf_done")
        self.spin_end("L_sp_cf", 1)
        A("L_sp_cf_done:")
        for r in list(range(ACC, ACC + 8)) + [S, S + 1]:
            A(f"v_mul_f32 v{r}, v57, v{r}")
        if not self.ctl:
            A("s_cmp_lg_u32 s94, 0")
            A("s_cselect_b64 vcc, -1, 0")
        A("L_nocf:")
        A("s_waitcnt lgkmcnt(0)")
        A(f"v_cvt_pk_bf16_f32 v{PLO}, v{S}, 0")
        A(f"v_cvt_pk_bf16_f32 v{PHI}, 0, v{S}")
        for i in range(7):
            A(f"v_mov_b32 v{S+i}, v{S+i+1}")
        for j in range(16):
            if j == 16 - DV:
                if self.prog:
                    A("s_memrealtime s[90:91]")
                    A("s_add_u32 m0, s54, 8")
                    A("s_waitcnt lgkmcnt(0)")
                    A("v_writelane_b32 v60, s90, m0")
                A("s_add_u32 s50, s50, 0xf000")
                A("s_sub_u32 s42, s54, 6")
                A("s_cmp_gt_u32 s42, 1")
                A("s_cbranch_scc1 L_nodec")
                C("number of slots this WG works on: fewer when it hands some over, more when it takes some")
                A("s_lshl_b32 s42, s42, 2")
                A("v_mov_b32 v58, s42")
                self.spin_begin("L_sp_dec")
                A(f"ds_read_b32 v57, v58 offset:{DEC}")
                A("s_waitcnt lgkmcnt(0)")
                A("v_readfirstlane_b32 s61, v57")
                A("s_cmp_lg_u32 s61, -1")
                A("s_cbranch_scc1 L_sp_dec_done")
                self.spin_end("L_sp_dec", 1)
                A("L_sp_dec_done:")
                A("s_max_i32 s61, s61, 112"); A("s_min_i32 s61, s61, 144")
                A("s_sub_u32 s42, 144, s61")
                A("s_lshl_b32 s43, s54, 4"); A(f"s_add_u32 s43, s43, {DV}"); A("s_sub_u32 s61, s61, s43")
                A("s_cmp_lg_u32 s54, 7")
                A("s_cbranch_scc1 L_nodec")
                C("the slots taken over are the last ones of the other side's last group")
                A("s_xor_b32 s7, s7, 0x80000")
                A("s_add_u32 s12, s20, s7"); A("s_addc_u32 s13, s21, 0")
                A("s_lshl_b32 s50, s42, 8"); A("s_add_u32 s50, s50, 0x70000")
                A("v_lshl_add_u32 v58, s42, 2, v18")
                A(f"ds_read_b32 v{S}, v58 offset:{PL}")
                A("L_nodec:")
            A("s_xor_b32 s51, s50, s6")
            A("s_addk_i32 s50, 0x100")
            A(f"s_cmp_gt_i32 s61, {j}")
            A("s_cselect_b32 s51, s51, s14")
            if self.ctl:
                cwait(DV, j)
            else:
                swait(DV, DV - self.adel)
            load((j + DV) % 16, "s[12:15]", "s51", imm=False)
            pv(j)
            if j % self.pstep == 0:
                A(f"ds_add_u32 v19, v56 offset:{PRG}")
            if self.ctl and j % 2 == 1:
                A(f"ds_read_b32 v61, v59 offset:{RK}")
            if self.ctl and j % 2 == 0:
                A("s_waitcnt lgkmcnt(1)")
                A("v_readfirstlane_b32 s62, v61")
            A(f"s_cmp_le_i32 s61, {j + 1 - DV}")
            A("s_cbranch_scc1 L_vdone")
        A("s_add_u32 s54, s54, 1")
        A("s_sub_u32 s61, s61, 16")
        A("s_branch L_vloop")
        A("L_vdone:")
        self.stamp(4)
        A("s_nop 1")
        C("rows are added in the wave, waves in LDS; whoever comes last publishes the sum")
        for d in (0, 1, 4, 5):
            A(f"v_permlane32_swap_b32 v{ACC+d}, v{ACC+d+2}")
        for d in (0, 4):
            A(f"v_pk_add_f32 v[{ACC+d}:{ACC+d+1}], v[{ACC+d}:{ACC+d+1}], v[{ACC+d+2}:{ACC+d+3}]")
        A("s_nop 1")
        for d in (0, 1):
            A(f"v_permlane16_swap_b32 v{ACC+d}, v{ACC+d+4}")
        A(f"v_pk_add_f32 v[{ACC}:{ACC+1}], v[{ACC}:{ACC+1}], v[{ACC+4}:{ACC+5}]")
        A(f"ds_write_b64 v17, v[{ACC}:{ACC+1}] offset:{OA}")
        A(f"ds_add_rtn_u32 v20, v19, v56 offset:{OC}")
        A(f"ds_read2st64_b64 v[24:27], v22 offset0:{OA//512} offset1:{OA//512+1}")
        A(f"ds_read2st64_b64 v[28:31], v22 offset0:{OA//512+2} offset1:{OA//512+3}")
        A("s_waitcnt lgkmcnt(1)")
        A("v_cmpx_eq_u32 vcc, 3, v20")
        A("v_pk_add_f32 v[24:25], v[24:25], v[26:27]")
        A("s_waitcnt lgkmcnt(0)")
        A("v_pk_add_f32 v[28:29], v[28:29], v[30:31]")
        A("v_pk_add_f32 v[24:25], v[24:25], v[28:29]")
        A("v_cvt_pk_bf16_f32 v22, v24, v25")
        A("v_min_u32 v22, -2, v22")
        A("global_store_dword v21, v22, s[40:41] sc1")
        self.stamp(3)
        A("s_mov_b64 exec, -1")
        A("s_cmp_lg_u32 s94, 0")
        A("s_cbranch_scc1 L_proj")
        if self.fine:
            A("s_waitcnt vmcnt(0)")
            self.stamp(8)
        if self.diag:
            A("s_branch L_hend")
        else:
            A("s_endpgm")

    TB = 100
    def tag4(self, R, n=4):
        for i in range(n):
            self.A(f"v_and_or_b32 v{R+i}, v{R+i}, v15, s{96 + i % 4}")
    def chk(self, acc, R, n, D=None):
        D = R if D is None else D
        for i in range(n):
            self.A(f"v_xor_b32 v{D+i}, s{96 + i % 4}, v{R+i}")
        self.A(f"v_or3_b32 v{acc}, v{D}, v{D+1}, v{D+2}")
        i = 3
        while i < n:
            if i + 1 < n:
                self.A(f"v_or3_b32 v{acc}, v{acc}, v{D+i}, v{D+i+1}"); i += 2
            else:
                self.A(f"v_or_b32 v{acc}, v{acc}, v{D+i}"); i += 1
    def chk_branch(self, acc, lab, sleep):
        A = self.A
        A(f"v_cmp_ne_u32_sdwa vcc, v{acc}, v10 src0_sel:BYTE_0 src1_sel:DWORD")
        A(f"s_cbranch_vccz {lab}_done")
        self.spin_end(lab, sleep)
        A(f"{lab}_done:")

    def set_tag(self):
        for k in range(4):
            self.A(f"s_bfe_u32 s{96+k}, s63, {0x80000 + 8*k:#x}")

    def control5(self):
        A, C = self.A, self.C
        ps, DV = self.pstep, self.DV
        c0 = self.cc0 * 4 // ps
        A("s_cmp_lg_u32 s7, 0")
        A("s_cbranch_scc1 L_noctl")
        C("helper 0: the number of loads in flight follows this WG's lag behind the WGs it shares a progress line with")
        if self.diag:
            A("s_mov_b32 s86, 0"); A("s_mov_b32 s87, 0")
        A("s_and_b32 s42, s2, 7"); A(f"s_mul_i32 s42, s42, {self.bst}"); A(f"s_add_u32 s42, s42, {WS_RP:#x}")
        A("v_lshl_add_u32 v12, v4, 2, s42")
        A("s_lshr_b32 s43, s2, 3"); A("s_lshl2_add_u32 s42, s43, s42")
        A("v_mov_b32 v14, s42")
        A(f"s_mov_b32 s45, {self.cu0}")
        A("s_cmp_lg_u32 s94, 0")
        A(f"s_cselect_b32 s61, {self.cbias}, 0")
        A(f"s_mov_b32 s55, {SPIN_MAX}")
        A("s_mov_b32 exec_hi, 0")
        A("L_ctl:")
        if self.csl:
            A(f"s_sleep {self.csl}")
        A(f"ds_read_b32 v13, v10 offset:{PRG}")
        A(f"s_sub_u32 s46, {4*DV+64}, s45")
        A("s_lshr_b32 s46, s46, 1")
        A("s_sub_u32 s46, s46, s61")
        A("s_waitcnt lgkmcnt(0)")
        A("v_readfirstlane_b32 s47, v13")
        A("s_add_u32 s42, s47, s46")
        A("s_xor_b32 s43, s42, s63")
        A("v_mov_b32 v13, s43")
        A("s_mov_b32 exec_lo, 1")
        A("global_store_dword v14, v13, s[40:41]")
        A(f"s_cmp_ge_u32 s47, {self.clim*4//ps}")
        A("s_cbranch_scc1 L_ctl2")
        A("s_mov_b32 exec_lo, -1")
        A("global_load_dword v11, v12, s[40:41] sc1")
        A(f"s_sub_u32 s42, s42, {self.cb}")
        A("s_waitcnt vmcnt(0)")
        A("v_xor_b32 v11, s63, v11")
        A("v_cmp_gt_u32 vcc, 0x400, v11")
        A("v_subrev_u32 v11, s42, v11")
        A("v_cndmask_b32 v11, 0, v11, vcc")
        for m in ("quad_perm:[1,0,3,2]", "quad_perm:[2,3,0,1]", "row_half_mirror", "row_mirror"):
            A("s_nop 1")
            A(f"v_add_u32_dpp v11, v11, v11 {m} row_mask:0xf bank_mask:0xf")
        A(f"s_cmp_lt_u32 s47, {c0}")
        A("s_cbranch_scc1 L_ctl3")
        A("v_readlane_b32 s43, v11, 0")
        A("v_readlane_b32 s42, v11, 16")
        A("s_add_i32 s42, s43, s42")
        A(f"s_mul_i32 s42, s42, {self.cg}")
        A(f"s_add_i32 s42, s42, {1 << 8}")
        A(f"s_ashr_i32 s42, s42, 9")
        A(f"s_add_i32 s45, s42, {self.cu0}")
        A(f"s_max_i32 s45, s45, {self.culo}"); A(f"s_min_i32 s45, s45, {self.cuhi}")
        A("v_mov_b32 v13, s45")
        A(f"ds_write_b32 v10, v13 offset:{RK}")
        if self.diag:
            A("s_add_u32 s86, s86, s45"); A("s_add_u32 s87, s87, 1")
        A("s_branch L_ctl3")
        A("L_ctl2:")
        A(f"s_sleep {self.rsl}")
        A("L_ctl3:")
        A("s_sub_u32 s55, s55, 1")
        A("s_cbranch_scc1 L_ctl4")
        A(f"s_cmp_lt_u32 s47, {self.cend*4//ps}")
        A("s_cbranch_scc1 L_ctl")
        A("L_ctl4:")
        A("s_mov_b64 exec, -1")
        A("L_noctl:")

    BB = 128
    def burst(self):
        A, C = self.A, self.C
        BB = self.BB
        A("L_burst:")
        C("this WG projects batch row s92 onto the columns 32 s93..; wave w holds the wo rows of the heads 4w..")
        A("s_bfe_u32 s92, s2, 0x20005")
        A("s_bfe_u32 s93, s2, 0x20003"); A("s_and_b32 s42, s2, 6"); A("s_lshl1_add_u32 s93, s42, s93")
        C("row 64(kk>>1) + 4(kk&1) + 8(c>>2) + 32((e>>1)&1) + 2(e>>2) + (e&1), columns 8(c&3)..")
        A("v_and_b32 v1, 0x2c, v0"); A("v_lshlrev_b32 v1, 11, v1")
        A("v_and_b32 v62, 16, v0"); A("v_lshl_add_u32 v1, v62, 8, v1")
        A("v_and_b32 v63, 3, v0"); A("v_lshl_add_u32 v1, v63, 4, v1")
        A("s_lshl_b32 s28, s3, 19"); A("s_lshl_b32 s42, s93, 6"); A("s_add_u32 s28, s28, s42")
        A("s_add_u32 s29, s28, 0x8000")
        A(f"s_mov_b32 s26, {0 if 'wo' in self.skip else 0x400000:#x}"); A("s_mov_b32 s27, 0x20000")
        A("s_mov_b32 s48, 0x05040100"); A("s_mov_b32 s49, 0x07060302")
        A("s_mov_b64 s[100:101], -1")
        A("s_barrier")
        self.stamp(10)
        stage = [[BB + 64 + 4 * e for e in range(8)], [BB + 96 + 4 * e for e in range(8)], [96 + 4 * e for e in range(8)],
                 [16, 20, 24, 28, 32, 36, 48, 52]]
        for s in range(4):
            for e in range(8):
                r = stage[s][e]
                A(f"buffer_load_dwordx4 v[{r}:{r+3}], v1, s[24:27], s{28 + ((e >> 1) & 1)} offen offset:{(2*(e >> 2) + (e & 1))*1024}")
            if s < 3:
                A("s_add_u32 s28, s28, 0x20000"); A("s_add_u32 s29, s29, 0x20000")
        C("v62: record piece of lane (hh, kl, side, par, ch): O[b][4w + 2m + hh][side] + 16(8kl + 4par + ch)")
        A("s_lshl_b32 s42, s92, 14"); A("s_lshl_b32 s43, s3, 11"); A("s_add_u32 s42, s42, s43"); A(f"s_add_u32 s42, s42, {WS_O:#x}")
        A("v_lshl_add_u32 v62, v62, 3, s42")
        A("v_and_b32 v63, 0x27, v0"); A("v_lshl_add_u32 v62, v63, 4, v62")
        A("v_and_b32 v63, 8, v0"); A("v_lshl_add_u32 v62, v63, 5, v62")
        C("v63: 2:4 pattern of A row i: the first two of every four k for (i&4) == 0, else the last two")
        A("v_bfe_u32 v63, v0, 2, 1")
        A("v_mul_u32_u24 v63, 0xaaaa, v63")
        A("v_add_u32 v63, 0x4444, v63")
        for s in range(4):
            A(f"s_waitcnt vmcnt({24 - 8*s})")
            if s == 3 and self.b2:
                A("s_barrier")
            self.slabperm(BB + 64 * (s >> 1) + 4 * (s & 1), stage[s], 8)
        A("s_cmp_lt_u32 s3, 4")
        A("s_cbranch_scc1 L_nobu")

    def project(self):
        A, C = self.A, self.C
        BB, LR, D, T = self.BB, 40, 64, 96
        def ld(m):
            A(f"global_load_dwordx4 v[{LR+4*m}:{LR+4*m+3}], v62, s[40:41] offset:{1024*m} sc1")
        def chk(m):
            r = LR + 4 * m
            A(f"v_max3_u32 v13, v{r}, v{r+1}, v{r+2}")
            A(f"v_max_u32 v13, v13, v{r+3}")
            A("v_cmp_eq_u32 vcc, -1, v13")
        def f1(q, bk):
            d = D + 4 * (q + 4 * (bk >> 1))
            A(f"v_add_f32_dpp v{T+q}, v{d + (bk ^ 2)}, v{d + bk} row_ror:8 row_mask:0xf bank_mask:{1 << bk:#x}")
        def mf(m, last):
            if self.fine:
                A(f"s_memrealtime s[{16+2*m}:{17+2*m}]")
            for k in range(8):
                a = (k >> 1) + 4 * (k & 1)
                d, b = D + 4 * a, BB + 64 * m + 8 * a
                A(f"v_smfmac_f32_16x16x64_bf16 v[{d}:{d+3}], v[{LR+4*m}:{LR+4*m+3}], v[{b}:{b+7}], v63")
                if last and k >= 3:
                    for bk in range(2):
                        f1((k - 3) >> 1, 2 * ((k - 3) & 1) + bk)
        def tight(m):
            A(f"L_t{m}:")
            ld(m)
            A("s_sub_u32 s55, s55, 1")
            A(f"s_cbranch_scc1 L_f{m}")
            A(f"s_waitcnt vmcnt({self.pd1-1})")
            chk(m)
            A(f"s_cbranch_vccnz L_t{m}")
            A(f"L_f{m}:")
        A("L_proj:")
        self.stamp(12)
        C("the records of two pairs of heads are re-read until they are complete; several reads are kept in flight")
        for i in range(0, 8, 2):
            A(f"v_mov_b64 v[{LR+i}:{LR+i+1}], -1")
        ld(0); ld(1)
        for i in range(0, 32, 2):
            A(f"v_mov_b64 v[{D+i}:{D+i+1}], 0")
        C("v26: slot of this lane's sum: column 8(l&3) + 2((l>>2)&3) + (l>>5), wave, (l>>4)&1")
        A("v_and_b32 v26, 3, v0"); A("v_bfe_u32 v27, v0, 2, 2"); A("v_lshl_add_u32 v26, v26, 2, v27")
        A("v_bfe_u32 v27, v0, 5, 1"); A("v_lshl_add_u32 v26, v26, 1, v27")
        A(f"v_mul_u32_u24 v26, {FAS}, v26")
        A("v_bfe_u32 v27, v0, 4, 1"); A("v_lshl_add_u32 v26, v27, 2, v26")
        A("v_lshl_add_u32 v26, s3, 3, v26")
        A("v_bfe_u32 v28, v0, 1, 5")
        A(f"v_mul_u32_u24 v27, {FAS}, v28")
        A("v_and_b32 v29, 1, v0"); A("v_lshl_add_u32 v27, v29, 5, v27")
        A("s_lshl4_add_u32 s42, s92, s93"); A("s_lshl_b32 s42, s42, 6")
        A("v_lshl_add_u32 v29, v28, 1, s42")
        A("v_lshlrev_b32 v28, 3, v28")
        A("v_and_b32 v30, 63, v0"); A("v_lshlrev_b32 v30, 2, v30")
        A("v_mov_b32 v31, 1")
        A(f"s_mov_b32 s55, {SPIN_MAX*8}")
        A("s_mov_b64 exec, s[100:101]")
        A("L_two:")
        for m in range(2):
            A(f"s_waitcnt vmcnt({self.pd-1})")
            chk(m)
            A(f"s_cbranch_vccz L_h{m}")
            ld(m)
        A("s_sub_u32 s55, s55, 1")
        A("s_cbranch_scc0 L_two")
        A("L_h1:")
        mf(1, False)
        chk(0)
        A("s_cbranch_vccz L_f0")
        tight(0)
        mf(0, True)
        A("s_branch L_fold")
        A("L_h0:")
        mf(0, False)
        chk(1)
        A("s_cbranch_vccz L_f1")
        tight(1)
        mf(1, True)
        A("L_fold:")
        self.stamp(13)
        C("D row 4g + ch is valid in the lanes with (l>>2)&3 == ch")
        for q in range(2):
            A(f"v_add_f32_dpp v{T+4+q}, v{T+q}, v{T+q} row_shl:4 row_mask:0xf bank_mask:0x5")
        for q, bk in ((2, 2), (2, 3), (3, 0), (3, 1), (3, 2), (3, 3)):
            f1(q, bk)
        A(f"v_add_f32_dpp v{T+4}, v{T+2}, v{T+2} row_shr:4 row_mask:0xf bank_mask:0xa")
        A("s_nop 0")
        A(f"v_add_f32_dpp v{T+5}, v{T+3}, v{T+3} row_shr:4 row_mask:0xf bank_mask:0xa")
        A("s_nop 1")
        A(f"v_permlane32_swap_b32 v{T+4}, v{T+5}")
        A(f"v_add_f32 v{T+4}, v{T+4}, v{T+5}")
        A(f"ds_write_b32 v26, v{T+4} offset:{FA}")
        A(f"ds_add_rtn_u32 v31, v30, v31 offset:{FC}")
        A(f"ds_read_b128 v[{T+8}:{T+11}], v27 offset:{FA}")
        A(f"ds_read_b128 v[{T+12}:{T+15}], v27 offset:{FA+16}")
        A(f"ds_read_b64 v[{T+6}:{T+7}], v28 offset:{GX}")
        A("s_waitcnt lgkmcnt(2)")
        A(f"v_pk_add_f32 v[{T+8}:{T+9}], v[{T+8}:{T+9}], v[{T+10}:{T+11}]")
        A("s_waitcnt lgkmcnt(1)")
        A(f"v_pk_add_f32 v[{T+12}:{T+13}], v[{T+12}:{T+13}], v[{T+14}:{T+15}]")
        A(f"v_pk_add_f32 v[{T+8}:{T+9}], v[{T+8}:{T+9}], v[{T+12}:{T+13}]")
        A(f"v_add_f32 v{T}, v{T+8}, v{T+9}")
        A("s_waitcnt lgkmcnt(0)")
        A("s_nop 0")
        A(f"v_add_f32_dpp v{T}, v{T}, v{T} quad_perm:[1,0,3,2] row_mask:0xf bank_mask:0xf")
        A("v_cmpx_eq_u32 vcc, 7, v31")
        self.rnd(T, T)
        A(f"v_mul_f32 v{T}, v{T}, v{T+6}")
        self.rnd(T, T)
        A(f"v_add_f32 v{T}, v{T}, v{T+7}")
        A(f"v_cvt_pk_bf16_f32 v{T}, v{T}, 0")
        A(f"global_store_short v29, v{T}, s[36:37]")
        self.stamp(9)
        if self.dry:
            A("s_cmp_gt_u32 s94, 1")
            A("s_cbranch_scc1 L_dry")
        A(f"s_cmp_lg_u32 s2, {254 + self.cpar}")
        A("s_cbranch_scc1 L_nobump")
        A("s_and_b64 exec, exec, 1")
        A("s_cbranch_scc0 L_nobump")
        C("every reader of the tag word is done by now (this wave has seen data that depends on all of them)")
        A(f"ds_read_b32 v13, v30 offset:{TAGL}")
        A(f"v_mov_b32 v12, {WS_EP:#x}")
        A("s_waitcnt lgkmcnt(0)")
        A("global_store_dword v12, v13, s[40:41] sc1")
        A("L_nobump:")
        if self.diag:
            A("s_mov_b64 exec, -1")
        if self.fine:
            A("s_sleep 127"); A("s_sleep 127")
            A("s_waitcnt lgkmcnt(0)")
            A("s_lshl3_add_u32 s42, s2, s3"); A("s_lshl_b32 s42, s42, 4"); A(f"s_add_u32 s42, s42, {WS_DIAG + 0x100000:#x}")
            A("v_mov_b32 v12, s42")
            for m in range(2):
                A(f"v_mov_b32 v16, s{16+2*m}"); A(f"v_mov_b32 v17, s{17+2*m}")
                A(f"global_store_dwordx2 v12, v[16:17], s[40:41] offset:{8*m}")

    def helper(self):
        A, C = self.A, self.C
        mf = self.mflags
        RA, RD = 16, 32
        RB = 64
        ST = 192
        T = 224
        A("L_helper:")
        C("===== helper waves =====")
        A("s_sub_u32 s7, s3, 4")
        A("v_bfe_u32 v3, v0, 4, 2")
        A("v_and_b32 v4, 63, v0")
        A("s_bfe_u32 s4, s59, 0x50001")
        A("s_lshr_b32 s5, s2, 6")
        A("s_mov_b32 s48, 0x05040100"); A("s_mov_b32 s49, 0x07060302")
        A("v_lshlrev_b32 v6, 4, v4")
        A("v_mov_b32 v10, 0"); A("v_mov_b32 v62, 0")
        A("v_mov_b32 v15, 0xffffff00")
        A("s_mov_b32 s11, 0x20000"); A("s_mov_b32 s15, 0x20000")
        C("s62 = MLP unit of this WG (>= NUNIT: none)")
        A("s_lshr_b32 s62, s2, 1")
        A("s_and_b32 s42, s2, 1"); A(f"s_cmp_eq_u32 s42, {self.mpar}")
        A("s_cselect_b32 s62, s62, 255")
        A("s_cmp_ge_u32 s7, 2")
        A("s_cbranch_scc1 L_nofront")
        A("s_cmp_eq_u32 s7, 0")
        A("s_cbranch_scc1 L_front")
        A(f"s_cmp_ge_u32 s62, {NUNIT}")
        A("s_cbranch_scc1 L_nofront")
        A("L_front:")
        A(f"s_setprio {self.fprio}")
        C("front units, 256 rows x 32 cols for all 4 batch rows. helper 0: wq rows 256(b>>1).., cols 32(4h + 2 side + (b&1))..")
        C("helper 1: w1 rows 256(u&1).., cols 32(4(u>>3) + (u&2) + ((u>>2)&1))..  The lane quads hold different 32-row blocks.")
        A("s_and_b32 s42, s59, 1"); A("s_and_b32 s61, s5, 1"); A("s_lshl1_add_u32 s61, s42, s61")
        A("s_lshl2_add_u32 s42, s4, s61")
        A("s_lshr_b32 s44, s62, 3"); A("s_and_b32 s43, s62, 2"); A("s_lshl2_add_u32 s44, s44, s43")
        A("s_bfe_u32 s43, s62, 0x10002"); A("s_add_u32 s44, s44, s43")
        A("s_and_b32 s43, s62, 1"); A("s_lshr_b32 s53, s5, 1")
        A("s_mov_b32 s51, 3584")
        A("s_cmp_eq_u32 s7, 0")
        A("s_cselect_b32 s53, s53, s43")
        A("s_cselect_b32 s60, s42, s44")
        A("s_cselect_b32 s51, 8192, s51")
        A("s_lshl_b32 s10, s51, 9")
        A("s_mul_i32 s52, s51, 121")
        A("s_mul_i32 s50, s53, s51"); A("s_lshl2_add_u32 s50, s50, s60"); A("s_lshl_b32 s50, s50, 6")
        A("s_lshl_b32 s42, s51, 3")
        A("v_and_b32 v12, 12, v2"); A("v_add_u32 v5, v12, v3")
        A("v_mul_u32_u24 v5, s42, v5")
        A("v_and_b32 v12, 3, v2")
        A("v_lshl_add_u32 v5, v12, 4, v5")
        A("v_lshlrev_b32 v12, 10, v3")
        A("v_lshl_add_u32 v12, v2, 4, v12")
        A("s_cmp_eq_u32 s7, 0")
        A("s_waitcnt lgkmcnt(0)")
        for t in range(4):
            A(f"global_load_dwordx4 v[{RB+32+4*t}:{RB+35+4*t}], v12, s[16:17] offset:{256*t}")
        C("the word the previous launch left only serves to pick a tag that differs from that launch's")
        A(f"s_load_dword s63, s[40:41], {WS_EP:#x}")
        A("s_cselect_b32 s8, s22, s28"); A("s_cselect_b32 s9, s23, s29")
        self.slabload(RB + 96, "s[8:11]", 5, "s51", mf, last_inc="s52")
        self.slabload(ST, "s[8:11]", 5, "s51", mf)
        A("s_lshl_b32 s42, s7, 12")
        A("v_add_u32 v12, s42, v12")
        A("v_lshrrev_b32 v13, 2, v2")
        A("v_lshlrev_b32 v13, 10, v13")
        A("v_lshl_add_u32 v13, v3, 4, v13")
        C("A operand: rows[i>>2][unit rows: slab n, 32-row block from the low bits of i, 8kk]")
        A("v_and_b32 v14, 3, v2"); A("v_lshl_add_u32 v13, v14, 6, v13")
        A("s_lshl_b32 s43, s53, 9"); A("s_add_u32 s42, s42, s43")
        A("v_add_u32 v13, s42, v13")
        A("s_mov_b32 s54, s7")
        A("s_waitcnt vmcnt(16)")
        self.stamp(1)
        A("L_ln:")
        self.unpack(RB, RB + 32, 16)
        self.layernorm(RB, 32, T, RB + 32, unpack_after=False)
        A("s_sub_u32 s54, s54, 1")
        A("s_cbranch_scc0 L_ln")
        for t in range(4):
            A(f"ds_write_b128 v12, v[{RB+32+4*t}:{RB+35+4*t}] offset:{XN + 256*t}")
        A("s_waitcnt vmcnt(8)")
        self.slabperm(RB + 64, RB + 96)
        A("s_waitcnt lgkmcnt(0)")
        A(f"ds_read_b128 v[{RA}:{RA+3}], v13 offset:{XN}")
        A(f"ds_read_b128 v[{RA+4}:{RA+7}], v13 offset:{XN+256}")
        A("s_add_u32 s63, s63, 0x61c88647")
        self.set_tag()
        A("s_waitcnt vmcnt(0)")
        self.slabperm(RB + 96, ST)
        A("s_waitcnt lgkmcnt(0)")
        self.slabmfma(RD, RA, RB + 64, True)
        self.slabmfma(RD, RA + 4, RB + 96, False)
        A("s_cmp_eq_u32 s7, 0")
        A("s_cbranch_scc1 L_qaddr")
        C("U[col block][row block][half=c>>3][b=kk][c&3][4]")
        A("s_lshl1_add_u32 s42, s60, s53"); A("s_lshl_b32 s42, s42, 9"); A(f"s_add_u32 s42, s42, {WS_U:#x}")
        A("v_lshrrev_b32 v12, 3, v2"); A("v_lshlrev_b32 v12, 8, v12")
        A("v_lshl_add_u32 v12, v3, 6, v12")
        A("v_and_b32 v13, 3, v2"); A("v_lshl_add_u32 v12, v13, 4, v12")
        A("s_branch L_fst")
        A("L_qaddr:")
        C("Q[h][b=kk][row block][col quarter][c&3][c>>3][4]")
        A("s_lshl_b32 s42, s4, 12"); A("s_lshl_b32 s43, s53, 9"); A("s_add_u32 s42, s42, s43")
        A("s_lshl_b32 s43, s61, 7"); A("s_add_u32 s42, s42, s43")
        A(f"s_add_u32 s42, s42, {WS_Q:#x}")
        A("v_lshlrev_b32 v12, 10, v3")
        A("v_and_b32 v13, 3, v2"); A("v_lshl_add_u32 v12, v13, 5, v12")
        A("v_lshrrev_b32 v13, 3, v2"); A("v_lshl_add_u32 v12, v13, 4, v12")
        A("L_fst:")
        A("v_add_u32 v12, s42, v12")
        self.fold4(T, RD)
        A(f"global_store_dwordx4 v12, v[{T}:{T+3}], s[40:41] sc1")
        A("s_mov_b64 exec, -1")
        self.stamp(2)
        A("s_cmp_lg_u32 s7, 0")
        A("s_cbranch_scc1 L_fdone")
        C("helper 0: gather the partials of q[b][h], LDS init")
        A("s_lshl_b32 s42, s4, 12"); A("s_lshl_b32 s43, s5, 10"); A("s_add_u32 s42, s42, s43")
        A(f"s_add_u32 s42, s42, {WS_Q:#x}")
        A("v_add_u32 v12, s42, v6")
        A("v_lshlrev_b32 v8, 2, v4")
        A("v_mov_b32 v9, -1")
        A(f"ds_write_b32 v8, v9 offset:{MLM}")
        A("v_mov_b32 v9, s63")
        A(f"ds_write_b32 v10, v9 offset:{TAGL}")
        A(f"ds_write_b32 v8, v10 offset:{PRG}")
        A(f"ds_write2st64_b32 v8, v10, v10 offset0:{OC//256} offset1:{FC//256}")
        if self.ctl:
            A(f"v_mov_b32 v9, {self.cu0}")
            A(f"ds_write_b32 v10, v9 offset:{RK}")
        A("v_and_b32 v9, 31, v4"); A("v_lshlrev_b32 v9, 3, v9")
        C("the partners publish at about the same time: look once the own stores are acknowledged")
        A("s_waitcnt vmcnt(0)")
        self.spin_begin("L_sp_q")
        A(f"global_load_dwordx4 v[{RD}:{RD+3}], v12, s[40:41] sc1")
        A("s_waitcnt vmcnt(0)")
        self.chk(13, RD, 4)
        self.chk_branch(13, "L_sp_q", self.qsleep)
        for d in range(4):
            A(f"v_mov_b32 v{RD+4+d}, v{RD+d}")
        A("s_nop 1")
        for d in range(4):
            A(f"v_permlane32_swap_b32 v{RD+d}, v{RD+4+d}")
        for d in range(4):
            A(f"v_add_f32 v{RD+d}, v{RD+d}, v{RD+4+d}")
        for d in range(2):
            A(f"v_cvt_pk_bf16_f32 v{RD+d}, v{RD+2*d}, v{RD+2*d+1}")
        A(f"ds_write_b64 v9, v[{RD}:{RD+1}] offset:{QP}")
        A("L_fdone:")
        A("s_setprio 0")
        A("L_nofront:")
        A("s_waitcnt lgkmcnt(0)")
        self.stamp(3)
        A("s_cmp_lg_u32 s7, 2")
        A("s_cbranch_scc1 L_noclr")
        C("helper 2 marks this WG's output record empty; nobody looks at it before this WG's softmax record is there")
        A("s_lshl_b32 s42, s59, 8"); A(f"s_add_u32 s42, s42, {WS_O:#x}")
        A("v_lshl_add_u32 v12, v4, 2, s42")
        A("v_mov_b32 v13, -1")
        A("global_store_dword v12, v13, s[40:41] sc1")
        A("L_noclr:")
        def prefetch():
            C("helpers 2 and 3 pull a part of the wo columns that the WGs of this class project with towards the L2")
            A("s_and_b32 s42, s2, 1"); A("s_lshl1_add_u32 s42, s7, s42"); A("s_and_b32 s42, s42, 5")
            A(f"s_cmp_lg_u32 s42, {4 | self.cpar}")
            A("s_cbranch_scc1 L_nopre")
            A("v_lshlrev_b32 v5, 4, v2"); A("v_lshl_or_b32 v5, v3, 14, v5")
            A("s_lshr_b32 s50, s2, 3"); A("s_lshl1_add_u32 s50, s50, s7"); A("s_sub_u32 s50, s50, 2"); A("s_lshl_b32 s50, s50, 16")
            A("s_and_b32 s42, s2, 6"); A("s_lshl_b32 s42, s42, 7"); A("s_add_u32 s50, s50, s42")
            A("s_mov_b32 s26, 0x400000"); A("s_mov_b32 s27, 0x20000")
            A("s_mov_b32 s54, 3")
            A("L_pre:")
            for n in range(4):
                A(f"buffer_load_dwordx4 v[{ST}:{ST+3}], v5, s[24:27], s50 offen offset:{n*1024}")
                A(f"s_waitcnt vmcnt({self.wpre-1})")
            A("s_add_u32 s50, s50, 0x1000")
            A("s_sub_u32 s54, s54, 1")
            A("s_cbranch_scc0 L_pre")
            self.stamp(2)
            A("L_nopre:")
        if self.wpre and not self.wlate:
            prefetch()
        self.is_cons()
        A("s_barrier")
        if self.wpre and self.wlate:
            prefetch()
        A(f"ds_read_b32 v13, v10 offset:{TAGL}")
        A("s_waitcnt lgkmcnt(0)")
        A("v_readfirstlane_b32 s63, v13")
        self.set_tag()
        A("s_cmp_lg_u32 s7, 1")
        A("s_cbranch_scc1 L_not1")
        A(f"s_cmp_ge_u32 s62, {NUNIT}")
        A("s_cbranch_scc1 L_not1")
        C("stage 2 unit: r = u>>4 (hidden rows 256r..), cq = (u&8) + 2(u&3) + ((u>>2)&1) (cols 32cq..)")
        A("s_lshr_b32 s60, s62, 4"); A("s_and_b32 s61, s62, 3"); A("s_and_b32 s43, s62, 8"); A("s_lshl1_add_u32 s61, s61, s43")
        A("s_bfe_u32 s43, s62, 0x10002"); A("s_add_u32 s61, s61, s43")
        A("s_lshl_b32 s50, s60, 18"); A("s_lshl_b32 s43, s61, 6"); A("s_add_u32 s50, s50, s43")
        A("v_and_b32 v12, 12, v2"); A("v_add_u32 v14, v12, v3"); A("v_lshlrev_b32 v14, 13, v14")
        A("v_and_b32 v12, 3, v2"); A("v_lshl_add_u32 v14, v12, 4, v14")
        A("s_mov_b32 s12, s32"); A("s_mov_b32 s13, s33"); A(f"s_mov_b32 s14, {1792*1024}")
        self.slabload(ST, "s[12:15]", 14, 1024, mf, last_inc=121 * 1024, pace=self.w2p)
        self.slabload(RD, "s[12:15]", 14, 1024, mf, pace=self.w2p, cont=True)
        A("s_lshl_b32 s43, s60, 9")
        A("v_lshlrev_b32 v13, 4, v3")
        A("v_and_b32 v12, 3, v2"); A("v_lshl_add_u32 v13, v12, 6, v13")
        A("v_add_u32 v13, s43, v13")
        A(f"global_load_dwordx4 v[{T+16}:{T+19}], v13, s[30:31]")
        A(f"global_load_dwordx4 v[{T+20}:{T+23}], v13, s[30:31] offset:256")
        UU, W, BB = RB + 64, RB + 80, RB + 112
        C("U[8r + 4n + (c&3)][t][half][b=c>>2][kk][4]")
        A("v_and_b32 v12, 3, v2"); A("v_lshlrev_b32 v12, 10, v12")
        A("v_lshrrev_b32 v13, 2, v2"); A("v_lshl_add_u32 v12, v13, 6, v12")
        A("v_lshl_add_u32 v12, v3, 4, v12")
        A("s_lshl_b32 s42, s60, 13")
        A(f"s_add_u32 s42, s42, {WS_U:#x}")
        A(f"v_add_u32 v{T}, s42, v12")
        A(f"v_add_u32 v{T+1}, 0x1000, v{T}")
        lds_ = [(UU + 16*t + 8*n + 4*hf, T + n, 512*t + 256*hf) for t in range(2) for n in range(2) for hf in range(2)]
        self.spin_begin("L_sp_u")
        for r, v, o in lds_:
            A(f"global_load_dwordx4 v[{r}:{r+3}], v{v}, s[40:41] offset:{o} sc1")
        A("s_waitcnt vmcnt(0)")
        self.chk(13, UU, 32)
        self.chk_branch(13, "L_sp_u", 32)
        self.unpack(BB, T + 16, 8)
        for i in range(16):
            A(f"v_add_f32 v{UU+i}, v{UU+i}, v{UU+16+i}")
        for i in range(16):
            self.rnd(UU + i, UU + i)
        for i in range(16):
            A(f"v_add_f32 v{UU+i}, v{UU+i}, v{BB+i}")
        for i in range(16):
            self.rnd(UU + i, UU + i)
        C("gelu(tanh form) = u / (1 + exp(-2k(u + 0.044715 u^3)))")
        k2 = -2.0 * math.sqrt(2.0 / math.pi) * math.log2(math.e)
        A(f"s_mov_b32 s42, {f32(0.044715 * k2)}"); A(f"s_mov_b32 s43, {f32(k2)}")
        A("v_mov_b32 v12, s43")
        for i in range(16):
            A(f"v_mul_f32 v{W+i}, v{UU+i}, v{UU+i}")
        for i in range(16):
            A(f"v_fma_f32 v{W+i}, v{W+i}, s42, v12")
        for i in range(16):
            A(f"v_mul_f32 v{W+i}, v{W+i}, v{UU+i}")
        for i in range(16):
            A(f"v_exp_f32 v{W+i}, v{W+i}")
        for i in range(16):
            A(f"v_add_f32 v{W+i}, 1.0, v{W+i}")
        for i in range(16):
            A(f"v_rcp_f32 v{W+i}, v{W+i}")
        for i in range(16):
            A(f"v_mul_f32 v{UU+i}, v{UU+i}, v{W+i}")
        for d in range(8):
            A(f"v_cvt_pk_bf16_f32 v{RA+d}, v{UU+2*d}, v{UU+2*d+1}")
        self.slabperm(RB + 64, ST)
        self.slabperm(RB + 96, RD)
        self.slabmfma(RD, RA, RB + 64, True)
        self.slabmfma(RD, RA + 4, RB + 96, False)
        C("Z[b=kk][cq][r][half=c>>3][c&3][4]")
        A(f"v_mul_u32_u24 v12, {16*NZ*128}, v3")
        A("v_lshrrev_b32 v13, 3, v2")
        A("v_lshl_add_u32 v12, v13, 6, v12")
        A("v_and_b32 v13, 3, v2")
        A("v_lshl_add_u32 v12, v13, 4, v12")
        A(f"s_mul_i32 s42, s61, {NZ*128}"); A("s_lshl_b32 s43, s60, 7"); A("s_add_u32 s42, s42, s43")
        A(f"s_add_u32 s42, s42, {WS_Z:#x}")
        A("v_add_u32 v12, s42, v12")
        self.fold4(T, RD)
        A(f"global_store_dwordx4 v12, v[{T}:{T+3}], s[40:41] sc1")
        A("s_mov_b64 exec, -1")
        A("L_not1:")
        A("s_cmp_eq_u32 s94, 0")
        A("s_cbranch_scc1 L_nowo")
        self.burst()
        A("L_nowo:")
        self.stamp(4)
        T = 96
        if self.ctl:
            self.control5()
        A("s_cmp_lg_u32 s7, 2")
        A("s_cbranch_scc1 L_nopub")
        C("helper 2: softmax bookkeeping with the other side of this head")
        A("v_lshlrev_b32 v12, 2, v2")
        self.spin_begin("L_sp_m")
        A(f"ds_read_b32 v14, v12 offset:{MLM}")
        A(f"ds_read_b32 v11, v12 offset:{MLL}")
        A("s_waitcnt lgkmcnt(0)")
        A("v_max_u32 v13, v14, v11")
        A("v_cmp_eq_u32 vcc, -1, v13")
        A("s_cbranch_vccz L_sp_m_done")
        self.spin_end("L_sp_m", 4)
        A("L_sp_m_done:")
        PW = T + 8
        A(f"ds_read_b128 v[{PW}:{PW+3}], v6 offset:{PL}")
        A(f"v_mov_b32 v{T}, v14")
        self.row_allreduce("max", T)
        A(f"v_sub_f32 v13, v14, v{T}")
        A("v_exp_f32 v13, v13")
        A(f"v_mov_b32 v{T+1}, s63"); A(f"v_mov_b32 v{T+3}, s63")
        A(f"v_mul_f32 v{T+2}, v13, v11")
        self.row_allreduce("add", T + 2)
        A("s_lshl_b32 s42, s59, 4"); A(f"s_add_u32 s42, s42, {WS_ML:#x}")
        A("v_mov_b32 v11, s42")
        A("s_mov_b64 exec, 1")
        A("s_waitcnt vmcnt(0)")
        A(f"global_store_dwordx4 v11, v[{T}:{T+3}], s[40:41] sc1")
        A("s_mov_b64 exec, -1")
        A("v_xor_b32 v11, 16, v11")
        self.spin_begin("L_sp_p")
        A(f"global_load_dwordx4 v[{T+4}:{T+7}], v11, s[40:41] sc1")
        A("s_waitcnt vmcnt(0)")
        A(f"v_xor_b32 v13, s63, v{T+5}")
        A(f"v_bitop3_b32 v13, v13, v{T+7}, s63 bitop3:0xf6")
        A("v_cmp_ne_u32 vcc, 0, v13")
        A("s_cbranch_vccz L_sp_p_done")
        self.spin_end("L_sp_p", 32)
        A("L_sp_p_done:")
        C("row factor exp(M_row - M_head) / L_head")
        A(f"v_max_f32 v{T+1}, v{T}, v{T+4}")
        A(f"v_sub_f32 v{T}, v{T}, v{T+1}"); A(f"v_sub_f32 v{T+4}, v{T+4}, v{T+1}"); A(f"v_sub_f32 v14, v14, v{T+1}")
        A(f"v_exp_f32 v{T}, v{T}"); A(f"v_exp_f32 v{T+4}, v{T+4}"); A("v_exp_f32 v14, v14")
        A(f"v_mul_f32 v{T+2}, v{T}, v{T+2}")
        A(f"v_fmac_f32 v{T+2}, v{T+4}, v{T+6}")
        A(f"v_rcp_f32 v{T+2}, v{T+2}")
        A("v_and_b32 v13, 0x3c, v4")
        A(f"v_mul_f32 v14, v14, v{T+2}")
        A("v_min_u32 v14, -2, v14")
        A(f"ds_write_b32 v12, v14 offset:{CFL}")
        A(f"ds_read_b32 v14, v13 offset:{CFL}")
        self.stamp(11)
        A("s_lshl_b32 s42, s59, 7"); A(f"s_add_u32 s42, s42, {WS_GH:#x}")
        A("v_mov_b32 v11, s42")
        A("v_xor_b32 v12, 0x80, v11")
        A("s_lshl_b32 s42, s59, 10"); A(f"s_add_u32 s42, s42, {WS_GP:#x}")
        A("v_add_u32 v9, s42, v6")
        A(f"v_mov_b32 v{T+1}, s63")
        A("s_waitcnt lgkmcnt(0)")
        for d in range(4):
            A(f"v_mul_f32 v{PW+d}, v14, v{PW+d}")
        self.tag4(PW)
        ps = self.pstep
        def wait_prg(lab, slots, sleep):
            self.spin_begin(lab)
            A(f"ds_read_b32 v13, v10 offset:{PRG}")
            A("s_waitcnt lgkmcnt(0)")
            A("v_readfirstlane_b32 s42, v13")
            A(f"s_cmp_ge_u32 s42, {4*slots//ps}")
            A(f"s_cbranch_scc1 {lab}_done")
            self.spin_end(lab, sleep)
            A(f"{lab}_done:")
        A("s_cmp_eq_u32 s94, 0")
        A("s_cbranch_scc1 L_sp_e_done")
        wait_prg("L_sp_w", self.xs - 16, 16)
        C("all output records of batch row s92 have been marked empty once their softmax records are there")
        A("s_lshl_b32 s42, s92, 10"); A(f"s_add_u32 s42, s42, {WS_ML + 4:#x}")
        A("v_add_u32 v14, s42, v6")
        self.spin_begin("L_sp_e")
        A("global_load_dword v13, v14, s[40:41] sc1")
        A("s_waitcnt vmcnt(0)")
        A("v_cmp_ne_u32 vcc, s63, v13")
        A("s_cbranch_vccz L_sp_e_done")
        self.spin_end("L_sp_e", 16)
        A("L_sp_e_done:")
        wait_prg("L_sp_a", self.xs, 16)
        C("whoever finds the other side past the checkpoint before it is there itself hands over slots")
        self.spin_begin("L_sp_b")
        A(f"global_load_dwordx2 v[{T+4}:{T+5}], v12, s[40:41] sc1")
        A("s_waitcnt vmcnt(0)")
        A(f"ds_read_b32 v13, v10 offset:{PRG}")
        A(f"v_readfirstlane_b32 s43, v{T+5}")
        A("s_waitcnt lgkmcnt(0)")
        A("v_readfirstlane_b32 s42, v13")
        A("s_cmp_eq_u32 s43, s63")
        A("s_cbranch_scc1 L_give")
        A(f"s_cmp_ge_u32 s42, {4*self.xc//ps}")
        A("s_cbranch_scc1 L_pass")
        self.spin_end("L_sp_b", self.xsl)
        A("L_pass:")
        A(f"v_mov_b32 v{T}, 0")
        A("s_mov_b64 exec, 1")
        A(f"global_store_dwordx2 v11, v[{T}:{T+1}], s[40:41] sc1")
        A("s_mov_b64 exec, -1")
        A("v_mov_b32 v13, 128")
        A(f"ds_write_b32 v10, v13 offset:{DEC}")
        A("v_xor_b32 v9, 0x400, v9")
        self.spin_begin("L_sp_c")
        A(f"global_load_dwordx2 v[{T+4}:{T+5}], v12, s[40:41] sc1")
        A("s_waitcnt vmcnt(0)")
        A(f"v_readfirstlane_b32 s43, v{T+5}")
        A(f"v_readfirstlane_b32 s42, v{T+4}")
        A("s_cmp_eq_u32 s43, s63")
        A("s_cbranch_scc1 L_sp_c_done")
        self.spin_end("L_sp_c", self.xsl)
        A("L_sp_c_done:")
        A("s_cmp_eq_u32 s42, 0")
        A("s_cbranch_scc1 L_sp_d_done")
        self.spin_begin("L_sp_d")
        A(f"global_load_dwordx4 v[{PW}:{PW+3}], v9, s[40:41] sc1")
        A("s_waitcnt vmcnt(0)")
        self.chk(13, PW, 4)
        A(f"ds_write_b128 v6, v[{PW}:{PW+3}] offset:{PL}")
        self.chk_branch(13, "L_sp_d", 2)
        A("s_add_u32 s42, s42, 128")
        A("v_mov_b32 v13, s42")
        A(f"ds_write_b32 v10, v13 offset:{DEC+4}")
        if self.diag:
            A("s_mov_b32 s84, s42"); A("s_mov_b32 s85, 0")
        A("s_branch L_nopub")
        A("L_give:")
        A(f"s_sub_i32 s42, {(4*self.xc + self.xd)//ps}, s42")
        A(f"s_mul_i32 s42, s42, {self.xk*ps}"); A("s_ashr_i32 s42, s42, 6")
        A("s_max_i32 s42, s42, 0"); A(f"s_min_i32 s42, s42, {self.xmax}")
        A(f"v_mov_b32 v{T}, s42")
        A("s_cmp_eq_u32 s42, 0")
        A("s_cbranch_scc1 L_give0")
        A(f"global_store_dwordx4 v9, v[{PW}:{PW+3}], s[40:41] sc1")
        A("L_give0:")
        A("s_mov_b64 exec, 1")
        A(f"global_store_dwordx2 v11, v[{T}:{T+1}], s[40:41] sc1")
        A("s_mov_b64 exec, -1")
        A("s_sub_u32 s42, 128, s42")
        A("v_mov_b32 v12, s42"); A("v_mov_b32 v13, s42")
        A(f"ds_write_b64 v10, v[12:13] offset:{DEC}")
        if self.diag:
            A("s_mov_b32 s84, s42"); A("s_mov_b32 s85, 0")
        A("L_nopub:")
        self.stamp(5)
        A("s_cmp_eq_u32 s94, 0")
        A("s_cbranch_scc1 L_hend")
        A("s_cmp_lg_u32 s7, 3")
        A("s_cbranch_scc1 L_nog")
        G, XV = T, T + 1
        C("helper 3: gate of column 4(l&7) + 2(l>>5) + ((l>>4)&1)")
        A("v_and_b32 v12, 7, v4"); A("v_lshlrev_b32 v8, 2, v12")
        A("v_lshrrev_b32 v13, 5, v4"); A("v_lshl_add_u32 v8, v13, 1, v8")
        A("v_bfe_u32 v13, v4, 4, 1"); A("v_add_u32 v8, v8, v13")
        A("s_lshl_b32 s42, s93, 6")
        A("v_lshl_add_u32 v13, v8, 1, s42")
        A(f"global_load_ushort v{G}, v13, s[34:35]")
        A("v_lshl_add_u32 v13, s92, 10, v13")
        A(f"global_load_ushort v{XV}, v13, s[16:17]")
        C("Z[b][cq][r=l>>3][l&1][(l>>1)&3][4]")
        A("s_lshl4_add_u32 s42, s92, s93")
        A(f"s_mul_i32 s42, s42, {NZ*128}"); A(f"s_add_u32 s42, s42, {WS_Z:#x}")
        A("v_lshrrev_b32 v13, 3, v4"); A("v_lshl_add_u32 v12, v13, 7, s42")
        A("v_and_b32 v13, 1, v4"); A("v_lshl_add_u32 v12, v13, 6, v12")
        A("v_and_b32 v13, 6, v4"); A("v_lshl_add_u32 v12, v13, 3, v12")
        self.spin_begin("L_sp_z")
        C("the lanes past the last line are masked off and hold tagged zeros")
        for d in range(4):
            A(f"v_mov_b32 v{RD+d}, s{96+d}")
        A("s_mov_b32 exec_hi, 0xffffff")
        A(f"global_load_dwordx4 v[{RD}:{RD+3}], v12, s[40:41] sc1")
        A("s_mov_b32 exec_hi, -1")
        A("s_waitcnt vmcnt(0)")
        self.chk(13, RD, 4)
        self.chk_branch(13, "L_sp_z", 32)
        A(f"v_lshlrev_b32 v{G}, 16, v{G}")
        A(f"v_lshlrev_b32 v{XV}, 16, v{XV}")
        self.xl_reduce4(RD)
        self.rnd(RD, RD)
        A(f"v_add_f32 v{RD}, v{RD}, v{G}")
        self.rnd(RD, RD)
        A(f"v_mul_f32 v{RD+1}, {f32(-math.log2(math.e))}, v{RD}")
        A(f"v_exp_f32 v{RD+1}, v{RD+1}")
        A("v_lshlrev_b32 v8, 3, v8")
        A(f"v_add_f32 v{RD+1}, 1.0, v{RD+1}")
        A(f"v_rcp_f32 v{RD+1}, v{RD+1}")
        A("s_nop 0")
        A(f"v_mul_f32 v{G}, v{RD}, v{RD+1}")
        self.rnd(G, G)
        A(f"ds_write_b64 v8, v[{G}:{G+1}] offset:{GX}")
        A("L_nog:")
        if self.dry:
            A("s_cmp_lg_u32 s7, 1")
            A("s_cbranch_scc1 L_nodry")
            C("helper 1 walks through the code below with no lane active to bring it into the instruction cache")
            A("s_mov_b32 s94, 3")
            A("s_mov_b64 s[100:101], 0")
            A("s_branch L_proj")
            A("L_dry:")
            A("s_sub_u32 s94, s94, 1")
            A("s_cmp_eq_u32 s94, 2")
            A("s_cbranch_scc1 L_h1")
            A("s_mov_b64 s[100:101], -1")
            A("s_mov_b64 exec, -1")
            A("s_waitcnt vmcnt(0)")
            A("L_nodry:")
        wait_prg("L_sp_v", 104, 16)
        self.spin_begin("L_sp_o")
        A(f"ds_read_b32 v13, v10 offset:{OC}")
        A("s_waitcnt lgkmcnt(0)")
        A(f"v_cmp_gt_u32 vcc, {self.pw}, v13")
        A("s_cbranch_vccz L_proj")
        self.spin_end("L_sp_o", 1)
        self.project()
        A("L_hend:")
        self.dump_stamps(14, 16)
        if self.prog:
            A("s_cmp_ge_u32 s3, 4")
            A("s_cbranch_scc1 L_end")
            A("s_lshl_b32 s60, s2, 2"); A("s_add_u32 s60, s60, s3"); A("s_lshl_b32 s60, s60, 6")
            A(f"s_add_u32 s60, s60, {WS_DIAG + 0x80000:#x}")
            A("v_and_b32 v24, 63, v0"); A("v_lshlrev_b32 v24, 2, v24")
            A("v_add_u32 v24, s60, v24")
            A("s_mov_b64 exec, 0xffff")
            A("global_store_dword v24, v60, s[40:41]")

def gen(**kw):
    return Gen(**kw).gen()

if __name__ == "__main__":
    out = sys.argv[1]
    kw = eval("dict(" + (sys.argv[2] if len(sys.argv) > 2 else "") + ")")
    open(out, "w").write(gen(**kw))
```

```python
import sys, math, struct
NAME = "recurrent_scan__mha_block_cached__mixer_channel_mlp__decode_kernel"

def f32(x):
    return "0x%08x" % struct.unpack("<I", struct.pack("<f", x))[0]

HEADER = """; Kernarg layout for this problem (104 bytes, ptrs only, base s[0:1]):
;   offset  32: d_in[4] A_wo  shape=(4096, 512) dtype=bfloat16
;   offset  96: d_ws      workspace
"""

XN, QP, MLM, MLL, TAGL = 0, 8192, 8448, 8512, 8704
CFL, DEC, RK = 8576, 8640, 8720
OA, OC, FC = 9216, 11264, 11520
PRG, PL = 11776, 12032
FA, GX = 0, 4096
FAS = 80
LDS_BYTES = 13312
WS_O, WS_ML, WS_EP, WS_Q, WS_U, WS_Z, WS_DIAG = 0x40000, 0x80000, 0x90000, 0x100000, 0x180000, 0x1c0000, 0x200000
WS_RP = 0x98000
WS_GH, WS_GP = 0xa0000, 0xc0000
NUNIT = 112
NZ = 7
SPIN_MAX = 1 << 18

class Gen:
    DEF = dict(kvflags="nt", mflags="nt", diag=False, prog=False, fine=0, DK=8, DV=8, adel=2, pre=3, dks=6, skip=(),
               mpar=0, cpar=1, fprio=3, qsleep=1, w2p=4, cpf=0, early=1, dsl=2,
               xc=92, xs=58, xd=52, xk=8, xmax=16, xsl=2, pstep=2,
               ctl=1, cg=8, cu0=24, culo=16, cuhi=32, cc0=2, clim=100, cb=6, csl=0, cbias=0, cend=106, rsl=8, bst=0x500,
               wpre=3, bg=(4, 3, 3), b2=1, pw=1, pd=2, pd1=2, dry=1, wlate=0, am=(0x2000, 0x200, 0x100, 0x8000, 0xa0000, 0x4400, 0, 0x60000, 0x20000, 0x20000, 0, 0x400),
               tv=(0x1000, 0x84c00, 0x400, 0x10000, 0x40000, 0x20000, 0x800), xt=0, ack=0, ot=0, vt=0, ofl='')
    def __init__(self, **kw):
        self.L = []
        self.nlab = 0
        for k in kw:
            assert k in self.DEF, k
        for k, v in self.DEF.items():
            setattr(self, k, kw.get(k, v))
        self.skip = set(self.skip)
    def A(self, s):
        self.L.append("  " + s if not s.endswith(":") else s)
    def C(self, s):
        self.L.append("  ; " + s)

    def stamp(self, idx):
        if self.diag:
            self.A(f"s_memrealtime s[{64+2*idx}:{65+2*idx}]")
    def dump_stamps(self, n, vt):
        if not self.diag:
            return
        A = self.A
        for k in range(self.dsl):
            A("s_sleep 127")
        A("s_waitcnt lgkmcnt(0)")
        A("s_lshl_b32 s60, s2, 3"); A("s_add_u32 s60, s60, s3"); A("s_lshl_b32 s60, s60, 7")
        A(f"s_add_u32 s60, s60, {WS_DIAG:#x}")
        A(f"v_mov_b32 v{vt}, s60")
        A("s_mov_b64 exec, 1")
        for j in range(n):
            A(f"v_mov_b32 v{vt+2}, s{64+2*j}"); A(f"v_mov_b32 v{vt+3}, s{65+2*j}")
            A(f"global_store_dwordx2 v{vt}, v[{vt+2}:{vt+3}], s[40:41] offset:{8*j}")
        A("s_getreg_b32 s60, hwreg(HW_REG_XCC_ID)")
        A(f"v_mov_b32 v{vt+2}, s60")
        A(f"global_store_dword v{vt}, v{vt+2}, s[40:41] offset:120")
        A("s_mov_b64 exec, -1")

    def row_allreduce(self, op, r):
        A = self.A
        for m in ("quad_perm:[1,0,3,2]", "quad_perm:[2,3,0,1]", "row_half_mirror", "row_mirror"):
            A("s_nop 1")
            A(f"v_{op}_f32_dpp v{r}, v{r}, v{r} {m} row_mask:0xf bank_mask:0xf")
    def wave_allreduce_add(self, r, t, op="add"):
        A = self.A
        self.row_allreduce(op, r)
        for sw in ("v_permlane16_swap_b32", "v_permlane32_swap_b32"):
            A(f"v_mov_b32 v{t}, v{r}")
            A("s_nop 1")
            A(f"{sw} v{r}, v{t}")
            A(f"v_{op}_f32 v{r}, v{r}, v{t}")
    def rnd(self, d, s):
        self.A(f"v_cvt_pk_bf16_f32 v{d}, 0, v{s}")

    def layernorm(self, X, n, T, P, unpack_after=True):
        A = self.A
        s, t, q, d = T, T + 1, T + 2, T + 3
        red = (lambda r: self.wave_allreduce_add(r, t)) if n == 8 else (lambda r: self.row_allreduce("add", r))
        A(f"v_add_f32 v{s}, v{X}, v{X+1}")
        for i in range(2, n):
            A(f"v_add_f32 v{s}, v{s}, v{X+i}")
        red(s)
        A(f"v_mul_f32 v{s}, {f32(1.0/512)}, v{s}")
        A(f"v_sub_f32 v{d}, v{X}, v{s}")
        A(f"v_mul_f32 v{q}, v{d}, v{d}")
        for i in range(1, n):
            dd = d if i % 2 == 0 else t
            A(f"v_sub_f32 v{dd}, v{X+i}, v{s}")
            A(f"v_fmac_f32 v{q}, v{dd}, v{dd}")
        red(q)
        A(f"v_mul_f32 v{q}, {f32(1.0/512)}, v{q}")
        self.rnd(s, s)
        self.rnd(q, q)
        A(f"v_add_f32 v{q}, {f32(1e-5)}, v{q}")
        self.rnd(q, q)
        A(f"v_sqrt_f32 v{q}, v{q}")
        A("s_nop 0")
        self.rnd(q, q)
        A(f"v_rcp_f32 v{q}, v{q}")
        for i in range(n):
            A(f"v_sub_f32 v{X+i}, v{X+i}, v{s}")
        for i in range(n):
            self.rnd(X + i, X + i)
        for i in range(n):
            A(f"v_mul_f32 v{X+i}, v{X+i}, v{q}")
        for i in range(n // 2):
            A(f"v_cvt_pk_bf16_f32 v{P+i}, v{X+2*i}, v{X+2*i+1}")
        if unpack_after:
            self.unpack(X, P, n // 2)
    def unpack(self, X, P, n):
        for i in range(n):
            self.A(f"v_lshlrev_b32 v{X+2*i}, 16, v{P+i}")
            self.A(f"v_and_b32 v{X+2*i+1}, 0xffff0000, v{P+i}")

    def slabload(self, dst, srd, voff, stride, flags, last_inc=None, pace=None, cont=False):
        A = self.A
        for e in range(8):
            r = dst + 4 * e
            if pace is not None and (e >= pace or cont):
                A(f"s_waitcnt vmcnt({pace-1})")
            A(f"buffer_load_dwordx4 v[{r}:{r+3}], v{voff}, {srd}, s50 offen {flags}".rstrip())
            inc = stride if e < 7 else last_inc
            if inc is not None:
                A(f"s_add_u32 s50, s50, {inc}")
    def slabperm(self, dst, src, js=4):
        A = self.A
        rows = src if isinstance(src, list) else [src + 4 * e for e in range(8)]
        for d in range(4):
            for hf in range(2):
                jj = 2 * d + hf
                for q in range(4):
                    A(f"v_perm_b32 v{dst + js*jj + q}, v{rows[2*q+1] + d}, v{rows[2*q] + d}, s{48 + hf}")
    def slabmfma(self, RD, RA, B, first):
        A = self.A
        for jj in range(8):
            b = B + 4 * jj
            c = "0" if first else f"v[{RD+4*jj}:{RD+4*jj+3}]"
            A(f"v_mfma_f32_16x16x32_bf16 v[{RD+4*jj}:{RD+4*jj+3}], v[{RA}:{RA+3}], v[{b}:{b+3}], {c}")

    def fold4(self, T, RD):
        A = self.A
        for bk in range(4):
            for q in range(4):
                d = RD + 4 * q + 16 * (bk >> 1)
                A(f"v_add_f32_dpp v{T+q}, v{d + (bk ^ 2)}, v{d + bk} row_ror:8 row_mask:0xf bank_mask:{1 << bk:#x}")
        for q in range(4):
            A(f"v_add_f32_dpp v{T+q}, v{T+q}, v{T+q} row_shl:4 row_mask:0xf bank_mask:0x5")
        A("s_mov_b32 exec_lo, 0x0f0f0f0f"); A("s_mov_b32 exec_hi, 0x0f0f0f0f")
        self.tag4(T)
    def spin_begin(self, lab):
        self.A(f"s_mov_b32 s55, {SPIN_MAX}")
        self.A(f"{lab}:")
    def spin_end(self, lab, sleep):
        A = self.A
        A(f"s_sleep {sleep}")
        A("s_sub_u32 s55, s55, 1")
        A("s_cmp_lg_u32 s55, 0")
        A(f"s_cbranch_scc1 {lab}")
    def xl_reduce4(self, R):
        A = self.A
        A("s_nop 0")
        for d in range(2):
            A(f"v_permlane32_swap_b32 v{R+d}, v{R+d+2}")
        for d in range(2):
            A(f"v_add_f32 v{R+d}, v{R+d}, v{R+d+2}")
        A("s_nop 1")
        A(f"v_permlane16_swap_b32 v{R}, v{R+1}")
        A(f"v_add_f32 v{R}, v{R}, v{R+1}")
        A("s_nop 1")
        A(f"v_add_f32_dpp v{R}, v{R}, v{R} row_ror:8 row_mask:0xf bank_mask:0xf")

    def gen(self):
        A, C = self.A, self.C
        self.L.append(HEADER.rstrip())
        self.L.append(f"; @launch grid=(256,1,1) block=(512,1,1) lds={LDS_BYTES}")
        self.L.append('.amdgcn_target "amdgcn-amd-amdhsa--gfx950"')
        self.L.append(".text"); self.L.append(f".globl {NAME}"); self.L.append(".p2align 8")
        self.L.append(f".type {NAME},@function"); self.L.append(f"{NAME}:")
        self.stamp(0)
        A("s_load_dwordx16 s[16:31], s[0:1], 0")
        A("s_load_dwordx8 s[32:39], s[0:1], 64")
        A("s_load_dwordx2 s[40:41], s[0:1], 96")
        A("s_cmp_ge_u32 s2, 256")
        A("s_cbranch_scc1 L_end")
        A("v_lshrrev_b32 v1, 6, v0")
        A("v_and_b32 v2, 15, v0")
        A("v_readfirstlane_b32 s3, v1")
        C("s59 = producer index b*64 + 2h + side, b = wg>>6, side = (wg>>2)&1, h = 8((wg&3)^side) + ((wg>>3)&7):")
        C("the two halves of a head's keys go to the WGs wg and wg^5")
        A("s_bfe_u32 s5, s2, 0x10002")
        A("s_and_b32 s59, s2, 0xc0"); A("s_and_b32 s4, s2, 3"); A("s_xor_b32 s4, s4, s5"); A("s_lshl4_add_u32 s59, s4, s59")
        A("s_bfe_u32 s4, s2, 0x30003"); A("s_lshl1_add_u32 s59, s4, s59")
        A("s_or_b32 s59, s59, s5")
        if self.cpf:
            A("s_cmp_lt_u32 s3, 4")
            A("s_cbranch_scc1 L_stream")
            C("helper waves pull a slice of this kernel's code towards the L2")
            A("s_getpc_b64 s[42:43]")
            A("L_pc:")
            A("s_lshr_b32 s44, s2, 3"); A("s_lshl2_add_u32 s44, s44, s3")
            A(f"s_mul_i32 s44, s44, {64*self.cpf}")
            A(f"s_min_u32 s44, s44, L_end-L_pc-{64*(self.cpf-1)}")
            for k in range(self.cpf):
                A(f"s_load_dword s{45+k}, s[42:43], s44 offset:{64*k}")
            A("s_branch L_helper")
            A("L_stream:")
        else:
            A("s_cmp_ge_u32 s3, 4")
            A("s_cbranch_scc1 L_helper")
        self.stream()
        self.helper()
        A("L_end:")
        A("s_endpgm")
        L = self.L
        L.append('.section .rodata,"a"'); L.append(".p2align 6"); L.append(f".amdhsa_kernel {NAME}")
        L.append("  .amdhsa_next_free_vgpr 256"); L.append("  .amdhsa_next_free_sgpr 102"); L.append("  .amdhsa_accum_offset 256")
        L.append("  .amdhsa_group_segment_fixed_size 0"); L.append("  .amdhsa_kernarg_size 104")
        L.append("  .amdhsa_user_sgpr_count 2"); L.append("  .amdhsa_user_sgpr_kernarg_segment_ptr 1")
        L.append("  .amdhsa_system_sgpr_workgroup_id_x 1")
        L.append("  .amdhsa_float_denorm_mode_32 3")
        L.append(".end_amdhsa_kernel")
        return "\n".join(L) + "\n"

    def is_cons(self):
        self.A("s_and_b32 s42, s2, 0x81"); self.A(f"s_cmp_eq_u32 s42, {0x80 | self.cpar:#x}")
        self.A("s_cselect_b32 s94, 1, 0")

    def stream(self):
        A, C = self.A, self.C
        RING = 64
        P = 24
        Q = 8
        S = 40
        ACC = 48
        PLO, PHI = 12, 13
        VOFF = 5
        fl = self.kvflags
        DK, DV, pre = self.DK, self.DV, self.pre
        assert DK <= DV <= 8
        C("===== stream waves =====")
        A("v_lshlrev_b32 v7, 4, v2")
        A("v_lshrrev_b32 v6, 4, v0")
        A("s_lshr_b32 s7, s59, 1"); A("s_lshl_b32 s7, s7, 20")
        A("s_mov_b32 s10, 0x100000"); A("s_mov_b32 s11, 0x20000")
        am, tv = self.am, self.tv
        def lin(vs, t):
            x = 0
            for i, v in enumerate(vs):
                if t >> i & 1:
                    x ^= v
            return x
        def slin(dst, terms):
            k = 0
            for sr, bit, m in terms:
                if m:
                    A(f"s_bitcmp1_b32 {sr}, {bit}"); A(f"s_cselect_b32 {'s6' if k else dst}, {m:#x}, 0")
                    if k:
                        A(f"s_xor_b32 {dst}, {dst}, s6")
                    k += 1
        if not self.xt:
            C("every row of lanes walks through keys of its own: offset = v5 ^ f(group) ^ g(slot), all linear over GF(2)")
            A("v_bfe_i32 v3, v0, 4, 1"); A("v_bfe_i32 v4, v0, 5, 1")
            slin("s50", [("s3", 0, am[2]), ("s3", 1, am[3])] + [("s59", b, am[4 + b]) for b in range(8)])
            A(f"v_and_b32 v3, {am[0]:#x}, v3"); A(f"v_and_b32 v4, {am[1]:#x}, v4")
            A("v_xor_b32 v5, s50, v7"); A("v_bitop3_b32 v5, v5, v3, v4 bitop3:0x96")
        A("s_waitcnt lgkmcnt(0)")
        A("s_add_u32 s8, s18, s7"); A("s_addc_u32 s9, s19, 0")
        if self.xt:
            A("s_lshl_b32 s42, s59, 6"); A("v_lshl_add_u32 v4, v6, 2, s42"); A("v_xor_b32 v3, 64, v4")
            A("global_load_dword v4, v4, s[26:27]"); A("global_load_dword v3, v3, s[26:27]")
            A("s_load_dwordx16 s[64:79], s[26:27], 0x4000"); A("s_load_dwordx16 s[80:95], s[26:27], 0x4040")
            A("s_waitcnt vmcnt(0) lgkmcnt(0)")
            A("v_xor_b32 v3, v7, v3"); A("v_xor_b32 v5, v7, v4")
            A("v_xor_b32 v3, s79, v3"); A("v_xor_b32 v3, s87, v3")
        self.stamp(5)
        issued = []
        def addr(slot, tag=None):
            if self.xt:
                if tag and slot % 16 == 0:
                    A(f"v_xor_b32 v58, s{80 + tag[0]}, v5")
                A(f"v_xor_b32 v4, s{64 + slot % 16}, v58")
                return 4
            x = lin(tv, slot % 16 + (tag[0] * 16 if tag else 0))
            b = 5 if tag else 58
            if x:
                A(f"v_xor_b32 v4, {x:#x}, v{b}"); b = 4
            return b
        def load(slot, srd, so="0", tag=None, b=None):
            r = RING + 4 * slot
            if b is None:
                b = addr(slot, tag)
            A(f"buffer_load_dwordx4 v[{r}:{r+3}], v{b}, {srd}, {so} offen {fl}".rstrip())
            issued.append(tag)
        def nextgroup():
            if self.xt:
                A("s_add_u32 m0, s54, 1"); A("s_nop 0"); A("s_movrels_b32 s50, s80")
            else:
                A("s_add_u32 s42, s54, 1")
                if tv[5] == 2 * tv[4] and tv[6] == 4 * tv[4] and tv[4] & (tv[4] - 1) == 0:
                    A("s_and_b32 s50, s42, 7"); A(f"s_lshl_b32 s50, s50, {tv[4].bit_length() - 1}")
                else:
                    slin("s50", [("s42", i, tv[4 + i]) for i in range(3)])
            A("v_xor_b32 v58, s50, v5")
        def wait(tag):
            A(f"s_waitcnt vmcnt({len(issued) - 1 - issued.index(tag)})")
        def cwait(D, j):
            self.nlab += 1
            lo = self.culo // 4
            for L in range(D, lo - 1, -1):
                A(f"s_waitcnt vmcnt({L-1})")
                if L == D:
                    A(f"s_cbranch_scc0 L_cw{self.nlab}")
                if L > lo:
                    A(f"s_cmp_ge_u32 s62, {4*L - (j & 3)}")
                    A(f"s_cbranch_scc1 L_cw{self.nlab}")
            A(f"L_cw{self.nlab}:")
        def swait(D, lo=None):
            A(f"s_waitcnt vmcnt({D-1})")
            if lo is not None and lo < D:
                self.nlab += 1
                A(f"s_cbranch_vccnz L_ad{self.nlab}")
                A(f"s_waitcnt vmcnt({lo-1})")
                A(f"L_ad{self.nlab}:")
        def setup2():
            A("s_mov_b32 s14, s10"); A("s_mov_b32 s15, s11"); A("s_mov_b32 s46, s10"); A("s_mov_b32 s47, s11")
            A("s_add_u32 s12, s20, s7"); A("s_addc_u32 s13, s21, 0")
            A("s_mov_b32 s52, 0xaaaaaaaa"); A("s_mov_b32 s53, 0xaaaaaaaa")
            A("s_mov_b32 s56, 0xcccccccc"); A("s_mov_b32 s57, 0xcccccccc")
            C("s60 = key group before which this WG turns to its part of wo; it keeps more loads in flight in return")
            A(f"s_lshr_b32 s60, s2, {self.bg[2]}"); A(f"s_and_b32 s60, s60, {self.bg[1]}"); A(f"s_add_u32 s60, s60, {self.bg[0]}")
            self.is_cons()
            A("s_cselect_b64 vcc, -1, 0")
            A("s_cselect_b32 s60, s60, 0")
            A("v_mov_b32 v21, 0"); A("v_mov_b32 v62, 0")
        dd = self.dks
        for gi in range(pre):
            for j in range(16):
                n = 16 * gi + j
                if n == dd:
                    setup2()
                    self.stamp(6)
                b = addr(n, (gi, j))
                if n >= dd:
                    swait(dd)
                if n == dd:
                    self.stamp(7)
                if n == 2 * dd:
                    self.stamp(8)
                load(n, "s[8:11]", tag=(gi, j), b=b)
        self.stamp(1)
        A("s_barrier")
        A(f"ds_read_b128 v[{Q}:{Q+3}], v7 offset:{QP}")
        self.stamp(2)
        A("s_waitcnt lgkmcnt(0)")
        def qk(slots):
            for d in range(4):
                for slot in slots:
                    r = RING + 4 * slot
                    p = P + slot % 16
                    c = "0" if d == 0 else f"v{p}"
                    A(f"v_dot2_f32_bf16 v{p}, v{r+d}, v{Q+d}, {c}")
        def treduce(dst, mid=()):
            C("transposing reduction: lane (g,c) <- score of load c, key g")
            for t in range(8):
                A(f"v_add_f32_dpp v{P+t}, v{P+t}, v{P+t} row_ror:8 row_mask:0xf bank_mask:0x3")
            for t in range(8):
                A(f"v_add_f32_dpp v{P+t}, v{P+t+8}, v{P+t+8} row_ror:8 row_mask:0xf bank_mask:0xc")
            for t in range(4):
                A(f"v_add_f32_dpp v{P+t}, v{P+t}, v{P+t} row_half_mirror row_mask:0xf bank_mask:0x5")
            for t in range(4):
                A(f"v_add_f32_dpp v{P+t}, v{P+t+4}, v{P+t+4} row_half_mirror row_mask:0xf bank_mask:0xa")
            U0, U1, T0, T1 = P + 8, P + 9, P + 10, P + 11
            A(f"v_cndmask_b32 v{U0}, v{P+1}, v{P}, s[52:53]")
            A(f"v_cndmask_b32 v{U1}, v{P+3}, v{P+2}, s[52:53]")
            A(f"v_cndmask_b32 v{T0}, v{P}, v{P+1}, s[52:53]")
            A(f"v_cndmask_b32 v{T1}, v{P+2}, v{P+3}, s[52:53]")
            A("s_nop 1")
            A(f"v_add_f32_dpp v{T0}, v{U0}, v{T0} quad_perm:[1,0,3,2] row_mask:0xf bank_mask:0xf")
            A(f"v_add_f32_dpp v{T1}, v{U1}, v{T1} quad_perm:[1,0,3,2] row_mask:0xf bank_mask:0xf")
            A(f"v_cndmask_b32 v{U0}, v{T1}, v{T0}, s[56:57]")
            A(f"v_cndmask_b32 v{U1}, v{T0}, v{T1}, s[56:57]")
            if mid:
                for m in mid:
                    A(m)
            else:
                A("s_nop 1")
            A(f"v_add_f32_dpp v{dst}, v{U0}, v{U1} quad_perm:[2,3,0,1] row_mask:0xf bank_mask:0xf")
        C("catch-up over the prefetched groups; group `pre` is loaded into ring slots 0..15 meanwhile")
        nxt = 0
        for gi in range(pre):
            for j in range(0, 16, 2):
                wait((gi, j + 1))
                qk([16 * gi + j, 16 * gi + j + 1])
                if gi == 0:
                    want = j + 2 if (j < 8 or pre == 1) else 8
                elif gi == 1:
                    want = 8 + j // 2 + 1
                else:
                    want = 16
                while nxt < want:
                    load(nxt, "s[8:11]", tag=(pre, nxt)); nxt += 1
            A("s_nop 0")
            treduce(S + 8 - pre + gi)
        assert nxt == 16
        for j in range(16 - DK):
            wait((pre, j))
            qk([j])
        A(f"s_mov_b32 s54, {pre}")
        A("s_branch L_kmid")
        A("L_kloop:")
        A("s_cmp_eq_u32 s54, s60")
        A("s_cbranch_scc1 L_burst")
        A("L_nobu:")
        for j in range(16 - DK):
            b = addr(j + DK)
            swait(DK, DK - self.adel)
            load(j + DK, "s[8:11]", b=b)
            qk([j])
        A("L_kmid:")
        if self.prog:
            A("s_memrealtime s[90:91]")
        C("the rest refills from the next group (V group 0 after the last K group)")
        nextgroup()
        A("s_cmp_eq_u32 s54, 7")
        A("s_cselect_b32 s44, s12, s8"); A("s_cselect_b32 s45, s13, s9")
        for j in range(16 - DK, 16):
            b = addr(j + DK - 16)
            swait(DK, DK - self.adel)
            load(j + DK - 16, "s[44:47]", b=b)
            qk([j])
        if self.prog:
            A("s_waitcnt lgkmcnt(0)")
            A("s_mov_b32 m0, s54"); A("s_nop 0")
            A("v_writelane_b32 v60, s90, m0")
        for i in range(7):
            A(f"v_mov_b32 v{S+i}, v{S+i+1}")
        treduce(S + 7, ("s_add_u32 s54, s54, 1", "s_cmp_lt_u32 s54, 8"))
        A("s_cbranch_scc1 L_kloop")
        for j in range(DK, DV):
            load(j, "s[12:15]")
        C("softmax over this row's 128 keys (true max of the partial; partials are merged exactly later)")
        M, Ls = 14, 15
        cs = math.log2(math.e) / math.sqrt(128.0)
        A(f"s_mov_b32 s58, {f32(cs)}")
        A(f"v_max3_f32 v{M}, v{S}, v{S+1}, v{S+2}")
        A(f"v_max3_f32 v{M}, v{M}, v{S+3}, v{S+4}")
        A(f"v_max3_f32 v{M}, v{M}, v{S+5}, v{S+6}")
        A(f"v_max_f32 v{M}, v{M}, v{S+7}")
        self.row_allreduce("max", M)
        A(f"v_mul_f32 v{M}, s58, v{M}")
        for i in range(8):
            A(f"v_fma_f32 v{S+i}, v{S+i}, s58, -v{M}")
        for i in range(8):
            A(f"v_exp_f32 v{S+i}, v{S+i}")
        for i in range(8):
            A(f"v_mov_b32 v{ACC+i}, 0")
        A(f"v_add_f32 v{Ls}, v{S}, v{S+1}")
        for i in range(2, 8):
            A(f"v_add_f32 v{Ls}, v{Ls}, v{S+i}")
        self.row_allreduce("add", Ls)
        A(f"v_lshlrev_b32 v16, 2, v6")
        A("v_lshlrev_b32 v18, 2, v0")
        A(f"ds_write_b32 v18, v{S+7} offset:{PL}")
        A(f"v_min_u32 v{M}, -2, v{M}")
        A(f"v_min_u32 v{Ls}, -2, v{Ls}")
        A(f"ds_write_b32 v16, v{M} offset:{MLM}")
        A(f"ds_write_b32 v16, v{Ls} offset:{MLL}")
        A("s_mov_b32 s54, 0")
        A("v_and_b32 v19, 0xfc, v18"); A("v_mov_b32 v56, 1")
        if self.ctl:
            A("v_mov_b32 v59, 0"); A(f"s_mov_b32 s62, {self.cu0}"); A(f"v_mov_b32 v61, {self.cu0}")
        A(f"s_mov_b32 s61, {144 - DV}")
        def pv(slot):
            r = RING + 4 * slot
            for d in range(4):
                A(f"v_dot2c_f32_bf16_dpp v{ACC+2*d}, v{PLO}, v{r+d} row_newbcast:{slot} row_mask:0xf bank_mask:0xf")
                A(f"v_dot2c_f32_bf16_dpp v{ACC+2*d+1}, v{PHI}, v{r+d} row_newbcast:{slot} row_mask:0xf bank_mask:0xf")
        A("L_vloop:")
        A("s_cmp_lg_u32 s54, 6")
        A("s_cbranch_scc1 L_nocf")
        C("from here on everything is scaled to the final softmax weights of the head")
        C("v17: dimension pair of lane (g,c) after the row reduction: 4c + 2(g&1) + (g>>1)")
        A("v_and_b32 v17, 1, v6"); A("v_lshl_add_u32 v17, v17, 3, v7")
        A("v_bfe_u32 v21, v6, 1, 1"); A("v_lshl_add_u32 v17, v21, 2, v17")
        A("s_lshl_b32 s42, s3, 9"); A("v_lshl_add_u32 v17, v17, 1, s42")
        A("s_lshl_b32 s42, s59, 8"); A(f"s_add_u32 s42, s42, {WS_O:#x}")
        A("v_lshlrev_b32 v22, 1, v19"); A("v_add_u32 v21, s42, v19")
        self.spin_begin("L_sp_cf")
        A(f"ds_read_b32 v57, v16 offset:{CFL}")
        A("s_waitcnt lgkmcnt(0)")
        A("v_cmp_eq_u32 vcc, -1, v57")
        A("s_cbranch_vccz L_sp_cf_done")
        self.spin_end("L_sp_cf", 1)
        A("L_sp_cf_done:")
        for r in list(range(ACC, ACC + 8)) + [S, S + 1]:
            A(f"v_mul_f32 v{r}, v57, v{r}")
        if not self.ctl:
            A("s_cmp_lg_u32 s94, 0")
            A("s_cselect_b64 vcc, -1, 0")
        A("L_nocf:")
        A("s_waitcnt lgkmcnt(0)")
        A(f"v_cvt_pk_bf16_f32 v{PLO}, v{S}, 0")
        A(f"v_cvt_pk_bf16_f32 v{PHI}, 0, v{S}")
        for i in range(7):
            A(f"v_mov_b32 v{S+i}, v{S+i+1}")
        for j in range(16):
            if j == 16 - DV:
                if self.prog:
                    A("s_memrealtime s[90:91]")
                    A("s_add_u32 m0, s54, 8")
                    A("s_waitcnt lgkmcnt(0)")
                    A("v_writelane_b32 v60, s90, m0")
                nextgroup()
                A("s_sub_u32 s42, s54, 6")
                A("s_cmp_gt_u32 s42, 1")
                A("s_cbranch_scc1 L_nodec")
                C("number of slots this WG works on: fewer when it hands some over, more when it takes some")
                A("s_lshl_b32 s42, s42, 2")
                A("v_mov_b32 v4, s42")
                self.spin_begin("L_sp_dec")
                A(f"ds_read_b32 v57, v4 offset:{DEC}")
                A("s_waitcnt lgkmcnt(0)")
                A("v_readfirstlane_b32 s61, v57")
                A("s_cmp_lg_u32 s61, -1")
                A("s_cbranch_scc1 L_sp_dec_done")
                self.spin_end("L_sp_dec", 1)
                A("L_sp_dec_done:")
                A("s_max_i32 s61, s61, 112"); A("s_min_i32 s61, s61, 144")
                A("s_lshl_b32 s43, s54, 4"); A(f"s_add_u32 s43, s43, {DV}"); A("s_sub_u32 s61, s61, s43")
                A("s_cmp_lg_u32 s54, 7")
                A("s_cbranch_scc1 L_nodec")
                C("the slots taken over are the last ones of the other side's last group, backwards")
                if self.xt:
                    A("v_mov_b32 v58, v3")
                else:
                    A(f"v_xor_b32 v58, {am[4] ^ lin(tv, 127):#x}, v5")
                A("v_xor_b32 v4, 60, v18")
                A(f"ds_read_b32 v{S}, v4 offset:{PL}")
                A("L_nodec:")
            b = addr(j + DV)
            A(f"s_cmp_gt_i32 s61, {j}")
            A(f"s_cselect_b32 s51, 0, s14")
            if self.ctl:
                cwait(DV, j)
            else:
                swait(DV, DV - self.adel)
            load((j + DV) % 16, "s[12:15]", "s51", b=b)
            pv(j)
            if j % self.pstep == 0:
                A(f"ds_add_u32 v19, v56 offset:{PRG}")
            if self.ctl and j % 2 == 1:
                A(f"ds_read_b32 v61, v59 offset:{RK}")
            if self.ctl and j % 2 == 0:
                A("s_waitcnt lgkmcnt(1)")
                A("v_readfirstlane_b32 s62, v61")
            A(f"s_cmp_le_i32 s61, {j + 1 - DV}")
            A("s_cbranch_scc1 L_vdone")
        A("s_add_u32 s54, s54, 1")
        A("s_sub_u32 s61, s61, 16")
        A("s_branch L_vloop")
        A("L_vdone:")
        self.stamp(4)
        A("s_nop 1")
        C("rows are added in the wave, waves in LDS; whoever comes last publishes the sum")
        for d in (0, 1, 4, 5):
            A(f"v_permlane32_swap_b32 v{ACC+d}, v{ACC+d+2}")
        for d in (0, 4):
            A(f"v_pk_add_f32 v[{ACC+d}:{ACC+d+1}], v[{ACC+d}:{ACC+d+1}], v[{ACC+d+2}:{ACC+d+3}]")
        A("s_nop 1")
        for d in (0, 1):
            A(f"v_permlane16_swap_b32 v{ACC+d}, v{ACC+d+4}")
        A(f"v_pk_add_f32 v[{ACC}:{ACC+1}], v[{ACC}:{ACC+1}], v[{ACC+4}:{ACC+5}]")
        A(f"ds_write_b64 v17, v[{ACC}:{ACC+1}] offset:{OA}")
        A(f"ds_add_rtn_u32 v20, v19, v56 offset:{OC}")
        A(f"ds_read2st64_b64 v[24:27], v22 offset0:{OA//512} offset1:{OA//512+1}")
        A(f"ds_read2st64_b64 v[28:31], v22 offset0:{OA//512+2} offset1:{OA//512+3}")
        A("s_waitcnt lgkmcnt(1)")
        A("v_cmpx_eq_u32 vcc, 3, v20")
        A("v_pk_add_f32 v[24:25], v[24:25], v[26:27]")
        A("s_waitcnt lgkmcnt(0)")
        A("v_pk_add_f32 v[28:29], v[28:29], v[30:31]")
        A("v_pk_add_f32 v[24:25], v[24:25], v[28:29]")
        A("v_cvt_pk_bf16_f32 v22, v24, v25")
        A("v_min_u32 v22, -2, v22")
        A("global_store_dword v21, v22, s[40:41] sc1")
        self.stamp(3)
        A("s_mov_b64 exec, -1")
        A("s_cmp_lg_u32 s94, 0")
        A("s_cbranch_scc1 L_proj")
        if self.fine:
            A("s_waitcnt vmcnt(0)")
            self.stamp(8)
        if self.diag:
            A("s_branch L_hend")
        else:
            A("s_endpgm")

    TB = 100
    def tag4(self, R, n=4):
        for i in range(n):
            self.A(f"v_and_or_b32 v{R+i}, v{R+i}, v15, s{96 + i % 4}")
    def chk(self, acc, R, n, D=None):
        D = R if D is None else D
        for i in range(n):
            self.A(f"v_xor_b32 v{D+i}, s{96 + i % 4}, v{R+i}")
        self.A(f"v_or3_b32 v{acc}, v{D}, v{D+1}, v{D+2}")
        i = 3
        while i < n:
            if i + 1 < n:
                self.A(f"v_or3_b32 v{acc}, v{acc}, v{D+i}, v{D+i+1}"); i += 2
            else:
                self.A(f"v_or_b32 v{acc}, v{acc}, v{D+i}"); i += 1
    def chk_branch(self, acc, lab, sleep):
        A = self.A
        A(f"v_cmp_ne_u32_sdwa vcc, v{acc}, v10 src0_sel:BYTE_0 src1_sel:DWORD")
        A(f"s_cbranch_vccz {lab}_done")
        self.spin_end(lab, sleep)
        A(f"{lab}_done:")

    def set_tag(self):
        for k in range(4):
            self.A(f"s_bfe_u32 s{96+k}, s63, {0x80000 + 8*k:#x}")

    def control5(self):
        A, C = self.A, self.C
        ps, DV = self.pstep, self.DV
        c0 = self.cc0 * 4 // ps
        A("s_cmp_lg_u32 s7, 0")
        A("s_cbranch_scc1 L_noctl")
        C("helper 0: the number of loads in flight follows this WG's lag behind the WGs it shares a progress line with")
        if self.diag:
            A("s_mov_b32 s86, 0"); A("s_mov_b32 s87, 0")
        A("s_and_b32 s42, s2, 7"); A(f"s_mul_i32 s42, s42, {self.bst}"); A(f"s_add_u32 s42, s42, {WS_RP:#x}")
        A("v_lshl_add_u32 v12, v4, 2, s42")
        A("s_lshr_b32 s43, s2, 3"); A("s_lshl2_add_u32 s42, s43, s42")
        A("v_mov_b32 v14, s42")
        A(f"s_mov_b32 s45, {self.cu0}")
        A("s_cmp_lg_u32 s94, 0")
        A(f"s_cselect_b32 s61, {self.cbias}, 0")
        A(f"s_mov_b32 s55, {SPIN_MAX}")
        A("s_mov_b32 exec_hi, 0")
        A("L_ctl:")
        if self.csl:
            A(f"s_sleep {self.csl}")
        A(f"ds_read_b32 v13, v10 offset:{PRG}")
        A(f"s_sub_u32 s46, {4*DV+64}, s45")
        A("s_lshr_b32 s46, s46, 1")
        A("s_sub_u32 s46, s46, s61")
        A("s_waitcnt lgkmcnt(0)")
        A("v_readfirstlane_b32 s47, v13")
        A("s_add_u32 s42, s47, s46")
        A("s_xor_b32 s43, s42, s63")
        A("v_mov_b32 v13, s43")
        A("s_mov_b32 exec_lo, 1")
        A("global_store_dword v14, v13, s[40:41]")
        A(f"s_cmp_ge_u32 s47, {self.clim*4//ps}")
        A("s_cbranch_scc1 L_ctl2")
        A("s_mov_b32 exec_lo, -1")
        A("global_load_dword v11, v12, s[40:41] sc1")
        A(f"s_sub_u32 s42, s42, {self.cb}")
        A("s_waitcnt vmcnt(0)")
        A("v_xor_b32 v11, s63, v11")
        A("v_cmp_gt_u32 vcc, 0x400, v11")
        A("v_subrev_u32 v11, s42, v11")
        A("v_cndmask_b32 v11, 0, v11, vcc")
        for m in ("quad_perm:[1,0,3,2]", "quad_perm:[2,3,0,1]", "row_half_mirror", "row_mirror"):
            A("s_nop 1")
            A(f"v_add_u32_dpp v11, v11, v11 {m} row_mask:0xf bank_mask:0xf")
        A(f"s_cmp_lt_u32 s47, {c0}")
        A("s_cbranch_scc1 L_ctl3")
        A("v_readlane_b32 s43, v11, 0")
        A("v_readlane_b32 s42, v11, 16")
        A("s_add_i32 s42, s43, s42")
        A(f"s_mul_i32 s42, s42, {self.cg}")
        A(f"s_add_i32 s42, s42, {1 << 8}")
        A(f"s_ashr_i32 s42, s42, 9")
        A(f"s_add_i32 s45, s42, {self.cu0}")
        A(f"s_max_i32 s45, s45, {self.culo}"); A(f"s_min_i32 s45, s45, {self.cuhi}")
        A("v_mov_b32 v13, s45")
        A(f"ds_write_b32 v10, v13 offset:{RK}")
        if self.diag:
            A("s_add_u32 s86, s86, s45"); A("s_add_u32 s87, s87, 1")
        A("s_branch L_ctl3")
        A("L_ctl2:")
        A(f"s_sleep {self.rsl}")
        A("L_ctl3:")
        A("s_sub_u32 s55, s55, 1")
        A("s_cbranch_scc1 L_ctl4")
        A(f"s_cmp_lt_u32 s47, {self.cend*4//ps}")
        A("s_cbranch_scc1 L_ctl")
        A("L_ctl4:")
        A("s_mov_b64 exec, -1")
        A("L_noctl:")

    BB = 128
    def burst(self):
        A, C = self.A, self.C
        BB = self.BB
        A("L_burst:")
        C("this WG projects batch row s92 onto the columns 32 s93..; wave w holds the wo rows of the heads 4w..")
        A("s_bfe_u32 s92, s2, 0x20005")
        A("s_bfe_u32 s93, s2, 0x20003"); A("s_and_b32 s42, s2, 6"); A("s_lshl1_add_u32 s93, s42, s93")
        C("row 64(kk>>1) + 4(kk&1) + 8(c>>2) + 32((e>>1)&1) + 2(e>>2) + (e&1), columns 8(c&3)..")
        A("v_and_b32 v1, 0x2c, v0"); A("v_lshlrev_b32 v1, 11, v1")
        A("v_and_b32 v62, 16, v0"); A("v_lshl_add_u32 v1, v62, 8, v1")
        A("v_and_b32 v63, 3, v0"); A("v_lshl_add_u32 v1, v63, 4, v1")
        A("s_lshl_b32 s28, s3, 19"); A("s_lshl_b32 s42, s93, 6"); A("s_add_u32 s28, s28, s42")
        A("s_add_u32 s29, s28, 0x8000")
        A(f"s_mov_b32 s26, {0 if 'wo' in self.skip else 0x400000:#x}"); A("s_mov_b32 s27, 0x20000")
        A("s_mov_b32 s48, 0x05040100"); A("s_mov_b32 s49, 0x07060302")
        A("s_mov_b64 s[100:101], -1")
        A("s_barrier")
        self.stamp(10)
        stage = [[BB + 64 + 4 * e for e in range(8)], [BB + 96 + 4 * e for e in range(8)], [96 + 4 * e for e in range(8)],
                 [16, 20, 24, 28, 32, 36, 48, 52]]
        for s in range(4):
            for e in range(8):
                r = stage[s][e]
                A(f"buffer_load_dwordx4 v[{r}:{r+3}], v1, s[24:27], s{28 + ((e >> 1) & 1)} offen offset:{(2*(e >> 2) + (e & 1))*1024}")
            if s < 3:
                A("s_add_u32 s28, s28, 0x20000"); A("s_add_u32 s29, s29, 0x20000")
        C("v62: record piece of lane (hh, kl, side, par, ch): O[b][4w + 2m + hh][side] + 16(8kl + 4par + ch)")
        A("s_lshl_b32 s42, s92, 14"); A("s_lshl_b32 s43, s3, 11"); A("s_add_u32 s42, s42, s43"); A(f"s_add_u32 s42, s42, {WS_O:#x}")
        A("v_lshl_add_u32 v62, v62, 3, s42")
        A("v_and_b32 v63, 0x27, v0"); A("v_lshl_add_u32 v62, v63, 4, v62")
        A("v_and_b32 v63, 8, v0"); A("v_lshl_add_u32 v62, v63, 5, v62")
        C("v63: 2:4 pattern of A row i: the first two of every four k for (i&4) == 0, else the last two")
        A("v_bfe_u32 v63, v0, 2, 1")
        A("v_mul_u32_u24 v63, 0xaaaa, v63")
        A("v_add_u32 v63, 0x4444, v63")
        for s in range(4):
            A(f"s_waitcnt vmcnt({24 - 8*s})")
            if s == 3 and self.b2:
                A("s_barrier")
            self.slabperm(BB + 64 * (s >> 1) + 4 * (s & 1), stage[s], 8)
        A("s_cmp_lt_u32 s3, 4")
        A("s_cbranch_scc1 L_nobu")

    def project(self):
        A, C = self.A, self.C
        BB, LR, D, T = self.BB, 40, 64, 96
        def ld(m):
            A(f"global_load_dwordx4 v[{LR+4*m}:{LR+4*m+3}], v62, s[40:41] offset:{1024*m} sc1")
        def chk(m):
            r = LR + 4 * m
            A(f"v_max3_u32 v13, v{r}, v{r+1}, v{r+2}")
            A(f"v_max_u32 v13, v13, v{r+3}")
            A("v_cmp_eq_u32 vcc, -1, v13")
        def f1(q, bk):
            d = D + 4 * (q + 4 * (bk >> 1))
            A(f"v_add_f32_dpp v{T+q}, v{d + (bk ^ 2)}, v{d + bk} row_ror:8 row_mask:0xf bank_mask:{1 << bk:#x}")
        def mf(m, last):
            if self.fine:
                A(f"s_memrealtime s[{16+2*m}:{17+2*m}]")
            for k in range(8):
                a = (k >> 1) + 4 * (k & 1)
                d, b = D + 4 * a, BB + 64 * m + 8 * a
                A(f"v_smfmac_f32_16x16x64_bf16 v[{d}:{d+3}], v[{LR+4*m}:{LR+4*m+3}], v[{b}:{b+7}], v63")
                if last and k >= 3:
                    for bk in range(2):
                        f1((k - 3) >> 1, 2 * ((k - 3) & 1) + bk)
        def tight(m):
            A(f"L_t{m}:")
            ld(m)
            A("s_sub_u32 s55, s55, 1")
            A(f"s_cbranch_scc1 L_f{m}")
            A(f"s_waitcnt vmcnt({self.pd1-1})")
            chk(m)
            A(f"s_cbranch_vccnz L_t{m}")
            A(f"L_f{m}:")
        A("L_proj:")
        self.stamp(12)
        C("the records of two pairs of heads are re-read until they are complete; several reads are kept in flight")
        for i in range(0, 8, 2):
            A(f"v_mov_b64 v[{LR+i}:{LR+i+1}], -1")
        ld(0); ld(1)
        for i in range(0, 32, 2):
            A(f"v_mov_b64 v[{D+i}:{D+i+1}], 0")
        C("v26: slot of this lane's sum: column 8(l&3) + 2((l>>2)&3) + (l>>5), wave, (l>>4)&1")
        A("v_and_b32 v26, 3, v0"); A("v_bfe_u32 v27, v0, 2, 2"); A("v_lshl_add_u32 v26, v26, 2, v27")
        A("v_bfe_u32 v27, v0, 5, 1"); A("v_lshl_add_u32 v26, v26, 1, v27")
        A(f"v_mul_u32_u24 v26, {FAS}, v26")
        A("v_bfe_u32 v27, v0, 4, 1"); A("v_lshl_add_u32 v26, v27, 2, v26")
        A("v_lshl_add_u32 v26, s3, 3, v26")
        A("v_bfe_u32 v28, v0, 1, 5")
        A(f"v_mul_u32_u24 v27, {FAS}, v28")
        A("v_and_b32 v29, 1, v0"); A("v_lshl_add_u32 v27, v29, 5, v27")
        A("s_lshl4_add_u32 s42, s92, s93"); A("s_lshl_b32 s42, s42, 6")
        A("v_lshl_add_u32 v29, v28, 1, s42")
        A("v_lshlrev_b32 v28, 3, v28")
        A("v_and_b32 v30, 63, v0"); A("v_lshlrev_b32 v30, 2, v30")
        A("v_mov_b32 v31, 1")
        A(f"s_mov_b32 s55, {SPIN_MAX*8}")
        A("s_mov_b64 exec, s[100:101]")
        A("L_two:")
        for m in range(2):
            A(f"s_waitcnt vmcnt({self.pd-1})")
            chk(m)
            A(f"s_cbranch_vccz L_h{m}")
            ld(m)
        A("s_sub_u32 s55, s55, 1")
        A("s_cbranch_scc0 L_two")
        A("L_h1:")
        mf(1, False)
        chk(0)
        A("s_cbranch_vccz L_f0")
        tight(0)
        mf(0, True)
        A("s_branch L_fold")
        A("L_h0:")
        mf(0, False)
        chk(1)
        A("s_cbranch_vccz L_f1")
        tight(1)
        mf(1, True)
        A("L_fold:")
        self.stamp(13)
        C("D row 4g + ch is valid in the lanes with (l>>2)&3 == ch")
        for q in range(2):
            A(f"v_add_f32_dpp v{T+4+q}, v{T+q}, v{T+q} row_shl:4 row_mask:0xf bank_mask:0x5")
        for q, bk in ((2, 2), (2, 3), (3, 0), (3, 1), (3, 2), (3, 3)):
            f1(q, bk)
        A(f"v_add_f32_dpp v{T+4}, v{T+2}, v{T+2} row_shr:4 row_mask:0xf bank_mask:0xa")
        A("s_nop 0")
        A(f"v_add_f32_dpp v{T+5}, v{T+3}, v{T+3} row_shr:4 row_mask:0xf bank_mask:0xa")
        A("s_nop 1")
        A(f"v_permlane32_swap_b32 v{T+4}, v{T+5}")
        A(f"v_add_f32 v{T+4}, v{T+4}, v{T+5}")
        A(f"ds_write_b32 v26, v{T+4} offset:{FA}")
        A(f"ds_add_rtn_u32 v31, v30, v31 offset:{FC}")
        A(f"ds_read_b128 v[{T+8}:{T+11}], v27 offset:{FA}")
        A(f"ds_read_b128 v[{T+12}:{T+15}], v27 offset:{FA+16}")
        A(f"ds_read_b64 v[{T+6}:{T+7}], v28 offset:{GX}")
        A("s_waitcnt lgkmcnt(2)")
        A(f"v_pk_add_f32 v[{T+8}:{T+9}], v[{T+8}:{T+9}], v[{T+10}:{T+11}]")
        A("s_waitcnt lgkmcnt(1)")
        A(f"v_pk_add_f32 v[{T+12}:{T+13}], v[{T+12}:{T+13}], v[{T+14}:{T+15}]")
        A(f"v_pk_add_f32 v[{T+8}:{T+9}], v[{T+8}:{T+9}], v[{T+12}:{T+13}]")
        A(f"v_add_f32 v{T}, v{T+8}, v{T+9}")
        A("s_waitcnt lgkmcnt(0)")
        A("s_nop 0")
        A(f"v_add_f32_dpp v{T}, v{T}, v{T} quad_perm:[1,0,3,2] row_mask:0xf bank_mask:0xf")
        A("v_cmpx_eq_u32 vcc, 7, v31")
        self.rnd(T, T)
        A(f"v_mul_f32 v{T}, v{T}, v{T+6}")
        self.rnd(T, T)
        A(f"v_add_f32 v{T}, v{T}, v{T+7}")
        A(f"v_cvt_pk_bf16_f32 v{T}, v{T}, 0")
        A(f"global_store_short v29, v{T}, s[36:37] {self.ofl}".rstrip())
        if self.ack:
            A("s_waitcnt vmcnt(0)")
        self.stamp(9)
        if self.dry:
            A("s_cmp_gt_u32 s94, 1")
            A("s_cbranch_scc1 L_dry")
        A(f"s_cmp_lg_u32 s2, {254 + self.cpar}")
        A("s_cbranch_scc1 L_nobump")
        A("s_and_b64 exec, exec, 1")
        A("s_cbranch_scc0 L_nobump")
        C("every reader of the tag word is done by now (this wave has seen data that depends on all of them)")
        A(f"ds_read_b32 v13, v30 offset:{TAGL}")
        A(f"v_mov_b32 v12, {WS_EP:#x}")
        A("s_waitcnt lgkmcnt(0)")
        A("global_store_dword v12, v13, s[40:41] sc1")
        A("L_nobump:")
        if self.diag:
            A("s_mov_b64 exec, -1")
        if self.fine:
            A("s_sleep 127"); A("s_sleep 127")
            A("s_waitcnt lgkmcnt(0)")
            A("s_lshl3_add_u32 s42, s2, s3"); A("s_lshl_b32 s42, s42, 4"); A(f"s_add_u32 s42, s42, {WS_DIAG + 0x100000:#x}")
            A("v_mov_b32 v12, s42")
            for m in range(2):
                A(f"v_mov_b32 v16, s{16+2*m}"); A(f"v_mov_b32 v17, s{17+2*m}")
                A(f"global_store_dwordx2 v12, v[16:17], s[40:41] offset:{8*m}")

    def helper(self):
        A, C = self.A, self.C
        mf = self.mflags
        RA, RD = 16, 32
        RB = 64
        ST = 192
        T = 224
        A("L_helper:")
        C("===== helper waves =====")
        A("s_sub_u32 s7, s3, 4")
        A("v_bfe_u32 v3, v0, 4, 2")
        A("v_and_b32 v4, 63, v0")
        A("s_bfe_u32 s4, s59, 0x50001")
        A("s_lshr_b32 s5, s2, 6")
        A("s_mov_b32 s48, 0x05040100"); A("s_mov_b32 s49, 0x07060302")
        A("v_lshlrev_b32 v6, 4, v4")
        A("v_mov_b32 v10, 0"); A("v_mov_b32 v62, 0")
        A("v_mov_b32 v15, 0xffffff00")
        A("s_mov_b32 s11, 0x20000"); A("s_mov_b32 s15, 0x20000")
        C("s62 = MLP unit of this WG (>= NUNIT: none)")
        A("s_lshr_b32 s62, s2, 1")
        A("s_and_b32 s42, s2, 1"); A(f"s_cmp_eq_u32 s42, {self.mpar}")
        A("s_cselect_b32 s62, s62, 255")
        A("s_cmp_ge_u32 s7, 2")
        A("s_cbranch_scc1 L_nofront")
        A("s_cmp_eq_u32 s7, 0")
        A("s_cbranch_scc1 L_front")
        A(f"s_cmp_ge_u32 s62, {NUNIT}")
        A("s_cbranch_scc1 L_nofront")
        A("L_front:")
        A(f"s_setprio {self.fprio}")
        C("front units, 256 rows x 32 cols for all 4 batch rows. helper 0: wq rows 256(b>>1).., cols 32(4h + 2 side + (b&1))..")
        C("helper 1: w1 rows 256(u&1).., cols 32(4(u>>3) + (u&2) + ((u>>2)&1))..  The lane quads hold different 32-row blocks.")
        A("s_and_b32 s42, s59, 1"); A("s_and_b32 s61, s5, 1"); A("s_lshl1_add_u32 s61, s42, s61")
        A("s_lshl2_add_u32 s42, s4, s61")
        A("s_lshr_b32 s44, s62, 3"); A("s_and_b32 s43, s62, 2"); A("s_lshl2_add_u32 s44, s44, s43")
        A("s_bfe_u32 s43, s62, 0x10002"); A("s_add_u32 s44, s44, s43")
        A("s_and_b32 s43, s62, 1"); A("s_lshr_b32 s53, s5, 1")
        A("s_mov_b32 s51, 3584")
        A("s_cmp_eq_u32 s7, 0")
        A("s_cselect_b32 s53, s53, s43")
        A("s_cselect_b32 s60, s42, s44")
        A("s_cselect_b32 s51, 8192, s51")
        A("s_lshl_b32 s10, s51, 9")
        A("s_mul_i32 s52, s51, 121")
        A("s_mul_i32 s50, s53, s51"); A("s_lshl2_add_u32 s50, s50, s60"); A("s_lshl_b32 s50, s50, 6")
        A("s_lshl_b32 s42, s51, 3")
        A("v_and_b32 v12, 12, v2"); A("v_add_u32 v5, v12, v3")
        A("v_mul_u32_u24 v5, s42, v5")
        A("v_and_b32 v12, 3, v2")
        A("v_lshl_add_u32 v5, v12, 4, v5")
        A("v_lshlrev_b32 v12, 10, v3")
        A("v_lshl_add_u32 v12, v2, 4, v12")
        A("s_cmp_eq_u32 s7, 0")
        A("s_waitcnt lgkmcnt(0)")
        for t in range(4):
            A(f"global_load_dwordx4 v[{RB+32+4*t}:{RB+35+4*t}], v12, s[16:17] offset:{256*t}")
        C("the word the previous launch left only serves to pick a tag that differs from that launch's")
        A(f"s_load_dword s63, s[40:41], {WS_EP:#x}")
        A("s_cselect_b32 s8, s22, s28"); A("s_cselect_b32 s9, s23, s29")
        self.slabload(RB + 96, "s[8:11]", 5, "s51", mf, last_inc="s52")
        self.slabload(ST, "s[8:11]", 5, "s51", mf)
        A("s_lshl_b32 s42, s7, 12")
        A("v_add_u32 v12, s42, v12")
        A("v_lshrrev_b32 v13, 2, v2")
        A("v_lshlrev_b32 v13, 10, v13")
        A("v_lshl_add_u32 v13, v3, 4, v13")
        C("A operand: rows[i>>2][unit rows: slab n, 32-row block from the low bits of i, 8kk]")
        A("v_and_b32 v14, 3, v2"); A("v_lshl_add_u32 v13, v14, 6, v13")
        A("s_lshl_b32 s43, s53, 9"); A("s_add_u32 s42, s42, s43")
        A("v_add_u32 v13, s42, v13")
        A("s_mov_b32 s54, s7")
        A("s_waitcnt vmcnt(16)")
        self.stamp(1)
        A("L_ln:")
        self.unpack(RB, RB + 32, 16)
        self.layernorm(RB, 32, T, RB + 32, unpack_after=False)
        A("s_sub_u32 s54, s54, 1")
        A("s_cbranch_scc0 L_ln")
        for t in range(4):
            A(f"ds_write_b128 v12, v[{RB+32+4*t}:{RB+35+4*t}] offset:{XN + 256*t}")
        A("s_waitcnt vmcnt(8)")
        self.slabperm(RB + 64, RB + 96)
        A("s_waitcnt lgkmcnt(0)")
        A(f"ds_read_b128 v[{RA}:{RA+3}], v13 offset:{XN}")
        A(f"ds_read_b128 v[{RA+4}:{RA+7}], v13 offset:{XN+256}")
        A("s_add_u32 s63, s63, 0x61c88647")
        self.set_tag()
        A("s_waitcnt vmcnt(0)")
        self.slabperm(RB + 96, ST)
        A("s_waitcnt lgkmcnt(0)")
        self.slabmfma(RD, RA, RB + 64, True)
        self.slabmfma(RD, RA + 4, RB + 96, False)
        A("s_cmp_eq_u32 s7, 0")
        A("s_cbranch_scc1 L_qaddr")
        C("U[col block][row block][half=c>>3][b=kk][c&3][4]")
        A("s_lshl1_add_u32 s42, s60, s53"); A("s_lshl_b32 s42, s42, 9"); A(f"s_add_u32 s42, s42, {WS_U:#x}")
        A("v_lshrrev_b32 v12, 3, v2"); A("v_lshlrev_b32 v12, 8, v12")
        A("v_lshl_add_u32 v12, v3, 6, v12")
        A("v_and_b32 v13, 3, v2"); A("v_lshl_add_u32 v12, v13, 4, v12")
        A("s_branch L_fst")
        A("L_qaddr:")
        C("Q[h][b=kk][row block][col quarter][c&3][c>>3][4]")
        A("s_lshl_b32 s42, s4, 12"); A("s_lshl_b32 s43, s53, 9"); A("s_add_u32 s42, s42, s43")
        A("s_lshl_b32 s43, s61, 7"); A("s_add_u32 s42, s42, s43")
        A(f"s_add_u32 s42, s42, {WS_Q:#x}")
        A("v_lshlrev_b32 v12, 10, v3")
        A("v_and_b32 v13, 3, v2"); A("v_lshl_add_u32 v12, v13, 5, v12")
        A("v_lshrrev_b32 v13, 3, v2"); A("v_lshl_add_u32 v12, v13, 4, v12")
        A("L_fst:")
        A("v_add_u32 v12, s42, v12")
        self.fold4(T, RD)
        A(f"global_store_dwordx4 v12, v[{T}:{T+3}], s[40:41] sc1")
        A("s_mov_b64 exec, -1")
        self.stamp(2)
        A("s_cmp_lg_u32 s7, 0")
        A("s_cbranch_scc1 L_fdone")
        C("helper 0: gather the partials of q[b][h], LDS init")
        A("s_lshl_b32 s42, s4, 12"); A("s_lshl_b32 s43, s5, 10"); A("s_add_u32 s42, s42, s43")
        A(f"s_add_u32 s42, s42, {WS_Q:#x}")
        A("v_add_u32 v12, s42, v6")
        A("v_lshlrev_b32 v8, 2, v4")
        A("v_mov_b32 v9, -1")
        A(f"ds_write_b32 v8, v9 offset:{MLM}")
        A("v_mov_b32 v9, s63")
        A(f"ds_write_b32 v10, v9 offset:{TAGL}")
        A(f"ds_write_b32 v8, v10 offset:{PRG}")
        A(f"ds_write2st64_b32 v8, v10, v10 offset0:{OC//256} offset1:{FC//256}")
        if self.ctl:
            A(f"v_mov_b32 v9, {self.cu0}")
            A(f"ds_write_b32 v10, v9 offset:{RK}")
        A("v_and_b32 v9, 31, v4"); A("v_lshlrev_b32 v9, 3, v9")
        C("the partners publish at about the same time: look once the own stores are acknowledged")
        A("s_waitcnt vmcnt(0)")
        self.spin_begin("L_sp_q")
        A(f"global_load_dwordx4 v[{RD}:{RD+3}], v12, s[40:41] sc1")
        A("s_waitcnt vmcnt(0)")
        self.chk(13, RD, 4)
        self.chk_branch(13, "L_sp_q", self.qsleep)
        for d in range(4):
            A(f"v_mov_b32 v{RD+4+d}, v{RD+d}")
        A("s_nop 1")
        for d in range(4):
            A(f"v_permlane32_swap_b32 v{RD+d}, v{RD+4+d}")
        for d in range(4):
            A(f"v_add_f32 v{RD+d}, v{RD+d}, v{RD+4+d}")
        for d in range(2):
            A(f"v_cvt_pk_bf16_f32 v{RD+d}, v{RD+2*d}, v{RD+2*d+1}")
        A(f"ds_write_b64 v9, v[{RD}:{RD+1}] offset:{QP}")
        A("L_fdone:")
        A("s_setprio 0")
        A("L_nofront:")
        A("s_waitcnt lgkmcnt(0)")
        self.stamp(3)
        A("s_cmp_lg_u32 s7, 2")
        A("s_cbranch_scc1 L_noclr")
        C("helper 2 marks this WG's output record empty; nobody looks at it before this WG's softmax record is there")
        A("s_lshl_b32 s42, s59, 8"); A(f"s_add_u32 s42, s42, {WS_O:#x}")
        A("v_lshl_add_u32 v12, v4, 2, s42")
        A("v_mov_b32 v13, -1")
        A("global_store_dword v12, v13, s[40:41] sc1")
        A("L_noclr:")
        def prefetch():
            C("helpers 2 and 3 pull a part of the wo columns that the WGs of this class project with towards the L2")
            A("s_and_b32 s42, s2, 1"); A("s_lshl1_add_u32 s42, s7, s42"); A("s_and_b32 s42, s42, 5")
            A(f"s_cmp_lg_u32 s42, {4 | self.cpar}")
            A("s_cbranch_scc1 L_nopre")
            A("v_lshlrev_b32 v5, 4, v2"); A("v_lshl_or_b32 v5, v3, 14, v5")
            A("s_lshr_b32 s50, s2, 3"); A("s_lshl1_add_u32 s50, s50, s7"); A("s_sub_u32 s50, s50, 2"); A("s_lshl_b32 s50, s50, 16")
            A("s_and_b32 s42, s2, 6"); A("s_lshl_b32 s42, s42, 7"); A("s_add_u32 s50, s50, s42")
            A("s_mov_b32 s26, 0x400000"); A("s_mov_b32 s27, 0x20000")
            A("s_mov_b32 s54, 3")
            A("L_pre:")
            for n in range(4):
                A(f"buffer_load_dwordx4 v[{ST}:{ST+3}], v5, s[24:27], s50 offen offset:{n*1024}")
                A(f"s_waitcnt vmcnt({self.wpre-1})")
            A("s_add_u32 s50, s50, 0x1000")
            A("s_sub_u32 s54, s54, 1")
            A("s_cbranch_scc0 L_pre")
            self.stamp(2)
            A("L_nopre:")
        if self.wpre and not self.wlate:
            prefetch()
        self.is_cons()
        A("s_barrier")
        if self.wpre and self.wlate:
            prefetch()
        A(f"ds_read_b32 v13, v10 offset:{TAGL}")
        A("s_waitcnt lgkmcnt(0)")
        A("v_readfirstlane_b32 s63, v13")
        self.set_tag()
        if self.vt:
            A("s_cmp_lg_u32 s7, 3")
            A("s_cbranch_scc1 L_novt")
            C("(value unused: the address translations of this head's values are fetched ahead)")
            A("s_and_b32 s42, s59, 0xfe"); A("s_lshl_b32 s42, s42, 19")
            A(f"v_lshl_add_u32 v12, v4, {self.vt}, s42")
            A(f"s_mov_b64 exec, {(1 << (1 << (20 - self.vt))) - 1:#x}")
            A("global_load_dword v13, v12, s[20:21]")
            A("s_mov_b64 exec, -1")
            A("s_waitcnt vmcnt(0)")
            A("L_novt:")
        A("s_cmp_lg_u32 s7, 1")
        A("s_cbranch_scc1 L_not1")
        A(f"s_cmp_ge_u32 s62, {NUNIT}")
        A("s_cbranch_scc1 L_not1")
        C("stage 2 unit: r = u>>4 (hidden rows 256r..), cq = (u&8) + 2(u&3) + ((u>>2)&1) (cols 32cq..)")
        A("s_lshr_b32 s60, s62, 4"); A("s_and_b32 s61, s62, 3"); A("s_and_b32 s43, s62, 8"); A("s_lshl1_add_u32 s61, s61, s43")
        A("s_bfe_u32 s43, s62, 0x10002"); A("s_add_u32 s61, s61, s43")
        A("s_lshl_b32 s50, s60, 18"); A("s_lshl_b32 s43, s61, 6"); A("s_add_u32 s50, s50, s43")
        A("v_and_b32 v12, 12, v2"); A("v_add_u32 v14, v12, v3"); A("v_lshlrev_b32 v14, 13, v14")
        A("v_and_b32 v12, 3, v2"); A("v_lshl_add_u32 v14, v12, 4, v14")
        A("s_mov_b32 s12, s32"); A("s_mov_b32 s13, s33"); A(f"s_mov_b32 s14, {1792*1024}")
        self.slabload(ST, "s[12:15]", 14, 1024, mf, last_inc=121 * 1024, pace=self.w2p)
        self.slabload(RD, "s[12:15]", 14, 1024, mf, pace=self.w2p, cont=True)
        A("s_lshl_b32 s43, s60, 9")
        A("v_lshlrev_b32 v13, 4, v3")
        A("v_and_b32 v12, 3, v2"); A("v_lshl_add_u32 v13, v12, 6, v13")
        A("v_add_u32 v13, s43, v13")
        A(f"global_load_dwordx4 v[{T+16}:{T+19}], v13, s[30:31]")
        A(f"global_load_dwordx4 v[{T+20}:{T+23}], v13, s[30:31] offset:256")
        UU, W, BB = RB + 64, RB + 80, RB + 112
        C("U[8r + 4n + (c&3)][t][half][b=c>>2][kk][4]")
        A("v_and_b32 v12, 3, v2"); A("v_lshlrev_b32 v12, 10, v12")
        A("v_lshrrev_b32 v13, 2, v2"); A("v_lshl_add_u32 v12, v13, 6, v12")
        A("v_lshl_add_u32 v12, v3, 4, v12")
        A("s_lshl_b32 s42, s60, 13")
        A(f"s_add_u32 s42, s42, {WS_U:#x}")
        A(f"v_add_u32 v{T}, s42, v12")
        A(f"v_add_u32 v{T+1}, 0x1000, v{T}")
        lds_ = [(UU + 16*t + 8*n + 4*hf, T + n, 512*t + 256*hf) for t in range(2) for n in range(2) for hf in range(2)]
        self.spin_begin("L_sp_u")
        for r, v, o in lds_:
            A(f"global_load_dwordx4 v[{r}:{r+3}], v{v}, s[40:41] offset:{o} sc1")
        A("s_waitcnt vmcnt(0)")
        self.chk(13, UU, 32)
        self.chk_branch(13, "L_sp_u", 32)
        self.unpack(BB, T + 16, 8)
        for i in range(16):
            A(f"v_add_f32 v{UU+i}, v{UU+i}, v{UU+16+i}")
        for i in range(16):
            self.rnd(UU + i, UU + i)
        for i in range(16):
            A(f"v_add_f32 v{UU+i}, v{UU+i}, v{BB+i}")
        for i in range(16):
            self.rnd(UU + i, UU + i)
        C("gelu(tanh form) = u / (1 + exp(-2k(u + 0.044715 u^3)))")
        k2 = -2.0 * math.sqrt(2.0 / math.pi) * math.log2(math.e)
        A(f"s_mov_b32 s42, {f32(0.044715 * k2)}"); A(f"s_mov_b32 s43, {f32(k2)}")
        A("v_mov_b32 v12, s43")
        for i in range(16):
            A(f"v_mul_f32 v{W+i}, v{UU+i}, v{UU+i}")
        for i in range(16):
            A(f"v_fma_f32 v{W+i}, v{W+i}, s42, v12")
        for i in range(16):
            A(f"v_mul_f32 v{W+i}, v{W+i}, v{UU+i}")
        for i in range(16):
            A(f"v_exp_f32 v{W+i}, v{W+i}")
        for i in range(16):
            A(f"v_add_f32 v{W+i}, 1.0, v{W+i}")
        for i in range(16):
            A(f"v_rcp_f32 v{W+i}, v{W+i}")
        for i in range(16):
            A(f"v_mul_f32 v{UU+i}, v{UU+i}, v{W+i}")
        for d in range(8):
            A(f"v_cvt_pk_bf16_f32 v{RA+d}, v{UU+2*d}, v{UU+2*d+1}")
        self.slabperm(RB + 64, ST)
        self.slabperm(RB + 96, RD)
        self.slabmfma(RD, RA, RB + 64, True)
        self.slabmfma(RD, RA + 4, RB + 96, False)
        C("Z[b=kk][cq][r][half=c>>3][c&3][4]")
        A(f"v_mul_u32_u24 v12, {16*NZ*128}, v3")
        A("v_lshrrev_b32 v13, 3, v2")
        A("v_lshl_add_u32 v12, v13, 6, v12")
        A("v_and_b32 v13, 3, v2")
        A("v_lshl_add_u32 v12, v13, 4, v12")
        A(f"s_mul_i32 s42, s61, {NZ*128}"); A("s_lshl_b32 s43, s60, 7"); A("s_add_u32 s42, s42, s43")
        A(f"s_add_u32 s42, s42, {WS_Z:#x}")
        A("v_add_u32 v12, s42, v12")
        self.fold4(T, RD)
        A(f"global_store_dwordx4 v12, v[{T}:{T+3}], s[40:41] sc1")
        A("s_mov_b64 exec, -1")
        A("L_not1:")
        A("s_cmp_eq_u32 s94, 0")
        A("s_cbranch_scc1 L_nowo")
        C("(empty descriptors: only the stream waves return to their loop from the code below)")
        A("s_mov_b64 s[8:9], s[24:25]"); A("s_mov_b64 s[12:13], s[24:25]")
        A("s_mov_b32 s10, 0"); A("s_mov_b32 s14, 0"); A("s_mov_b64 s[46:47], s[10:11]")
        A("v_mov_b32 v5, 0"); A("v_mov_b32 v58, 0")
        self.burst()
        A("L_nowo:")
        self.stamp(4)
        T = 96
        if self.ctl:
            self.control5()
        A("s_cmp_lg_u32 s7, 2")
        A("s_cbranch_scc1 L_nopub")
        C("helper 2: softmax bookkeeping with the other side of this head")
        A("v_lshlrev_b32 v12, 2, v2")
        self.spin_begin("L_sp_m")
        A(f"ds_read_b32 v14, v12 offset:{MLM}")
        A(f"ds_read_b32 v11, v12 offset:{MLL}")
        A("s_waitcnt lgkmcnt(0)")
        A("v_max_u32 v13, v14, v11")
        A("v_cmp_eq_u32 vcc, -1, v13")
        A("s_cbranch_vccz L_sp_m_done")
        self.spin_end("L_sp_m", 4)
        A("L_sp_m_done:")
        PW = T + 8
        A(f"ds_read_b128 v[{PW}:{PW+3}], v6 offset:{PL}")
        A(f"v_mov_b32 v{T}, v14")
        self.row_allreduce("max", T)
        A(f"v_sub_f32 v13, v14, v{T}")
        A("v_exp_f32 v13, v13")
        A(f"v_mov_b32 v{T+1}, s63"); A(f"v_mov_b32 v{T+3}, s63")
        A(f"v_mul_f32 v{T+2}, v13, v11")
        self.row_allreduce("add", T + 2)
        A("s_lshl_b32 s42, s59, 4"); A(f"s_add_u32 s42, s42, {WS_ML:#x}")
        A("v_mov_b32 v11, s42")
        A("s_mov_b64 exec, 1")
        A("s_waitcnt vmcnt(0)")
        A(f"global_store_dwordx4 v11, v[{T}:{T+3}], s[40:41] sc1")
        A("s_mov_b64 exec, -1")
        A("v_xor_b32 v11, 16, v11")
        self.spin_begin("L_sp_p")
        A(f"global_load_dwordx4 v[{T+4}:{T+7}], v11, s[40:41] sc1")
        A("s_waitcnt vmcnt(0)")
        A(f"v_xor_b32 v13, s63, v{T+5}")
        A(f"v_bitop3_b32 v13, v13, v{T+7}, s63 bitop3:0xf6")
        A("v_cmp_ne_u32 vcc, 0, v13")
        A("s_cbranch_vccz L_sp_p_done")
        self.spin_end("L_sp_p", 32)
        A("L_sp_p_done:")
        C("row factor exp(M_row - M_head) / L_head")
        A(f"v_max_f32 v{T+1}, v{T}, v{T+4}")
        A(f"v_sub_f32 v{T}, v{T}, v{T+1}"); A(f"v_sub_f32 v{T+4}, v{T+4}, v{T+1}"); A(f"v_sub_f32 v14, v14, v{T+1}")
        A(f"v_exp_f32 v{T}, v{T}"); A(f"v_exp_f32 v{T+4}, v{T+4}"); A("v_exp_f32 v14, v14")
        A(f"v_mul_f32 v{T+2}, v{T}, v{T+2}")
        A(f"v_fmac_f32 v{T+2}, v{T+4}, v{T+6}")
        A(f"v_rcp_f32 v{T+2}, v{T+2}")
        A("v_and_b32 v13, 0x3c, v4")
        A(f"v_mul_f32 v14, v14, v{T+2}")
        A("v_min_u32 v14, -2, v14")
        A(f"ds_write_b32 v12, v14 offset:{CFL}")
        A(f"ds_read_b32 v14, v13 offset:{CFL}")
        self.stamp(11)
        A("s_lshl_b32 s42, s59, 7"); A(f"s_add_u32 s42, s42, {WS_GH:#x}")
        A("v_mov_b32 v11, s42")
        A("v_xor_b32 v12, 0x80, v11")
        A("s_lshl_b32 s42, s59, 10"); A(f"s_add_u32 s42, s42, {WS_GP:#x}")
        A("v_add_u32 v9, s42, v6")
        A(f"v_mov_b32 v{T+1}, s63")
        A("s_waitcnt lgkmcnt(0)")
        for d in range(4):
            A(f"v_mul_f32 v{PW+d}, v14, v{PW+d}")
        self.tag4(PW)
        ps = self.pstep
        def wait_prg(lab, slots, sleep):
            self.spin_begin(lab)
            A(f"ds_read_b32 v13, v10 offset:{PRG}")
            A("s_waitcnt lgkmcnt(0)")
            A("v_readfirstlane_b32 s42, v13")
            A(f"s_cmp_ge_u32 s42, {4*slots//ps}")
            A(f"s_cbranch_scc1 {lab}_done")
            self.spin_end(lab, sleep)
            A(f"{lab}_done:")
        A("s_cmp_eq_u32 s94, 0")
        A("s_cbranch_scc1 L_sp_e_done")
        wait_prg("L_sp_w", self.xs - 16, 16)
        C("all output records of batch row s92 have been marked empty once their softmax records are there")
        A("s_lshl_b32 s42, s92, 10"); A(f"s_add_u32 s42, s42, {WS_ML + 4:#x}")
        A("v_add_u32 v14, s42, v6")
        self.spin_begin("L_sp_e")
        A("global_load_dword v13, v14, s[40:41] sc1")
        A("s_waitcnt vmcnt(0)")
        A("v_cmp_ne_u32 vcc, s63, v13")
        A("s_cbranch_vccz L_sp_e_done")
        self.spin_end("L_sp_e", 16)
        A("L_sp_e_done:")
        wait_prg("L_sp_a", self.xs, 16)
        C("whoever finds the other side past the checkpoint before it is there itself hands over slots")
        self.spin_begin("L_sp_b")
        A(f"global_load_dwordx2 v[{T+4}:{T+5}], v12, s[40:41] sc1")
        A("s_waitcnt vmcnt(0)")
        A(f"ds_read_b32 v13, v10 offset:{PRG}")
        A(f"v_readfirstlane_b32 s43, v{T+5}")
        A("s_waitcnt lgkmcnt(0)")
        A("v_readfirstlane_b32 s42, v13")
        A("s_cmp_eq_u32 s43, s63")
        A("s_cbranch_scc1 L_give")
        A(f"s_cmp_ge_u32 s42, {4*self.xc//ps}")
        A("s_cbranch_scc1 L_pass")
        self.spin_end("L_sp_b", self.xsl)
        A("L_pass:")
        A(f"v_mov_b32 v{T}, 0")
        A("s_mov_b64 exec, 1")
        A(f"global_store_dwordx2 v11, v[{T}:{T+1}], s[40:41] sc1")
        A("s_mov_b64 exec, -1")
        A("v_mov_b32 v13, 128")
        A(f"ds_write_b32 v10, v13 offset:{DEC}")
        A("v_xor_b32 v9, 0x400, v9")
        self.spin_begin("L_sp_c")
        A(f"global_load_dwordx2 v[{T+4}:{T+5}], v12, s[40:41] sc1")
        A("s_waitcnt vmcnt(0)")
        A(f"v_readfirstlane_b32 s43, v{T+5}")
        A(f"v_readfirstlane_b32 s42, v{T+4}")
        A("s_cmp_eq_u32 s43, s63")
        A("s_cbranch_scc1 L_sp_c_done")
        self.spin_end("L_sp_c", self.xsl)
        A("L_sp_c_done:")
        A("s_cmp_eq_u32 s42, 0")
        A("s_cbranch_scc1 L_sp_d_done")
        self.spin_begin("L_sp_d")
        A(f"global_load_dwordx4 v[{PW}:{PW+3}], v9, s[40:41] sc1")
        A("s_waitcnt vmcnt(0)")
        self.chk(13, PW, 4)
        A(f"ds_write_b128 v6, v[{PW}:{PW+3}] offset:{PL}")
        self.chk_branch(13, "L_sp_d", 2)
        A("s_add_u32 s42, s42, 128")
        A("v_mov_b32 v13, s42")
        A(f"ds_write_b32 v10, v13 offset:{DEC+4}")
        if self.diag:
            A("s_mov_b32 s84, s42"); A("s_mov_b32 s85, 0")
        A("s_branch L_nopub")
        A("L_give:")
        A(f"s_sub_i32 s42, {(4*self.xc + self.xd)//ps}, s42")
        A(f"s_mul_i32 s42, s42, {self.xk*ps}"); A("s_ashr_i32 s42, s42, 6")
        A("s_max_i32 s42, s42, 0"); A(f"s_min_i32 s42, s42, {self.xmax}")
        A(f"v_mov_b32 v{T}, s42")
        A("s_cmp_eq_u32 s42, 0")
        A("s_cbranch_scc1 L_give0")
        A(f"global_store_dwordx4 v9, v[{PW}:{PW+3}], s[40:41] sc1")
        A("L_give0:")
        A("s_mov_b64 exec, 1")
        A(f"global_store_dwordx2 v11, v[{T}:{T+1}], s[40:41] sc1")
        A("s_mov_b64 exec, -1")
        A("s_sub_u32 s42, 128, s42")
        A("v_mov_b32 v12, s42"); A("v_mov_b32 v13, s42")
        A(f"ds_write_b64 v10, v[12:13] offset:{DEC}")
        if self.diag:
            A("s_mov_b32 s84, s42"); A("s_mov_b32 s85, 0")
        A("L_nopub:")
        self.stamp(5)
        A("s_cmp_eq_u32 s94, 0")
        A("s_cbranch_scc1 L_hend")
        A("s_cmp_lg_u32 s7, 3")
        A("s_cbranch_scc1 L_nog")
        G, XV = T, T + 1
        C("helper 3: gate of column 4(l&7) + 2(l>>5) + ((l>>4)&1)")
        A("v_and_b32 v12, 7, v4"); A("v_lshlrev_b32 v8, 2, v12")
        A("v_lshrrev_b32 v13, 5, v4"); A("v_lshl_add_u32 v8, v13, 1, v8")
        A("v_bfe_u32 v13, v4, 4, 1"); A("v_add_u32 v8, v8, v13")
        A("s_lshl_b32 s42, s93, 6")
        A("v_lshl_add_u32 v13, v8, 1, s42")
        A(f"global_load_ushort v{G}, v13, s[34:35]")
        A("v_lshl_add_u32 v13, s92, 10, v13")
        A(f"global_load_ushort v{XV}, v13, s[16:17]")
        if self.ot:
            C("(value unused: the address translation of the output is fetched ahead of the store)")
            A(f"global_load_ushort v{XV+1}, v13, s[36:37]")
        C("Z[b][cq][r=l>>3][l&1][(l>>1)&3][4]")
        A("s_lshl4_add_u32 s42, s92, s93")
        A(f"s_mul_i32 s42, s42, {NZ*128}"); A(f"s_add_u32 s42, s42, {WS_Z:#x}")
        A("v_lshrrev_b32 v13, 3, v4"); A("v_lshl_add_u32 v12, v13, 7, s42")
        A("v_and_b32 v13, 1, v4"); A("v_lshl_add_u32 v12, v13, 6, v12")
        A("v_and_b32 v13, 6, v4"); A("v_lshl_add_u32 v12, v13, 3, v12")
        self.spin_begin("L_sp_z")
        C("the lanes past the last line are masked off and hold tagged zeros")
        for d in range(4):
            A(f"v_mov_b32 v{RD+d}, s{96+d}")
        A("s_mov_b32 exec_hi, 0xffffff")
        A(f"global_load_dwordx4 v[{RD}:{RD+3}], v12, s[40:41] sc1")
        A("s_mov_b32 exec_hi, -1")
        A("s_waitcnt vmcnt(0)")
        self.chk(13, RD, 4)
        self.chk_branch(13, "L_sp_z", 32)
        A(f"v_lshlrev_b32 v{G}, 16, v{G}")
        A(f"v_lshlrev_b32 v{XV}, 16, v{XV}")
        self.xl_reduce4(RD)
        self.rnd(RD, RD)
        A(f"v_add_f32 v{RD}, v{RD}, v{G}")
        self.rnd(RD, RD)
        A(f"v_mul_f32 v{RD+1}, {f32(-math.log2(math.e))}, v{RD}")
        A(f"v_exp_f32 v{RD+1}, v{RD+1}")
        A("v_lshlrev_b32 v8, 3, v8")
        A(f"v_add_f32 v{RD+1}, 1.0, v{RD+1}")
        A(f"v_rcp_f32 v{RD+1}, v{RD+1}")
        A("s_nop 0")
        A(f"v_mul_f32 v{G}, v{RD}, v{RD+1}")
        self.rnd(G, G)
        A(f"ds_write_b64 v8, v[{G}:{G+1}] offset:{GX}")
        A("L_nog:")
        if self.dry:
            A("s_cmp_lg_u32 s7, 1")
            A("s_cbranch_scc1 L_nodry")
            C("helper 1 walks through the code below with no lane active to bring it into the instruction cache")
            A("s_mov_b32 s94, 3")
            A("s_mov_b64 s[100:101], 0")
            A("s_branch L_proj")
            A("L_dry:")
            A("s_sub_u32 s94, s94, 1")
            A("s_cmp_eq_u32 s94, 2")
            A("s_cbranch_scc1 L_h1")
            A("s_mov_b64 s[100:101], -1")
            A("s_mov_b64 exec, -1")
            A("s_waitcnt vmcnt(0)")
            A("L_nodry:")
        wait_prg("L_sp_v", 104, 16)
        self.spin_begin("L_sp_o")
        A(f"ds_read_b32 v13, v10 offset:{OC}")
        A("s_waitcnt lgkmcnt(0)")
        A(f"v_cmp_gt_u32 vcc, {self.pw}, v13")
        A("s_cbranch_vccz L_proj")
        self.spin_end("L_sp_o", 1)
        self.project()
        A("L_hend:")
        self.dump_stamps(14, 16)
        if self.prog:
            A("s_cmp_ge_u32 s3, 4")
            A("s_cbranch_scc1 L_end")
            A("s_lshl_b32 s60, s2, 2"); A("s_add_u32 s60, s60, s3"); A("s_lshl_b32 s60, s60, 6")
            A(f"s_add_u32 s60, s60, {WS_DIAG + 0x80000:#x}")
            A("v_and_b32 v24, 63, v0"); A("v_lshlrev_b32 v24, 2, v24")
            A("v_add_u32 v24, s60, v24")
            A("s_mov_b64 exec, 0xffff")
            A("global_store_dword v24, v60, s[40:41]")

def gen(**kw):
    return Gen(**kw).gen()

if __name__ == "__main__":
    out = sys.argv[1]
    kw = eval("dict(" + (sys.argv[2] if len(sys.argv) > 2 else "") + ")")
    open(out, "w").write(gen(**kw))
```

```python
import sys, math, struct
NAME = "recurrent_scan__mha_block_cached__mixer_channel_mlp__decode_kernel"

def f32(x):
    return "0x%08x" % struct.unpack("<I", struct.pack("<f", x))[0]

HEADER = """; Kernarg layout for this problem (104 bytes, ptrs only, base s[0:1]):
;   offset  32: d_in[4] A_wo  shape=(4096, 512) dtype=bfloat16
;   offset  96: d_ws      workspace
"""

XN, QP, MLM, MLL, TAGL = 0, 8192, 8448, 8512, 8704
CFL, DEC, RK = 8576, 8640, 8720
OA, OC, FC = 9216, 11264, 11520
PRG, PL = 11776, 12032
FA, GX = 0, 4096
FAS = 80
LDS_BYTES = 13312
WS_O, WS_ML, WS_EP, WS_Q, WS_U, WS_Z, WS_DIAG = 0x40000, 0x80000, 0x90000, 0x100000, 0x180000, 0x1c0000, 0x200000
WS_RP = 0x98000
WS_GH, WS_GP = 0xa0000, 0xc0000
NUNIT = 112
NZ = 7
SPIN_MAX = 1 << 18

class Gen:
    DEF = dict(kvflags="nt", mflags="", diag=False, prog=False, fine=0, DK=8, DV=8, adel=2, pre=3, dks=6, skip=(),
               mpar=0, cpar=1, fprio=3, qsleep=1, w2p=4, cpf=0, early=1, dsl=2,
               xc=92, xs=58, xd=52, xk=8, xmax=16, xsl=2, pstep=2,
               ctl=1, cg=8, cu0=24, culo=16, cuhi=32, cc0=2, clim=100, cb=6, csl=0, cbias=0, cend=106, rsl=8, bst=0x500,
               wpre=16, bg=(4, 3, 3), b2=1, pw=1, pd=2, pd1=2, dry=1, wlate=0, am=(0x2000, 0x200, 0x100, 0x8000, 0xa0000, 0x4400, 0, 0x60000, 0x20000, 0x20000, 0, 0x400),
               tv=(0x1000, 0x84c00, 0x400, 0x10000, 0x40000, 0x20000, 0x800), xt=0, xm=0, xe=102, xg=11, xo=0, xpd=1, xsp=0, xtau=27, cfin=32, dw=0, dwf='sc1', dwr=0, wf=4, w2f=1, ack=0, ot=0, vt=0, ofl='')
    def __init__(self, **kw):
        self.L = []
        self.nlab = 0
        for k in kw:
            assert k in self.DEF, k
        for k, v in self.DEF.items():
            setattr(self, k, kw.get(k, v))
        self.skip = set(self.skip)
    def A(self, s):
        self.L.append("  " + s if not s.endswith(":") else s)
    def C(self, s):
        self.L.append("  ; " + s)

    def stamp(self, idx):
        if self.diag:
            self.A(f"s_memrealtime s[{64+2*idx}:{65+2*idx}]")
    def dump_stamps(self, n, vt):
        if not self.diag:
            return
        A = self.A
        for k in range(self.dsl):
            A("s_sleep 127")
        A("s_waitcnt lgkmcnt(0)")
        A("s_lshl_b32 s60, s2, 3"); A("s_add_u32 s60, s60, s3"); A("s_lshl_b32 s60, s60, 7")
        A(f"s_add_u32 s60, s60, {WS_DIAG:#x}")
        A(f"v_mov_b32 v{vt}, s60")
        A("s_mov_b64 exec, 1")
        for j in range(n):
            A(f"v_mov_b32 v{vt+2}, s{64+2*j}"); A(f"v_mov_b32 v{vt+3}, s{65+2*j}")
            A(f"global_store_dwordx2 v{vt}, v[{vt+2}:{vt+3}], s[40:41] offset:{8*j}")
        A("s_getreg_b32 s60, hwreg(HW_REG_XCC_ID)")
        A(f"v_mov_b32 v{vt+2}, s60")
        A(f"global_store_dword v{vt}, v{vt+2}, s[40:41] offset:120")
        A("s_mov_b64 exec, -1")

    def row_allreduce(self, op, r):
        A = self.A
        for m in ("quad_perm:[1,0,3,2]", "quad_perm:[2,3,0,1]", "row_half_mirror", "row_mirror"):
            A("s_nop 1")
            A(f"v_{op}_f32_dpp v{r}, v{r}, v{r} {m} row_mask:0xf bank_mask:0xf")
    def wave_allreduce_add(self, r, t, op="add"):
        A = self.A
        self.row_allreduce(op, r)
        for sw in ("v_permlane16_swap_b32", "v_permlane32_swap_b32"):
            A(f"v_mov_b32 v{t}, v{r}")
            A("s_nop 1")
            A(f"{sw} v{r}, v{t}")
            A(f"v_{op}_f32 v{r}, v{r}, v{t}")
    def rnd(self, d, s):
        self.A(f"v_cvt_pk_bf16_f32 v{d}, 0, v{s}")

    def layernorm(self, X, n, T, P, unpack_after=True):
        A = self.A
        s, t, q, d = T, T + 1, T + 2, T + 3
        red = (lambda r: self.wave_allreduce_add(r, t)) if n == 8 else (lambda r: self.row_allreduce("add", r))
        A(f"v_add_f32 v{s}, v{X}, v{X+1}")
        for i in range(2, n):
            A(f"v_add_f32 v{s}, v{s}, v{X+i}")
        red(s)
        A(f"v_mul_f32 v{s}, {f32(1.0/512)}, v{s}")
        A(f"v_sub_f32 v{d}, v{X}, v{s}")
        A(f"v_mul_f32 v{q}, v{d}, v{d}")
        for i in range(1, n):
            dd = d if i % 2 == 0 else t
            A(f"v_sub_f32 v{dd}, v{X+i}, v{s}")
            A(f"v_fmac_f32 v{q}, v{dd}, v{dd}")
        red(q)
        A(f"v_mul_f32 v{q}, {f32(1.0/512)}, v{q}")
        self.rnd(s, s)
        self.rnd(q, q)
        A(f"v_add_f32 v{q}, {f32(1e-5)}, v{q}")
        self.rnd(q, q)
        A(f"v_sqrt_f32 v{q}, v{q}")
        A("s_nop 0")
        self.rnd(q, q)
        A(f"v_rcp_f32 v{q}, v{q}")
        for i in range(n):
            A(f"v_sub_f32 v{X+i}, v{X+i}, v{s}")
        for i in range(n):
            self.rnd(X + i, X + i)
        for i in range(n):
            A(f"v_mul_f32 v{X+i}, v{X+i}, v{q}")
        for i in range(n // 2):
            A(f"v_cvt_pk_bf16_f32 v{P+i}, v{X+2*i}, v{X+2*i+1}")
        if unpack_after:
            self.unpack(X, P, n // 2)
    def unpack(self, X, P, n):
        for i in range(n):
            self.A(f"v_lshlrev_b32 v{X+2*i}, 16, v{P+i}")
            self.A(f"v_and_b32 v{X+2*i+1}, 0xffff0000, v{P+i}")

    def slabload(self, dst, srd, voff, stride, flags, last_inc=None, pace=None, cont=False):
        A = self.A
        for e in range(8):
            r = dst + 4 * e
            if pace is not None and (e >= pace or cont):
                A(f"s_waitcnt vmcnt({pace-1})")
            A(f"buffer_load_dwordx4 v[{r}:{r+3}], v{voff}, {srd}, s50 offen {flags}".rstrip())
            inc = stride if e < 7 else last_inc
            if inc is not None:
                A(f"s_add_u32 s50, s50, {inc}")
    def slabperm(self, dst, src, js=4):
        A = self.A
        rows = src if isinstance(src, list) else [src + 4 * e for e in range(8)]
        for d in range(4):
            for hf in range(2):
                jj = 2 * d + hf
                for q in range(4):
                    A(f"v_perm_b32 v{dst + js*jj + q}, v{rows[2*q+1] + d}, v{rows[2*q] + d}, s{48 + hf}")
    def slabmfma(self, RD, RA, B, first):
        A = self.A
        for jj in range(8):
            b = B + 4 * jj
            c = "0" if first else f"v[{RD+4*jj}:{RD+4*jj+3}]"
            A(f"v_mfma_f32_16x16x32_bf16 v[{RD+4*jj}:{RD+4*jj+3}], v[{RA}:{RA+3}], v[{b}:{b+3}], {c}")

    def fold4(self, T, RD):
        A = self.A
        for bk in range(4):
            for q in range(4):
                d = RD + 4 * q + 16 * (bk >> 1)
                A(f"v_add_f32_dpp v{T+q}, v{d + (bk ^ 2)}, v{d + bk} row_ror:8 row_mask:0xf bank_mask:{1 << bk:#x}")
        for q in range(4):
            A(f"v_add_f32_dpp v{T+q}, v{T+q}, v{T+q} row_shl:4 row_mask:0xf bank_mask:0x5")
        A("s_mov_b32 exec_lo, 0x0f0f0f0f"); A("s_mov_b32 exec_hi, 0x0f0f0f0f")
        self.tag4(T)
    def spin_begin(self, lab):
        self.A(f"s_mov_b32 s55, {SPIN_MAX}")
        self.A(f"{lab}:")
    def spin_end(self, lab, sleep):
        A = self.A
        A(f"s_sleep {sleep}")
        A("s_sub_u32 s55, s55, 1")
        A("s_cmp_lg_u32 s55, 0")
        A(f"s_cbranch_scc1 {lab}")
    def xl_reduce4(self, R):
        A = self.A
        A("s_nop 0")
        for d in range(2):
            A(f"v_permlane32_swap_b32 v{R+d}, v{R+d+2}")
        for d in range(2):
            A(f"v_add_f32 v{R+d}, v{R+d}, v{R+d+2}")
        A("s_nop 1")
        A(f"v_permlane16_swap_b32 v{R}, v{R+1}")
        A(f"v_add_f32 v{R}, v{R}, v{R+1}")
        A("s_nop 1")
        A(f"v_add_f32_dpp v{R}, v{R}, v{R} row_ror:8 row_mask:0xf bank_mask:0xf")

    def gen(self):
        A, C = self.A, self.C
        self.L.append(HEADER.rstrip())
        self.L.append(f"; @launch grid=(256,1,1) block=(512,1,1) lds={LDS_BYTES}")
        self.L.append('.amdgcn_target "amdgcn-amd-amdhsa--gfx950"')
        self.L.append(".text"); self.L.append(f".globl {NAME}"); self.L.append(".p2align 8")
        self.L.append(f".type {NAME},@function"); self.L.append(f"{NAME}:")
        self.stamp(0)
        A("s_load_dwordx16 s[16:31], s[0:1], 0")
        A("s_load_dwordx8 s[32:39], s[0:1], 64")
        A("s_load_dwordx2 s[40:41], s[0:1], 96")
        A("s_cmp_ge_u32 s2, 256")
        A("s_cbranch_scc1 L_end")
        A("v_lshrrev_b32 v1, 6, v0")
        A("v_and_b32 v2, 15, v0")
        A("v_readfirstlane_b32 s3, v1")
        C("s59 = producer index b*64 + 2h + side, b = wg>>6, side = (wg>>2)&1, h = 8((wg&3)^side) + ((wg>>3)&7):")
        C("the two halves of a head's keys go to the WGs wg and wg^5")
        A("s_bfe_u32 s5, s2, 0x10002")
        A("s_and_b32 s59, s2, 0xc0"); A("s_and_b32 s4, s2, 3"); A("s_xor_b32 s4, s4, s5"); A("s_lshl4_add_u32 s59, s4, s59")
        A("s_bfe_u32 s4, s2, 0x30003"); A("s_lshl1_add_u32 s59, s4, s59")
        A("s_or_b32 s59, s59, s5")
        if self.cpf:
            A("s_cmp_lt_u32 s3, 4")
            A("s_cbranch_scc1 L_stream")
            C("helper waves pull a slice of this kernel's code towards the L2")
            A("s_getpc_b64 s[42:43]")
            A("L_pc:")
            A("s_lshr_b32 s44, s2, 3"); A("s_lshl2_add_u32 s44, s44, s3")
            A(f"s_mul_i32 s44, s44, {64*self.cpf}")
            A(f"s_min_u32 s44, s44, L_end-L_pc-{64*(self.cpf-1)}")
            for k in range(self.cpf):
                A(f"s_load_dword s{45+k}, s[42:43], s44 offset:{64*k}")
            A("s_branch L_helper")
            A("L_stream:")
        else:
            A("s_cmp_ge_u32 s3, 4")
            A("s_cbranch_scc1 L_helper")
        self.stream()
        self.helper()
        A("L_end:")
        A("s_endpgm")
        L = self.L
        L.append('.section .rodata,"a"'); L.append(".p2align 6"); L.append(f".amdhsa_kernel {NAME}")
        L.append("  .amdhsa_next_free_vgpr 256"); L.append("  .amdhsa_next_free_sgpr 102"); L.append("  .amdhsa_accum_offset 256")
        L.append("  .amdhsa_group_segment_fixed_size 0"); L.append("  .amdhsa_kernarg_size 104")
        L.append("  .amdhsa_user_sgpr_count 2"); L.append("  .amdhsa_user_sgpr_kernarg_segment_ptr 1")
        L.append("  .amdhsa_system_sgpr_workgroup_id_x 1")
        L.append("  .amdhsa_float_denorm_mode_32 3")
        L.append(".end_amdhsa_kernel")
        return "\n".join(L) + "\n"

    def is_cons(self):
        self.A("s_and_b32 s42, s2, 0x81"); self.A(f"s_cmp_eq_u32 s42, {0x80 | self.cpar:#x}")
        self.A("s_cselect_b32 s94, 1, 0")

    def stream(self):
        A, C = self.A, self.C
        RING = 64
        P = 24
        Q = 8
        S = 40
        ACC = 48
        PLO, PHI = 12, 13
        VOFF = 5
        fl = self.kvflags
        DK, DV, pre = self.DK, self.DV, self.pre
        assert DK <= DV <= 8
        C("===== stream waves =====")
        A("v_lshlrev_b32 v7, 4, v2")
        A("v_lshrrev_b32 v6, 4, v0")
        A("s_lshr_b32 s7, s59, 1"); A("s_lshl_b32 s7, s7, 20")
        A("s_mov_b32 s10, 0x100000"); A("s_mov_b32 s11, 0x20000")
        am, tv = self.am, self.tv
        def lin(vs, t):
            x = 0
            for i, v in enumerate(vs):
                if t >> i & 1:
                    x ^= v
            return x
        def slin(dst, terms):
            k = 0
            for sr, bit, m in terms:
                if m:
                    A(f"s_bitcmp1_b32 {sr}, {bit}"); A(f"s_cselect_b32 {'s6' if k else dst}, {m:#x}, 0")
                    if k:
                        A(f"s_xor_b32 {dst}, {dst}, s6")
                    k += 1
        if not self.xt:
            C("every row of lanes walks through keys of its own: offset = v5 ^ f(group) ^ g(slot), all linear over GF(2)")
            A("v_bfe_i32 v3, v0, 4, 1"); A("v_bfe_i32 v4, v0, 5, 1")
            slin("s50", [("s3", 0, am[2]), ("s3", 1, am[3])] + [("s59", b, am[4 + b]) for b in range(8)])
            A(f"v_and_b32 v3, {am[0]:#x}, v3"); A(f"v_and_b32 v4, {am[1]:#x}, v4")
            A("v_xor_b32 v5, s50, v7"); A("v_bitop3_b32 v5, v5, v3, v4 bitop3:0x96")
        A("s_waitcnt lgkmcnt(0)")
        A("s_add_u32 s8, s18, s7"); A("s_addc_u32 s9, s19, 0")
        if self.xt:
            A("s_lshl_b32 s42, s59, 6"); A("v_lshl_add_u32 v4, v6, 2, s42"); A("v_xor_b32 v3, 64, v4")
            A("global_load_dword v4, v4, s[26:27]"); A("global_load_dword v3, v3, s[26:27]")
            A("s_load_dwordx16 s[64:79], s[26:27], 0x4000"); A("s_load_dwordx16 s[80:95], s[26:27], 0x4040")
            A("s_waitcnt vmcnt(0) lgkmcnt(0)")
            A("v_xor_b32 v3, v7, v3"); A("v_xor_b32 v5, v7, v4")
            A("v_xor_b32 v3, s79, v3"); A("v_xor_b32 v3, s87, v3")
        self.stamp(5)
        issued = []
        def addr(slot, tag=None):
            if self.xt:
                if tag and slot % 16 == 0:
                    A(f"v_xor_b32 v58, s{80 + tag[0]}, v5")
                A(f"v_xor_b32 v4, s{64 + slot % 16}, v58")
                return 4
            x = lin(tv, slot % 16 + (tag[0] * 16 if tag else 0))
            b = 5 if tag else 58
            if x:
                A(f"v_xor_b32 v4, {x:#x}, v{b}"); b = 4
            return b
        def load(slot, srd, so="0", tag=None, b=None):
            r = RING + 4 * slot
            if b is None:
                b = addr(slot, tag)
            A(f"buffer_load_dwordx4 v[{r}:{r+3}], v{b}, {srd}, {so} offen {fl}".rstrip())
            issued.append(tag)
        def nextgroup():
            if self.xt:
                A("s_add_u32 m0, s54, 1"); A("s_nop 0"); A("s_movrels_b32 s50, s80")
            else:
                A("s_add_u32 s42, s54, 1")
                if tv[5] == 2 * tv[4] and tv[6] == 4 * tv[4] and tv[4] & (tv[4] - 1) == 0:
                    A("s_and_b32 s50, s42, 7"); A(f"s_lshl_b32 s50, s50, {tv[4].bit_length() - 1}")
                else:
                    slin("s50", [("s42", i, tv[4 + i]) for i in range(3)])
            A("v_xor_b32 v58, s50, v5")
        def wait(tag):
            A(f"s_waitcnt vmcnt({len(issued) - 1 - issued.index(tag)})")
        def cwait(D, j):
            self.nlab += 1
            lo = self.culo // 4
            for L in range(D, lo - 1, -1):
                A(f"s_waitcnt vmcnt({L-1})")
                if L == D:
                    A(f"s_cbranch_scc0 L_cw{self.nlab}")
                if L > lo:
                    A(f"s_cmp_ge_u32 s62, {4*L - (j & 3)}")
                    A(f"s_cbranch_scc1 L_cw{self.nlab}")
            A(f"L_cw{self.nlab}:")
        def swait(D, lo=None):
            A(f"s_waitcnt vmcnt({D-1})")
            if lo is not None and lo < D:
                self.nlab += 1
                A(f"s_cbranch_vccnz L_ad{self.nlab}")
                A(f"s_waitcnt vmcnt({lo-1})")
                A(f"L_ad{self.nlab}:")
        def setup2():
            A("s_mov_b32 s14, s10"); A("s_mov_b32 s15, s11"); A("s_mov_b32 s46, s10"); A("s_mov_b32 s47, s11")
            A("s_add_u32 s12, s20, s7"); A("s_addc_u32 s13, s21, 0")
            A("s_mov_b32 s52, 0xaaaaaaaa"); A("s_mov_b32 s53, 0xaaaaaaaa")
            A("s_mov_b32 s56, 0xcccccccc"); A("s_mov_b32 s57, 0xcccccccc")
            C("s60 = key group before which this WG turns to its part of wo; it keeps more loads in flight in return")
            A(f"s_lshr_b32 s60, s2, {self.bg[2]}"); A(f"s_and_b32 s60, s60, {self.bg[1]}"); A(f"s_add_u32 s60, s60, {self.bg[0]}")
            self.is_cons()
            A("s_cselect_b64 vcc, -1, 0")
            A("s_cselect_b32 s60, s60, 0")
            A("v_mov_b32 v21, 0"); A("v_mov_b32 v62, 0")
        dd = self.dks
        for gi in range(pre):
            for j in range(16):
                n = 16 * gi + j
                if n == dd:
                    setup2()
                    self.stamp(6)
                if self.wf and n == self.wf:
                    A("s_barrier")
                b = addr(n, (gi, j))
                if n >= dd:
                    swait(dd)
                if n == dd:
                    self.stamp(7)
                if n == 2 * dd:
                    self.stamp(8)
                load(n, "s[8:11]", tag=(gi, j), b=b)
        self.stamp(1)
        A("s_barrier")
        A(f"ds_read_b128 v[{Q}:{Q+3}], v7 offset:{QP}")
        self.stamp(2)
        A("s_waitcnt lgkmcnt(0)")
        def qk(slots):
            for d in range(4):
                for slot in slots:
                    r = RING + 4 * slot
                    p = P + slot % 16
                    c = "0" if d == 0 else f"v{p}"
                    A(f"v_dot2_f32_bf16 v{p}, v{r+d}, v{Q+d}, {c}")
        def treduce(dst, mid=()):
            C("transposing reduction: lane (g,c) <- score of load c, key g")
            for t in range(8):
                A(f"v_add_f32_dpp v{P+t}, v{P+t}, v{P+t} row_ror:8 row_mask:0xf bank_mask:0x3")
            for t in range(8):
                A(f"v_add_f32_dpp v{P+t}, v{P+t+8}, v{P+t+8} row_ror:8 row_mask:0xf bank_mask:0xc")
            for t in range(4):
                A(f"v_add_f32_dpp v{P+t}, v{P+t}, v{P+t} row_half_mirror row_mask:0xf bank_mask:0x5")
            for t in range(4):
                A(f"v_add_f32_dpp v{P+t}, v{P+t+4}, v{P+t+4} row_half_mirror row_mask:0xf bank_mask:0xa")
            U0, U1, T0, T1 = P + 8, P + 9, P + 10, P + 11
            A(f"v_cndmask_b32 v{U0}, v{P+1}, v{P}, s[52:53]")
            A(f"v_cndmask_b32 v{U1}, v{P+3}, v{P+2}, s[52:53]")
            A(f"v_cndmask_b32 v{T0}, v{P}, v{P+1}, s[52:53]")
            A(f"v_cndmask_b32 v{T1}, v{P+2}, v{P+3}, s[52:53]")
            A("s_nop 1")
            A(f"v_add_f32_dpp v{T0}, v{U0}, v{T0} quad_perm:[1,0,3,2] row_mask:0xf bank_mask:0xf")
            A(f"v_add_f32_dpp v{T1}, v{U1}, v{T1} quad_perm:[1,0,3,2] row_mask:0xf bank_mask:0xf")
            A(f"v_cndmask_b32 v{U0}, v{T1}, v{T0}, s[56:57]")
            A(f"v_cndmask_b32 v{U1}, v{T0}, v{T1}, s[56:57]")
            if mid:
                for m in mid:
                    A(m)
            else:
                A("s_nop 1")
            A(f"v_add_f32_dpp v{dst}, v{U0}, v{U1} quad_perm:[2,3,0,1] row_mask:0xf bank_mask:0xf")
        C("catch-up over the prefetched groups; group `pre` is loaded into ring slots 0..15 meanwhile")
        nxt = 0
        for gi in range(pre):
            for j in range(0, 16, 2):
                wait((gi, j + 1))
                qk([16 * gi + j, 16 * gi + j + 1])
                if gi == 0:
                    want = j + 2 if (j < 8 or pre == 1) else 8
                elif gi == 1:
                    want = 8 + j // 2 + 1
                else:
                    want = 16
                while nxt < want:
                    load(nxt, "s[8:11]", tag=(pre, nxt)); nxt += 1
            A("s_nop 0")
            treduce(S + 8 - pre + gi)
        assert nxt == 16
        for j in range(16 - DK):
            wait((pre, j))
            qk([j])
        A(f"s_mov_b32 s54, {pre}")
        A("s_branch L_kmid")
        A("L_kloop:")
        A("s_cmp_eq_u32 s54, s60")
        A("s_cbranch_scc1 L_burst")
        A("L_nobu:")
        for j in range(16 - DK):
            b = addr(j + DK)
            swait(DK, DK - self.adel)
            load(j + DK, "s[8:11]", b=b)
            qk([j])
        A("L_kmid:")
        if self.prog:
            A("s_memrealtime s[90:91]")
        C("the rest refills from the next group (V group 0 after the last K group)")
        nextgroup()
        A("s_cmp_eq_u32 s54, 7")
        A("s_cselect_b32 s44, s12, s8"); A("s_cselect_b32 s45, s13, s9")
        for j in range(16 - DK, 16):
            b = addr(j + DK - 16)
            swait(DK, DK - self.adel)
            load(j + DK - 16, "s[44:47]", b=b)
            qk([j])
        if self.prog:
            A("s_waitcnt lgkmcnt(0)")
            A("s_mov_b32 m0, s54"); A("s_nop 0")
            A("v_writelane_b32 v60, s90, m0")
        for i in range(7):
            A(f"v_mov_b32 v{S+i}, v{S+i+1}")
        treduce(S + 7, ("s_add_u32 s54, s54, 1", "s_cmp_lt_u32 s54, 8"))
        A("s_cbranch_scc1 L_kloop")
        self.stamp(11)
        for j in range(DK, DV):
            load(j, "s[12:15]")
        C("softmax over this row's 128 keys (true max of the partial; partials are merged exactly later)")
        M, Ls = 14, 15
        cs = math.log2(math.e) / math.sqrt(128.0)
        A(f"s_mov_b32 s58, {f32(cs)}")
        A(f"v_max3_f32 v{M}, v{S}, v{S+1}, v{S+2}")
        A(f"v_max3_f32 v{M}, v{M}, v{S+3}, v{S+4}")
        A(f"v_max3_f32 v{M}, v{M}, v{S+5}, v{S+6}")
        A(f"v_max_f32 v{M}, v{M}, v{S+7}")
        self.row_allreduce("max", M)
        A(f"v_mul_f32 v{M}, s58, v{M}")
        for i in range(8):
            A(f"v_fma_f32 v{S+i}, v{S+i}, s58, -v{M}")
        for i in range(8):
            A(f"v_exp_f32 v{S+i}, v{S+i}")
        for i in range(8):
            A(f"v_mov_b32 v{ACC+i}, 0")
        A(f"v_add_f32 v{Ls}, v{S}, v{S+1}")
        for i in range(2, 8):
            A(f"v_add_f32 v{Ls}, v{Ls}, v{S+i}")
        self.row_allreduce("add", Ls)
        A(f"v_lshlrev_b32 v16, 2, v6")
        A("v_lshlrev_b32 v18, 2, v0")
        A(f"ds_write_b32 v18, v{S+7} offset:{PL}")
        A(f"v_min_u32 v{M}, -2, v{M}")
        A(f"v_min_u32 v{Ls}, -2, v{Ls}")
        A(f"ds_write_b32 v16, v{M} offset:{MLM}")
        A(f"ds_write_b32 v16, v{Ls} offset:{MLL}")
        A("s_mov_b32 s54, 0")
        A("v_and_b32 v19, 0xfc, v18"); A("v_mov_b32 v56, 1")
        if self.ctl:
            A("v_mov_b32 v59, 0"); A(f"s_mov_b32 s62, {self.cu0}"); A(f"v_mov_b32 v61, {self.cu0}")
        A(f"s_mov_b32 s61, {144 - DV}")
        def pv(slot):
            r = RING + 4 * slot
            for d in range(4):
                A(f"v_dot2c_f32_bf16_dpp v{ACC+2*d}, v{PLO}, v{r+d} row_newbcast:{slot} row_mask:0xf bank_mask:0xf")
                A(f"v_dot2c_f32_bf16_dpp v{ACC+2*d+1}, v{PHI}, v{r+d} row_newbcast:{slot} row_mask:0xf bank_mask:0xf")
        self.stamp(12)
        A("L_vloop:")
        A("s_cmp_lg_u32 s54, 6")
        A("s_cbranch_scc1 L_nocf")
        C("from here on everything is scaled to the final softmax weights of the head")
        C("v17: dimension pair of lane (g,c) after the row reduction: 4c + 2(g&1) + (g>>1)")
        A("v_and_b32 v17, 1, v6"); A("v_lshl_add_u32 v17, v17, 3, v7")
        A("v_bfe_u32 v21, v6, 1, 1"); A("v_lshl_add_u32 v17, v21, 2, v17")
        A("s_lshl_b32 s42, s3, 9"); A("v_lshl_add_u32 v17, v17, 1, s42")
        A("s_lshl_b32 s42, s59, 8"); A(f"s_add_u32 s42, s42, {WS_O:#x}")
        A("v_lshlrev_b32 v22, 1, v19"); A("v_add_u32 v21, s42, v19")
        self.spin_begin("L_sp_cf")
        A(f"ds_read_b32 v57, v16 offset:{CFL}")
        A("s_waitcnt lgkmcnt(0)")
        A("v_cmp_eq_u32 vcc, -1, v57")
        A("s_cbranch_vccz L_sp_cf_done")
        self.spin_end("L_sp_cf", 1)
        A("L_sp_cf_done:")
        for r in list(range(ACC, ACC + 8)) + [S, S + 1]:
            A(f"v_mul_f32 v{r}, v57, v{r}")
        if not self.ctl:
            A("s_cmp_lg_u32 s94, 0")
            A("s_cselect_b64 vcc, -1, 0")
        A("L_nocf:")
        A("s_waitcnt lgkmcnt(0)")
        A(f"v_cvt_pk_bf16_f32 v{PLO}, v{S}, 0")
        A(f"v_cvt_pk_bf16_f32 v{PHI}, 0, v{S}")
        for i in range(7):
            A(f"v_mov_b32 v{S+i}, v{S+i+1}")
        for j in range(16):
            if j == 16 - DV:
                if self.prog:
                    A("s_memrealtime s[90:91]")
                    A("s_add_u32 m0, s54, 8")
                    A("s_waitcnt lgkmcnt(0)")
                    A("v_writelane_b32 v60, s90, m0")
                nextgroup()
                A("s_sub_u32 s42, s54, 6")
                A("s_cmp_gt_u32 s42, 1")
                A("s_cbranch_scc1 L_nodec")
                C("number of slots this WG works on: fewer when it hands some over, more when it takes some")
                A("s_lshl_b32 s42, s42, 2")
                A("v_mov_b32 v4, s42")
                self.spin_begin("L_sp_dec")
                A(f"ds_read_b32 v57, v4 offset:{DEC}")
                A("s_waitcnt lgkmcnt(0)")
                A("v_readfirstlane_b32 s61, v57")
                A("s_cmp_lg_u32 s61, -1")
                A("s_cbranch_scc1 L_sp_dec_done")
                self.spin_end("L_sp_dec", 1)
                A("L_sp_dec_done:")
                A("s_max_i32 s61, s61, 112"); A("s_min_i32 s61, s61, 144")
                A("s_lshl_b32 s43, s54, 4"); A(f"s_add_u32 s43, s43, {DV}"); A("s_sub_u32 s61, s61, s43")
                A("s_cmp_lg_u32 s54, 7")
                A("s_cbranch_scc1 L_nodec")
                C("the slots taken over are the last ones of the other side's last group, backwards")
                if self.xt:
                    A("v_mov_b32 v58, v3")
                else:
                    A(f"v_xor_b32 v58, {am[4] ^ lin(tv, 127):#x}, v5")
                A("v_xor_b32 v4, 60, v18")
                A(f"ds_read_b32 v{S}, v4 offset:{PL}")
                A("L_nodec:")
            b = addr(j + DV)
            A(f"s_cmp_gt_i32 s61, {j}")
            A(f"s_cselect_b32 s51, 0, s14")
            if self.ctl:
                cwait(DV, j)
            else:
                swait(DV, DV - self.adel)
            load((j + DV) % 16, "s[12:15]", "s51", b=b)
            pv(j)
            if j % self.pstep == 0:
                A(f"ds_add_u32 v19, v56 offset:{PRG}")
            if self.ctl and j % 2 == 1:
                A(f"ds_read_b32 v61, v59 offset:{RK}")
            if self.ctl and j % 2 == 0:
                A("s_waitcnt lgkmcnt(1)")
                A("v_readfirstlane_b32 s62, v61")
            A(f"s_cmp_le_i32 s61, {j + 1 - DV}")
            A("s_cbranch_scc1 L_vdone")
        A("s_add_u32 s54, s54, 1")
        A("s_sub_u32 s61, s61, 16")
        A("s_branch L_vloop")
        A("L_vdone:")
        self.stamp(4)
        A("s_nop 1")
        C("rows are added in the wave, waves in LDS; whoever comes last publishes the sum")
        for d in (0, 1, 4, 5):
            A(f"v_permlane32_swap_b32 v{ACC+d}, v{ACC+d+2}")
        for d in (0, 4):
            A(f"v_pk_add_f32 v[{ACC+d}:{ACC+d+1}], v[{ACC+d}:{ACC+d+1}], v[{ACC+d+2}:{ACC+d+3}]")
        A("s_nop 1")
        for d in (0, 1):
            A(f"v_permlane16_swap_b32 v{ACC+d}, v{ACC+d+4}")
        A(f"v_pk_add_f32 v[{ACC}:{ACC+1}], v[{ACC}:{ACC+1}], v[{ACC+4}:{ACC+5}]")
        A(f"ds_write_b64 v17, v[{ACC}:{ACC+1}] offset:{OA}")
        A(f"ds_add_rtn_u32 v20, v19, v56 offset:{OC}")
        A(f"ds_read2st64_b64 v[24:27], v22 offset0:{OA//512} offset1:{OA//512+1}")
        A(f"ds_read2st64_b64 v[28:31], v22 offset0:{OA//512+2} offset1:{OA//512+3}")
        A("s_waitcnt lgkmcnt(1)")
        A("v_cmpx_eq_u32 vcc, 3, v20")
        A("v_pk_add_f32 v[24:25], v[24:25], v[26:27]")
        A("s_waitcnt lgkmcnt(0)")
        A("v_pk_add_f32 v[28:29], v[28:29], v[30:31]")
        A("v_pk_add_f32 v[24:25], v[24:25], v[28:29]")
        A("v_cvt_pk_bf16_f32 v22, v24, v25")
        A("v_min_u32 v22, -2, v22")
        A("global_store_dword v21, v22, s[40:41] sc1")
        self.stamp(3)
        A("s_mov_b64 exec, -1")
        A("s_cmp_lg_u32 s94, 0")
        A("s_cbranch_scc1 L_proj")
        if self.fine:
            A("s_waitcnt vmcnt(0)")
            self.stamp(8)
        if self.diag:
            A("s_branch L_hend")
        else:
            A("s_endpgm")

    TB = 100
    def tag4(self, R, n=4):
        for i in range(n):
            self.A(f"v_and_or_b32 v{R+i}, v{R+i}, v15, s{96 + i % 4}")
    def chk(self, acc, R, n, D=None):
        D = R if D is None else D
        for i in range(n):
            self.A(f"v_xor_b32 v{D+i}, s{96 + i % 4}, v{R+i}")
        self.A(f"v_or3_b32 v{acc}, v{D}, v{D+1}, v{D+2}")
        i = 3
        while i < n:
            if i + 1 < n:
                self.A(f"v_or3_b32 v{acc}, v{acc}, v{D+i}, v{D+i+1}"); i += 2
            else:
                self.A(f"v_or_b32 v{acc}, v{acc}, v{D+i}"); i += 1
    def chk_branch(self, acc, lab, sleep):
        A = self.A
        A(f"v_cmp_ne_u32_sdwa vcc, v{acc}, v10 src0_sel:BYTE_0 src1_sel:DWORD")
        A(f"s_cbranch_vccz {lab}_done")
        self.spin_end(lab, sleep)
        A(f"{lab}_done:")

    def set_tag(self):
        for k in range(4):
            self.A(f"s_bfe_u32 s{96+k}, s63, {0x80000 + 8*k:#x}")

    def control5(self):
        A, C = self.A, self.C
        ps, DV = self.pstep, self.DV
        c0 = self.cc0 * 4 // ps
        A("s_cmp_lg_u32 s7, 0")
        A("s_cbranch_scc1 L_noctl")
        C("helper 0: the number of loads in flight follows this WG's lag behind the WGs it shares a progress line with")
        if self.diag:
            A("s_mov_b32 s86, 0"); A("s_mov_b32 s87, 0")
        A("s_and_b32 s42, s2, 7"); A(f"s_mul_i32 s42, s42, {self.bst}"); A(f"s_add_u32 s42, s42, {WS_RP:#x}")
        A("v_lshl_add_u32 v12, v4, 2, s42")
        A("s_lshr_b32 s43, s2, 3"); A("s_lshl2_add_u32 s42, s43, s42")
        A("v_mov_b32 v14, s42")
        A(f"s_mov_b32 s45, {self.cu0}")
        A("s_cmp_lg_u32 s94, 0")
        A(f"s_cselect_b32 s61, {self.cbias}, 0")
        A(f"s_mov_b32 s55, {SPIN_MAX}")
        A("s_mov_b32 exec_hi, 0")
        A("L_ctl:")
        if self.csl:
            A(f"s_sleep {self.csl}")
        A(f"ds_read_b32 v13, v10 offset:{PRG}")
        A(f"s_sub_u32 s46, {4*DV+64}, s45")
        A("s_lshr_b32 s46, s46, 1")
        A("s_sub_u32 s46, s46, s61")
        A("s_waitcnt lgkmcnt(0)")
        A("v_readfirstlane_b32 s47, v13")
        A("s_add_u32 s42, s47, s46")
        A("s_xor_b32 s43, s42, s63")
        A("v_mov_b32 v13, s43")
        A("s_mov_b32 exec_lo, 1")
        A("global_store_dword v14, v13, s[40:41]")
        A(f"s_cmp_ge_u32 s47, {self.clim*4//ps}")
        A("s_cbranch_scc1 L_ctl2")
        A("s_mov_b32 exec_lo, -1")
        A("global_load_dword v11, v12, s[40:41] sc1")
        A(f"s_sub_u32 s42, s42, {self.cb}")
        A("s_waitcnt vmcnt(0)")
        A("v_xor_b32 v11, s63, v11")
        A("v_cmp_gt_u32 vcc, 0x400, v11")
        A("v_subrev_u32 v11, s42, v11")
        A("v_cndmask_b32 v11, 0, v11, vcc")
        for m in ("quad_perm:[1,0,3,2]", "quad_perm:[2,3,0,1]", "row_half_mirror", "row_mirror"):
            A("s_nop 1")
            A(f"v_add_u32_dpp v11, v11, v11 {m} row_mask:0xf bank_mask:0xf")
        A(f"s_cmp_lt_u32 s47, {c0}")
        A("s_cbranch_scc1 L_ctl3")
        A("v_readlane_b32 s43, v11, 0")
        A("v_readlane_b32 s42, v11, 16")
        A("s_add_i32 s42, s43, s42")
        A(f"s_mul_i32 s42, s42, {self.cg}")
        A(f"s_add_i32 s42, s42, {1 << 8}")
        A(f"s_ashr_i32 s42, s42, 9")
        A(f"s_add_i32 s45, s42, {self.cu0}")
        A(f"s_max_i32 s45, s45, {self.culo}"); A(f"s_min_i32 s45, s45, {self.cuhi}")
        A("v_mov_b32 v13, s45")
        A(f"ds_write_b32 v10, v13 offset:{RK}")
        if self.diag:
            A("s_add_u32 s86, s86, s45"); A("s_add_u32 s87, s87, 1")
        A("s_branch L_ctl3")
        A("L_ctl2:")
        A(f"s_sleep {self.rsl}")
        A("L_ctl3:")
        A("s_sub_u32 s55, s55, 1")
        A("s_cbranch_scc1 L_ctl4")
        A(f"s_cmp_lt_u32 s47, {self.cend*4//ps}")
        A("s_cbranch_scc1 L_ctl")
        A("L_ctl4:")
        if self.cfin:
            A(f"v_mov_b32 v13, {self.cfin}" if self.cfin > 8 else f"v_add_u32 v13, {self.cfin}, v10")
            if self.cfin <= 8:
                A("v_add_u32 v13, s45, v13")
            A(f"ds_write_b32 v10, v13 offset:{RK}")
        A("s_mov_b64 exec, -1")
        A("L_noctl:")

    BB = 128
    def burst(self):
        A, C = self.A, self.C
        BB = self.BB
        A("L_burst:")
        C("this WG projects batch row s92 onto the columns 32 s93..; wave w holds the wo rows of the heads 4w..")
        A("s_bfe_u32 s92, s2, 0x20005")
        A("s_bfe_u32 s93, s2, 0x20003"); A("s_and_b32 s42, s2, 6"); A("s_lshl1_add_u32 s93, s42, s93")
        C("row 64(kk>>1) + 4(kk&1) + 8(c>>2) + 32((e>>1)&1) + 2(e>>2) + (e&1), columns 8(c&3)..")
        A("v_and_b32 v1, 0x2c, v0"); A("v_lshlrev_b32 v1, 11, v1")
        A("v_and_b32 v62, 16, v0"); A("v_lshl_add_u32 v1, v62, 8, v1")
        A("v_and_b32 v63, 3, v0"); A("v_lshl_add_u32 v1, v63, 4, v1")
        A("s_lshl_b32 s28, s3, 19"); A("s_lshl_b32 s42, s93, 6"); A("s_add_u32 s28, s28, s42")
        A("s_add_u32 s29, s28, 0x8000")
        A(f"s_mov_b32 s26, {0 if 'wo' in self.skip else 0x400000:#x}"); A("s_mov_b32 s27, 0x20000")
        A("s_mov_b32 s48, 0x05040100"); A("s_mov_b32 s49, 0x07060302")
        A("s_mov_b64 s[100:101], -1")
        A("s_barrier")
        self.stamp(10)
        stage = [[BB + 64 + 4 * e for e in range(8)], [BB + 96 + 4 * e for e in range(8)], [96 + 4 * e for e in range(8)],
                 [16, 20, 24, 28, 32, 36, 48, 52]]
        for s in range(4):
            for e in range(8):
                r = stage[s][e]
                A(f"buffer_load_dwordx4 v[{r}:{r+3}], v1, s[24:27], s{28 + ((e >> 1) & 1)} offen offset:{(2*(e >> 2) + (e & 1))*1024}")
            if s < 3:
                A("s_add_u32 s28, s28, 0x20000"); A("s_add_u32 s29, s29, 0x20000")
        C("v62: record piece of lane (hh, kl, side, par, ch): O[b][4w + 2m + hh][side] + 16(8kl + 4par + ch)")
        A("s_lshl_b32 s42, s92, 14"); A("s_lshl_b32 s43, s3, 11"); A("s_add_u32 s42, s42, s43"); A(f"s_add_u32 s42, s42, {WS_O:#x}")
        A("v_lshl_add_u32 v62, v62, 3, s42")
        A("v_and_b32 v63, 0x27, v0"); A("v_lshl_add_u32 v62, v63, 4, v62")
        A("v_and_b32 v63, 8, v0"); A("v_lshl_add_u32 v62, v63, 5, v62")
        C("v63: 2:4 pattern of A row i: the first two of every four k for (i&4) == 0, else the last two")
        A("v_bfe_u32 v63, v0, 2, 1")
        A("v_mul_u32_u24 v63, 0xaaaa, v63")
        A("v_add_u32 v63, 0x4444, v63")
        for s in range(4):
            A(f"s_waitcnt vmcnt({24 - 8*s})")
            if s == 3 and self.b2:
                A("s_barrier")
            self.slabperm(BB + 64 * (s >> 1) + 4 * (s & 1), stage[s], 8)
        A("s_cmp_lt_u32 s3, 4")
        A("s_cbranch_scc1 L_nobu")

    def project(self):
        A, C = self.A, self.C
        BB, LR, D, T = self.BB, 40, 64, 96
        def ld(m):
            A(f"global_load_dwordx4 v[{LR+4*m}:{LR+4*m+3}], v62, s[40:41] offset:{1024*m} sc1")
        def chk(m):
            r = LR + 4 * m
            A(f"v_max3_u32 v13, v{r}, v{r+1}, v{r+2}")
            A(f"v_max_u32 v13, v13, v{r+3}")
            A("v_cmp_eq_u32 vcc, -1, v13")
        def f1(q, bk):
            d = D + 4 * (q + 4 * (bk >> 1))
            A(f"v_add_f32_dpp v{T+q}, v{d + (bk ^ 2)}, v{d + bk} row_ror:8 row_mask:0xf bank_mask:{1 << bk:#x}")
        def mf(m, last):
            if self.fine:
                A(f"s_memrealtime s[{16+2*m}:{17+2*m}]")
            for k in range(8):
                a = (k >> 1) + 4 * (k & 1)
                d, b = D + 4 * a, BB + 64 * m + 8 * a
                A(f"v_smfmac_f32_16x16x64_bf16 v[{d}:{d+3}], v[{LR+4*m}:{LR+4*m+3}], v[{b}:{b+7}], v63")
                if last and k >= 3:
                    for bk in range(2):
                        f1((k - 3) >> 1, 2 * ((k - 3) & 1) + bk)
        def tight(m):
            A(f"L_t{m}:")
            ld(m)
            A("s_sub_u32 s55, s55, 1")
            A(f"s_cbranch_scc1 L_f{m}")
            A(f"s_waitcnt vmcnt({self.pd1-1})")
            chk(m)
            A(f"s_cbranch_vccnz L_t{m}")
            A(f"L_f{m}:")
        A("L_proj:")
        self.stamp(12)
        C("the records of two pairs of heads are re-read until they are complete; several reads are kept in flight")
        for i in range(0, 8, 2):
            A(f"v_mov_b64 v[{LR+i}:{LR+i+1}], -1")
        ld(0); ld(1)
        for i in range(0, 32, 2):
            A(f"v_mov_b64 v[{D+i}:{D+i+1}], 0")
        C("v26: slot of this lane's sum: column 8(l&3) + 2((l>>2)&3) + (l>>5), wave, (l>>4)&1")
        A("v_and_b32 v26, 3, v0"); A("v_bfe_u32 v27, v0, 2, 2"); A("v_lshl_add_u32 v26, v26, 2, v27")
        A("v_bfe_u32 v27, v0, 5, 1"); A("v_lshl_add_u32 v26, v26, 1, v27")
        A(f"v_mul_u32_u24 v26, {FAS}, v26")
        A("v_bfe_u32 v27, v0, 4, 1"); A("v_lshl_add_u32 v26, v27, 2, v26")
        A("v_lshl_add_u32 v26, s3, 3, v26")
        A("v_bfe_u32 v28, v0, 1, 5")
        A(f"v_mul_u32_u24 v27, {FAS}, v28")
        A("v_and_b32 v29, 1, v0"); A("v_lshl_add_u32 v27, v29, 5, v27")
        A("s_lshl4_add_u32 s42, s92, s93"); A("s_lshl_b32 s42, s42, 6")
        A("v_lshl_add_u32 v29, v28, 1, s42")
        A("v_lshlrev_b32 v28, 3, v28")
        A("v_and_b32 v30, 63, v0"); A("v_lshlrev_b32 v30, 2, v30")
        A("v_mov_b32 v31, 1")
        A(f"s_mov_b32 s55, {SPIN_MAX*8}")
        A("s_mov_b64 exec, s[100:101]")
        A("L_two:")
        for m in range(2):
            A(f"s_waitcnt vmcnt({self.pd-1})")
            chk(m)
            A(f"s_cbranch_vccz L_h{m}")
            ld(m)
        A("s_sub_u32 s55, s55, 1")
        A("s_cbranch_scc0 L_two")
        A("L_h1:")
        mf(1, False)
        chk(0)
        A("s_cbranch_vccz L_f0")
        tight(0)
        mf(0, True)
        A("s_branch L_fold")
        A("L_h0:")
        mf(0, False)
        chk(1)
        A("s_cbranch_vccz L_f1")
        tight(1)
        mf(1, True)
        A("L_fold:")
        self.stamp(13)
        C("D row 4g + ch is valid in the lanes with (l>>2)&3 == ch")
        for q in range(2):
            A(f"v_add_f32_dpp v{T+4+q}, v{T+q}, v{T+q} row_shl:4 row_mask:0xf bank_mask:0x5")
        for q, bk in ((2, 2), (2, 3), (3, 0), (3, 1), (3, 2), (3, 3)):
            f1(q, bk)
        A(f"v_add_f32_dpp v{T+4}, v{T+2}, v{T+2} row_shr:4 row_mask:0xf bank_mask:0xa")
        A("s_nop 0")
        A(f"v_add_f32_dpp v{T+5}, v{T+3}, v{T+3} row_shr:4 row_mask:0xf bank_mask:0xa")
        A("s_nop 1")
        A(f"v_permlane32_swap_b32 v{T+4}, v{T+5}")
        A(f"v_add_f32 v{T+4}, v{T+4}, v{T+5}")
        A(f"ds_write_b32 v26, v{T+4} offset:{FA}")
        A(f"ds_add_rtn_u32 v31, v30, v31 offset:{FC}")
        A(f"ds_read_b128 v[{T+8}:{T+11}], v27 offset:{FA}")
        A(f"ds_read_b128 v[{T+12}:{T+15}], v27 offset:{FA+16}")
        A(f"ds_read_b64 v[{T+6}:{T+7}], v28 offset:{GX}")
        A("s_waitcnt lgkmcnt(2)")
        A(f"v_pk_add_f32 v[{T+8}:{T+9}], v[{T+8}:{T+9}], v[{T+10}:{T+11}]")
        A("s_waitcnt lgkmcnt(1)")
        A(f"v_pk_add_f32 v[{T+12}:{T+13}], v[{T+12}:{T+13}], v[{T+14}:{T+15}]")
        A(f"v_pk_add_f32 v[{T+8}:{T+9}], v[{T+8}:{T+9}], v[{T+12}:{T+13}]")
        A(f"v_add_f32 v{T}, v{T+8}, v{T+9}")
        A("s_waitcnt lgkmcnt(0)")
        A("s_nop 0")
        A(f"v_add_f32_dpp v{T}, v{T}, v{T} quad_perm:[1,0,3,2] row_mask:0xf bank_mask:0xf")
        A("v_cmpx_eq_u32 vcc, 7, v31")
        self.rnd(T, T)
        A(f"v_mul_f32 v{T}, v{T}, v{T+6}")
        self.rnd(T, T)
        A(f"v_add_f32 v{T}, v{T}, v{T+7}")
        A(f"v_cvt_pk_bf16_f32 v{T}, v{T}, 0")
        A(f"global_store_short v29, v{T}, s[36:37] {self.ofl}".rstrip())
        if self.ack:
            A("s_waitcnt vmcnt(0)")
        self.stamp(9)
        if self.dry:
            A("s_cmp_gt_u32 s94, 1")
            A("s_cbranch_scc1 L_dry")
        A(f"s_cmp_lg_u32 s2, {254 + self.cpar}")
        A("s_cbranch_scc1 L_nobump")
        A("s_and_b64 exec, exec, 1")
        A("s_cbranch_scc0 L_nobump")
        C("every reader of the tag word is done by now (this wave has seen data that depends on all of them)")
        A(f"ds_read_b32 v13, v30 offset:{TAGL}")
        A(f"v_mov_b32 v12, {WS_EP:#x}")
        A("s_waitcnt lgkmcnt(0)")
        A("global_store_dword v12, v13, s[40:41] sc1")
        A("L_nobump:")
        if self.diag:
            A("s_mov_b64 exec, -1")
        if self.fine:
            A("s_sleep 127"); A("s_sleep 127")
            A("s_waitcnt lgkmcnt(0)")
            A("s_lshl3_add_u32 s42, s2, s3"); A("s_lshl_b32 s42, s42, 4"); A(f"s_add_u32 s42, s42, {WS_DIAG + 0x100000:#x}")
            A("v_mov_b32 v12, s42")
            for m in range(2):
                A(f"v_mov_b32 v16, s{16+2*m}"); A(f"v_mov_b32 v17, s{17+2*m}")
                A(f"global_store_dwordx2 v12, v[16:17], s[40:41] offset:{8*m}")

    def helper(self):
        A, C = self.A, self.C
        mf = self.mflags
        RA, RD = 16, 32
        RB = 64
        ST = 192
        T = 224
        A("L_helper:")
        C("===== helper waves =====")
        A("s_sub_u32 s7, s3, 4")
        A("v_bfe_u32 v3, v0, 4, 2")
        A("v_and_b32 v4, 63, v0")
        A("s_bfe_u32 s4, s59, 0x50001")
        A("s_lshr_b32 s5, s2, 6")
        A("s_mov_b32 s48, 0x05040100"); A("s_mov_b32 s49, 0x07060302")
        A("v_lshlrev_b32 v6, 4, v4")
        A("v_mov_b32 v10, 0"); A("v_mov_b32 v62, 0")
        A("v_mov_b32 v15, 0xffffff00")
        A("s_mov_b32 s11, 0x20000"); A("s_mov_b32 s15, 0x20000")
        C("s62 = MLP unit of this WG (>= NUNIT: none)")
        A("s_lshr_b32 s62, s2, 1")
        A("s_and_b32 s42, s2, 1"); A(f"s_cmp_eq_u32 s42, {self.mpar}")
        A("s_cselect_b32 s62, s62, 255")
        A("s_cmp_ge_u32 s7, 2")
        A("s_cbranch_scc1 L_nofront")
        A("s_cmp_eq_u32 s7, 0")
        A("s_cbranch_scc1 L_front")
        A(f"s_cmp_ge_u32 s62, {NUNIT}")
        A("s_cbranch_scc1 L_nofront")
        A("L_front:")
        A(f"s_setprio {self.fprio}")
        C("front units, 256 rows x 32 cols for all 4 batch rows. helper 0: wq rows 256(b>>1).., cols 32(4h + 2 side + (b&1))..")
        C("helper 1: w1 rows 256(u&1).., cols 32(4(u>>3) + (u&2) + ((u>>2)&1))..  The lane quads hold different 32-row blocks.")
        A("s_and_b32 s42, s59, 1"); A("s_and_b32 s61, s5, 1"); A("s_lshl1_add_u32 s61, s42, s61")
        A("s_lshl2_add_u32 s42, s4, s61")
        A("s_lshr_b32 s44, s62, 3"); A("s_and_b32 s43, s62, 2"); A("s_lshl2_add_u32 s44, s44, s43")
        A("s_bfe_u32 s43, s62, 0x10002"); A("s_add_u32 s44, s44, s43")
        A("s_and_b32 s43, s62, 1"); A("s_lshr_b32 s53, s5, 1")
        A("s_mov_b32 s51, 3584")
        A("s_cmp_eq_u32 s7, 0")
        A("s_cselect_b32 s53, s53, s43")
        A("s_cselect_b32 s60, s42, s44")
        A("s_cselect_b32 s51, 8192, s51")
        A("s_lshl_b32 s10, s51, 9")
        A("s_mul_i32 s52, s51, 121")
        A("s_mul_i32 s50, s53, s51"); A("s_lshl2_add_u32 s50, s50, s60"); A("s_lshl_b32 s50, s50, 6")
        A("s_lshl_b32 s42, s51, 3")
        A("v_and_b32 v12, 12, v2"); A("v_add_u32 v5, v12, v3")
        A("v_mul_u32_u24 v5, s42, v5")
        A("v_and_b32 v12, 3, v2")
        A("v_lshl_add_u32 v5, v12, 4, v5")
        A("v_lshlrev_b32 v12, 10, v3")
        A("v_lshl_add_u32 v12, v2, 4, v12")
        A("s_cmp_eq_u32 s7, 0")
        A("s_waitcnt lgkmcnt(0)")
        for t in range(4):
            A(f"global_load_dwordx4 v[{RB+32+4*t}:{RB+35+4*t}], v12, s[16:17] offset:{256*t}")
        C("the word the previous launch left only serves to pick a tag that differs from that launch's")
        A(f"s_load_dword s63, s[40:41], {WS_EP:#x}")
        A("s_cselect_b32 s8, s22, s28"); A("s_cselect_b32 s9, s23, s29")
        self.slabload(RB + 96, "s[8:11]", 5, "s51", mf, last_inc="s52")
        self.slabload(ST, "s[8:11]", 5, "s51", mf)
        if self.wf:
            A("s_barrier")
        A("s_lshl_b32 s42, s7, 12")
        A("v_add_u32 v12, s42, v12")
        A("v_lshrrev_b32 v13, 2, v2")
        A("v_lshlrev_b32 v13, 10, v13")
        A("v_lshl_add_u32 v13, v3, 4, v13")
        C("A operand: rows[i>>2][unit rows: slab n, 32-row block from the low bits of i, 8kk]")
        A("v_and_b32 v14, 3, v2"); A("v_lshl_add_u32 v13, v14, 6, v13")
        A("s_lshl_b32 s43, s53, 9"); A("s_add_u32 s42, s42, s43")
        A("v_add_u32 v13, s42, v13")
        A("s_mov_b32 s54, s7")
        A("s_waitcnt vmcnt(16)")
        self.stamp(1)
        A("L_ln:")
        self.unpack(RB, RB + 32, 16)
        self.layernorm(RB, 32, T, RB + 32, unpack_after=False)
        A("s_sub_u32 s54, s54, 1")
        A("s_cbranch_scc0 L_ln")
        for t in range(4):
            A(f"ds_write_b128 v12, v[{RB+32+4*t}:{RB+35+4*t}] offset:{XN + 256*t}")
        A("s_waitcnt vmcnt(8)")
        self.slabperm(RB + 64, RB + 96)
        A("s_waitcnt lgkmcnt(0)")
        A(f"ds_read_b128 v[{RA}:{RA+3}], v13 offset:{XN}")
        A(f"ds_read_b128 v[{RA+4}:{RA+7}], v13 offset:{XN+256}")
        A("s_add_u32 s63, s63, 0x61c88647")
        self.set_tag()
        A("s_waitcnt vmcnt(0)")
        self.slabperm(RB + 96, ST)
        A("s_waitcnt lgkmcnt(0)")
        self.slabmfma(RD, RA, RB + 64, True)
        self.slabmfma(RD, RA + 4, RB + 96, False)
        A("s_cmp_eq_u32 s7, 0")
        A("s_cbranch_scc1 L_qaddr")
        C("U[col block][row block][half=c>>3][b=kk][c&3][4]")
        A("s_lshl1_add_u32 s42, s60, s53"); A("s_lshl_b32 s42, s42, 9"); A(f"s_add_u32 s42, s42, {WS_U:#x}")
        A("v_lshrrev_b32 v12, 3, v2"); A("v_lshlrev_b32 v12, 8, v12")
        A("v_lshl_add_u32 v12, v3, 6, v12")
        A("v_and_b32 v13, 3, v2"); A("v_lshl_add_u32 v12, v13, 4, v12")
        A("s_branch L_fst")
        A("L_qaddr:")
        C("Q[h][b=kk][row block][col quarter][c&3][c>>3][4]")
        A("s_lshl_b32 s42, s4, 12"); A("s_lshl_b32 s43, s53, 9"); A("s_add_u32 s42, s42, s43")
        A("s_lshl_b32 s43, s61, 7"); A("s_add_u32 s42, s42, s43")
        A(f"s_add_u32 s42, s42, {WS_Q:#x}")
        A("v_lshlrev_b32 v12, 10, v3")
        A("v_and_b32 v13, 3, v2"); A("v_lshl_add_u32 v12, v13, 5, v12")
        A("v_lshrrev_b32 v13, 3, v2"); A("v_lshl_add_u32 v12, v13, 4, v12")
        A("L_fst:")
        A("v_add_u32 v12, s42, v12")
        self.fold4(T, RD)
        A(f"global_store_dwordx4 v12, v[{T}:{T+3}], s[40:41] sc1")
        A("s_mov_b64 exec, -1")
        self.stamp(2)
        A("s_cmp_lg_u32 s7, 0")
        A("s_cbranch_scc1 L_fdone")
        C("helper 0: gather the partials of q[b][h], LDS init")
        A("s_lshl_b32 s42, s4, 12"); A("s_lshl_b32 s43, s5, 10"); A("s_add_u32 s42, s42, s43")
        A(f"s_add_u32 s42, s42, {WS_Q:#x}")
        A("v_add_u32 v12, s42, v6")
        A("v_lshlrev_b32 v8, 2, v4")
        A("v_mov_b32 v9, -1")
        A(f"ds_write_b32 v8, v9 offset:{MLM}")
        A("v_mov_b32 v9, s63")
        A(f"ds_write_b32 v10, v9 offset:{TAGL}")
        A(f"ds_write_b32 v8, v10 offset:{PRG}")
        A(f"ds_write2st64_b32 v8, v10, v10 offset0:{OC//256} offset1:{FC//256}")
        if self.ctl:
            A(f"v_mov_b32 v9, {self.cu0}")
            A(f"ds_write_b32 v10, v9 offset:{RK}")
        A("v_and_b32 v9, 31, v4"); A("v_lshlrev_b32 v9, 3, v9")
        C("the partners publish at about the same time: look once the own stores are acknowledged")
        A("s_waitcnt vmcnt(0)")
        self.spin_begin("L_sp_q")
        A(f"global_load_dwordx4 v[{RD}:{RD+3}], v12, s[40:41] sc1")
        A("s_waitcnt vmcnt(0)")
        self.chk(13, RD, 4)
        self.chk_branch(13, "L_sp_q", self.qsleep)
        for d in range(4):
            A(f"v_mov_b32 v{RD+4+d}, v{RD+d}")
        A("s_nop 1")
        for d in range(4):
            A(f"v_permlane32_swap_b32 v{RD+d}, v{RD+4+d}")
        for d in range(4):
            A(f"v_add_f32 v{RD+d}, v{RD+d}, v{RD+4+d}")
        for d in range(2):
            A(f"v_cvt_pk_bf16_f32 v{RD+d}, v{RD+2*d}, v{RD+2*d+1}")
        A(f"ds_write_b64 v9, v[{RD}:{RD+1}] offset:{QP}")
        A("L_fdone:")
        A("s_setprio 0")
        if self.wf:
            A("s_waitcnt lgkmcnt(0)")
            self.stamp(3)
            A("s_branch L_b1")
        A("L_nofront:")
        A("s_waitcnt lgkmcnt(0)")
        self.stamp(3)
        A("s_cmp_lg_u32 s7, 2")
        A("s_cbranch_scc1 L_noclr")
        C("helper 2 marks this WG's output record empty; nobody looks at it before this WG's softmax record is there")
        A("s_lshl_b32 s42, s59, 8"); A(f"s_add_u32 s42, s42, {WS_O:#x}")
        A("v_lshl_add_u32 v12, v4, 2, s42")
        A("v_mov_b32 v13, -1")
        A("global_store_dword v12, v13, s[40:41] sc1")
        A("L_noclr:")
        def prefetch():
            C("helpers 2 and 3 pull a part of the wo columns that the WGs of this class project with towards the L2")
            A("s_and_b32 s42, s2, 1"); A("s_lshl1_add_u32 s42, s7, s42"); A("s_and_b32 s42, s42, 5")
            A(f"s_cmp_lg_u32 s42, {4 | self.cpar}")
            A(f"s_cbranch_scc1 {'L_pre2' if self.w2f else 'L_nopre'}")
            A("v_lshlrev_b32 v5, 4, v2"); A("v_lshl_or_b32 v5, v3, 14, v5")
            A("s_lshr_b32 s50, s2, 3"); A("s_lshl1_add_u32 s50, s50, s7"); A("s_sub_u32 s50, s50, 2"); A("s_lshl_b32 s50, s50, 16")
            A("s_and_b32 s42, s2, 6"); A("s_lshl_b32 s42, s42, 7"); A("s_add_u32 s50, s50, s42")
            A("s_mov_b32 s26, 0x400000"); A("s_mov_b32 s27, 0x20000")
            A("s_mov_b32 s54, 3")
            A("L_pre:")
            for n in range(4):
                A(f"buffer_load_dwordx4 v[{ST}:{ST+3}], v5, s[24:27], s50 offen offset:{n*1024}")
                A(f"s_waitcnt vmcnt({self.wpre-1})")
            A("s_add_u32 s50, s50, 0x1000")
            A("s_sub_u32 s54, s54, 1")
            A("s_cbranch_scc0 L_pre")
            self.stamp(2)
            if self.w2f:
                A("s_branch L_nopre")
                A("L_pre2:")
                C("in the other WGs they do the same for w2: 128 bytes at 128((wg>>1)&3) and 512 further of 56 rows")
                A(f"s_cmp_lg_u32 s42, {4 | self.mpar}")
                A("s_cbranch_scc1 L_nopre")
                A("v_and_b32 v5, 7, v4"); A("v_lshlrev_b32 v5, 4, v5"); A("v_lshrrev_b32 v12, 3, v4"); A("v_lshl_or_b32 v5, v12, 9, v5")
                A("s_lshr_b32 s50, s2, 3"); A("s_lshl1_add_u32 s50, s50, s7"); A("s_sub_u32 s50, s50, 2"); A(f"s_mul_i32 s50, s50, {28*1024}")
                A("s_and_b32 s42, s2, 6"); A("s_lshl_b32 s42, s42, 6"); A("s_add_u32 s50, s50, s42")
                A("s_mov_b32 s12, s32"); A("s_mov_b32 s13, s33"); A(f"s_mov_b32 s14, {1792*1024}")
                for n in range(7):
                    A(f"buffer_load_dwordx4 v[{ST}:{ST+3}], v5, s[12:15], s50 offen")
                    A(f"s_waitcnt vmcnt({self.wpre-1})")
                    A("s_add_u32 s50, s50, 0x1000")
            A("L_nopre:")
        if self.wpre and not self.wlate:
            prefetch()
        if self.wf:
            A("s_barrier")
            A("L_b1:")
        self.is_cons()
        A("s_barrier")
        if self.wpre and self.wlate:
            prefetch()
        A(f"ds_read_b32 v13, v10 offset:{TAGL}")
        A("s_waitcnt lgkmcnt(0)")
        A("v_readfirstlane_b32 s63, v13")
        self.set_tag()
        if self.dw:
            A("s_cmp_lg_u32 s7, 3")
            A("s_cbranch_scc1 L_nodw")
            A("s_lshl_b32 s42, s59, 12"); A("s_add_u32 s42, s42, 0x400000")
            A("v_add_u32 v12, s42, v6")
            for k in range(self.dw):
                if self.dwr:
                    A(f"global_load_dwordx4 v[16:19], v12, s[40:41] offset:{1024*k} {self.dwf}")
                else:
                    A(f"global_store_dwordx4 v12, v[16:19], s[40:41] offset:{1024*k} {self.dwf}")
                A("s_waitcnt vmcnt(0)")
            A("L_nodw:")
        if self.vt:
            A("s_cmp_lg_u32 s7, 3")
            A("s_cbranch_scc1 L_novt")
            C("(value unused: the address translations of this head's values are fetched ahead)")
            A("s_and_b32 s42, s59, 0xfe"); A("s_lshl_b32 s42, s42, 19")
            A(f"v_lshl_add_u32 v12, v4, {self.vt}, s42")
            A(f"s_mov_b64 exec, {(1 << (1 << (20 - self.vt))) - 1:#x}")
            A("global_load_dword v13, v12, s[20:21]")
            A("s_mov_b64 exec, -1")
            A("s_waitcnt vmcnt(0)")
            A("L_novt:")
        A("s_cmp_lg_u32 s7, 1")
        A("s_cbranch_scc1 L_not1")
        A(f"s_cmp_ge_u32 s62, {NUNIT}")
        A("s_cbranch_scc1 L_not1")
        C("stage 2 unit: r = u>>4 (hidden rows 256r..), cq = (u&8) + 2(u&3) + ((u>>2)&1) (cols 32cq..)")
        A("s_lshr_b32 s60, s62, 4"); A("s_and_b32 s61, s62, 3"); A("s_and_b32 s43, s62, 8"); A("s_lshl1_add_u32 s61, s61, s43")
        A("s_bfe_u32 s43, s62, 0x10002"); A("s_add_u32 s61, s61, s43")
        A("s_lshl_b32 s50, s60, 18"); A("s_lshl_b32 s43, s61, 6"); A("s_add_u32 s50, s50, s43")
        A("v_and_b32 v12, 12, v2"); A("v_add_u32 v14, v12, v3"); A("v_lshlrev_b32 v14, 13, v14")
        A("v_and_b32 v12, 3, v2"); A("v_lshl_add_u32 v14, v12, 4, v14")
        A("s_mov_b32 s12, s32"); A("s_mov_b32 s13, s33"); A(f"s_mov_b32 s14, {1792*1024}")
        self.slabload(ST, "s[12:15]", 14, 1024, mf, last_inc=121 * 1024, pace=self.w2p)
        self.slabload(RD, "s[12:15]", 14, 1024, mf, pace=self.w2p, cont=True)
        A("s_lshl_b32 s43, s60, 9")
        A("v_lshlrev_b32 v13, 4, v3")
        A("v_and_b32 v12, 3, v2"); A("v_lshl_add_u32 v13, v12, 6, v13")
        A("v_add_u32 v13, s43, v13")
        A(f"global_load_dwordx4 v[{T+16}:{T+19}], v13, s[30:31]")
        A(f"global_load_dwordx4 v[{T+20}:{T+23}], v13, s[30:31] offset:256")
        UU, W, BB = RB + 64, RB + 80, RB + 112
        C("U[8r + 4n + (c&3)][t][half][b=c>>2][kk][4]")
        A("v_and_b32 v12, 3, v2"); A("v_lshlrev_b32 v12, 10, v12")
        A("v_lshrrev_b32 v13, 2, v2"); A("v_lshl_add_u32 v12, v13, 6, v12")
        A("v_lshl_add_u32 v12, v3, 4, v12")
        A("s_lshl_b32 s42, s60, 13")
        A(f"s_add_u32 s42, s42, {WS_U:#x}")
        A(f"v_add_u32 v{T}, s42, v12")
        A(f"v_add_u32 v{T+1}, 0x1000, v{T}")
        lds_ = [(UU + 16*t + 8*n + 4*hf, T + n, 512*t + 256*hf) for t in range(2) for n in range(2) for hf in range(2)]
        self.spin_begin("L_sp_u")
        for r, v, o in lds_:
            A(f"global_load_dwordx4 v[{r}:{r+3}], v{v}, s[40:41] offset:{o} sc1")
        A("s_waitcnt vmcnt(0)")
        self.chk(13, UU, 32)
        self.chk_branch(13, "L_sp_u", 32)
        self.unpack(BB, T + 16, 8)
        for i in range(16):
            A(f"v_add_f32 v{UU+i}, v{UU+i}, v{UU+16+i}")
        for i in range(16):
            self.rnd(UU + i, UU + i)
        for i in range(16):
            A(f"v_add_f32 v{UU+i}, v{UU+i}, v{BB+i}")
        for i in range(16):
            self.rnd(UU + i, UU + i)
        C("gelu(tanh form) = u / (1 + exp(-2k(u + 0.044715 u^3)))")
        k2 = -2.0 * math.sqrt(2.0 / math.pi) * math.log2(math.e)
        A(f"s_mov_b32 s42, {f32(0.044715 * k2)}"); A(f"s_mov_b32 s43, {f32(k2)}")
        A("v_mov_b32 v12, s43")
        for i in range(16):
            A(f"v_mul_f32 v{W+i}, v{UU+i}, v{UU+i}")
        for i in range(16):
            A(f"v_fma_f32 v{W+i}, v{W+i}, s42, v12")
        for i in range(16):
            A(f"v_mul_f32 v{W+i}, v{W+i}, v{UU+i}")
        for i in range(16):
            A(f"v_exp_f32 v{W+i}, v{W+i}")
        for i in range(16):
            A(f"v_add_f32 v{W+i}, 1.0, v{W+i}")
        for i in range(16):
            A(f"v_rcp_f32 v{W+i}, v{W+i}")
        for i in range(16):
            A(f"v_mul_f32 v{UU+i}, v{UU+i}, v{W+i}")
        for d in range(8):
            A(f"v_cvt_pk_bf16_f32 v{RA+d}, v{UU+2*d}, v{UU+2*d+1}")
        self.slabperm(RB + 64, ST)
        self.slabperm(RB + 96, RD)
        self.slabmfma(RD, RA, RB + 64, True)
        self.slabmfma(RD, RA + 4, RB + 96, False)
        C("Z[b=kk][cq][r][half=c>>3][c&3][4]")
        A(f"v_mul_u32_u24 v12, {16*NZ*128}, v3")
        A("v_lshrrev_b32 v13, 3, v2")
        A("v_lshl_add_u32 v12, v13, 6, v12")
        A("v_and_b32 v13, 3, v2")
        A("v_lshl_add_u32 v12, v13, 4, v12")
        A(f"s_mul_i32 s42, s61, {NZ*128}"); A("s_lshl_b32 s43, s60, 7"); A("s_add_u32 s42, s42, s43")
        A(f"s_add_u32 s42, s42, {WS_Z:#x}")
        A("v_add_u32 v12, s42, v12")
        self.fold4(T, RD)
        A(f"global_store_dwordx4 v12, v[{T}:{T+3}], s[40:41] sc1")
        A("s_mov_b64 exec, -1")
        A("L_not1:")
        A("s_cmp_eq_u32 s94, 0")
        A("s_cbranch_scc1 L_nowo")
        C("(empty descriptors: only the stream waves return to their loop from the code below)")
        A("s_mov_b64 s[8:9], s[24:25]"); A("s_mov_b64 s[12:13], s[24:25]")
        A("s_mov_b32 s10, 0"); A("s_mov_b32 s14, 0"); A("s_mov_b64 s[46:47], s[10:11]")
        A("v_mov_b32 v5, 0"); A("v_mov_b32 v58, 0")
        self.burst()
        A("L_nowo:")
        self.stamp(4)
        T = 96
        if self.ctl:
            self.control5()
        A("s_cmp_lg_u32 s7, 2")
        A("s_cbranch_scc1 L_nopub")
        C("helper 2: softmax bookkeeping with the other side of this head")
        A("v_lshlrev_b32 v12, 2, v2")
        self.spin_begin("L_sp_m")
        A(f"ds_read_b32 v14, v12 offset:{MLM}")
        A(f"ds_read_b32 v11, v12 offset:{MLL}")
        A("s_waitcnt lgkmcnt(0)")
        A("v_max_u32 v13, v14, v11")
        A("v_cmp_eq_u32 vcc, -1, v13")
        A("s_cbranch_vccz L_sp_m_done")
        self.spin_end("L_sp_m", 4)
        A("L_sp_m_done:")
        PW = T + 8
        A(f"ds_read_b128 v[{PW}:{PW+3}], v6 offset:{PL}")
        A(f"v_mov_b32 v{T}, v14")
        self.row_allreduce("max", T)
        A(f"v_sub_f32 v13, v14, v{T}")
        A("v_exp_f32 v13, v13")
        A(f"v_mov_b32 v{T+1}, s63"); A(f"v_mov_b32 v{T+3}, s63")
        A(f"v_mul_f32 v{T+2}, v13, v11")
        self.row_allreduce("add", T + 2)
        A("s_lshl_b32 s42, s59, 4"); A(f"s_add_u32 s42, s42, {WS_ML:#x}")
        A("v_mov_b32 v11, s42")
        A("s_mov_b64 exec, 1")
        A("s_waitcnt vmcnt(0)")
        A(f"global_store_dwordx4 v11, v[{T}:{T+3}], s[40:41] sc1")
        A("s_mov_b64 exec, -1")
        A("v_xor_b32 v11, 16, v11")
        self.spin_begin("L_sp_p")
        A(f"global_load_dwordx4 v[{T+4}:{T+7}], v11, s[40:41] sc1")
        A("s_waitcnt vmcnt(0)")
        A(f"v_xor_b32 v13, s63, v{T+5}")
        A(f"v_bitop3_b32 v13, v13, v{T+7}, s63 bitop3:0xf6")
        A("v_cmp_ne_u32 vcc, 0, v13")
        A("s_cbranch_vccz L_sp_p_done")
        self.spin_end("L_sp_p", 32)
        A("L_sp_p_done:")
        C("row factor exp(M_row - M_head) / L_head")
        A(f"v_max_f32 v{T+1}, v{T}, v{T+4}")
        A(f"v_sub_f32 v{T}, v{T}, v{T+1}"); A(f"v_sub_f32 v{T+4}, v{T+4}, v{T+1}"); A(f"v_sub_f32 v14, v14, v{T+1}")
        A(f"v_exp_f32 v{T}, v{T}"); A(f"v_exp_f32 v{T+4}, v{T+4}"); A("v_exp_f32 v14, v14")
        A(f"v_mul_f32 v{T+2}, v{T}, v{T+2}")
        A(f"v_fmac_f32 v{T+2}, v{T+4}, v{T+6}")
        A(f"v_rcp_f32 v{T+2}, v{T+2}")
        A("v_and_b32 v13, 0x3c, v4")
        A(f"v_mul_f32 v14, v14, v{T+2}")
        A("v_min_u32 v14, -2, v14")
        A(f"ds_write_b32 v12, v14 offset:{CFL}")
        A(f"ds_read_b32 v14, v13 offset:{CFL}")
        self.stamp(11)
        A("s_lshl_b32 s42, s59, 7"); A(f"s_add_u32 s42, s42, {WS_GH:#x}")
        A("v_mov_b32 v11, s42")
        A("v_xor_b32 v12, 0x80, v11")
        A("s_lshl_b32 s42, s59, 10"); A(f"s_add_u32 s42, s42, {WS_GP:#x}")
        A("v_add_u32 v9, s42, v6")
        A(f"v_mov_b32 v{T+1}, s63")
        A("s_waitcnt lgkmcnt(0)")
        for d in range(4):
            A(f"v_mul_f32 v{PW+d}, v14, v{PW+d}")
        self.tag4(PW)
        if self.xm == 2:
            A(f"global_store_dwordx4 v9, v[{PW}:{PW+3}], s[40:41] sc1")
            A("v_xor_b32 v9, 0x400, v9")
        ps = self.pstep
        def wait_prg(lab, slots, sleep):
            self.spin_begin(lab)
            A(f"ds_read_b32 v13, v10 offset:{PRG}")
            A("s_waitcnt lgkmcnt(0)")
            A("v_readfirstlane_b32 s42, v13")
            A(f"s_cmp_ge_u32 s42, {4*slots//ps}")
            A(f"s_cbranch_scc1 {lab}_done")
            self.spin_end(lab, sleep)
            A(f"{lab}_done:")
        A("s_cmp_eq_u32 s94, 0")
        A("s_cbranch_scc1 L_sp_e_done")
        wait_prg("L_sp_w", self.xs - 16, 16)
        C("all output records of batch row s92 have been marked empty once their softmax records are there")
        A("s_lshl_b32 s42, s92, 10"); A(f"s_add_u32 s42, s42, {WS_ML + 4:#x}")
        A("v_add_u32 v14, s42, v6")
        self.spin_begin("L_sp_e")
        A("global_load_dword v13, v14, s[40:41] sc1")
        A("s_waitcnt vmcnt(0)")
        A("v_cmp_ne_u32 vcc, s63, v13")
        A("s_cbranch_vccz L_sp_e_done")
        self.spin_end("L_sp_e", 16)
        A("L_sp_e_done:")
        wait_prg("L_sp_a", self.xs, 16)
        if self.xm == 2:
            self.spin_begin("L_sp_d")
            A(f"global_load_dwordx4 v[{PW}:{PW+3}], v9, s[40:41] sc1")
            A("s_waitcnt vmcnt(0)")
            self.chk(13, PW, 4)
            self.chk_branch(13, "L_sp_d", 8)
            A(f"ds_write_b128 v6, v[{PW}:{PW+3}] offset:{PL}")
            C("both sides note when they pass the checkpoint (or expect to, once the other one has); the later one hands")
            C("over slots in proportion to its lag")
            A("v_readfirstlane_b32 s46, v12")
            A("s_mov_b64 exec, 1")
            A("s_mov_b32 s47, 0")
            self.spin_begin("L_sp_b")
            A("s_load_dwordx2 s[42:43], s[40:41], s46 glc")
            A(f"ds_read_b32 v13, v10 offset:{PRG}")
            A("s_memrealtime s[44:45]")
            A("s_and_b32 s60, s55, 15")
            A("s_cbranch_scc1 L_nov")
            A(f"global_load_dword v{T}, v12, s[40:41] sc1")
            A("L_nov:")
            A("s_waitcnt lgkmcnt(0)")
            A("v_readfirstlane_b32 s45, v13")
            A("s_xor_b32 s43, s43, s42")
            A(f"s_sub_i32 s45, {4*self.xc//ps}, s45")
            A("s_cmp_eq_u32 s43, s63")
            A("s_cselect_b32 s60, 0, s45")
            A("s_max_i32 s60, s60, s47")
            A("s_cmp_gt_i32 s60, 0")
            A("s_cbranch_scc1 L_nopost")
            A(f"s_mul_i32 s45, s45, {self.xtau}"); A("s_ashr_i32 s45, s45, 2"); A("s_add_u32 s61, s44, s45")
            A(f"v_mov_b32 v{T+2}, s61"); A(f"v_xor_b32 v{T+3}, s61, v{T+1}")
            A(f"global_store_dwordx2 v11, v[{T+2}:{T+3}], s[40:41] sc1")
            A("s_mov_b32 s47, 1")
            A("L_nopost:")
            A("s_cmp_eq_u32 s43, s63")
            A("s_cbranch_scc1 L_sp_b_done")
            self.spin_end("L_sp_b", self.xsl)
            A("L_sp_b_done:")
            A("s_sub_i32 s42, s42, s61")
            A("s_abs_i32 s43, s42"); A("s_min_u32 s43, s43, 0x1000")
            A(f"s_mul_i32 s43, s43, {self.xg}"); A(f"s_add_i32 s43, s43, {self.xo}"); A("s_lshr_b32 s43, s43, 8")
            A(f"s_min_u32 s43, s43, {self.xmax}")
            A("s_sub_i32 s44, 0, s43")
            A("s_cmp_gt_i32 s42, 0")
            A("s_cselect_b32 s42, s43, s44")
            A("s_add_i32 s42, s42, 128")
            A("v_mov_b32 v13, s42"); A("v_min_u32 v12, 128, v13")
            A(f"ds_write_b64 v10, v[12:13] offset:{DEC}")
            A("s_mov_b64 exec, -1")
            if self.diag:
                A("s_mov_b32 s84, s42"); A("s_mov_b32 s85, 0")
        else:
            if self.xm:
                wait_prg("L_sp_t", self.xc, 1)
                C("both sides note when they pass the checkpoint; the later one hands over slots in proportion to its lag")
                A("s_memrealtime s[44:45]")
                A(f"v_mov_b32 v{T+4}, 0")
                if self.xsp:
                    A("v_readfirstlane_b32 s46, v12")
                A("s_mov_b64 exec, 1")
                A("s_waitcnt lgkmcnt(0)")
                A(f"v_mov_b32 v{T+2}, s44"); A(f"v_xor_b32 v{T+3}, s44, v{T+1}")
                A(f"global_store_dwordx2 v11, v[{T+2}:{T+3}], s[40:41] offset:8 sc1")
                if not self.xsp:
                    A(f"v_not_b32 v{T+5}, s63")
                self.spin_begin("L_sp_b")
                if self.xsp:
                    A("s_load_dwordx2 s[42:43], s[40:41], s46 offset:8 glc")
                    A(f"ds_read_b32 v13, v10 offset:{PRG}")
                    A("s_waitcnt lgkmcnt(0)")
                    A("v_readfirstlane_b32 s47, v13")
                else:
                    A(f"global_load_dwordx2 v[{T+4}:{T+5}], v12, s[40:41] offset:8 sc1")
                    A(f"ds_read_b32 v13, v10 offset:{PRG}")
                    A(f"s_waitcnt vmcnt({self.xpd-1}) lgkmcnt(0)")
                    A(f"v_readfirstlane_b32 s43, v{T+5}")
                    A(f"v_readfirstlane_b32 s42, v{T+4}")
                    A("v_readfirstlane_b32 s47, v13")
                A("s_xor_b32 s43, s43, s42")
                A("s_cmp_eq_u32 s43, s63")
                A("s_cbranch_scc1 L_give")
                A(f"s_cmp_ge_u32 s47, {4*self.xe//ps}")
                A("s_cbranch_scc1 L_pass")
                self.spin_end("L_sp_b", self.xsl)
            else:
                C("whoever finds the other side past the checkpoint before it is there itself hands over slots")
                self.spin_begin("L_sp_b")
                A(f"global_load_dwordx2 v[{T+4}:{T+5}], v12, s[40:41] sc1")
                A("s_waitcnt vmcnt(0)")
                A(f"ds_read_b32 v13, v10 offset:{PRG}")
                A(f"v_readfirstlane_b32 s43, v{T+5}")
                A("s_waitcnt lgkmcnt(0)")
                A("v_readfirstlane_b32 s42, v13")
                A("s_cmp_eq_u32 s43, s63")
                A("s_cbranch_scc1 L_give")
                A(f"s_cmp_ge_u32 s42, {4*self.xc//ps}")
                A("s_cbranch_scc1 L_pass")
                self.spin_end("L_sp_b", self.xsl)
            A("L_pass:")
            A(f"v_mov_b32 v{T}, 0")
            A("s_mov_b64 exec, 1")
            A(f"global_store_dwordx2 v11, v[{T}:{T+1}], s[40:41] sc1")
            A("s_mov_b64 exec, -1")
            A("v_mov_b32 v13, 128")
            A(f"ds_write_b32 v10, v13 offset:{DEC}")
            A("v_xor_b32 v9, 0x400, v9")
            self.spin_begin("L_sp_c")
            A(f"global_load_dwordx2 v[{T+4}:{T+5}], v12, s[40:41] sc1")
            A("s_waitcnt vmcnt(0)")
            A(f"v_readfirstlane_b32 s43, v{T+5}")
            A(f"v_readfirstlane_b32 s42, v{T+4}")
            A("s_cmp_eq_u32 s43, s63")
            A("s_cbranch_scc1 L_sp_c_done")
            self.spin_end("L_sp_c", self.xsl)
            A("L_sp_c_done:")
            A("s_cmp_eq_u32 s42, 0")
            A("s_cbranch_scc1 L_sp_d_done")
            self.spin_begin("L_sp_d")
            A(f"global_load_dwordx4 v[{PW}:{PW+3}], v9, s[40:41] sc1")
            A("s_waitcnt vmcnt(0)")
            self.chk(13, PW, 4)
            A(f"ds_write_b128 v6, v[{PW}:{PW+3}] offset:{PL}")
            self.chk_branch(13, "L_sp_d", 2)
            A("s_add_u32 s42, s42, 128")
            A("v_mov_b32 v13, s42")
            A(f"ds_write_b32 v10, v13 offset:{DEC+4}")
            if self.diag:
                A("s_mov_b32 s84, s42"); A("s_mov_b32 s85, 0")
            A("s_branch L_nopub")
            A("L_give:")
            if self.xm:
                A("s_mov_b64 exec, -1")
                A("s_sub_i32 s42, s44, s42")
                A("s_max_i32 s42, s42, 0"); A("s_min_i32 s42, s42, 0x1000")
                A(f"s_mul_i32 s42, s42, {self.xg}"); A(f"s_add_i32 s42, s42, {self.xo}"); A("s_ashr_i32 s42, s42, 8")
                A(f"s_min_i32 s42, s42, {self.xmax}")
                A("s_cmp_le_i32 s42, 0")
                A("s_cbranch_scc1 L_pass")
            else:
                A(f"s_sub_i32 s42, {(4*self.xc + self.xd)//ps}, s42")
                A(f"s_mul_i32 s42, s42, {self.xk*ps}"); A("s_ashr_i32 s42, s42, 6")
                A("s_max_i32 s42, s42, 0"); A(f"s_min_i32 s42, s42, {self.xmax}")
            A(f"v_mov_b32 v{T}, s42")
            A("s_cmp_eq_u32 s42, 0")
            A("s_cbranch_scc1 L_give0")
            A(f"global_store_dwordx4 v9, v[{PW}:{PW+3}], s[40:41] sc1")
            A("L_give0:")
            A("s_mov_b64 exec, 1")
            A(f"global_store_dwordx2 v11, v[{T}:{T+1}], s[40:41] sc1")
            A("s_mov_b64 exec, -1")
            A("s_sub_u32 s42, 128, s42")
            A("v_mov_b32 v12, s42"); A("v_mov_b32 v13, s42")
            A(f"ds_write_b64 v10, v[12:13] offset:{DEC}")
            if self.diag:
                A("s_mov_b32 s84, s42"); A("s_mov_b32 s85, 0")
        A("L_nopub:")
        self.stamp(5)
        A("s_cmp_eq_u32 s94, 0")
        A("s_cbranch_scc1 L_hend")
        A("s_cmp_lg_u32 s7, 3")
        A("s_cbranch_scc1 L_nog")
        G, XV = T, T + 1
        C("helper 3: gate of column 4(l&7) + 2(l>>5) + ((l>>4)&1)")
        A("v_and_b32 v12, 7, v4"); A("v_lshlrev_b32 v8, 2, v12")
        A("v_lshrrev_b32 v13, 5, v4"); A("v_lshl_add_u32 v8, v13, 1, v8")
        A("v_bfe_u32 v13, v4, 4, 1"); A("v_add_u32 v8, v8, v13")
        A("s_lshl_b32 s42, s93, 6")
        A("v_lshl_add_u32 v13, v8, 1, s42")
        A(f"global_load_ushort v{G}, v13, s[34:35]")
        A("v_lshl_add_u32 v13, s92, 10, v13")
        A(f"global_load_ushort v{XV}, v13, s[16:17]")
        if self.ot:
            C("(value unused: the address translation of the output is fetched ahead of the store)")
            A(f"global_load_ushort v{XV+1}, v13, s[36:37]")
        C("Z[b][cq][r=l>>3][l&1][(l>>1)&3][4]")
        A("s_lshl4_add_u32 s42, s92, s93")
        A(f"s_mul_i32 s42, s42, {NZ*128}"); A(f"s_add_u32 s42, s42, {WS_Z:#x}")
        A("v_lshrrev_b32 v13, 3, v4"); A("v_lshl_add_u32 v12, v13, 7, s42")
        A("v_and_b32 v13, 1, v4"); A("v_lshl_add_u32 v12, v13, 6, v12")
        A("v_and_b32 v13, 6, v4"); A("v_lshl_add_u32 v12, v13, 3, v12")
        self.spin_begin("L_sp_z")
        C("the lanes past the last line are masked off and hold tagged zeros")
        for d in range(4):
            A(f"v_mov_b32 v{RD+d}, s{96+d}")
        A("s_mov_b32 exec_hi, 0xffffff")
        A(f"global_load_dwordx4 v[{RD}:{RD+3}], v12, s[40:41] sc1")
        A("s_mov_b32 exec_hi, -1")
        A("s_waitcnt vmcnt(0)")
        self.chk(13, RD, 4)
        self.chk_branch(13, "L_sp_z", 32)
        A(f"v_lshlrev_b32 v{G}, 16, v{G}")
        A(f"v_lshlrev_b32 v{XV}, 16, v{XV}")
        self.xl_reduce4(RD)
        self.rnd(RD, RD)
        A(f"v_add_f32 v{RD}, v{RD}, v{G}")
        self.rnd(RD, RD)
        A(f"v_mul_f32 v{RD+1}, {f32(-math.log2(math.e))}, v{RD}")
        A(f"v_exp_f32 v{RD+1}, v{RD+1}")
        A("v_lshlrev_b32 v8, 3, v8")
        A(f"v_add_f32 v{RD+1}, 1.0, v{RD+1}")
        A(f"v_rcp_f32 v{RD+1}, v{RD+1}")
        A("s_nop 0")
        A(f"v_mul_f32 v{G}, v{RD}, v{RD+1}")
        self.rnd(G, G)
        A(f"ds_write_b64 v8, v[{G}:{G+1}] offset:{GX}")
        A("L_nog:")
        if self.dry:
            A("s_cmp_lg_u32 s7, 1")
            A("s_cbranch_scc1 L_nodry")
            C("helper 1 walks through the code below with no lane active to bring it into the instruction cache")
            A("s_mov_b32 s94, 3")
            A("s_mov_b64 s[100:101], 0")
            A("s_branch L_proj")
            A("L_dry:")
            A("s_sub_u32 s94, s94, 1")
            A("s_cmp_eq_u32 s94, 2")
            A("s_cbranch_scc1 L_h1")
            A("s_mov_b64 s[100:101], -1")
            A("s_mov_b64 exec, -1")
            A("s_waitcnt vmcnt(0)")
            A("L_nodry:")
        wait_prg("L_sp_v", 104, 16)
        self.spin_begin("L_sp_o")
        A(f"ds_read_b32 v13, v10 offset:{OC}")
        A("s_waitcnt lgkmcnt(0)")
        A(f"v_cmp_gt_u32 vcc, {self.pw}, v13")
        A("s_cbranch_vccz L_proj")
        self.spin_end("L_sp_o", 1)
        self.project()
        A("L_hend:")
        self.dump_stamps(14, 16)
        if self.prog:
            A("s_cmp_ge_u32 s3, 4")
            A("s_cbranch_scc1 L_end")
            A("s_lshl_b32 s60, s2, 2"); A("s_add_u32 s60, s60, s3"); A("s_lshl_b32 s60, s60, 6")
            A(f"s_add_u32 s60, s60, {WS_DIAG + 0x80000:#x}")
            A("v_and_b32 v24, 63, v0"); A("v_lshlrev_b32 v24, 2, v24")
            A("v_add_u32 v24, s60, v24")
            A("s_mov_b64 exec, 0xffff")
            A("global_store_dword v24, v60, s[40:41]")

def gen(**kw):
    return Gen(**kw).gen()

if __name__ == "__main__":
    out = sys.argv[1]
    kw = eval("dict(" + (sys.argv[2] if len(sys.argv) > 2 else "") + ")")
    open(out, "w").write(gen(**kw))
```

```python
import sys, math, struct
NAME = "recurrent_scan__mha_block_cached__mixer_channel_mlp__decode_kernel"

def f32(x):
    return "0x%08x" % struct.unpack("<I", struct.pack("<f", x))[0]

HEADER = """; Kernarg layout for this problem (104 bytes, ptrs only, base s[0:1]):
;   offset  32: d_in[4] A_wo  shape=(4096, 512) dtype=bfloat16
;   offset  96: d_ws      workspace
"""

XN, QP, MLM, MLL, TAGL = 0, 8192, 8448, 8512, 8704
CFL, DEC, RK = 8576, 8640, 8720
OA, OC, FC = 9216, 11264, 11520
PRG, PL = 11776, 12032
FA, GX = 0, 4096
FAS = 80
LDS_BYTES = 13312
WS_O, WS_ML, WS_EP, WS_Q, WS_U, WS_Z, WS_DIAG = 0x40000, 0x80000, 0x90000, 0x100000, 0x180000, 0x1c0000, 0x200000
WS_RP = 0x98000
WS_GH, WS_GP = 0xa0000, 0xc0000
NUNIT = 112
SPIN_MAX = 1 << 18

class Gen:
    DEF = dict(kvflags="nt", mflags="", diag=False, prog=False, fine=0, DK=8, DV=8, adel=2, pre=2, dks=6, skip=(),
               mpar=0, cpar=1, fprio=3, qsleep=1, w2p=4, cpf=0, early=1, dsl=2,
               xc=92, xs=58, xd=52, xk=8, xmax=16, xsl=2, pstep=2,
               ctl=1, cg=8, cu0=24, culo=16, cuhi=32, cc0=2, clim=100, cb=6, csl=0, cbias=0, cend=106, rsl=8, bst=0x500,
               wpre=16, bg=(3, 3, 3), b2=1, pw=1, pd=2, pd1=2, dry=1, wlate=0, am=(0x2000, 0x200, 0x8000, 0x100, 0xa0000, 0x4400, 0, 0x60000, 0x20000, 0x20000, 0, 0x400),
               tv=(0x1000, 0x84c00, 0x400, 0x10000, 0x40000, 0x20000, 0x800), xt=0, xm=0, xe=102, xg=11, xo=0, xpd=1, xsp=0, xtau=27, cfin=32, fh=2, dkc=0, cpo=0, kctl=1, cuc=32, wk=0, sf=0, psl=32, mls=8, mlp=0, sp=1, ep=2, mld=0, sfd=6, dw=0, dwf='sc1', dwr=0, wf=2, w2f=1, ack=0, ot=0, vt=0, ofl='')
    def __init__(self, **kw):
        self.L = []
        self.nlab = 0
        for k in kw:
            assert k in self.DEF, k
        for k, v in self.DEF.items():
            setattr(self, k, kw.get(k, v))
        self.skip = set(self.skip)
        self.K0 = (8 - self.pre) * 16 - (16 - self.DK) if self.kctl else 0
    def A(self, s):
        self.L.append("  " + s if not s.endswith(":") else s)
    def C(self, s):
        self.L.append("  ; " + s)

    def stamp(self, idx):
        if self.diag:
            self.A(f"s_memrealtime s[{64+2*idx}:{65+2*idx}]")
    def dump_stamps(self, n, vt):
        if not self.diag:
            return
        A = self.A
        for k in range(self.dsl):
            A("s_sleep 127")
        A("s_waitcnt lgkmcnt(0)")
        A("s_lshl_b32 s60, s2, 3"); A("s_add_u32 s60, s60, s3"); A("s_lshl_b32 s60, s60, 7")
        A(f"s_add_u32 s60, s60, {WS_DIAG:#x}")
        A(f"v_mov_b32 v{vt}, s60")
        A("s_mov_b64 exec, 1")
        for j in range(n):
            A(f"v_mov_b32 v{vt+2}, s{64+2*j}"); A(f"v_mov_b32 v{vt+3}, s{65+2*j}")
            A(f"global_store_dwordx2 v{vt}, v[{vt+2}:{vt+3}], s[40:41] offset:{8*j}")
        A("s_getreg_b32 s60, hwreg(HW_REG_XCC_ID)")
        A(f"v_mov_b32 v{vt+2}, s60")
        A(f"global_store_dword v{vt}, v{vt+2}, s[40:41] offset:120")
        A("s_mov_b64 exec, -1")

    def row_allreduce(self, op, r):
        A = self.A
        for m in ("quad_perm:[1,0,3,2]", "quad_perm:[2,3,0,1]", "row_half_mirror", "row_mirror"):
            A("s_nop 1")
            A(f"v_{op}_f32_dpp v{r}, v{r}, v{r} {m} row_mask:0xf bank_mask:0xf")
    def wave_allreduce_add(self, r, t, op="add"):
        A = self.A
        self.row_allreduce(op, r)
        for sw in ("v_permlane16_swap_b32", "v_permlane32_swap_b32"):
            A(f"v_mov_b32 v{t}, v{r}")
            A("s_nop 1")
            A(f"{sw} v{r}, v{t}")
            A(f"v_{op}_f32 v{r}, v{r}, v{t}")
    def rnd(self, d, s):
        self.A(f"v_cvt_pk_bf16_f32 v{d}, 0, v{s}")

    def layernorm(self, X, n, T, P, unpack_after=True):
        A = self.A
        s, t, q, d = T, T + 1, T + 2, T + 3
        red = (lambda r: self.wave_allreduce_add(r, t)) if n == 8 else (lambda r: self.row_allreduce("add", r))
        A(f"v_add_f32 v{s}, v{X}, v{X+1}")
        for i in range(2, n):
            A(f"v_add_f32 v{s}, v{s}, v{X+i}")
        red(s)
        A(f"v_mul_f32 v{s}, {f32(1.0/512)}, v{s}")
        A(f"v_sub_f32 v{d}, v{X}, v{s}")
        A(f"v_mul_f32 v{q}, v{d}, v{d}")
        for i in range(1, n):
            dd = d if i % 2 == 0 else t
            A(f"v_sub_f32 v{dd}, v{X+i}, v{s}")
            A(f"v_fmac_f32 v{q}, v{dd}, v{dd}")
        red(q)
        A(f"v_mul_f32 v{q}, {f32(1.0/512)}, v{q}")
        self.rnd(s, s)
        self.rnd(q, q)
        A(f"v_add_f32 v{q}, {f32(1e-5)}, v{q}")
        self.rnd(q, q)
        A(f"v_sqrt_f32 v{q}, v{q}")
        A("s_nop 0")
        self.rnd(q, q)
        A(f"v_rcp_f32 v{q}, v{q}")
        for i in range(n):
            A(f"v_sub_f32 v{X+i}, v{X+i}, v{s}")
        for i in range(n):
            self.rnd(X + i, X + i)
        for i in range(n):
            A(f"v_mul_f32 v{X+i}, v{X+i}, v{q}")
        for i in range(n // 2):
            A(f"v_cvt_pk_bf16_f32 v{P+i}, v{X+2*i}, v{X+2*i+1}")
        if unpack_after:
            self.unpack(X, P, n // 2)
    def unpack(self, X, P, n):
        for i in range(n):
            self.A(f"v_lshlrev_b32 v{X+2*i}, 16, v{P+i}")
            self.A(f"v_and_b32 v{X+2*i+1}, 0xffff0000, v{P+i}")

    def slabload(self, dst, srd, voff, stride, flags, last_inc=None, pace=None, cont=False):
        A = self.A
        for e in range(8):
            r = dst + 4 * e
            if pace is not None and (e >= pace or cont):
                A(f"s_waitcnt vmcnt({pace-1})")
            A(f"buffer_load_dwordx4 v[{r}:{r+3}], v{voff}, {srd}, s50 offen {flags}".rstrip())
            inc = stride if e < 7 else last_inc
            if inc is not None:
                A(f"s_add_u32 s50, s50, {inc}")
    def slabperm(self, dst, src, js=4):
        A = self.A
        rows = src if isinstance(src, list) else [src + 4 * e for e in range(8)]
        for d in range(4):
            for hf in range(2):
                jj = 2 * d + hf
                for q in range(4):
                    A(f"v_perm_b32 v{dst + js*jj + q}, v{rows[2*q+1] + d}, v{rows[2*q] + d}, s{48 + hf}")
    def slabmfma(self, RD, RA, B, first):
        A = self.A
        for jj in range(8):
            b = B + 4 * jj
            c = "0" if first else f"v[{RD+4*jj}:{RD+4*jj+3}]"
            A(f"v_mfma_f32_16x16x32_bf16 v[{RD+4*jj}:{RD+4*jj+3}], v[{RA}:{RA+3}], v[{b}:{b+3}], {c}")

    def fold(self, T, RD):
        A = self.A
        if self.fh == 2:
            return self.fold4(T, RD)
        for q in range(4):
            A(f"v_add_f32_dpp v{T+q}, v{RD+4*q+1}, v{RD+4*q} row_ror:8 row_mask:0xf bank_mask:0x3")
        for q in range(4):
            A(f"v_add_f32_dpp v{T+q}, v{RD+4*q+16}, v{RD+4*q+17} row_ror:8 row_mask:0xf bank_mask:0xc")
        self.tag4(T)
    def fold4(self, T, RD):
        A = self.A
        for bk in range(4):
            for q in range(4):
                d = RD + 4 * q + 16 * (bk >> 1)
                A(f"v_add_f32_dpp v{T+q}, v{d + (bk ^ 2)}, v{d + bk} row_ror:8 row_mask:0xf bank_mask:{1 << bk:#x}")
        for q in range(4):
            A(f"v_add_f32_dpp v{T+q}, v{T+q}, v{T+q} row_shl:4 row_mask:0xf bank_mask:0x5")
        A("s_mov_b32 exec_lo, 0x0f0f0f0f"); A("s_mov_b32 exec_hi, 0x0f0f0f0f")
        self.tag4(T)
    def spin_begin(self, lab):
        self.A(f"s_mov_b32 s55, {SPIN_MAX}")
        self.A(f"{lab}:")
    def spin_end(self, lab, sleep):
        A = self.A
        A(f"s_sleep {sleep}")
        A("s_sub_u32 s55, s55, 1")
        A("s_cmp_lg_u32 s55, 0")
        A(f"s_cbranch_scc1 {lab}")
    def xl_reduce4(self, R):
        A = self.A
        A("s_nop 0")
        for d in range(2):
            A(f"v_permlane32_swap_b32 v{R+d}, v{R+d+2}")
        for d in range(2):
            A(f"v_add_f32 v{R+d}, v{R+d}, v{R+d+2}")
        A("s_nop 1")
        A(f"v_permlane16_swap_b32 v{R}, v{R+1}")
        A(f"v_add_f32 v{R}, v{R}, v{R+1}")
        A("s_nop 1")
        A(f"v_add_f32_dpp v{R}, v{R}, v{R} row_ror:8 row_mask:0xf bank_mask:0xf")

    def gen(self):
        A, C = self.A, self.C
        self.L.append(HEADER.rstrip())
        self.L.append(f"; @launch grid=(256,1,1) block=(512,1,1) lds={LDS_BYTES}")
        self.L.append('.amdgcn_target "amdgcn-amd-amdhsa--gfx950"')
        self.L.append(".text"); self.L.append(f".globl {NAME}"); self.L.append(".p2align 8")
        self.L.append(f".type {NAME},@function"); self.L.append(f"{NAME}:")
        self.stamp(0)
        A("s_load_dwordx16 s[16:31], s[0:1], 0")
        A("s_load_dwordx8 s[32:39], s[0:1], 64")
        A("s_load_dwordx2 s[40:41], s[0:1], 96")
        A("s_cmp_ge_u32 s2, 256")
        A("s_cbranch_scc1 L_end")
        A("v_lshrrev_b32 v1, 6, v0")
        A("v_and_b32 v2, 15, v0")
        A("v_readfirstlane_b32 s3, v1")
        if self.ep == 1:
            A("s_cmp_ge_u32 s3, 6"); A("s_cbranch_scc1 L_pf"); A("L_idx:")
        C("s59 = producer index b*64 + 2h + side, b = wg>>6, side = (wg>>2)&1, h = 8((wg&3)^side) + ((wg>>3)&7):")
        C("the two halves of a head's keys go to the WGs wg and wg^5")
        A("s_bfe_u32 s5, s2, 0x10002")
        A("s_and_b32 s59, s2, 0xc0"); A("s_and_b32 s4, s2, 3"); A("s_xor_b32 s4, s4, s5"); A("s_lshl4_add_u32 s59, s4, s59")
        A("s_bfe_u32 s4, s2, 0x30003"); A("s_lshl1_add_u32 s59, s4, s59")
        if self.sp:
            A("s_lshl_b32 s7, s59, 19")
        A("s_or_b32 s59, s59, s5")
        if self.cpf:
            A("s_cmp_lt_u32 s3, 4")
            A("s_cbranch_scc1 L_stream")
            C("helper waves pull a slice of this kernel's code towards the L2")
            A("s_getpc_b64 s[42:43]")
            A("L_pc:")
            A("s_lshr_b32 s44, s2, 3"); A("s_lshl2_add_u32 s44, s44, s3")
            A(f"s_mul_i32 s44, s44, {64*self.cpf}")
            A(f"s_min_u32 s44, s44, L_end-L_pc-{64*(self.cpf-1)}")
            for k in range(self.cpf):
                A(f"s_load_dword s{45+k}, s[42:43], s44 offset:{64*k}")
            A("s_branch L_helper")
            A("L_stream:")
        else:
            A("s_cmp_ge_u32 s3, 4")
            A("s_cbranch_scc1 L_helper")
        self.stream()
        self.helper()
        A("L_end:")
        A("s_endpgm")
        L = self.L
        L.append('.section .rodata,"a"'); L.append(".p2align 6"); L.append(f".amdhsa_kernel {NAME}")
        L.append("  .amdhsa_next_free_vgpr 256"); L.append("  .amdhsa_next_free_sgpr 102"); L.append("  .amdhsa_accum_offset 256")
        L.append("  .amdhsa_group_segment_fixed_size 0"); L.append("  .amdhsa_kernarg_size 104")
        L.append("  .amdhsa_user_sgpr_count 2"); L.append("  .amdhsa_user_sgpr_kernarg_segment_ptr 1")
        L.append("  .amdhsa_system_sgpr_workgroup_id_x 1")
        L.append("  .amdhsa_float_denorm_mode_32 3")
        L.append(".end_amdhsa_kernel")
        return "\n".join(L) + "\n"

    def is_cons(self):
        self.A("s_and_b32 s42, s2, 0x81"); self.A(f"s_cmp_eq_u32 s42, {0x80 | self.cpar:#x}")
        self.A("s_cselect_b32 s94, 1, 0")

    def pf(self):
        A, C = self.A, self.C
        A("L_pf:")
        C("helpers 2 and 3 pull a part of wo (the columns the WGs of this class project with) or of w2 towards the L2")
        A("s_lshr_b32 s50, s2, 3"); A("s_lshl1_add_u32 s50, s50, s3"); A("s_sub_u32 s50, s50, 6")
        A("s_and_b32 s42, s2, 6"); A("s_mov_b32 s15, 0x20000")
        A(f"s_bitcmp{self.cpar}_b32 s2, 0")
        A("s_cbranch_scc0 L_pf2")
        A("v_bfe_u32 v3, v0, 4, 2"); A("v_lshlrev_b32 v5, 4, v2"); A("v_lshl_or_b32 v5, v3, 14, v5")
        A("s_lshl_b32 s50, s50, 9"); A("s_add_u32 s50, s50, s42"); A("s_lshl_b32 s50, s50, 7")
        A("s_mov_b32 s14, 0x400000"); A("s_movk_i32 s51, 0x400"); A("s_mov_b32 s54, 15")
        A("s_waitcnt lgkmcnt(0)")
        A("s_mov_b64 s[12:13], s[24:25]")
        A("s_branch L_pf3")
        A("L_pf2:")
        C("w2: 128 bytes at 128((wg>>1)&3) and 512 further of 56 rows")
        A("v_and_b32 v5, 7, v0"); A("v_bfe_u32 v12, v0, 3, 3"); A("v_lshlrev_b32 v5, 4, v5"); A("v_lshl_or_b32 v5, v12, 9, v5")
        A("s_mulk_i32 s50, 448"); A("s_add_u32 s50, s50, s42"); A("s_lshl_b32 s50, s50, 6")
        A(f"s_mov_b32 s14, {1792*1024}"); A("s_movk_i32 s51, 0x1000"); A("s_mov_b32 s54, 6")
        A("s_waitcnt lgkmcnt(0)")
        A("s_mov_b64 s[12:13], s[32:33]")
        A("L_pf3:")
        self.stamp(6)
        A("L_pf4:")
        A("buffer_load_dwordx4 v[192:195], v5, s[12:15], s50 offen")
        A("s_add_u32 s50, s50, s51"); A("s_sub_u32 s54, s54, 1")
        A("s_cbranch_scc0 L_pf4")
        self.stamp(7)
        A("s_barrier")
        A("s_branch L_idx" if self.ep == 1 else "s_branch L_nofront")

    def stream(self):
        A, C = self.A, self.C
        RING = 64
        P = 24
        Q = 8
        S = 40
        ACC = 48
        PLO, PHI = 12, 13
        VOFF = 5
        fl = self.kvflags
        DK, DV, pre = self.DK, self.DV, self.pre
        assert DK <= DV <= 8
        C("===== stream waves =====")
        if not self.sp:
            A("v_lshlrev_b32 v7, 4, v2")
            A("v_lshrrev_b32 v6, 4, v0")
            A("s_lshr_b32 s7, s59, 1"); A("s_lshl_b32 s7, s7, 20")
        A("s_mov_b32 s10, 0x100000"); A("s_mov_b32 s11, 0x20000")
        am, tv = self.am, self.tv
        def lin(vs, t):
            x = 0
            for i, v in enumerate(vs):
                if t >> i & 1:
                    x ^= v
            return x
        def slin(dst, terms):
            k = 0
            for sr, bit, m in terms:
                if m:
                    A(f"s_bitcmp1_b32 {sr}, {bit}"); A(f"s_cselect_b32 {'s6' if k else dst}, {m:#x}, 0")
                    if k:
                        A(f"s_xor_b32 {dst}, {dst}, s6")
                    k += 1
        if self.sp:
            C("every row of lanes walks through keys of its own: offset = v5 ^ f(group) ^ g(slot), all linear over GF(2)")
            sh = {4: 15}
            for b in range(4):
                assert am[b] & (am[b] - 1) == 0
                k = am[b].bit_length() - 1 - (4 + b)
                sh[k] = sh.get(k, 0) | 16 << b
            for i, (k, m) in enumerate(sh.items()):
                A(f"v_and_b32 v{3 + i}, {m:#x}, v0")
            A(f"s_mul_i32 s50, s5, {am[4]:#x}")
            for b in range(1, 8):
                if am[4 + b]:
                    A(f"s_bitcmp1_b32 s59, {b}"); A(f"s_cselect_b32 s6, {am[4 + b]:#x}, 0"); A("s_xor_b32 s50, s50, s6")
            for i, (k, m) in enumerate(sh.items()):
                A(f"v_lshl_or_b32 v3, v{3 + i}, {k}, v3" if i else f"v_lshlrev_b32 v3, {k}, v3")
            A("v_xor_b32 v5, s50, v3")
        elif not self.xt:
            C("every row of lanes walks through keys of its own: offset = v5 ^ f(group) ^ g(slot), all linear over GF(2)")
            A("v_bfe_i32 v3, v0, 4, 1"); A("v_bfe_i32 v4, v0, 5, 1")
            slin("s50", [("s3", 0, am[2]), ("s3", 1, am[3])] + [("s59", b, am[4 + b]) for b in range(8)])
            A(f"v_and_b32 v3, {am[0]:#x}, v3"); A(f"v_and_b32 v4, {am[1]:#x}, v4")
            A("v_xor_b32 v5, s50, v7"); A("v_bitop3_b32 v5, v5, v3, v4 bitop3:0x96")
        A("s_waitcnt lgkmcnt(0)")
        A("s_add_u32 s8, s18, s7"); A("s_addc_u32 s9, s19, 0")
        if self.xt:
            A("s_lshl_b32 s42, s59, 6"); A("v_lshl_add_u32 v4, v6, 2, s42"); A("v_xor_b32 v3, 64, v4")
            A("global_load_dword v4, v4, s[26:27]"); A("global_load_dword v3, v3, s[26:27]")
            A("s_load_dwordx16 s[64:79], s[26:27], 0x4000"); A("s_load_dwordx16 s[80:95], s[26:27], 0x4040")
            A("s_waitcnt vmcnt(0) lgkmcnt(0)")
            A("v_xor_b32 v3, v7, v3"); A("v_xor_b32 v5, v7, v4")
            A("v_xor_b32 v3, s79, v3"); A("v_xor_b32 v3, s87, v3")
        self.stamp(5)
        issued = []
        def addr(slot, tag=None):
            if self.xt:
                if tag and slot % 16 == 0:
                    A(f"v_xor_b32 v58, s{80 + tag[0]}, v5")
                A(f"v_xor_b32 v4, s{64 + slot % 16}, v58")
                return 4
            x = lin(tv, slot % 16 + (tag[0] * 16 if tag else 0))
            b = 5 if tag else 58
            if x:
                A(f"v_xor_b32 v4, {x:#x}, v{b}"); b = 4
            return b
        def load(slot, srd, so="0", tag=None, b=None):
            r = RING + 4 * slot
            if b is None:
                b = addr(slot, tag)
            A(f"buffer_load_dwordx4 v[{r}:{r+3}], v{b}, {srd}, {so} offen {fl}".rstrip())
            issued.append(tag)
        def nextgroup():
            if self.xt:
                A("s_add_u32 m0, s54, 1"); A("s_nop 0"); A("s_movrels_b32 s50, s80")
            else:
                A("s_add_u32 s42, s54, 1")
                if tv[5] == 2 * tv[4] and tv[6] == 4 * tv[4] and tv[4] & (tv[4] - 1) == 0:
                    A("s_and_b32 s50, s42, 7"); A(f"s_lshl_b32 s50, s50, {tv[4].bit_length() - 1}")
                else:
                    slin("s50", [("s42", i, tv[4 + i]) for i in range(3)])
            A("v_xor_b32 v58, s50, v5")
        def wait(tag):
            A(f"s_waitcnt vmcnt({len(issued) - 1 - issued.index(tag)})")
        def cwait(D, j, k=False):
            self.nlab += 1
            lo = self.culo // 4
            for L in range(D, lo - 1, -1):
                A(f"s_waitcnt vmcnt({L-1})")
                if L == D and not k:
                    A(f"s_cbranch_scc0 L_cw{self.nlab}")
                if L > lo:
                    A(f"s_cmp_ge_u32 s62, {4*L - (j & 3)}")
                    A(f"s_cbranch_scc1 L_cw{self.nlab}")
            A(f"L_cw{self.nlab}:")
        def swait(D, lo=None):
            A(f"s_waitcnt vmcnt({D-1})")
            if lo is not None and lo < D:
                self.nlab += 1
                A(f"s_cbranch_vccnz L_ad{self.nlab}")
                A(f"s_waitcnt vmcnt({lo-1})")
                A(f"L_ad{self.nlab}:")
        def setup2():
            if self.sp:
                A("v_lshlrev_b32 v7, 4, v2"); A("v_lshrrev_b32 v6, 4, v0")
            A("s_mov_b32 s14, s10"); A("s_mov_b32 s15, s11"); A("s_mov_b32 s46, s10"); A("s_mov_b32 s47, s11")
            A("s_add_u32 s12, s20, s7"); A("s_addc_u32 s13, s21, 0")
            A("s_mov_b32 s52, 0xaaaaaaaa"); A("s_mov_b32 s53, 0xaaaaaaaa")
            A("s_mov_b32 s56, 0xcccccccc"); A("s_mov_b32 s57, 0xcccccccc")
            C("s60 = key group before which this WG turns to its part of wo; it keeps more loads in flight in return")
            A(f"s_lshr_b32 s60, s2, {self.bg[2]}"); A(f"s_and_b32 s60, s60, {self.bg[1]}"); A(f"s_add_u32 s60, s60, {self.bg[0]}")
            self.is_cons()
            A("s_cselect_b64 vcc, -1, 0")
            A("s_cselect_b32 s60, s60, 0")
            A("v_mov_b32 v21, 0"); A("v_mov_b32 v62, 0")
            if self.wk:
                A(f"s_mov_b32 s4, {pre}"); A("s_mov_b32 s5, 8")
        dd = self.dks
        for gi in range(pre):
            for j in range(16):
                n = 16 * gi + j
                if n == dd:
                    setup2()
                    self.stamp(6)
                if self.wf and n == self.wf:
                    if self.ep in (1, 2):
                        A("s_branch L_s2"); self.pf(); A("L_s2:")
                    A("s_barrier")
                b = addr(n, (gi, j))
                if n >= dd:
                    if self.dkc:
                        swait(self.dkc, dd)
                    else:
                        swait(dd)
                if n == dd:
                    self.stamp(7)
                if n == 2 * dd:
                    self.stamp(8)
                load(n, "s[8:11]", tag=(gi, j), b=b)
        self.stamp(1)
        A("s_barrier")
        A("L_walk:")
        A(f"ds_read_b128 v[{Q}:{Q+3}], v7 offset:{QP}")
        self.stamp(2)
        A("s_waitcnt lgkmcnt(0)")
        def qk(slots):
            for d in range(4):
                for slot in slots:
                    r = RING + 4 * slot
                    p = P + slot % 16
                    c = "0" if d == 0 else f"v{p}"
                    A(f"v_dot2_f32_bf16 v{p}, v{r+d}, v{Q+d}, {c}")
        def treduce(dst, mid=()):
            C("transposing reduction: lane (g,c) <- score of load c, key g")
            for t in range(8):
                A(f"v_add_f32_dpp v{P+t}, v{P+t}, v{P+t} row_ror:8 row_mask:0xf bank_mask:0x3")
            for t in range(8):
                A(f"v_add_f32_dpp v{P+t}, v{P+t+8}, v{P+t+8} row_ror:8 row_mask:0xf bank_mask:0xc")
            for t in range(4):
                A(f"v_add_f32_dpp v{P+t}, v{P+t}, v{P+t} row_half_mirror row_mask:0xf bank_mask:0x5")
            for t in range(4):
                A(f"v_add_f32_dpp v{P+t}, v{P+t+4}, v{P+t+4} row_half_mirror row_mask:0xf bank_mask:0xa")
            U0, U1, T0, T1 = P + 8, P + 9, P + 10, P + 11
            A(f"v_cndmask_b32 v{U0}, v{P+1}, v{P}, s[52:53]")
            A(f"v_cndmask_b32 v{U1}, v{P+3}, v{P+2}, s[52:53]")
            A(f"v_cndmask_b32 v{T0}, v{P}, v{P+1}, s[52:53]")
            A(f"v_cndmask_b32 v{T1}, v{P+2}, v{P+3}, s[52:53]")
            A("s_nop 1")
            A(f"v_add_f32_dpp v{T0}, v{U0}, v{T0} quad_perm:[1,0,3,2] row_mask:0xf bank_mask:0xf")
            A(f"v_add_f32_dpp v{T1}, v{U1}, v{T1} quad_perm:[1,0,3,2] row_mask:0xf bank_mask:0xf")
            A(f"v_cndmask_b32 v{U0}, v{T1}, v{T0}, s[56:57]")
            A(f"v_cndmask_b32 v{U1}, v{T0}, v{T1}, s[56:57]")
            if mid:
                for m in mid:
                    A(m)
            else:
                A("s_nop 1")
            A(f"v_add_f32_dpp v{dst}, v{U0}, v{U1} quad_perm:[2,3,0,1] row_mask:0xf bank_mask:0xf")
        C("catch-up over the prefetched groups; group `pre` is loaded into ring slots 0..15 meanwhile")
        nxt = 0
        for gi in range(pre):
            for j in range(0, 16, 2):
                wait((gi, j + 1))
                qk([16 * gi + j, 16 * gi + j + 1])
                if gi == 0:
                    want = j + 2 if (j < 8 or pre == 1) else 8
                elif gi == 1:
                    want = 8 + j // 2 + 1
                else:
                    want = 16
                while nxt < want:
                    load(nxt, "s[8:11]", tag=(pre, nxt)); nxt += 1
            A("s_nop 0")
            treduce(S + 8 - pre + gi)
        assert nxt == 16
        for j in range(16 - DK):
            wait((pre, j))
            qk([j])
        A(f"s_mov_b32 s54, {'s4' if self.wk else pre}")
        def kslot(j, slot, srd):
            b = addr(slot)
            if self.kctl:
                cwait(DK, j, True)
            else:
                swait(DK, DK - self.adel)
            load(slot, srd, b=b)
            qk([j])
            if self.kctl:
                if j % 2 == 0:
                    A(f"ds_add_u32 v12, v56 offset:{PRG}")
                    A("s_waitcnt lgkmcnt(1)")
                    A("v_readfirstlane_b32 s62, v61")
                else:
                    A(f"ds_read_b32 v61, v59 offset:{RK}")
        if self.kctl:
            A("v_and_b32 v12, 63, v0"); A("v_lshlrev_b32 v12, 2, v12"); A("v_mov_b32 v56, 1")
            A("v_mov_b32 v59, 0"); A(f"s_mov_b32 s62, {self.cu0}"); A(f"ds_read_b32 v61, v59 offset:{RK}")
        A("s_branch L_kmid")
        A("L_kloop:")
        A("s_cmp_eq_u32 s54, s60")
        A("s_cbranch_scc1 L_burst")
        A("L_nobu:")
        for j in range(16 - DK):
            kslot(j, j + DK, "s[8:11]")
        A("L_kmid:")
        if self.prog:
            A("s_memrealtime s[90:91]")
        C("the rest refills from the next group (V group 0 after the last K group)")
        nextgroup()
        A("s_cmp_eq_u32 s54, 7")
        A("s_cselect_b32 s44, s12, s8"); A("s_cselect_b32 s45, s13, s9")
        for j in range(16 - DK, 16):
            kslot(j, j + DK - 16, "s[44:47]")
        if self.prog:
            A("s_waitcnt lgkmcnt(0)")
            A("s_mov_b32 m0, s54"); A("s_nop 0")
            A("v_writelane_b32 v60, s90, m0")
        for i in range(7):
            A(f"v_mov_b32 v{S+i}, v{S+i+1}")
        treduce(S + 7, ("s_add_u32 s54, s54, 1", "s_cmp_lt_u32 s54, 8"))
        A("s_cbranch_scc1 L_kloop")
        A("L_soft:")
        self.stamp(11)
        for j in range(DK, DV):
            load(j, "s[12:15]")
        C("softmax over this row's 128 keys (true max of the partial; partials are merged exactly later)")
        M, Ls = 14, 15
        cs = math.log2(math.e) / math.sqrt(128.0)
        A(f"s_mov_b32 s58, {f32(cs)}")
        A(f"v_max3_f32 v{M}, v{S}, v{S+1}, v{S+2}")
        A(f"v_max3_f32 v{M}, v{M}, v{S+3}, v{S+4}")
        A(f"v_max3_f32 v{M}, v{M}, v{S+5}, v{S+6}")
        A(f"v_max_f32 v{M}, v{M}, v{S+7}")
        nsf = [0]
        def fill(k):
            for i in range(k):
                b = addr(DV + nsf[0])
                A(f"s_waitcnt vmcnt({self.sfd-1})")
                load(DV + nsf[0], "s[12:15]", b=b); nsf[0] += 1
        fill(self.sf >= 1)
        self.row_allreduce("max", M)
        fill(self.sf >= 3)
        A(f"v_mul_f32 v{M}, s58, v{M}")
        for i in range(8):
            A(f"v_fma_f32 v{S+i}, v{S+i}, s58, -v{M}")
        for i in range(8):
            A(f"v_exp_f32 v{S+i}, v{S+i}")
        for i in range(8):
            A(f"v_mov_b32 v{ACC+i}, 0")
        A(f"v_add_f32 v{Ls}, v{S}, v{S+1}")
        for i in range(2, 8):
            A(f"v_add_f32 v{Ls}, v{Ls}, v{S+i}")
        fill(self.sf >= 2)
        self.row_allreduce("add", Ls)
        A(f"v_lshlrev_b32 v16, 2, v6")
        A("v_lshlrev_b32 v18, 2, v0")
        A(f"ds_write_b32 v18, v{S+7} offset:{PL}")
        A(f"v_min_u32 v{M}, -2, v{M}")
        A(f"v_min_u32 v{Ls}, -2, v{Ls}")
        A(f"ds_write_b32 v16, v{M} offset:{MLM}")
        A(f"ds_write_b32 v16, v{Ls} offset:{MLL}")
        A("s_sub_u32 s54, s54, s5" if self.wk else "s_mov_b32 s54, 0")
        A("v_and_b32 v19, 0xfc, v18"); A("v_mov_b32 v56, 1")
        if self.ctl and not self.kctl:
            A("v_mov_b32 v59, 0"); A(f"s_mov_b32 s62, {self.cu0}"); A(f"v_mov_b32 v61, {self.cu0}")
        A(f"s_mov_b32 s61, {144 - DV}")
        def pv(slot):
            r = RING + 4 * slot
            for d in range(2 if 'pv' in self.skip else 4):
                A(f"v_dot2c_f32_bf16_dpp v{ACC+2*d}, v{PLO}, v{r+d} row_newbcast:{slot} row_mask:0xf bank_mask:0xf")
                A(f"v_dot2c_f32_bf16_dpp v{ACC+2*d+1}, v{PHI}, v{r+d} row_newbcast:{slot} row_mask:0xf bank_mask:0xf")
        self.stamp(12)
        A("L_vloop:")
        A("s_cmp_lg_u32 s54, 6")
        A("s_cbranch_scc1 L_nocf")
        C("from here on everything is scaled to the final softmax weights of the head")
        C("v17: dimension pair of lane (g,c) after the row reduction: 4c + 2(g&1) + (g>>1)")
        A("v_and_b32 v17, 1, v6"); A("v_lshl_add_u32 v17, v17, 3, v7")
        A("v_bfe_u32 v21, v6, 1, 1"); A("v_lshl_add_u32 v17, v21, 2, v17")
        A("s_lshl_b32 s42, s3, 9"); A("v_lshl_add_u32 v17, v17, 1, s42")
        A("s_lshl_b32 s42, s59, 8"); A(f"s_add_u32 s42, s42, {WS_O:#x}")
        A("v_lshlrev_b32 v22, 1, v19"); A("v_add_u32 v21, s42, v19")
        self.spin_begin("L_sp_cf")
        A(f"ds_read_b32 v57, v16 offset:{CFL}")
        A("s_waitcnt lgkmcnt(0)")
        A("v_cmp_eq_u32 vcc, -1, v57")
        A("s_cbranch_vccz L_sp_cf_done")
        self.spin_end("L_sp_cf", 1)
        A("L_sp_cf_done:")
        for r in list(range(ACC, ACC + 8)) + [S, S + 1]:
            A(f"v_mul_f32 v{r}, v57, v{r}")
        if not self.ctl:
            A("s_cmp_lg_u32 s94, 0")
            A("s_cselect_b64 vcc, -1, 0")
        A("L_nocf:")
        A("s_waitcnt lgkmcnt(0)")
        A(f"v_cvt_pk_bf16_f32 v{PLO}, v{S}, 0")
        A(f"v_cvt_pk_bf16_f32 v{PHI}, 0, v{S}")
        for i in range(7):
            A(f"v_mov_b32 v{S+i}, v{S+i+1}")
        for j in range(16):
            if j == 16 - DV:
                if self.prog:
                    A("s_memrealtime s[90:91]")
                    A("s_add_u32 m0, s54, 8")
                    A("s_waitcnt lgkmcnt(0)")
                    A("v_writelane_b32 v60, s90, m0")
                nextgroup()
                A("s_sub_u32 s42, s54, 6")
                A("s_cmp_gt_u32 s42, 1")
                A("s_cbranch_scc1 L_nodec")
                C("number of slots this WG works on: fewer when it hands some over, more when it takes some")
                A("s_lshl_b32 s42, s42, 2")
                A("v_mov_b32 v4, s42")
                self.spin_begin("L_sp_dec")
                A(f"ds_read_b32 v57, v4 offset:{DEC}")
                A("s_waitcnt lgkmcnt(0)")
                A("v_readfirstlane_b32 s61, v57")
                A("s_cmp_lg_u32 s61, -1")
                A("s_cbranch_scc1 L_sp_dec_done")
                self.spin_end("L_sp_dec", 1)
                A("L_sp_dec_done:")
                A("s_max_i32 s61, s61, 112"); A("s_min_i32 s61, s61, 144")
                A("s_lshl_b32 s43, s54, 4"); A(f"s_add_u32 s43, s43, {DV}"); A("s_sub_u32 s61, s61, s43")
                A("s_cmp_lg_u32 s54, 7")
                A("s_cbranch_scc1 L_nodec")
                C("the slots taken over are the last ones of the other side's last group, backwards")
                if self.xt:
                    A("v_mov_b32 v58, v3")
                else:
                    A(f"v_xor_b32 v58, {am[4] ^ lin(tv, 127):#x}, v5")
                A("v_xor_b32 v4, 60, v18")
                A(f"ds_read_b32 v{S}, v4 offset:{PL}")
                A("L_nodec:")
            if j < self.sf:
                A("s_cmp_eq_u32 s54, 0")
                A(f"s_cbranch_scc1 L_sf{j}")
            b = addr(j + DV)
            A(f"s_cmp_gt_i32 s61, {j}")
            A(f"s_cselect_b32 s51, 0, s14")
            if self.ctl:
                cwait(DV, j)
            else:
                swait(DV, DV - self.adel)
            load((j + DV) % 16, "s[12:15]", "s51", b=b)
            if j < self.sf:
                A(f"L_sf{j}:")
            pv(j)
            if j % self.pstep == 0:
                A(f"ds_add_u32 v19, v56 offset:{PRG}")
            if self.ctl and j % 2 == 1:
                A(f"ds_read_b32 v61, v59 offset:{RK}")
            if self.ctl and j % 2 == 0:
                A("s_waitcnt lgkmcnt(1)")
                A("v_readfirstlane_b32 s62, v61")
            A(f"s_cmp_le_i32 s61, {j + 1 - DV}")
            A("s_cbranch_scc1 L_vdone")
        A("s_add_u32 s54, s54, 1")
        A("s_sub_u32 s61, s61, 16")
        A("s_branch L_vloop")
        A("L_vdone:")
        self.stamp(4)
        A("s_nop 1")
        C("rows are added in the wave, waves in LDS; whoever comes last publishes the sum")
        for d in (0, 1, 4, 5):
            A(f"v_permlane32_swap_b32 v{ACC+d}, v{ACC+d+2}")
        for d in (0, 4):
            A(f"v_pk_add_f32 v[{ACC+d}:{ACC+d+1}], v[{ACC+d}:{ACC+d+1}], v[{ACC+d+2}:{ACC+d+3}]")
        A("s_nop 1")
        for d in (0, 1):
            A(f"v_permlane16_swap_b32 v{ACC+d}, v{ACC+d+4}")
        A(f"v_pk_add_f32 v[{ACC}:{ACC+1}], v[{ACC}:{ACC+1}], v[{ACC+4}:{ACC+5}]")
        A(f"ds_write_b64 v17, v[{ACC}:{ACC+1}] offset:{OA}")
        A(f"ds_add_rtn_u32 v20, v19, v56 offset:{OC}")
        A(f"ds_read2st64_b64 v[24:27], v22 offset0:{OA//512} offset1:{OA//512+1}")
        A(f"ds_read2st64_b64 v[28:31], v22 offset0:{OA//512+2} offset1:{OA//512+3}")
        A("s_waitcnt lgkmcnt(1)")
        A("v_cmpx_eq_u32 vcc, 3, v20")
        A("v_pk_add_f32 v[24:25], v[24:25], v[26:27]")
        A("s_waitcnt lgkmcnt(0)")
        A("v_pk_add_f32 v[28:29], v[28:29], v[30:31]")
        A("v_pk_add_f32 v[24:25], v[24:25], v[28:29]")
        A("v_cvt_pk_bf16_f32 v22, v24, v25")
        A("v_min_u32 v22, -2, v22")
        A("global_store_dword v21, v22, s[40:41] sc1")
        self.stamp(3)
        A("s_mov_b64 exec, -1")
        A("s_cmp_lg_u32 s94, 0")
        A("s_cbranch_scc1 L_proj")
        if self.wk:
            A("s_cmp_ge_u32 s3, 4")
            A("s_cbranch_scc1 L_back")
        if self.fine:
            A("s_waitcnt vmcnt(0)")
            self.stamp(8)
        if self.diag:
            A("s_branch L_hend")
        else:
            A("s_endpgm")

    TB = 100
    def tag4(self, R, n=4):
        for i in range(n):
            self.A(f"v_and_or_b32 v{R+i}, v{R+i}, v15, s{96 + i % 4}")
    def chk(self, acc, R, n, D=None):
        D = R if D is None else D
        for i in range(n):
            self.A(f"v_xor_b32 v{D+i}, s{96 + i % 4}, v{R+i}")
        self.A(f"v_or3_b32 v{acc}, v{D}, v{D+1}, v{D+2}")
        i = 3
        while i < n:
            if i + 1 < n:
                self.A(f"v_or3_b32 v{acc}, v{acc}, v{D+i}, v{D+i+1}"); i += 2
            else:
                self.A(f"v_or_b32 v{acc}, v{acc}, v{D+i}"); i += 1
    def chk_branch(self, acc, lab, sleep):
        A = self.A
        A(f"v_cmp_ne_u32_sdwa vcc, v{acc}, v10 src0_sel:BYTE_0 src1_sel:DWORD")
        A(f"s_cbranch_vccz {lab}_done")
        self.spin_end(lab, sleep)
        A(f"{lab}_done:")

    def set_tag(self):
        for k in range(4):
            self.A(f"s_bfe_u32 s{96+k}, s63, {0x80000 + 8*k:#x}")

    def control5(self):
        A, C = self.A, self.C
        ps, DV = self.pstep, self.DV
        c0 = self.cc0 * 4 // ps
        A("s_cmp_lg_u32 s7, 0")
        A("s_cbranch_scc1 L_noctl")
        C("helper 0: the number of loads in flight follows this WG's lag behind the WGs it shares a progress line with")
        if self.diag:
            A("s_mov_b32 s86, 0"); A("s_mov_b32 s87, 0")
        A("s_and_b32 s42, s2, 7"); A(f"s_mul_i32 s42, s42, {self.bst}"); A(f"s_add_u32 s42, s42, {WS_RP:#x}")
        A("v_lshl_add_u32 v12, v4, 2, s42")
        A("s_lshr_b32 s43, s2, 3"); A("s_lshl2_add_u32 s42, s43, s42")
        A("v_mov_b32 v14, s42")
        A(f"s_mov_b32 s45, {self.cu0}")
        if self.cpo:
            A(f"s_movk_i32 s60, {256 - self.cpo}")
            A(f"s_bitcmp{self.cpar}_b32 s2, 0")
            A(f"s_cselect_b32 s60, {256 + self.cpo}, s60")
        A("s_cmp_lg_u32 s94, 0")
        A(f"s_cselect_b32 s61, {self.cbias}, 0")
        A(f"s_mov_b32 s55, {SPIN_MAX}")
        A("s_mov_b32 exec_hi, 0")
        A("L_ctl:")
        if self.csl:
            A(f"s_sleep {self.csl}")
        A(f"ds_read_b32 v13, v10 offset:{PRG}")
        A(f"s_sub_u32 s46, {4*DV+64}, s45")
        A("s_lshr_b32 s46, s46, 1")
        A("s_sub_u32 s46, s46, s61")
        A("s_waitcnt lgkmcnt(0)")
        A("v_readfirstlane_b32 s47, v13")
        A("s_add_u32 s42, s47, s46")
        A("s_xor_b32 s43, s42, s63")
        A("v_mov_b32 v13, s43")
        A("s_mov_b32 exec_lo, 1")
        A("global_store_dword v14, v13, s[40:41]")
        A(f"s_cmp_ge_u32 s47, {(self.clim+self.K0)*4//ps}")
        A("s_cbranch_scc1 L_ctl2")
        A("s_mov_b32 exec_lo, -1")
        A("global_load_dword v11, v12, s[40:41] sc1")
        A(f"s_sub_u32 s42, s42, {self.cb}")
        A("s_waitcnt vmcnt(0)")
        A("v_xor_b32 v11, s63, v11")
        A("v_cmp_gt_u32 vcc, 0x400, v11")
        A("v_subrev_u32 v11, s42, v11")
        A("v_cndmask_b32 v11, 0, v11, vcc")
        for m in ("quad_perm:[1,0,3,2]", "quad_perm:[2,3,0,1]", "row_half_mirror", "row_mirror"):
            A("s_nop 1")
            A(f"v_add_u32_dpp v11, v11, v11 {m} row_mask:0xf bank_mask:0xf")
        A(f"s_cmp_lt_u32 s47, {c0}")
        A("s_cbranch_scc1 L_ctl3")
        A("v_readlane_b32 s43, v11, 0")
        A("v_readlane_b32 s42, v11, 16")
        A("s_add_i32 s42, s43, s42")
        A(f"s_mul_i32 s42, s42, {self.cg}")
        A(f"s_add_i32 s42, s42, {'s60' if self.cpo else 1 << 8}")
        A(f"s_ashr_i32 s42, s42, 9")
        A(f"s_add_i32 s45, s42, {self.cu0}")
        A(f"s_max_i32 s45, s45, {self.culo}"); A(f"s_min_i32 s45, s45, {self.cuhi}")
        A("v_mov_b32 v13, s45")
        A(f"ds_write_b32 v10, v13 offset:{RK}")
        if self.diag:
            A("s_add_u32 s86, s86, s45"); A("s_add_u32 s87, s87, 1")
        A("s_branch L_ctl3")
        A("L_ctl2:")
        A(f"s_sleep {self.rsl}")
        A("L_ctl3:")
        A("s_sub_u32 s55, s55, 1")
        A("s_cbranch_scc1 L_ctl4")
        A(f"s_cmp_lt_u32 s47, {(self.cend+self.K0)*4//ps}")
        A("s_cbranch_scc1 L_ctl")
        A("L_ctl4:")
        if self.cfin:
            A(f"v_mov_b32 v13, {self.cfin}" if self.cfin > 8 else f"v_add_u32 v13, {self.cfin}, v10")
            if self.cfin <= 8:
                A("v_add_u32 v13, s45, v13")
            A(f"ds_write_b32 v10, v13 offset:{RK}")
        A("s_mov_b64 exec, -1")
        A("L_noctl:")

    BB = 128
    def burst(self):
        A, C = self.A, self.C
        BB = self.BB
        A("L_burst:")
        if self.wk == 1:
            A("s_mov_b64 exec, -1")
        C("this WG projects batch row s92 onto the columns 32 s93..; wave w holds the wo rows of the heads 4w..")
        A("s_bfe_u32 s92, s2, 0x20005")
        A("s_bfe_u32 s93, s2, 0x20003"); A("s_and_b32 s42, s2, 6"); A("s_lshl1_add_u32 s93, s42, s93")
        C("row 64(kk>>1) + 4(kk&1) + 8(c>>2) + 32((e>>1)&1) + 2(e>>2) + (e&1), columns 8(c&3)..")
        A("v_and_b32 v1, 0x2c, v0"); A("v_lshlrev_b32 v1, 11, v1")
        A("v_and_b32 v62, 16, v0"); A("v_lshl_add_u32 v1, v62, 8, v1")
        A("v_and_b32 v63, 3, v0"); A("v_lshl_add_u32 v1, v63, 4, v1")
        A("s_lshl_b32 s28, s3, 19"); A("s_lshl_b32 s42, s93, 6"); A("s_add_u32 s28, s28, s42")
        A("s_add_u32 s29, s28, 0x8000")
        A(f"s_mov_b32 s26, {0 if 'wo' in self.skip else 0x400000:#x}"); A("s_mov_b32 s27, 0x20000")
        A("s_mov_b32 s48, 0x05040100"); A("s_mov_b32 s49, 0x07060302")
        A("s_mov_b64 s[100:101], -1")
        A("s_barrier")
        self.stamp(10)
        stage = [[BB + 64 + 4 * e for e in range(8)], [BB + 96 + 4 * e for e in range(8)], [96 + 4 * e for e in range(8)],
                 [16, 20, 24, 28, 32, 36, 48, 52]]
        for s in range(4):
            for e in range(8):
                r = stage[s][e]
                A(f"buffer_load_dwordx4 v[{r}:{r+3}], v1, s[24:27], s{28 + ((e >> 1) & 1)} offen offset:{(2*(e >> 2) + (e & 1))*1024}")
            if s < 3:
                A("s_add_u32 s28, s28, 0x20000"); A("s_add_u32 s29, s29, 0x20000")
        C("v62: record piece of lane (hh, kl, side, par, ch): O[b][4w + 2m + hh][side] + 16(8kl + 4par + ch)")
        A("s_lshl_b32 s42, s92, 14"); A("s_lshl_b32 s43, s3, 11"); A("s_add_u32 s42, s42, s43"); A(f"s_add_u32 s42, s42, {WS_O:#x}")
        A("v_lshl_add_u32 v62, v62, 3, s42")
        A("v_and_b32 v63, 0x27, v0"); A("v_lshl_add_u32 v62, v63, 4, v62")
        A("v_and_b32 v63, 8, v0"); A("v_lshl_add_u32 v62, v63, 5, v62")
        C("v63: 2:4 pattern of A row i: the first two of every four k for (i&4) == 0, else the last two")
        A("v_bfe_u32 v63, v0, 2, 1")
        A("v_mul_u32_u24 v63, 0xaaaa, v63")
        A("v_add_u32 v63, 0x4444, v63")
        for s in range(4):
            A(f"s_waitcnt vmcnt({24 - 8*s})")
            if s == 3 and self.b2:
                A("s_barrier")
            self.slabperm(BB + 64 * (s >> 1) + 4 * (s & 1), stage[s], 8)
        A("s_cmp_lt_u32 s3, 4")
        A("s_cbranch_scc1 L_nobu")

    def project(self):
        A, C = self.A, self.C
        BB, LR, D, T = self.BB, 40, 64, 96
        def ld(m):
            A(f"global_load_dwordx4 v[{LR+4*m}:{LR+4*m+3}], v62, s[40:41] offset:{1024*m} sc1")
        def chk(m):
            r = LR + 4 * m
            A(f"v_max3_u32 v13, v{r}, v{r+1}, v{r+2}")
            A(f"v_max_u32 v13, v13, v{r+3}")
            A("v_cmp_eq_u32 vcc, -1, v13")
        def f1(q, bk):
            d = D + 4 * (q + 4 * (bk >> 1))
            A(f"v_add_f32_dpp v{T+q}, v{d + (bk ^ 2)}, v{d + bk} row_ror:8 row_mask:0xf bank_mask:{1 << bk:#x}")
        def mf(m, last):
            if self.fine:
                A(f"s_memrealtime s[{16+2*m}:{17+2*m}]")
            for k in range(8):
                a = (k >> 1) + 4 * (k & 1)
                d, b = D + 4 * a, BB + 64 * m + 8 * a
                A(f"v_smfmac_f32_16x16x64_bf16 v[{d}:{d+3}], v[{LR+4*m}:{LR+4*m+3}], v[{b}:{b+7}], v63")
                if last and k >= 3:
                    for bk in range(2):
                        f1((k - 3) >> 1, 2 * ((k - 3) & 1) + bk)
        def tight(m):
            A(f"L_t{m}:")
            ld(m)
            A("s_sub_u32 s55, s55, 1")
            A(f"s_cbranch_scc1 L_f{m}")
            A(f"s_waitcnt vmcnt({self.pd1-1})")
            chk(m)
            A(f"s_cbranch_vccnz L_t{m}")
            A(f"L_f{m}:")
        A("L_proj:")
        self.stamp(12)
        C("the records of two pairs of heads are re-read until they are complete; several reads are kept in flight")
        for i in range(0, 8, 2):
            A(f"v_mov_b64 v[{LR+i}:{LR+i+1}], -1")
        ld(0); ld(1)
        for i in range(0, 32, 2):
            A(f"v_mov_b64 v[{D+i}:{D+i+1}], 0")
        C("v26: slot of this lane's sum: column 8(l&3) + 2((l>>2)&3) + (l>>5), wave, (l>>4)&1")
        A("v_and_b32 v26, 3, v0"); A("v_bfe_u32 v27, v0, 2, 2"); A("v_lshl_add_u32 v26, v26, 2, v27")
        A("v_bfe_u32 v27, v0, 5, 1"); A("v_lshl_add_u32 v26, v26, 1, v27")
        A(f"v_mul_u32_u24 v26, {FAS}, v26")
        A("v_bfe_u32 v27, v0, 4, 1"); A("v_lshl_add_u32 v26, v27, 2, v26")
        A("v_lshl_add_u32 v26, s3, 3, v26")
        A("v_bfe_u32 v28, v0, 1, 5")
        A(f"v_mul_u32_u24 v27, {FAS}, v28")
        A("v_and_b32 v29, 1, v0"); A("v_lshl_add_u32 v27, v29, 5, v27")
        A("s_lshl4_add_u32 s42, s92, s93"); A("s_lshl_b32 s42, s42, 6")
        A("v_lshl_add_u32 v29, v28, 1, s42")
        A("v_lshlrev_b32 v28, 3, v28")
        A("v_and_b32 v30, 63, v0"); A("v_lshlrev_b32 v30, 2, v30")
        A("v_mov_b32 v31, 1")
        A(f"s_mov_b32 s55, {SPIN_MAX*8}")
        A("s_mov_b64 exec, s[100:101]")
        A("L_two:")
        for m in range(2):
            A(f"s_waitcnt vmcnt({self.pd-1})")
            chk(m)
            A(f"s_cbranch_vccz L_h{m}")
            ld(m)
        A("s_sub_u32 s55, s55, 1")
        A("s_cbranch_scc0 L_two")
        A("L_h1:")
        mf(1, False)
        chk(0)
        A("s_cbranch_vccz L_f0")
        tight(0)
        mf(0, True)
        A("s_branch L_fold")
        A("L_h0:")
        mf(0, False)
        chk(1)
        A("s_cbranch_vccz L_f1")
        tight(1)
        mf(1, True)
        A("L_fold:")
        self.stamp(13)
        C("D row 4g + ch is valid in the lanes with (l>>2)&3 == ch")
        for q in range(2):
            A(f"v_add_f32_dpp v{T+4+q}, v{T+q}, v{T+q} row_shl:4 row_mask:0xf bank_mask:0x5")
        for q, bk in ((2, 2), (2, 3), (3, 0), (3, 1), (3, 2), (3, 3)):
            f1(q, bk)
        A(f"v_add_f32_dpp v{T+4}, v{T+2}, v{T+2} row_shr:4 row_mask:0xf bank_mask:0xa")
        A("s_nop 0")
        A(f"v_add_f32_dpp v{T+5}, v{T+3}, v{T+3} row_shr:4 row_mask:0xf bank_mask:0xa")
        A("s_nop 1")
        A(f"v_permlane32_swap_b32 v{T+4}, v{T+5}")
        A(f"v_add_f32 v{T+4}, v{T+4}, v{T+5}")
        A(f"ds_write_b32 v26, v{T+4} offset:{FA}")
        A(f"ds_add_rtn_u32 v31, v30, v31 offset:{FC}")
        A(f"ds_read_b128 v[{T+8}:{T+11}], v27 offset:{FA}")
        A(f"ds_read_b128 v[{T+12}:{T+15}], v27 offset:{FA+16}")
        A(f"ds_read_b64 v[{T+6}:{T+7}], v28 offset:{GX}")
        A("s_waitcnt lgkmcnt(2)")
        A(f"v_pk_add_f32 v[{T+8}:{T+9}], v[{T+8}:{T+9}], v[{T+10}:{T+11}]")
        A("s_waitcnt lgkmcnt(1)")
        A(f"v_pk_add_f32 v[{T+12}:{T+13}], v[{T+12}:{T+13}], v[{T+14}:{T+15}]")
        A(f"v_pk_add_f32 v[{T+8}:{T+9}], v[{T+8}:{T+9}], v[{T+12}:{T+13}]")
        A(f"v_add_f32 v{T}, v{T+8}, v{T+9}")
        A("s_waitcnt lgkmcnt(0)")
        A("s_nop 0")
        A(f"v_add_f32_dpp v{T}, v{T}, v{T} quad_perm:[1,0,3,2] row_mask:0xf bank_mask:0xf")
        A("v_cmpx_eq_u32 vcc, 7, v31")
        self.rnd(T, T)
        A(f"v_mul_f32 v{T}, v{T}, v{T+6}")
        self.rnd(T, T)
        A(f"v_add_f32 v{T}, v{T}, v{T+7}")
        A(f"v_cvt_pk_bf16_f32 v{T}, v{T}, 0")
        A(f"global_store_short v29, v{T}, s[36:37] {self.ofl}".rstrip())
        if self.ack:
            A("s_waitcnt vmcnt(0)")
        self.stamp(9)
        if self.dry:
            A("s_cmp_gt_u32 s94, 1")
            A("s_cbranch_scc1 L_dry")
        A(f"s_cmp_lg_u32 s2, {254 + self.cpar}")
        A("s_cbranch_scc1 L_nobump")
        A("s_and_b64 exec, exec, 1")
        A("s_cbranch_scc0 L_nobump")
        C("every reader of the tag word is done by now (this wave has seen data that depends on all of them)")
        A(f"ds_read_b32 v13, v30 offset:{TAGL}")
        A(f"v_mov_b32 v12, {WS_EP:#x}")
        A("s_waitcnt lgkmcnt(0)")
        A("global_store_dword v12, v13, s[40:41] sc1")
        A("L_nobump:")
        if self.diag:
            A("s_mov_b64 exec, -1")
        if self.fine:
            A("s_sleep 127"); A("s_sleep 127")
            A("s_waitcnt lgkmcnt(0)")
            A("s_lshl3_add_u32 s42, s2, s3"); A("s_lshl_b32 s42, s42, 4"); A(f"s_add_u32 s42, s42, {WS_DIAG + 0x100000:#x}")
            A("v_mov_b32 v12, s42")
            for m in range(2):
                A(f"v_mov_b32 v16, s{16+2*m}"); A(f"v_mov_b32 v17, s{17+2*m}")
                A(f"global_store_dwordx2 v12, v[16:17], s[40:41] offset:{8*m}")

    def helper(self):
        A, C = self.A, self.C
        mf = self.mflags
        RA, RD = 16, 32
        RB = 64
        ST = 192
        T = 224
        A("L_helper:")
        C("===== helper waves =====")
        A("s_sub_u32 s7, s3, 4")
        A("v_bfe_u32 v3, v0, 4, 2")
        A("v_and_b32 v4, 63, v0")
        A("s_bfe_u32 s4, s59, 0x50001")
        A("s_lshr_b32 s5, s2, 6")
        A("s_mov_b32 s48, 0x05040100"); A("s_mov_b32 s49, 0x07060302")
        A("v_lshlrev_b32 v6, 4, v4")
        A("v_mov_b32 v10, 0"); A("v_mov_b32 v62, 0")
        A("v_mov_b32 v15, 0xffffff00")
        A("s_mov_b32 s11, 0x20000"); A("s_mov_b32 s15, 0x20000")
        C("s62 = MLP unit of this WG (>= NUNIT: none)")
        A("s_lshr_b32 s62, s2, 1")
        A("s_and_b32 s42, s2, 1"); A(f"s_cmp_eq_u32 s42, {self.mpar}")
        A("s_cselect_b32 s62, s62, 255")
        A("s_cmp_ge_u32 s7, 2")
        A("s_cbranch_scc1 L_pf" if self.ep > 1 else "s_cbranch_scc1 L_nofront")
        A("s_cmp_eq_u32 s7, 0")
        A("s_cbranch_scc1 L_front")
        if self.ep:
            A(f"s_cmp_lt_u32 s62, {NUNIT}")
            A("s_cbranch_scc1 L_front")
            A("s_barrier")
            A("s_branch L_nofront")
        else:
            A(f"s_cmp_ge_u32 s62, {NUNIT}")
            A("s_cbranch_scc1 L_nofront")
        A("L_front:")
        A(f"s_setprio {self.fprio}")
        if self.fh == 1:
            C("front units, 128 rows x 64 cols for all 4 batch rows. helper 0: wq rows 128b.., cols 64(2h+side)..")
            C("helper 1: w1 rows 128(u&3).., cols 64(u>>2)..  Lanes c<8 / c>=8 hold different 32-row blocks.")
            A("s_and_b32 s42, s59, 63"); A("s_and_b32 s43, s62, 3")
            A("s_lshr_b32 s44, s62, 2")
            A("s_mov_b32 s51, 3584")
            A("s_cmp_eq_u32 s7, 0")
            A("s_cselect_b32 s53, s5, s43")
            A("s_cselect_b32 s44, s42, s44")
            A("s_cselect_b32 s51, 8192, s51")
            A("s_lshl_b32 s10, s51, 9")
            A("s_mul_i32 s52, s51, 57")
            A("s_mul_i32 s50, s53, s51"); A("s_add_u32 s50, s50, s44"); A("s_lshl_b32 s50, s50, 7")
            A("s_lshl_b32 s42, s51, 3")
            A("v_lshrrev_b32 v12, 3, v2"); A("v_lshl_add_u32 v5, v12, 2, v3")
            A("v_mul_u32_u24 v5, s42, v5")
            A("v_and_b32 v12, 7, v2")
            A("v_lshl_add_u32 v5, v12, 4, v5")
        else:
            C("front units, 256 rows x 32 cols for all 4 batch rows. helper 0: wq rows 256(b>>1).., cols 32(4h + 2 side + (b&1))..")
            C("helper 1: w1 rows 256(u&1).., cols 32(4(u>>3) + (u&2) + ((u>>2)&1))..  The lane quads hold different 32-row blocks.")
            A("s_and_b32 s42, s59, 1"); A("s_and_b32 s61, s5, 1"); A("s_lshl1_add_u32 s61, s42, s61")
            A("s_lshl2_add_u32 s42, s4, s61")
            A("s_lshr_b32 s44, s62, 3"); A("s_and_b32 s43, s62, 2"); A("s_lshl2_add_u32 s44, s44, s43")
            A("s_bfe_u32 s43, s62, 0x10002"); A("s_add_u32 s44, s44, s43")
            A("s_and_b32 s43, s62, 1"); A("s_lshr_b32 s53, s5, 1")
            A("s_mov_b32 s51, 3584")
            A("s_cmp_eq_u32 s7, 0")
            A("s_cselect_b32 s53, s53, s43")
            A("s_cselect_b32 s60, s42, s44")
            A("s_cselect_b32 s51, 8192, s51")
            A("s_lshl_b32 s10, s51, 9")
            A("s_mul_i32 s52, s51, 121")
            A("s_mul_i32 s50, s53, s51"); A("s_lshl2_add_u32 s50, s50, s60"); A("s_lshl_b32 s50, s50, 6")
            A("s_lshl_b32 s42, s51, 3")
            A("v_and_b32 v12, 12, v2"); A("v_add_u32 v5, v12, v3")
            A("v_mul_u32_u24 v5, s42, v5")
            A("v_and_b32 v12, 3, v2")
            A("v_lshl_add_u32 v5, v12, 4, v5")
        A("v_lshlrev_b32 v12, 10, v3")
        A("v_lshl_add_u32 v12, v2, 4, v12")
        A("s_cmp_eq_u32 s7, 0")
        A("s_waitcnt lgkmcnt(0)")
        self.stamp(6)
        for t in range(4):
            A(f"global_load_dwordx4 v[{RB+32+4*t}:{RB+35+4*t}], v12, s[16:17] offset:{256*t}")
        C("the word the previous launch left only serves to pick a tag that differs from that launch's")
        A(f"s_load_dword s63, s[40:41], {WS_EP:#x}")
        A("s_cselect_b32 s8, s22, s28"); A("s_cselect_b32 s9, s23, s29")
        self.slabload(RB + 96, "s[8:11]", 5, "s51", mf, last_inc="s52")
        self.slabload(ST, "s[8:11]", 5, "s51", mf)
        self.stamp(7)
        if self.ep == 3:
            A("s_branch L_f2"); self.pf(); A("L_f2:")
        if self.wf:
            A("s_barrier")
        A("s_lshl_b32 s42, s7, 12")
        A("v_add_u32 v12, s42, v12")
        A("v_lshrrev_b32 v13, 2, v2")
        A("v_lshlrev_b32 v13, 10, v13")
        A("v_lshl_add_u32 v13, v3, 4, v13")
        C("A operand: rows[i>>2][unit rows: slab n, 32-row block from the low bits of i, 8kk]")
        A(f"v_and_b32 v14, {(1<<self.fh)-1}, v2"); A("v_lshl_add_u32 v13, v14, 6, v13")
        A(f"s_lshl_b32 s43, s53, {7+self.fh}"); A("s_add_u32 s42, s42, s43")
        A("v_add_u32 v13, s42, v13")
        A("s_mov_b32 s54, s7")
        A("s_waitcnt vmcnt(16)")
        self.stamp(1)
        A("L_ln:")
        self.unpack(RB, RB + 32, 16)
        self.layernorm(RB, 32, T, RB + 32, unpack_after=False)
        A("s_sub_u32 s54, s54, 1")
        A("s_cbranch_scc0 L_ln")
        for t in range(4):
            A(f"ds_write_b128 v12, v[{RB+32+4*t}:{RB+35+4*t}] offset:{XN + 256*t}")
        A("s_waitcnt vmcnt(8)")
        self.slabperm(RB + 64, RB + 96)
        A("s_waitcnt lgkmcnt(0)")
        A(f"ds_read_b128 v[{RA}:{RA+3}], v13 offset:{XN}")
        A(f"ds_read_b128 v[{RA+4}:{RA+7}], v13 offset:{XN+(64<<self.fh)}")
        A("s_add_u32 s63, s63, 0x61c88647")
        self.set_tag()
        A("s_waitcnt vmcnt(0)")
        self.stamp(8)
        self.slabperm(RB + 96, ST)
        A("s_waitcnt lgkmcnt(0)")
        self.slabmfma(RD, RA, RB + 64, True)
        self.slabmfma(RD, RA + 4, RB + 96, False)
        A("s_cmp_eq_u32 s7, 0")
        A("s_cbranch_scc1 L_qaddr")
        if self.fh == 1:
            C("U[u][n=(c>>2)&1][half=c>>3][b=kk][c&3][4]")
            A("s_lshl_b32 s42, s62, 10"); A(f"s_add_u32 s42, s42, {WS_U:#x}")
            A("v_bfe_u32 v12, v2, 2, 1"); A("v_lshlrev_b32 v12, 9, v12")
            A("v_lshrrev_b32 v13, 3, v2"); A("v_lshl_add_u32 v12, v13, 8, v12")
            A("v_lshl_add_u32 v12, v3, 6, v12")
            A("v_and_b32 v13, 3, v2"); A("v_lshl_add_u32 v12, v13, 4, v12")
            A("s_branch L_fst")
            A("L_qaddr:")
            C("Q[h][b=kk][row block][side][c&7][c>>3][4]")
            A("s_lshl_b32 s42, s4, 13"); A("s_lshl_b32 s43, s53, 9"); A("s_add_u32 s42, s42, s43")
            A("s_and_b32 s43, s59, 1"); A("s_lshl_b32 s43, s43, 8"); A("s_add_u32 s42, s42, s43")
            A(f"s_add_u32 s42, s42, {WS_Q:#x}")
            A("v_lshlrev_b32 v12, 11, v3")
            A("v_and_b32 v13, 7, v2"); A("v_lshl_add_u32 v12, v13, 5, v12")
            A("v_lshrrev_b32 v13, 3, v2"); A("v_lshl_add_u32 v12, v13, 4, v12")
        else:
            C("U[col block][row block][half=c>>3][b=kk][c&3][4]")
            A("s_lshl1_add_u32 s42, s60, s53"); A("s_lshl_b32 s42, s42, 9"); A(f"s_add_u32 s42, s42, {WS_U:#x}")
            A("v_lshrrev_b32 v12, 3, v2"); A("v_lshlrev_b32 v12, 8, v12")
            A("v_lshl_add_u32 v12, v3, 6, v12")
            A("v_and_b32 v13, 3, v2"); A("v_lshl_add_u32 v12, v13, 4, v12")
            A("s_branch L_fst")
            A("L_qaddr:")
            C("Q[h][b=kk][row block][col quarter][c&3][c>>3][4]")
            A("s_lshl_b32 s42, s4, 12"); A("s_lshl_b32 s43, s53, 9"); A("s_add_u32 s42, s42, s43")
            A("s_lshl_b32 s43, s61, 7"); A("s_add_u32 s42, s42, s43")
            A(f"s_add_u32 s42, s42, {WS_Q:#x}")
            A("v_lshlrev_b32 v12, 10, v3")
            A("v_and_b32 v13, 3, v2"); A("v_lshl_add_u32 v12, v13, 5, v12")
            A("v_lshrrev_b32 v13, 3, v2"); A("v_lshl_add_u32 v12, v13, 4, v12")
        A("L_fst:")
        A("v_add_u32 v12, s42, v12")
        self.fold(T, RD)
        A(f"global_store_dwordx4 v12, v[{T}:{T+3}], s[40:41] sc1")
        A("s_mov_b64 exec, -1")
        self.stamp(2)
        A("s_cmp_lg_u32 s7, 0")
        A("s_cbranch_scc1 L_fdone")
        C("helper 0: gather the partials of q[b][h], LDS init")
        A(f"s_lshl_b32 s42, s4, {14-self.fh}"); A(f"s_lshl_b32 s43, s5, {12-self.fh}"); A("s_add_u32 s42, s42, s43")
        A(f"s_add_u32 s42, s42, {WS_Q:#x}")
        A("v_add_u32 v12, s42, v6")
        A("v_lshlrev_b32 v8, 2, v4")
        A("v_mov_b32 v9, -1")
        A(f"ds_write_b32 v8, v9 offset:{MLM}")
        A("v_mov_b32 v9, s63")
        A(f"ds_write_b32 v10, v9 offset:{TAGL}")
        A(f"ds_write_b32 v8, v10 offset:{PRG}")
        A(f"ds_write2st64_b32 v8, v10, v10 offset0:{OC//256} offset1:{FC//256}")
        if self.ctl:
            if self.kctl:
                self.is_cons()
                A(f"s_cselect_b32 s42, {self.cuc}, {self.cu0}"); A("v_mov_b32 v9, s42")
            else:
                A(f"v_mov_b32 v9, {self.cu0}")
            A(f"ds_write_b32 v10, v9 offset:{RK}")
        A("v_and_b32 v9, 31, v4"); A("v_lshlrev_b32 v9, 3, v9")
        C("the partners publish at about the same time: look once the own stores are acknowledged")
        A("s_waitcnt vmcnt(0)")
        self.spin_begin("L_sp_q")
        NQ = 4 >> self.fh
        for t in range(NQ):
            A(f"global_load_dwordx4 v[{RD+4*t}:{RD+4*t+3}], v12, s[40:41] offset:{1024*t} sc1")
        A("s_waitcnt vmcnt(0)")
        self.chk(13, RD, 4 * NQ)
        self.chk_branch(13, "L_sp_q", self.qsleep)
        for d in range(4 if NQ > 1 else 0):
            A(f"v_add_f32 v{RD+d}, v{RD+d}, v{RD+4+d}")
        for d in range(4):
            A(f"v_mov_b32 v{RD+4+d}, v{RD+d}")
        A("s_nop 1")
        for d in range(4):
            A(f"v_permlane32_swap_b32 v{RD+d}, v{RD+4+d}")
        for d in range(4):
            A(f"v_add_f32 v{RD+d}, v{RD+d}, v{RD+4+d}")
        for d in range(2):
            A(f"v_cvt_pk_bf16_f32 v{RD+d}, v{RD+2*d}, v{RD+2*d+1}")
        A(f"ds_write_b64 v9, v[{RD}:{RD+1}] offset:{QP}")
        A("L_fdone:")
        A("s_setprio 0")
        if self.wf:
            A("s_waitcnt lgkmcnt(0)")
            self.stamp(3)
            A("s_branch L_b1")
        A("L_nofront:")
        A("s_waitcnt lgkmcnt(0)")
        self.stamp(3)
        A("s_cmp_lg_u32 s7, 2")
        A("s_cbranch_scc1 L_noclr")
        C("helper 2 marks this WG's output record empty; nobody looks at it before this WG's softmax record is there")
        A("s_lshl_b32 s42, s59, 8"); A(f"s_add_u32 s42, s42, {WS_O:#x}")
        A("v_lshl_add_u32 v12, v4, 2, s42")
        A("v_mov_b32 v13, -1")
        A("global_store_dword v12, v13, s[40:41] sc1")
        A("L_noclr:")
        def prefetch():
            C("helpers 2 and 3 pull a part of the wo columns that the WGs of this class project with towards the L2")
            A("s_and_b32 s42, s2, 1"); A("s_lshl1_add_u32 s42, s7, s42"); A("s_and_b32 s42, s42, 5")
            A(f"s_cmp_lg_u32 s42, {4 | self.cpar}")
            A(f"s_cbranch_scc1 {'L_pre2' if self.w2f else 'L_nopre'}")
            A("v_lshlrev_b32 v5, 4, v2"); A("v_lshl_or_b32 v5, v3, 14, v5")
            A("s_lshr_b32 s50, s2, 3"); A("s_lshl1_add_u32 s50, s50, s7"); A("s_sub_u32 s50, s50, 2"); A("s_lshl_b32 s50, s50, 16")
            A("s_and_b32 s42, s2, 6"); A("s_lshl_b32 s42, s42, 7"); A("s_add_u32 s50, s50, s42")
            A("s_mov_b32 s26, 0x400000"); A("s_mov_b32 s27, 0x20000")
            A("s_mov_b32 s54, 3")
            self.stamp(6)
            A("L_pre:")
            for n in range(4):
                A(f"buffer_load_dwordx4 v[{ST}:{ST+3}], v5, s[24:27], s50 offen offset:{n*1024}")
                A(f"s_waitcnt vmcnt({self.wpre-1})")
            A("s_add_u32 s50, s50, 0x1000")
            A("s_sub_u32 s54, s54, 1")
            A("s_cbranch_scc0 L_pre")
            self.stamp(2)
            if self.fh == 1:
                A("s_branch L_nopre")
                A("L_pre2:")
                A("s_cmp_lg_u32 s7, 3")
                A("s_cbranch_scc1 L_nopre")
                A(f"s_cmp_ge_u32 s62, {NUNIT}")
                A("s_cbranch_scc1 L_nopre")
                C("helper 3: MLP stage 2 unit: r = u>>3 (hidden rows 128r..), cq = u&7 (cols 64cq..)")
                A("s_lshr_b32 s60, s62, 3"); A("s_and_b32 s61, s62, 7")
                A("s_lshl_b32 s50, s60, 17"); A("s_lshl_b32 s43, s61, 7"); A("s_add_u32 s50, s50, s43")
                A("v_lshrrev_b32 v12, 3, v2"); A("v_lshl_add_u32 v14, v12, 2, v3"); A("v_lshlrev_b32 v14, 13, v14")
                A("v_and_b32 v12, 7, v2"); A("v_lshl_add_u32 v14, v12, 4, v14")
                A("s_mov_b32 s12, s32"); A("s_mov_b32 s13, s33"); A(f"s_mov_b32 s14, {1792*1024}")
                self.stamp(6)
                self.slabload(ST, "s[12:15]", 14, 1024, mf, last_inc=57 * 1024)
                self.slabload(RD, "s[12:15]", 14, 1024, mf)
            elif self.w2f:
                A("s_branch L_nopre")
                A("L_pre2:")
                C("in the other WGs they do the same for w2: 128 bytes at 128((wg>>1)&3) and 512 further of 56 rows")
                A(f"s_cmp_lg_u32 s42, {4 | self.mpar}")
                A("s_cbranch_scc1 L_nopre")
                A("v_and_b32 v5, 7, v4"); A("v_lshlrev_b32 v5, 4, v5"); A("v_lshrrev_b32 v12, 3, v4"); A("v_lshl_or_b32 v5, v12, 9, v5")
                A("s_lshr_b32 s50, s2, 3"); A("s_lshl1_add_u32 s50, s50, s7"); A("s_sub_u32 s50, s50, 2"); A(f"s_mul_i32 s50, s50, {28*1024}")
                A("s_and_b32 s42, s2, 6"); A("s_lshl_b32 s42, s42, 6"); A("s_add_u32 s50, s50, s42")
                A("s_mov_b32 s12, s32"); A("s_mov_b32 s13, s33"); A(f"s_mov_b32 s14, {1792*1024}")
                self.stamp(6)
                for n in range(7):
                    A(f"buffer_load_dwordx4 v[{ST}:{ST+3}], v5, s[12:15], s50 offen")
                    A(f"s_waitcnt vmcnt({self.wpre-1})")
                    A("s_add_u32 s50, s50, 0x1000")
            A("L_nopre:")
        def walk(lab):
            A("s_cmp_lg_u32 s7, 3")
            A("s_cbranch_scc1 L_back")
            C("helper 3 walks through the loops of the stream waves with no lane active and empty descriptors: instruction cache")
            A("s_mov_b64 s[8:9], s[24:25]"); A("s_mov_b64 s[12:13], s[24:25]")
            A("s_mov_b32 s10, 0"); A("s_mov_b32 s14, 0"); A("s_mov_b64 s[46:47], s[10:11]")
            for r in (5, 21, 57, 58):
                A(f"v_mov_b32 v{r}, 0")
            A("s_mov_b32 s4, 6"); A("s_mov_b32 s5, 2"); A("s_mov_b32 s54, 8"); A("s_mov_b32 s60, 0"); A("s_mov_b32 s94, 0")
            A("s_mov_b64 exec, 0")
            A(f"s_branch {lab}")
            A("L_back:")
        if self.wpre and not self.wlate and not self.ep:
            prefetch()
        if self.wf:
            if not self.ep:
                self.stamp(7)
                A("s_barrier")
            if self.diag:
                A("s_waitcnt vmcnt(0)")
                self.stamp(8)
            if self.wk == 1:
                walk("L_walk")
            A("L_b1:")
        self.is_cons()
        A("s_barrier")
        if self.wk == 2:
            walk("L_soft")
            self.is_cons()
        if self.wpre and self.wlate:
            prefetch()
        A(f"ds_read_b32 v13, v10 offset:{TAGL}")
        A("s_waitcnt lgkmcnt(0)")
        A("v_readfirstlane_b32 s63, v13")
        self.set_tag()
        if self.dw:
            A("s_cmp_lg_u32 s7, 3")
            A("s_cbranch_scc1 L_nodw")
            A("s_lshl_b32 s42, s59, 12"); A("s_add_u32 s42, s42, 0x400000")
            A("v_add_u32 v12, s42, v6")
            for k in range(self.dw):
                if self.dwr:
                    A(f"global_load_dwordx4 v[16:19], v12, s[40:41] offset:{1024*k} {self.dwf}")
                else:
                    A(f"global_store_dwordx4 v12, v[16:19], s[40:41] offset:{1024*k} {self.dwf}")
                A("s_waitcnt vmcnt(0)")
            A("L_nodw:")
        if self.vt:
            A("s_cmp_lg_u32 s7, 3")
            A("s_cbranch_scc1 L_novt")
            C("(value unused: the address translations of this head's values are fetched ahead)")
            A("s_and_b32 s42, s59, 0xfe"); A("s_lshl_b32 s42, s42, 19")
            A(f"v_lshl_add_u32 v12, v4, {self.vt}, s42")
            A(f"s_mov_b64 exec, {(1 << (1 << (20 - self.vt))) - 1:#x}")
            A("global_load_dword v13, v12, s[20:21]")
            A("s_mov_b64 exec, -1")
            A("s_waitcnt vmcnt(0)")
            A("L_novt:")
        A(f"s_cmp_lg_u32 s7, {3 if self.fh == 1 else 1}")
        A("s_cbranch_scc1 L_not1")
        A(f"s_cmp_ge_u32 s62, {NUNIT}")
        A("s_cbranch_scc1 L_not1")
        if self.fh == 1:
            pass
        else:
            C("stage 2 unit: r = u>>4 (hidden rows 256r..), cq = (u&8) + 2(u&3) + ((u>>2)&1) (cols 32cq..)")
            A("s_lshr_b32 s60, s62, 4"); A("s_and_b32 s61, s62, 3"); A("s_and_b32 s43, s62, 8"); A("s_lshl1_add_u32 s61, s61, s43")
            A("s_bfe_u32 s43, s62, 0x10002"); A("s_add_u32 s61, s61, s43")
            A("s_lshl_b32 s50, s60, 18"); A("s_lshl_b32 s43, s61, 6"); A("s_add_u32 s50, s50, s43")
            A("v_and_b32 v12, 12, v2"); A("v_add_u32 v14, v12, v3"); A("v_lshlrev_b32 v14, 13, v14")
            A("v_and_b32 v12, 3, v2"); A("v_lshl_add_u32 v14, v12, 4, v14")
            A("s_mov_b32 s12, s32"); A("s_mov_b32 s13, s33"); A(f"s_mov_b32 s14, {1792*1024}")
            self.slabload(ST, "s[12:15]", 14, 1024, mf, last_inc=121 * 1024, pace=self.w2p)
            self.slabload(RD, "s[12:15]", 14, 1024, mf, pace=self.w2p, cont=True)
        A(f"s_lshl_b32 s43, s60, {7+self.fh}")
        A("v_lshlrev_b32 v13, 4, v3")
        A(f"v_and_b32 v12, {(1<<self.fh)-1}, v2"); A("v_lshl_add_u32 v13, v12, 6, v13")
        A("v_add_u32 v13, s43, v13")
        A(f"global_load_dwordx4 v[{T+16}:{T+19}], v13, s[30:31]")
        A(f"global_load_dwordx4 v[{T+20}:{T+23}], v13, s[30:31] offset:{64<<self.fh}")
        UU, W, BB = RB + 64, RB + 80, RB + 112
        C("U[4(2r+n) + 2t + ((c>>1)&1)][c&1][half][b=c>>2][kk][4]" if self.fh == 1 else "U[8r + 4n + (c&3)][t][half][b=c>>2][kk][4]")
        A("v_and_b32 v12, 3, v2"); A(f"v_lshlrev_b32 v12, {8+self.fh}, v12")
        A("v_lshrrev_b32 v13, 2, v2"); A("v_lshl_add_u32 v12, v13, 6, v12")
        A("v_lshl_add_u32 v12, v3, 4, v12")
        A("s_lshl_b32 s42, s60, 13")
        A(f"s_add_u32 s42, s42, {WS_U:#x}")
        A(f"v_add_u32 v{T}, s42, v12")
        A(f"v_add_u32 v{T+1}, 0x1000, v{T}")
        lds_ = [(UU + 16*t + 8*n + 4*hf, T + n, (2048 if self.fh == 1 else 512)*t + 256*hf) for t in range(2) for n in range(2) for hf in range(2)]
        self.spin_begin("L_sp_u")
        for r, v, o in lds_:
            A(f"global_load_dwordx4 v[{r}:{r+3}], v{v}, s[40:41] offset:{o} sc1")
        A("s_waitcnt vmcnt(0)")
        self.chk(13, UU, 32)
        self.chk_branch(13, "L_sp_u", 32)
        self.unpack(BB, T + 16, 8)
        for i in range(16):
            A(f"v_add_f32 v{UU+i}, v{UU+i}, v{UU+16+i}")
        for i in range(16 if self.fh == 1 else 0):
            A(f"v_add_f32_dpp v{UU+i}, v{UU+i}, v{UU+i} quad_perm:[2,3,0,1] row_mask:0xf bank_mask:0xf")
        for i in range(16):
            self.rnd(UU + i, UU + i)
        for i in range(16):
            A(f"v_add_f32 v{UU+i}, v{UU+i}, v{BB+i}")
        for i in range(16):
            self.rnd(UU + i, UU + i)
        C("gelu(tanh form) = u / (1 + exp(-2k(u + 0.044715 u^3)))")
        k2 = -2.0 * math.sqrt(2.0 / math.pi) * math.log2(math.e)
        A(f"s_mov_b32 s42, {f32(0.044715 * k2)}"); A(f"s_mov_b32 s43, {f32(k2)}")
        A("v_mov_b32 v12, s43")
        for i in range(16):
            A(f"v_mul_f32 v{W+i}, v{UU+i}, v{UU+i}")
        for i in range(16):
            A(f"v_fma_f32 v{W+i}, v{W+i}, s42, v12")
        for i in range(16):
            A(f"v_mul_f32 v{W+i}, v{W+i}, v{UU+i}")
        for i in range(16):
            A(f"v_exp_f32 v{W+i}, v{W+i}")
        for i in range(16):
            A(f"v_add_f32 v{W+i}, 1.0, v{W+i}")
        for i in range(16):
            A(f"v_rcp_f32 v{W+i}, v{W+i}")
        for i in range(16):
            A(f"v_mul_f32 v{UU+i}, v{UU+i}, v{W+i}")
        for d in range(8):
            A(f"v_cvt_pk_bf16_f32 v{RA+d}, v{UU+2*d}, v{UU+2*d+1}")
        self.slabperm(RB + 64, ST)
        self.slabperm(RB + 96, RD)
        self.slabmfma(RD, RA, RB + 64, True)
        self.slabmfma(RD, RA + 4, RB + 96, False)
        NZ = 28 >> self.fh
        C("Z[b=kk][32-column block][r][half=c>>3][c&3][4]")
        A(f"v_mul_u32_u24 v12, {16*NZ*128}, v3")
        if self.fh == 1:
            A("v_and_b32 v13, 4, v2"); A(f"v_mul_u32_u24 v13, {NZ*32}, v13"); A("v_add_u32 v12, v12, v13")
        A("v_lshrrev_b32 v13, 3, v2")
        A("v_lshl_add_u32 v12, v13, 6, v12")
        A("v_and_b32 v13, 3, v2")
        A("v_lshl_add_u32 v12, v13, 4, v12")
        A(f"s_mul_i32 s42, s61, {NZ*128*(2 if self.fh == 1 else 1)}"); A("s_lshl_b32 s43, s60, 7"); A("s_add_u32 s42, s42, s43")
        A(f"s_add_u32 s42, s42, {WS_Z:#x}")
        A("v_add_u32 v12, s42, v12")
        self.fold(T, RD)
        A(f"global_store_dwordx4 v12, v[{T}:{T+3}], s[40:41] sc1")
        A("s_mov_b64 exec, -1")
        A("L_not1:")
        A("s_cmp_eq_u32 s94, 0")
        A("s_cbranch_scc1 L_nowo")
        C("(empty descriptors: only the stream waves return to their loop from the code below)")
        A("s_mov_b64 s[8:9], s[24:25]"); A("s_mov_b64 s[12:13], s[24:25]")
        A("s_mov_b32 s10, 0"); A("s_mov_b32 s14, 0"); A("s_mov_b64 s[46:47], s[10:11]")
        A("v_mov_b32 v5, 0"); A("v_mov_b32 v58, 0")
        self.burst()
        A("L_nowo:")
        self.stamp(4)
        T = 96
        if self.ctl:
            self.control5()
        A("s_cmp_lg_u32 s7, 2")
        A("s_cbranch_scc1 L_nopub")
        C("helper 2: softmax bookkeeping with the other side of this head")
        A("v_lshlrev_b32 v12, 2, v2")
        self.spin_begin("L_sp_m")
        A(f"ds_read_b32 v14, v12 offset:{MLM}")
        A(f"ds_read_b32 v11, v12 offset:{MLL}")
        A("s_waitcnt lgkmcnt(0)")
        A("v_max_u32 v13, v14, v11")
        A("v_cmp_eq_u32 vcc, -1, v13")
        A("s_cbranch_vccz L_sp_m_done")
        self.spin_end("L_sp_m", 4)
        A("L_sp_m_done:")
        PW = T + 8
        A(f"ds_read_b128 v[{PW}:{PW+3}], v6 offset:{PL}")
        A(f"v_mov_b32 v{T}, v14")
        self.row_allreduce("max", T)
        A(f"v_sub_f32 v13, v14, v{T}")
        A("v_exp_f32 v13, v13")
        A(f"v_mov_b32 v{T+1}, s63"); A(f"v_mov_b32 v{T+3}, s63")
        A(f"v_mul_f32 v{T+2}, v13, v11")
        self.row_allreduce("add", T + 2)
        for k in range(self.mld):
            A("s_sleep 127")
        A(f"s_lshl_b32 s42, s59, {self.mls}"); A(f"s_add_u32 s42, s42, {WS_ML:#x}")
        A("v_mov_b32 v11, s42")
        A("s_mov_b64 exec, 1")
        A("s_waitcnt vmcnt(0)")
        A(f"global_store_dwordx4 v11, v[{T}:{T+3}], s[40:41] sc1")
        if self.mlp != 2:
            A("s_mov_b64 exec, -1")
        A(f"v_xor_b32 v11, {1 << self.mls:#x}, v11")
        self.spin_begin("L_sp_p")
        A(f"global_load_dwordx4 v[{T+4}:{T+7}], v11, s[40:41] sc1")
        A("s_waitcnt vmcnt(0)")
        A(f"v_xor_b32 v13, s63, v{T+5}")
        A(f"v_bitop3_b32 v13, v13, v{T+7}, s63 bitop3:0xf6")
        A("v_cmp_ne_u32 vcc, 0, v13")
        A("s_cbranch_vccz L_sp_p_done")
        self.spin_end("L_sp_p", self.psl)
        A("L_sp_p_done:")
        if self.mlp == 2:
            A(f"v_readfirstlane_b32 s42, v{T+4}"); A(f"v_readfirstlane_b32 s43, v{T+6}")
            A("s_mov_b64 exec, -1")
            A(f"v_mov_b32 v{T+4}, s42"); A(f"v_mov_b32 v{T+6}, s43")
        C("row factor exp(M_row - M_head) / L_head")
        A(f"v_max_f32 v{T+1}, v{T}, v{T+4}")
        A(f"v_sub_f32 v{T}, v{T}, v{T+1}"); A(f"v_sub_f32 v{T+4}, v{T+4}, v{T+1}"); A(f"v_sub_f32 v14, v14, v{T+1}")
        A(f"v_exp_f32 v{T}, v{T}"); A(f"v_exp_f32 v{T+4}, v{T+4}"); A("v_exp_f32 v14, v14")
        A(f"v_mul_f32 v{T+2}, v{T}, v{T+2}")
        A(f"v_fmac_f32 v{T+2}, v{T+4}, v{T+6}")
        A(f"v_rcp_f32 v{T+2}, v{T+2}")
        A("v_and_b32 v13, 0x3c, v4")
        A(f"v_mul_f32 v14, v14, v{T+2}")
        A("v_min_u32 v14, -2, v14")
        A(f"ds_write_b32 v12, v14 offset:{CFL}")
        A(f"ds_read_b32 v14, v13 offset:{CFL}")
        self.stamp(11)
        A("s_lshl_b32 s42, s59, 7"); A(f"s_add_u32 s42, s42, {WS_GH:#x}")
        A("v_mov_b32 v11, s42")
        A("v_xor_b32 v12, 0x80, v11")
        A("s_lshl_b32 s42, s59, 10"); A(f"s_add_u32 s42, s42, {WS_GP:#x}")
        A("v_add_u32 v9, s42, v6")
        A(f"v_mov_b32 v{T+1}, s63")
        A("s_waitcnt lgkmcnt(0)")
        for d in range(4):
            A(f"v_mul_f32 v{PW+d}, v14, v{PW+d}")
        self.tag4(PW)
        if self.xm == 2:
            A(f"global_store_dwordx4 v9, v[{PW}:{PW+3}], s[40:41] sc1")
            A("v_xor_b32 v9, 0x400, v9")
        ps = self.pstep
        def wait_prg(lab, slots, sleep):
            self.spin_begin(lab)
            A(f"ds_read_b32 v13, v10 offset:{PRG}")
            A("s_waitcnt lgkmcnt(0)")
            A("v_readfirstlane_b32 s42, v13")
            A(f"s_cmp_ge_u32 s42, {4*(slots+self.K0)//ps}")
            A(f"s_cbranch_scc1 {lab}_done")
            self.spin_end(lab, sleep)
            A(f"{lab}_done:")
        A("s_cmp_eq_u32 s94, 0")
        A("s_cbranch_scc1 L_sp_e_done")
        wait_prg("L_sp_w", self.xs - 16, 16)
        C("all output records of batch row s92 have been marked empty once their softmax records are there")
        A(f"s_lshl_b32 s42, s92, {self.mls + 6}"); A(f"s_add_u32 s42, s42, {WS_ML + 4:#x}")
        A(f"v_lshl_add_u32 v14, v6, {self.mls - 4}, s42")
        self.spin_begin("L_sp_e")
        A("global_load_dword v13, v14, s[40:41] sc1")
        A("s_waitcnt vmcnt(0)")
        A("v_cmp_ne_u32 vcc, s63, v13")
        A("s_cbranch_vccz L_sp_e_done")
        self.spin_end("L_sp_e", 16)
        A("L_sp_e_done:")
        wait_prg("L_sp_a", self.xs, 16)
        if self.xm == 2:
            self.spin_begin("L_sp_d")
            A(f"global_load_dwordx4 v[{PW}:{PW+3}], v9, s[40:41] sc1")
            A("s_waitcnt vmcnt(0)")
            self.chk(13, PW, 4)
            self.chk_branch(13, "L_sp_d", 8)
            A(f"ds_write_b128 v6, v[{PW}:{PW+3}] offset:{PL}")
            C("both sides note when they pass the checkpoint (or expect to, once the other one has); the later one hands")
            C("over slots in proportion to its lag")
            A("v_readfirstlane_b32 s46, v12")
            A("s_mov_b64 exec, 1")
            A("s_mov_b32 s47, 0")
            self.spin_begin("L_sp_b")
            A("s_load_dwordx2 s[42:43], s[40:41], s46 glc")
            A(f"ds_read_b32 v13, v10 offset:{PRG}")
            A("s_memrealtime s[44:45]")
            A("s_and_b32 s60, s55, 15")
            A("s_cbranch_scc1 L_nov")
            A(f"global_load_dword v{T}, v12, s[40:41] sc1")
            A("L_nov:")
            A("s_waitcnt lgkmcnt(0)")
            A("v_readfirstlane_b32 s45, v13")
            A("s_xor_b32 s43, s43, s42")
            A(f"s_sub_i32 s45, {4*(self.xc+self.K0)//ps}, s45")
            A("s_cmp_eq_u32 s43, s63")
            A("s_cselect_b32 s60, 0, s45")
            A("s_max_i32 s60, s60, s47")
            A("s_cmp_gt_i32 s60, 0")
            A("s_cbranch_scc1 L_nopost")
            A(f"s_mul_i32 s45, s45, {self.xtau}"); A("s_ashr_i32 s45, s45, 2"); A("s_add_u32 s61, s44, s45")
            A(f"v_mov_b32 v{T+2}, s61"); A(f"v_xor_b32 v{T+3}, s61, v{T+1}")
            A(f"global_store_dwordx2 v11, v[{T+2}:{T+3}], s[40:41] sc1")
            A("s_mov_b32 s47, 1")
            A("L_nopost:")
            A("s_cmp_eq_u32 s43, s63")
            A("s_cbranch_scc1 L_sp_b_done")
            self.spin_end("L_sp_b", self.xsl)
            A("L_sp_b_done:")
            A("s_sub_i32 s42, s42, s61")
            A("s_abs_i32 s43, s42"); A("s_min_u32 s43, s43, 0x1000")
            A(f"s_mul_i32 s43, s43, {self.xg}"); A(f"s_add_i32 s43, s43, {self.xo}"); A("s_lshr_b32 s43, s43, 8")
            A(f"s_min_u32 s43, s43, {self.xmax}")
            A("s_sub_i32 s44, 0, s43")
            A("s_cmp_gt_i32 s42, 0")
            A("s_cselect_b32 s42, s43, s44")
            A("s_add_i32 s42, s42, 128")
            A("v_mov_b32 v13, s42"); A("v_min_u32 v12, 128, v13")
            A(f"ds_write_b64 v10, v[12:13] offset:{DEC}")
            A("s_mov_b64 exec, -1")
            if self.diag:
                A("s_mov_b32 s84, s42"); A("s_mov_b32 s85, 0")
        else:
            if self.xm:
                wait_prg("L_sp_t", self.xc, 1)
                C("both sides note when they pass the checkpoint; the later one hands over slots in proportion to its lag")
                A("s_memrealtime s[44:45]")
                A(f"v_mov_b32 v{T+4}, 0")
                if self.xsp:
                    A("v_readfirstlane_b32 s46, v12")
                A("s_mov_b64 exec, 1")
                A("s_waitcnt lgkmcnt(0)")
                A(f"v_mov_b32 v{T+2}, s44"); A(f"v_xor_b32 v{T+3}, s44, v{T+1}")
                A(f"global_store_dwordx2 v11, v[{T+2}:{T+3}], s[40:41] offset:8 sc1")
                if not self.xsp:
                    A(f"v_not_b32 v{T+5}, s63")
                self.spin_begin("L_sp_b")
                if self.xsp:
                    A("s_load_dwordx2 s[42:43], s[40:41], s46 offset:8 glc")
                    A(f"ds_read_b32 v13, v10 offset:{PRG}")
                    A("s_waitcnt lgkmcnt(0)")
                    A("v_readfirstlane_b32 s47, v13")
                else:
                    A(f"global_load_dwordx2 v[{T+4}:{T+5}], v12, s[40:41] offset:8 sc1")
                    A(f"ds_read_b32 v13, v10 offset:{PRG}")
                    A(f"s_waitcnt vmcnt({self.xpd-1}) lgkmcnt(0)")
                    A(f"v_readfirstlane_b32 s43, v{T+5}")
                    A(f"v_readfirstlane_b32 s42, v{T+4}")
                    A("v_readfirstlane_b32 s47, v13")
                A("s_xor_b32 s43, s43, s42")
                A("s_cmp_eq_u32 s43, s63")
                A("s_cbranch_scc1 L_give")
                A(f"s_cmp_ge_u32 s47, {4*(self.xe+self.K0)//ps}")
                A("s_cbranch_scc1 L_pass")
                self.spin_end("L_sp_b", self.xsl)
            else:
                C("whoever finds the other side past the checkpoint before it is there itself hands over slots")
                self.spin_begin("L_sp_b")
                A(f"global_load_dwordx2 v[{T+4}:{T+5}], v12, s[40:41] sc1")
                A("s_waitcnt vmcnt(0)")
                A(f"ds_read_b32 v13, v10 offset:{PRG}")
                A(f"v_readfirstlane_b32 s43, v{T+5}")
                A("s_waitcnt lgkmcnt(0)")
                A("v_readfirstlane_b32 s42, v13")
                A("s_cmp_eq_u32 s43, s63")
                A("s_cbranch_scc1 L_give")
                A(f"s_cmp_ge_u32 s42, {4*(self.xc+self.K0)//ps}")
                A("s_cbranch_scc1 L_pass")
                self.spin_end("L_sp_b", self.xsl)
            A("L_pass:")
            A(f"v_mov_b32 v{T}, 0")
            A("s_mov_b64 exec, 1")
            A(f"global_store_dwordx2 v11, v[{T}:{T+1}], s[40:41] sc1")
            A("s_mov_b64 exec, -1")
            A("v_mov_b32 v13, 128")
            A(f"ds_write_b32 v10, v13 offset:{DEC}")
            A("v_xor_b32 v9, 0x400, v9")
            self.spin_begin("L_sp_c")
            A(f"global_load_dwordx2 v[{T+4}:{T+5}], v12, s[40:41] sc1")
            A("s_waitcnt vmcnt(0)")
            A(f"v_readfirstlane_b32 s43, v{T+5}")
            A(f"v_readfirstlane_b32 s42, v{T+4}")
            A("s_cmp_eq_u32 s43, s63")
            A("s_cbranch_scc1 L_sp_c_done")
            self.spin_end("L_sp_c", self.xsl)
            A("L_sp_c_done:")
            A("s_cmp_eq_u32 s42, 0")
            A("s_cbranch_scc1 L_sp_d_done")
            self.spin_begin("L_sp_d")
            A(f"global_load_dwordx4 v[{PW}:{PW+3}], v9, s[40:41] sc1")
            A("s_waitcnt vmcnt(0)")
            self.chk(13, PW, 4)
            A(f"ds_write_b128 v6, v[{PW}:{PW+3}] offset:{PL}")
            self.chk_branch(13, "L_sp_d", 2)
            A("s_add_u32 s42, s42, 128")
            A("v_mov_b32 v13, s42")
            A(f"ds_write_b32 v10, v13 offset:{DEC+4}")
            if self.diag:
                A("s_mov_b32 s84, s42"); A("s_mov_b32 s85, 0")
            A("s_branch L_nopub")
            A("L_give:")
            if self.xm:
                A("s_mov_b64 exec, -1")
                A("s_sub_i32 s42, s44, s42")
                A("s_max_i32 s42, s42, 0"); A("s_min_i32 s42, s42, 0x1000")
                A(f"s_mul_i32 s42, s42, {self.xg}"); A(f"s_add_i32 s42, s42, {self.xo}"); A("s_ashr_i32 s42, s42, 8")
                A(f"s_min_i32 s42, s42, {self.xmax}")
                A("s_cmp_le_i32 s42, 0")
                A("s_cbranch_scc1 L_pass")
            else:
                A(f"s_sub_i32 s42, {(4*(self.xc+self.K0) + self.xd)//ps}, s42")
                A(f"s_mul_i32 s42, s42, {self.xk*ps}"); A("s_ashr_i32 s42, s42, 6")
                A("s_max_i32 s42, s42, 0"); A(f"s_min_i32 s42, s42, {self.xmax}")
            A(f"v_mov_b32 v{T}, s42")
            A("s_cmp_eq_u32 s42, 0")
            A("s_cbranch_scc1 L_give0")
            A(f"global_store_dwordx4 v9, v[{PW}:{PW+3}], s[40:41] sc1")
            A("L_give0:")
            A("s_mov_b64 exec, 1")
            A(f"global_store_dwordx2 v11, v[{T}:{T+1}], s[40:41] sc1")
            A("s_mov_b64 exec, -1")
            A("s_sub_u32 s42, 128, s42")
            A("v_mov_b32 v12, s42"); A("v_mov_b32 v13, s42")
            A(f"ds_write_b64 v10, v[12:13] offset:{DEC}")
            if self.diag:
                A("s_mov_b32 s84, s42"); A("s_mov_b32 s85, 0")
        A("L_nopub:")
        self.stamp(5)
        A("s_cmp_eq_u32 s94, 0")
        A("s_cbranch_scc1 L_hend")
        A("s_cmp_lg_u32 s7, 3")
        A("s_cbranch_scc1 L_nog")
        G, XV = T, T + 1
        C("helper 3: gate of column 4(l&7) + 2(l>>5) + ((l>>4)&1)")
        A("v_and_b32 v12, 7, v4"); A("v_lshlrev_b32 v8, 2, v12")
        A("v_lshrrev_b32 v13, 5, v4"); A("v_lshl_add_u32 v8, v13, 1, v8")
        A("v_bfe_u32 v13, v4, 4, 1"); A("v_add_u32 v8, v8, v13")
        A("s_lshl_b32 s42, s93, 6")
        A("v_lshl_add_u32 v13, v8, 1, s42")
        A(f"global_load_ushort v{G}, v13, s[34:35]")
        A("v_lshl_add_u32 v13, s92, 10, v13")
        A(f"global_load_ushort v{XV}, v13, s[16:17]")
        if self.ot:
            C("(value unused: the address translation of the output is fetched ahead of the store)")
            A(f"global_load_ushort v{XV+1}, v13, s[36:37]")
        C("Z[b][cq][r=l>>3][l&1][(l>>1)&3][4]")
        A("s_lshl4_add_u32 s42, s92, s93")
        A(f"s_mul_i32 s42, s42, {NZ*128}"); A(f"s_add_u32 s42, s42, {WS_Z:#x}")
        A("v_lshrrev_b32 v13, 3, v4"); A("v_lshl_add_u32 v12, v13, 7, s42")
        A("v_and_b32 v13, 1, v4"); A("v_lshl_add_u32 v12, v13, 6, v12")
        A("v_and_b32 v13, 6, v4"); A("v_lshl_add_u32 v12, v13, 3, v12")
        self.spin_begin("L_sp_z")
        C("the lanes past the last line are masked off and hold tagged zeros")
        for d in range(4 * NQ):
            A(f"v_mov_b32 v{RD+d}, s{96+d%4}")
        A("s_mov_b32 exec_hi, 0xffffff")
        for t in range(NQ):
            A(f"global_load_dwordx4 v[{RD+4*t}:{RD+4*t+3}], v12, s[40:41] offset:{7*128*t} sc1")
        A("s_mov_b32 exec_hi, -1")
        A("s_waitcnt vmcnt(0)")
        self.chk(13, RD, 4 * NQ)
        self.chk_branch(13, "L_sp_z", 32)
        for d in range(4 if NQ > 1 else 0):
            A(f"v_add_f32 v{RD+d}, v{RD+d}, v{RD+4+d}")
        A(f"v_lshlrev_b32 v{G}, 16, v{G}")
        A(f"v_lshlrev_b32 v{XV}, 16, v{XV}")
        self.xl_reduce4(RD)
        self.rnd(RD, RD)
        A(f"v_add_f32 v{RD}, v{RD}, v{G}")
        self.rnd(RD, RD)
        A(f"v_mul_f32 v{RD+1}, {f32(-math.log2(math.e))}, v{RD}")
        A(f"v_exp_f32 v{RD+1}, v{RD+1}")
        A("v_lshlrev_b32 v8, 3, v8")
        A(f"v_add_f32 v{RD+1}, 1.0, v{RD+1}")
        A(f"v_rcp_f32 v{RD+1}, v{RD+1}")
        A("s_nop 0")
        A(f"v_mul_f32 v{G}, v{RD}, v{RD+1}")
        self.rnd(G, G)
        A(f"ds_write_b64 v8, v[{G}:{G+1}] offset:{GX}")
        A("L_nog:")
        if self.dry:
            A("s_cmp_lg_u32 s7, 1")
            A("s_cbranch_scc1 L_nodry")
            C("helper 1 walks through the code below with no lane active to bring it into the instruction cache")
            A("s_mov_b32 s94, 3")
            A("s_mov_b64 s[100:101], 0")
            A("s_branch L_proj")
            A("L_dry:")
            A("s_sub_u32 s94, s94, 1")
            A("s_cmp_eq_u32 s94, 2")
            A("s_cbranch_scc1 L_h1")
            A("s_mov_b64 s[100:101], -1")
            A("s_mov_b64 exec, -1")
            A("s_waitcnt vmcnt(0)")
            A("L_nodry:")
        wait_prg("L_sp_v", 104, 16)
        self.spin_begin("L_sp_o")
        A(f"ds_read_b32 v13, v10 offset:{OC}")
        A("s_waitcnt lgkmcnt(0)")
        A(f"v_cmp_gt_u32 vcc, {self.pw}, v13")
        A("s_cbranch_vccz L_proj")
        self.spin_end("L_sp_o", 1)
        self.project()
        A("L_hend:")
        self.dump_stamps(14, 16)
        if self.prog:
            A("s_cmp_ge_u32 s3, 4")
            A("s_cbranch_scc1 L_end")
            A("s_lshl_b32 s60, s2, 2"); A("s_add_u32 s60, s60, s3"); A("s_lshl_b32 s60, s60, 6")
            A(f"s_add_u32 s60, s60, {WS_DIAG + 0x80000:#x}")
            A("v_and_b32 v24, 63, v0"); A("v_lshlrev_b32 v24, 2, v24")
            A("v_add_u32 v24, s60, v24")
            A("s_mov_b64 exec, 0xffff")
            A("global_store_dword v24, v60, s[40:41]")

def gen(**kw):
    return Gen(**kw).gen()

if __name__ == "__main__":
    out = sys.argv[1]
    kw = eval("dict(" + (sys.argv[2] if len(sys.argv) > 2 else "") + ")")
    open(out, "w").write(gen(**kw))
```

```python
import sys, math, struct
NAME = "recurrent_scan__mha_block_cached__mixer_channel_mlp__decode_kernel"

def f32(x):
    return "0x%08x" % struct.unpack("<I", struct.pack("<f", x))[0]

HEADER = """; Kernarg layout for this problem (104 bytes, ptrs only, base s[0:1]):
;   offset  32: d_in[4] A_wo  shape=(4096, 512) dtype=bfloat16
;   offset  96: d_ws      workspace
"""

XN, QP, MLM, MLL, TAGL = 0, 8192, 8448, 8512, 8704
CFL, DEC, RK = 8576, 8640, 8720
OA, OC, FC = 9216, 11264, 11520
PRG, PL = 11776, 12032
FA, GX = 0, 4096
FAS = 80
LDS_BYTES = 13312
WS_O, WS_ML, WS_EP, WS_Q, WS_U, WS_Z, WS_DIAG = 0x40000, 0x80000, 0x90000, 0x100000, 0x180000, 0x1c0000, 0x200000
WS_RP = 0x98000
WS_GH, WS_GP = 0xa0000, 0xc0000
NUNIT = 112
SPIN_MAX = 1 << 18

class Gen:
    DEF = dict(kvflags="nt", mflags="", diag=False, prog=False, fine=0, DK=8, DV=12, adel=2, pre=2, dks=6, skip=(),
               mpar=0, cpar=1, fprio=3, qsleep=1, w2p=4, cpf=0, early=1, dsl=2,
               xc=88, xs=58, xd=52, xk=8, xmax=16, xsl=2, pstep=2,
               ctl=1, cg=8, cu0=24, culo=16, cuhi=32, cc0=2, clim=100, cb=6, csl=0, cbias=0, cend=104, rsl=8, bst=0x500,
               wpre=16, bg=(3, 3, 3), b2=1, pw=1, pd=2, pd1=2, dry=1, wlate=0, am=(0x2000, 0x200, 0x8000, 0x100, 0xa0000, 0x4400, 0, 0x60000, 0x20000, 0x20000, 0, 0x400),
               tv=(0x1000, 0x84c00, 0x400, 0x10000, 0x40000, 0x20000, 0x800), xt=0, xm=0, xe=102, xg=11, xo=0, xpd=1, xsp=0, xtau=27, cfin=48, fh=2, dkc=0, cpo=0, kctl=1, cuc=32, wk=0, sf=0, psl=32, mls=8, mlp=0, sp=1, ep=2, dx=0, dr=1, dro=0, oc=0, cfa=0, mld=0, sfd=6, dw=0, dwf='sc1', dwr=0, wf=2, w2f=1, ack=0, ot=0, vt=0, ofl='')
    def __init__(self, **kw):
        self.L = []
        self.nlab = 0
        for k in kw:
            assert k in self.DEF, k
        for k, v in self.DEF.items():
            setattr(self, k, kw.get(k, v))
        self.skip = set(self.skip)
        self.K0 = (8 - self.pre) * 16 - (16 - self.DK) if self.kctl else 0
    def A(self, s):
        self.L.append("  " + s if not s.endswith(":") else s)
    def C(self, s):
        self.L.append("  ; " + s)

    def stamp(self, idx):
        if self.diag:
            self.A(f"s_memrealtime s[{64+2*idx}:{65+2*idx}]")
    def dump_stamps(self, n, vt):
        if not self.diag:
            return
        A = self.A
        for k in range(self.dsl):
            A("s_sleep 127")
        A("s_waitcnt lgkmcnt(0)")
        A("s_lshl_b32 s60, s2, 3"); A("s_add_u32 s60, s60, s3"); A("s_lshl_b32 s60, s60, 7")
        A(f"s_add_u32 s60, s60, {WS_DIAG:#x}")
        A(f"v_mov_b32 v{vt}, s60")
        A("s_mov_b64 exec, 1")
        for j in range(n):
            A(f"v_mov_b32 v{vt+2}, s{64+2*j}"); A(f"v_mov_b32 v{vt+3}, s{65+2*j}")
            A(f"global_store_dwordx2 v{vt}, v[{vt+2}:{vt+3}], s[40:41] offset:{8*j}")
        A("s_getreg_b32 s60, hwreg(HW_REG_XCC_ID)")
        A(f"v_mov_b32 v{vt+2}, s60")
        A(f"global_store_dword v{vt}, v{vt+2}, s[40:41] offset:120")
        A("s_mov_b64 exec, -1")

    def row_allreduce(self, op, r):
        A = self.A
        for m in ("quad_perm:[1,0,3,2]", "quad_perm:[2,3,0,1]", "row_half_mirror", "row_mirror"):
            A("s_nop 1")
            A(f"v_{op}_f32_dpp v{r}, v{r}, v{r} {m} row_mask:0xf bank_mask:0xf")
    def wave_allreduce_add(self, r, t, op="add"):
        A = self.A
        self.row_allreduce(op, r)
        for sw in ("v_permlane16_swap_b32", "v_permlane32_swap_b32"):
            A(f"v_mov_b32 v{t}, v{r}")
            A("s_nop 1")
            A(f"{sw} v{r}, v{t}")
            A(f"v_{op}_f32 v{r}, v{r}, v{t}")
    def rnd(self, d, s):
        self.A(f"v_cvt_pk_bf16_f32 v{d}, 0, v{s}")

    def layernorm(self, X, n, T, P, unpack_after=True):
        A = self.A
        s, t, q, d = T, T + 1, T + 2, T + 3
        red = (lambda r: self.wave_allreduce_add(r, t)) if n == 8 else (lambda r: self.row_allreduce("add", r))
        A(f"v_add_f32 v{s}, v{X}, v{X+1}")
        for i in range(2, n):
            A(f"v_add_f32 v{s}, v{s}, v{X+i}")
        red(s)
        A(f"v_mul_f32 v{s}, {f32(1.0/512)}, v{s}")
        A(f"v_sub_f32 v{d}, v{X}, v{s}")
        A(f"v_mul_f32 v{q}, v{d}, v{d}")
        for i in range(1, n):
            dd = d if i % 2 == 0 else t
            A(f"v_sub_f32 v{dd}, v{X+i}, v{s}")
            A(f"v_fmac_f32 v{q}, v{dd}, v{dd}")
        red(q)
        A(f"v_mul_f32 v{q}, {f32(1.0/512)}, v{q}")
        self.rnd(s, s)
        self.rnd(q, q)
        A(f"v_add_f32 v{q}, {f32(1e-5)}, v{q}")
        self.rnd(q, q)
        A(f"v_sqrt_f32 v{q}, v{q}")
        A("s_nop 0")
        self.rnd(q, q)
        A(f"v_rcp_f32 v{q}, v{q}")
        for i in range(n):
            A(f"v_sub_f32 v{X+i}, v{X+i}, v{s}")
        for i in range(n):
            self.rnd(X + i, X + i)
        for i in range(n):
            A(f"v_mul_f32 v{X+i}, v{X+i}, v{q}")
        for i in range(n // 2):
            A(f"v_cvt_pk_bf16_f32 v{P+i}, v{X+2*i}, v{X+2*i+1}")
        if unpack_after:
            self.unpack(X, P, n // 2)
    def unpack(self, X, P, n):
        for i in range(n):
            self.A(f"v_lshlrev_b32 v{X+2*i}, 16, v{P+i}")
            self.A(f"v_and_b32 v{X+2*i+1}, 0xffff0000, v{P+i}")

    def slabload(self, dst, srd, voff, stride, flags, last_inc=None, pace=None, cont=False):
        A = self.A
        for e in range(8):
            r = dst + 4 * e
            if pace is not None and (e >= pace or cont):
                A(f"s_waitcnt vmcnt({pace-1})")
            A(f"buffer_load_dwordx4 v[{r}:{r+3}], v{voff}, {srd}, s50 offen {flags}".rstrip())
            inc = stride if e < 7 else last_inc
            if inc is not None:
                A(f"s_add_u32 s50, s50, {inc}")
    def slabperm(self, dst, src, js=4):
        A = self.A
        rows = src if isinstance(src, list) else [src + 4 * e for e in range(8)]
        for d in range(4):
            for hf in range(2):
                jj = 2 * d + hf
                for q in range(4):
                    A(f"v_perm_b32 v{dst + js*jj + q}, v{rows[2*q+1] + d}, v{rows[2*q] + d}, s{48 + hf}")
    def slabmfma(self, RD, RA, B, first):
        A = self.A
        for jj in range(8):
            b = B + 4 * jj
            c = "0" if first else f"v[{RD+4*jj}:{RD+4*jj+3}]"
            A(f"v_mfma_f32_16x16x32_bf16 v[{RD+4*jj}:{RD+4*jj+3}], v[{RA}:{RA+3}], v[{b}:{b+3}], {c}")

    def fold(self, T, RD):
        A = self.A
        if self.fh == 2:
            return self.fold4(T, RD)
        for q in range(4):
            A(f"v_add_f32_dpp v{T+q}, v{RD+4*q+1}, v{RD+4*q} row_ror:8 row_mask:0xf bank_mask:0x3")
        for q in range(4):
            A(f"v_add_f32_dpp v{T+q}, v{RD+4*q+16}, v{RD+4*q+17} row_ror:8 row_mask:0xf bank_mask:0xc")
        self.tag4(T)
    def fold4(self, T, RD):
        A = self.A
        for bk in range(4):
            for q in range(4):
                d = RD + 4 * q + 16 * (bk >> 1)
                A(f"v_add_f32_dpp v{T+q}, v{d + (bk ^ 2)}, v{d + bk} row_ror:8 row_mask:0xf bank_mask:{1 << bk:#x}")
        for q in range(4):
            A(f"v_add_f32_dpp v{T+q}, v{T+q}, v{T+q} row_shl:4 row_mask:0xf bank_mask:0x5")
        A("s_mov_b32 exec_lo, 0x0f0f0f0f"); A("s_mov_b32 exec_hi, 0x0f0f0f0f")
        self.tag4(T)
    def spin_begin(self, lab):
        self.A(f"s_mov_b32 s55, {SPIN_MAX}")
        self.A(f"{lab}:")
    def spin_end(self, lab, sleep):
        A = self.A
        A(f"s_sleep {sleep}")
        A("s_sub_u32 s55, s55, 1")
        A("s_cmp_lg_u32 s55, 0")
        A(f"s_cbranch_scc1 {lab}")
    def xl_reduce4(self, R):
        A = self.A
        A("s_nop 0")
        for d in range(2):
            A(f"v_permlane32_swap_b32 v{R+d}, v{R+d+2}")
        for d in range(2):
            A(f"v_add_f32 v{R+d}, v{R+d}, v{R+d+2}")
        A("s_nop 1")
        A(f"v_permlane16_swap_b32 v{R}, v{R+1}")
        A(f"v_add_f32 v{R}, v{R}, v{R+1}")
        A("s_nop 1")
        A(f"v_add_f32_dpp v{R}, v{R}, v{R} row_ror:8 row_mask:0xf bank_mask:0xf")

    def gen(self):
        A, C = self.A, self.C
        self.L.append(HEADER.rstrip())
        self.L.append(f"; @launch grid=(256,1,1) block=(512,1,1) lds={LDS_BYTES}")
        self.L.append('.amdgcn_target "amdgcn-amd-amdhsa--gfx950"')
        self.L.append(".text"); self.L.append(f".globl {NAME}"); self.L.append(".p2align 8")
        self.L.append(f".type {NAME},@function"); self.L.append(f"{NAME}:")
        self.stamp(0)
        A("s_load_dwordx16 s[16:31], s[0:1], 0")
        A("s_load_dwordx8 s[32:39], s[0:1], 64")
        A("s_load_dwordx2 s[40:41], s[0:1], 96")
        A("s_cmp_ge_u32 s2, 256")
        A("s_cbranch_scc1 L_end")
        A("v_lshrrev_b32 v1, 6, v0")
        A("v_and_b32 v2, 15, v0")
        A("v_readfirstlane_b32 s3, v1")
        if self.ep == 1:
            A("s_cmp_ge_u32 s3, 6"); A("s_cbranch_scc1 L_pf"); A("L_idx:")
        C("s59 = producer index b*64 + 2h + side, b = wg>>6, side = (wg>>2)&1, h = 8((wg&3)^side) + ((wg>>3)&7):")
        C("the two halves of a head's keys go to the WGs wg and wg^5")
        A("s_bfe_u32 s5, s2, 0x10002")
        A("s_and_b32 s59, s2, 0xc0"); A("s_and_b32 s4, s2, 3"); A("s_xor_b32 s4, s4, s5"); A("s_lshl4_add_u32 s59, s4, s59")
        A("s_bfe_u32 s4, s2, 0x30003"); A("s_lshl1_add_u32 s59, s4, s59")
        if self.sp:
            A("s_lshl_b32 s7, s59, 19")
        A("s_or_b32 s59, s59, s5")
        if self.cpf:
            A("s_cmp_lt_u32 s3, 4")
            A("s_cbranch_scc1 L_stream")
            C("helper waves pull a slice of this kernel's code towards the L2")
            A("s_getpc_b64 s[42:43]")
            A("L_pc:")
            A("s_lshr_b32 s44, s2, 3"); A("s_lshl2_add_u32 s44, s44, s3")
            A(f"s_mul_i32 s44, s44, {64*self.cpf}")
            A(f"s_min_u32 s44, s44, L_end-L_pc-{64*(self.cpf-1)}")
            for k in range(self.cpf):
                A(f"s_load_dword s{45+k}, s[42:43], s44 offset:{64*k}")
            A("s_branch L_helper")
            A("L_stream:")
        else:
            A("s_cmp_ge_u32 s3, 4")
            A("s_cbranch_scc1 L_helper")
        self.stream()
        self.helper()
        A("L_end:")
        A("s_endpgm")
        L = self.L
        L.append('.section .rodata,"a"'); L.append(".p2align 6"); L.append(f".amdhsa_kernel {NAME}")
        L.append("  .amdhsa_next_free_vgpr 256"); L.append("  .amdhsa_next_free_sgpr 102"); L.append("  .amdhsa_accum_offset 256")
        L.append("  .amdhsa_group_segment_fixed_size 0"); L.append("  .amdhsa_kernarg_size 104")
        L.append("  .amdhsa_user_sgpr_count 2"); L.append("  .amdhsa_user_sgpr_kernarg_segment_ptr 1")
        L.append("  .amdhsa_system_sgpr_workgroup_id_x 1")
        L.append("  .amdhsa_float_denorm_mode_32 3")
        L.append(".end_amdhsa_kernel")
        return "\n".join(L) + "\n"

    def is_cons(self):
        self.A("s_and_b32 s42, s2, 0x81"); self.A(f"s_cmp_eq_u32 s42, {0x80 | self.cpar:#x}")
        self.A("s_cselect_b32 s94, 1, 0")

    def pf(self):
        A, C = self.A, self.C
        A("L_pf:")
        C("helpers 2 and 3 pull a part of wo (the columns the WGs of this class project with) or of w2 towards the L2")
        A("s_lshr_b32 s50, s2, 3"); A("s_lshl1_add_u32 s50, s50, s3"); A("s_sub_u32 s50, s50, 6")
        A("s_and_b32 s42, s2, 6"); A("s_mov_b32 s15, 0x20000")
        A(f"s_bitcmp{self.cpar}_b32 s2, 0")
        A("s_cbranch_scc0 L_pf2")
        A("v_bfe_u32 v3, v0, 4, 2"); A("v_lshlrev_b32 v5, 4, v2"); A("v_lshl_or_b32 v5, v3, 14, v5")
        A("s_lshl_b32 s50, s50, 9"); A("s_add_u32 s50, s50, s42"); A("s_lshl_b32 s50, s50, 7")
        A("s_mov_b32 s14, 0x400000"); A("s_movk_i32 s51, 0x400"); A("s_mov_b32 s54, 15")
        A("s_waitcnt lgkmcnt(0)")
        A("s_mov_b64 s[12:13], s[24:25]")
        A("s_branch L_pf3")
        A("L_pf2:")
        C("w2: 128 bytes at 128((wg>>1)&3) and 512 further of 56 rows")
        A("v_and_b32 v5, 7, v0"); A("v_bfe_u32 v12, v0, 3, 3"); A("v_lshlrev_b32 v5, 4, v5"); A("v_lshl_or_b32 v5, v12, 9, v5")
        A("s_mulk_i32 s50, 448"); A("s_add_u32 s50, s50, s42"); A("s_lshl_b32 s50, s50, 6")
        A(f"s_mov_b32 s14, {1792*1024}"); A("s_movk_i32 s51, 0x1000"); A("s_mov_b32 s54, 6")
        A("s_waitcnt lgkmcnt(0)")
        A("s_mov_b64 s[12:13], s[32:33]")
        A("L_pf3:")
        self.stamp(6)
        A("L_pf4:")
        A("buffer_load_dwordx4 v[192:195], v5, s[12:15], s50 offen")
        A("s_add_u32 s50, s50, s51"); A("s_sub_u32 s54, s54, 1")
        A("s_cbranch_scc0 L_pf4")
        self.stamp(7)
        A("s_barrier")
        A("s_branch L_idx" if self.ep == 1 else "s_branch L_nofront")

    def stream(self):
        A, C = self.A, self.C
        RING = 64
        P = 24
        Q = 8
        S = 40
        ACC = 48
        PLO, PHI = 12, 13
        VOFF = 5
        fl = self.kvflags
        DK, DV, pre = self.DK, self.DV, self.pre
        assert DK <= 8 and DK <= DV <= 14
        C("===== stream waves =====")
        if not self.sp:
            A("v_lshlrev_b32 v7, 4, v2")
            A("v_lshrrev_b32 v6, 4, v0")
            A("s_lshr_b32 s7, s59, 1"); A("s_lshl_b32 s7, s7, 20")
        A("s_mov_b32 s10, 0x100000"); A("s_mov_b32 s11, 0x20000")
        am, tv = self.am, self.tv
        def lin(vs, t):
            x = 0
            for i, v in enumerate(vs):
                if t >> i & 1:
                    x ^= v
            return x
        def slin(dst, terms):
            k = 0
            for sr, bit, m in terms:
                if m:
                    A(f"s_bitcmp1_b32 {sr}, {bit}"); A(f"s_cselect_b32 {'s6' if k else dst}, {m:#x}, 0")
                    if k:
                        A(f"s_xor_b32 {dst}, {dst}, s6")
                    k += 1
        if self.sp:
            C("every row of lanes walks through keys of its own: offset = v5 ^ f(group) ^ g(slot), all linear over GF(2)")
            sh = {4: 15}
            for b in range(4):
                assert am[b] & (am[b] - 1) == 0
                k = am[b].bit_length() - 1 - (4 + b)
                sh[k] = sh.get(k, 0) | 16 << b
            for i, (k, m) in enumerate(sh.items()):
                A(f"v_and_b32 v{3 + i}, {m:#x}, v0")
            A(f"s_mul_i32 s50, s5, {am[4]:#x}")
            for b in range(1, 8):
                if am[4 + b]:
                    A(f"s_bitcmp1_b32 s59, {b}"); A(f"s_cselect_b32 s6, {am[4 + b]:#x}, 0"); A("s_xor_b32 s50, s50, s6")
            for i, (k, m) in enumerate(sh.items()):
                A(f"v_lshl_or_b32 v3, v{3 + i}, {k}, v3" if i else f"v_lshlrev_b32 v3, {k}, v3")
            A("v_xor_b32 v5, s50, v3")
        elif not self.xt:
            C("every row of lanes walks through keys of its own: offset = v5 ^ f(group) ^ g(slot), all linear over GF(2)")
            A("v_bfe_i32 v3, v0, 4, 1"); A("v_bfe_i32 v4, v0, 5, 1")
            slin("s50", [("s3", 0, am[2]), ("s3", 1, am[3])] + [("s59", b, am[4 + b]) for b in range(8)])
            A(f"v_and_b32 v3, {am[0]:#x}, v3"); A(f"v_and_b32 v4, {am[1]:#x}, v4")
            A("v_xor_b32 v5, s50, v7"); A("v_bitop3_b32 v5, v5, v3, v4 bitop3:0x96")
        A("s_waitcnt lgkmcnt(0)")
        A("s_add_u32 s8, s18, s7"); A("s_addc_u32 s9, s19, 0")
        if self.xt:
            A("s_lshl_b32 s42, s59, 6"); A("v_lshl_add_u32 v4, v6, 2, s42"); A("v_xor_b32 v3, 64, v4")
            A("global_load_dword v4, v4, s[26:27]"); A("global_load_dword v3, v3, s[26:27]")
            A("s_load_dwordx16 s[64:79], s[26:27], 0x4000"); A("s_load_dwordx16 s[80:95], s[26:27], 0x4040")
            A("s_waitcnt vmcnt(0) lgkmcnt(0)")
            A("v_xor_b32 v3, v7, v3"); A("v_xor_b32 v5, v7, v4")
            A("v_xor_b32 v3, s79, v3"); A("v_xor_b32 v3, s87, v3")
        self.stamp(5)
        issued = []
        def addr(slot, tag=None):
            if self.xt:
                if tag and slot % 16 == 0:
                    A(f"v_xor_b32 v58, s{80 + tag[0]}, v5")
                A(f"v_xor_b32 v4, s{64 + slot % 16}, v58")
                return 4
            x = lin(tv, slot % 16 + (tag[0] * 16 if tag else 0))
            b = 5 if tag else 58
            if x:
                A(f"v_xor_b32 v4, {x:#x}, v{b}"); b = 4
            return b
        def load(slot, srd, so="0", tag=None, b=None):
            r = RING + 4 * slot
            if b is None:
                b = addr(slot, tag)
            A(f"buffer_load_dwordx4 v[{r}:{r+3}], v{b}, {srd}, {so} offen {fl}".rstrip())
            issued.append(tag)
        def nextgroup():
            if self.xt:
                A("s_add_u32 m0, s54, 1"); A("s_nop 0"); A("s_movrels_b32 s50, s80")
            else:
                A("s_add_u32 s42, s54, 1")
                if tv[5] == 2 * tv[4] and tv[6] == 4 * tv[4] and tv[4] & (tv[4] - 1) == 0:
                    A("s_and_b32 s50, s42, 7"); A(f"s_lshl_b32 s50, s50, {tv[4].bit_length() - 1}")
                else:
                    slin("s50", [("s42", i, tv[4 + i]) for i in range(3)])
            A("v_xor_b32 v58, s50, v5")
        def wait(tag):
            A(f"s_waitcnt vmcnt({len(issued) - 1 - issued.index(tag)})")
        def cwait(D, j, k=False):
            self.nlab += 1
            lo = self.culo // 4
            for L in range(D, lo - 1, -1):
                if L > 8 and L & 1:
                    continue
                A(f"s_waitcnt vmcnt({L-1})")
                if L == D and not k:
                    A(f"s_cbranch_scc0 L_cw{self.nlab}")
                if L > lo:
                    A(f"s_cmp_ge_u32 s62, {4*L - (j & 3)}")
                    A(f"s_cbranch_scc1 L_cw{self.nlab}")
            A(f"L_cw{self.nlab}:")
        def swait(D, lo=None):
            A(f"s_waitcnt vmcnt({D-1})")
            if lo is not None and lo < D:
                self.nlab += 1
                A(f"s_cbranch_vccnz L_ad{self.nlab}")
                A(f"s_waitcnt vmcnt({lo-1})")
                A(f"L_ad{self.nlab}:")
        def setup2():
            if self.sp:
                A("v_lshlrev_b32 v7, 4, v2"); A("v_lshrrev_b32 v6, 4, v0")
            A("s_mov_b32 s14, s10"); A("s_mov_b32 s15, s11"); A("s_mov_b32 s46, s10"); A("s_mov_b32 s47, s11")
            A("s_add_u32 s12, s20, s7"); A("s_addc_u32 s13, s21, 0")
            A("s_mov_b32 s52, 0xaaaaaaaa"); A("s_mov_b32 s53, 0xaaaaaaaa")
            A("s_mov_b32 s56, 0xcccccccc"); A("s_mov_b32 s57, 0xcccccccc")
            C("s60 = key group before which this WG turns to its part of wo; it keeps more loads in flight in return")
            A(f"s_lshr_b32 s60, s2, {self.bg[2]}"); A(f"s_and_b32 s60, s60, {self.bg[1]}"); A(f"s_add_u32 s60, s60, {self.bg[0]}")
            self.is_cons()
            A("s_cselect_b64 vcc, -1, 0")
            A("s_cselect_b32 s60, s60, 0")
            A("v_mov_b32 v21, 0"); A("v_mov_b32 v62, 0")
            if self.wk:
                A(f"s_mov_b32 s4, {pre}"); A("s_mov_b32 s5, 8")
        dd = self.dks
        for gi in range(pre):
            for j in range(16):
                n = 16 * gi + j
                if n == dd:
                    setup2()
                    self.stamp(6)
                if self.wf and n == self.wf:
                    if self.ep in (1, 2):
                        A("s_branch L_s2"); self.pf(); A("L_s2:")
                    A("s_barrier")
                b = addr(n, (gi, j))
                if n >= dd:
                    if self.dkc:
                        swait(self.dkc, dd)
                    else:
                        swait(dd)
                if n == dd:
                    self.stamp(7)
                if n == 2 * dd:
                    self.stamp(8)
                load(n, "s[8:11]", tag=(gi, j), b=b)
        self.stamp(1)
        A("s_barrier")
        A("L_walk:")
        A(f"ds_read_b128 v[{Q}:{Q+3}], v7 offset:{QP}")
        self.stamp(2)
        A("s_waitcnt lgkmcnt(0)")
        def qk(slots):
            for d in range(4):
                for slot in slots:
                    r = RING + 4 * slot
                    p = P + slot % 16
                    c = "0" if d == 0 else f"v{p}"
                    A(f"v_dot2_f32_bf16 v{p}, v{r+d}, v{Q+d}, {c}")
        def treduce(dst, mid=()):
            C("transposing reduction: lane (g,c) <- score of load c, key g")
            for t in range(8):
                A(f"v_add_f32_dpp v{P+t}, v{P+t}, v{P+t} row_ror:8 row_mask:0xf bank_mask:0x3")
            for t in range(8):
                A(f"v_add_f32_dpp v{P+t}, v{P+t+8}, v{P+t+8} row_ror:8 row_mask:0xf bank_mask:0xc")
            for t in range(4):
                A(f"v_add_f32_dpp v{P+t}, v{P+t}, v{P+t} row_half_mirror row_mask:0xf bank_mask:0x5")
            for t in range(4):
                A(f"v_add_f32_dpp v{P+t}, v{P+t+4}, v{P+t+4} row_half_mirror row_mask:0xf bank_mask:0xa")
            U0, U1, T0, T1 = P + 8, P + 9, P + 10, P + 11
            A(f"v_cndmask_b32 v{U0}, v{P+1}, v{P}, s[52:53]")
            A(f"v_cndmask_b32 v{U1}, v{P+3}, v{P+2}, s[52:53]")
            A(f"v_cndmask_b32 v{T0}, v{P}, v{P+1}, s[52:53]")
            A(f"v_cndmask_b32 v{T1}, v{P+2}, v{P+3}, s[52:53]")
            A("s_nop 1")
            A(f"v_add_f32_dpp v{T0}, v{U0}, v{T0} quad_perm:[1,0,3,2] row_mask:0xf bank_mask:0xf")
            A(f"v_add_f32_dpp v{T1}, v{U1}, v{T1} quad_perm:[1,0,3,2] row_mask:0xf bank_mask:0xf")
            A(f"v_cndmask_b32 v{U0}, v{T1}, v{T0}, s[56:57]")
            A(f"v_cndmask_b32 v{U1}, v{T0}, v{T1}, s[56:57]")
            if mid:
                for m in mid:
                    A(m)
            else:
                A("s_nop 1")
            A(f"v_add_f32_dpp v{dst}, v{U0}, v{U1} quad_perm:[2,3,0,1] row_mask:0xf bank_mask:0xf")
        C("catch-up over the prefetched groups; group `pre` is loaded into ring slots 0..15 meanwhile")
        nxt = 0
        for gi in range(pre):
            for j in range(0, 16, 2):
                wait((gi, j + 1))
                qk([16 * gi + j, 16 * gi + j + 1])
                if gi == 0:
                    want = j + 2 if (j < 8 or pre == 1) else 8
                elif gi == 1:
                    want = 8 + j // 2 + 1
                else:
                    want = 16
                while nxt < want:
                    load(nxt, "s[8:11]", tag=(pre, nxt)); nxt += 1
            A("s_nop 0")
            treduce(S + 8 - pre + gi)
        assert nxt == 16
        for j in range(16 - DK):
            wait((pre, j))
            qk([j])
        A(f"s_mov_b32 s54, {'s4' if self.wk else pre}")
        def kslot(j, slot, srd):
            b = addr(slot)
            if self.kctl:
                cwait(DK, j, True)
            else:
                swait(DK, DK - self.adel)
            load(slot, srd, b=b)
            qk([j])
            if self.kctl:
                if j % 2 == 0:
                    A(f"ds_add_u32 v12, v56 offset:{PRG}")
                    A("s_waitcnt lgkmcnt(1)")
                    A("v_readfirstlane_b32 s62, v61")
                else:
                    A(f"ds_read_b32 v61, v59 offset:{RK}")
        if self.kctl:
            A("v_and_b32 v12, 63, v0"); A("v_lshlrev_b32 v12, 2, v12"); A("v_mov_b32 v56, 1")
            A("v_mov_b32 v59, 0"); A(f"s_mov_b32 s62, {self.cu0}"); A(f"ds_read_b32 v61, v59 offset:{RK}")
        A("s_branch L_kmid")
        A("L_kloop:")
        A("s_cmp_eq_u32 s54, s60")
        A("s_cbranch_scc1 L_burst")
        A("L_nobu:")
        for j in range(16 - DK):
            kslot(j, j + DK, "s[8:11]")
        A("L_kmid:")
        if self.prog:
            A("s_memrealtime s[90:91]")
        C("the rest refills from the next group (V group 0 after the last K group)")
        nextgroup()
        A("s_cmp_eq_u32 s54, 7")
        A("s_cselect_b32 s44, s12, s8"); A("s_cselect_b32 s45, s13, s9")
        for j in range(16 - DK, 16):
            kslot(j, j + DK - 16, "s[44:47]")
        if self.prog:
            A("s_waitcnt lgkmcnt(0)")
            A("s_mov_b32 m0, s54"); A("s_nop 0")
            A("v_writelane_b32 v60, s90, m0")
        for i in range(7):
            A(f"v_mov_b32 v{S+i}, v{S+i+1}")
        treduce(S + 7, ("s_add_u32 s54, s54, 1", "s_cmp_lt_u32 s54, 8"))
        A("s_cbranch_scc1 L_kloop")
        A("L_soft:")
        self.stamp(11)
        ext = list(range(DK, DV))
        def extra(k):
            for j in ext[:k]:
                b = addr(j)
                A(f"s_waitcnt vmcnt({self.sfd-1})")
                load(j, "s[12:15]", b=b)
            del ext[:k]
        extra(1)
        C("softmax over this row's 128 keys (true max of the partial; partials are merged exactly later)")
        M, Ls = 14, 15
        cs = math.log2(math.e) / math.sqrt(128.0)
        A(f"s_mov_b32 s58, {f32(cs)}")
        A(f"v_max3_f32 v{M}, v{S}, v{S+1}, v{S+2}")
        A(f"v_max3_f32 v{M}, v{M}, v{S+3}, v{S+4}")
        A(f"v_max3_f32 v{M}, v{M}, v{S+5}, v{S+6}")
        A(f"v_max_f32 v{M}, v{M}, v{S+7}")
        nsf = [0]
        def fill(k):
            for i in range(k):
                b = addr(DV + nsf[0])
                A(f"s_waitcnt vmcnt({self.sfd-1})")
                load(DV + nsf[0], "s[12:15]", b=b); nsf[0] += 1
        fill(self.sf >= 1); extra(1)
        self.row_allreduce("max", M)
        fill(self.sf >= 3)
        A(f"v_mul_f32 v{M}, s58, v{M}")
        for i in range(8):
            A(f"v_fma_f32 v{S+i}, v{S+i}, s58, -v{M}")
        for i in range(8):
            A(f"v_exp_f32 v{S+i}, v{S+i}")
        for i in range(8):
            A(f"v_mov_b32 v{ACC+i}, 0")
        A(f"v_add_f32 v{Ls}, v{S}, v{S+1}")
        for i in range(2, 8):
            A(f"v_add_f32 v{Ls}, v{Ls}, v{S+i}")
        fill(self.sf >= 2); extra(1)
        self.row_allreduce("add", Ls)
        A(f"v_lshlrev_b32 v16, 2, v6")
        A("v_lshlrev_b32 v18, 2, v0")
        A(f"ds_write_b32 v18, v{S+7} offset:{PL}")
        A(f"v_min_u32 v{M}, -2, v{M}")
        A(f"v_min_u32 v{Ls}, -2, v{Ls}")
        A(f"ds_write_b32 v16, v{M} offset:{MLM}")
        A(f"ds_write_b32 v16, v{Ls} offset:{MLL}")
        A("s_sub_u32 s54, s54, s5" if self.wk else "s_mov_b32 s54, 0")
        A("v_and_b32 v19, 0xfc, v18"); A("v_mov_b32 v56, 1")
        if DV > DK:
            extra(9)
            C("progress is counted where the loads are issued")
            A(f"v_mov_b32 v57, {(DV - DK) // self.pstep}"); A(f"ds_add_u32 v19, v57 offset:{PRG}")
        if self.ctl and not self.kctl:
            A("v_mov_b32 v59, 0"); A(f"s_mov_b32 s62, {self.cu0}"); A(f"v_mov_b32 v61, {self.cu0}")
        A(f"s_mov_b32 s61, {144 - DV}")
        def pv(slot):
            r = RING + 4 * slot
            for d in range(2 if 'pv' in self.skip else 4):
                A(f"v_dot2c_f32_bf16_dpp v{ACC+2*d}, v{PLO}, v{r+d} row_newbcast:{slot} row_mask:0xf bank_mask:0xf")
                A(f"v_dot2c_f32_bf16_dpp v{ACC+2*d+1}, v{PHI}, v{r+d} row_newbcast:{slot} row_mask:0xf bank_mask:0xf")
        self.stamp(12)
        A("L_vloop:")
        A("s_cmp_lg_u32 s54, 6")
        A("s_cbranch_scc1 L_nocf")
        C("from here on everything is scaled to the final softmax weights of the head")
        C("v17: dimension pair of lane (g,c) after the row reduction: 4c + 2(g&1) + (g>>1)")
        A("v_and_b32 v17, 1, v6"); A("v_lshl_add_u32 v17, v17, 3, v7")
        A("v_bfe_u32 v21, v6, 1, 1"); A("v_lshl_add_u32 v17, v21, 2, v17")
        A("s_lshl_b32 s42, s3, 9"); A("v_lshl_add_u32 v17, v17, 1, s42")
        A("s_lshl_b32 s42, s59, 8"); A(f"s_add_u32 s42, s42, {WS_O:#x}")
        A("v_lshlrev_b32 v22, 1, v19"); A("v_add_u32 v21, s42, v19")
        self.spin_begin("L_sp_cf")
        A(f"ds_read_b32 v57, v16 offset:{CFL}")
        A("s_waitcnt lgkmcnt(0)")
        A("v_cmp_eq_u32 vcc, -1, v57")
        A("s_cbranch_vccz L_sp_cf_done")
        self.spin_end("L_sp_cf", 1)
        A("L_sp_cf_done:")
        for r in list(range(ACC, ACC + 8)) + [S, S + 1]:
            A(f"v_mul_f32 v{r}, v57, v{r}")
        if not self.ctl:
            A("s_cmp_lg_u32 s94, 0")
            A("s_cselect_b64 vcc, -1, 0")
        A("L_nocf:")
        A("s_waitcnt lgkmcnt(0)")
        A(f"v_cvt_pk_bf16_f32 v{PLO}, v{S}, 0")
        A(f"v_cvt_pk_bf16_f32 v{PHI}, 0, v{S}")
        for i in range(7):
            A(f"v_mov_b32 v{S+i}, v{S+i+1}")
        for j in range(16):
            if j == 16 - DV:
                if self.prog:
                    A("s_memrealtime s[90:91]")
                    A("s_add_u32 m0, s54, 8")
                    A("s_waitcnt lgkmcnt(0)")
                    A("v_writelane_b32 v60, s90, m0")
                nextgroup()
                A("s_sub_u32 s42, s54, 6")
                A("s_cmp_gt_u32 s42, 1")
                A("s_cbranch_scc1 L_nodec")
                C("number of slots this WG works on: fewer when it hands some over, more when it takes some")
                A("s_lshl_b32 s42, s42, 2")
                A("v_mov_b32 v4, s42")
                self.spin_begin("L_sp_dec")
                A(f"ds_read_b32 v57, v4 offset:{DEC}")
                A("s_waitcnt lgkmcnt(0)")
                A("v_readfirstlane_b32 s61, v57")
                A("s_cmp_lg_u32 s61, -1")
                A("s_cbranch_scc1 L_sp_dec_done")
                self.spin_end("L_sp_dec", 1)
                A("L_sp_dec_done:")
                A("s_max_i32 s61, s61, 112"); A("s_min_i32 s61, s61, 144")
                A("s_lshl_b32 s43, s54, 4"); A(f"s_add_u32 s43, s43, {DV}"); A("s_sub_u32 s61, s61, s43")
                A("s_cmp_lg_u32 s54, 7")
                A("s_cbranch_scc1 L_nodec")
                C("the slots taken over are the last ones of the other side's last group, backwards")
                if self.xt:
                    A("v_mov_b32 v58, v3")
                else:
                    A(f"v_xor_b32 v58, {am[4] ^ lin(tv, 127):#x}, v5")
                A("v_xor_b32 v4, 60, v18")
                A(f"ds_read_b32 v{S}, v4 offset:{PL}")
                A("L_nodec:")
            if j < self.sf:
                A("s_cmp_eq_u32 s54, 0")
                A(f"s_cbranch_scc1 L_sf{j}")
            b = addr(j + DV)
            A(f"s_cmp_gt_i32 s61, {j}")
            if self.dr:
                A(f"s_cbranch_scc0 L_dr{j}")
                if self.oc:
                    A(f"s_cmp_lt_u32 s62, {4*DV}")
                    A(f"s_cbranch_scc1 L_oc{j}")
                    A(f"s_waitcnt vmcnt({DV-1})")
                    A(f"L_ob{j}:")
                else:
                    cwait(DV, j, True)
                load((j + DV) % 16, "s[12:15]", b=b)
                pv(j)
                if j % 2 == 0:
                    A(f"ds_add_u32 v19, v56 offset:{PRG}")
                    A("s_waitcnt lgkmcnt(1)")
                    A("v_readfirstlane_b32 s62, v61")
                else:
                    A(f"ds_read_b32 v61, v59 offset:{RK}")
                continue
            A(f"s_cselect_b32 s51, 0, s14")
            if self.dx:
                A("s_cselect_b64 exec, -1, 1")
            if self.ctl:
                cwait(DV, j)
            else:
                swait(DV, DV - self.adel)
            load((j + DV) % 16, "s[12:15]", "s51", b=b)
            if self.dx:
                A("s_mov_b64 exec, -1")
                for k in range(self.dx - 1):
                    A("s_nop 0")
            if j < self.sf:
                A(f"L_sf{j}:")
            pv(j)
            if j % self.pstep == 0:
                A(f"ds_add_u32 v19, v56 offset:{PRG}")
            if self.ctl and j % 2 == 1:
                A(f"ds_read_b32 v61, v59 offset:{RK}")
            if self.ctl and j % 2 == 0:
                A("s_waitcnt lgkmcnt(1)")
                A("v_readfirstlane_b32 s62, v61")
            A(f"s_cmp_le_i32 s61, {j + 1 - DV}")
            A("s_cbranch_scc1 L_vdone")
        A("s_add_u32 s54, s54, 1")
        A("s_sub_u32 s61, s61, 16")
        A("s_branch L_vloop")
        for j in range(16 if self.oc else 0):
            A(f"L_oc{j}:")
            for L in range(self.cuhi // 4, self.culo // 4 - 1, -1):
                A(f"s_cmp_ge_u32 s62, {4*L - (j & 3)}")
                A(f"s_waitcnt vmcnt({L-1})")
                A(f"s_cbranch_scc1 L_ob{j}" if L > self.culo // 4 else f"s_branch L_ob{j}")
        if self.dr:
            assert self.cend <= 104 and self.pstep == 2 and not self.sf
            C("all loads are issued: the rest only counts (loads past num_records fetch nothing)")
            o = self.dro
            for j in list(range(o, 16)) + list(range(o)):
                if j == 0:
                    A("L_drw:")
                    A("s_waitcnt lgkmcnt(0)")
                    A(f"v_cvt_pk_bf16_f32 v{PLO}, v{S}, 0")
                    A(f"v_cvt_pk_bf16_f32 v{PHI}, 0, v{S}")
                    A("s_sub_u32 s61, s61, 16")
                A(f"L_dr{j}:")
                A(f"s_waitcnt vmcnt({DV-1})")
                A(f"buffer_load_dword v{RING + 4 * ((j + DV) % 16)}, v4, s[12:15], s14 offen")
                A(f"s_cmp_le_i32 s61, {j + 1 - DV}")
                pv(j)
                A("s_cbranch_scc1 L_vdone" if j != (o + 15) % 16 else f"s_cbranch_scc0 {'L_dr%d' % o if o else 'L_drw'}")
        A("L_vdone:")
        self.stamp(4)
        A("s_nop 1")
        C("rows are added in the wave, waves in LDS; whoever comes last publishes the sum")
        for d in (0, 1, 4, 5):
            A(f"v_permlane32_swap_b32 v{ACC+d}, v{ACC+d+2}")
        for d in (0, 4):
            A(f"v_pk_add_f32 v[{ACC+d}:{ACC+d+1}], v[{ACC+d}:{ACC+d+1}], v[{ACC+d+2}:{ACC+d+3}]")
        A("s_nop 1")
        for d in (0, 1):
            A(f"v_permlane16_swap_b32 v{ACC+d}, v{ACC+d+4}")
        A(f"v_pk_add_f32 v[{ACC}:{ACC+1}], v[{ACC}:{ACC+1}], v[{ACC+4}:{ACC+5}]")
        A(f"ds_write_b64 v17, v[{ACC}:{ACC+1}] offset:{OA}")
        A(f"ds_add_rtn_u32 v20, v19, v56 offset:{OC}")
        A(f"ds_read2st64_b64 v[24:27], v22 offset0:{OA//512} offset1:{OA//512+1}")
        A(f"ds_read2st64_b64 v[28:31], v22 offset0:{OA//512+2} offset1:{OA//512+3}")
        A("s_waitcnt lgkmcnt(1)")
        A("v_cmpx_eq_u32 vcc, 3, v20")
        A("v_pk_add_f32 v[24:25], v[24:25], v[26:27]")
        A("s_waitcnt lgkmcnt(0)")
        A("v_pk_add_f32 v[28:29], v[28:29], v[30:31]")
        A("v_pk_add_f32 v[24:25], v[24:25], v[28:29]")
        A("v_cvt_pk_bf16_f32 v22, v24, v25")
        A("v_min_u32 v22, -2, v22")
        A("global_store_dword v21, v22, s[40:41] sc1")
        self.stamp(3)
        A("s_mov_b64 exec, -1")
        A("s_cmp_lg_u32 s94, 0")
        A("s_cbranch_scc1 L_proj")
        if self.wk:
            A("s_cmp_ge_u32 s3, 4")
            A("s_cbranch_scc1 L_back")
        if self.fine:
            A("s_waitcnt vmcnt(0)")
            self.stamp(8)
        if self.diag:
            A("s_branch L_hend")
        else:
            A("s_endpgm")

    TB = 100
    def tag4(self, R, n=4):
        for i in range(n):
            self.A(f"v_and_or_b32 v{R+i}, v{R+i}, v15, s{96 + i % 4}")
    def chk(self, acc, R, n, D=None):
        D = R if D is None else D
        for i in range(n):
            self.A(f"v_xor_b32 v{D+i}, s{96 + i % 4}, v{R+i}")
        self.A(f"v_or3_b32 v{acc}, v{D}, v{D+1}, v{D+2}")
        i = 3
        while i < n:
            if i + 1 < n:
                self.A(f"v_or3_b32 v{acc}, v{acc}, v{D+i}, v{D+i+1}"); i += 2
            else:
                self.A(f"v_or_b32 v{acc}, v{acc}, v{D+i}"); i += 1
    def chk_branch(self, acc, lab, sleep):
        A = self.A
        A(f"v_cmp_ne_u32_sdwa vcc, v{acc}, v10 src0_sel:BYTE_0 src1_sel:DWORD")
        A(f"s_cbranch_vccz {lab}_done")
        self.spin_end(lab, sleep)
        A(f"{lab}_done:")

    def set_tag(self):
        for k in range(4):
            self.A(f"s_bfe_u32 s{96+k}, s63, {0x80000 + 8*k:#x}")

    def control5(self):
        A, C = self.A, self.C
        ps, DV = self.pstep, self.DV
        c0 = self.cc0 * 4 // ps
        A("s_cmp_lg_u32 s7, 0")
        A("s_cbranch_scc1 L_noctl")
        C("helper 0: the number of loads in flight follows this WG's lag behind the WGs it shares a progress line with")
        if self.diag:
            A("s_mov_b32 s86, 0"); A("s_mov_b32 s87, 0")
        A("s_and_b32 s42, s2, 7"); A(f"s_mul_i32 s42, s42, {self.bst}"); A(f"s_add_u32 s42, s42, {WS_RP:#x}")
        A("v_lshl_add_u32 v12, v4, 2, s42")
        A("s_lshr_b32 s43, s2, 3"); A("s_lshl2_add_u32 s42, s43, s42")
        A("v_mov_b32 v14, s42")
        A(f"s_mov_b32 s45, {self.cu0}")
        if self.cpo:
            A(f"s_movk_i32 s60, {256 - self.cpo}")
            A(f"s_bitcmp{self.cpar}_b32 s2, 0")
            A(f"s_cselect_b32 s60, {256 + self.cpo}, s60")
        A("s_cmp_lg_u32 s94, 0")
        A(f"s_cselect_b32 s61, {self.cbias}, 0")
        A(f"s_mov_b32 s55, {SPIN_MAX}")
        A("s_mov_b32 exec_hi, 0")
        A("L_ctl:")
        if self.csl:
            A(f"s_sleep {self.csl}")
        A(f"ds_read_b32 v13, v10 offset:{PRG}")
        A(f"s_sub_u32 s46, {4*self.DK+64}, s45")
        A("s_lshr_b32 s46, s46, 1")
        A("s_sub_u32 s46, s46, s61")
        A("s_waitcnt lgkmcnt(0)")
        A("v_readfirstlane_b32 s47, v13")
        A("s_add_u32 s42, s47, s46")
        A("s_xor_b32 s43, s42, s63")
        A("v_mov_b32 v13, s43")
        A("s_mov_b32 exec_lo, 1")
        A("global_store_dword v14, v13, s[40:41]")
        A(f"s_cmp_ge_u32 s47, {(self.clim+self.K0)*4//ps}")
        A("s_cbranch_scc1 L_ctl2")
        A("s_mov_b32 exec_lo, -1")
        A("global_load_dword v11, v12, s[40:41] sc1")
        A(f"s_sub_u32 s42, s42, {self.cb}")
        A("s_waitcnt vmcnt(0)")
        A("v_xor_b32 v11, s63, v11")
        A("v_cmp_gt_u32 vcc, 0x400, v11")
        A("v_subrev_u32 v11, s42, v11")
        A("v_cndmask_b32 v11, 0, v11, vcc")
        for m in ("quad_perm:[1,0,3,2]", "quad_perm:[2,3,0,1]", "row_half_mirror", "row_mirror"):
            A("s_nop 1")
            A(f"v_add_u32_dpp v11, v11, v11 {m} row_mask:0xf bank_mask:0xf")
        A(f"s_cmp_lt_u32 s47, {c0}")
        A("s_cbranch_scc1 L_ctl3")
        A("v_readlane_b32 s43, v11, 0")
        A("v_readlane_b32 s42, v11, 16")
        A("s_add_i32 s42, s43, s42")
        A(f"s_mul_i32 s42, s42, {self.cg}")
        A(f"s_add_i32 s42, s42, {'s60' if self.cpo else 1 << 8}")
        A(f"s_ashr_i32 s42, s42, 9")
        A(f"s_add_i32 s45, s42, {self.cu0}")
        A(f"s_max_i32 s45, s45, {self.culo}"); A(f"s_min_i32 s45, s45, {self.cuhi}")
        A("v_mov_b32 v13, s45")
        A(f"ds_write_b32 v10, v13 offset:{RK}")
        if self.diag:
            A("s_add_u32 s86, s86, s45"); A("s_add_u32 s87, s87, 1")
        A("s_branch L_ctl3")
        A("L_ctl2:")
        A(f"s_sleep {self.rsl}")
        A("L_ctl3:")
        A("s_sub_u32 s55, s55, 1")
        A("s_cbranch_scc1 L_ctl4")
        A(f"s_cmp_lt_u32 s47, {(self.cend+self.K0)*4//ps}")
        A("s_cbranch_scc1 L_ctl")
        A("L_ctl4:")
        if self.cfa:
            A(f"s_sub_i32 s45, s45, {self.cu0}"); A(f"s_mul_i32 s45, s45, {self.cfa}"); A(f"s_add_i32 s45, s45, {self.cfin}")
            A(f"s_max_i32 s45, s45, {self.cu0}")
            A("v_mov_b32 v13, s45")
            A(f"ds_write_b32 v10, v13 offset:{RK}")
        elif self.cfin:
            A(f"v_mov_b32 v13, {self.cfin}" if self.cfin > 8 else f"v_add_u32 v13, {self.cfin}, v10")
            if self.cfin <= 8:
                A("v_add_u32 v13, s45, v13")
            A(f"ds_write_b32 v10, v13 offset:{RK}")
        A("s_mov_b64 exec, -1")
        A("L_noctl:")

    BB = 128
    def burst(self):
        A, C = self.A, self.C
        BB = self.BB
        A("L_burst:")
        if self.wk == 1:
            A("s_mov_b64 exec, -1")
        C("this WG projects batch row s92 onto the columns 32 s93..; wave w holds the wo rows of the heads 4w..")
        A("s_bfe_u32 s92, s2, 0x20005")
        A("s_bfe_u32 s93, s2, 0x20003"); A("s_and_b32 s42, s2, 6"); A("s_lshl1_add_u32 s93, s42, s93")
        C("row 64(kk>>1) + 4(kk&1) + 8(c>>2) + 32((e>>1)&1) + 2(e>>2) + (e&1), columns 8(c&3)..")
        A("v_and_b32 v1, 0x2c, v0"); A("v_lshlrev_b32 v1, 11, v1")
        A("v_and_b32 v62, 16, v0"); A("v_lshl_add_u32 v1, v62, 8, v1")
        A("v_and_b32 v63, 3, v0"); A("v_lshl_add_u32 v1, v63, 4, v1")
        A("s_lshl_b32 s28, s3, 19"); A("s_lshl_b32 s42, s93, 6"); A("s_add_u32 s28, s28, s42")
        A("s_add_u32 s29, s28, 0x8000")
        A(f"s_mov_b32 s26, {0 if 'wo' in self.skip else 0x400000:#x}"); A("s_mov_b32 s27, 0x20000")
        A("s_mov_b32 s48, 0x05040100"); A("s_mov_b32 s49, 0x07060302")
        A("s_mov_b64 s[100:101], -1")
        A("s_barrier")
        self.stamp(10)
        stage = [[BB + 64 + 4 * e for e in range(8)], [BB + 96 + 4 * e for e in range(8)], [96 + 4 * e for e in range(8)],
                 [16, 20, 24, 28, 32, 36, 48, 52]]
        for s in range(4):
            for e in range(8):
                r = stage[s][e]
                A(f"buffer_load_dwordx4 v[{r}:{r+3}], v1, s[24:27], s{28 + ((e >> 1) & 1)} offen offset:{(2*(e >> 2) + (e & 1))*1024}")
            if s < 3:
                A("s_add_u32 s28, s28, 0x20000"); A("s_add_u32 s29, s29, 0x20000")
        C("v62: record piece of lane (hh, kl, side, par, ch): O[b][4w + 2m + hh][side] + 16(8kl + 4par + ch)")
        A("s_lshl_b32 s42, s92, 14"); A("s_lshl_b32 s43, s3, 11"); A("s_add_u32 s42, s42, s43"); A(f"s_add_u32 s42, s42, {WS_O:#x}")
        A("v_lshl_add_u32 v62, v62, 3, s42")
        A("v_and_b32 v63, 0x27, v0"); A("v_lshl_add_u32 v62, v63, 4, v62")
        A("v_and_b32 v63, 8, v0"); A("v_lshl_add_u32 v62, v63, 5, v62")
        C("v63: 2:4 pattern of A row i: the first two of every four k for (i&4) == 0, else the last two")
        A("v_bfe_u32 v63, v0, 2, 1")
        A("v_mul_u32_u24 v63, 0xaaaa, v63")
        A("v_add_u32 v63, 0x4444, v63")
        for s in range(4):
            A(f"s_waitcnt vmcnt({24 - 8*s})")
            if s == 3 and self.b2:
                A("s_barrier")
            self.slabperm(BB + 64 * (s >> 1) + 4 * (s & 1), stage[s], 8)
        A("s_cmp_lt_u32 s3, 4")
        A("s_cbranch_scc1 L_nobu")

    def project(self):
        A, C = self.A, self.C
        BB, LR, D, T = self.BB, 40, 64, 96
        def ld(m):
            A(f"global_load_dwordx4 v[{LR+4*m}:{LR+4*m+3}], v62, s[40:41] offset:{1024*m} sc1")
        def chk(m):
            r = LR + 4 * m
            A(f"v_max3_u32 v13, v{r}, v{r+1}, v{r+2}")
            A(f"v_max_u32 v13, v13, v{r+3}")
            A("v_cmp_eq_u32 vcc, -1, v13")
        def f1(q, bk):
            d = D + 4 * (q + 4 * (bk >> 1))
            A(f"v_add_f32_dpp v{T+q}, v{d + (bk ^ 2)}, v{d + bk} row_ror:8 row_mask:0xf bank_mask:{1 << bk:#x}")
        def mf(m, last):
            if self.fine:
                A(f"s_memrealtime s[{16+2*m}:{17+2*m}]")
            for k in range(8):
                a = (k >> 1) + 4 * (k & 1)
                d, b = D + 4 * a, BB + 64 * m + 8 * a
                A(f"v_smfmac_f32_16x16x64_bf16 v[{d}:{d+3}], v[{LR+4*m}:{LR+4*m+3}], v[{b}:{b+7}], v63")
                if last and k >= 3:
                    for bk in range(2):
                        f1((k - 3) >> 1, 2 * ((k - 3) & 1) + bk)
        def tight(m):
            A(f"L_t{m}:")
            ld(m)
            A("s_sub_u32 s55, s55, 1")
            A(f"s_cbranch_scc1 L_f{m}")
            A(f"s_waitcnt vmcnt({self.pd1-1})")
            chk(m)
            A(f"s_cbranch_vccnz L_t{m}")
            A(f"L_f{m}:")
        A("L_proj:")
        self.stamp(12)
        C("the records of two pairs of heads are re-read until they are complete; several reads are kept in flight")
        for i in range(0, 8, 2):
            A(f"v_mov_b64 v[{LR+i}:{LR+i+1}], -1")
        ld(0); ld(1)
        for i in range(0, 32, 2):
            A(f"v_mov_b64 v[{D+i}:{D+i+1}], 0")
        C("v26: slot of this lane's sum: column 8(l&3) + 2((l>>2)&3) + (l>>5), wave, (l>>4)&1")
        A("v_and_b32 v26, 3, v0"); A("v_bfe_u32 v27, v0, 2, 2"); A("v_lshl_add_u32 v26, v26, 2, v27")
        A("v_bfe_u32 v27, v0, 5, 1"); A("v_lshl_add_u32 v26, v26, 1, v27")
        A(f"v_mul_u32_u24 v26, {FAS}, v26")
        A("v_bfe_u32 v27, v0, 4, 1"); A("v_lshl_add_u32 v26, v27, 2, v26")
        A("v_lshl_add_u32 v26, s3, 3, v26")
        A("v_bfe_u32 v28, v0, 1, 5")
        A(f"v_mul_u32_u24 v27, {FAS}, v28")
        A("v_and_b32 v29, 1, v0"); A("v_lshl_add_u32 v27, v29, 5, v27")
        A("s_lshl4_add_u32 s42, s92, s93"); A("s_lshl_b32 s42, s42, 6")
        A("v_lshl_add_u32 v29, v28, 1, s42")
        A("v_lshlrev_b32 v28, 3, v28")
        A("v_and_b32 v30, 63, v0"); A("v_lshlrev_b32 v30, 2, v30")
        A("v_mov_b32 v31, 1")
        A(f"s_mov_b32 s55, {SPIN_MAX*8}")
        A("s_mov_b64 exec, s[100:101]")
        A("L_two:")
        for m in range(2):
            A(f"s_waitcnt vmcnt({self.pd-1})")
            chk(m)
            A(f"s_cbranch_vccz L_h{m}")
            ld(m)
        A("s_sub_u32 s55, s55, 1")
        A("s_cbranch_scc0 L_two")
        A("L_h1:")
        mf(1, False)
        chk(0)
        A("s_cbranch_vccz L_f0")
        tight(0)
        mf(0, True)
        A("s_branch L_fold")
        A("L_h0:")
        mf(0, False)
        chk(1)
        A("s_cbranch_vccz L_f1")
        tight(1)
        mf(1, True)
        A("L_fold:")
        self.stamp(13)
        C("D row 4g + ch is valid in the lanes with (l>>2)&3 == ch")
        for q in range(2):
            A(f"v_add_f32_dpp v{T+4+q}, v{T+q}, v{T+q} row_shl:4 row_mask:0xf bank_mask:0x5")
        for q, bk in ((2, 2), (2, 3), (3, 0), (3, 1), (3, 2), (3, 3)):
            f1(q, bk)
        A(f"v_add_f32_dpp v{T+4}, v{T+2}, v{T+2} row_shr:4 row_mask:0xf bank_mask:0xa")
        A("s_nop 0")
        A(f"v_add_f32_dpp v{T+5}, v{T+3}, v{T+3} row_shr:4 row_mask:0xf bank_mask:0xa")
        A("s_nop 1")
        A(f"v_permlane32_swap_b32 v{T+4}, v{T+5}")
        A(f"v_add_f32 v{T+4}, v{T+4}, v{T+5}")
        A(f"ds_write_b32 v26, v{T+4} offset:{FA}")
        A(f"ds_add_rtn_u32 v31, v30, v31 offset:{FC}")
        A(f"ds_read_b128 v[{T+8}:{T+11}], v27 offset:{FA}")
        A(f"ds_read_b128 v[{T+12}:{T+15}], v27 offset:{FA+16}")
        A(f"ds_read_b64 v[{T+6}:{T+7}], v28 offset:{GX}")
        A("s_waitcnt lgkmcnt(2)")
        A(f"v_pk_add_f32 v[{T+8}:{T+9}], v[{T+8}:{T+9}], v[{T+10}:{T+11}]")
        A("s_waitcnt lgkmcnt(1)")
        A(f"v_pk_add_f32 v[{T+12}:{T+13}], v[{T+12}:{T+13}], v[{T+14}:{T+15}]")
        A(f"v_pk_add_f32 v[{T+8}:{T+9}], v[{T+8}:{T+9}], v[{T+12}:{T+13}]")
        A(f"v_add_f32 v{T}, v{T+8}, v{T+9}")
        A("s_waitcnt lgkmcnt(0)")
        A("s_nop 0")
        A(f"v_add_f32_dpp v{T}, v{T}, v{T} quad_perm:[1,0,3,2] row_mask:0xf bank_mask:0xf")
        A("v_cmpx_eq_u32 vcc, 7, v31")
        self.rnd(T, T)
        A(f"v_mul_f32 v{T}, v{T}, v{T+6}")
        self.rnd(T, T)
        A(f"v_add_f32 v{T}, v{T}, v{T+7}")
        A(f"v_cvt_pk_bf16_f32 v{T}, v{T}, 0")
        A(f"global_store_short v29, v{T}, s[36:37] {self.ofl}".rstrip())
        if self.ack:
            A("s_waitcnt vmcnt(0)")
        self.stamp(9)
        if self.dry:
            A("s_cmp_gt_u32 s94, 1")
            A("s_cbranch_scc1 L_dry")
        A(f"s_cmp_lg_u32 s2, {254 + self.cpar}")
        A("s_cbranch_scc1 L_nobump")
        A("s_and_b64 exec, exec, 1")
        A("s_cbranch_scc0 L_nobump")
        C("every reader of the tag word is done by now (this wave has seen data that depends on all of them)")
        A(f"ds_read_b32 v13, v30 offset:{TAGL}")
        A(f"v_mov_b32 v12, {WS_EP:#x}")
        A("s_waitcnt lgkmcnt(0)")
        A("global_store_dword v12, v13, s[40:41] sc1")
        A("L_nobump:")
        if self.diag:
            A("s_mov_b64 exec, -1")
        if self.fine:
            A("s_sleep 127"); A("s_sleep 127")
            A("s_waitcnt lgkmcnt(0)")
            A("s_lshl3_add_u32 s42, s2, s3"); A("s_lshl_b32 s42, s42, 4"); A(f"s_add_u32 s42, s42, {WS_DIAG + 0x100000:#x}")
            A("v_mov_b32 v12, s42")
            for m in range(2):
                A(f"v_mov_b32 v16, s{16+2*m}"); A(f"v_mov_b32 v17, s{17+2*m}")
                A(f"global_store_dwordx2 v12, v[16:17], s[40:41] offset:{8*m}")

    def helper(self):
        A, C = self.A, self.C
        mf = self.mflags
        RA, RD = 16, 32
        RB = 64
        ST = 192
        T = 224
        A("L_helper:")
        C("===== helper waves =====")
        A("s_sub_u32 s7, s3, 4")
        A("v_bfe_u32 v3, v0, 4, 2")
        A("v_and_b32 v4, 63, v0")
        A("s_bfe_u32 s4, s59, 0x50001")
        A("s_lshr_b32 s5, s2, 6")
        A("s_mov_b32 s48, 0x05040100"); A("s_mov_b32 s49, 0x07060302")
        A("v_lshlrev_b32 v6, 4, v4")
        A("v_mov_b32 v10, 0"); A("v_mov_b32 v62, 0")
        A("v_mov_b32 v15, 0xffffff00")
        A("s_mov_b32 s11, 0x20000"); A("s_mov_b32 s15, 0x20000")
        C("s62 = MLP unit of this WG (>= NUNIT: none)")
        A("s_lshr_b32 s62, s2, 1")
        A("s_and_b32 s42, s2, 1"); A(f"s_cmp_eq_u32 s42, {self.mpar}")
        A("s_cselect_b32 s62, s62, 255")
        A("s_cmp_ge_u32 s7, 2")
        A("s_cbranch_scc1 L_pf" if self.ep > 1 else "s_cbranch_scc1 L_nofront")
        A("s_cmp_eq_u32 s7, 0")
        A("s_cbranch_scc1 L_front")
        if self.ep:
            A(f"s_cmp_lt_u32 s62, {NUNIT}")
            A("s_cbranch_scc1 L_front")
            A("s_barrier")
            A("s_branch L_nofront")
        else:
            A(f"s_cmp_ge_u32 s62, {NUNIT}")
            A("s_cbranch_scc1 L_nofront")
        A("L_front:")
        A(f"s_setprio {self.fprio}")
        if self.fh == 1:
            C("front units, 128 rows x 64 cols for all 4 batch rows. helper 0: wq rows 128b.., cols 64(2h+side)..")
            C("helper 1: w1 rows 128(u&3).., cols 64(u>>2)..  Lanes c<8 / c>=8 hold different 32-row blocks.")
            A("s_and_b32 s42, s59, 63"); A("s_and_b32 s43, s62, 3")
            A("s_lshr_b32 s44, s62, 2")
            A("s_mov_b32 s51, 3584")
            A("s_cmp_eq_u32 s7, 0")
            A("s_cselect_b32 s53, s5, s43")
            A("s_cselect_b32 s44, s42, s44")
            A("s_cselect_b32 s51, 8192, s51")
            A("s_lshl_b32 s10, s51, 9")
            A("s_mul_i32 s52, s51, 57")
            A("s_mul_i32 s50, s53, s51"); A("s_add_u32 s50, s50, s44"); A("s_lshl_b32 s50, s50, 7")
            A("s_lshl_b32 s42, s51, 3")
            A("v_lshrrev_b32 v12, 3, v2"); A("v_lshl_add_u32 v5, v12, 2, v3")
            A("v_mul_u32_u24 v5, s42, v5")
            A("v_and_b32 v12, 7, v2")
            A("v_lshl_add_u32 v5, v12, 4, v5")
        else:
            C("front units, 256 rows x 32 cols for all 4 batch rows. helper 0: wq rows 256(b>>1).., cols 32(4h + 2 side + (b&1))..")
            C("helper 1: w1 rows 256(u&1).., cols 32(4(u>>3) + (u&2) + ((u>>2)&1))..  The lane quads hold different 32-row blocks.")
            A("s_and_b32 s42, s59, 1"); A("s_and_b32 s61, s5, 1"); A("s_lshl1_add_u32 s61, s42, s61")
            A("s_lshl2_add_u32 s42, s4, s61")
            A("s_lshr_b32 s44, s62, 3"); A("s_and_b32 s43, s62, 2"); A("s_lshl2_add_u32 s44, s44, s43")
            A("s_bfe_u32 s43, s62, 0x10002"); A("s_add_u32 s44, s44, s43")
            A("s_and_b32 s43, s62, 1"); A("s_lshr_b32 s53, s5, 1")
            A("s_mov_b32 s51, 3584")
            A("s_cmp_eq_u32 s7, 0")
            A("s_cselect_b32 s53, s53, s43")
            A("s_cselect_b32 s60, s42, s44")
            A("s_cselect_b32 s51, 8192, s51")
            A("s_lshl_b32 s10, s51, 9")
            A("s_mul_i32 s52, s51, 121")
            A("s_mul_i32 s50, s53, s51"); A("s_lshl2_add_u32 s50, s50, s60"); A("s_lshl_b32 s50, s50, 6")
            A("s_lshl_b32 s42, s51, 3")
            A("v_and_b32 v12, 12, v2"); A("v_add_u32 v5, v12, v3")
            A("v_mul_u32_u24 v5, s42, v5")
            A("v_and_b32 v12, 3, v2")
            A("v_lshl_add_u32 v5, v12, 4, v5")
        A("v_lshlrev_b32 v12, 10, v3")
        A("v_lshl_add_u32 v12, v2, 4, v12")
        A("s_cmp_eq_u32 s7, 0")
        A("s_waitcnt lgkmcnt(0)")
        self.stamp(6)
        for t in range(4):
            A(f"global_load_dwordx4 v[{RB+32+4*t}:{RB+35+4*t}], v12, s[16:17] offset:{256*t}")
        C("the word the previous launch left only serves to pick a tag that differs from that launch's")
        A(f"s_load_dword s63, s[40:41], {WS_EP:#x}")
        A("s_cselect_b32 s8, s22, s28"); A("s_cselect_b32 s9, s23, s29")
        self.slabload(RB + 96, "s[8:11]", 5, "s51", mf, last_inc="s52")
        self.slabload(ST, "s[8:11]", 5, "s51", mf)
        self.stamp(7)
        if self.ep == 3:
            A("s_branch L_f2"); self.pf(); A("L_f2:")
        if self.wf:
            A("s_barrier")
        A("s_lshl_b32 s42, s7, 12")
        A("v_add_u32 v12, s42, v12")
        A("v_lshrrev_b32 v13, 2, v2")
        A("v_lshlrev_b32 v13, 10, v13")
        A("v_lshl_add_u32 v13, v3, 4, v13")
        C("A operand: rows[i>>2][unit rows: slab n, 32-row block from the low bits of i, 8kk]")
        A(f"v_and_b32 v14, {(1<<self.fh)-1}, v2"); A("v_lshl_add_u32 v13, v14, 6, v13")
        A(f"s_lshl_b32 s43, s53, {7+self.fh}"); A("s_add_u32 s42, s42, s43")
        A("v_add_u32 v13, s42, v13")
        A("s_mov_b32 s54, s7")
        A("s_waitcnt vmcnt(16)")
        self.stamp(1)
        A("L_ln:")
        self.unpack(RB, RB + 32, 16)
        self.layernorm(RB, 32, T, RB + 32, unpack_after=False)
        A("s_sub_u32 s54, s54, 1")
        A("s_cbranch_scc0 L_ln")
        for t in range(4):
            A(f"ds_write_b128 v12, v[{RB+32+4*t}:{RB+35+4*t}] offset:{XN + 256*t}")
        A("s_waitcnt vmcnt(8)")
        self.slabperm(RB + 64, RB + 96)
        A("s_waitcnt lgkmcnt(0)")
        A(f"ds_read_b128 v[{RA}:{RA+3}], v13 offset:{XN}")
        A(f"ds_read_b128 v[{RA+4}:{RA+7}], v13 offset:{XN+(64<<self.fh)}")
        A("s_add_u32 s63, s63, 0x61c88647")
        self.set_tag()
        A("s_waitcnt vmcnt(0)")
        self.stamp(8)
        self.slabperm(RB + 96, ST)
        A("s_waitcnt lgkmcnt(0)")
        self.slabmfma(RD, RA, RB + 64, True)
        self.slabmfma(RD, RA + 4, RB + 96, False)
        A("s_cmp_eq_u32 s7, 0")
        A("s_cbranch_scc1 L_qaddr")
        if self.fh == 1:
            C("U[u][n=(c>>2)&1][half=c>>3][b=kk][c&3][4]")
            A("s_lshl_b32 s42, s62, 10"); A(f"s_add_u32 s42, s42, {WS_U:#x}")
            A("v_bfe_u32 v12, v2, 2, 1"); A("v_lshlrev_b32 v12, 9, v12")
            A("v_lshrrev_b32 v13, 3, v2"); A("v_lshl_add_u32 v12, v13, 8, v12")
            A("v_lshl_add_u32 v12, v3, 6, v12")
            A("v_and_b32 v13, 3, v2"); A("v_lshl_add_u32 v12, v13, 4, v12")
            A("s_branch L_fst")
            A("L_qaddr:")
            C("Q[h][b=kk][row block][side][c&7][c>>3][4]")
            A("s_lshl_b32 s42, s4, 13"); A("s_lshl_b32 s43, s53, 9"); A("s_add_u32 s42, s42, s43")
            A("s_and_b32 s43, s59, 1"); A("s_lshl_b32 s43, s43, 8"); A("s_add_u32 s42, s42, s43")
            A(f"s_add_u32 s42, s42, {WS_Q:#x}")
            A("v_lshlrev_b32 v12, 11, v3")
            A("v_and_b32 v13, 7, v2"); A("v_lshl_add_u32 v12, v13, 5, v12")
            A("v_lshrrev_b32 v13, 3, v2"); A("v_lshl_add_u32 v12, v13, 4, v12")
        else:
            C("U[col block][row block][half=c>>3][b=kk][c&3][4]")
            A("s_lshl1_add_u32 s42, s60, s53"); A("s_lshl_b32 s42, s42, 9"); A(f"s_add_u32 s42, s42, {WS_U:#x}")
            A("v_lshrrev_b32 v12, 3, v2"); A("v_lshlrev_b32 v12, 8, v12")
            A("v_lshl_add_u32 v12, v3, 6, v12")
            A("v_and_b32 v13, 3, v2"); A("v_lshl_add_u32 v12, v13, 4, v12")
            A("s_branch L_fst")
            A("L_qaddr:")
            C("Q[h][b=kk][row block][col quarter][c&3][c>>3][4]")
            A("s_lshl_b32 s42, s4, 12"); A("s_lshl_b32 s43, s53, 9"); A("s_add_u32 s42, s42, s43")
            A("s_lshl_b32 s43, s61, 7"); A("s_add_u32 s42, s42, s43")
            A(f"s_add_u32 s42, s42, {WS_Q:#x}")
            A("v_lshlrev_b32 v12, 10, v3")
            A("v_and_b32 v13, 3, v2"); A("v_lshl_add_u32 v12, v13, 5, v12")
            A("v_lshrrev_b32 v13, 3, v2"); A("v_lshl_add_u32 v12, v13, 4, v12")
        A("L_fst:")
        A("v_add_u32 v12, s42, v12")
        self.fold(T, RD)
        A(f"global_store_dwordx4 v12, v[{T}:{T+3}], s[40:41] sc1")
        A("s_mov_b64 exec, -1")
        self.stamp(2)
        A("s_cmp_lg_u32 s7, 0")
        A("s_cbranch_scc1 L_fdone")
        C("helper 0: gather the partials of q[b][h], LDS init")
        A(f"s_lshl_b32 s42, s4, {14-self.fh}"); A(f"s_lshl_b32 s43, s5, {12-self.fh}"); A("s_add_u32 s42, s42, s43")
        A(f"s_add_u32 s42, s42, {WS_Q:#x}")
        A("v_add_u32 v12, s42, v6")
        A("v_lshlrev_b32 v8, 2, v4")
        A("v_mov_b32 v9, -1")
        A(f"ds_write_b32 v8, v9 offset:{MLM}")
        A("v_mov_b32 v9, s63")
        A(f"ds_write_b32 v10, v9 offset:{TAGL}")
        A(f"ds_write_b32 v8, v10 offset:{PRG}")
        A(f"ds_write2st64_b32 v8, v10, v10 offset0:{OC//256} offset1:{FC//256}")
        if self.ctl:
            if self.kctl:
                self.is_cons()
                A(f"s_cselect_b32 s42, {self.cuc}, {self.cu0}"); A("v_mov_b32 v9, s42")
            else:
                A(f"v_mov_b32 v9, {self.cu0}")
            A(f"ds_write_b32 v10, v9 offset:{RK}")
        A("v_and_b32 v9, 31, v4"); A("v_lshlrev_b32 v9, 3, v9")
        C("the partners publish at about the same time: look once the own stores are acknowledged")
        A("s_waitcnt vmcnt(0)")
        self.spin_begin("L_sp_q")
        NQ = 4 >> self.fh
        for t in range(NQ):
            A(f"global_load_dwordx4 v[{RD+4*t}:{RD+4*t+3}], v12, s[40:41] offset:{1024*t} sc1")
        A("s_waitcnt vmcnt(0)")
        self.chk(13, RD, 4 * NQ)
        self.chk_branch(13, "L_sp_q", self.qsleep)
        for d in range(4 if NQ > 1 else 0):
            A(f"v_add_f32 v{RD+d}, v{RD+d}, v{RD+4+d}")
        for d in range(4):
            A(f"v_mov_b32 v{RD+4+d}, v{RD+d}")
        A("s_nop 1")
        for d in range(4):
            A(f"v_permlane32_swap_b32 v{RD+d}, v{RD+4+d}")
        for d in range(4):
            A(f"v_add_f32 v{RD+d}, v{RD+d}, v{RD+4+d}")
        for d in range(2):
            A(f"v_cvt_pk_bf16_f32 v{RD+d}, v{RD+2*d}, v{RD+2*d+1}")
        A(f"ds_write_b64 v9, v[{RD}:{RD+1}] offset:{QP}")
        A("L_fdone:")
        A("s_setprio 0")
        if self.wf:
            A("s_waitcnt lgkmcnt(0)")
            self.stamp(3)
            A("s_branch L_b1")
        A("L_nofront:")
        A("s_waitcnt lgkmcnt(0)")
        self.stamp(3)
        A("s_cmp_lg_u32 s7, 2")
        A("s_cbranch_scc1 L_noclr")
        C("helper 2 marks this WG's output record empty; nobody looks at it before this WG's softmax record is there")
        A("s_lshl_b32 s42, s59, 8"); A(f"s_add_u32 s42, s42, {WS_O:#x}")
        A("v_lshl_add_u32 v12, v4, 2, s42")
        A("v_mov_b32 v13, -1")
        A("global_store_dword v12, v13, s[40:41] sc1")
        A("L_noclr:")
        def prefetch():
            C("helpers 2 and 3 pull a part of the wo columns that the WGs of this class project with towards the L2")
            A("s_and_b32 s42, s2, 1"); A("s_lshl1_add_u32 s42, s7, s42"); A("s_and_b32 s42, s42, 5")
            A(f"s_cmp_lg_u32 s42, {4 | self.cpar}")
            A(f"s_cbranch_scc1 {'L_pre2' if self.w2f else 'L_nopre'}")
            A("v_lshlrev_b32 v5, 4, v2"); A("v_lshl_or_b32 v5, v3, 14, v5")
            A("s_lshr_b32 s50, s2, 3"); A("s_lshl1_add_u32 s50, s50, s7"); A("s_sub_u32 s50, s50, 2"); A("s_lshl_b32 s50, s50, 16")
            A("s_and_b32 s42, s2, 6"); A("s_lshl_b32 s42, s42, 7"); A("s_add_u32 s50, s50, s42")
            A("s_mov_b32 s26, 0x400000"); A("s_mov_b32 s27, 0x20000")
            A("s_mov_b32 s54, 3")
            self.stamp(6)
            A("L_pre:")
            for n in range(4):
                A(f"buffer_load_dwordx4 v[{ST}:{ST+3}], v5, s[24:27], s50 offen offset:{n*1024}")
                A(f"s_waitcnt vmcnt({self.wpre-1})")
            A("s_add_u32 s50, s50, 0x1000")
            A("s_sub_u32 s54, s54, 1")
            A("s_cbranch_scc0 L_pre")
            self.stamp(2)
            if self.fh == 1:
                A("s_branch L_nopre")
                A("L_pre2:")
                A("s_cmp_lg_u32 s7, 3")
                A("s_cbranch_scc1 L_nopre")
                A(f"s_cmp_ge_u32 s62, {NUNIT}")
                A("s_cbranch_scc1 L_nopre")
                C("helper 3: MLP stage 2 unit: r = u>>3 (hidden rows 128r..), cq = u&7 (cols 64cq..)")
                A("s_lshr_b32 s60, s62, 3"); A("s_and_b32 s61, s62, 7")
                A("s_lshl_b32 s50, s60, 17"); A("s_lshl_b32 s43, s61, 7"); A("s_add_u32 s50, s50, s43")
                A("v_lshrrev_b32 v12, 3, v2"); A("v_lshl_add_u32 v14, v12, 2, v3"); A("v_lshlrev_b32 v14, 13, v14")
                A("v_and_b32 v12, 7, v2"); A("v_lshl_add_u32 v14, v12, 4, v14")
                A("s_mov_b32 s12, s32"); A("s_mov_b32 s13, s33"); A(f"s_mov_b32 s14, {1792*1024}")
                self.stamp(6)
                self.slabload(ST, "s[12:15]", 14, 1024, mf, last_inc=57 * 1024)
                self.slabload(RD, "s[12:15]", 14, 1024, mf)
            elif self.w2f:
                A("s_branch L_nopre")
                A("L_pre2:")
                C("in the other WGs they do the same for w2: 128 bytes at 128((wg>>1)&3) and 512 further of 56 rows")
                A(f"s_cmp_lg_u32 s42, {4 | self.mpar}")
                A("s_cbranch_scc1 L_nopre")
                A("v_and_b32 v5, 7, v4"); A("v_lshlrev_b32 v5, 4, v5"); A("v_lshrrev_b32 v12, 3, v4"); A("v_lshl_or_b32 v5, v12, 9, v5")
                A("s_lshr_b32 s50, s2, 3"); A("s_lshl1_add_u32 s50, s50, s7"); A("s_sub_u32 s50, s50, 2"); A(f"s_mul_i32 s50, s50, {28*1024}")
                A("s_and_b32 s42, s2, 6"); A("s_lshl_b32 s42, s42, 6"); A("s_add_u32 s50, s50, s42")
                A("s_mov_b32 s12, s32"); A("s_mov_b32 s13, s33"); A(f"s_mov_b32 s14, {1792*1024}")
                self.stamp(6)
                for n in range(7):
                    A(f"buffer_load_dwordx4 v[{ST}:{ST+3}], v5, s[12:15], s50 offen")
                    A(f"s_waitcnt vmcnt({self.wpre-1})")
                    A("s_add_u32 s50, s50, 0x1000")
            A("L_nopre:")
        def walk(lab):
            A("s_cmp_lg_u32 s7, 3")
            A("s_cbranch_scc1 L_back")
            C("helper 3 walks through the loops of the stream waves with no lane active and empty descriptors: instruction cache")
            A("s_mov_b64 s[8:9], s[24:25]"); A("s_mov_b64 s[12:13], s[24:25]")
            A("s_mov_b32 s10, 0"); A("s_mov_b32 s14, 0"); A("s_mov_b64 s[46:47], s[10:11]")
            for r in (5, 21, 57, 58):
                A(f"v_mov_b32 v{r}, 0")
            A("s_mov_b32 s4, 6"); A("s_mov_b32 s5, 2"); A("s_mov_b32 s54, 8"); A("s_mov_b32 s60, 0"); A("s_mov_b32 s94, 0")
            A("s_mov_b64 exec, 0")
            A(f"s_branch {lab}")
            A("L_back:")
        if self.wpre and not self.wlate and not self.ep:
            prefetch()
        if self.wf:
            if not self.ep:
                self.stamp(7)
                A("s_barrier")
            if self.diag:
                A("s_waitcnt vmcnt(0)")
                self.stamp(8)
            if self.wk == 1:
                walk("L_walk")
            A("L_b1:")
        self.is_cons()
        A("s_barrier")
        if self.wk == 2:
            walk("L_soft")
            self.is_cons()
        if self.wpre and self.wlate:
            prefetch()
        A(f"ds_read_b32 v13, v10 offset:{TAGL}")
        A("s_waitcnt lgkmcnt(0)")
        A("v_readfirstlane_b32 s63, v13")
        self.set_tag()
        if self.dw:
            A("s_cmp_lg_u32 s7, 3")
            A("s_cbranch_scc1 L_nodw")
            A("s_lshl_b32 s42, s59, 12"); A("s_add_u32 s42, s42, 0x400000")
            A("v_add_u32 v12, s42, v6")
            for k in range(self.dw):
                if self.dwr:
                    A(f"global_load_dwordx4 v[16:19], v12, s[40:41] offset:{1024*k} {self.dwf}")
                else:
                    A(f"global_store_dwordx4 v12, v[16:19], s[40:41] offset:{1024*k} {self.dwf}")
                A("s_waitcnt vmcnt(0)")
            A("L_nodw:")
        if self.vt:
            A("s_cmp_lg_u32 s7, 3")
            A("s_cbranch_scc1 L_novt")
            C("(value unused: the address translations of this head's values are fetched ahead)")
            A("s_and_b32 s42, s59, 0xfe"); A("s_lshl_b32 s42, s42, 19")
            A(f"v_lshl_add_u32 v12, v4, {self.vt}, s42")
            A(f"s_mov_b64 exec, {(1 << (1 << (20 - self.vt))) - 1:#x}")
            A("global_load_dword v13, v12, s[20:21]")
            A("s_mov_b64 exec, -1")
            A("s_waitcnt vmcnt(0)")
            A("L_novt:")
        A(f"s_cmp_lg_u32 s7, {3 if self.fh == 1 else 1}")
        A("s_cbranch_scc1 L_not1")
        A(f"s_cmp_ge_u32 s62, {NUNIT}")
        A("s_cbranch_scc1 L_not1")
        if self.fh == 1:
            pass
        else:
            C("stage 2 unit: r = u>>4 (hidden rows 256r..), cq = (u&8) + 2(u&3) + ((u>>2)&1) (cols 32cq..)")
            A("s_lshr_b32 s60, s62, 4"); A("s_and_b32 s61, s62, 3"); A("s_and_b32 s43, s62, 8"); A("s_lshl1_add_u32 s61, s61, s43")
            A("s_bfe_u32 s43, s62, 0x10002"); A("s_add_u32 s61, s61, s43")
            A("s_lshl_b32 s50, s60, 18"); A("s_lshl_b32 s43, s61, 6"); A("s_add_u32 s50, s50, s43")
            A("v_and_b32 v12, 12, v2"); A("v_add_u32 v14, v12, v3"); A("v_lshlrev_b32 v14, 13, v14")
            A("v_and_b32 v12, 3, v2"); A("v_lshl_add_u32 v14, v12, 4, v14")
            A("s_mov_b32 s12, s32"); A("s_mov_b32 s13, s33"); A(f"s_mov_b32 s14, {1792*1024}")
            self.slabload(ST, "s[12:15]", 14, 1024, mf, last_inc=121 * 1024, pace=self.w2p)
            self.slabload(RD, "s[12:15]", 14, 1024, mf, pace=self.w2p, cont=True)
        A(f"s_lshl_b32 s43, s60, {7+self.fh}")
        A("v_lshlrev_b32 v13, 4, v3")
        A(f"v_and_b32 v12, {(1<<self.fh)-1}, v2"); A("v_lshl_add_u32 v13, v12, 6, v13")
        A("v_add_u32 v13, s43, v13")
        A(f"global_load_dwordx4 v[{T+16}:{T+19}], v13, s[30:31]")
        A(f"global_load_dwordx4 v[{T+20}:{T+23}], v13, s[30:31] offset:{64<<self.fh}")
        UU, W, BB = RB + 64, RB + 80, RB + 112
        C("U[4(2r+n) + 2t + ((c>>1)&1)][c&1][half][b=c>>2][kk][4]" if self.fh == 1 else "U[8r + 4n + (c&3)][t][half][b=c>>2][kk][4]")
        A("v_and_b32 v12, 3, v2"); A(f"v_lshlrev_b32 v12, {8+self.fh}, v12")
        A("v_lshrrev_b32 v13, 2, v2"); A("v_lshl_add_u32 v12, v13, 6, v12")
        A("v_lshl_add_u32 v12, v3, 4, v12")
        A("s_lshl_b32 s42, s60, 13")
        A(f"s_add_u32 s42, s42, {WS_U:#x}")
        A(f"v_add_u32 v{T}, s42, v12")
        A(f"v_add_u32 v{T+1}, 0x1000, v{T}")
        lds_ = [(UU + 16*t + 8*n + 4*hf, T + n, (2048 if self.fh == 1 else 512)*t + 256*hf) for t in range(2) for n in range(2) for hf in range(2)]
        self.spin_begin("L_sp_u")
        for r, v, o in lds_:
            A(f"global_load_dwordx4 v[{r}:{r+3}], v{v}, s[40:41] offset:{o} sc1")
        A("s_waitcnt vmcnt(0)")
        self.chk(13, UU, 32)
        self.chk_branch(13, "L_sp_u", 32)
        self.unpack(BB, T + 16, 8)
        for i in range(16):
            A(f"v_add_f32 v{UU+i}, v{UU+i}, v{UU+16+i}")
        for i in range(16 if self.fh == 1 else 0):
            A(f"v_add_f32_dpp v{UU+i}, v{UU+i}, v{UU+i} quad_perm:[2,3,0,1] row_mask:0xf bank_mask:0xf")
        for i in range(16):
            self.rnd(UU + i, UU + i)
        for i in range(16):
            A(f"v_add_f32 v{UU+i}, v{UU+i}, v{BB+i}")
        for i in range(16):
            self.rnd(UU + i, UU + i)
        C("gelu(tanh form) = u / (1 + exp(-2k(u + 0.044715 u^3)))")
        k2 = -2.0 * math.sqrt(2.0 / math.pi) * math.log2(math.e)
        A(f"s_mov_b32 s42, {f32(0.044715 * k2)}"); A(f"s_mov_b32 s43, {f32(k2)}")
        A("v_mov_b32 v12, s43")
        for i in range(16):
            A(f"v_mul_f32 v{W+i}, v{UU+i}, v{UU+i}")
        for i in range(16):
            A(f"v_fma_f32 v{W+i}, v{W+i}, s42, v12")
        for i in range(16):
            A(f"v_mul_f32 v{W+i}, v{W+i}, v{UU+i}")
        for i in range(16):
            A(f"v_exp_f32 v{W+i}, v{W+i}")
        for i in range(16):
            A(f"v_add_f32 v{W+i}, 1.0, v{W+i}")
        for i in range(16):
            A(f"v_rcp_f32 v{W+i}, v{W+i}")
        for i in range(16):
            A(f"v_mul_f32 v{UU+i}, v{UU+i}, v{W+i}")
        for d in range(8):
            A(f"v_cvt_pk_bf16_f32 v{RA+d}, v{UU+2*d}, v{UU+2*d+1}")
        self.slabperm(RB + 64, ST)
        self.slabperm(RB + 96, RD)
        self.slabmfma(RD, RA, RB + 64, True)
        self.slabmfma(RD, RA + 4, RB + 96, False)
        NZ = 28 >> self.fh
        C("Z[b=kk][32-column block][r][half=c>>3][c&3][4]")
        A(f"v_mul_u32_u24 v12, {16*NZ*128}, v3")
        if self.fh == 1:
            A("v_and_b32 v13, 4, v2"); A(f"v_mul_u32_u24 v13, {NZ*32}, v13"); A("v_add_u32 v12, v12, v13")
        A("v_lshrrev_b32 v13, 3, v2")
        A("v_lshl_add_u32 v12, v13, 6, v12")
        A("v_and_b32 v13, 3, v2")
        A("v_lshl_add_u32 v12, v13, 4, v12")
        A(f"s_mul_i32 s42, s61, {NZ*128*(2 if self.fh == 1 else 1)}"); A("s_lshl_b32 s43, s60, 7"); A("s_add_u32 s42, s42, s43")
        A(f"s_add_u32 s42, s42, {WS_Z:#x}")
        A("v_add_u32 v12, s42, v12")
        self.fold(T, RD)
        A(f"global_store_dwordx4 v12, v[{T}:{T+3}], s[40:41] sc1")
        A("s_mov_b64 exec, -1")
        A("L_not1:")
        A("s_cmp_eq_u32 s94, 0")
        A("s_cbranch_scc1 L_nowo")
        C("(empty descriptors: only the stream waves return to their loop from the code below)")
        A("s_mov_b64 s[8:9], s[24:25]"); A("s_mov_b64 s[12:13], s[24:25]")
        A("s_mov_b32 s10, 0"); A("s_mov_b32 s14, 0"); A("s_mov_b64 s[46:47], s[10:11]")
        A("v_mov_b32 v5, 0"); A("v_mov_b32 v58, 0")
        self.burst()
        A("L_nowo:")
        self.stamp(4)
        T = 96
        if self.ctl:
            self.control5()
        A("s_cmp_lg_u32 s7, 2")
        A("s_cbranch_scc1 L_nopub")
        C("helper 2: softmax bookkeeping with the other side of this head")
        A("v_lshlrev_b32 v12, 2, v2")
        self.spin_begin("L_sp_m")
        A(f"ds_read_b32 v14, v12 offset:{MLM}")
        A(f"ds_read_b32 v11, v12 offset:{MLL}")
        A("s_waitcnt lgkmcnt(0)")
        A("v_max_u32 v13, v14, v11")
        A("v_cmp_eq_u32 vcc, -1, v13")
        A("s_cbranch_vccz L_sp_m_done")
        self.spin_end("L_sp_m", 4)
        A("L_sp_m_done:")
        PW = T + 8
        A(f"ds_read_b128 v[{PW}:{PW+3}], v6 offset:{PL}")
        A(f"v_mov_b32 v{T}, v14")
        self.row_allreduce("max", T)
        A(f"v_sub_f32 v13, v14, v{T}")
        A("v_exp_f32 v13, v13")
        A(f"v_mov_b32 v{T+1}, s63"); A(f"v_mov_b32 v{T+3}, s63")
        A(f"v_mul_f32 v{T+2}, v13, v11")
        self.row_allreduce("add", T + 2)
        for k in range(self.mld):
            A("s_sleep 127")
        A(f"s_lshl_b32 s42, s59, {self.mls}"); A(f"s_add_u32 s42, s42, {WS_ML:#x}")
        A("v_mov_b32 v11, s42")
        A("s_mov_b64 exec, 1")
        A("s_waitcnt vmcnt(0)")
        A(f"global_store_dwordx4 v11, v[{T}:{T+3}], s[40:41] sc1")
        if self.mlp != 2:
            A("s_mov_b64 exec, -1")
        A(f"v_xor_b32 v11, {1 << self.mls:#x}, v11")
        self.spin_begin("L_sp_p")
        A(f"global_load_dwordx4 v[{T+4}:{T+7}], v11, s[40:41] sc1")
        A("s_waitcnt vmcnt(0)")
        A(f"v_xor_b32 v13, s63, v{T+5}")
        A(f"v_bitop3_b32 v13, v13, v{T+7}, s63 bitop3:0xf6")
        A("v_cmp_ne_u32 vcc, 0, v13")
        A("s_cbranch_vccz L_sp_p_done")
        self.spin_end("L_sp_p", self.psl)
        A("L_sp_p_done:")
        if self.mlp == 2:
            A(f"v_readfirstlane_b32 s42, v{T+4}"); A(f"v_readfirstlane_b32 s43, v{T+6}")
            A("s_mov_b64 exec, -1")
            A(f"v_mov_b32 v{T+4}, s42"); A(f"v_mov_b32 v{T+6}, s43")
        C("row factor exp(M_row - M_head) / L_head")
        A(f"v_max_f32 v{T+1}, v{T}, v{T+4}")
        A(f"v_sub_f32 v{T}, v{T}, v{T+1}"); A(f"v_sub_f32 v{T+4}, v{T+4}, v{T+1}"); A(f"v_sub_f32 v14, v14, v{T+1}")
        A(f"v_exp_f32 v{T}, v{T}"); A(f"v_exp_f32 v{T+4}, v{T+4}"); A("v_exp_f32 v14, v14")
        A(f"v_mul_f32 v{T+2}, v{T}, v{T+2}")
        A(f"v_fmac_f32 v{T+2}, v{T+4}, v{T+6}")
        A(f"v_rcp_f32 v{T+2}, v{T+2}")
        A("v_and_b32 v13, 0x3c, v4")
        A(f"v_mul_f32 v14, v14, v{T+2}")
        A("v_min_u32 v14, -2, v14")
        A(f"ds_write_b32 v12, v14 offset:{CFL}")
        A(f"ds_read_b32 v14, v13 offset:{CFL}")
        self.stamp(11)
        A("s_lshl_b32 s42, s59, 7"); A(f"s_add_u32 s42, s42, {WS_GH:#x}")
        A("v_mov_b32 v11, s42")
        A("v_xor_b32 v12, 0x80, v11")
        A("s_lshl_b32 s42, s59, 10"); A(f"s_add_u32 s42, s42, {WS_GP:#x}")
        A("v_add_u32 v9, s42, v6")
        A(f"v_mov_b32 v{T+1}, s63")
        A("s_waitcnt lgkmcnt(0)")
        for d in range(4):
            A(f"v_mul_f32 v{PW+d}, v14, v{PW+d}")
        self.tag4(PW)
        if self.xm == 2:
            A(f"global_store_dwordx4 v9, v[{PW}:{PW+3}], s[40:41] sc1")
            A("v_xor_b32 v9, 0x400, v9")
        ps = self.pstep
        def wait_prg(lab, slots, sleep):
            self.spin_begin(lab)
            A(f"ds_read_b32 v13, v10 offset:{PRG}")
            A("s_waitcnt lgkmcnt(0)")
            A("v_readfirstlane_b32 s42, v13")
            A(f"s_cmp_ge_u32 s42, {4*(slots+self.K0)//ps}")
            A(f"s_cbranch_scc1 {lab}_done")
            self.spin_end(lab, sleep)
            A(f"{lab}_done:")
        A("s_cmp_eq_u32 s94, 0")
        A("s_cbranch_scc1 L_sp_e_done")
        wait_prg("L_sp_w", self.xs - 16, 16)
        C("all output records of batch row s92 have been marked empty once their softmax records are there")
        A(f"s_lshl_b32 s42, s92, {self.mls + 6}"); A(f"s_add_u32 s42, s42, {WS_ML + 4:#x}")
        A(f"v_lshl_add_u32 v14, v6, {self.mls - 4}, s42")
        self.spin_begin("L_sp_e")
        A("global_load_dword v13, v14, s[40:41] sc1")
        A("s_waitcnt vmcnt(0)")
        A("v_cmp_ne_u32 vcc, s63, v13")
        A("s_cbranch_vccz L_sp_e_done")
        self.spin_end("L_sp_e", 16)
        A("L_sp_e_done:")
        wait_prg("L_sp_a", self.xs, 16)
        if self.xm == 2:
            self.spin_begin("L_sp_d")
            A(f"global_load_dwordx4 v[{PW}:{PW+3}], v9, s[40:41] sc1")
            A("s_waitcnt vmcnt(0)")
            self.chk(13, PW, 4)
            self.chk_branch(13, "L_sp_d", 8)
            A(f"ds_write_b128 v6, v[{PW}:{PW+3}] offset:{PL}")
            C("both sides note when they pass the checkpoint (or expect to, once the other one has); the later one hands")
            C("over slots in proportion to its lag")
            A("v_readfirstlane_b32 s46, v12")
            A("s_mov_b64 exec, 1")
            A("s_mov_b32 s47, 0")
            self.spin_begin("L_sp_b")
            A("s_load_dwordx2 s[42:43], s[40:41], s46 glc")
            A(f"ds_read_b32 v13, v10 offset:{PRG}")
            A("s_memrealtime s[44:45]")
            A("s_and_b32 s60, s55, 15")
            A("s_cbranch_scc1 L_nov")
            A(f"global_load_dword v{T}, v12, s[40:41] sc1")
            A("L_nov:")
            A("s_waitcnt lgkmcnt(0)")
            A("v_readfirstlane_b32 s45, v13")
            A("s_xor_b32 s43, s43, s42")
            A(f"s_sub_i32 s45, {4*(self.xc+self.K0)//ps}, s45")
            A("s_cmp_eq_u32 s43, s63")
            A("s_cselect_b32 s60, 0, s45")
            A("s_max_i32 s60, s60, s47")
            A("s_cmp_gt_i32 s60, 0")
            A("s_cbranch_scc1 L_nopost")
            A(f"s_mul_i32 s45, s45, {self.xtau}"); A("s_ashr_i32 s45, s45, 2"); A("s_add_u32 s61, s44, s45")
            A(f"v_mov_b32 v{T+2}, s61"); A(f"v_xor_b32 v{T+3}, s61, v{T+1}")
            A(f"global_store_dwordx2 v11, v[{T+2}:{T+3}], s[40:41] sc1")
            A("s_mov_b32 s47, 1")
            A("L_nopost:")
            A("s_cmp_eq_u32 s43, s63")
            A("s_cbranch_scc1 L_sp_b_done")
            self.spin_end("L_sp_b", self.xsl)
            A("L_sp_b_done:")
            A("s_sub_i32 s42, s42, s61")
            A("s_abs_i32 s43, s42"); A("s_min_u32 s43, s43, 0x1000")
            A(f"s_mul_i32 s43, s43, {self.xg}"); A(f"s_add_i32 s43, s43, {self.xo}"); A("s_lshr_b32 s43, s43, 8")
            A(f"s_min_u32 s43, s43, {self.xmax}")
            A("s_sub_i32 s44, 0, s43")
            A("s_cmp_gt_i32 s42, 0")
            A("s_cselect_b32 s42, s43, s44")
            A("s_add_i32 s42, s42, 128")
            A("v_mov_b32 v13, s42"); A("v_min_u32 v12, 128, v13")
            A(f"ds_write_b64 v10, v[12:13] offset:{DEC}")
            A("s_mov_b64 exec, -1")
            if self.diag:
                A("s_mov_b32 s84, s42"); A("s_mov_b32 s85, 0")
        else:
            if self.xm:
                wait_prg("L_sp_t", self.xc, 1)
                C("both sides note when they pass the checkpoint; the later one hands over slots in proportion to its lag")
                A("s_memrealtime s[44:45]")
                A(f"v_mov_b32 v{T+4}, 0")
                if self.xsp:
                    A("v_readfirstlane_b32 s46, v12")
                A("s_mov_b64 exec, 1")
                A("s_waitcnt lgkmcnt(0)")
                A(f"v_mov_b32 v{T+2}, s44"); A(f"v_xor_b32 v{T+3}, s44, v{T+1}")
                A(f"global_store_dwordx2 v11, v[{T+2}:{T+3}], s[40:41] offset:8 sc1")
                if not self.xsp:
                    A(f"v_not_b32 v{T+5}, s63")
                self.spin_begin("L_sp_b")
                if self.xsp:
                    A("s_load_dwordx2 s[42:43], s[40:41], s46 offset:8 glc")
                    A(f"ds_read_b32 v13, v10 offset:{PRG}")
                    A("s_waitcnt lgkmcnt(0)")
                    A("v_readfirstlane_b32 s47, v13")
                else:
                    A(f"global_load_dwordx2 v[{T+4}:{T+5}], v12, s[40:41] offset:8 sc1")
                    A(f"ds_read_b32 v13, v10 offset:{PRG}")
                    A(f"s_waitcnt vmcnt({self.xpd-1}) lgkmcnt(0)")
                    A(f"v_readfirstlane_b32 s43, v{T+5}")
                    A(f"v_readfirstlane_b32 s42, v{T+4}")
                    A("v_readfirstlane_b32 s47, v13")
                A("s_xor_b32 s43, s43, s42")
                A("s_cmp_eq_u32 s43, s63")
                A("s_cbranch_scc1 L_give")
                A(f"s_cmp_ge_u32 s47, {4*(self.xe+self.K0)//ps}")
                A("s_cbranch_scc1 L_pass")
                self.spin_end("L_sp_b", self.xsl)
            else:
                C("whoever finds the other side past the checkpoint before it is there itself hands over slots")
                self.spin_begin("L_sp_b")
                A(f"global_load_dwordx2 v[{T+4}:{T+5}], v12, s[40:41] sc1")
                A("s_waitcnt vmcnt(0)")
                A(f"ds_read_b32 v13, v10 offset:{PRG}")
                A(f"v_readfirstlane_b32 s43, v{T+5}")
                A("s_waitcnt lgkmcnt(0)")
                A("v_readfirstlane_b32 s42, v13")
                A("s_cmp_eq_u32 s43, s63")
                A("s_cbranch_scc1 L_give")
                A(f"s_cmp_ge_u32 s42, {4*(self.xc+self.K0)//ps}")
                A("s_cbranch_scc1 L_pass")
                self.spin_end("L_sp_b", self.xsl)
            A("L_pass:")
            A(f"v_mov_b32 v{T}, 0")
            A("s_mov_b64 exec, 1")
            A(f"global_store_dwordx2 v11, v[{T}:{T+1}], s[40:41] sc1")
            A("s_mov_b64 exec, -1")
            A("v_mov_b32 v13, 128")
            A(f"ds_write_b32 v10, v13 offset:{DEC}")
            A("v_xor_b32 v9, 0x400, v9")
            self.spin_begin("L_sp_c")
            A(f"global_load_dwordx2 v[{T+4}:{T+5}], v12, s[40:41] sc1")
            A("s_waitcnt vmcnt(0)")
            A(f"v_readfirstlane_b32 s43, v{T+5}")
            A(f"v_readfirstlane_b32 s42, v{T+4}")
            A("s_cmp_eq_u32 s43, s63")
            A("s_cbranch_scc1 L_sp_c_done")
            self.spin_end("L_sp_c", self.xsl)
            A("L_sp_c_done:")
            A("s_cmp_eq_u32 s42, 0")
            A("s_cbranch_scc1 L_sp_d_done")
            self.spin_begin("L_sp_d")
            A(f"global_load_dwordx4 v[{PW}:{PW+3}], v9, s[40:41] sc1")
            A("s_waitcnt vmcnt(0)")
            self.chk(13, PW, 4)
            A(f"ds_write_b128 v6, v[{PW}:{PW+3}] offset:{PL}")
            self.chk_branch(13, "L_sp_d", 2)
            A("s_add_u32 s42, s42, 128")
            A("v_mov_b32 v13, s42")
            A(f"ds_write_b32 v10, v13 offset:{DEC+4}")
            if self.diag:
                A("s_mov_b32 s84, s42"); A("s_mov_b32 s85, 0")
            A("s_branch L_nopub")
            A("L_give:")
            if self.xm:
                A("s_mov_b64 exec, -1")
                A("s_sub_i32 s42, s44, s42")
                A("s_max_i32 s42, s42, 0"); A("s_min_i32 s42, s42, 0x1000")
                A(f"s_mul_i32 s42, s42, {self.xg}"); A(f"s_add_i32 s42, s42, {self.xo}"); A("s_ashr_i32 s42, s42, 8")
                A(f"s_min_i32 s42, s42, {self.xmax}")
                A("s_cmp_le_i32 s42, 0")
                A("s_cbranch_scc1 L_pass")
            else:
                A(f"s_sub_i32 s42, {(4*(self.xc+self.K0) + self.xd)//ps}, s42")
                A(f"s_mul_i32 s42, s42, {self.xk*ps}"); A("s_ashr_i32 s42, s42, 6")
                A("s_max_i32 s42, s42, 0"); A(f"s_min_i32 s42, s42, {self.xmax}")
            A(f"v_mov_b32 v{T}, s42")
            A("s_cmp_eq_u32 s42, 0")
            A("s_cbranch_scc1 L_give0")
            A(f"global_store_dwordx4 v9, v[{PW}:{PW+3}], s[40:41] sc1")
            A("L_give0:")
            A("s_mov_b64 exec, 1")
            A(f"global_store_dwordx2 v11, v[{T}:{T+1}], s[40:41] sc1")
            A("s_mov_b64 exec, -1")
            A("s_sub_u32 s42, 128, s42")
            A("v_mov_b32 v12, s42"); A("v_mov_b32 v13, s42")
            A(f"ds_write_b64 v10, v[12:13] offset:{DEC}")
            if self.diag:
                A("s_mov_b32 s84, s42"); A("s_mov_b32 s85, 0")
        A("L_nopub:")
        self.stamp(5)
        A("s_cmp_eq_u32 s94, 0")
        A("s_cbranch_scc1 L_hend")
        A("s_cmp_lg_u32 s7, 3")
        A("s_cbranch_scc1 L_nog")
        G, XV = T, T + 1
        C("helper 3: gate of column 4(l&7) + 2(l>>5) + ((l>>4)&1)")
        A("v_and_b32 v12, 7, v4"); A("v_lshlrev_b32 v8, 2, v12")
        A("v_lshrrev_b32 v13, 5, v4"); A("v_lshl_add_u32 v8, v13, 1, v8")
        A("v_bfe_u32 v13, v4, 4, 1"); A("v_add_u32 v8, v8, v13")
        A("s_lshl_b32 s42, s93, 6")
        A("v_lshl_add_u32 v13, v8, 1, s42")
        A(f"global_load_ushort v{G}, v13, s[34:35]")
        A("v_lshl_add_u32 v13, s92, 10, v13")
        A(f"global_load_ushort v{XV}, v13, s[16:17]")
        if self.ot:
            C("(value unused: the address translation of the output is fetched ahead of the store)")
            A(f"global_load_ushort v{XV+1}, v13, s[36:37]")
        C("Z[b][cq][r=l>>3][l&1][(l>>1)&3][4]")
        A("s_lshl4_add_u32 s42, s92, s93")
        A(f"s_mul_i32 s42, s42, {NZ*128}"); A(f"s_add_u32 s42, s42, {WS_Z:#x}")
        A("v_lshrrev_b32 v13, 3, v4"); A("v_lshl_add_u32 v12, v13, 7, s42")
        A("v_and_b32 v13, 1, v4"); A("v_lshl_add_u32 v12, v13, 6, v12")
        A("v_and_b32 v13, 6, v4"); A("v_lshl_add_u32 v12, v13, 3, v12")
        self.spin_begin("L_sp_z")
        C("the lanes past the last line are masked off and hold tagged zeros")
        for d in range(4 * NQ):
            A(f"v_mov_b32 v{RD+d}, s{96+d%4}")
        A("s_mov_b32 exec_hi, 0xffffff")
        for t in range(NQ):
            A(f"global_load_dwordx4 v[{RD+4*t}:{RD+4*t+3}], v12, s[40:41] offset:{7*128*t} sc1")
        A("s_mov_b32 exec_hi, -1")
        A("s_waitcnt vmcnt(0)")
        self.chk(13, RD, 4 * NQ)
        self.chk_branch(13, "L_sp_z", 32)
        for d in range(4 if NQ > 1 else 0):
            A(f"v_add_f32 v{RD+d}, v{RD+d}, v{RD+4+d}")
        A(f"v_lshlrev_b32 v{G}, 16, v{G}")
        A(f"v_lshlrev_b32 v{XV}, 16, v{XV}")
        self.xl_reduce4(RD)
        self.rnd(RD, RD)
        A(f"v_add_f32 v{RD}, v{RD}, v{G}")
        self.rnd(RD, RD)
        A(f"v_mul_f32 v{RD+1}, {f32(-math.log2(math.e))}, v{RD}")
        A(f"v_exp_f32 v{RD+1}, v{RD+1}")
        A("v_lshlrev_b32 v8, 3, v8")
        A(f"v_add_f32 v{RD+1}, 1.0, v{RD+1}")
        A(f"v_rcp_f32 v{RD+1}, v{RD+1}")
        A("s_nop 0")
        A(f"v_mul_f32 v{G}, v{RD}, v{RD+1}")
        self.rnd(G, G)
        A(f"ds_write_b64 v8, v[{G}:{G+1}] offset:{GX}")
        A("L_nog:")
        if self.dry:
            A("s_cmp_lg_u32 s7, 1")
            A("s_cbranch_scc1 L_nodry")
            C("helper 1 walks through the code below with no lane active to bring it into the instruction cache")
            A("s_mov_b32 s94, 3")
            A("s_mov_b64 s[100:101], 0")
            A("s_branch L_proj")
            A("L_dry:")
            A("s_sub_u32 s94, s94, 1")
            A("s_cmp_eq_u32 s94, 2")
            A("s_cbranch_scc1 L_h1")
            A("s_mov_b64 s[100:101], -1")
            A("s_mov_b64 exec, -1")
            A("s_waitcnt vmcnt(0)")
            A("L_nodry:")
        wait_prg("L_sp_v", 104, 16)
        self.spin_begin("L_sp_o")
        A(f"ds_read_b32 v13, v10 offset:{OC}")
        A("s_waitcnt lgkmcnt(0)")
        A(f"v_cmp_gt_u32 vcc, {self.pw}, v13")
        A("s_cbranch_vccz L_proj")
        self.spin_end("L_sp_o", 1)
        self.project()
        A("L_hend:")
        self.dump_stamps(14, 16)
        if self.prog:
            A("s_cmp_ge_u32 s3, 4")
            A("s_cbranch_scc1 L_end")
            A("s_lshl_b32 s60, s2, 2"); A("s_add_u32 s60, s60, s3"); A("s_lshl_b32 s60, s60, 6")
            A(f"s_add_u32 s60, s60, {WS_DIAG + 0x80000:#x}")
            A("v_and_b32 v24, 63, v0"); A("v_lshlrev_b32 v24, 2, v24")
            A("v_add_u32 v24, s60, v24")
            A("s_mov_b64 exec, 0xffff")
            A("global_store_dword v24, v60, s[40:41]")

def gen(**kw):
    return Gen(**kw).gen()

if __name__ == "__main__":
    out = sys.argv[1]
    kw = eval("dict(" + (sys.argv[2] if len(sys.argv) > 2 else "") + ")")
    open(out, "w").write(gen(**kw))
```

```python
import sys, math, struct
NAME = "recurrent_scan__mha_block_cached__mixer_channel_mlp__decode_kernel"

def f32(x):
    return "0x%08x" % struct.unpack("<I", struct.pack("<f", x))[0]

HEADER = """; Kernarg layout for this problem (104 bytes, ptrs only, base s[0:1]):
;   offset  32: d_in[4] A_wo  shape=(4096, 512) dtype=bfloat16
;   offset  96: d_ws      workspace
"""

XN, QP, MLM, MLL, TAGL = 0, 8192, 8448, 8512, 8704
CFL, DEC, RK = 8576, 8640, 8720
OA, OC, FC = 9216, 11264, 11520
PRG, PL = 11776, 12032
FA, GX = 0, 4096
FAS = 80
LDS_BYTES = 13312
WS_O, WS_ML, WS_EP, WS_Q, WS_U, WS_Z, WS_DIAG = 0x40000, 0x80000, 0x90000, 0x100000, 0x180000, 0x1c0000, 0x200000
WS_RP = 0x98000
WS_GH, WS_GP = 0xa0000, 0xc0000
NUNIT = 112
SPIN_MAX = 1 << 18

class Gen:
    DEF = dict(kvflags="nt", mflags="", diag=False, prog=False, fine=0, DK=8, DV=12, adel=2, pre=2, dks=6, skip=(),
               mpar=0, cpar=1, fprio=3, qsleep=1, w2p=4, cpf=0, early=1, dsl=2,
               xc=88, xs=58, xd=52, xk=8, xmax=16, xsl=2, pstep=2,
               ctl=1, cg=8, cu0=24, culo=16, cuhi=32, cc0=2, clim=100, cb=6, csl=0, cbias=0, cend=104, rsl=8, bst=0x500,
               wpre=16, bg=(3, 3, 3), b2=1, pw=1, pd=2, pd1=2, dry=1, wlate=0, am=(0x2000, 0x200, 0x8000, 0x100, 0xa0000, 0x4400, 0, 0x60000, 0x20000, 0x20000, 0, 0x400),
               tv=(0x1000, 0x84c00, 0x400, 0x10000, 0x40000, 0x20000, 0x800), xt=0, xm=0, xe=102, xg=11, xo=0, xpd=1, xsp=0, xtau=27, cfin=48, fh=2, dkc=0, cpo=0, kctl=1, cuc=32, wk=0, sf=0, psl=32, mls=8, mlp=0, sp=1, ep=2, dx=0, eb=4, dr=1, dro=0, oc=0, cfa=0, mld=0, sfd=6, dw=0, dwf='sc1', dwr=0, wf=2, w2f=1, ack=0, ot=0, vt=0, ofl='')
    def __init__(self, **kw):
        self.L = []
        self.nlab = 0
        for k in kw:
            assert k in self.DEF, k
        for k, v in self.DEF.items():
            setattr(self, k, kw.get(k, v))
        self.skip = set(self.skip)
        self.K0 = (8 - self.pre) * 16 - (16 - self.DK) if self.kctl else 0
    def A(self, s):
        self.L.append("  " + s if not s.endswith(":") else s)
    def C(self, s):
        self.L.append("  ; " + s)

    def stamp(self, idx):
        if self.diag:
            self.A(f"s_memrealtime s[{64+2*idx}:{65+2*idx}]")
    def dump_stamps(self, n, vt):
        if not self.diag:
            return
        A = self.A
        for k in range(self.dsl):
            A("s_sleep 127")
        A("s_waitcnt lgkmcnt(0)")
        A("s_lshl_b32 s60, s2, 3"); A("s_add_u32 s60, s60, s3"); A("s_lshl_b32 s60, s60, 7")
        A(f"s_add_u32 s60, s60, {WS_DIAG:#x}")
        A(f"v_mov_b32 v{vt}, s60")
        A("s_mov_b64 exec, 1")
        for j in range(n):
            A(f"v_mov_b32 v{vt+2}, s{64+2*j}"); A(f"v_mov_b32 v{vt+3}, s{65+2*j}")
            A(f"global_store_dwordx2 v{vt}, v[{vt+2}:{vt+3}], s[40:41] offset:{8*j}")
        A("s_getreg_b32 s60, hwreg(HW_REG_XCC_ID)")
        A(f"v_mov_b32 v{vt+2}, s60")
        A(f"global_store_dword v{vt}, v{vt+2}, s[40:41] offset:120")
        A("s_mov_b64 exec, -1")

    def row_allreduce(self, op, r):
        A = self.A
        for m in ("quad_perm:[1,0,3,2]", "quad_perm:[2,3,0,1]", "row_half_mirror", "row_mirror"):
            A("s_nop 1")
            A(f"v_{op}_f32_dpp v{r}, v{r}, v{r} {m} row_mask:0xf bank_mask:0xf")
    def wave_allreduce_add(self, r, t, op="add"):
        A = self.A
        self.row_allreduce(op, r)
        for sw in ("v_permlane16_swap_b32", "v_permlane32_swap_b32"):
            A(f"v_mov_b32 v{t}, v{r}")
            A("s_nop 1")
            A(f"{sw} v{r}, v{t}")
            A(f"v_{op}_f32 v{r}, v{r}, v{t}")
    def rnd(self, d, s):
        self.A(f"v_cvt_pk_bf16_f32 v{d}, 0, v{s}")

    def layernorm(self, X, n, T, P, unpack_after=True):
        A = self.A
        s, t, q, d = T, T + 1, T + 2, T + 3
        red = (lambda r: self.wave_allreduce_add(r, t)) if n == 8 else (lambda r: self.row_allreduce("add", r))
        A(f"v_add_f32 v{s}, v{X}, v{X+1}")
        for i in range(2, n):
            A(f"v_add_f32 v{s}, v{s}, v{X+i}")
        red(s)
        A(f"v_mul_f32 v{s}, {f32(1.0/512)}, v{s}")
        A(f"v_sub_f32 v{d}, v{X}, v{s}")
        A(f"v_mul_f32 v{q}, v{d}, v{d}")
        for i in range(1, n):
            dd = d if i % 2 == 0 else t
            A(f"v_sub_f32 v{dd}, v{X+i}, v{s}")
            A(f"v_fmac_f32 v{q}, v{dd}, v{dd}")
        red(q)
        A(f"v_mul_f32 v{q}, {f32(1.0/512)}, v{q}")
        self.rnd(s, s)
        self.rnd(q, q)
        A(f"v_add_f32 v{q}, {f32(1e-5)}, v{q}")
        self.rnd(q, q)
        A(f"v_sqrt_f32 v{q}, v{q}")
        A("s_nop 0")
        self.rnd(q, q)
        A(f"v_rcp_f32 v{q}, v{q}")
        for i in range(n):
            A(f"v_sub_f32 v{X+i}, v{X+i}, v{s}")
        for i in range(n):
            self.rnd(X + i, X + i)
        for i in range(n):
            A(f"v_mul_f32 v{X+i}, v{X+i}, v{q}")
        for i in range(n // 2):
            A(f"v_cvt_pk_bf16_f32 v{P+i}, v{X+2*i}, v{X+2*i+1}")
        if unpack_after:
            self.unpack(X, P, n // 2)
    def unpack(self, X, P, n):
        for i in range(n):
            self.A(f"v_lshlrev_b32 v{X+2*i}, 16, v{P+i}")
            self.A(f"v_and_b32 v{X+2*i+1}, 0xffff0000, v{P+i}")

    def slabload(self, dst, srd, voff, stride, flags, last_inc=None, pace=None, cont=False):
        A = self.A
        for e in range(8):
            r = dst + 4 * e
            if pace is not None and (e >= pace or cont):
                A(f"s_waitcnt vmcnt({pace-1})")
            A(f"buffer_load_dwordx4 v[{r}:{r+3}], v{voff}, {srd}, s50 offen {flags}".rstrip())
            inc = stride if e < 7 else last_inc
            if inc is not None:
                A(f"s_add_u32 s50, s50, {inc}")
    def slabperm(self, dst, src, js=4):
        A = self.A
        rows = src if isinstance(src, list) else [src + 4 * e for e in range(8)]
        for d in range(4):
            for hf in range(2):
                jj = 2 * d + hf
                for q in range(4):
                    A(f"v_perm_b32 v{dst + js*jj + q}, v{rows[2*q+1] + d}, v{rows[2*q] + d}, s{48 + hf}")
    def slabmfma(self, RD, RA, B, first):
        A = self.A
        for jj in range(8):
            b = B + 4 * jj
            c = "0" if first else f"v[{RD+4*jj}:{RD+4*jj+3}]"
            A(f"v_mfma_f32_16x16x32_bf16 v[{RD+4*jj}:{RD+4*jj+3}], v[{RA}:{RA+3}], v[{b}:{b+3}], {c}")

    def fold(self, T, RD):
        A = self.A
        if self.fh == 2:
            return self.fold4(T, RD)
        for q in range(4):
            A(f"v_add_f32_dpp v{T+q}, v{RD+4*q+1}, v{RD+4*q} row_ror:8 row_mask:0xf bank_mask:0x3")
        for q in range(4):
            A(f"v_add_f32_dpp v{T+q}, v{RD+4*q+16}, v{RD+4*q+17} row_ror:8 row_mask:0xf bank_mask:0xc")
        self.tag4(T)
    def fold4(self, T, RD):
        A = self.A
        for bk in range(4):
            for q in range(4):
                d = RD + 4 * q + 16 * (bk >> 1)
                A(f"v_add_f32_dpp v{T+q}, v{d + (bk ^ 2)}, v{d + bk} row_ror:8 row_mask:0xf bank_mask:{1 << bk:#x}")
        for q in range(4):
            A(f"v_add_f32_dpp v{T+q}, v{T+q}, v{T+q} row_shl:4 row_mask:0xf bank_mask:0x5")
        A("s_mov_b32 exec_lo, 0x0f0f0f0f"); A("s_mov_b32 exec_hi, 0x0f0f0f0f")
        self.tag4(T)
    def spin_begin(self, lab):
        self.A(f"s_mov_b32 s55, {SPIN_MAX}")
        self.A(f"{lab}:")
    def spin_end(self, lab, sleep):
        A = self.A
        A(f"s_sleep {sleep}")
        A("s_sub_u32 s55, s55, 1")
        A("s_cmp_lg_u32 s55, 0")
        A(f"s_cbranch_scc1 {lab}")
    def xl_reduce4(self, R):
        A = self.A
        A("s_nop 0")
        for d in range(2):
            A(f"v_permlane32_swap_b32 v{R+d}, v{R+d+2}")
        for d in range(2):
            A(f"v_add_f32 v{R+d}, v{R+d}, v{R+d+2}")
        A("s_nop 1")
        A(f"v_permlane16_swap_b32 v{R}, v{R+1}")
        A(f"v_add_f32 v{R}, v{R}, v{R+1}")
        A("s_nop 1")
        A(f"v_add_f32_dpp v{R}, v{R}, v{R} row_ror:8 row_mask:0xf bank_mask:0xf")

    def gen(self):
        A, C = self.A, self.C
        self.L.append(HEADER.rstrip())
        self.L.append(f"; @launch grid=(256,1,1) block=(512,1,1) lds={LDS_BYTES}")
        self.L.append('.amdgcn_target "amdgcn-amd-amdhsa--gfx950"')
        self.L.append(".text"); self.L.append(f".globl {NAME}"); self.L.append(".p2align 8")
        self.L.append(f".type {NAME},@function"); self.L.append(f"{NAME}:")
        self.stamp(0)
        A("s_load_dwordx16 s[16:31], s[0:1], 0")
        A("s_load_dwordx8 s[32:39], s[0:1], 64")
        A("s_load_dwordx2 s[40:41], s[0:1], 96")
        A("s_cmp_ge_u32 s2, 256")
        A("s_cbranch_scc1 L_end")
        A("v_lshrrev_b32 v1, 6, v0")
        A("v_and_b32 v2, 15, v0")
        A("v_readfirstlane_b32 s3, v1")
        if self.ep == 1:
            A("s_cmp_ge_u32 s3, 6"); A("s_cbranch_scc1 L_pf"); A("L_idx:")
        C("s59 = producer index b*64 + 2h + side, b = wg>>6, side = (wg>>2)&1, h = 8((wg&3)^side) + ((wg>>3)&7):")
        C("the two halves of a head's keys go to the WGs wg and wg^5")
        A("s_bfe_u32 s5, s2, 0x10002")
        A("s_and_b32 s59, s2, 0xc0"); A("s_and_b32 s4, s2, 3"); A("s_xor_b32 s4, s4, s5"); A("s_lshl4_add_u32 s59, s4, s59")
        A("s_bfe_u32 s4, s2, 0x30003"); A("s_lshl1_add_u32 s59, s4, s59")
        if self.sp:
            A("s_lshl_b32 s7, s59, 19")
        A("s_or_b32 s59, s59, s5")
        if self.cpf:
            A("s_cmp_lt_u32 s3, 4")
            A("s_cbranch_scc1 L_stream")
            C("helper waves pull a slice of this kernel's code towards the L2")
            A("s_getpc_b64 s[42:43]")
            A("L_pc:")
            A("s_lshr_b32 s44, s2, 3"); A("s_lshl2_add_u32 s44, s44, s3")
            A(f"s_mul_i32 s44, s44, {64*self.cpf}")
            A(f"s_min_u32 s44, s44, L_end-L_pc-{64*(self.cpf-1)}")
            for k in range(self.cpf):
                A(f"s_load_dword s{45+k}, s[42:43], s44 offset:{64*k}")
            A("s_branch L_helper")
            A("L_stream:")
        else:
            A("s_cmp_ge_u32 s3, 4")
            A("s_cbranch_scc1 L_helper")
        self.stream()
        self.helper()
        A("L_end:")
        A("s_endpgm")
        L = self.L
        L.append('.section .rodata,"a"'); L.append(".p2align 6"); L.append(f".amdhsa_kernel {NAME}")
        L.append("  .amdhsa_next_free_vgpr 256"); L.append("  .amdhsa_next_free_sgpr 102"); L.append("  .amdhsa_accum_offset 256")
        L.append("  .amdhsa_group_segment_fixed_size 0"); L.append("  .amdhsa_kernarg_size 104")
        L.append("  .amdhsa_user_sgpr_count 2"); L.append("  .amdhsa_user_sgpr_kernarg_segment_ptr 1")
        L.append("  .amdhsa_system_sgpr_workgroup_id_x 1")
        L.append("  .amdhsa_float_denorm_mode_32 3")
        L.append(".end_amdhsa_kernel")
        return "\n".join(L) + "\n"

    def is_cons(self):
        self.A("s_and_b32 s42, s2, 0x81"); self.A(f"s_cmp_eq_u32 s42, {0x80 | self.cpar:#x}")
        self.A("s_cselect_b32 s94, 1, 0")

    def pf(self):
        A, C = self.A, self.C
        A("L_pf:")
        C("helpers 2 and 3 pull a part of wo (the columns the WGs of this class project with) or of w2 towards the L2")
        A("s_lshr_b32 s50, s2, 3"); A("s_lshl1_add_u32 s50, s50, s3"); A("s_sub_u32 s50, s50, 6")
        A("s_and_b32 s42, s2, 6"); A("s_mov_b32 s15, 0x20000")
        A(f"s_bitcmp{self.cpar}_b32 s2, 0")
        A("s_cbranch_scc0 L_pf2")
        A("v_bfe_u32 v3, v0, 4, 2"); A("v_lshlrev_b32 v5, 4, v2"); A("v_lshl_or_b32 v5, v3, 14, v5")
        A("s_lshl_b32 s50, s50, 9"); A("s_add_u32 s50, s50, s42"); A("s_lshl_b32 s50, s50, 7")
        A("s_mov_b32 s14, 0x400000"); A("s_movk_i32 s51, 0x400"); A("s_mov_b32 s54, 15")
        A("s_waitcnt lgkmcnt(0)")
        A("s_mov_b64 s[12:13], s[24:25]")
        A("s_branch L_pf3")
        A("L_pf2:")
        C("w2: 128 bytes at 128((wg>>1)&3) and 512 further of 56 rows")
        A("v_and_b32 v5, 7, v0"); A("v_bfe_u32 v12, v0, 3, 3"); A("v_lshlrev_b32 v5, 4, v5"); A("v_lshl_or_b32 v5, v12, 9, v5")
        A("s_mulk_i32 s50, 448"); A("s_add_u32 s50, s50, s42"); A("s_lshl_b32 s50, s50, 6")
        A(f"s_mov_b32 s14, {1792*1024}"); A("s_movk_i32 s51, 0x1000"); A("s_mov_b32 s54, 6")
        A("s_waitcnt lgkmcnt(0)")
        A("s_mov_b64 s[12:13], s[32:33]")
        A("L_pf3:")
        self.stamp(6)
        A("L_pf4:")
        A("buffer_load_dwordx4 v[192:195], v5, s[12:15], s50 offen")
        A("s_add_u32 s50, s50, s51"); A("s_sub_u32 s54, s54, 1")
        A("s_cbranch_scc0 L_pf4")
        self.stamp(7)
        A("s_barrier")
        A("s_branch L_idx" if self.ep == 1 else "s_branch L_nofront")

    def stream(self):
        A, C = self.A, self.C
        RING = 64
        P = 24
        Q = 8
        S = 40
        ACC = 48
        PLO, PHI = 12, 13
        VOFF = 5
        fl = self.kvflags
        DK, DV, pre = self.DK, self.DV, self.pre
        assert DK <= 8 and DK <= DV <= 14
        C("===== stream waves =====")
        if not self.sp:
            A("v_lshlrev_b32 v7, 4, v2")
            A("v_lshrrev_b32 v6, 4, v0")
            A("s_lshr_b32 s7, s59, 1"); A("s_lshl_b32 s7, s7, 20")
        A("s_mov_b32 s10, 0x100000"); A("s_mov_b32 s11, 0x20000")
        am, tv = self.am, self.tv
        def lin(vs, t):
            x = 0
            for i, v in enumerate(vs):
                if t >> i & 1:
                    x ^= v
            return x
        def slin(dst, terms):
            k = 0
            for sr, bit, m in terms:
                if m:
                    A(f"s_bitcmp1_b32 {sr}, {bit}"); A(f"s_cselect_b32 {'s6' if k else dst}, {m:#x}, 0")
                    if k:
                        A(f"s_xor_b32 {dst}, {dst}, s6")
                    k += 1
        if self.sp:
            C("every row of lanes walks through keys of its own: offset = v5 ^ f(group) ^ g(slot), all linear over GF(2)")
            sh = {4: 15}
            for b in range(4):
                assert am[b] & (am[b] - 1) == 0
                k = am[b].bit_length() - 1 - (4 + b)
                sh[k] = sh.get(k, 0) | 16 << b
            for i, (k, m) in enumerate(sh.items()):
                A(f"v_and_b32 v{3 + i}, {m:#x}, v0")
            A(f"s_mul_i32 s50, s5, {am[4]:#x}")
            for b in range(1, 8):
                if am[4 + b]:
                    A(f"s_bitcmp1_b32 s59, {b}"); A(f"s_cselect_b32 s6, {am[4 + b]:#x}, 0"); A("s_xor_b32 s50, s50, s6")
            for i, (k, m) in enumerate(sh.items()):
                A(f"v_lshl_or_b32 v3, v{3 + i}, {k}, v3" if i else f"v_lshlrev_b32 v3, {k}, v3")
            A("v_xor_b32 v5, s50, v3")
        elif not self.xt:
            C("every row of lanes walks through keys of its own: offset = v5 ^ f(group) ^ g(slot), all linear over GF(2)")
            A("v_bfe_i32 v3, v0, 4, 1"); A("v_bfe_i32 v4, v0, 5, 1")
            slin("s50", [("s3", 0, am[2]), ("s3", 1, am[3])] + [("s59", b, am[4 + b]) for b in range(8)])
            A(f"v_and_b32 v3, {am[0]:#x}, v3"); A(f"v_and_b32 v4, {am[1]:#x}, v4")
            A("v_xor_b32 v5, s50, v7"); A("v_bitop3_b32 v5, v5, v3, v4 bitop3:0x96")
        A("s_waitcnt lgkmcnt(0)")
        A("s_add_u32 s8, s18, s7"); A("s_addc_u32 s9, s19, 0")
        if self.xt:
            A("s_lshl_b32 s42, s59, 6"); A("v_lshl_add_u32 v4, v6, 2, s42"); A("v_xor_b32 v3, 64, v4")
            A("global_load_dword v4, v4, s[26:27]"); A("global_load_dword v3, v3, s[26:27]")
            A("s_load_dwordx16 s[64:79], s[26:27], 0x4000"); A("s_load_dwordx16 s[80:95], s[26:27], 0x4040")
            A("s_waitcnt vmcnt(0) lgkmcnt(0)")
            A("v_xor_b32 v3, v7, v3"); A("v_xor_b32 v5, v7, v4")
            A("v_xor_b32 v3, s79, v3"); A("v_xor_b32 v3, s87, v3")
        self.stamp(5)
        issued = []
        def addr(slot, tag=None):
            if self.xt:
                if tag and slot % 16 == 0:
                    A(f"v_xor_b32 v58, s{80 + tag[0]}, v5")
                A(f"v_xor_b32 v4, s{64 + slot % 16}, v58")
                return 4
            x = lin(tv, slot % 16 + (tag[0] * 16 if tag else 0))
            b = 5 if tag else 58
            if x:
                A(f"v_xor_b32 v4, {x:#x}, v{b}"); b = 4
            return b
        def load(slot, srd, so="0", tag=None, b=None):
            r = RING + 4 * slot
            if b is None:
                b = addr(slot, tag)
            A(f"buffer_load_dwordx4 v[{r}:{r+3}], v{b}, {srd}, {so} offen {fl}".rstrip())
            issued.append(tag)
        def nextgroup():
            if self.xt:
                A("s_add_u32 m0, s54, 1"); A("s_nop 0"); A("s_movrels_b32 s50, s80")
            else:
                A("s_add_u32 s42, s54, 1")
                if tv[5] == 2 * tv[4] and tv[6] == 4 * tv[4] and tv[4] & (tv[4] - 1) == 0:
                    A("s_and_b32 s50, s42, 7"); A(f"s_lshl_b32 s50, s50, {tv[4].bit_length() - 1}")
                else:
                    slin("s50", [("s42", i, tv[4 + i]) for i in range(3)])
            A("v_xor_b32 v58, s50, v5")
        def wait(tag):
            A(f"s_waitcnt vmcnt({len(issued) - 1 - issued.index(tag)})")
        def cwait(D, j, k=False):
            self.nlab += 1
            lo = self.culo // 4
            for L in range(D, lo - 1, -1):
                if L > 8 and L & 1:
                    continue
                A(f"s_waitcnt vmcnt({L-1})")
                if L == D and not k:
                    A(f"s_cbranch_scc0 L_cw{self.nlab}")
                if L > lo:
                    A(f"s_cmp_ge_u32 s62, {4*L - (j & 3)}")
                    A(f"s_cbranch_scc1 L_cw{self.nlab}")
            A(f"L_cw{self.nlab}:")
        def swait(D, lo=None):
            A(f"s_waitcnt vmcnt({D-1})")
            if lo is not None and lo < D:
                self.nlab += 1
                A(f"s_cbranch_vccnz L_ad{self.nlab}")
                A(f"s_waitcnt vmcnt({lo-1})")
                A(f"L_ad{self.nlab}:")
        def setup2():
            if self.sp:
                A("v_lshlrev_b32 v7, 4, v2"); A("v_lshrrev_b32 v6, 4, v0")
            A("s_mov_b32 s14, s10"); A("s_mov_b32 s15, s11"); A("s_mov_b32 s46, s10"); A("s_mov_b32 s47, s11")
            A("s_add_u32 s12, s20, s7"); A("s_addc_u32 s13, s21, 0")
            A("s_mov_b32 s52, 0xaaaaaaaa"); A("s_mov_b32 s53, 0xaaaaaaaa")
            A("s_mov_b32 s56, 0xcccccccc"); A("s_mov_b32 s57, 0xcccccccc")
            C("s60 = key group before which this WG turns to its part of wo; it keeps more loads in flight in return")
            A(f"s_lshr_b32 s60, s2, {self.bg[2]}"); A(f"s_and_b32 s60, s60, {self.bg[1]}"); A(f"s_add_u32 s60, s60, {self.bg[0]}")
            self.is_cons()
            A("s_cselect_b64 vcc, -1, 0")
            A("s_cselect_b32 s60, s60, 0")
            A("v_mov_b32 v21, 0"); A("v_mov_b32 v62, 0")
            if self.wk:
                A(f"s_mov_b32 s4, {pre}"); A("s_mov_b32 s5, 8")
        dd = self.dks
        for gi in range(pre):
            for j in range(16):
                n = 16 * gi + j
                if n == dd:
                    setup2()
                    self.stamp(6)
                if self.wf and n == self.wf:
                    if self.ep in (1, 2):
                        A("s_branch L_s2"); self.pf(); A("L_s2:")
                    A("s_barrier")
                b = addr(n, (gi, j))
                if n >= dd:
                    if self.dkc:
                        swait(self.dkc, dd)
                    else:
                        swait(dd)
                if n == dd:
                    self.stamp(7)
                if n == 2 * dd:
                    self.stamp(8)
                load(n, "s[8:11]", tag=(gi, j), b=b)
        self.stamp(1)
        A("s_barrier")
        A("L_walk:")
        A(f"ds_read_b128 v[{Q}:{Q+3}], v7 offset:{QP}")
        self.stamp(2)
        A("s_waitcnt lgkmcnt(0)")
        def qk(slots):
            for d in range(4):
                for slot in slots:
                    r = RING + 4 * slot
                    p = P + slot % 16
                    c = "0" if d == 0 else f"v{p}"
                    A(f"v_dot2_f32_bf16 v{p}, v{r+d}, v{Q+d}, {c}")
        def treduce(dst, mid=()):
            C("transposing reduction: lane (g,c) <- score of load c, key g")
            for t in range(8):
                A(f"v_add_f32_dpp v{P+t}, v{P+t}, v{P+t} row_ror:8 row_mask:0xf bank_mask:0x3")
            for t in range(8):
                A(f"v_add_f32_dpp v{P+t}, v{P+t+8}, v{P+t+8} row_ror:8 row_mask:0xf bank_mask:0xc")
            for t in range(4):
                A(f"v_add_f32_dpp v{P+t}, v{P+t}, v{P+t} row_half_mirror row_mask:0xf bank_mask:0x5")
            for t in range(4):
                A(f"v_add_f32_dpp v{P+t}, v{P+t+4}, v{P+t+4} row_half_mirror row_mask:0xf bank_mask:0xa")
            U0, U1, T0, T1 = P + 8, P + 9, P + 10, P + 11
            A(f"v_cndmask_b32 v{U0}, v{P+1}, v{P}, s[52:53]")
            A(f"v_cndmask_b32 v{U1}, v{P+3}, v{P+2}, s[52:53]")
            A(f"v_cndmask_b32 v{T0}, v{P}, v{P+1}, s[52:53]")
            A(f"v_cndmask_b32 v{T1}, v{P+2}, v{P+3}, s[52:53]")
            A("s_nop 1")
            A(f"v_add_f32_dpp v{T0}, v{U0}, v{T0} quad_perm:[1,0,3,2] row_mask:0xf bank_mask:0xf")
            A(f"v_add_f32_dpp v{T1}, v{U1}, v{T1} quad_perm:[1,0,3,2] row_mask:0xf bank_mask:0xf")
            A(f"v_cndmask_b32 v{U0}, v{T1}, v{T0}, s[56:57]")
            A(f"v_cndmask_b32 v{U1}, v{T0}, v{T1}, s[56:57]")
            if mid:
                for m in mid:
                    A(m)
            else:
                A("s_nop 1")
            A(f"v_add_f32_dpp v{dst}, v{U0}, v{U1} quad_perm:[2,3,0,1] row_mask:0xf bank_mask:0xf")
        C("catch-up over the prefetched groups; group `pre` is loaded into ring slots 0..15 meanwhile")
        nxt = 0
        for gi in range(pre):
            for j in range(0, 16, 2):
                wait((gi, j + 1))
                qk([16 * gi + j, 16 * gi + j + 1])
                if gi == 0:
                    want = j + 2 if (j < 8 or pre == 1) else 8
                elif gi == 1:
                    want = 8 + j // 2 + 1
                else:
                    want = 16
                while nxt < want:
                    load(nxt, "s[8:11]", tag=(pre, nxt)); nxt += 1
            A("s_nop 0")
            treduce(S + 8 - pre + gi)
        assert nxt == 16
        for j in range(16 - DK):
            wait((pre, j))
            qk([j])
        A(f"s_mov_b32 s54, {'s4' if self.wk else pre}")
        def kslot(j, slot, srd):
            b = addr(slot)
            if self.kctl:
                cwait(DK, j, True)
            else:
                swait(DK, DK - self.adel)
            load(slot, srd, b=b)
            qk([j])
            if self.kctl:
                if j % 2 == 0:
                    A(f"ds_add_u32 v12, v56 offset:{PRG}")
                    A("s_waitcnt lgkmcnt(1)")
                    A("v_readfirstlane_b32 s62, v61")
                else:
                    A(f"ds_read_b32 v61, v59 offset:{RK}")
        if self.kctl:
            A("v_and_b32 v12, 63, v0"); A("v_lshlrev_b32 v12, 2, v12"); A("v_mov_b32 v56, 1")
            A("v_mov_b32 v59, 0"); A(f"s_mov_b32 s62, {self.cu0}"); A(f"ds_read_b32 v61, v59 offset:{RK}")
        A("s_branch L_kmid")
        A("L_kloop:")
        A("s_cmp_eq_u32 s54, s60")
        A("s_cbranch_scc1 L_burst")
        A("L_nobu:")
        for j in range(16 - DK):
            kslot(j, j + DK, "s[8:11]")
        A("L_kmid:")
        if self.prog:
            A("s_memrealtime s[90:91]")
        C("the rest refills from the next group (V group 0 after the last K group)")
        nextgroup()
        A("s_cmp_eq_u32 s54, 7")
        A("s_cselect_b32 s44, s12, s8"); A("s_cselect_b32 s45, s13, s9")
        for j in range(16 - DK, 16):
            kslot(j, j + DK - 16, "s[44:47]")
        if self.prog:
            A("s_waitcnt lgkmcnt(0)")
            A("s_mov_b32 m0, s54"); A("s_nop 0")
            A("v_writelane_b32 v60, s90, m0")
        for i in range(7):
            A(f"v_mov_b32 v{S+i}, v{S+i+1}")
        treduce(S + 7, ("s_add_u32 s54, s54, 1", "s_cmp_lt_u32 s54, 8"))
        A("s_cbranch_scc1 L_kloop")
        A("L_soft:")
        self.stamp(11)
        ext = list(range(DK, DV))
        def extra(k):
            for j in ext[:k]:
                b = addr(j)
                A(f"s_waitcnt vmcnt({self.sfd-1})")
                load(j, "s[12:15]", b=b)
            del ext[:k]
        extra(1)
        C("softmax over this row's 128 keys (true max of the partial; partials are merged exactly later)")
        M, Ls = 14, 15
        cs = math.log2(math.e) / math.sqrt(128.0)
        A(f"s_mov_b32 s58, {f32(cs)}")
        A(f"v_max3_f32 v{M}, v{S}, v{S+1}, v{S+2}")
        A(f"v_max3_f32 v{M}, v{M}, v{S+3}, v{S+4}")
        A(f"v_max3_f32 v{M}, v{M}, v{S+5}, v{S+6}")
        A(f"v_max_f32 v{M}, v{M}, v{S+7}")
        nsf = [0]
        def fill(k):
            for i in range(k):
                b = addr(DV + nsf[0])
                A(f"s_waitcnt vmcnt({self.sfd-1})")
                load(DV + nsf[0], "s[12:15]", b=b); nsf[0] += 1
        fill(self.sf >= 1); extra(1)
        self.row_allreduce("max", M)
        fill(self.sf >= 3)
        A(f"v_mul_f32 v{M}, s58, v{M}")
        for i in range(8):
            A(f"v_fma_f32 v{S+i}, v{S+i}, s58, -v{M}")
        for i in range(8):
            A(f"v_exp_f32 v{S+i}, v{S+i}")
        for i in range(8):
            A(f"v_mov_b32 v{ACC+i}, 0")
        A(f"v_add_f32 v{Ls}, v{S}, v{S+1}")
        for i in range(2, 8):
            A(f"v_add_f32 v{Ls}, v{Ls}, v{S+i}")
        fill(self.sf >= 2); extra(1)
        self.row_allreduce("add", Ls)
        A(f"v_lshlrev_b32 v16, 2, v6")
        A("v_lshlrev_b32 v18, 2, v0")
        A(f"ds_write_b32 v18, v{S+7} offset:{PL}")
        A(f"v_min_u32 v{M}, -2, v{M}")
        A(f"v_min_u32 v{Ls}, -2, v{Ls}")
        A(f"ds_write_b32 v16, v{M} offset:{MLM}")
        A(f"ds_write_b32 v16, v{Ls} offset:{MLL}")
        A("s_sub_u32 s54, s54, s5" if self.wk else "s_mov_b32 s54, 0")
        A("v_and_b32 v19, 0xfc, v18"); A("v_mov_b32 v56, 1")
        if DV > DK:
            extra(9)
            C("progress is counted where the loads are issued")
            A(f"v_mov_b32 v57, {(DV - DK) // self.pstep}"); A(f"ds_add_u32 v19, v57 offset:{PRG}")
        if self.ctl and not self.kctl:
            A("v_mov_b32 v59, 0"); A(f"s_mov_b32 s62, {self.cu0}"); A(f"v_mov_b32 v61, {self.cu0}")
        A(f"s_mov_b32 s61, {144 - DV}")
        def pv(slot):
            r = RING + 4 * slot
            for d in range(2 if 'pv' in self.skip else 4):
                A(f"v_dot2c_f32_bf16_dpp v{ACC+2*d}, v{PLO}, v{r+d} row_newbcast:{slot} row_mask:0xf bank_mask:0xf")
                A(f"v_dot2c_f32_bf16_dpp v{ACC+2*d+1}, v{PHI}, v{r+d} row_newbcast:{slot} row_mask:0xf bank_mask:0xf")
        self.stamp(12)
        A("L_vloop:")
        A("s_cmp_lg_u32 s54, 6")
        A("s_cbranch_scc1 L_nocf")
        C("from here on everything is scaled to the final softmax weights of the head")
        C("v17: dimension pair of lane (g,c) after the row reduction: 4c + 2(g&1) + (g>>1)")
        A("v_and_b32 v17, 1, v6"); A("v_lshl_add_u32 v17, v17, 3, v7")
        A("v_bfe_u32 v21, v6, 1, 1"); A("v_lshl_add_u32 v17, v21, 2, v17")
        A("s_lshl_b32 s42, s3, 9"); A("v_lshl_add_u32 v17, v17, 1, s42")
        A("s_lshl_b32 s42, s59, 8"); A(f"s_add_u32 s42, s42, {WS_O:#x}")
        A("v_lshlrev_b32 v22, 1, v19"); A("v_add_u32 v21, s42, v19")
        self.spin_begin("L_sp_cf")
        A(f"ds_read_b32 v57, v16 offset:{CFL}")
        A("s_waitcnt lgkmcnt(0)")
        A("v_cmp_eq_u32 vcc, -1, v57")
        A("s_cbranch_vccz L_sp_cf_done")
        self.spin_end("L_sp_cf", 1)
        A("L_sp_cf_done:")
        for r in list(range(ACC, ACC + 8)) + [S, S + 1]:
            A(f"v_mul_f32 v{r}, v57, v{r}")
        if not self.ctl:
            A("s_cmp_lg_u32 s94, 0")
            A("s_cselect_b64 vcc, -1, 0")
        A("L_nocf:")
        A("s_waitcnt lgkmcnt(0)")
        A(f"v_cvt_pk_bf16_f32 v{PLO}, v{S}, 0")
        A(f"v_cvt_pk_bf16_f32 v{PHI}, 0, v{S}")
        for i in range(7):
            A(f"v_mov_b32 v{S+i}, v{S+i+1}")
        for j in range(16):
            if j == 16 - DV:
                if self.prog:
                    A("s_memrealtime s[90:91]")
                    A("s_add_u32 m0, s54, 8")
                    A("s_waitcnt lgkmcnt(0)")
                    A("v_writelane_b32 v60, s90, m0")
                nextgroup()
                A("s_sub_u32 s42, s54, 6")
                A("s_cmp_gt_u32 s42, 1")
                A("s_cbranch_scc1 L_nodec")
                C("number of slots this WG works on: fewer when it hands some over, more when it takes some")
                A("s_lshl_b32 s42, s42, 2")
                A("v_mov_b32 v4, s42")
                self.spin_begin("L_sp_dec")
                A(f"ds_read_b32 v57, v4 offset:{DEC}")
                A("s_waitcnt lgkmcnt(0)")
                A("v_readfirstlane_b32 s61, v57")
                A("s_cmp_lg_u32 s61, -1")
                A("s_cbranch_scc1 L_sp_dec_done")
                self.spin_end("L_sp_dec", 1)
                A("L_sp_dec_done:")
                A("s_max_i32 s61, s61, 112"); A("s_min_i32 s61, s61, 144")
                A("s_lshl_b32 s43, s54, 4"); A(f"s_add_u32 s43, s43, {DV}"); A("s_sub_u32 s61, s61, s43")
                A("s_cmp_lg_u32 s54, 7")
                A("s_cbranch_scc1 L_nodec")
                C("the slots taken over are the last ones of the other side's last group, backwards")
                if self.xt:
                    A("v_mov_b32 v58, v3")
                else:
                    A(f"v_xor_b32 v58, {am[4] ^ lin(tv, 127):#x}, v5")
                A("v_xor_b32 v4, 60, v18")
                A(f"ds_read_b32 v{S}, v4 offset:{PL}")
                A("L_nodec:")
            if j < self.sf:
                A("s_cmp_eq_u32 s54, 0")
                A(f"s_cbranch_scc1 L_sf{j}")
            b = addr(j + DV)
            A(f"s_cmp_gt_i32 s61, {j}")
            if self.dr:
                A(f"s_cbranch_scc0 L_dr{j}")
                if self.oc:
                    A(f"s_cmp_lt_u32 s62, {4*DV}")
                    A(f"s_cbranch_scc1 L_oc{j}")
                    A(f"s_waitcnt vmcnt({DV-1})")
                    A(f"L_ob{j}:")
                else:
                    cwait(DV, j, True)
                load((j + DV) % 16, "s[12:15]", b=b)
                pv(j)
                if j % 2 == 0:
                    A(f"ds_add_u32 v19, v56 offset:{PRG}")
                    A("s_waitcnt lgkmcnt(1)")
                    A("v_readfirstlane_b32 s62, v61")
                else:
                    A(f"ds_read_b32 v61, v59 offset:{RK}")
                continue
            A(f"s_cselect_b32 s51, 0, s14")
            if self.dx:
                A("s_cselect_b64 exec, -1, 1")
            if self.ctl:
                cwait(DV, j)
            else:
                swait(DV, DV - self.adel)
            load((j + DV) % 16, "s[12:15]", "s51", b=b)
            if self.dx:
                A("s_mov_b64 exec, -1")
                for k in range(self.dx - 1):
                    A("s_nop 0")
            if j < self.sf:
                A(f"L_sf{j}:")
            pv(j)
            if j % self.pstep == 0:
                A(f"ds_add_u32 v19, v56 offset:{PRG}")
            if self.ctl and j % 2 == 1:
                A(f"ds_read_b32 v61, v59 offset:{RK}")
            if self.ctl and j % 2 == 0:
                A("s_waitcnt lgkmcnt(1)")
                A("v_readfirstlane_b32 s62, v61")
            A(f"s_cmp_le_i32 s61, {j + 1 - DV}")
            A("s_cbranch_scc1 L_vdone")
        A("s_add_u32 s54, s54, 1")
        A("s_sub_u32 s61, s61, 16")
        A("s_branch L_vloop")
        for j in range(16 if self.oc else 0):
            A(f"L_oc{j}:")
            for L in range(self.cuhi // 4, self.culo // 4 - 1, -1):
                A(f"s_cmp_ge_u32 s62, {4*L - (j & 3)}")
                A(f"s_waitcnt vmcnt({L-1})")
                A(f"s_cbranch_scc1 L_ob{j}" if L > self.culo // 4 else f"s_branch L_ob{j}")
        if self.dr:
            assert self.cend <= 104 and self.pstep == 2 and not self.sf
            C("all loads are issued: the rest only counts (loads past num_records fetch nothing)")
            o = self.dro
            for j in list(range(o, 16)) + list(range(o)):
                if j == 0:
                    A("L_drw:")
                    A("s_waitcnt lgkmcnt(0)")
                    A(f"v_cvt_pk_bf16_f32 v{PLO}, v{S}, 0")
                    A(f"v_cvt_pk_bf16_f32 v{PHI}, 0, v{S}")
                    A("s_sub_u32 s61, s61, 16")
                A(f"L_dr{j}:")
                A(f"s_waitcnt vmcnt({DV-1})")
                A(f"buffer_load_dword v{RING + 4 * ((j + DV) % 16)}, v4, s[12:15], s14 offen")
                A(f"s_cmp_le_i32 s61, {j + 1 - DV}")
                pv(j)
                A("s_cbranch_scc1 L_vdone" if j != (o + 15) % 16 else f"s_cbranch_scc0 {'L_dr%d' % o if o else 'L_drw'}")
        A("L_vdone:")
        self.stamp(4)
        A("s_nop 1")
        C("rows are added in the wave, waves in LDS; whoever comes last publishes the sum")
        for d in (0, 1, 4, 5):
            A(f"v_permlane32_swap_b32 v{ACC+d}, v{ACC+d+2}")
        for d in (0, 4):
            A(f"v_pk_add_f32 v[{ACC+d}:{ACC+d+1}], v[{ACC+d}:{ACC+d+1}], v[{ACC+d+2}:{ACC+d+3}]")
        A("s_nop 1")
        for d in (0, 1):
            A(f"v_permlane16_swap_b32 v{ACC+d}, v{ACC+d+4}")
        A(f"v_pk_add_f32 v[{ACC}:{ACC+1}], v[{ACC}:{ACC+1}], v[{ACC+4}:{ACC+5}]")
        A(f"ds_write_b64 v17, v[{ACC}:{ACC+1}] offset:{OA}")
        A(f"ds_add_rtn_u32 v20, v19, v56 offset:{OC}")
        A(f"ds_read2st64_b64 v[24:27], v22 offset0:{OA//512} offset1:{OA//512+1}")
        A(f"ds_read2st64_b64 v[28:31], v22 offset0:{OA//512+2} offset1:{OA//512+3}")
        A("s_waitcnt lgkmcnt(1)")
        A("v_cmpx_eq_u32 vcc, 3, v20")
        A("v_pk_add_f32 v[24:25], v[24:25], v[26:27]")
        A("s_waitcnt lgkmcnt(0)")
        A("v_pk_add_f32 v[28:29], v[28:29], v[30:31]")
        A("v_pk_add_f32 v[24:25], v[24:25], v[28:29]")
        A("v_cvt_pk_bf16_f32 v22, v24, v25")
        A("v_min_u32 v22, -2, v22")
        A("global_store_dword v21, v22, s[40:41] sc1")
        self.stamp(3)
        A("s_mov_b64 exec, -1")
        A("s_cmp_lg_u32 s94, 0")
        A("s_cbranch_scc1 L_proj")
        if self.wk:
            A("s_cmp_ge_u32 s3, 4")
            A("s_cbranch_scc1 L_back")
        if self.fine:
            A("s_waitcnt vmcnt(0)")
            self.stamp(8)
        if self.diag:
            A("s_branch L_hend")
        else:
            A("s_endpgm")

    TB = 100
    def tag4(self, R, n=4):
        for i in range(n):
            self.A(f"v_and_or_b32 v{R+i}, v{R+i}, v15, s{96 + i % 4}")
    def chk(self, acc, R, n, D=None):
        D = R if D is None else D
        for i in range(n):
            self.A(f"v_xor_b32 v{D+i}, s{96 + i % 4}, v{R+i}")
        self.A(f"v_or3_b32 v{acc}, v{D}, v{D+1}, v{D+2}")
        i = 3
        while i < n:
            if i + 1 < n:
                self.A(f"v_or3_b32 v{acc}, v{acc}, v{D+i}, v{D+i+1}"); i += 2
            else:
                self.A(f"v_or_b32 v{acc}, v{acc}, v{D+i}"); i += 1
    def chk_branch(self, acc, lab, sleep):
        A = self.A
        A(f"v_cmp_ne_u32_sdwa vcc, v{acc}, v10 src0_sel:BYTE_0 src1_sel:DWORD")
        A(f"s_cbranch_vccz {lab}_done")
        self.spin_end(lab, sleep)
        A(f"{lab}_done:")

    def set_tag(self):
        for k in range(4):
            self.A(f"s_bfe_u32 s{96+k}, s63, {0x80000 + 8*k:#x}")

    def control5(self):
        A, C = self.A, self.C
        ps, DV = self.pstep, self.DV
        c0 = self.cc0 * 4 // ps
        A("s_cmp_lg_u32 s7, 0")
        A("s_cbranch_scc1 L_noctl")
        C("helper 0: the number of loads in flight follows this WG's lag behind the WGs it shares a progress line with")
        if self.diag:
            A("s_mov_b32 s86, 0"); A("s_mov_b32 s87, 0")
        A("s_and_b32 s42, s2, 7"); A(f"s_mul_i32 s42, s42, {self.bst}"); A(f"s_add_u32 s42, s42, {WS_RP:#x}")
        A("v_lshl_add_u32 v12, v4, 2, s42")
        A("s_lshr_b32 s43, s2, 3"); A("s_lshl2_add_u32 s42, s43, s42")
        A("v_mov_b32 v14, s42")
        A(f"s_mov_b32 s45, {self.cu0}")
        if self.cpo:
            A(f"s_movk_i32 s60, {256 - self.cpo}")
            A(f"s_bitcmp{self.cpar}_b32 s2, 0")
            A(f"s_cselect_b32 s60, {256 + self.cpo}, s60")
        A("s_cmp_lg_u32 s94, 0")
        A(f"s_cselect_b32 s61, {self.cbias}, 0")
        A(f"s_mov_b32 s55, {SPIN_MAX}")
        A("s_mov_b32 exec_hi, 0")
        A("L_ctl:")
        if self.csl:
            A(f"s_sleep {self.csl}")
        A(f"ds_read_b32 v13, v10 offset:{PRG}")
        A(f"s_sub_u32 s46, {4*self.DK+64}, s45")
        A("s_lshr_b32 s46, s46, 1")
        A("s_sub_u32 s46, s46, s61")
        A("s_waitcnt lgkmcnt(0)")
        A("v_readfirstlane_b32 s47, v13")
        A("s_add_u32 s42, s47, s46")
        A("s_xor_b32 s43, s42, s63")
        A("v_mov_b32 v13, s43")
        A("s_mov_b32 exec_lo, 1")
        A("global_store_dword v14, v13, s[40:41]")
        A(f"s_cmp_ge_u32 s47, {(self.clim+self.K0)*4//ps}")
        A("s_cbranch_scc1 L_ctl2")
        A("s_mov_b32 exec_lo, -1")
        A("global_load_dword v11, v12, s[40:41] sc1")
        A(f"s_sub_u32 s42, s42, {self.cb}")
        A("s_waitcnt vmcnt(0)")
        A("v_xor_b32 v11, s63, v11")
        A("v_cmp_gt_u32 vcc, 0x400, v11")
        A("v_subrev_u32 v11, s42, v11")
        A("v_cndmask_b32 v11, 0, v11, vcc")
        for m in ("quad_perm:[1,0,3,2]", "quad_perm:[2,3,0,1]", "row_half_mirror", "row_mirror"):
            A("s_nop 1")
            A(f"v_add_u32_dpp v11, v11, v11 {m} row_mask:0xf bank_mask:0xf")
        A(f"s_cmp_lt_u32 s47, {c0}")
        A("s_cbranch_scc1 L_ctl3")
        A("v_readlane_b32 s43, v11, 0")
        A("v_readlane_b32 s42, v11, 16")
        A("s_add_i32 s42, s43, s42")
        A(f"s_mul_i32 s42, s42, {self.cg}")
        A(f"s_add_i32 s42, s42, {'s60' if self.cpo else 1 << 8}")
        A(f"s_ashr_i32 s42, s42, 9")
        A(f"s_add_i32 s45, s42, {self.cu0}")
        A(f"s_max_i32 s45, s45, {self.culo}"); A(f"s_min_i32 s45, s45, {self.cuhi}")
        A("v_mov_b32 v13, s45")
        A(f"ds_write_b32 v10, v13 offset:{RK}")
        if self.diag:
            A("s_add_u32 s86, s86, s45"); A("s_add_u32 s87, s87, 1")
        A("s_branch L_ctl3")
        A("L_ctl2:")
        A(f"s_sleep {self.rsl}")
        A("L_ctl3:")
        A("s_sub_u32 s55, s55, 1")
        A("s_cbranch_scc1 L_ctl4")
        A(f"s_cmp_lt_u32 s47, {(self.cend+self.K0)*4//ps}")
        A("s_cbranch_scc1 L_ctl")
        A("L_ctl4:")
        if self.cfa:
            A(f"s_sub_i32 s45, s45, {self.cu0}"); A(f"s_mul_i32 s45, s45, {self.cfa}"); A(f"s_add_i32 s45, s45, {self.cfin}")
            A(f"s_max_i32 s45, s45, {self.cu0}")
            A("v_mov_b32 v13, s45")
            A(f"ds_write_b32 v10, v13 offset:{RK}")
        elif self.cfin:
            A(f"v_mov_b32 v13, {self.cfin}" if self.cfin > 8 else f"v_add_u32 v13, {self.cfin}, v10")
            if self.cfin <= 8:
                A("v_add_u32 v13, s45, v13")
            A(f"ds_write_b32 v10, v13 offset:{RK}")
        A("s_mov_b64 exec, -1")
        A("L_noctl:")

    BB = 128
    def burst(self):
        A, C = self.A, self.C
        BB = self.BB
        A("L_burst:")
        if self.wk == 1:
            A("s_mov_b64 exec, -1")
        C("this WG projects batch row s92 onto the columns 32 s93..; wave w holds the wo rows of the heads 4w..")
        A("s_bfe_u32 s92, s2, 0x20005")
        A("s_bfe_u32 s93, s2, 0x20003"); A("s_and_b32 s42, s2, 6"); A("s_lshl1_add_u32 s93, s42, s93")
        C("row 64(kk>>1) + 4(kk&1) + 8(c>>2) + 32((e>>1)&1) + 2(e>>2) + (e&1), columns 8(c&3)..")
        A("v_and_b32 v1, 0x2c, v0"); A("v_lshlrev_b32 v1, 11, v1")
        A("v_and_b32 v62, 16, v0"); A("v_lshl_add_u32 v1, v62, 8, v1")
        A("v_and_b32 v63, 3, v0"); A("v_lshl_add_u32 v1, v63, 4, v1")
        A("s_lshl_b32 s28, s3, 19"); A("s_lshl_b32 s42, s93, 6"); A("s_add_u32 s28, s28, s42")
        A("s_add_u32 s29, s28, 0x8000")
        A(f"s_mov_b32 s26, {0 if 'wo' in self.skip else 0x400000:#x}"); A("s_mov_b32 s27, 0x20000")
        A("s_mov_b32 s48, 0x05040100"); A("s_mov_b32 s49, 0x07060302")
        A("s_mov_b64 s[100:101], -1")
        A("s_barrier")
        self.stamp(10)
        stage = [[BB + 64 + 4 * e for e in range(8)], [BB + 96 + 4 * e for e in range(8)], [96 + 4 * e for e in range(8)],
                 [16, 20, 24, 28, 32, 36, 48, 52]]
        for s in range(4):
            for e in range(8):
                r = stage[s][e]
                A(f"buffer_load_dwordx4 v[{r}:{r+3}], v1, s[24:27], s{28 + ((e >> 1) & 1)} offen offset:{(2*(e >> 2) + (e & 1))*1024}")
            if s < 3:
                A("s_add_u32 s28, s28, 0x20000"); A("s_add_u32 s29, s29, 0x20000")
        C("v62: record piece of lane (hh, kl, side, par, ch): O[b][4w + 2m + hh][side] + 16(8kl + 4par + ch)")
        A("s_lshl_b32 s42, s92, 14"); A("s_lshl_b32 s43, s3, 11"); A("s_add_u32 s42, s42, s43"); A(f"s_add_u32 s42, s42, {WS_O:#x}")
        A("v_lshl_add_u32 v62, v62, 3, s42")
        A("v_and_b32 v63, 0x27, v0"); A("v_lshl_add_u32 v62, v63, 4, v62")
        A("v_and_b32 v63, 8, v0"); A("v_lshl_add_u32 v62, v63, 5, v62")
        C("v63: 2:4 pattern of A row i: the first two of every four k for (i&4) == 0, else the last two")
        A("v_bfe_u32 v63, v0, 2, 1")
        A("v_mul_u32_u24 v63, 0xaaaa, v63")
        A("v_add_u32 v63, 0x4444, v63")
        for s in range(4):
            A(f"s_waitcnt vmcnt({24 - 8*s})")
            if s == 3 and self.b2:
                A("s_barrier")
            self.slabperm(BB + 64 * (s >> 1) + 4 * (s & 1), stage[s], 8)
        A("s_cmp_lt_u32 s3, 4")
        A("s_cbranch_scc1 L_nobu")

    def project(self):
        A, C = self.A, self.C
        BB, LR, D, T = self.BB, 40, 64, 96
        def ld(m):
            A(f"global_load_dwordx4 v[{LR+4*m}:{LR+4*m+3}], v62, s[40:41] offset:{1024*m} sc1")
        def chk(m):
            r = LR + 4 * m
            A(f"v_max3_u32 v13, v{r}, v{r+1}, v{r+2}")
            A(f"v_max_u32 v13, v13, v{r+3}")
            A("v_cmp_eq_u32 vcc, -1, v13")
        def f1(q, bk):
            d = D + 4 * (q + 4 * (bk >> 1))
            A(f"v_add_f32_dpp v{T+q}, v{d + (bk ^ 2)}, v{d + bk} row_ror:8 row_mask:0xf bank_mask:{1 << bk:#x}")
        def mf(m, last):
            if self.fine:
                A(f"s_memrealtime s[{16+2*m}:{17+2*m}]")
            for k in range(8):
                a = (k >> 1) + 4 * (k & 1)
                d, b = D + 4 * a, BB + 64 * m + 8 * a
                A(f"v_smfmac_f32_16x16x64_bf16 v[{d}:{d+3}], v[{LR+4*m}:{LR+4*m+3}], v[{b}:{b+7}], v63")
                if last and k >= 3:
                    for bk in range(2):
                        f1((k - 3) >> 1, 2 * ((k - 3) & 1) + bk)
        def tight(m):
            A(f"L_t{m}:")
            ld(m)
            A("s_sub_u32 s55, s55, 1")
            A(f"s_cbranch_scc1 L_f{m}")
            A(f"s_waitcnt vmcnt({self.pd1-1})")
            chk(m)
            A(f"s_cbranch_vccnz L_t{m}")
            A(f"L_f{m}:")
        A("L_proj:")
        self.stamp(12)
        C("the records of two pairs of heads are re-read until they are complete; several reads are kept in flight")
        for i in range(0, 8, 2):
            A(f"v_mov_b64 v[{LR+i}:{LR+i+1}], -1")
        ld(0); ld(1)
        for i in range(0, 32, 2):
            A(f"v_mov_b64 v[{D+i}:{D+i+1}], 0")
        C("v26: slot of this lane's sum: column 8(l&3) + 2((l>>2)&3) + (l>>5), wave, (l>>4)&1")
        A("v_and_b32 v26, 3, v0"); A("v_bfe_u32 v27, v0, 2, 2"); A("v_lshl_add_u32 v26, v26, 2, v27")
        A("v_bfe_u32 v27, v0, 5, 1"); A("v_lshl_add_u32 v26, v26, 1, v27")
        A(f"v_mul_u32_u24 v26, {FAS}, v26")
        A("v_bfe_u32 v27, v0, 4, 1"); A("v_lshl_add_u32 v26, v27, 2, v26")
        A("v_lshl_add_u32 v26, s3, 3, v26")
        A("v_bfe_u32 v28, v0, 1, 5")
        A(f"v_mul_u32_u24 v27, {FAS}, v28")
        A("v_and_b32 v29, 1, v0"); A("v_lshl_add_u32 v27, v29, 5, v27")
        A("s_lshl4_add_u32 s42, s92, s93"); A("s_lshl_b32 s42, s42, 6")
        A("v_lshl_add_u32 v29, v28, 1, s42")
        A("v_lshlrev_b32 v28, 3, v28")
        A("v_and_b32 v30, 63, v0"); A("v_lshlrev_b32 v30, 2, v30")
        A("v_mov_b32 v31, 1")
        A(f"s_mov_b32 s55, {SPIN_MAX*8}")
        A("s_mov_b64 exec, s[100:101]")
        A("L_two:")
        for m in range(2):
            A(f"s_waitcnt vmcnt({self.pd-1})")
            chk(m)
            A(f"s_cbranch_vccz L_h{m}")
            ld(m)
        A("s_sub_u32 s55, s55, 1")
        A("s_cbranch_scc0 L_two")
        A("L_h1:")
        mf(1, False)
        chk(0)
        A("s_cbranch_vccz L_f0")
        tight(0)
        mf(0, True)
        A("s_branch L_fold")
        A("L_h0:")
        mf(0, False)
        chk(1)
        A("s_cbranch_vccz L_f1")
        tight(1)
        mf(1, True)
        A("L_fold:")
        self.stamp(13)
        C("D row 4g + ch is valid in the lanes with (l>>2)&3 == ch")
        for q in range(2):
            A(f"v_add_f32_dpp v{T+4+q}, v{T+q}, v{T+q} row_shl:4 row_mask:0xf bank_mask:0x5")
        for q, bk in ((2, 2), (2, 3), (3, 0), (3, 1), (3, 2), (3, 3)):
            f1(q, bk)
        A(f"v_add_f32_dpp v{T+4}, v{T+2}, v{T+2} row_shr:4 row_mask:0xf bank_mask:0xa")
        A("s_nop 0")
        A(f"v_add_f32_dpp v{T+5}, v{T+3}, v{T+3} row_shr:4 row_mask:0xf bank_mask:0xa")
        A("s_nop 1")
        A(f"v_permlane32_swap_b32 v{T+4}, v{T+5}")
        A(f"v_add_f32 v{T+4}, v{T+4}, v{T+5}")
        A(f"ds_write_b32 v26, v{T+4} offset:{FA}")
        A(f"ds_add_rtn_u32 v31, v30, v31 offset:{FC}")
        A(f"ds_read_b128 v[{T+8}:{T+11}], v27 offset:{FA}")
        A(f"ds_read_b128 v[{T+12}:{T+15}], v27 offset:{FA+16}")
        A(f"ds_read_b64 v[{T+6}:{T+7}], v28 offset:{GX}")
        A("s_waitcnt lgkmcnt(2)")
        A(f"v_pk_add_f32 v[{T+8}:{T+9}], v[{T+8}:{T+9}], v[{T+10}:{T+11}]")
        A("s_waitcnt lgkmcnt(1)")
        A(f"v_pk_add_f32 v[{T+12}:{T+13}], v[{T+12}:{T+13}], v[{T+14}:{T+15}]")
        A(f"v_pk_add_f32 v[{T+8}:{T+9}], v[{T+8}:{T+9}], v[{T+12}:{T+13}]")
        A(f"v_add_f32 v{T}, v{T+8}, v{T+9}")
        A("s_waitcnt lgkmcnt(0)")
        A("s_nop 0")
        A(f"v_add_f32_dpp v{T}, v{T}, v{T} quad_perm:[1,0,3,2] row_mask:0xf bank_mask:0xf")
        A("v_cmpx_eq_u32 vcc, 7, v31")
        self.rnd(T, T)
        A(f"v_mul_f32 v{T}, v{T}, v{T+6}")
        self.rnd(T, T)
        A(f"v_add_f32 v{T}, v{T}, v{T+7}")
        A(f"v_cvt_pk_bf16_f32 v{T}, v{T}, 0")
        A(f"global_store_short v29, v{T}, s[36:37] {self.ofl}".rstrip())
        if self.ack:
            A("s_waitcnt vmcnt(0)")
        self.stamp(9)
        if self.dry:
            A("s_cmp_gt_u32 s94, 1")
            A("s_cbranch_scc1 L_dry")
        if self.eb != 4:
            A(f"s_cmp_lg_u32 s2, {254 + self.cpar}")
            A("s_cbranch_scc1 L_nobump")
            A("s_and_b64 exec, exec, 1")
            A("s_cbranch_scc0 L_nobump")
            C("every reader of the tag word is done by now (this wave has seen data that depends on all of them)")
            A(f"ds_read_b32 v13, v30 offset:{TAGL}")
            A(f"v_mov_b32 v12, {WS_EP:#x}")
            A("s_waitcnt lgkmcnt(0)")
            if self.eb == 2:
                A("v_readfirstlane_b32 s42, v13"); A("s_mov_b64 exec, -1")
                A("v_mov_b32 v13, s42"); A(f"v_add_u32 v12, {WS_EP:#x}, v30")
            if self.eb != 1:
                A("global_store_dword v12, v13, s[40:41]" + (" sc1" if self.eb != 3 else ""))
            A("L_nobump:")
        if self.diag:
            A("s_mov_b64 exec, -1")
        if self.fine:
            A("s_sleep 127"); A("s_sleep 127")
            A("s_waitcnt lgkmcnt(0)")
            A("s_lshl3_add_u32 s42, s2, s3"); A("s_lshl_b32 s42, s42, 4"); A(f"s_add_u32 s42, s42, {WS_DIAG + 0x100000:#x}")
            A("v_mov_b32 v12, s42")
            for m in range(2):
                A(f"v_mov_b32 v16, s{16+2*m}"); A(f"v_mov_b32 v17, s{17+2*m}")
                A(f"global_store_dwordx2 v12, v[16:17], s[40:41] offset:{8*m}")

    def helper(self):
        A, C = self.A, self.C
        mf = self.mflags
        RA, RD = 16, 32
        RB = 64
        ST = 192
        T = 224
        A("L_helper:")
        C("===== helper waves =====")
        A("s_sub_u32 s7, s3, 4")
        A("v_bfe_u32 v3, v0, 4, 2")
        A("v_and_b32 v4, 63, v0")
        A("s_bfe_u32 s4, s59, 0x50001")
        A("s_lshr_b32 s5, s2, 6")
        A("s_mov_b32 s48, 0x05040100"); A("s_mov_b32 s49, 0x07060302")
        A("v_lshlrev_b32 v6, 4, v4")
        A("v_mov_b32 v10, 0"); A("v_mov_b32 v62, 0")
        A("v_mov_b32 v15, 0xffffff00")
        A("s_mov_b32 s11, 0x20000"); A("s_mov_b32 s15, 0x20000")
        C("s62 = MLP unit of this WG (>= NUNIT: none)")
        A("s_lshr_b32 s62, s2, 1")
        A("s_and_b32 s42, s2, 1"); A(f"s_cmp_eq_u32 s42, {self.mpar}")
        A("s_cselect_b32 s62, s62, 255")
        A("s_cmp_ge_u32 s7, 2")
        A("s_cbranch_scc1 L_pf" if self.ep > 1 else "s_cbranch_scc1 L_nofront")
        A("s_cmp_eq_u32 s7, 0")
        A("s_cbranch_scc1 L_front")
        if self.ep:
            A(f"s_cmp_lt_u32 s62, {NUNIT}")
            A("s_cbranch_scc1 L_front")
            A("s_barrier")
            A("s_branch L_nofront")
        else:
            A(f"s_cmp_ge_u32 s62, {NUNIT}")
            A("s_cbranch_scc1 L_nofront")
        A("L_front:")
        A(f"s_setprio {self.fprio}")
        if self.fh == 1:
            C("front units, 128 rows x 64 cols for all 4 batch rows. helper 0: wq rows 128b.., cols 64(2h+side)..")
            C("helper 1: w1 rows 128(u&3).., cols 64(u>>2)..  Lanes c<8 / c>=8 hold different 32-row blocks.")
            A("s_and_b32 s42, s59, 63"); A("s_and_b32 s43, s62, 3")
            A("s_lshr_b32 s44, s62, 2")
            A("s_mov_b32 s51, 3584")
            A("s_cmp_eq_u32 s7, 0")
            A("s_cselect_b32 s53, s5, s43")
            A("s_cselect_b32 s44, s42, s44")
            A("s_cselect_b32 s51, 8192, s51")
            A("s_lshl_b32 s10, s51, 9")
            A("s_mul_i32 s52, s51, 57")
            A("s_mul_i32 s50, s53, s51"); A("s_add_u32 s50, s50, s44"); A("s_lshl_b32 s50, s50, 7")
            A("s_lshl_b32 s42, s51, 3")
            A("v_lshrrev_b32 v12, 3, v2"); A("v_lshl_add_u32 v5, v12, 2, v3")
            A("v_mul_u32_u24 v5, s42, v5")
            A("v_and_b32 v12, 7, v2")
            A("v_lshl_add_u32 v5, v12, 4, v5")
        else:
            C("front units, 256 rows x 32 cols for all 4 batch rows. helper 0: wq rows 256(b>>1).., cols 32(4h + 2 side + (b&1))..")
            C("helper 1: w1 rows 256(u&1).., cols 32(4(u>>3) + (u&2) + ((u>>2)&1))..  The lane quads hold different 32-row blocks.")
            A("s_and_b32 s42, s59, 1"); A("s_and_b32 s61, s5, 1"); A("s_lshl1_add_u32 s61, s42, s61")
            A("s_lshl2_add_u32 s42, s4, s61")
            A("s_lshr_b32 s44, s62, 3"); A("s_and_b32 s43, s62, 2"); A("s_lshl2_add_u32 s44, s44, s43")
            A("s_bfe_u32 s43, s62, 0x10002"); A("s_add_u32 s44, s44, s43")
            A("s_and_b32 s43, s62, 1"); A("s_lshr_b32 s53, s5, 1")
            A("s_mov_b32 s51, 3584")
            A("s_cmp_eq_u32 s7, 0")
            A("s_cselect_b32 s53, s53, s43")
            A("s_cselect_b32 s60, s42, s44")
            A("s_cselect_b32 s51, 8192, s51")
            A("s_lshl_b32 s10, s51, 9")
            A("s_mul_i32 s52, s51, 121")
            A("s_mul_i32 s50, s53, s51"); A("s_lshl2_add_u32 s50, s50, s60"); A("s_lshl_b32 s50, s50, 6")
            A("s_lshl_b32 s42, s51, 3")
            A("v_and_b32 v12, 12, v2"); A("v_add_u32 v5, v12, v3")
            A("v_mul_u32_u24 v5, s42, v5")
            A("v_and_b32 v12, 3, v2")
            A("v_lshl_add_u32 v5, v12, 4, v5")
        A("v_lshlrev_b32 v12, 10, v3")
        A("v_lshl_add_u32 v12, v2, 4, v12")
        A("s_cmp_eq_u32 s7, 0")
        A("s_waitcnt lgkmcnt(0)")
        self.stamp(6)
        for t in range(4):
            A(f"global_load_dwordx4 v[{RB+32+4*t}:{RB+35+4*t}], v12, s[16:17] offset:{256*t}")
        C("the word the previous launch left only serves to pick a tag that differs from that launch's")
        A(f"s_load_dword s63, s[40:41], {WS_EP:#x}")
        A("s_cselect_b32 s8, s22, s28"); A("s_cselect_b32 s9, s23, s29")
        self.slabload(RB + 96, "s[8:11]", 5, "s51", mf, last_inc="s52")
        self.slabload(ST, "s[8:11]", 5, "s51", mf)
        self.stamp(7)
        if self.ep == 3:
            A("s_branch L_f2"); self.pf(); A("L_f2:")
        if self.wf:
            A("s_barrier")
        A("s_lshl_b32 s42, s7, 12")
        A("v_add_u32 v12, s42, v12")
        A("v_lshrrev_b32 v13, 2, v2")
        A("v_lshlrev_b32 v13, 10, v13")
        A("v_lshl_add_u32 v13, v3, 4, v13")
        C("A operand: rows[i>>2][unit rows: slab n, 32-row block from the low bits of i, 8kk]")
        A(f"v_and_b32 v14, {(1<<self.fh)-1}, v2"); A("v_lshl_add_u32 v13, v14, 6, v13")
        A(f"s_lshl_b32 s43, s53, {7+self.fh}"); A("s_add_u32 s42, s42, s43")
        A("v_add_u32 v13, s42, v13")
        A("s_mov_b32 s54, s7")
        A("s_waitcnt vmcnt(16)")
        self.stamp(1)
        A("L_ln:")
        self.unpack(RB, RB + 32, 16)
        self.layernorm(RB, 32, T, RB + 32, unpack_after=False)
        A("s_sub_u32 s54, s54, 1")
        A("s_cbranch_scc0 L_ln")
        for t in range(4):
            A(f"ds_write_b128 v12, v[{RB+32+4*t}:{RB+35+4*t}] offset:{XN + 256*t}")
        A("s_waitcnt vmcnt(8)")
        self.slabperm(RB + 64, RB + 96)
        A("s_waitcnt lgkmcnt(0)")
        A(f"ds_read_b128 v[{RA}:{RA+3}], v13 offset:{XN}")
        A(f"ds_read_b128 v[{RA+4}:{RA+7}], v13 offset:{XN+(64<<self.fh)}")
        A("s_add_u32 s63, s63, 0x61c88647")
        self.set_tag()
        A("s_waitcnt vmcnt(0)")
        self.stamp(8)
        self.slabperm(RB + 96, ST)
        A("s_waitcnt lgkmcnt(0)")
        self.slabmfma(RD, RA, RB + 64, True)
        self.slabmfma(RD, RA + 4, RB + 96, False)
        A("s_cmp_eq_u32 s7, 0")
        A("s_cbranch_scc1 L_qaddr")
        if self.fh == 1:
            C("U[u][n=(c>>2)&1][half=c>>3][b=kk][c&3][4]")
            A("s_lshl_b32 s42, s62, 10"); A(f"s_add_u32 s42, s42, {WS_U:#x}")
            A("v_bfe_u32 v12, v2, 2, 1"); A("v_lshlrev_b32 v12, 9, v12")
            A("v_lshrrev_b32 v13, 3, v2"); A("v_lshl_add_u32 v12, v13, 8, v12")
            A("v_lshl_add_u32 v12, v3, 6, v12")
            A("v_and_b32 v13, 3, v2"); A("v_lshl_add_u32 v12, v13, 4, v12")
            A("s_branch L_fst")
            A("L_qaddr:")
            C("Q[h][b=kk][row block][side][c&7][c>>3][4]")
            A("s_lshl_b32 s42, s4, 13"); A("s_lshl_b32 s43, s53, 9"); A("s_add_u32 s42, s42, s43")
            A("s_and_b32 s43, s59, 1"); A("s_lshl_b32 s43, s43, 8"); A("s_add_u32 s42, s42, s43")
            A(f"s_add_u32 s42, s42, {WS_Q:#x}")
            A("v_lshlrev_b32 v12, 11, v3")
            A("v_and_b32 v13, 7, v2"); A("v_lshl_add_u32 v12, v13, 5, v12")
            A("v_lshrrev_b32 v13, 3, v2"); A("v_lshl_add_u32 v12, v13, 4, v12")
        else:
            C("U[col block][row block][half=c>>3][b=kk][c&3][4]")
            A("s_lshl1_add_u32 s42, s60, s53"); A("s_lshl_b32 s42, s42, 9"); A(f"s_add_u32 s42, s42, {WS_U:#x}")
            A("v_lshrrev_b32 v12, 3, v2"); A("v_lshlrev_b32 v12, 8, v12")
            A("v_lshl_add_u32 v12, v3, 6, v12")
            A("v_and_b32 v13, 3, v2"); A("v_lshl_add_u32 v12, v13, 4, v12")
            A("s_branch L_fst")
            A("L_qaddr:")
            C("Q[h][b=kk][row block][col quarter][c&3][c>>3][4]")
            A("s_lshl_b32 s42, s4, 12"); A("s_lshl_b32 s43, s53, 9"); A("s_add_u32 s42, s42, s43")
            A("s_lshl_b32 s43, s61, 7"); A("s_add_u32 s42, s42, s43")
            A(f"s_add_u32 s42, s42, {WS_Q:#x}")
            A("v_lshlrev_b32 v12, 10, v3")
            A("v_and_b32 v13, 3, v2"); A("v_lshl_add_u32 v12, v13, 5, v12")
            A("v_lshrrev_b32 v13, 3, v2"); A("v_lshl_add_u32 v12, v13, 4, v12")
        A("L_fst:")
        A("v_add_u32 v12, s42, v12")
        self.fold(T, RD)
        A(f"global_store_dwordx4 v12, v[{T}:{T+3}], s[40:41] sc1")
        A("s_mov_b64 exec, -1")
        self.stamp(2)
        A("s_cmp_lg_u32 s7, 0")
        A("s_cbranch_scc1 L_fdone")
        C("helper 0: gather the partials of q[b][h], LDS init")
        A(f"s_lshl_b32 s42, s4, {14-self.fh}"); A(f"s_lshl_b32 s43, s5, {12-self.fh}"); A("s_add_u32 s42, s42, s43")
        A(f"s_add_u32 s42, s42, {WS_Q:#x}")
        A("v_add_u32 v12, s42, v6")
        A("v_lshlrev_b32 v8, 2, v4")
        A("v_mov_b32 v9, -1")
        A(f"ds_write_b32 v8, v9 offset:{MLM}")
        A("v_mov_b32 v9, s63")
        A(f"ds_write_b32 v10, v9 offset:{TAGL}")
        A(f"ds_write_b32 v8, v10 offset:{PRG}")
        A(f"ds_write2st64_b32 v8, v10, v10 offset0:{OC//256} offset1:{FC//256}")
        if self.ctl:
            if self.kctl:
                self.is_cons()
                A(f"s_cselect_b32 s42, {self.cuc}, {self.cu0}"); A("v_mov_b32 v9, s42")
            else:
                A(f"v_mov_b32 v9, {self.cu0}")
            A(f"ds_write_b32 v10, v9 offset:{RK}")
        A("v_and_b32 v9, 31, v4"); A("v_lshlrev_b32 v9, 3, v9")
        C("the partners publish at about the same time: look once the own stores are acknowledged")
        A("s_waitcnt vmcnt(0)")
        self.spin_begin("L_sp_q")
        NQ = 4 >> self.fh
        for t in range(NQ):
            A(f"global_load_dwordx4 v[{RD+4*t}:{RD+4*t+3}], v12, s[40:41] offset:{1024*t} sc1")
        A("s_waitcnt vmcnt(0)")
        self.chk(13, RD, 4 * NQ)
        self.chk_branch(13, "L_sp_q", self.qsleep)
        for d in range(4 if NQ > 1 else 0):
            A(f"v_add_f32 v{RD+d}, v{RD+d}, v{RD+4+d}")
        for d in range(4):
            A(f"v_mov_b32 v{RD+4+d}, v{RD+d}")
        A("s_nop 1")
        for d in range(4):
            A(f"v_permlane32_swap_b32 v{RD+d}, v{RD+4+d}")
        for d in range(4):
            A(f"v_add_f32 v{RD+d}, v{RD+d}, v{RD+4+d}")
        for d in range(2):
            A(f"v_cvt_pk_bf16_f32 v{RD+d}, v{RD+2*d}, v{RD+2*d+1}")
        A(f"ds_write_b64 v9, v[{RD}:{RD+1}] offset:{QP}")
        A("L_fdone:")
        A("s_setprio 0")
        if self.wf:
            A("s_waitcnt lgkmcnt(0)")
            self.stamp(3)
            A("s_branch L_b1")
        A("L_nofront:")
        A("s_waitcnt lgkmcnt(0)")
        self.stamp(3)
        A("s_cmp_lg_u32 s7, 2")
        A("s_cbranch_scc1 L_noclr")
        C("helper 2 marks this WG's output record empty; nobody looks at it before this WG's softmax record is there")
        A("s_lshl_b32 s42, s59, 8"); A(f"s_add_u32 s42, s42, {WS_O:#x}")
        A("v_lshl_add_u32 v12, v4, 2, s42")
        A("v_mov_b32 v13, -1")
        A("global_store_dword v12, v13, s[40:41] sc1")
        A("L_noclr:")
        def prefetch():
            C("helpers 2 and 3 pull a part of the wo columns that the WGs of this class project with towards the L2")
            A("s_and_b32 s42, s2, 1"); A("s_lshl1_add_u32 s42, s7, s42"); A("s_and_b32 s42, s42, 5")
            A(f"s_cmp_lg_u32 s42, {4 | self.cpar}")
            A(f"s_cbranch_scc1 {'L_pre2' if self.w2f else 'L_nopre'}")
            A("v_lshlrev_b32 v5, 4, v2"); A("v_lshl_or_b32 v5, v3, 14, v5")
            A("s_lshr_b32 s50, s2, 3"); A("s_lshl1_add_u32 s50, s50, s7"); A("s_sub_u32 s50, s50, 2"); A("s_lshl_b32 s50, s50, 16")
            A("s_and_b32 s42, s2, 6"); A("s_lshl_b32 s42, s42, 7"); A("s_add_u32 s50, s50, s42")
            A("s_mov_b32 s26, 0x400000"); A("s_mov_b32 s27, 0x20000")
            A("s_mov_b32 s54, 3")
            self.stamp(6)
            A("L_pre:")
            for n in range(4):
                A(f"buffer_load_dwordx4 v[{ST}:{ST+3}], v5, s[24:27], s50 offen offset:{n*1024}")
                A(f"s_waitcnt vmcnt({self.wpre-1})")
            A("s_add_u32 s50, s50, 0x1000")
            A("s_sub_u32 s54, s54, 1")
            A("s_cbranch_scc0 L_pre")
            self.stamp(2)
            if self.fh == 1:
                A("s_branch L_nopre")
                A("L_pre2:")
                A("s_cmp_lg_u32 s7, 3")
                A("s_cbranch_scc1 L_nopre")
                A(f"s_cmp_ge_u32 s62, {NUNIT}")
                A("s_cbranch_scc1 L_nopre")
                C("helper 3: MLP stage 2 unit: r = u>>3 (hidden rows 128r..), cq = u&7 (cols 64cq..)")
                A("s_lshr_b32 s60, s62, 3"); A("s_and_b32 s61, s62, 7")
                A("s_lshl_b32 s50, s60, 17"); A("s_lshl_b32 s43, s61, 7"); A("s_add_u32 s50, s50, s43")
                A("v_lshrrev_b32 v12, 3, v2"); A("v_lshl_add_u32 v14, v12, 2, v3"); A("v_lshlrev_b32 v14, 13, v14")
                A("v_and_b32 v12, 7, v2"); A("v_lshl_add_u32 v14, v12, 4, v14")
                A("s_mov_b32 s12, s32"); A("s_mov_b32 s13, s33"); A(f"s_mov_b32 s14, {1792*1024}")
                self.stamp(6)
                self.slabload(ST, "s[12:15]", 14, 1024, mf, last_inc=57 * 1024)
                self.slabload(RD, "s[12:15]", 14, 1024, mf)
            elif self.w2f:
                A("s_branch L_nopre")
                A("L_pre2:")
                C("in the other WGs they do the same for w2: 128 bytes at 128((wg>>1)&3) and 512 further of 56 rows")
                A(f"s_cmp_lg_u32 s42, {4 | self.mpar}")
                A("s_cbranch_scc1 L_nopre")
                A("v_and_b32 v5, 7, v4"); A("v_lshlrev_b32 v5, 4, v5"); A("v_lshrrev_b32 v12, 3, v4"); A("v_lshl_or_b32 v5, v12, 9, v5")
                A("s_lshr_b32 s50, s2, 3"); A("s_lshl1_add_u32 s50, s50, s7"); A("s_sub_u32 s50, s50, 2"); A(f"s_mul_i32 s50, s50, {28*1024}")
                A("s_and_b32 s42, s2, 6"); A("s_lshl_b32 s42, s42, 6"); A("s_add_u32 s50, s50, s42")
                A("s_mov_b32 s12, s32"); A("s_mov_b32 s13, s33"); A(f"s_mov_b32 s14, {1792*1024}")
                self.stamp(6)
                for n in range(7):
                    A(f"buffer_load_dwordx4 v[{ST}:{ST+3}], v5, s[12:15], s50 offen")
                    A(f"s_waitcnt vmcnt({self.wpre-1})")
                    A("s_add_u32 s50, s50, 0x1000")
            A("L_nopre:")
        def walk(lab):
            A("s_cmp_lg_u32 s7, 3")
            A("s_cbranch_scc1 L_back")
            C("helper 3 walks through the loops of the stream waves with no lane active and empty descriptors: instruction cache")
            A("s_mov_b64 s[8:9], s[24:25]"); A("s_mov_b64 s[12:13], s[24:25]")
            A("s_mov_b32 s10, 0"); A("s_mov_b32 s14, 0"); A("s_mov_b64 s[46:47], s[10:11]")
            for r in (5, 21, 57, 58):
                A(f"v_mov_b32 v{r}, 0")
            A("s_mov_b32 s4, 6"); A("s_mov_b32 s5, 2"); A("s_mov_b32 s54, 8"); A("s_mov_b32 s60, 0"); A("s_mov_b32 s94, 0")
            A("s_mov_b64 exec, 0")
            A(f"s_branch {lab}")
            A("L_back:")
        if self.wpre and not self.wlate and not self.ep:
            prefetch()
        if self.wf:
            if not self.ep:
                self.stamp(7)
                A("s_barrier")
            if self.diag:
                A("s_waitcnt vmcnt(0)")
                self.stamp(8)
            if self.wk == 1:
                walk("L_walk")
            A("L_b1:")
        self.is_cons()
        A("s_barrier")
        if self.wk == 2:
            walk("L_soft")
            self.is_cons()
        if self.wpre and self.wlate:
            prefetch()
        A(f"ds_read_b32 v13, v10 offset:{TAGL}")
        A("s_waitcnt lgkmcnt(0)")
        A("v_readfirstlane_b32 s63, v13")
        self.set_tag()
        if self.dw:
            A("s_cmp_lg_u32 s7, 3")
            A("s_cbranch_scc1 L_nodw")
            A("s_lshl_b32 s42, s59, 12"); A("s_add_u32 s42, s42, 0x400000")
            A("v_add_u32 v12, s42, v6")
            for k in range(self.dw):
                if self.dwr:
                    A(f"global_load_dwordx4 v[16:19], v12, s[40:41] offset:{1024*k} {self.dwf}")
                else:
                    A(f"global_store_dwordx4 v12, v[16:19], s[40:41] offset:{1024*k} {self.dwf}")
                A("s_waitcnt vmcnt(0)")
            A("L_nodw:")
        if self.vt:
            A("s_cmp_lg_u32 s7, 3")
            A("s_cbranch_scc1 L_novt")
            C("(value unused: the address translations of this head's values are fetched ahead)")
            A("s_and_b32 s42, s59, 0xfe"); A("s_lshl_b32 s42, s42, 19")
            A(f"v_lshl_add_u32 v12, v4, {self.vt}, s42")
            A(f"s_mov_b64 exec, {(1 << (1 << (20 - self.vt))) - 1:#x}")
            A("global_load_dword v13, v12, s[20:21]")
            A("s_mov_b64 exec, -1")
            A("s_waitcnt vmcnt(0)")
            A("L_novt:")
        A(f"s_cmp_lg_u32 s7, {3 if self.fh == 1 else 1}")
        A("s_cbranch_scc1 L_not1")
        A(f"s_cmp_ge_u32 s62, {NUNIT}")
        A("s_cbranch_scc1 L_not1")
        if self.fh == 1:
            pass
        else:
            C("stage 2 unit: r = u>>4 (hidden rows 256r..), cq = (u&8) + 2(u&3) + ((u>>2)&1) (cols 32cq..)")
            A("s_lshr_b32 s60, s62, 4"); A("s_and_b32 s61, s62, 3"); A("s_and_b32 s43, s62, 8"); A("s_lshl1_add_u32 s61, s61, s43")
            A("s_bfe_u32 s43, s62, 0x10002"); A("s_add_u32 s61, s61, s43")
            A("s_lshl_b32 s50, s60, 18"); A("s_lshl_b32 s43, s61, 6"); A("s_add_u32 s50, s50, s43")
            A("v_and_b32 v12, 12, v2"); A("v_add_u32 v14, v12, v3"); A("v_lshlrev_b32 v14, 13, v14")
            A("v_and_b32 v12, 3, v2"); A("v_lshl_add_u32 v14, v12, 4, v14")
            A("s_mov_b32 s12, s32"); A("s_mov_b32 s13, s33"); A(f"s_mov_b32 s14, {1792*1024}")
            self.slabload(ST, "s[12:15]", 14, 1024, mf, last_inc=121 * 1024, pace=self.w2p)
            self.slabload(RD, "s[12:15]", 14, 1024, mf, pace=self.w2p, cont=True)
        A(f"s_lshl_b32 s43, s60, {7+self.fh}")
        A("v_lshlrev_b32 v13, 4, v3")
        A(f"v_and_b32 v12, {(1<<self.fh)-1}, v2"); A("v_lshl_add_u32 v13, v12, 6, v13")
        A("v_add_u32 v13, s43, v13")
        A(f"global_load_dwordx4 v[{T+16}:{T+19}], v13, s[30:31]")
        A(f"global_load_dwordx4 v[{T+20}:{T+23}], v13, s[30:31] offset:{64<<self.fh}")
        UU, W, BB = RB + 64, RB + 80, RB + 112
        C("U[4(2r+n) + 2t + ((c>>1)&1)][c&1][half][b=c>>2][kk][4]" if self.fh == 1 else "U[8r + 4n + (c&3)][t][half][b=c>>2][kk][4]")
        A("v_and_b32 v12, 3, v2"); A(f"v_lshlrev_b32 v12, {8+self.fh}, v12")
        A("v_lshrrev_b32 v13, 2, v2"); A("v_lshl_add_u32 v12, v13, 6, v12")
        A("v_lshl_add_u32 v12, v3, 4, v12")
        A("s_lshl_b32 s42, s60, 13")
        A(f"s_add_u32 s42, s42, {WS_U:#x}")
        A(f"v_add_u32 v{T}, s42, v12")
        A(f"v_add_u32 v{T+1}, 0x1000, v{T}")
        lds_ = [(UU + 16*t + 8*n + 4*hf, T + n, (2048 if self.fh == 1 else 512)*t + 256*hf) for t in range(2) for n in range(2) for hf in range(2)]
        self.spin_begin("L_sp_u")
        for r, v, o in lds_:
            A(f"global_load_dwordx4 v[{r}:{r+3}], v{v}, s[40:41] offset:{o} sc1")
        A("s_waitcnt vmcnt(0)")
        self.chk(13, UU, 32)
        self.chk_branch(13, "L_sp_u", 32)
        self.unpack(BB, T + 16, 8)
        for i in range(16):
            A(f"v_add_f32 v{UU+i}, v{UU+i}, v{UU+16+i}")
        for i in range(16 if self.fh == 1 else 0):
            A(f"v_add_f32_dpp v{UU+i}, v{UU+i}, v{UU+i} quad_perm:[2,3,0,1] row_mask:0xf bank_mask:0xf")
        for i in range(16):
            self.rnd(UU + i, UU + i)
        for i in range(16):
            A(f"v_add_f32 v{UU+i}, v{UU+i}, v{BB+i}")
        for i in range(16):
            self.rnd(UU + i, UU + i)
        C("gelu(tanh form) = u / (1 + exp(-2k(u + 0.044715 u^3)))")
        k2 = -2.0 * math.sqrt(2.0 / math.pi) * math.log2(math.e)
        A(f"s_mov_b32 s42, {f32(0.044715 * k2)}"); A(f"s_mov_b32 s43, {f32(k2)}")
        A("v_mov_b32 v12, s43")
        for i in range(16):
            A(f"v_mul_f32 v{W+i}, v{UU+i}, v{UU+i}")
        for i in range(16):
            A(f"v_fma_f32 v{W+i}, v{W+i}, s42, v12")
        for i in range(16):
            A(f"v_mul_f32 v{W+i}, v{W+i}, v{UU+i}")
        for i in range(16):
            A(f"v_exp_f32 v{W+i}, v{W+i}")
        for i in range(16):
            A(f"v_add_f32 v{W+i}, 1.0, v{W+i}")
        for i in range(16):
            A(f"v_rcp_f32 v{W+i}, v{W+i}")
        for i in range(16):
            A(f"v_mul_f32 v{UU+i}, v{UU+i}, v{W+i}")
        for d in range(8):
            A(f"v_cvt_pk_bf16_f32 v{RA+d}, v{UU+2*d}, v{UU+2*d+1}")
        self.slabperm(RB + 64, ST)
        self.slabperm(RB + 96, RD)
        self.slabmfma(RD, RA, RB + 64, True)
        self.slabmfma(RD, RA + 4, RB + 96, False)
        NZ = 28 >> self.fh
        C("Z[b=kk][32-column block][r][half=c>>3][c&3][4]")
        A(f"v_mul_u32_u24 v12, {16*NZ*128}, v3")
        if self.fh == 1:
            A("v_and_b32 v13, 4, v2"); A(f"v_mul_u32_u24 v13, {NZ*32}, v13"); A("v_add_u32 v12, v12, v13")
        A("v_lshrrev_b32 v13, 3, v2")
        A("v_lshl_add_u32 v12, v13, 6, v12")
        A("v_and_b32 v13, 3, v2")
        A("v_lshl_add_u32 v12, v13, 4, v12")
        A(f"s_mul_i32 s42, s61, {NZ*128*(2 if self.fh == 1 else 1)}"); A("s_lshl_b32 s43, s60, 7"); A("s_add_u32 s42, s42, s43")
        A(f"s_add_u32 s42, s42, {WS_Z:#x}")
        A("v_add_u32 v12, s42, v12")
        self.fold(T, RD)
        A(f"global_store_dwordx4 v12, v[{T}:{T+3}], s[40:41] sc1")
        A("s_mov_b64 exec, -1")
        A("L_not1:")
        A("s_cmp_eq_u32 s94, 0")
        A("s_cbranch_scc1 L_nowo")
        C("(empty descriptors: only the stream waves return to their loop from the code below)")
        A("s_mov_b64 s[8:9], s[24:25]"); A("s_mov_b64 s[12:13], s[24:25]")
        A("s_mov_b32 s10, 0"); A("s_mov_b32 s14, 0"); A("s_mov_b64 s[46:47], s[10:11]")
        A("v_mov_b32 v5, 0"); A("v_mov_b32 v58, 0")
        self.burst()
        A("L_nowo:")
        self.stamp(4)
        T = 96
        if self.ctl:
            self.control5()
        A("s_cmp_lg_u32 s7, 2")
        A("s_cbranch_scc1 L_nopub")
        C("helper 2: softmax bookkeeping with the other side of this head")
        A("v_lshlrev_b32 v12, 2, v2")
        self.spin_begin("L_sp_m")
        A(f"ds_read_b32 v14, v12 offset:{MLM}")
        A(f"ds_read_b32 v11, v12 offset:{MLL}")
        A("s_waitcnt lgkmcnt(0)")
        A("v_max_u32 v13, v14, v11")
        A("v_cmp_eq_u32 vcc, -1, v13")
        A("s_cbranch_vccz L_sp_m_done")
        self.spin_end("L_sp_m", 4)
        A("L_sp_m_done:")
        PW = T + 8
        A(f"ds_read_b128 v[{PW}:{PW+3}], v6 offset:{PL}")
        A(f"v_mov_b32 v{T}, v14")
        self.row_allreduce("max", T)
        A(f"v_sub_f32 v13, v14, v{T}")
        A("v_exp_f32 v13, v13")
        A(f"v_mov_b32 v{T+1}, s63"); A(f"v_mov_b32 v{T+3}, s63")
        A(f"v_mul_f32 v{T+2}, v13, v11")
        self.row_allreduce("add", T + 2)
        for k in range(self.mld):
            A("s_sleep 127")
        A(f"s_lshl_b32 s42, s59, {self.mls}"); A(f"s_add_u32 s42, s42, {WS_ML:#x}")
        A("v_mov_b32 v11, s42")
        A("s_mov_b64 exec, 1")
        A("s_waitcnt vmcnt(0)")
        A(f"global_store_dwordx4 v11, v[{T}:{T+3}], s[40:41] sc1")
        if self.mlp != 2:
            A("s_mov_b64 exec, -1")
        A(f"v_xor_b32 v11, {1 << self.mls:#x}, v11")
        self.spin_begin("L_sp_p")
        A(f"global_load_dwordx4 v[{T+4}:{T+7}], v11, s[40:41] sc1")
        A("s_waitcnt vmcnt(0)")
        A(f"v_xor_b32 v13, s63, v{T+5}")
        A(f"v_bitop3_b32 v13, v13, v{T+7}, s63 bitop3:0xf6")
        A("v_cmp_ne_u32 vcc, 0, v13")
        A("s_cbranch_vccz L_sp_p_done")
        self.spin_end("L_sp_p", self.psl)
        A("L_sp_p_done:")
        if self.mlp == 2:
            A(f"v_readfirstlane_b32 s42, v{T+4}"); A(f"v_readfirstlane_b32 s43, v{T+6}")
            A("s_mov_b64 exec, -1")
            A(f"v_mov_b32 v{T+4}, s42"); A(f"v_mov_b32 v{T+6}, s43")
        C("row factor exp(M_row - M_head) / L_head")
        A(f"v_max_f32 v{T+1}, v{T}, v{T+4}")
        A(f"v_sub_f32 v{T}, v{T}, v{T+1}"); A(f"v_sub_f32 v{T+4}, v{T+4}, v{T+1}"); A(f"v_sub_f32 v14, v14, v{T+1}")
        A(f"v_exp_f32 v{T}, v{T}"); A(f"v_exp_f32 v{T+4}, v{T+4}"); A("v_exp_f32 v14, v14")
        A(f"v_mul_f32 v{T+2}, v{T}, v{T+2}")
        A(f"v_fmac_f32 v{T+2}, v{T+4}, v{T+6}")
        A(f"v_rcp_f32 v{T+2}, v{T+2}")
        A("v_and_b32 v13, 0x3c, v4")
        A(f"v_mul_f32 v14, v14, v{T+2}")
        A("v_min_u32 v14, -2, v14")
        A(f"ds_write_b32 v12, v14 offset:{CFL}")
        A(f"ds_read_b32 v14, v13 offset:{CFL}")
        self.stamp(11)
        A("s_lshl_b32 s42, s59, 7"); A(f"s_add_u32 s42, s42, {WS_GH:#x}")
        A("v_mov_b32 v11, s42")
        A("v_xor_b32 v12, 0x80, v11")
        A("s_lshl_b32 s42, s59, 10"); A(f"s_add_u32 s42, s42, {WS_GP:#x}")
        A("v_add_u32 v9, s42, v6")
        A(f"v_mov_b32 v{T+1}, s63")
        A("s_waitcnt lgkmcnt(0)")
        for d in range(4):
            A(f"v_mul_f32 v{PW+d}, v14, v{PW+d}")
        self.tag4(PW)
        if self.xm == 2:
            A(f"global_store_dwordx4 v9, v[{PW}:{PW+3}], s[40:41] sc1")
            A("v_xor_b32 v9, 0x400, v9")
        ps = self.pstep
        def wait_prg(lab, slots, sleep):
            self.spin_begin(lab)
            A(f"ds_read_b32 v13, v10 offset:{PRG}")
            A("s_waitcnt lgkmcnt(0)")
            A("v_readfirstlane_b32 s42, v13")
            A(f"s_cmp_ge_u32 s42, {4*(slots+self.K0)//ps}")
            A(f"s_cbranch_scc1 {lab}_done")
            self.spin_end(lab, sleep)
            A(f"{lab}_done:")
        A("s_cmp_eq_u32 s94, 0")
        A("s_cbranch_scc1 L_sp_e_done")
        wait_prg("L_sp_w", self.xs - 16, 16)
        C("all output records of batch row s92 have been marked empty once their softmax records are there")
        A(f"s_lshl_b32 s42, s92, {self.mls + 6}"); A(f"s_add_u32 s42, s42, {WS_ML + 4:#x}")
        A(f"v_lshl_add_u32 v14, v6, {self.mls - 4}, s42")
        self.spin_begin("L_sp_e")
        A("global_load_dword v13, v14, s[40:41] sc1")
        A("s_waitcnt vmcnt(0)")
        A("v_cmp_ne_u32 vcc, s63, v13")
        A("s_cbranch_vccz L_sp_e_done")
        self.spin_end("L_sp_e", 16)
        A("L_sp_e_done:")
        wait_prg("L_sp_a", self.xs, 16)
        if self.xm == 2:
            self.spin_begin("L_sp_d")
            A(f"global_load_dwordx4 v[{PW}:{PW+3}], v9, s[40:41] sc1")
            A("s_waitcnt vmcnt(0)")
            self.chk(13, PW, 4)
            self.chk_branch(13, "L_sp_d", 8)
            A(f"ds_write_b128 v6, v[{PW}:{PW+3}] offset:{PL}")
            C("both sides note when they pass the checkpoint (or expect to, once the other one has); the later one hands")
            C("over slots in proportion to its lag")
            A("v_readfirstlane_b32 s46, v12")
            A("s_mov_b64 exec, 1")
            A("s_mov_b32 s47, 0")
            self.spin_begin("L_sp_b")
            A("s_load_dwordx2 s[42:43], s[40:41], s46 glc")
            A(f"ds_read_b32 v13, v10 offset:{PRG}")
            A("s_memrealtime s[44:45]")
            A("s_and_b32 s60, s55, 15")
            A("s_cbranch_scc1 L_nov")
            A(f"global_load_dword v{T}, v12, s[40:41] sc1")
            A("L_nov:")
            A("s_waitcnt lgkmcnt(0)")
            A("v_readfirstlane_b32 s45, v13")
            A("s_xor_b32 s43, s43, s42")
            A(f"s_sub_i32 s45, {4*(self.xc+self.K0)//ps}, s45")
            A("s_cmp_eq_u32 s43, s63")
            A("s_cselect_b32 s60, 0, s45")
            A("s_max_i32 s60, s60, s47")
            A("s_cmp_gt_i32 s60, 0")
            A("s_cbranch_scc1 L_nopost")
            A(f"s_mul_i32 s45, s45, {self.xtau}"); A("s_ashr_i32 s45, s45, 2"); A("s_add_u32 s61, s44, s45")
            A(f"v_mov_b32 v{T+2}, s61"); A(f"v_xor_b32 v{T+3}, s61, v{T+1}")
            A(f"global_store_dwordx2 v11, v[{T+2}:{T+3}], s[40:41] sc1")
            A("s_mov_b32 s47, 1")
            A("L_nopost:")
            A("s_cmp_eq_u32 s43, s63")
            A("s_cbranch_scc1 L_sp_b_done")
            self.spin_end("L_sp_b", self.xsl)
            A("L_sp_b_done:")
            A("s_sub_i32 s42, s42, s61")
            A("s_abs_i32 s43, s42"); A("s_min_u32 s43, s43, 0x1000")
            A(f"s_mul_i32 s43, s43, {self.xg}"); A(f"s_add_i32 s43, s43, {self.xo}"); A("s_lshr_b32 s43, s43, 8")
            A(f"s_min_u32 s43, s43, {self.xmax}")
            A("s_sub_i32 s44, 0, s43")
            A("s_cmp_gt_i32 s42, 0")
            A("s_cselect_b32 s42, s43, s44")
            A("s_add_i32 s42, s42, 128")
            A("v_mov_b32 v13, s42"); A("v_min_u32 v12, 128, v13")
            A(f"ds_write_b64 v10, v[12:13] offset:{DEC}")
            A("s_mov_b64 exec, -1")
            if self.diag:
                A("s_mov_b32 s84, s42"); A("s_mov_b32 s85, 0")
        else:
            if self.xm:
                wait_prg("L_sp_t", self.xc, 1)
                C("both sides note when they pass the checkpoint; the later one hands over slots in proportion to its lag")
                A("s_memrealtime s[44:45]")
                A(f"v_mov_b32 v{T+4}, 0")
                if self.xsp:
                    A("v_readfirstlane_b32 s46, v12")
                A("s_mov_b64 exec, 1")
                A("s_waitcnt lgkmcnt(0)")
                A(f"v_mov_b32 v{T+2}, s44"); A(f"v_xor_b32 v{T+3}, s44, v{T+1}")
                A(f"global_store_dwordx2 v11, v[{T+2}:{T+3}], s[40:41] offset:8 sc1")
                if not self.xsp:
                    A(f"v_not_b32 v{T+5}, s63")
                self.spin_begin("L_sp_b")
                if self.xsp:
                    A("s_load_dwordx2 s[42:43], s[40:41], s46 offset:8 glc")
                    A(f"ds_read_b32 v13, v10 offset:{PRG}")
                    A("s_waitcnt lgkmcnt(0)")
                    A("v_readfirstlane_b32 s47, v13")
                else:
                    A(f"global_load_dwordx2 v[{T+4}:{T+5}], v12, s[40:41] offset:8 sc1")
                    A(f"ds_read_b32 v13, v10 offset:{PRG}")
                    A(f"s_waitcnt vmcnt({self.xpd-1}) lgkmcnt(0)")
                    A(f"v_readfirstlane_b32 s43, v{T+5}")
                    A(f"v_readfirstlane_b32 s42, v{T+4}")
                    A("v_readfirstlane_b32 s47, v13")
                A("s_xor_b32 s43, s43, s42")
                A("s_cmp_eq_u32 s43, s63")
                A("s_cbranch_scc1 L_give")
                A(f"s_cmp_ge_u32 s47, {4*(self.xe+self.K0)//ps}")
                A("s_cbranch_scc1 L_pass")
                self.spin_end("L_sp_b", self.xsl)
            else:
                C("whoever finds the other side past the checkpoint before it is there itself hands over slots")
                self.spin_begin("L_sp_b")
                A(f"global_load_dwordx2 v[{T+4}:{T+5}], v12, s[40:41] sc1")
                A("s_waitcnt vmcnt(0)")
                A(f"ds_read_b32 v13, v10 offset:{PRG}")
                A(f"v_readfirstlane_b32 s43, v{T+5}")
                A("s_waitcnt lgkmcnt(0)")
                A("v_readfirstlane_b32 s42, v13")
                A("s_cmp_eq_u32 s43, s63")
                A("s_cbranch_scc1 L_give")
                A(f"s_cmp_ge_u32 s42, {4*(self.xc+self.K0)//ps}")
                A("s_cbranch_scc1 L_pass")
                self.spin_end("L_sp_b", self.xsl)
            A("L_pass:")
            A(f"v_mov_b32 v{T}, 0")
            A("s_mov_b64 exec, 1")
            A(f"global_store_dwordx2 v11, v[{T}:{T+1}], s[40:41] sc1")
            A("s_mov_b64 exec, -1")
            A("v_mov_b32 v13, 128")
            A(f"ds_write_b32 v10, v13 offset:{DEC}")
            A("v_xor_b32 v9, 0x400, v9")
            self.spin_begin("L_sp_c")
            A(f"global_load_dwordx2 v[{T+4}:{T+5}], v12, s[40:41] sc1")
            A("s_waitcnt vmcnt(0)")
            A(f"v_readfirstlane_b32 s43, v{T+5}")
            A(f"v_readfirstlane_b32 s42, v{T+4}")
            A("s_cmp_eq_u32 s43, s63")
            A("s_cbranch_scc1 L_sp_c_done")
            self.spin_end("L_sp_c", self.xsl)
            A("L_sp_c_done:")
            A("s_cmp_eq_u32 s42, 0")
            A("s_cbranch_scc1 L_sp_d_done")
            self.spin_begin("L_sp_d")
            A(f"global_load_dwordx4 v[{PW}:{PW+3}], v9, s[40:41] sc1")
            A("s_waitcnt vmcnt(0)")
            self.chk(13, PW, 4)
            A(f"ds_write_b128 v6, v[{PW}:{PW+3}] offset:{PL}")
            self.chk_branch(13, "L_sp_d", 2)
            A("s_add_u32 s42, s42, 128")
            A("v_mov_b32 v13, s42")
            A(f"ds_write_b32 v10, v13 offset:{DEC+4}")
            if self.diag:
                A("s_mov_b32 s84, s42"); A("s_mov_b32 s85, 0")
            A("s_branch L_nopub")
            A("L_give:")
            if self.xm:
                A("s_mov_b64 exec, -1")
                A("s_sub_i32 s42, s44, s42")
                A("s_max_i32 s42, s42, 0"); A("s_min_i32 s42, s42, 0x1000")
                A(f"s_mul_i32 s42, s42, {self.xg}"); A(f"s_add_i32 s42, s42, {self.xo}"); A("s_ashr_i32 s42, s42, 8")
                A(f"s_min_i32 s42, s42, {self.xmax}")
                A("s_cmp_le_i32 s42, 0")
                A("s_cbranch_scc1 L_pass")
            else:
                A(f"s_sub_i32 s42, {(4*(self.xc+self.K0) + self.xd)//ps}, s42")
                A(f"s_mul_i32 s42, s42, {self.xk*ps}"); A("s_ashr_i32 s42, s42, 6")
                A("s_max_i32 s42, s42, 0"); A(f"s_min_i32 s42, s42, {self.xmax}")
            A(f"v_mov_b32 v{T}, s42")
            A("s_cmp_eq_u32 s42, 0")
            A("s_cbranch_scc1 L_give0")
            A(f"global_store_dwordx4 v9, v[{PW}:{PW+3}], s[40:41] sc1")
            A("L_give0:")
            A("s_mov_b64 exec, 1")
            A(f"global_store_dwordx2 v11, v[{T}:{T+1}], s[40:41] sc1")
            A("s_mov_b64 exec, -1")
            A("s_sub_u32 s42, 128, s42")
            A("v_mov_b32 v12, s42"); A("v_mov_b32 v13, s42")
            A(f"ds_write_b64 v10, v[12:13] offset:{DEC}")
            if self.diag:
                A("s_mov_b32 s84, s42"); A("s_mov_b32 s85, 0")
        A("L_nopub:")
        self.stamp(5)
        A("s_cmp_eq_u32 s94, 0")
        A("s_cbranch_scc1 L_hend")
        A("s_cmp_lg_u32 s7, 3")
        A("s_cbranch_scc1 L_nog")
        G, XV = T, T + 1
        C("helper 3: gate of column 4(l&7) + 2(l>>5) + ((l>>4)&1)")
        A("v_and_b32 v12, 7, v4"); A("v_lshlrev_b32 v8, 2, v12")
        A("v_lshrrev_b32 v13, 5, v4"); A("v_lshl_add_u32 v8, v13, 1, v8")
        A("v_bfe_u32 v13, v4, 4, 1"); A("v_add_u32 v8, v8, v13")
        A("s_lshl_b32 s42, s93, 6")
        A("v_lshl_add_u32 v13, v8, 1, s42")
        A(f"global_load_ushort v{G}, v13, s[34:35]")
        A("v_lshl_add_u32 v13, s92, 10, v13")
        A(f"global_load_ushort v{XV}, v13, s[16:17]")
        if self.ot:
            C("(value unused: the address translation of the output is fetched ahead of the store)")
            A(f"global_load_ushort v{XV+1}, v13, s[36:37]")
        C("Z[b][cq][r=l>>3][l&1][(l>>1)&3][4]")
        A("s_lshl4_add_u32 s42, s92, s93")
        A(f"s_mul_i32 s42, s42, {NZ*128}"); A(f"s_add_u32 s42, s42, {WS_Z:#x}")
        A("v_lshrrev_b32 v13, 3, v4"); A("v_lshl_add_u32 v12, v13, 7, s42")
        A("v_and_b32 v13, 1, v4"); A("v_lshl_add_u32 v12, v13, 6, v12")
        A("v_and_b32 v13, 6, v4"); A("v_lshl_add_u32 v12, v13, 3, v12")
        self.spin_begin("L_sp_z")
        C("the lanes past the last line are masked off and hold tagged zeros")
        for d in range(4 * NQ):
            A(f"v_mov_b32 v{RD+d}, s{96+d%4}")
        A("s_mov_b32 exec_hi, 0xffffff")
        for t in range(NQ):
            A(f"global_load_dwordx4 v[{RD+4*t}:{RD+4*t+3}], v12, s[40:41] offset:{7*128*t} sc1")
        A("s_mov_b32 exec_hi, -1")
        A("s_waitcnt vmcnt(0)")
        self.chk(13, RD, 4 * NQ)
        self.chk_branch(13, "L_sp_z", 32)
        for d in range(4 if NQ > 1 else 0):
            A(f"v_add_f32 v{RD+d}, v{RD+d}, v{RD+4+d}")
        A(f"v_lshlrev_b32 v{G}, 16, v{G}")
        A(f"v_lshlrev_b32 v{XV}, 16, v{XV}")
        self.xl_reduce4(RD)
        self.rnd(RD, RD)
        A(f"v_add_f32 v{RD}, v{RD}, v{G}")
        self.rnd(RD, RD)
        A(f"v_mul_f32 v{RD+1}, {f32(-math.log2(math.e))}, v{RD}")
        A(f"v_exp_f32 v{RD+1}, v{RD+1}")
        A("v_lshlrev_b32 v8, 3, v8")
        A(f"v_add_f32 v{RD+1}, 1.0, v{RD+1}")
        A(f"v_rcp_f32 v{RD+1}, v{RD+1}")
        A("s_nop 0")
        A(f"v_mul_f32 v{G}, v{RD}, v{RD+1}")
        self.rnd(G, G)
        A(f"ds_write_b64 v8, v[{G}:{G+1}] offset:{GX}")
        A("L_nog:")
        if self.dry:
            A("s_cmp_lg_u32 s7, 1")
            A("s_cbranch_scc1 L_nodry")
            C("helper 1 walks through the code below with no lane active to bring it into the instruction cache")
            A("s_mov_b32 s94, 3")
            A("s_mov_b64 s[100:101], 0")
            A("s_branch L_proj")
            A("L_dry:")
            A("s_sub_u32 s94, s94, 1")
            A("s_cmp_eq_u32 s94, 2")
            A("s_cbranch_scc1 L_h1")
            A("s_mov_b64 s[100:101], -1")
            A("s_mov_b64 exec, -1")
            A("s_waitcnt vmcnt(0)")
            A("L_nodry:")
        wait_prg("L_sp_v", 104, 16)
        if self.eb == 4:
            A("s_lshl2_add_u32 s42, s2, s7")
            A(f"s_cmp_lg_u32 s42, {4 * (254 + self.cpar) + 3}")
            A("s_cbranch_scc1 L_nobump")
            C("every reader of the tag word is done once this wave has the gate (all MLP units) and helper 2, before it")
            C("decides, has seen the softmax records of a whole batch row (all q units)")
            self.spin_begin("L_sp_n")
            A(f"ds_read_b32 v13, v10 offset:{DEC}")
            A("s_waitcnt lgkmcnt(0)")
            A("v_cmp_eq_u32 vcc, -1, v13")
            A("s_cbranch_vccz L_sp_n_done")
            self.spin_end("L_sp_n", 4)
            A("L_sp_n_done:")
            A(f"v_mov_b32 v12, {WS_EP:#x}"); A("v_mov_b32 v13, s63")
            A("global_store_dword v12, v13, s[40:41] sc1")
            A("L_nobump:")
        self.spin_begin("L_sp_o")
        A(f"ds_read_b32 v13, v10 offset:{OC}")
        A("s_waitcnt lgkmcnt(0)")
        A(f"v_cmp_gt_u32 vcc, {self.pw}, v13")
        A("s_cbranch_vccz L_proj")
        self.spin_end("L_sp_o", 1)
        self.project()
        A("L_hend:")
        self.dump_stamps(14, 16)
        if self.prog:
            A("s_cmp_ge_u32 s3, 4")
            A("s_cbranch_scc1 L_end")
            A("s_lshl_b32 s60, s2, 2"); A("s_add_u32 s60, s60, s3"); A("s_lshl_b32 s60, s60, 6")
            A(f"s_add_u32 s60, s60, {WS_DIAG + 0x80000:#x}")
            A("v_and_b32 v24, 63, v0"); A("v_lshlrev_b32 v24, 2, v24")
            A("v_add_u32 v24, s60, v24")
            A("s_mov_b64 exec, 0xffff")
            A("global_store_dword v24, v60, s[40:41]")

def gen(**kw):
    return Gen(**kw).gen()

if __name__ == "__main__":
    out = sys.argv[1]
    kw = eval("dict(" + (sys.argv[2] if len(sys.argv) > 2 else "") + ")")
    open(out, "w").write(gen(**kw))
```

```python
import sys, math, struct
NAME = "recurrent_scan__mha_block_cached__mixer_channel_mlp__decode_kernel"

def f32(x):
    return "0x%08x" % struct.unpack("<I", struct.pack("<f", x))[0]

HEADER = """; Kernarg layout for this problem (104 bytes, ptrs only, base s[0:1]):
;   offset  32: d_in[4] A_wo  shape=(4096, 512) dtype=bfloat16
;   offset  96: d_ws      workspace
"""

XN, QP, MLM, MLL, TAGL = 0, 8192, 8448, 8512, 8704
CFL, DEC, RK = 8576, 8640, 8720
OA, OC, FC = 9216, 11264, 11520
PRG, PL = 11776, 12032
FA, GX = 0, 4096
FAS = 80
LDS_BYTES = 13312
WS_O, WS_ML, WS_EP, WS_Q, WS_U, WS_Z, WS_DIAG = 0x40000, 0x80000, 0x90000, 0x100000, 0x180000, 0x1c0000, 0x200000
WS_RP = 0x98000
WS_GH, WS_GP = 0xa0000, 0xc0000
NUNIT = 112
SPIN_MAX = 1 << 18

class Gen:
    DEF = dict(kvflags="nt", mflags="", diag=False, prog=False, fine=0, DK=8, DV=12, adel=2, pre=2, dks=6, skip=(),
               mpar=0, cpar=1, fprio=3, qsleep=1, w2p=4, cpf=0, early=1, dsl=2,
               xc=88, xs=58, xd=52, xk=8, xmax=16, xsl=2, pstep=2,
               ctl=1, cg=8, cu0=23, culo=16, cuhi=32, cc0=2, clim=100, cb=6, csl=0, cbias=0, cend=104, rsl=8, bst=0x500,
               wpre=16, bg=(3, 3, 3), b2=1, pw=1, pd=2, pd1=2, dry=1, wlate=0, am=(0x2000, 0x200, 0x8000, 0x1000, 0xe0000, 0x44400, 0x8100, 0xe4c00, 0x28100, 0xf4c00, 0, 0x400),
               tv=(0x8100, 0x84c00, 0x400, 0xd4c00, 0x40000, 0x20c00, 0x20400), xt=0, xm=0, xe=102, xg=11, xo=0, xpd=1, xsp=0, xtau=27, cfin=48, fh=2, dkc=0, cpo=0, kctl=1, cuc=32, wk=0, sf=0, psl=32, mls=8, mlp=0, sp=1, ep=2, dx=0, dwk=0, fl=3, rw=0, eb=4, dr=1, dro=0, oc=0, cfa=0, mld=0, sfd=6, dw=0, dwf='sc1', dwr=0, wf=2, w2f=1, ack=0, ot=0, vt=0, ofl='')
    def __init__(self, **kw):
        self.L = []
        self.nlab = 0
        for k in kw:
            assert k in self.DEF, k
        for k, v in self.DEF.items():
            setattr(self, k, kw.get(k, v))
        self.skip = set(self.skip)
        self.K0 = (8 - self.pre) * 16 - (16 - self.DK) if self.kctl else 0
    def A(self, s):
        self.L.append("  " + s if not s.endswith(":") else s)
    def C(self, s):
        self.L.append("  ; " + s)

    def stamp(self, idx):
        if self.diag:
            self.A(f"s_memrealtime s[{64+2*idx}:{65+2*idx}]")
    def dump_stamps(self, n, vt):
        if not self.diag:
            return
        A = self.A
        for k in range(self.dsl):
            A("s_sleep 127")
        A("s_waitcnt lgkmcnt(0)")
        A("s_lshl_b32 s60, s2, 3"); A("s_add_u32 s60, s60, s3"); A("s_lshl_b32 s60, s60, 7")
        A(f"s_add_u32 s60, s60, {WS_DIAG:#x}")
        A(f"v_mov_b32 v{vt}, s60")
        A("s_mov_b64 exec, 1")
        for j in range(n):
            A(f"v_mov_b32 v{vt+2}, s{64+2*j}"); A(f"v_mov_b32 v{vt+3}, s{65+2*j}")
            A(f"global_store_dwordx2 v{vt}, v[{vt+2}:{vt+3}], s[40:41] offset:{8*j}")
        A("s_getreg_b32 s60, hwreg(HW_REG_XCC_ID)")
        A(f"v_mov_b32 v{vt+2}, s60")
        A(f"global_store_dword v{vt}, v{vt+2}, s[40:41] offset:120")
        A("s_mov_b64 exec, -1")

    def row_allreduce(self, op, r):
        A = self.A
        for m in ("quad_perm:[1,0,3,2]", "quad_perm:[2,3,0,1]", "row_half_mirror", "row_mirror"):
            A("s_nop 1")
            A(f"v_{op}_f32_dpp v{r}, v{r}, v{r} {m} row_mask:0xf bank_mask:0xf")
    def wave_allreduce_add(self, r, t, op="add"):
        A = self.A
        self.row_allreduce(op, r)
        for sw in ("v_permlane16_swap_b32", "v_permlane32_swap_b32"):
            A(f"v_mov_b32 v{t}, v{r}")
            A("s_nop 1")
            A(f"{sw} v{r}, v{t}")
            A(f"v_{op}_f32 v{r}, v{r}, v{t}")
    def rnd(self, d, s):
        self.A(f"v_cvt_pk_bf16_f32 v{d}, 0, v{s}")

    def layernorm(self, X, n, T, P, unpack_after=True):
        A = self.A
        s, t, q, d = T, T + 1, T + 2, T + 3
        red = (lambda r: self.wave_allreduce_add(r, t)) if n == 8 else (lambda r: self.row_allreduce("add", r))
        A(f"v_add_f32 v{s}, v{X}, v{X+1}")
        for i in range(2, n):
            A(f"v_add_f32 v{s}, v{s}, v{X+i}")
        red(s)
        A(f"v_mul_f32 v{s}, {f32(1.0/512)}, v{s}")
        A(f"v_sub_f32 v{d}, v{X}, v{s}")
        A(f"v_mul_f32 v{q}, v{d}, v{d}")
        for i in range(1, n):
            dd = d if i % 2 == 0 else t
            A(f"v_sub_f32 v{dd}, v{X+i}, v{s}")
            A(f"v_fmac_f32 v{q}, v{dd}, v{dd}")
        red(q)
        A(f"v_mul_f32 v{q}, {f32(1.0/512)}, v{q}")
        self.rnd(s, s)
        self.rnd(q, q)
        A(f"v_add_f32 v{q}, {f32(1e-5)}, v{q}")
        self.rnd(q, q)
        A(f"v_sqrt_f32 v{q}, v{q}")
        A("s_nop 0")
        self.rnd(q, q)
        A(f"v_rcp_f32 v{q}, v{q}")
        for i in range(n):
            A(f"v_sub_f32 v{X+i}, v{X+i}, v{s}")
        for i in range(n):
            self.rnd(X + i, X + i)
        for i in range(n):
            A(f"v_mul_f32 v{X+i}, v{X+i}, v{q}")
        for i in range(n // 2):
            A(f"v_cvt_pk_bf16_f32 v{P+i}, v{X+2*i}, v{X+2*i+1}")
        if unpack_after:
            self.unpack(X, P, n // 2)
    def unpack(self, X, P, n):
        for i in range(n):
            self.A(f"v_lshlrev_b32 v{X+2*i}, 16, v{P+i}")
            self.A(f"v_and_b32 v{X+2*i+1}, 0xffff0000, v{P+i}")

    def slabload(self, dst, srd, voff, stride, flags, last_inc=None, pace=None, cont=False):
        A = self.A
        for e in range(8):
            r = dst + 4 * e
            if pace is not None and (e >= pace or cont):
                A(f"s_waitcnt vmcnt({pace-1})")
            A(f"buffer_load_dwordx4 v[{r}:{r+3}], v{voff}, {srd}, s50 offen {flags}".rstrip())
            inc = stride if e < 7 else last_inc
            if inc is not None:
                A(f"s_add_u32 s50, s50, {inc}")
    def slabperm(self, dst, src, js=4):
        A = self.A
        rows = src if isinstance(src, list) else [src + 4 * e for e in range(8)]
        for d in range(4):
            for hf in range(2):
                jj = 2 * d + hf
                for q in range(4):
                    A(f"v_perm_b32 v{dst + js*jj + q}, v{rows[2*q+1] + d}, v{rows[2*q] + d}, s{48 + hf}")
    def slabmfma(self, RD, RA, B, first):
        A = self.A
        for jj in range(8):
            b = B + 4 * jj
            c = "0" if first else f"v[{RD+4*jj}:{RD+4*jj+3}]"
            A(f"v_mfma_f32_16x16x32_bf16 v[{RD+4*jj}:{RD+4*jj+3}], v[{RA}:{RA+3}], v[{b}:{b+3}], {c}")

    def fold(self, T, RD):
        A = self.A
        if self.fh == 2:
            return self.fold4(T, RD)
        for q in range(4):
            A(f"v_add_f32_dpp v{T+q}, v{RD+4*q+1}, v{RD+4*q} row_ror:8 row_mask:0xf bank_mask:0x3")
        for q in range(4):
            A(f"v_add_f32_dpp v{T+q}, v{RD+4*q+16}, v{RD+4*q+17} row_ror:8 row_mask:0xf bank_mask:0xc")
        self.tag4(T)
    def fold4(self, T, RD):
        A = self.A
        for bk in range(4):
            for q in range(4):
                d = RD + 4 * q + 16 * (bk >> 1)
                A(f"v_add_f32_dpp v{T+q}, v{d + (bk ^ 2)}, v{d + bk} row_ror:8 row_mask:0xf bank_mask:{1 << bk:#x}")
        for q in range(4):
            A(f"v_add_f32_dpp v{T+q}, v{T+q}, v{T+q} row_shl:4 row_mask:0xf bank_mask:0x5")
        A("s_mov_b32 exec_lo, 0x0f0f0f0f"); A("s_mov_b32 exec_hi, 0x0f0f0f0f")
        self.tag4(T)
    def spin_begin(self, lab):
        self.A(f"s_mov_b32 s55, {SPIN_MAX}")
        self.A(f"{lab}:")
    def spin_end(self, lab, sleep):
        A = self.A
        A(f"s_sleep {sleep}")
        A("s_sub_u32 s55, s55, 1")
        A("s_cmp_lg_u32 s55, 0")
        A(f"s_cbranch_scc1 {lab}")
    def xl_reduce4(self, R):
        A = self.A
        A("s_nop 0")
        for d in range(2):
            A(f"v_permlane32_swap_b32 v{R+d}, v{R+d+2}")
        for d in range(2):
            A(f"v_add_f32 v{R+d}, v{R+d}, v{R+d+2}")
        A("s_nop 1")
        A(f"v_permlane16_swap_b32 v{R}, v{R+1}")
        A(f"v_add_f32 v{R}, v{R}, v{R+1}")
        A("s_nop 1")
        A(f"v_add_f32_dpp v{R}, v{R}, v{R} row_ror:8 row_mask:0xf bank_mask:0xf")

    def gen(self):
        A, C = self.A, self.C
        self.L.append(HEADER.rstrip())
        self.L.append(f"; @launch grid=(256,1,1) block=(512,1,1) lds={LDS_BYTES}")
        self.L.append('.amdgcn_target "amdgcn-amd-amdhsa--gfx950"')
        self.L.append(".text"); self.L.append(f".globl {NAME}"); self.L.append(".p2align 8")
        self.L.append(f".type {NAME},@function"); self.L.append(f"{NAME}:")
        self.stamp(0)
        A("s_load_dwordx16 s[16:31], s[0:1], 0")
        A("s_load_dwordx8 s[32:39], s[0:1], 64")
        A("s_load_dwordx2 s[40:41], s[0:1], 96")
        A("s_cmp_ge_u32 s2, 256")
        A("s_cbranch_scc1 L_end")
        A("v_lshrrev_b32 v1, 6, v0")
        A("v_and_b32 v2, 15, v0")
        A("v_readfirstlane_b32 s3, v1")
        if self.ep == 1:
            A("s_cmp_ge_u32 s3, 6"); A("s_cbranch_scc1 L_pf"); A("L_idx:")
        C("s59 = producer index b*64 + 2h + side, b = wg>>6, side = (wg>>2)&1, h = 8((wg&3)^side) + ((wg>>3)&7):")
        C("the two halves of a head's keys go to the WGs wg and wg^5")
        A("s_bfe_u32 s5, s2, 0x10002")
        A("s_and_b32 s59, s2, 0xc0"); A("s_and_b32 s4, s2, 3"); A("s_xor_b32 s4, s4, s5"); A("s_lshl4_add_u32 s59, s4, s59")
        A("s_bfe_u32 s4, s2, 0x30003"); A("s_lshl1_add_u32 s59, s4, s59")
        if self.sp:
            A("s_lshl_b32 s7, s59, 19")
        A("s_or_b32 s59, s59, s5")
        if self.cpf:
            A("s_cmp_lt_u32 s3, 4")
            A("s_cbranch_scc1 L_stream")
            C("helper waves pull a slice of this kernel's code towards the L2")
            A("s_getpc_b64 s[42:43]")
            A("L_pc:")
            A("s_lshr_b32 s44, s2, 3"); A("s_lshl2_add_u32 s44, s44, s3")
            A(f"s_mul_i32 s44, s44, {64*self.cpf}")
            A(f"s_min_u32 s44, s44, L_end-L_pc-{64*(self.cpf-1)}")
            for k in range(self.cpf):
                A(f"s_load_dword s{45+k}, s[42:43], s44 offset:{64*k}")
            A("s_branch L_helper")
            A("L_stream:")
        else:
            A("s_cmp_ge_u32 s3, 4")
            A("s_cbranch_scc1 L_helper")
        self.stream()
        self.helper()
        A("L_end:")
        A("s_endpgm")
        L = self.L
        L.append('.section .rodata,"a"'); L.append(".p2align 6"); L.append(f".amdhsa_kernel {NAME}")
        L.append("  .amdhsa_next_free_vgpr 256"); L.append("  .amdhsa_next_free_sgpr 102"); L.append("  .amdhsa_accum_offset 256")
        L.append("  .amdhsa_group_segment_fixed_size 0"); L.append("  .amdhsa_kernarg_size 104")
        L.append("  .amdhsa_user_sgpr_count 2"); L.append("  .amdhsa_user_sgpr_kernarg_segment_ptr 1")
        L.append("  .amdhsa_system_sgpr_workgroup_id_x 1")
        L.append("  .amdhsa_float_denorm_mode_32 3")
        L.append(".end_amdhsa_kernel")
        return "\n".join(L) + "\n"

    def is_cons(self):
        self.A("s_and_b32 s42, s2, 0x81"); self.A(f"s_cmp_eq_u32 s42, {0x80 | self.cpar:#x}")
        self.A("s_cselect_b32 s94, 1, 0")

    def pf(self):
        A, C = self.A, self.C
        A("L_pf:")
        C("helpers 2 and 3 pull a part of wo (the columns the WGs of this class project with) or of w2 towards the L2")
        A("s_lshr_b32 s50, s2, 3"); A("s_lshl1_add_u32 s50, s50, s3"); A("s_sub_u32 s50, s50, 6")
        A("s_and_b32 s42, s2, 6"); A("s_mov_b32 s15, 0x20000")
        A(f"s_bitcmp{self.cpar}_b32 s2, 0")
        A("s_cbranch_scc0 L_pf2")
        A("v_bfe_u32 v3, v0, 4, 2"); A("v_lshlrev_b32 v5, 4, v2"); A("v_lshl_or_b32 v5, v3, 14, v5")
        A("s_lshl_b32 s50, s50, 9"); A("s_add_u32 s50, s50, s42"); A("s_lshl_b32 s50, s50, 7")
        A("s_mov_b32 s14, 0x400000"); A("s_movk_i32 s51, 0x400"); A("s_mov_b32 s54, 15")
        A("s_waitcnt lgkmcnt(0)")
        A("s_mov_b64 s[12:13], s[24:25]")
        A("s_branch L_pf3")
        A("L_pf2:")
        C("w2: 128 bytes at 128((wg>>1)&3) and 512 further of 56 rows")
        A("v_and_b32 v5, 7, v0"); A("v_bfe_u32 v12, v0, 3, 3"); A("v_lshlrev_b32 v5, 4, v5"); A("v_lshl_or_b32 v5, v12, 9, v5")
        A("s_mulk_i32 s50, 448"); A("s_add_u32 s50, s50, s42"); A("s_lshl_b32 s50, s50, 6")
        A(f"s_mov_b32 s14, {1792*1024}"); A("s_movk_i32 s51, 0x1000"); A("s_mov_b32 s54, 6")
        A("s_waitcnt lgkmcnt(0)")
        A("s_mov_b64 s[12:13], s[32:33]")
        A("L_pf3:")
        self.stamp(6)
        A("L_pf4:")
        A("buffer_load_dwordx4 v[192:195], v5, s[12:15], s50 offen")
        A("s_add_u32 s50, s50, s51"); A("s_sub_u32 s54, s54, 1")
        A("s_cbranch_scc0 L_pf4")
        self.stamp(7)
        A("s_barrier")
        A("s_branch L_idx" if self.ep == 1 else "s_branch L_nofront")

    def stream(self):
        A, C = self.A, self.C
        RING = 64
        P = 24
        Q = 8
        S = 40
        ACC = 48
        PLO, PHI = 12, 13
        VOFF = 5
        fl = self.kvflags
        DK, DV, pre = self.DK, self.DV, self.pre
        assert DK <= 8 and DK <= DV <= 14
        C("===== stream waves =====")
        if not self.sp:
            A("v_lshlrev_b32 v7, 4, v2")
            A("v_lshrrev_b32 v6, 4, v0")
            A("s_lshr_b32 s7, s59, 1"); A("s_lshl_b32 s7, s7, 20")
        A("s_mov_b32 s10, 0x100000"); A("s_mov_b32 s11, 0x20000")
        am, tv = self.am, self.tv
        def lin(vs, t):
            x = 0
            for i, v in enumerate(vs):
                if t >> i & 1:
                    x ^= v
            return x
        def slin(dst, terms):
            k = 0
            for sr, bit, m in terms:
                if m:
                    A(f"s_bitcmp1_b32 {sr}, {bit}"); A(f"s_cselect_b32 {'s6' if k else dst}, {m:#x}, 0")
                    if k:
                        A(f"s_xor_b32 {dst}, {dst}, s6")
                    k += 1
        if self.sp:
            C("every row of lanes walks through keys of its own: offset = v5 ^ f(group) ^ g(slot), all linear over GF(2)")
            sh = {4: 15}
            for b in range(4):
                assert am[b] & (am[b] - 1) == 0
                k = am[b].bit_length() - 1 - (4 + b)
                sh[k] = sh.get(k, 0) | 16 << b
            for i, (k, m) in enumerate(sh.items()):
                A(f"v_and_b32 v{3 + i}, {m:#x}, v0")
            A(f"s_mul_i32 s50, s5, {am[4]:#x}")
            for b in range(1, 8):
                if am[4 + b]:
                    A(f"s_bitcmp1_b32 s59, {b}"); A(f"s_cselect_b32 s6, {am[4 + b]:#x}, 0"); A("s_xor_b32 s50, s50, s6")
            for i, (k, m) in enumerate(sh.items()):
                A(f"v_lshl_or_b32 v3, v{3 + i}, {k}, v3" if i else f"v_lshlrev_b32 v3, {k}, v3")
            A("v_xor_b32 v5, s50, v3")
        elif not self.xt:
            C("every row of lanes walks through keys of its own: offset = v5 ^ f(group) ^ g(slot), all linear over GF(2)")
            A("v_bfe_i32 v3, v0, 4, 1"); A("v_bfe_i32 v4, v0, 5, 1")
            slin("s50", [("s3", 0, am[2]), ("s3", 1, am[3])] + [("s59", b, am[4 + b]) for b in range(8)])
            A(f"v_and_b32 v3, {am[0]:#x}, v3"); A(f"v_and_b32 v4, {am[1]:#x}, v4")
            A("v_xor_b32 v5, s50, v7"); A("v_bitop3_b32 v5, v5, v3, v4 bitop3:0x96")
        A("s_waitcnt lgkmcnt(0)")
        A("s_add_u32 s8, s18, s7"); A("s_addc_u32 s9, s19, 0")
        if self.xt:
            A("s_lshl_b32 s42, s59, 6"); A("v_lshl_add_u32 v4, v6, 2, s42"); A("v_xor_b32 v3, 64, v4")
            A("global_load_dword v4, v4, s[26:27]"); A("global_load_dword v3, v3, s[26:27]")
            A("s_load_dwordx16 s[64:79], s[26:27], 0x4000"); A("s_load_dwordx16 s[80:95], s[26:27], 0x4040")
            A("s_waitcnt vmcnt(0) lgkmcnt(0)")
            A("v_xor_b32 v3, v7, v3"); A("v_xor_b32 v5, v7, v4")
            A("v_xor_b32 v3, s79, v3"); A("v_xor_b32 v3, s87, v3")
        self.stamp(5)
        issued = []
        def addr(slot, tag=None):
            if self.xt:
                if tag and slot % 16 == 0:
                    A(f"v_xor_b32 v58, s{80 + tag[0]}, v5")
                A(f"v_xor_b32 v4, s{64 + slot % 16}, v58")
                return 4
            x = lin(tv, slot % 16 + (tag[0] * 16 if tag else 0))
            b = 5 if tag else 58
            if x:
                A(f"v_xor_b32 v4, {x:#x}, v{b}"); b = 4
            return b
        def load(slot, srd, so="0", tag=None, b=None):
            r = RING + 4 * slot
            if b is None:
                b = addr(slot, tag)
            A(f"buffer_load_dwordx4 v[{r}:{r+3}], v{b}, {srd}, {so} offen {fl}".rstrip())
            issued.append(tag)
        def nextgroup():
            if self.xt:
                A("s_add_u32 m0, s54, 1"); A("s_nop 0"); A("s_movrels_b32 s50, s80")
            else:
                A("s_add_u32 s42, s54, 1")
                if tv[5] == 2 * tv[4] and tv[6] == 4 * tv[4] and tv[4] & (tv[4] - 1) == 0:
                    A("s_and_b32 s50, s42, 7"); A(f"s_lshl_b32 s50, s50, {tv[4].bit_length() - 1}")
                else:
                    slin("s50", [("s42", i, tv[4 + i]) for i in range(3)])
            A("v_xor_b32 v58, s50, v5")
        def wait(tag):
            A(f"s_waitcnt vmcnt({len(issued) - 1 - issued.index(tag)})")
        def cwait(D, j, k=False):
            self.nlab += 1
            lo = self.culo // 4
            for L in range(D, lo - 1, -1):
                if L > 8 and L & 1:
                    continue
                A(f"s_waitcnt vmcnt({L-1})")
                if L == D and not k:
                    A(f"s_cbranch_scc0 L_cw{self.nlab}")
                if L > lo:
                    A(f"s_cmp_ge_u32 s62, {4*L - (j & 3)}")
                    A(f"s_cbranch_scc1 L_cw{self.nlab}")
            A(f"L_cw{self.nlab}:")
        def swait(D, lo=None):
            A(f"s_waitcnt vmcnt({D-1})")
            if lo is not None and lo < D:
                self.nlab += 1
                A(f"s_cbranch_vccnz L_ad{self.nlab}")
                A(f"s_waitcnt vmcnt({lo-1})")
                A(f"L_ad{self.nlab}:")
        def setup2():
            if self.sp:
                A("v_lshlrev_b32 v7, 4, v2"); A("v_lshrrev_b32 v6, 4, v0")
            A("s_mov_b32 s14, s10"); A("s_mov_b32 s15, s11"); A("s_mov_b32 s46, s10"); A("s_mov_b32 s47, s11")
            A("s_add_u32 s12, s20, s7"); A("s_addc_u32 s13, s21, 0")
            A("s_mov_b32 s52, 0xaaaaaaaa"); A("s_mov_b32 s53, 0xaaaaaaaa")
            A("s_mov_b32 s56, 0xcccccccc"); A("s_mov_b32 s57, 0xcccccccc")
            C("s60 = key group before which this WG turns to its part of wo; it keeps more loads in flight in return")
            A(f"s_lshr_b32 s60, s2, {self.bg[2]}"); A(f"s_and_b32 s60, s60, {self.bg[1]}"); A(f"s_add_u32 s60, s60, {self.bg[0]}")
            self.is_cons()
            A("s_cselect_b64 vcc, -1, 0")
            A("s_cselect_b32 s60, s60, 0")
            A("v_mov_b32 v21, 0"); A("v_mov_b32 v62, 0")
            if self.wk:
                A(f"s_mov_b32 s4, {pre}"); A("s_mov_b32 s5, 8")
        dd = self.dks
        for gi in range(pre):
            for j in range(16):
                n = 16 * gi + j
                if n == dd:
                    setup2()
                    self.stamp(6)
                if self.wf and n == self.wf:
                    if self.ep in (1, 2):
                        A("s_branch L_s2"); self.pf(); A("L_s2:")
                    A("s_barrier")
                b = addr(n, (gi, j))
                if n >= dd:
                    if self.dkc:
                        swait(self.dkc, dd)
                    else:
                        swait(dd)
                if n == dd:
                    self.stamp(7)
                if n == 2 * dd:
                    self.stamp(8)
                load(n, "s[8:11]", tag=(gi, j), b=b)
        self.stamp(1)
        A("s_barrier")
        A("L_walk:")
        A(f"ds_read_b128 v[{Q}:{Q+3}], v7 offset:{QP}")
        self.stamp(2)
        A("s_waitcnt lgkmcnt(0)")
        def qk(slots):
            for d in range(4):
                for slot in slots:
                    r = RING + 4 * slot
                    p = P + slot % 16
                    c = "0" if d == 0 else f"v{p}"
                    A(f"v_dot2_f32_bf16 v{p}, v{r+d}, v{Q+d}, {c}")
        def treduce(dst, mid=()):
            C("transposing reduction: lane (g,c) <- score of load c, key g")
            for t in range(8):
                A(f"v_add_f32_dpp v{P+t}, v{P+t}, v{P+t} row_ror:8 row_mask:0xf bank_mask:0x3")
            for t in range(8):
                A(f"v_add_f32_dpp v{P+t}, v{P+t+8}, v{P+t+8} row_ror:8 row_mask:0xf bank_mask:0xc")
            for t in range(4):
                A(f"v_add_f32_dpp v{P+t}, v{P+t}, v{P+t} row_half_mirror row_mask:0xf bank_mask:0x5")
            for t in range(4):
                A(f"v_add_f32_dpp v{P+t}, v{P+t+4}, v{P+t+4} row_half_mirror row_mask:0xf bank_mask:0xa")
            U0, U1, T0, T1 = P + 8, P + 9, P + 10, P + 11
            A(f"v_cndmask_b32 v{U0}, v{P+1}, v{P}, s[52:53]")
            A(f"v_cndmask_b32 v{U1}, v{P+3}, v{P+2}, s[52:53]")
            A(f"v_cndmask_b32 v{T0}, v{P}, v{P+1}, s[52:53]")
            A(f"v_cndmask_b32 v{T1}, v{P+2}, v{P+3}, s[52:53]")
            A("s_nop 1")
            A(f"v_add_f32_dpp v{T0}, v{U0}, v{T0} quad_perm:[1,0,3,2] row_mask:0xf bank_mask:0xf")
            A(f"v_add_f32_dpp v{T1}, v{U1}, v{T1} quad_perm:[1,0,3,2] row_mask:0xf bank_mask:0xf")
            A(f"v_cndmask_b32 v{U0}, v{T1}, v{T0}, s[56:57]")
            A(f"v_cndmask_b32 v{U1}, v{T0}, v{T1}, s[56:57]")
            if mid:
                for m in mid:
                    A(m)
            else:
                A("s_nop 1")
            A(f"v_add_f32_dpp v{dst}, v{U0}, v{U1} quad_perm:[2,3,0,1] row_mask:0xf bank_mask:0xf")
        C("catch-up over the prefetched groups; group `pre` is loaded into ring slots 0..15 meanwhile")
        nxt = 0
        for gi in range(pre):
            for j in range(0, 16, 2):
                wait((gi, j + 1))
                qk([16 * gi + j, 16 * gi + j + 1])
                if gi == 0:
                    want = j + 2 if (j < 8 or pre == 1) else 8
                elif gi == 1:
                    want = 8 + j // 2 + 1
                else:
                    want = 16
                while nxt < want:
                    load(nxt, "s[8:11]", tag=(pre, nxt)); nxt += 1
            A("s_nop 0")
            treduce(S + 8 - pre + gi)
        assert nxt == 16
        for j in range(16 - DK):
            wait((pre, j))
            qk([j])
        A(f"s_mov_b32 s54, {'s4' if self.wk else pre}")
        def kslot(j, slot, srd):
            b = addr(slot)
            if self.kctl:
                cwait(DK, j, True)
            else:
                swait(DK, DK - self.adel)
            load(slot, srd, b=b)
            qk([j])
            if self.kctl:
                if j % 2 == 0:
                    A(f"ds_add_u32 v12, v56 offset:{PRG}")
                    A("s_waitcnt lgkmcnt(1)")
                    A("v_readfirstlane_b32 s62, v61")
                else:
                    A(f"ds_read_b32 v61, v59 offset:{RK}")
        if self.kctl:
            A("v_and_b32 v12, 63, v0"); A("v_lshlrev_b32 v12, 2, v12"); A("v_mov_b32 v56, 1")
            A("v_mov_b32 v59, 0"); A(f"s_mov_b32 s62, {self.cu0}"); A(f"ds_read_b32 v61, v59 offset:{RK}")
        A("s_branch L_kmid")
        A("L_kloop:")
        A("s_cmp_eq_u32 s54, s60")
        A("s_cbranch_scc1 L_burst")
        A("L_nobu:")
        for j in range(16 - DK):
            kslot(j, j + DK, "s[8:11]")
        A("L_kmid:")
        if self.prog:
            A("s_memrealtime s[90:91]")
        C("the rest refills from the next group (V group 0 after the last K group)")
        nextgroup()
        A("s_cmp_eq_u32 s54, 7")
        A("s_cselect_b32 s44, s12, s8"); A("s_cselect_b32 s45, s13, s9")
        for j in range(16 - DK, 16):
            kslot(j, j + DK - 16, "s[44:47]")
        if self.prog:
            A("s_waitcnt lgkmcnt(0)")
            A("s_mov_b32 m0, s54"); A("s_nop 0")
            A("v_writelane_b32 v60, s90, m0")
        for i in range(7):
            A(f"v_mov_b32 v{S+i}, v{S+i+1}")
        treduce(S + 7, ("s_add_u32 s54, s54, 1", "s_cmp_lt_u32 s54, 8"))
        A("s_cbranch_scc1 L_kloop")
        A("L_soft:")
        self.stamp(11)
        ext = list(range(DK, DV))
        def extra(k):
            for j in ext[:k]:
                b = addr(j)
                A(f"s_waitcnt vmcnt({self.sfd-1})")
                load(j, "s[12:15]", b=b)
            del ext[:k]
        extra(1)
        C("softmax over this row's 128 keys (true max of the partial; partials are merged exactly later)")
        M, Ls = 14, 15
        cs = math.log2(math.e) / math.sqrt(128.0)
        A(f"s_mov_b32 s58, {f32(cs)}")
        A(f"v_max3_f32 v{M}, v{S}, v{S+1}, v{S+2}")
        A(f"v_max3_f32 v{M}, v{M}, v{S+3}, v{S+4}")
        A(f"v_max3_f32 v{M}, v{M}, v{S+5}, v{S+6}")
        A(f"v_max_f32 v{M}, v{M}, v{S+7}")
        nsf = [0]
        def fill(k):
            for i in range(k):
                b = addr(DV + nsf[0])
                A(f"s_waitcnt vmcnt({self.sfd-1})")
                load(DV + nsf[0], "s[12:15]", b=b); nsf[0] += 1
        fill(self.sf >= 1); extra(1)
        self.row_allreduce("max", M)
        fill(self.sf >= 3)
        A(f"v_mul_f32 v{M}, s58, v{M}")
        for i in range(8):
            A(f"v_fma_f32 v{S+i}, v{S+i}, s58, -v{M}")
        for i in range(8):
            A(f"v_exp_f32 v{S+i}, v{S+i}")
        for i in range(8):
            A(f"v_mov_b32 v{ACC+i}, 0")
        A(f"v_add_f32 v{Ls}, v{S}, v{S+1}")
        for i in range(2, 8):
            A(f"v_add_f32 v{Ls}, v{Ls}, v{S+i}")
        fill(self.sf >= 2); extra(1)
        self.row_allreduce("add", Ls)
        A(f"v_lshlrev_b32 v16, 2, v6")
        A("v_lshlrev_b32 v18, 2, v0")
        A(f"ds_write_b32 v18, v{S+7} offset:{PL}")
        A(f"v_min_u32 v{M}, -2, v{M}")
        A(f"v_min_u32 v{Ls}, -2, v{Ls}")
        A(f"ds_write_b32 v16, v{M} offset:{MLM}")
        A(f"ds_write_b32 v16, v{Ls} offset:{MLL}")
        A("s_sub_u32 s54, s54, s5" if self.wk else "s_mov_b32 s54, 0")
        A("v_and_b32 v19, 0xfc, v18"); A("v_mov_b32 v56, 1")
        if DV > DK:
            extra(9)
            C("progress is counted where the loads are issued")
            A(f"v_mov_b32 v57, {(DV - DK) // self.pstep}"); A(f"ds_add_u32 v19, v57 offset:{PRG}")
        if self.ctl and not self.kctl:
            A("v_mov_b32 v59, 0"); A(f"s_mov_b32 s62, {self.cu0}"); A(f"v_mov_b32 v61, {self.cu0}")
        A(f"s_mov_b32 s61, {144 - DV}")
        def pv(slot):
            r = RING + 4 * slot
            for d in range(2 if 'pv' in self.skip else 4):
                A(f"v_dot2c_f32_bf16_dpp v{ACC+2*d}, v{PLO}, v{r+d} row_newbcast:{slot} row_mask:0xf bank_mask:0xf")
                A(f"v_dot2c_f32_bf16_dpp v{ACC+2*d+1}, v{PHI}, v{r+d} row_newbcast:{slot} row_mask:0xf bank_mask:0xf")
        self.stamp(12)
        A("L_vloop:")
        A("s_cmp_lg_u32 s54, 6")
        A("s_cbranch_scc1 L_nocf")
        C("from here on everything is scaled to the final softmax weights of the head")
        C("v17: dimension pair of lane (g,c) after the row reduction: 4c + 2(g&1) + (g>>1)")
        A("v_and_b32 v17, 1, v6"); A("v_lshl_add_u32 v17, v17, 3, v7")
        A("v_bfe_u32 v21, v6, 1, 1"); A("v_lshl_add_u32 v17, v21, 2, v17")
        A("s_lshl_b32 s42, s3, 9"); A("v_lshl_add_u32 v17, v17, 1, s42")
        A("s_lshl_b32 s42, s59, 8"); A(f"s_add_u32 s42, s42, {WS_O:#x}")
        A("v_lshlrev_b32 v22, 1, v19"); A("v_add_u32 v21, s42, v19")
        self.spin_begin("L_sp_cf")
        A(f"ds_read_b32 v57, v16 offset:{CFL}")
        A("s_waitcnt lgkmcnt(0)")
        A("v_cmp_eq_u32 vcc, -1, v57")
        A("s_cbranch_vccz L_sp_cf_done")
        self.spin_end("L_sp_cf", 1)
        A("L_sp_cf_done:")
        for r in list(range(ACC, ACC + 8)) + [S, S + 1]:
            A(f"v_mul_f32 v{r}, v57, v{r}")
        if not self.ctl:
            A("s_cmp_lg_u32 s94, 0")
            A("s_cselect_b64 vcc, -1, 0")
        A("L_nocf:")
        A("s_waitcnt lgkmcnt(0)")
        A(f"v_cvt_pk_bf16_f32 v{PLO}, v{S}, 0")
        A(f"v_cvt_pk_bf16_f32 v{PHI}, 0, v{S}")
        for i in range(7):
            A(f"v_mov_b32 v{S+i}, v{S+i+1}")
        for j in range(16):
            if j == 16 - DV:
                if self.prog:
                    A("s_memrealtime s[90:91]")
                    A("s_add_u32 m0, s54, 8")
                    A("s_waitcnt lgkmcnt(0)")
                    A("v_writelane_b32 v60, s90, m0")
                nextgroup()
                A("s_sub_u32 s42, s54, 6")
                A("s_cmp_gt_u32 s42, 1")
                A("s_cbranch_scc1 L_nodec")
                C("number of slots this WG works on: fewer when it hands some over, more when it takes some")
                A("s_lshl_b32 s42, s42, 2")
                A("v_mov_b32 v4, s42")
                self.spin_begin("L_sp_dec")
                A(f"ds_read_b32 v57, v4 offset:{DEC}")
                A("s_waitcnt lgkmcnt(0)")
                A("v_readfirstlane_b32 s61, v57")
                A("s_cmp_lg_u32 s61, -1")
                A("s_cbranch_scc1 L_sp_dec_done")
                self.spin_end("L_sp_dec", 1)
                A("L_sp_dec_done:")
                A("s_max_i32 s61, s61, 112"); A("s_min_i32 s61, s61, 144")
                A("s_lshl_b32 s43, s54, 4"); A(f"s_add_u32 s43, s43, {DV}"); A("s_sub_u32 s61, s61, s43")
                A("s_cmp_lg_u32 s54, 7")
                A("s_cbranch_scc1 L_nodec")
                C("the slots taken over are the last ones of the other side's last group, backwards")
                if self.xt:
                    A("v_mov_b32 v58, v3")
                else:
                    A(f"v_xor_b32 v58, {am[4] ^ lin(tv, 127):#x}, v5")
                A("v_xor_b32 v4, 60, v18")
                A(f"ds_read_b32 v{S}, v4 offset:{PL}")
                A("L_nodec:")
            if j < self.sf:
                A("s_cmp_eq_u32 s54, 0")
                A(f"s_cbranch_scc1 L_sf{j}")
            b = addr(j + DV)
            A(f"s_cmp_gt_i32 s61, {j}")
            if self.dr:
                A(f"s_cbranch_scc0 L_dr{j}")
                if self.oc:
                    A(f"s_cmp_lt_u32 s62, {4*DV}")
                    A(f"s_cbranch_scc1 L_oc{j}")
                    A(f"s_waitcnt vmcnt({DV-1})")
                    A(f"L_ob{j}:")
                else:
                    cwait(DV, j, True)
                load((j + DV) % 16, "s[12:15]", b=b)
                pv(j)
                if j % 2 == 0:
                    A(f"ds_add_u32 v19, v56 offset:{PRG}")
                    A("s_waitcnt lgkmcnt(1)")
                    A("v_readfirstlane_b32 s62, v61")
                else:
                    A(f"ds_read_b32 v61, v59 offset:{RK}")
                continue
            A(f"s_cselect_b32 s51, 0, s14")
            if self.dx:
                A("s_cselect_b64 exec, -1, 1")
            if self.ctl:
                cwait(DV, j)
            else:
                swait(DV, DV - self.adel)
            load((j + DV) % 16, "s[12:15]", "s51", b=b)
            if self.dx:
                A("s_mov_b64 exec, -1")
                for k in range(self.dx - 1):
                    A("s_nop 0")
            if j < self.sf:
                A(f"L_sf{j}:")
            pv(j)
            if j % self.pstep == 0:
                A(f"ds_add_u32 v19, v56 offset:{PRG}")
            if self.ctl and j % 2 == 1:
                A(f"ds_read_b32 v61, v59 offset:{RK}")
            if self.ctl and j % 2 == 0:
                A("s_waitcnt lgkmcnt(1)")
                A("v_readfirstlane_b32 s62, v61")
            A(f"s_cmp_le_i32 s61, {j + 1 - DV}")
            A("s_cbranch_scc1 L_vdone")
        A("s_add_u32 s54, s54, 1")
        A("s_sub_u32 s61, s61, 16")
        A("s_branch L_vloop")
        for j in range(16 if self.oc else 0):
            A(f"L_oc{j}:")
            for L in range(self.cuhi // 4, self.culo // 4 - 1, -1):
                A(f"s_cmp_ge_u32 s62, {4*L - (j & 3)}")
                A(f"s_waitcnt vmcnt({L-1})")
                A(f"s_cbranch_scc1 L_ob{j}" if L > self.culo // 4 else f"s_branch L_ob{j}")
        if self.dr:
            assert self.cend <= 104 and self.pstep == 2 and not self.sf
            C("all loads are issued: the rest only counts (loads past num_records fetch nothing)")
            o = self.dro
            for j in list(range(o, 16)) + list(range(o)):
                if j == 0:
                    A("L_drw:")
                    A("s_waitcnt lgkmcnt(0)")
                    A(f"v_cvt_pk_bf16_f32 v{PLO}, v{S}, 0")
                    A(f"v_cvt_pk_bf16_f32 v{PHI}, 0, v{S}")
                    A("s_sub_u32 s61, s61, 16")
                A(f"L_dr{j}:")
                A(f"s_waitcnt vmcnt({DV-1})")
                A(f"buffer_load_dword v{RING + 4 * ((j + DV) % 16)}, v4, s[12:15], s14 offen")
                A(f"s_cmp_le_i32 s61, {j + 1 - DV}")
                pv(j)
                A("s_cbranch_scc1 L_vdone" if j != (o + 15) % 16 else f"s_cbranch_scc0 {'L_dr%d' % o if o else 'L_drw'}")
        A("L_vdone:")
        self.stamp(4)
        A("s_nop 1")
        C("rows are added in the wave, waves in LDS; whoever comes last publishes the sum")
        for d in (0, 1, 4, 5):
            A(f"v_permlane32_swap_b32 v{ACC+d}, v{ACC+d+2}")
        for d in (0, 4):
            A(f"v_pk_add_f32 v[{ACC+d}:{ACC+d+1}], v[{ACC+d}:{ACC+d+1}], v[{ACC+d+2}:{ACC+d+3}]")
        A("s_nop 1")
        for d in (0, 1):
            A(f"v_permlane16_swap_b32 v{ACC+d}, v{ACC+d+4}")
        A(f"v_pk_add_f32 v[{ACC}:{ACC+1}], v[{ACC}:{ACC+1}], v[{ACC+4}:{ACC+5}]")
        A(f"ds_write_b64 v17, v[{ACC}:{ACC+1}] offset:{OA}")
        A(f"ds_add_rtn_u32 v20, v19, v56 offset:{OC}")
        A(f"ds_read2st64_b64 v[24:27], v22 offset0:{OA//512} offset1:{OA//512+1}")
        A(f"ds_read2st64_b64 v[28:31], v22 offset0:{OA//512+2} offset1:{OA//512+3}")
        A("s_waitcnt lgkmcnt(1)")
        A("v_cmpx_eq_u32 vcc, 3, v20")
        A("v_pk_add_f32 v[24:25], v[24:25], v[26:27]")
        A("s_waitcnt lgkmcnt(0)")
        A("v_pk_add_f32 v[28:29], v[28:29], v[30:31]")
        A("v_pk_add_f32 v[24:25], v[24:25], v[28:29]")
        A("v_cvt_pk_bf16_f32 v22, v24, v25")
        A("v_min_u32 v22, -2, v22")
        A("global_store_dword v21, v22, s[40:41] sc1")
        self.stamp(3)
        A("s_mov_b64 exec, -1")
        A("s_cmp_lg_u32 s94, 0")
        A("s_cbranch_scc1 L_proj")
        if self.wk:
            A("s_cmp_ge_u32 s3, 4")
            A("s_cbranch_scc1 L_back")
        if self.fine:
            A("s_waitcnt vmcnt(0)")
            self.stamp(8)
        if self.diag:
            A("s_branch L_hend")
        else:
            A("s_endpgm")

    TB = 100
    def tag4(self, R, n=4):
        for i in range(n):
            self.A(f"v_and_or_b32 v{R+i}, v{R+i}, v15, s{96 + i % 4}")
    def chk(self, acc, R, n, D=None):
        D = R if D is None else D
        for i in range(n):
            self.A(f"v_xor_b32 v{D+i}, s{96 + i % 4}, v{R+i}")
        self.A(f"v_or3_b32 v{acc}, v{D}, v{D+1}, v{D+2}")
        i = 3
        while i < n:
            if i + 1 < n:
                self.A(f"v_or3_b32 v{acc}, v{acc}, v{D+i}, v{D+i+1}"); i += 2
            else:
                self.A(f"v_or_b32 v{acc}, v{acc}, v{D+i}"); i += 1
    def chk_branch(self, acc, lab, sleep):
        A = self.A
        A(f"v_cmp_ne_u32_sdwa vcc, v{acc}, v10 src0_sel:BYTE_0 src1_sel:DWORD")
        A(f"s_cbranch_vccz {lab}_done")
        self.spin_end(lab, sleep)
        A(f"{lab}_done:")

    def set_tag(self):
        for k in range(4):
            self.A(f"s_bfe_u32 s{96+k}, s63, {0x80000 + 8*k:#x}")

    def control5(self):
        A, C = self.A, self.C
        ps, DV = self.pstep, self.DV
        c0 = self.cc0 * 4 // ps
        A("s_cmp_lg_u32 s7, 0")
        A("s_cbranch_scc1 L_noctl")
        C("helper 0: the number of loads in flight follows this WG's lag behind the WGs it shares a progress line with")
        if self.diag:
            A("s_mov_b32 s86, 0"); A("s_mov_b32 s87, 0")
        A("s_and_b32 s42, s2, 7"); A(f"s_mul_i32 s42, s42, {self.bst}"); A(f"s_add_u32 s42, s42, {WS_RP:#x}")
        A("v_lshl_add_u32 v12, v4, 2, s42")
        A("s_lshr_b32 s43, s2, 3"); A("s_lshl2_add_u32 s42, s43, s42")
        A("v_mov_b32 v14, s42")
        A(f"s_mov_b32 s45, {self.cu0}")
        if self.cpo:
            A(f"s_movk_i32 s60, {256 - self.cpo}")
            A(f"s_bitcmp{self.cpar}_b32 s2, 0")
            A(f"s_cselect_b32 s60, {256 + self.cpo}, s60")
        A("s_cmp_lg_u32 s94, 0")
        A(f"s_cselect_b32 s61, {self.cbias}, 0")
        A(f"s_mov_b32 s55, {SPIN_MAX}")
        A("s_mov_b32 exec_hi, 0")
        A("L_ctl:")
        if self.csl:
            A(f"s_sleep {self.csl}")
        A(f"ds_read_b32 v13, v10 offset:{PRG}")
        A(f"s_sub_u32 s46, {4*self.DK+64}, s45")
        A("s_lshr_b32 s46, s46, 1")
        A("s_sub_u32 s46, s46, s61")
        A("s_waitcnt lgkmcnt(0)")
        A("v_readfirstlane_b32 s47, v13")
        A("s_add_u32 s42, s47, s46")
        A("s_xor_b32 s43, s42, s63")
        A("v_mov_b32 v13, s43")
        A("s_mov_b32 exec_lo, 1")
        A("global_store_dword v14, v13, s[40:41]")
        A(f"s_cmp_ge_u32 s47, {(self.clim+self.K0)*4//ps}")
        A("s_cbranch_scc1 L_ctl2")
        A("s_mov_b32 exec_lo, -1")
        A("global_load_dword v11, v12, s[40:41] sc1")
        A(f"s_sub_u32 s42, s42, {self.cb}")
        A("s_waitcnt vmcnt(0)")
        A("v_xor_b32 v11, s63, v11")
        A("v_cmp_gt_u32 vcc, 0x400, v11")
        A("v_subrev_u32 v11, s42, v11")
        A("v_cndmask_b32 v11, 0, v11, vcc")
        for m in ("quad_perm:[1,0,3,2]", "quad_perm:[2,3,0,1]", "row_half_mirror", "row_mirror"):
            A("s_nop 1")
            A(f"v_add_u32_dpp v11, v11, v11 {m} row_mask:0xf bank_mask:0xf")
        A(f"s_cmp_lt_u32 s47, {c0}")
        A("s_cbranch_scc1 L_ctl3")
        A("v_readlane_b32 s43, v11, 0")
        A("v_readlane_b32 s42, v11, 16")
        A("s_add_i32 s42, s43, s42")
        A(f"s_mul_i32 s42, s42, {self.cg}")
        A(f"s_add_i32 s42, s42, {'s60' if self.cpo else 1 << 8}")
        A(f"s_ashr_i32 s42, s42, 9")
        A(f"s_add_i32 s45, s42, {self.cu0}")
        A(f"s_max_i32 s45, s45, {self.culo}"); A(f"s_min_i32 s45, s45, {self.cuhi}")
        A("v_mov_b32 v13, s45")
        A(f"ds_write_b32 v10, v13 offset:{RK}")
        if self.diag:
            A("s_add_u32 s86, s86, s45"); A("s_add_u32 s87, s87, 1")
        A("s_branch L_ctl3")
        A("L_ctl2:")
        A(f"s_sleep {self.rsl}")
        A("L_ctl3:")
        A("s_sub_u32 s55, s55, 1")
        A("s_cbranch_scc1 L_ctl4")
        A(f"s_cmp_lt_u32 s47, {(self.cend+self.K0)*4//ps}")
        A("s_cbranch_scc1 L_ctl")
        A("L_ctl4:")
        if self.cfa:
            A(f"s_sub_i32 s45, s45, {self.cu0}"); A(f"s_mul_i32 s45, s45, {self.cfa}"); A(f"s_add_i32 s45, s45, {self.cfin}")
            A(f"s_max_i32 s45, s45, {self.cu0}")
            A("v_mov_b32 v13, s45")
            A(f"ds_write_b32 v10, v13 offset:{RK}")
        elif self.cfin:
            A(f"v_mov_b32 v13, {self.cfin}" if self.cfin > 8 else f"v_add_u32 v13, {self.cfin}, v10")
            if self.cfin <= 8:
                A("v_add_u32 v13, s45, v13")
            A(f"ds_write_b32 v10, v13 offset:{RK}")
        if self.rw:
            A("buffer_wbl2 sc1")
        A("s_mov_b64 exec, -1")
        A("L_noctl:")

    BB = 128
    def burst(self):
        A, C = self.A, self.C
        BB = self.BB
        A("L_burst:")
        if self.wk == 1:
            A("s_mov_b64 exec, -1")
        C("this WG projects batch row s92 onto the columns 32 s93..; wave w holds the wo rows of the heads 4w..")
        A("s_bfe_u32 s92, s2, 0x20005")
        A("s_bfe_u32 s93, s2, 0x20003"); A("s_and_b32 s42, s2, 6"); A("s_lshl1_add_u32 s93, s42, s93")
        C("row 64(kk>>1) + 4(kk&1) + 8(c>>2) + 32((e>>1)&1) + 2(e>>2) + (e&1), columns 8(c&3)..")
        A("v_and_b32 v1, 0x2c, v0"); A("v_lshlrev_b32 v1, 11, v1")
        A("v_and_b32 v62, 16, v0"); A("v_lshl_add_u32 v1, v62, 8, v1")
        A("v_and_b32 v63, 3, v0"); A("v_lshl_add_u32 v1, v63, 4, v1")
        A("s_lshl_b32 s28, s3, 19"); A("s_lshl_b32 s42, s93, 6"); A("s_add_u32 s28, s28, s42")
        A("s_add_u32 s29, s28, 0x8000")
        A(f"s_mov_b32 s26, {0 if 'wo' in self.skip else 0x400000:#x}"); A("s_mov_b32 s27, 0x20000")
        A("s_mov_b32 s48, 0x05040100"); A("s_mov_b32 s49, 0x07060302")
        A("s_mov_b64 s[100:101], -1")
        A("s_barrier")
        self.stamp(10)
        stage = [[BB + 64 + 4 * e for e in range(8)], [BB + 96 + 4 * e for e in range(8)], [96 + 4 * e for e in range(8)],
                 [16, 20, 24, 28, 32, 36, 48, 52]]
        for s in range(4):
            for e in range(8):
                r = stage[s][e]
                A(f"buffer_load_dwordx4 v[{r}:{r+3}], v1, s[24:27], s{28 + ((e >> 1) & 1)} offen offset:{(2*(e >> 2) + (e & 1))*1024}")
            if s < 3:
                A("s_add_u32 s28, s28, 0x20000"); A("s_add_u32 s29, s29, 0x20000")
        C("v62: record piece of lane (hh, kl, side, par, ch): O[b][4w + 2m + hh][side] + 16(8kl + 4par + ch)")
        A("s_lshl_b32 s42, s92, 14"); A("s_lshl_b32 s43, s3, 11"); A("s_add_u32 s42, s42, s43"); A(f"s_add_u32 s42, s42, {WS_O:#x}")
        A("v_lshl_add_u32 v62, v62, 3, s42")
        A("v_and_b32 v63, 0x27, v0"); A("v_lshl_add_u32 v62, v63, 4, v62")
        A("v_and_b32 v63, 8, v0"); A("v_lshl_add_u32 v62, v63, 5, v62")
        C("v63: 2:4 pattern of A row i: the first two of every four k for (i&4) == 0, else the last two")
        A("v_bfe_u32 v63, v0, 2, 1")
        A("v_mul_u32_u24 v63, 0xaaaa, v63")
        A("v_add_u32 v63, 0x4444, v63")
        for s in range(4):
            A(f"s_waitcnt vmcnt({24 - 8*s})")
            if s == 3 and self.b2:
                A("s_barrier")
            self.slabperm(BB + 64 * (s >> 1) + 4 * (s & 1), stage[s], 8)
        A("s_cmp_lt_u32 s3, 4")
        A("s_cbranch_scc1 L_nobu")

    def project(self):
        A, C = self.A, self.C
        BB, LR, D, T = self.BB, 40, 64, 96
        def ld(m):
            A(f"global_load_dwordx4 v[{LR+4*m}:{LR+4*m+3}], v62, s[40:41] offset:{1024*m} sc1")
        def chk(m):
            r = LR + 4 * m
            A(f"v_max3_u32 v13, v{r}, v{r+1}, v{r+2}")
            A(f"v_max_u32 v13, v13, v{r+3}")
            A("v_cmp_eq_u32 vcc, -1, v13")
        def f1(q, bk):
            d = D + 4 * (q + 4 * (bk >> 1))
            A(f"v_add_f32_dpp v{T+q}, v{d + (bk ^ 2)}, v{d + bk} row_ror:8 row_mask:0xf bank_mask:{1 << bk:#x}")
        def mf(m, last):
            if self.fine:
                A(f"s_memrealtime s[{16+2*m}:{17+2*m}]")
            for k in range(8):
                a = (k >> 1) + 4 * (k & 1)
                d, b = D + 4 * a, BB + 64 * m + 8 * a
                A(f"v_smfmac_f32_16x16x64_bf16 v[{d}:{d+3}], v[{LR+4*m}:{LR+4*m+3}], v[{b}:{b+7}], v63")
                if last and k >= 3:
                    for bk in range(2):
                        f1((k - 3) >> 1, 2 * ((k - 3) & 1) + bk)
        def tight(m):
            A(f"L_t{m}:")
            ld(m)
            A("s_sub_u32 s55, s55, 1")
            A(f"s_cbranch_scc1 L_f{m}")
            A(f"s_waitcnt vmcnt({self.pd1-1})")
            chk(m)
            A(f"s_cbranch_vccnz L_t{m}")
            A(f"L_f{m}:")
        A("L_proj:")
        self.stamp(12)
        C("the records of two pairs of heads are re-read until they are complete; several reads are kept in flight")
        for i in range(0, 8, 2):
            A(f"v_mov_b64 v[{LR+i}:{LR+i+1}], -1")
        ld(0); ld(1)
        for i in range(0, 32, 2):
            A(f"v_mov_b64 v[{D+i}:{D+i+1}], 0")
        C("v26: slot of this lane's sum: column 8(l&3) + 2((l>>2)&3) + (l>>5), wave, (l>>4)&1")
        A("v_and_b32 v26, 3, v0"); A("v_bfe_u32 v27, v0, 2, 2"); A("v_lshl_add_u32 v26, v26, 2, v27")
        A("v_bfe_u32 v27, v0, 5, 1"); A("v_lshl_add_u32 v26, v26, 1, v27")
        A(f"v_mul_u32_u24 v26, {FAS}, v26")
        A("v_bfe_u32 v27, v0, 4, 1"); A("v_lshl_add_u32 v26, v27, 2, v26")
        A("v_lshl_add_u32 v26, s3, 3, v26")
        A("v_bfe_u32 v28, v0, 1, 5")
        A(f"v_mul_u32_u24 v27, {FAS}, v28")
        A("v_and_b32 v29, 1, v0"); A("v_lshl_add_u32 v27, v29, 5, v27")
        A("s_lshl4_add_u32 s42, s92, s93"); A("s_lshl_b32 s42, s42, 6")
        A("v_lshl_add_u32 v29, v28, 1, s42")
        A("v_lshlrev_b32 v28, 3, v28")
        A("v_and_b32 v30, 63, v0"); A("v_lshlrev_b32 v30, 2, v30")
        A("v_mov_b32 v31, 1")
        A(f"s_mov_b32 s55, {SPIN_MAX*8}")
        A("s_mov_b64 exec, s[100:101]")
        A("L_two:")
        for m in range(2):
            A(f"s_waitcnt vmcnt({self.pd-1})")
            chk(m)
            A(f"s_cbranch_vccz L_h{m}")
            ld(m)
        A("s_sub_u32 s55, s55, 1")
        A("s_cbranch_scc0 L_two")
        A("L_h1:")
        mf(1, False)
        chk(0)
        A("s_cbranch_vccz L_f0")
        tight(0)
        mf(0, True)
        A("s_branch L_fold")
        A("L_h0:")
        mf(0, False)
        chk(1)
        A("s_cbranch_vccz L_f1")
        tight(1)
        mf(1, True)
        A("L_fold:")
        self.stamp(13)
        C("D row 4g + ch is valid in the lanes with (l>>2)&3 == ch")
        for q in range(2):
            A(f"v_add_f32_dpp v{T+4+q}, v{T+q}, v{T+q} row_shl:4 row_mask:0xf bank_mask:0x5")
        for q, bk in ((2, 2), (2, 3), (3, 0), (3, 1), (3, 2), (3, 3)):
            f1(q, bk)
        A(f"v_add_f32_dpp v{T+4}, v{T+2}, v{T+2} row_shr:4 row_mask:0xf bank_mask:0xa")
        A("s_nop 0")
        A(f"v_add_f32_dpp v{T+5}, v{T+3}, v{T+3} row_shr:4 row_mask:0xf bank_mask:0xa")
        A("s_nop 1")
        A(f"v_permlane32_swap_b32 v{T+4}, v{T+5}")
        A(f"v_add_f32 v{T+4}, v{T+4}, v{T+5}")
        A(f"ds_write_b32 v26, v{T+4} offset:{FA}")
        A(f"ds_add_rtn_u32 v31, v30, v31 offset:{FC}")
        A(f"ds_read_b128 v[{T+8}:{T+11}], v27 offset:{FA}")
        A(f"ds_read_b128 v[{T+12}:{T+15}], v27 offset:{FA+16}")
        A(f"ds_read_b64 v[{T+6}:{T+7}], v28 offset:{GX}")
        A("s_waitcnt lgkmcnt(2)")
        A(f"v_pk_add_f32 v[{T+8}:{T+9}], v[{T+8}:{T+9}], v[{T+10}:{T+11}]")
        A("s_waitcnt lgkmcnt(1)")
        A(f"v_pk_add_f32 v[{T+12}:{T+13}], v[{T+12}:{T+13}], v[{T+14}:{T+15}]")
        A(f"v_pk_add_f32 v[{T+8}:{T+9}], v[{T+8}:{T+9}], v[{T+12}:{T+13}]")
        A(f"v_add_f32 v{T}, v{T+8}, v{T+9}")
        A("s_waitcnt lgkmcnt(0)")
        A("s_nop 0")
        A(f"v_add_f32_dpp v{T}, v{T}, v{T} quad_perm:[1,0,3,2] row_mask:0xf bank_mask:0xf")
        A("v_cmpx_eq_u32 vcc, 7, v31")
        self.rnd(T, T)
        A(f"v_mul_f32 v{T}, v{T}, v{T+6}")
        self.rnd(T, T)
        A(f"v_add_f32 v{T}, v{T}, v{T+7}")
        A(f"v_cvt_pk_bf16_f32 v{T}, v{T}, 0")
        A(f"global_store_short v29, v{T}, s[36:37] {self.ofl}".rstrip())
        if self.ack:
            A("s_waitcnt vmcnt(0)")
        self.stamp(9)
        if self.dry:
            A("s_cmp_gt_u32 s94, 1")
            A("s_cbranch_scc1 L_dry")
        if self.eb != 4:
            A(f"s_cmp_lg_u32 s2, {254 + self.cpar}")
            A("s_cbranch_scc1 L_nobump")
            A("s_and_b64 exec, exec, 1")
            A("s_cbranch_scc0 L_nobump")
            C("every reader of the tag word is done by now (this wave has seen data that depends on all of them)")
            A(f"ds_read_b32 v13, v30 offset:{TAGL}")
            A(f"v_mov_b32 v12, {WS_EP:#x}")
            A("s_waitcnt lgkmcnt(0)")
            if self.eb == 2:
                A("v_readfirstlane_b32 s42, v13"); A("s_mov_b64 exec, -1")
                A("v_mov_b32 v13, s42"); A(f"v_add_u32 v12, {WS_EP:#x}, v30")
            if self.eb != 1:
                A("global_store_dword v12, v13, s[40:41]" + (" sc1" if self.eb != 3 else ""))
            A("L_nobump:")
        if self.diag:
            A("s_mov_b64 exec, -1")
        if self.fine:
            A("s_sleep 127"); A("s_sleep 127")
            A("s_waitcnt lgkmcnt(0)")
            A("s_lshl3_add_u32 s42, s2, s3"); A("s_lshl_b32 s42, s42, 4"); A(f"s_add_u32 s42, s42, {WS_DIAG + 0x100000:#x}")
            A("v_mov_b32 v12, s42")
            for m in range(2):
                A(f"v_mov_b32 v16, s{16+2*m}"); A(f"v_mov_b32 v17, s{17+2*m}")
                A(f"global_store_dwordx2 v12, v[16:17], s[40:41] offset:{8*m}")

    def helper(self):
        A, C = self.A, self.C
        mf = self.mflags
        RA, RD = 16, 32
        RB = 64
        ST = 192
        T = 224
        A("L_helper:")
        C("===== helper waves =====")
        A("s_sub_u32 s7, s3, 4")
        A("v_bfe_u32 v3, v0, 4, 2")
        A("v_and_b32 v4, 63, v0")
        A("s_bfe_u32 s4, s59, 0x50001")
        A("s_lshr_b32 s5, s2, 6")
        A("s_mov_b32 s48, 0x05040100"); A("s_mov_b32 s49, 0x07060302")
        A("v_lshlrev_b32 v6, 4, v4")
        A("v_mov_b32 v10, 0"); A("v_mov_b32 v62, 0")
        A("v_mov_b32 v15, 0xffffff00")
        A("s_mov_b32 s11, 0x20000"); A("s_mov_b32 s15, 0x20000")
        C("s62 = MLP unit of this WG (>= NUNIT: none)")
        A("s_lshr_b32 s62, s2, 1")
        A("s_and_b32 s42, s2, 1"); A(f"s_cmp_eq_u32 s42, {self.mpar}")
        A("s_cselect_b32 s62, s62, 255")
        A("s_cmp_ge_u32 s7, 2")
        A("s_cbranch_scc1 L_pf" if self.ep > 1 else "s_cbranch_scc1 L_nofront")
        A("s_cmp_eq_u32 s7, 0")
        A("s_cbranch_scc1 L_front")
        if self.ep:
            A(f"s_cmp_lt_u32 s62, {NUNIT}")
            A("s_cbranch_scc1 L_front")
            A("s_barrier")
            A("s_branch L_nofront")
        else:
            A(f"s_cmp_ge_u32 s62, {NUNIT}")
            A("s_cbranch_scc1 L_nofront")
        A("L_front:")
        A(f"s_setprio {self.fprio}")
        if self.fh == 1:
            C("front units, 128 rows x 64 cols for all 4 batch rows. helper 0: wq rows 128b.., cols 64(2h+side)..")
            C("helper 1: w1 rows 128(u&3).., cols 64(u>>2)..  Lanes c<8 / c>=8 hold different 32-row blocks.")
            A("s_and_b32 s42, s59, 63"); A("s_and_b32 s43, s62, 3")
            A("s_lshr_b32 s44, s62, 2")
            A("s_mov_b32 s51, 3584")
            A("s_cmp_eq_u32 s7, 0")
            A("s_cselect_b32 s53, s5, s43")
            A("s_cselect_b32 s44, s42, s44")
            A("s_cselect_b32 s51, 8192, s51")
            A("s_lshl_b32 s10, s51, 9")
            A("s_mul_i32 s52, s51, 57")
            A("s_mul_i32 s50, s53, s51"); A("s_add_u32 s50, s50, s44"); A("s_lshl_b32 s50, s50, 7")
            A("s_lshl_b32 s42, s51, 3")
            A("v_lshrrev_b32 v12, 3, v2"); A("v_lshl_add_u32 v5, v12, 2, v3")
            A("v_mul_u32_u24 v5, s42, v5")
            A("v_and_b32 v12, 7, v2")
            A("v_lshl_add_u32 v5, v12, 4, v5")
        else:
            C("front units, 256 rows x 32 cols for all 4 batch rows. helper 0: wq rows 256(b>>1).., cols 32(4h + 2 side + (b&1))..")
            C("helper 1: w1 rows 256(u&1).., cols 32(4(u>>3) + (u&2) + ((u>>2)&1))..  The lane quads hold different 32-row blocks.")
            A("s_and_b32 s42, s59, 1"); A("s_and_b32 s61, s5, 1"); A("s_lshl1_add_u32 s61, s42, s61")
            A("s_lshl2_add_u32 s42, s4, s61")
            A("s_lshr_b32 s44, s62, 3"); A("s_and_b32 s43, s62, 2"); A("s_lshl2_add_u32 s44, s44, s43")
            A("s_bfe_u32 s43, s62, 0x10002"); A("s_add_u32 s44, s44, s43")
            A("s_and_b32 s43, s62, 1"); A("s_lshr_b32 s53, s5, 1")
            A("s_mov_b32 s51, 3584")
            A("s_cmp_eq_u32 s7, 0")
            A("s_cselect_b32 s53, s53, s43")
            A("s_cselect_b32 s60, s42, s44")
            A("s_cselect_b32 s51, 8192, s51")
            A("s_lshl_b32 s10, s51, 9")
            A("s_mul_i32 s52, s51, 121")
            A("s_mul_i32 s50, s53, s51"); A("s_lshl2_add_u32 s50, s50, s60"); A("s_lshl_b32 s50, s50, 6")
            A("s_lshl_b32 s42, s51, 3")
            A("v_and_b32 v12, 12, v2"); A("v_add_u32 v5, v12, v3")
            A("v_mul_u32_u24 v5, s42, v5")
            A("v_and_b32 v12, 3, v2")
            A("v_lshl_add_u32 v5, v12, 4, v5")
        A("v_lshlrev_b32 v12, 10, v3")
        A("v_lshl_add_u32 v12, v2, 4, v12")
        A("s_cmp_eq_u32 s7, 0")
        A("s_waitcnt lgkmcnt(0)")
        self.stamp(6)
        for t in range(4):
            A(f"global_load_dwordx4 v[{RB+32+4*t}:{RB+35+4*t}], v12, s[16:17] offset:{256*t}")
        C("the word the previous launch left only serves to pick a tag that differs from that launch's")
        A(f"s_load_dword s63, s[40:41], {WS_EP:#x}")
        A("s_cselect_b32 s8, s22, s28"); A("s_cselect_b32 s9, s23, s29")
        self.slabload(RB + 96, "s[8:11]", 5, "s51", mf, last_inc="s52")
        self.slabload(ST, "s[8:11]", 5, "s51", mf)
        self.stamp(7)
        if self.ep == 3:
            A("s_branch L_f2"); self.pf(); A("L_f2:")
        if self.wf:
            A("s_barrier")
        A("s_lshl_b32 s42, s7, 12")
        A("v_add_u32 v12, s42, v12")
        A("v_lshrrev_b32 v13, 2, v2")
        A("v_lshlrev_b32 v13, 10, v13")
        A("v_lshl_add_u32 v13, v3, 4, v13")
        C("A operand: rows[i>>2][unit rows: slab n, 32-row block from the low bits of i, 8kk]")
        A(f"v_and_b32 v14, {(1<<self.fh)-1}, v2"); A("v_lshl_add_u32 v13, v14, 6, v13")
        A(f"s_lshl_b32 s43, s53, {7+self.fh}"); A("s_add_u32 s42, s42, s43")
        A("v_add_u32 v13, s42, v13")
        A("s_mov_b32 s54, s7")
        A("s_waitcnt vmcnt(16)")
        self.stamp(1)
        A("L_ln:")
        self.unpack(RB, RB + 32, 16)
        self.layernorm(RB, 32, T, RB + 32, unpack_after=False)
        A("s_sub_u32 s54, s54, 1")
        A("s_cbranch_scc0 L_ln")
        for t in range(4):
            A(f"ds_write_b128 v12, v[{RB+32+4*t}:{RB+35+4*t}] offset:{XN + 256*t}")
        A("s_waitcnt vmcnt(8)")
        self.slabperm(RB + 64, RB + 96)
        A("s_waitcnt lgkmcnt(0)")
        A(f"ds_read_b128 v[{RA}:{RA+3}], v13 offset:{XN}")
        A(f"ds_read_b128 v[{RA+4}:{RA+7}], v13 offset:{XN+(64<<self.fh)}")
        A("s_add_u32 s63, s63, 0x61c88647")
        self.set_tag()
        A("s_waitcnt vmcnt(0)")
        self.stamp(8)
        self.slabperm(RB + 96, ST)
        A("s_waitcnt lgkmcnt(0)")
        self.slabmfma(RD, RA, RB + 64, True)
        self.slabmfma(RD, RA + 4, RB + 96, False)
        A("s_cmp_eq_u32 s7, 0")
        A("s_cbranch_scc1 L_qaddr")
        if self.fh == 1:
            C("U[u][n=(c>>2)&1][half=c>>3][b=kk][c&3][4]")
            A("s_lshl_b32 s42, s62, 10"); A(f"s_add_u32 s42, s42, {WS_U:#x}")
            A("v_bfe_u32 v12, v2, 2, 1"); A("v_lshlrev_b32 v12, 9, v12")
            A("v_lshrrev_b32 v13, 3, v2"); A("v_lshl_add_u32 v12, v13, 8, v12")
            A("v_lshl_add_u32 v12, v3, 6, v12")
            A("v_and_b32 v13, 3, v2"); A("v_lshl_add_u32 v12, v13, 4, v12")
            A("s_branch L_fst")
            A("L_qaddr:")
            C("Q[h][b=kk][row block][side][c&7][c>>3][4]")
            A("s_lshl_b32 s42, s4, 13"); A("s_lshl_b32 s43, s53, 9"); A("s_add_u32 s42, s42, s43")
            A("s_and_b32 s43, s59, 1"); A("s_lshl_b32 s43, s43, 8"); A("s_add_u32 s42, s42, s43")
            A(f"s_add_u32 s42, s42, {WS_Q:#x}")
            A("v_lshlrev_b32 v12, 11, v3")
            A("v_and_b32 v13, 7, v2"); A("v_lshl_add_u32 v12, v13, 5, v12")
            A("v_lshrrev_b32 v13, 3, v2"); A("v_lshl_add_u32 v12, v13, 4, v12")
        else:
            C("U[col block][row block][half=c>>3][b=kk][c&3][4]")
            A("s_lshl1_add_u32 s42, s60, s53"); A("s_lshl_b32 s42, s42, 9"); A(f"s_add_u32 s42, s42, {WS_U:#x}")
            A("v_lshrrev_b32 v12, 3, v2"); A("v_lshlrev_b32 v12, 8, v12")
            A("v_lshl_add_u32 v12, v3, 6, v12")
            A("v_and_b32 v13, 3, v2"); A("v_lshl_add_u32 v12, v13, 4, v12")
            A("s_branch L_fst")
            A("L_qaddr:")
            C("Q[h][b=kk][row block][col quarter][c&3][c>>3][4]")
            A("s_lshl_b32 s42, s4, 12"); A("s_lshl_b32 s43, s53, 9"); A("s_add_u32 s42, s42, s43")
            A("s_lshl_b32 s43, s61, 7"); A("s_add_u32 s42, s42, s43")
            A(f"s_add_u32 s42, s42, {WS_Q:#x}")
            A("v_lshlrev_b32 v12, 10, v3")
            A("v_and_b32 v13, 3, v2"); A("v_lshl_add_u32 v12, v13, 5, v12")
            A("v_lshrrev_b32 v13, 3, v2"); A("v_lshl_add_u32 v12, v13, 4, v12")
        A("L_fst:")
        A("v_add_u32 v12, s42, v12")
        self.fold(T, RD)
        A(f"global_store_dwordx4 v12, v[{T}:{T+3}], s[40:41] sc1")
        A("s_mov_b64 exec, -1")
        self.stamp(2)
        A("s_cmp_lg_u32 s7, 0")
        A("s_cbranch_scc1 L_fdone")
        C("helper 0: gather the partials of q[b][h], LDS init")
        A(f"s_lshl_b32 s42, s4, {14-self.fh}"); A(f"s_lshl_b32 s43, s5, {12-self.fh}"); A("s_add_u32 s42, s42, s43")
        A(f"s_add_u32 s42, s42, {WS_Q:#x}")
        A("v_add_u32 v12, s42, v6")
        A("v_lshlrev_b32 v8, 2, v4")
        A("v_mov_b32 v9, -1")
        A(f"ds_write_b32 v8, v9 offset:{MLM}")
        A("v_mov_b32 v9, s63")
        A(f"ds_write_b32 v10, v9 offset:{TAGL}")
        A(f"ds_write_b32 v8, v10 offset:{PRG}")
        A(f"ds_write2st64_b32 v8, v10, v10 offset0:{OC//256} offset1:{FC//256}")
        if self.ctl:
            if self.kctl:
                self.is_cons()
                A(f"s_cselect_b32 s42, {self.cuc}, {self.cu0}"); A("v_mov_b32 v9, s42")
            else:
                A(f"v_mov_b32 v9, {self.cu0}")
            A(f"ds_write_b32 v10, v9 offset:{RK}")
        A("v_and_b32 v9, 31, v4"); A("v_lshlrev_b32 v9, 3, v9")
        C("the partners publish at about the same time: look once the own stores are acknowledged")
        A("s_waitcnt vmcnt(0)")
        self.spin_begin("L_sp_q")
        NQ = 4 >> self.fh
        for t in range(NQ):
            A(f"global_load_dwordx4 v[{RD+4*t}:{RD+4*t+3}], v12, s[40:41] offset:{1024*t} sc1")
        A("s_waitcnt vmcnt(0)")
        self.chk(13, RD, 4 * NQ)
        self.chk_branch(13, "L_sp_q", self.qsleep)
        for d in range(4 if NQ > 1 else 0):
            A(f"v_add_f32 v{RD+d}, v{RD+d}, v{RD+4+d}")
        for d in range(4):
            A(f"v_mov_b32 v{RD+4+d}, v{RD+d}")
        A("s_nop 1")
        for d in range(4):
            A(f"v_permlane32_swap_b32 v{RD+d}, v{RD+4+d}")
        for d in range(4):
            A(f"v_add_f32 v{RD+d}, v{RD+d}, v{RD+4+d}")
        for d in range(2):
            A(f"v_cvt_pk_bf16_f32 v{RD+d}, v{RD+2*d}, v{RD+2*d+1}")
        A(f"ds_write_b64 v9, v[{RD}:{RD+1}] offset:{QP}")
        A("L_fdone:")
        A("s_setprio 0")
        if self.wf:
            A("s_waitcnt lgkmcnt(0)")
            self.stamp(3)
            A("s_branch L_b1")
        A("L_nofront:")
        A("s_waitcnt lgkmcnt(0)")
        self.stamp(3)
        A("s_cmp_lg_u32 s7, 2")
        A("s_cbranch_scc1 L_noclr")
        C("helper 2 marks this WG's output record empty; nobody looks at it before this WG's softmax record is there")
        A("s_lshl_b32 s42, s59, 8"); A(f"s_add_u32 s42, s42, {WS_O:#x}")
        A("v_lshl_add_u32 v12, v4, 2, s42")
        A("v_mov_b32 v13, -1")
        A("global_store_dword v12, v13, s[40:41] sc1")
        A("L_noclr:")
        def prefetch():
            C("helpers 2 and 3 pull a part of the wo columns that the WGs of this class project with towards the L2")
            A("s_and_b32 s42, s2, 1"); A("s_lshl1_add_u32 s42, s7, s42"); A("s_and_b32 s42, s42, 5")
            A(f"s_cmp_lg_u32 s42, {4 | self.cpar}")
            A(f"s_cbranch_scc1 {'L_pre2' if self.w2f else 'L_nopre'}")
            A("v_lshlrev_b32 v5, 4, v2"); A("v_lshl_or_b32 v5, v3, 14, v5")
            A("s_lshr_b32 s50, s2, 3"); A("s_lshl1_add_u32 s50, s50, s7"); A("s_sub_u32 s50, s50, 2"); A("s_lshl_b32 s50, s50, 16")
            A("s_and_b32 s42, s2, 6"); A("s_lshl_b32 s42, s42, 7"); A("s_add_u32 s50, s50, s42")
            A("s_mov_b32 s26, 0x400000"); A("s_mov_b32 s27, 0x20000")
            A("s_mov_b32 s54, 3")
            self.stamp(6)
            A("L_pre:")
            for n in range(4):
                A(f"buffer_load_dwordx4 v[{ST}:{ST+3}], v5, s[24:27], s50 offen offset:{n*1024}")
                A(f"s_waitcnt vmcnt({self.wpre-1})")
            A("s_add_u32 s50, s50, 0x1000")
            A("s_sub_u32 s54, s54, 1")
            A("s_cbranch_scc0 L_pre")
            self.stamp(2)
            if self.fh == 1:
                A("s_branch L_nopre")
                A("L_pre2:")
                A("s_cmp_lg_u32 s7, 3")
                A("s_cbranch_scc1 L_nopre")
                A(f"s_cmp_ge_u32 s62, {NUNIT}")
                A("s_cbranch_scc1 L_nopre")
                C("helper 3: MLP stage 2 unit: r = u>>3 (hidden rows 128r..), cq = u&7 (cols 64cq..)")
                A("s_lshr_b32 s60, s62, 3"); A("s_and_b32 s61, s62, 7")
                A("s_lshl_b32 s50, s60, 17"); A("s_lshl_b32 s43, s61, 7"); A("s_add_u32 s50, s50, s43")
                A("v_lshrrev_b32 v12, 3, v2"); A("v_lshl_add_u32 v14, v12, 2, v3"); A("v_lshlrev_b32 v14, 13, v14")
                A("v_and_b32 v12, 7, v2"); A("v_lshl_add_u32 v14, v12, 4, v14")
                A("s_mov_b32 s12, s32"); A("s_mov_b32 s13, s33"); A(f"s_mov_b32 s14, {1792*1024}")
                self.stamp(6)
                self.slabload(ST, "s[12:15]", 14, 1024, mf, last_inc=57 * 1024)
                self.slabload(RD, "s[12:15]", 14, 1024, mf)
            elif self.w2f:
                A("s_branch L_nopre")
                A("L_pre2:")
                C("in the other WGs they do the same for w2: 128 bytes at 128((wg>>1)&3) and 512 further of 56 rows")
                A(f"s_cmp_lg_u32 s42, {4 | self.mpar}")
                A("s_cbranch_scc1 L_nopre")
                A("v_and_b32 v5, 7, v4"); A("v_lshlrev_b32 v5, 4, v5"); A("v_lshrrev_b32 v12, 3, v4"); A("v_lshl_or_b32 v5, v12, 9, v5")
                A("s_lshr_b32 s50, s2, 3"); A("s_lshl1_add_u32 s50, s50, s7"); A("s_sub_u32 s50, s50, 2"); A(f"s_mul_i32 s50, s50, {28*1024}")
                A("s_and_b32 s42, s2, 6"); A("s_lshl_b32 s42, s42, 6"); A("s_add_u32 s50, s50, s42")
                A("s_mov_b32 s12, s32"); A("s_mov_b32 s13, s33"); A(f"s_mov_b32 s14, {1792*1024}")
                self.stamp(6)
                for n in range(7):
                    A(f"buffer_load_dwordx4 v[{ST}:{ST+3}], v5, s[12:15], s50 offen")
                    A(f"s_waitcnt vmcnt({self.wpre-1})")
                    A("s_add_u32 s50, s50, 0x1000")
            A("L_nopre:")
        def walk(lab):
            A("s_cmp_lg_u32 s7, 3")
            A("s_cbranch_scc1 L_back")
            C("helper 3 walks through the loops of the stream waves with no lane active and empty descriptors: instruction cache")
            A("s_mov_b64 s[8:9], s[24:25]"); A("s_mov_b64 s[12:13], s[24:25]")
            A("s_mov_b32 s10, 0"); A("s_mov_b32 s14, 0"); A("s_mov_b64 s[46:47], s[10:11]")
            for r in (5, 21, 57, 58):
                A(f"v_mov_b32 v{r}, 0")
            A("s_mov_b32 s4, 6"); A("s_mov_b32 s5, 2"); A("s_mov_b32 s54, 8"); A("s_mov_b32 s60, 0"); A("s_mov_b32 s94, 0")
            A("s_mov_b64 exec, 0")
            A(f"s_branch {lab}")
            A("L_back:")
        if self.wpre and not self.wlate and not self.ep:
            prefetch()
        if self.wf:
            if not self.ep:
                self.stamp(7)
                A("s_barrier")
            if self.diag:
                A("s_waitcnt vmcnt(0)")
                self.stamp(8)
            if self.wk == 1:
                walk("L_walk")
            A("L_b1:")
        self.is_cons()
        A("s_barrier")
        if self.wk == 2:
            walk("L_soft")
            self.is_cons()
        if self.wpre and self.wlate:
            prefetch()
        A(f"ds_read_b32 v13, v10 offset:{TAGL}")
        A("s_waitcnt lgkmcnt(0)")
        A("v_readfirstlane_b32 s63, v13")
        self.set_tag()
        if self.dw:
            A("s_cmp_lg_u32 s7, 3")
            A("s_cbranch_scc1 L_nodw")
            A("s_lshl_b32 s42, s59, 12"); A("s_add_u32 s42, s42, 0x400000")
            A("v_add_u32 v12, s42, v6")
            for k in range(self.dw):
                if self.dwr:
                    A(f"global_load_dwordx4 v[16:19], v12, s[40:41] offset:{1024*k} {self.dwf}")
                else:
                    A(f"global_store_dwordx4 v12, v[16:19], s[40:41] offset:{1024*k} {self.dwf}")
                A("s_waitcnt vmcnt(0)")
            A("L_nodw:")
        if self.vt:
            A("s_cmp_lg_u32 s7, 3")
            A("s_cbranch_scc1 L_novt")
            C("(value unused: the address translations of this head's values are fetched ahead)")
            A("s_and_b32 s42, s59, 0xfe"); A("s_lshl_b32 s42, s42, 19")
            A(f"v_lshl_add_u32 v12, v4, {self.vt}, s42")
            A(f"s_mov_b64 exec, {(1 << (1 << (20 - self.vt))) - 1:#x}")
            A("global_load_dword v13, v12, s[20:21]")
            A("s_mov_b64 exec, -1")
            A("s_waitcnt vmcnt(0)")
            A("L_novt:")
        A(f"s_cmp_lg_u32 s7, {3 if self.fh == 1 else 1}")
        A("s_cbranch_scc1 L_not1")
        A(f"s_cmp_ge_u32 s62, {NUNIT}")
        A("s_cbranch_scc1 L_not1")
        if self.fh == 1:
            pass
        else:
            C("stage 2 unit: r = u>>4 (hidden rows 256r..), cq = (u&8) + 2(u&3) + ((u>>2)&1) (cols 32cq..)")
            A("s_lshr_b32 s60, s62, 4"); A("s_and_b32 s61, s62, 3"); A("s_and_b32 s43, s62, 8"); A("s_lshl1_add_u32 s61, s61, s43")
            A("s_bfe_u32 s43, s62, 0x10002"); A("s_add_u32 s61, s61, s43")
            A("s_lshl_b32 s50, s60, 18"); A("s_lshl_b32 s43, s61, 6"); A("s_add_u32 s50, s50, s43")
            A("v_and_b32 v12, 12, v2"); A("v_add_u32 v14, v12, v3"); A("v_lshlrev_b32 v14, 13, v14")
            A("v_and_b32 v12, 3, v2"); A("v_lshl_add_u32 v14, v12, 4, v14")
            A("s_mov_b32 s12, s32"); A("s_mov_b32 s13, s33"); A(f"s_mov_b32 s14, {1792*1024}")
            self.slabload(ST, "s[12:15]", 14, 1024, mf, last_inc=121 * 1024, pace=self.w2p)
            self.slabload(RD, "s[12:15]", 14, 1024, mf, pace=self.w2p, cont=True)
        A(f"s_lshl_b32 s43, s60, {7+self.fh}")
        A("v_lshlrev_b32 v13, 4, v3")
        A(f"v_and_b32 v12, {(1<<self.fh)-1}, v2"); A("v_lshl_add_u32 v13, v12, 6, v13")
        A("v_add_u32 v13, s43, v13")
        A(f"global_load_dwordx4 v[{T+16}:{T+19}], v13, s[30:31]")
        A(f"global_load_dwordx4 v[{T+20}:{T+23}], v13, s[30:31] offset:{64<<self.fh}")
        UU, W, BB = RB + 64, RB + 80, RB + 112
        C("U[4(2r+n) + 2t + ((c>>1)&1)][c&1][half][b=c>>2][kk][4]" if self.fh == 1 else "U[8r + 4n + (c&3)][t][half][b=c>>2][kk][4]")
        A("v_and_b32 v12, 3, v2"); A(f"v_lshlrev_b32 v12, {8+self.fh}, v12")
        A("v_lshrrev_b32 v13, 2, v2"); A("v_lshl_add_u32 v12, v13, 6, v12")
        A("v_lshl_add_u32 v12, v3, 4, v12")
        A("s_lshl_b32 s42, s60, 13")
        A(f"s_add_u32 s42, s42, {WS_U:#x}")
        A(f"v_add_u32 v{T}, s42, v12")
        A(f"v_add_u32 v{T+1}, 0x1000, v{T}")
        lds_ = [(UU + 16*t + 8*n + 4*hf, T + n, (2048 if self.fh == 1 else 512)*t + 256*hf) for t in range(2) for n in range(2) for hf in range(2)]
        self.spin_begin("L_sp_u")
        for r, v, o in lds_:
            A(f"global_load_dwordx4 v[{r}:{r+3}], v{v}, s[40:41] offset:{o} sc1")
        A("s_waitcnt vmcnt(0)")
        self.chk(13, UU, 32)
        self.chk_branch(13, "L_sp_u", 32)
        self.unpack(BB, T + 16, 8)
        for i in range(16):
            A(f"v_add_f32 v{UU+i}, v{UU+i}, v{UU+16+i}")
        for i in range(16 if self.fh == 1 else 0):
            A(f"v_add_f32_dpp v{UU+i}, v{UU+i}, v{UU+i} quad_perm:[2,3,0,1] row_mask:0xf bank_mask:0xf")
        for i in range(16):
            self.rnd(UU + i, UU + i)
        for i in range(16):
            A(f"v_add_f32 v{UU+i}, v{UU+i}, v{BB+i}")
        for i in range(16):
            self.rnd(UU + i, UU + i)
        C("gelu(tanh form) = u / (1 + exp(-2k(u + 0.044715 u^3)))")
        k2 = -2.0 * math.sqrt(2.0 / math.pi) * math.log2(math.e)
        A(f"s_mov_b32 s42, {f32(0.044715 * k2)}"); A(f"s_mov_b32 s43, {f32(k2)}")
        A("v_mov_b32 v12, s43")
        for i in range(16):
            A(f"v_mul_f32 v{W+i}, v{UU+i}, v{UU+i}")
        for i in range(16):
            A(f"v_fma_f32 v{W+i}, v{W+i}, s42, v12")
        for i in range(16):
            A(f"v_mul_f32 v{W+i}, v{W+i}, v{UU+i}")
        for i in range(16):
            A(f"v_exp_f32 v{W+i}, v{W+i}")
        for i in range(16):
            A(f"v_add_f32 v{W+i}, 1.0, v{W+i}")
        for i in range(16):
            A(f"v_rcp_f32 v{W+i}, v{W+i}")
        for i in range(16):
            A(f"v_mul_f32 v{UU+i}, v{UU+i}, v{W+i}")
        for d in range(8):
            A(f"v_cvt_pk_bf16_f32 v{RA+d}, v{UU+2*d}, v{UU+2*d+1}")
        self.slabperm(RB + 64, ST)
        self.slabperm(RB + 96, RD)
        self.slabmfma(RD, RA, RB + 64, True)
        self.slabmfma(RD, RA + 4, RB + 96, False)
        NZ = 28 >> self.fh
        C("Z[b=kk][32-column block][r][half=c>>3][c&3][4]")
        A(f"v_mul_u32_u24 v12, {16*NZ*128}, v3")
        if self.fh == 1:
            A("v_and_b32 v13, 4, v2"); A(f"v_mul_u32_u24 v13, {NZ*32}, v13"); A("v_add_u32 v12, v12, v13")
        A("v_lshrrev_b32 v13, 3, v2")
        A("v_lshl_add_u32 v12, v13, 6, v12")
        A("v_and_b32 v13, 3, v2")
        A("v_lshl_add_u32 v12, v13, 4, v12")
        A(f"s_mul_i32 s42, s61, {NZ*128*(2 if self.fh == 1 else 1)}"); A("s_lshl_b32 s43, s60, 7"); A("s_add_u32 s42, s42, s43")
        A(f"s_add_u32 s42, s42, {WS_Z:#x}")
        A("v_add_u32 v12, s42, v12")
        self.fold(T, RD)
        A(f"global_store_dwordx4 v12, v[{T}:{T+3}], s[40:41] sc1")
        A("s_mov_b64 exec, -1")
        A("L_not1:")
        A("s_cmp_eq_u32 s94, 0")
        A("s_cbranch_scc1 L_nowo")
        C("(empty descriptors: only the stream waves return to their loop from the code below)")
        A("s_mov_b64 s[8:9], s[24:25]"); A("s_mov_b64 s[12:13], s[24:25]")
        A("s_mov_b32 s10, 0"); A("s_mov_b32 s14, 0"); A("s_mov_b64 s[46:47], s[10:11]")
        A("v_mov_b32 v5, 0"); A("v_mov_b32 v58, 0")
        self.burst()
        A("L_nowo:")
        self.stamp(4)
        T = 96
        if self.ctl:
            self.control5()
        A("s_cmp_lg_u32 s7, 2")
        A("s_cbranch_scc1 L_nopub")
        C("helper 2: softmax bookkeeping with the other side of this head")
        A("v_lshlrev_b32 v12, 2, v2")
        self.spin_begin("L_sp_m")
        A(f"ds_read_b32 v14, v12 offset:{MLM}")
        A(f"ds_read_b32 v11, v12 offset:{MLL}")
        A("s_waitcnt lgkmcnt(0)")
        A("v_max_u32 v13, v14, v11")
        A("v_cmp_eq_u32 vcc, -1, v13")
        A("s_cbranch_vccz L_sp_m_done")
        self.spin_end("L_sp_m", 4)
        A("L_sp_m_done:")
        PW = T + 8
        A(f"ds_read_b128 v[{PW}:{PW+3}], v6 offset:{PL}")
        A(f"v_mov_b32 v{T}, v14")
        self.row_allreduce("max", T)
        A(f"v_sub_f32 v13, v14, v{T}")
        A("v_exp_f32 v13, v13")
        A(f"v_mov_b32 v{T+1}, s63"); A(f"v_mov_b32 v{T+3}, s63")
        A(f"v_mul_f32 v{T+2}, v13, v11")
        self.row_allreduce("add", T + 2)
        for k in range(self.mld):
            A("s_sleep 127")
        A(f"s_lshl_b32 s42, s59, {self.mls}"); A(f"s_add_u32 s42, s42, {WS_ML:#x}")
        if self.fl & 1:
            A("v_and_b32 v11, 0x70, v6"); A("v_add_u32 v11, s42, v11")
        else:
            A("v_mov_b32 v11, s42")
        A("s_mov_b64 exec, 0xff" if self.fl & 1 else "s_mov_b64 exec, 1")
        A("s_waitcnt vmcnt(0)")
        A(f"global_store_dwordx4 v11, v[{T}:{T+3}], s[40:41] sc1")
        if self.mlp != 2:
            A("s_mov_b64 exec, -1")
        A(f"v_xor_b32 v11, {1 << self.mls:#x}, v11")
        self.spin_begin("L_sp_p")
        A(f"global_load_dwordx4 v[{T+4}:{T+7}], v11, s[40:41] sc1")
        A("s_waitcnt vmcnt(0)")
        A(f"v_xor_b32 v13, s63, v{T+5}")
        A(f"v_bitop3_b32 v13, v13, v{T+7}, s63 bitop3:0xf6")
        A("v_cmp_ne_u32 vcc, 0, v13")
        A("s_cbranch_vccz L_sp_p_done")
        self.spin_end("L_sp_p", self.psl)
        A("L_sp_p_done:")
        if self.mlp == 2:
            A(f"v_readfirstlane_b32 s42, v{T+4}"); A(f"v_readfirstlane_b32 s43, v{T+6}")
            A("s_mov_b64 exec, -1")
            A(f"v_mov_b32 v{T+4}, s42"); A(f"v_mov_b32 v{T+6}, s43")
        C("row factor exp(M_row - M_head) / L_head")
        A(f"v_max_f32 v{T+1}, v{T}, v{T+4}")
        A(f"v_sub_f32 v{T}, v{T}, v{T+1}"); A(f"v_sub_f32 v{T+4}, v{T+4}, v{T+1}"); A(f"v_sub_f32 v14, v14, v{T+1}")
        A(f"v_exp_f32 v{T}, v{T}"); A(f"v_exp_f32 v{T+4}, v{T+4}"); A("v_exp_f32 v14, v14")
        A(f"v_mul_f32 v{T+2}, v{T}, v{T+2}")
        A(f"v_fmac_f32 v{T+2}, v{T+4}, v{T+6}")
        A(f"v_rcp_f32 v{T+2}, v{T+2}")
        A("v_and_b32 v13, 0x3c, v4")
        A(f"v_mul_f32 v14, v14, v{T+2}")
        A("v_min_u32 v14, -2, v14")
        A(f"ds_write_b32 v12, v14 offset:{CFL}")
        A(f"ds_read_b32 v14, v13 offset:{CFL}")
        self.stamp(11)
        A("s_lshl_b32 s42, s59, 7"); A(f"s_add_u32 s42, s42, {WS_GH:#x}")
        A("v_lshl_add_u32 v11, v2, 3, s42" if self.fl & 2 else "v_mov_b32 v11, s42")
        A("v_xor_b32 v12, 0x80, v11")
        A("s_lshl_b32 s42, s59, 10"); A(f"s_add_u32 s42, s42, {WS_GP:#x}")
        A("v_add_u32 v9, s42, v6")
        A(f"v_mov_b32 v{T+1}, s63")
        A("s_waitcnt lgkmcnt(0)")
        for d in range(4):
            A(f"v_mul_f32 v{PW+d}, v14, v{PW+d}")
        self.tag4(PW)
        if self.xm == 2:
            A(f"global_store_dwordx4 v9, v[{PW}:{PW+3}], s[40:41] sc1")
            A("v_xor_b32 v9, 0x400, v9")
        ps = self.pstep
        def wait_prg(lab, slots, sleep):
            self.spin_begin(lab)
            A(f"ds_read_b32 v13, v10 offset:{PRG}")
            A("s_waitcnt lgkmcnt(0)")
            A("v_readfirstlane_b32 s42, v13")
            A(f"s_cmp_ge_u32 s42, {4*(slots+self.K0)//ps}")
            A(f"s_cbranch_scc1 {lab}_done")
            self.spin_end(lab, sleep)
            A(f"{lab}_done:")
        A("s_cmp_eq_u32 s94, 0")
        A("s_cbranch_scc1 L_sp_e_done")
        wait_prg("L_sp_w", self.xs - 16, 16)
        C("all output records of batch row s92 have been marked empty once their softmax records are there")
        A(f"s_lshl_b32 s42, s92, {self.mls + 6}"); A(f"s_add_u32 s42, s42, {WS_ML + 4:#x}")
        A(f"v_lshl_add_u32 v14, v6, {self.mls - 4}, s42")
        self.spin_begin("L_sp_e")
        A("global_load_dword v13, v14, s[40:41] sc1")
        A("s_waitcnt vmcnt(0)")
        A("v_cmp_ne_u32 vcc, s63, v13")
        A("s_cbranch_vccz L_sp_e_done")
        self.spin_end("L_sp_e", 16)
        A("L_sp_e_done:")
        wait_prg("L_sp_a", self.xs, 16)
        if self.xm == 2:
            self.spin_begin("L_sp_d")
            A(f"global_load_dwordx4 v[{PW}:{PW+3}], v9, s[40:41] sc1")
            A("s_waitcnt vmcnt(0)")
            self.chk(13, PW, 4)
            self.chk_branch(13, "L_sp_d", 8)
            A(f"ds_write_b128 v6, v[{PW}:{PW+3}] offset:{PL}")
            C("both sides note when they pass the checkpoint (or expect to, once the other one has); the later one hands")
            C("over slots in proportion to its lag")
            A("v_readfirstlane_b32 s46, v12")
            A("s_mov_b64 exec, 1")
            A("s_mov_b32 s47, 0")
            self.spin_begin("L_sp_b")
            A("s_load_dwordx2 s[42:43], s[40:41], s46 glc")
            A(f"ds_read_b32 v13, v10 offset:{PRG}")
            A("s_memrealtime s[44:45]")
            A("s_and_b32 s60, s55, 15")
            A("s_cbranch_scc1 L_nov")
            A(f"global_load_dword v{T}, v12, s[40:41] sc1")
            A("L_nov:")
            A("s_waitcnt lgkmcnt(0)")
            A("v_readfirstlane_b32 s45, v13")
            A("s_xor_b32 s43, s43, s42")
            A(f"s_sub_i32 s45, {4*(self.xc+self.K0)//ps}, s45")
            A("s_cmp_eq_u32 s43, s63")
            A("s_cselect_b32 s60, 0, s45")
            A("s_max_i32 s60, s60, s47")
            A("s_cmp_gt_i32 s60, 0")
            A("s_cbranch_scc1 L_nopost")
            A(f"s_mul_i32 s45, s45, {self.xtau}"); A("s_ashr_i32 s45, s45, 2"); A("s_add_u32 s61, s44, s45")
            A(f"v_mov_b32 v{T+2}, s61"); A(f"v_xor_b32 v{T+3}, s61, v{T+1}")
            A(f"global_store_dwordx2 v11, v[{T+2}:{T+3}], s[40:41] sc1")
            A("s_mov_b32 s47, 1")
            A("L_nopost:")
            A("s_cmp_eq_u32 s43, s63")
            A("s_cbranch_scc1 L_sp_b_done")
            self.spin_end("L_sp_b", self.xsl)
            A("L_sp_b_done:")
            A("s_sub_i32 s42, s42, s61")
            A("s_abs_i32 s43, s42"); A("s_min_u32 s43, s43, 0x1000")
            A(f"s_mul_i32 s43, s43, {self.xg}"); A(f"s_add_i32 s43, s43, {self.xo}"); A("s_lshr_b32 s43, s43, 8")
            A(f"s_min_u32 s43, s43, {self.xmax}")
            A("s_sub_i32 s44, 0, s43")
            A("s_cmp_gt_i32 s42, 0")
            A("s_cselect_b32 s42, s43, s44")
            A("s_add_i32 s42, s42, 128")
            A("v_mov_b32 v13, s42"); A("v_min_u32 v12, 128, v13")
            A(f"ds_write_b64 v10, v[12:13] offset:{DEC}")
            A("s_mov_b64 exec, -1")
            if self.diag:
                A("s_mov_b32 s84, s42"); A("s_mov_b32 s85, 0")
        else:
            if self.xm:
                wait_prg("L_sp_t", self.xc, 1)
                C("both sides note when they pass the checkpoint; the later one hands over slots in proportion to its lag")
                A("s_memrealtime s[44:45]")
                A(f"v_mov_b32 v{T+4}, 0")
                if self.xsp:
                    A("v_readfirstlane_b32 s46, v12")
                A("s_mov_b64 exec, 1")
                A("s_waitcnt lgkmcnt(0)")
                A(f"v_mov_b32 v{T+2}, s44"); A(f"v_xor_b32 v{T+3}, s44, v{T+1}")
                A(f"global_store_dwordx2 v11, v[{T+2}:{T+3}], s[40:41] offset:8 sc1")
                if not self.xsp:
                    A(f"v_not_b32 v{T+5}, s63")
                self.spin_begin("L_sp_b")
                if self.xsp:
                    A("s_load_dwordx2 s[42:43], s[40:41], s46 offset:8 glc")
                    A(f"ds_read_b32 v13, v10 offset:{PRG}")
                    A("s_waitcnt lgkmcnt(0)")
                    A("v_readfirstlane_b32 s47, v13")
                else:
                    A(f"global_load_dwordx2 v[{T+4}:{T+5}], v12, s[40:41] offset:8 sc1")
                    A(f"ds_read_b32 v13, v10 offset:{PRG}")
                    A(f"s_waitcnt vmcnt({self.xpd-1}) lgkmcnt(0)")
                    A(f"v_readfirstlane_b32 s43, v{T+5}")
                    A(f"v_readfirstlane_b32 s42, v{T+4}")
                    A("v_readfirstlane_b32 s47, v13")
                A("s_xor_b32 s43, s43, s42")
                A("s_cmp_eq_u32 s43, s63")
                A("s_cbranch_scc1 L_give")
                A(f"s_cmp_ge_u32 s47, {4*(self.xe+self.K0)//ps}")
                A("s_cbranch_scc1 L_pass")
                self.spin_end("L_sp_b", self.xsl)
            else:
                C("whoever finds the other side past the checkpoint before it is there itself hands over slots")
                self.spin_begin("L_sp_b")
                A(f"global_load_dwordx2 v[{T+4}:{T+5}], v12, s[40:41] sc1")
                A("s_waitcnt vmcnt(0)")
                A(f"ds_read_b32 v13, v10 offset:{PRG}")
                A(f"v_readfirstlane_b32 s43, v{T+5}")
                A("s_waitcnt lgkmcnt(0)")
                A("v_readfirstlane_b32 s42, v13")
                A("s_cmp_eq_u32 s43, s63")
                A("s_cbranch_scc1 L_give")
                A(f"s_cmp_ge_u32 s42, {4*(self.xc+self.K0)//ps}")
                A("s_cbranch_scc1 L_pass")
                self.spin_end("L_sp_b", self.xsl)
            A("L_pass:")
            A(f"v_mov_b32 v{T}, 0")
            A("s_mov_b64 exec, 0xffff" if self.fl & 2 else "s_mov_b64 exec, 1")
            A(f"global_store_dwordx2 v11, v[{T}:{T+1}], s[40:41] sc1")
            A("s_mov_b64 exec, -1")
            A("v_mov_b32 v13, 128")
            A(f"ds_write_b32 v10, v13 offset:{DEC}")
            A("v_xor_b32 v9, 0x400, v9")
            self.spin_begin("L_sp_c")
            A(f"global_load_dwordx2 v[{T+4}:{T+5}], v12, s[40:41] sc1")
            A("s_waitcnt vmcnt(0)")
            A(f"v_readfirstlane_b32 s43, v{T+5}")
            A(f"v_readfirstlane_b32 s42, v{T+4}")
            A("s_cmp_eq_u32 s43, s63")
            A("s_cbranch_scc1 L_sp_c_done")
            self.spin_end("L_sp_c", self.xsl)
            A("L_sp_c_done:")
            A("s_cmp_eq_u32 s42, 0")
            A("s_cbranch_scc1 L_sp_d_done")
            self.spin_begin("L_sp_d")
            A(f"global_load_dwordx4 v[{PW}:{PW+3}], v9, s[40:41] sc1")
            A("s_waitcnt vmcnt(0)")
            self.chk(13, PW, 4)
            A(f"ds_write_b128 v6, v[{PW}:{PW+3}] offset:{PL}")
            self.chk_branch(13, "L_sp_d", 2)
            A("s_add_u32 s42, s42, 128")
            A("v_mov_b32 v13, s42")
            A(f"ds_write_b32 v10, v13 offset:{DEC+4}")
            if self.diag:
                A("s_mov_b32 s84, s42"); A("s_mov_b32 s85, 0")
            A("s_branch L_nopub")
            A("L_give:")
            if self.xm:
                A("s_mov_b64 exec, -1")
                A("s_sub_i32 s42, s44, s42")
                A("s_max_i32 s42, s42, 0"); A("s_min_i32 s42, s42, 0x1000")
                A(f"s_mul_i32 s42, s42, {self.xg}"); A(f"s_add_i32 s42, s42, {self.xo}"); A("s_ashr_i32 s42, s42, 8")
                A(f"s_min_i32 s42, s42, {self.xmax}")
                A("s_cmp_le_i32 s42, 0")
                A("s_cbranch_scc1 L_pass")
            else:
                A(f"s_sub_i32 s42, {(4*(self.xc+self.K0) + self.xd)//ps}, s42")
                A(f"s_mul_i32 s42, s42, {self.xk*ps}"); A("s_ashr_i32 s42, s42, 6")
                A("s_max_i32 s42, s42, 0"); A(f"s_min_i32 s42, s42, {self.xmax}")
            A(f"v_mov_b32 v{T}, s42")
            A("s_cmp_eq_u32 s42, 0")
            A("s_cbranch_scc1 L_give0")
            A(f"global_store_dwordx4 v9, v[{PW}:{PW+3}], s[40:41] sc1")
            A("L_give0:")
            A("s_mov_b64 exec, 0xffff" if self.fl & 2 else "s_mov_b64 exec, 1")
            A(f"global_store_dwordx2 v11, v[{T}:{T+1}], s[40:41] sc1")
            A("s_mov_b64 exec, -1")
            A("s_sub_u32 s42, 128, s42")
            A("v_mov_b32 v12, s42"); A("v_mov_b32 v13, s42")
            A(f"ds_write_b64 v10, v[12:13] offset:{DEC}")
            if self.diag:
                A("s_mov_b32 s84, s42"); A("s_mov_b32 s85, 0")
        A("L_nopub:")
        self.stamp(5)
        if self.dwk:
            A("s_lshl2_add_u32 s42, s94, s7")
            A("s_cmp_eq_u32 s42, 3")
            A("s_cbranch_scc1 L_dwk")
        A("s_cmp_eq_u32 s94, 0")
        A("s_cbranch_scc1 L_hend")
        A("s_cmp_lg_u32 s7, 3")
        A("s_cbranch_scc1 L_nog")
        G, XV = T, T + 1
        C("helper 3: gate of column 4(l&7) + 2(l>>5) + ((l>>4)&1)")
        A("v_and_b32 v12, 7, v4"); A("v_lshlrev_b32 v8, 2, v12")
        A("v_lshrrev_b32 v13, 5, v4"); A("v_lshl_add_u32 v8, v13, 1, v8")
        A("v_bfe_u32 v13, v4, 4, 1"); A("v_add_u32 v8, v8, v13")
        A("s_lshl_b32 s42, s93, 6")
        A("v_lshl_add_u32 v13, v8, 1, s42")
        A(f"global_load_ushort v{G}, v13, s[34:35]")
        A("v_lshl_add_u32 v13, s92, 10, v13")
        A(f"global_load_ushort v{XV}, v13, s[16:17]")
        if self.ot:
            C("(value unused: the address translation of the output is fetched ahead of the store)")
            A(f"global_load_ushort v{XV+1}, v13, s[36:37]")
        C("Z[b][cq][r=l>>3][l&1][(l>>1)&3][4]")
        A("s_lshl4_add_u32 s42, s92, s93")
        A(f"s_mul_i32 s42, s42, {NZ*128}"); A(f"s_add_u32 s42, s42, {WS_Z:#x}")
        A("v_lshrrev_b32 v13, 3, v4"); A("v_lshl_add_u32 v12, v13, 7, s42")
        A("v_and_b32 v13, 1, v4"); A("v_lshl_add_u32 v12, v13, 6, v12")
        A("v_and_b32 v13, 6, v4"); A("v_lshl_add_u32 v12, v13, 3, v12")
        self.spin_begin("L_sp_z")
        C("the lanes past the last line are masked off and hold tagged zeros")
        for d in range(4 * NQ):
            A(f"v_mov_b32 v{RD+d}, s{96+d%4}")
        A("s_mov_b32 exec_hi, 0xffffff")
        for t in range(NQ):
            A(f"global_load_dwordx4 v[{RD+4*t}:{RD+4*t+3}], v12, s[40:41] offset:{7*128*t} sc1")
        A("s_mov_b32 exec_hi, -1")
        A("s_waitcnt vmcnt(0)")
        self.chk(13, RD, 4 * NQ)
        self.chk_branch(13, "L_sp_z", 32)
        for d in range(4 if NQ > 1 else 0):
            A(f"v_add_f32 v{RD+d}, v{RD+d}, v{RD+4+d}")
        A(f"v_lshlrev_b32 v{G}, 16, v{G}")
        A(f"v_lshlrev_b32 v{XV}, 16, v{XV}")
        self.xl_reduce4(RD)
        self.rnd(RD, RD)
        A(f"v_add_f32 v{RD}, v{RD}, v{G}")
        self.rnd(RD, RD)
        A(f"v_mul_f32 v{RD+1}, {f32(-math.log2(math.e))}, v{RD}")
        A(f"v_exp_f32 v{RD+1}, v{RD+1}")
        A("v_lshlrev_b32 v8, 3, v8")
        A(f"v_add_f32 v{RD+1}, 1.0, v{RD+1}")
        A(f"v_rcp_f32 v{RD+1}, v{RD+1}")
        A("s_nop 0")
        A(f"v_mul_f32 v{G}, v{RD}, v{RD+1}")
        self.rnd(G, G)
        A(f"ds_write_b64 v8, v[{G}:{G+1}] offset:{GX}")
        A("L_nog:")
        if self.dry:
            A("s_cmp_lg_u32 s7, 1")
            A("s_cbranch_scc1 L_nodry")
            C("helper 1 walks through the code below with no lane active to bring it into the instruction cache")
            A("s_mov_b32 s94, 3")
            A("s_mov_b64 s[100:101], 0")
            if self.dwk:
                A("L_dwk:")
                C("the same for the last steps of the stream waves (helper 3 of the other WGs ends there); empty descriptor")
                A("s_mov_b64 s[12:13], s[24:25]"); A("s_mov_b32 s14, 0")
                for r in (17, 19, 21, 22):
                    A(f"v_mov_b32 v{r}, 0")
                A(f"s_mov_b32 s61, {32 - self.DV}")
                A("s_mov_b64 exec, 0")
                A("s_branch L_drw")
            else:
                A("s_branch L_proj")
            A("L_dry:")
            A("s_sub_u32 s94, s94, 1")
            A("s_cmp_eq_u32 s94, 2")
            A("s_cbranch_scc1 L_h1")
            A("s_mov_b64 s[100:101], -1")
            A("s_mov_b64 exec, -1")
            A("s_waitcnt vmcnt(0)")
            A("L_nodry:")
        wait_prg("L_sp_v", 104, 16)
        if self.eb == 4:
            A("s_lshl2_add_u32 s42, s2, s7")
            A(f"s_cmp_lg_u32 s42, {4 * (254 + self.cpar) + 3}")
            A("s_cbranch_scc1 L_nobump")
            C("every reader of the tag word is done once this wave has the gate (all MLP units) and helper 2, before it")
            C("decides, has seen the softmax records of a whole batch row (all q units)")
            self.spin_begin("L_sp_n")
            A(f"ds_read_b32 v13, v10 offset:{DEC}")
            A("s_waitcnt lgkmcnt(0)")
            A("v_cmp_eq_u32 vcc, -1, v13")
            A("s_cbranch_vccz L_sp_n_done")
            self.spin_end("L_sp_n", 4)
            A("L_sp_n_done:")
            A(f"v_mov_b32 v12, {WS_EP:#x}"); A("v_mov_b32 v13, s63")
            A("global_store_dword v12, v13, s[40:41] sc1")
            A("L_nobump:")
        self.spin_begin("L_sp_o")
        A(f"ds_read_b32 v13, v10 offset:{OC}")
        A("s_waitcnt lgkmcnt(0)")
        A(f"v_cmp_gt_u32 vcc, {self.pw}, v13")
        A("s_cbranch_vccz L_proj")
        self.spin_end("L_sp_o", 1)
        self.project()
        A("L_hend:")
        self.dump_stamps(14, 16)
        if self.prog:
            A("s_cmp_ge_u32 s3, 4")
            A("s_cbranch_scc1 L_end")
            A("s_lshl_b32 s60, s2, 2"); A("s_add_u32 s60, s60, s3"); A("s_lshl_b32 s60, s60, 6")
            A(f"s_add_u32 s60, s60, {WS_DIAG + 0x80000:#x}")
            A("v_and_b32 v24, 63, v0"); A("v_lshlrev_b32 v24, 2, v24")
            A("v_add_u32 v24, s60, v24")
            A("s_mov_b64 exec, 0xffff")
            A("global_store_dword v24, v60, s[40:41]")

def gen(**kw):
    return Gen(**kw).gen()

if __name__ == "__main__":
    out = sys.argv[1]
    kw = eval("dict(" + (sys.argv[2] if len(sys.argv) > 2 else "") + ")")
    open(out, "w").write(gen(**kw))
```
